```python
import torch

def _softmax(x, axis=-1):
    return torch.softmax(x, dim=axis)

def _gelu(x):
    return torch.nn.functional.gelu(x, approximate='tanh')

def _silu(x):
    return torch.nn.functional.silu(x)

def _sigmoid(x):
    return torch.sigmoid(x)

def _layernorm(x, axis=-1, eps=1e-05):
    m = x.mean(dim=axis, keepdim=True)
    v = x.var(dim=axis, keepdim=True, unbiased=False)
    return (x - m) / torch.sqrt(v + eps)

def _scatter_add(tgt, idx, src, axis=0):
    return tgt.clone().index_add_(axis, idx, src)

def _segment_sum(src, seg, n):
    out = torch.zeros((n,) + src.shape[1:], dtype=src.dtype)
    return out.index_add_(0, seg, src)

def _pad(x, pw):
    flat = tuple((v for pair in reversed(pw) for v in pair))
    return torch.nn.functional.pad(x, flat)
kernel_name = 'recurrent_scan__sliding_local_dilated__mixer_gmlp__prompt'

def setup_inputs():

    _w = lambda a: (lambda t: t.to(torch.bfloat16) if t.is_floating_point() else t)(torch.as_tensor(a))

    def _A_setup():
        B, S, D = (1, 2048, 576)
        return {'x': _w((lambda *s: torch.randn(*s, dtype=torch.bfloat16) * 0.05)(B, S, D)), 'wqkv': _w((lambda *s: torch.randn(*s, dtype=torch.bfloat16) * 0.05)(D, 3 * D)), 'wo': _w((lambda *s: torch.randn(*s, dtype=torch.bfloat16) * 0.05)(D, D))}
    _A_in = _A_setup()

    def _B_setup():
        B, S, D, F = (1, 2048, 576, 4608)
        Fh = F // 2
        return {'x': _w((lambda *s: torch.randn(*s, dtype=torch.bfloat16) * 0.05)(B, S, D)), 'w_in': _w((lambda *s: torch.randn(*s, dtype=torch.bfloat16) * 0.8)(D, 2 * Fh)), 'w_sp': _w(0.01 * (lambda *s: torch.randn(*s, dtype=torch.bfloat16) * 0.8)(S, S)), 'b_sp': _w(1.0 + 0.01 * (lambda *s: torch.randn(*s, dtype=torch.bfloat16) * 0.05)(S)), 'w_out': _w((lambda *s: torch.randn(*s, dtype=torch.bfloat16) * 0.05)(Fh, D))}
    _B_in = _B_setup()
    return {'A_x': _A_in['x'], 'A_wqkv': _A_in['wqkv'], 'A_wo': _A_in['wo'], 'B_x': _B_in['x'], 'B_w_in': _B_in['w_in'], 'B_w_sp': _B_in['w_sp'], 'B_b_sp': _B_in['b_sp'], 'B_w_out': _B_in['w_out']}

def reference(A_x, A_wqkv, A_wo, B_x, B_w_in, B_w_sp, B_b_sp, B_w_out):

    def _A_ref(x, wqkv, wo):
        B, S, D = x.shape
        H = 32
        Dh = D // H
        W, dil = (8, 2)
        qkv = (lambda x, *d: x.permute(*d))((x @ wqkv).reshape(B, S, 3, H, Dh), 2, 0, 3, 1, 4)
        q, k, v = (qkv[0], qkv[1], qkv[2])
        scale = Dh ** (-0.5)
        pos = torch.arange(S)
        off = torch.arange(W) * dil
        idx = pos[:, None] - off[None, :]
        mask = idx >= 0
        idx_c = torch.where(mask, idx, 0).reshape(-1)
        kg = k[:, :, idx_c, :].reshape(B, H, S, W, Dh)
        vg = v[:, :, idx_c, :].reshape(B, H, S, W, Dh)
        logits = torch.einsum('bhsd,bhswd->bhsw', q, kg) * scale
        logits = torch.where(mask[None, None, :, :], logits, -1000000000.0)
        attn = _softmax(logits, axis=-1)
        o = torch.einsum('bhsw,bhswd->bhsd', attn, vg)
        return (lambda x, *d: x.permute(*d))(o, 0, 2, 1, 3).reshape(B, S, D) @ wo

    def _B_ref(x, w_in, w_sp, b_sp, w_out):
        B, S, D = x.shape
        F = w_in.shape[-1]
        Fh = F // 2
        z = _gelu(torch.einsum('bsd,df->bsf', x, w_in))
        z1 = z[..., :Fh].clone()
        z2 = _layernorm(z[..., Fh:], axis=-1)
        g = torch.einsum('ts,bsf->btf', w_sp, z2) + b_sp[None, :, None]
        return torch.einsum('bsf,fd->bsd', z1 * g, w_out)
    x = A_x
    xn = _layernorm(x, axis=-1)
    s = _A_ref(xn, A_wqkv, A_wo)
    g = _silu(_B_ref(xn, B_w_in, B_w_sp, B_b_sp, B_w_out))
    return x + s * g
```

```python
import re

class Asm:
    def __init__(self):
        self.lines = []
        self.uid = 0
    def __call__(self, s):
        for l in s.split("\n"):
            l = l.strip()
            if l:
                self.lines.append(l)
    def label(self, name):
        self.lines.append(name + ":")
    def newlabel(self, base="L"):
        self.uid += 1
        return f"{base}_{self.uid}"
    def c(self, s):
        self.lines.append("; " + s)
    def srd(self, d, base_lo, base_hi, nbytes):
        self(f"s_mov_b32 s{d}, s{base_lo}")
        self(f"s_mov_b32 s{d+1}, s{base_hi}")
        self(f"s_mov_b32 s{d+2}, {nbytes}")
        self(f"s_mov_b32 s{d+3}, 0x00020000")
    def srd_off(self, d, base_lo, base_hi, off, nbytes):
        self(f"s_add_u32 s{d}, s{base_lo}, {off}")
        self(f"s_addc_u32 s{d+1}, s{base_hi}, 0")
        self(f"s_mov_b32 s{d+2}, {nbytes}")
        self(f"s_mov_b32 s{d+3}, 0x00020000")

def vr(b, n=1):
    return f"v{b}" if n == 1 else f"v[{b}:{b+n-1}]"
def ar(b, n=1):
    return f"a{b}" if n == 1 else f"a[{b}:{b+n-1}]"
def sr(b, n=1):
    return f"s{b}" if n == 1 else f"s[{b}:{b+n-1}]"

_REG = re.compile(r"^-?\|?(?:neg\(|abs\()?([vas])(?:(\d+)|\[(\d+):(\d+)\])\)?\|?$")
def regs_of(tok):
    tok = tok.strip()
    if tok == "vcc": return [("s", 106), ("s", 107)]
    if tok == "exec": return [("s", 126), ("s", 127)]
    if tok == "m0": return [("s", 124)]
    m = _REG.match(tok)
    if not m: return []
    f = m.group(1)
    if m.group(2) is not None:
        return [(f, int(m.group(2)))]
    return [(f, i) for i in range(int(m.group(3)), int(m.group(4)) + 1)]

TRANS = ("v_exp_f32", "v_log_f32", "v_rcp_f32", "v_rsq_f32", "v_sqrt_f32", "v_sin_f32", "v_cos_f32", "v_rcp_iflag_f32")

def split_ops(rest):
    ops, depth, cur = [], 0, ""
    for ch in rest + ",":
        if ch in "[(": depth += 1
        elif ch in "])": depth -= 1
        if ch == "," and depth == 0:
            ops.append(cur.strip()); cur = ""
        else:
            cur += ch
    return ops

class Ins:
    __slots__ = ("text", "mn", "kind", "dst", "src", "mods", "passes", "srcC", "srcAB", "states")

def parse(line):
    t = line.split(";")[0].strip()
    if not t or t.endswith(":") or t.startswith("."):
        return None
    parts = t.split(None, 1)
    mn = parts[0]
    rest = parts[1] if len(parts) > 1 else ""
    ops = split_ops(rest) if rest else []
    mods = ""
    if ops:
        last = ops[-1].split(None, 1)
        if len(last) > 1 and not last[0].endswith(":"):
            ops[-1] = last[0]; mods = last[1]
    I = Ins(); I.text = t; I.mn = mn; I.mods = mods; I.passes = 0; I.srcC = []; I.srcAB = []; I.states = 1
    R = [regs_of(o) for o in ops]
    if mn == "s_nop":
        I.kind = "nop"; I.dst = []; I.src = []; I.states = int(ops[0], 0) + 1
    elif mn.startswith("v_mfma"):
        I.kind = "mfma"; I.dst = R[0]; I.srcAB = R[1] + R[2]; I.srcC = R[3]; I.src = I.srcAB + I.srcC
        I.passes = 8 if "32x32x16" in mn else 4 if "16x16x32" in mn else 16
    elif mn.startswith("v_"):
        I.kind = "valu"
        base = mn.replace("_e32", "").replace("_e64", "").replace("_dpp", "").replace("_sdwa", "")
        if base.startswith("v_cmp"):
            I.dst = R[0]; I.src = sum(R[1:], [])
        elif base in ("v_permlane16_swap_b32", "v_permlane32_swap_b32", "v_swap_b32"):
            I.dst = R[0] + R[1]; I.src = R[0] + R[1]; I.kind = "perm"
        elif base in ("v_add_co_u32", "v_sub_co_u32", "v_addc_co_u32", "v_subb_co_u32"):
            I.dst = R[0] + R[1]; I.src = sum(R[2:], [])
        else:
            I.dst = R[0]; I.src = sum(R[1:], [])
            if base in ("v_fmac_f32", "v_dot2c_f32_bf16", "v_pk_fmac_f16"): I.src = I.src + R[0]
            if base == "v_cndmask_b32" and len(ops) == 3: I.src = I.src + regs_of("vcc")
        if base in TRANS: I.kind = "trans"
        if base.startswith("v_dot"): I.kind = "dot"
        if base in ("v_readfirstlane_b32", "v_readlane_b32"): I.kind = "rdlane"
        if "dpp" in mn or "row_" in mods or "quad_perm" in mods or "wave_" in mods: I.kind = "dpp"
    elif mn.startswith("ds_"):
        I.kind = "ds"
        if "read" in mn or "permute" in mn or "swizzle" in mn:
            I.dst = R[0]; I.src = sum(R[1:], [])
        else:
            I.dst = []; I.src = sum(R, [])
    elif mn.startswith("buffer_") or mn.startswith("global_"):
        I.kind = "vmem"
        lds = " lds" in (" " + mods) or "_lds_" in mn
        if "load" in mn and not lds:
            I.dst = R[0]; I.src = sum(R[1:], [])
        elif "load" in mn:
            I.dst = []; I.src = sum(R, []) + [("s", 124)]; I.kind = "dma"
        elif "atomic" in mn and "sc0" in mods:
            I.dst = R[0]; I.src = sum(R, [])
        else:
            I.dst = []; I.src = sum(R, [])
            if "store" in mn and ("x3" in mn or "x4" in mn):
                I.kind = "wstore"
                I.srcC = R[0] if mn.startswith("buffer_") else R[1]
    elif mn.startswith("s_"):
        I.kind = "salu"
        if mn.startswith(("s_cmp", "s_cbranch", "s_branch", "s_waitcnt", "s_barrier", "s_endpgm", "s_sleep", "s_setprio", "s_bitcmp", "s_setpc")):
            I.dst = []; I.src = sum(R, [])
        else:
            I.dst = R[0] if R else []; I.src = sum(R[1:], [])
    else:
        raise ValueError("unknown instr " + t)
    return I

VALU_KINDS = ("valu", "trans", "dot", "rdlane", "dpp", "perm")
XDL_D_VALU = {4: 8, 8: 12, 16: 20}
XDL_C_WAR = {4: 3, 8: 7, 16: 15}
XDL_OVERLAP_C = {4: 6, 8: 10, 16: 18}

def need(prod, cons):
    n = 0
    pd = set(prod.dst); cs = set(cons.src); cd = set(cons.dst)
    pv = prod.kind in VALU_KINDS
    cv = cons.kind in VALU_KINDS
    if pv:
        vd = {r for r in pd if r[0] in "va"}
        sd = {r for r in pd if r[0] == "s"}
        if cons.kind == "mfma" and vd & cs: n = max(n, 2)
        if cons.kind in ("perm", "dpp") and vd & cs: n = max(n, 2)
        if cons.kind == "rdlane" and vd & cs: n = max(n, 1)
        if prod.kind == "trans" and cv and cons.kind != "trans" and vd & cs: n = max(n, 1)
        if prod.kind == "trans" and cons.kind in ("ds", "vmem", "wstore") and vd & cs: n = max(n, 1)
        if prod.kind == "dot" and (vd & (cs | cd)) and cons.kind != "salu":
            if not (cons.kind == "dot" and cons.mn == prod.mn and not (vd & set(cons.src[:-len(cons.dst)] if cons.mn.endswith("c_f32_bf16") else cons.src[:2]))):
                n = max(n, 3)
        if sd:
            if cons.kind in ("vmem", "dma", "wstore") and sd & cs: n = max(n, 5)
            if cv and sd & cs: n = max(n, 2 if cons.kind != "rdlane" else 4)
            if cons.kind == "salu" and sd & cs: n = max(n, 1)
            if ("s", 126) in sd and cons.kind == "mfma": n = max(n, 4)
            if ("s", 126) in sd and cons.kind == "dpp": n = max(n, 5)
        if "sdwa" in prod.mn and cv and vd & cs: n = max(n, 1)
    if prod.kind == "salu" and ("s", 124) in pd and cons.kind == "dma": n = max(n, 1)
    if prod.kind == "wstore" and (cv or cons.kind in ("ds", "vmem", "mfma")) and set(prod.srcC) & cd:
        n = max(n, 2)
    if prod.kind == "mfma":
        p = prod.passes
        if cons.kind == "mfma":
            if pd & set(cons.srcAB): n = max(n, XDL_D_VALU[p])
            if pd & set(cons.srcC):
                if not (set(cons.srcC) == pd and cons.passes == p): n = max(n, XDL_OVERLAP_C[p])
            elif pd & cd: n = max(n, XDL_D_VALU[p])
        elif cons.kind != "salu":
            if pd & (cs | cd): n = max(n, XDL_D_VALU[p])
            if cv and set(prod.srcC) & cd: n = max(n, XDL_C_WAR[p])
    return n

def fix_hazards(lines, verbose=False, name=""):
    out = []
    window = []
    inserted = 0
    labels = {}
    parsed = []
    for l in lines:
        I = parse(l)
        parsed.append(I)
    def required(window, I):
        dist = 0; req = 0
        for P in reversed(window):
            nn = need(P, I)
            if nn > dist: req = max(req, nn - dist)
            dist += P.states
            if dist > 24: break
        return req
    for idx, l in enumerate(lines):
        I = parsed[idx]
        if I is None:
            if l.endswith(":"):
                labels[l[:-1]] = idx
            out.append(l); continue
        req = required(window, I)
        if req > 0:
            nop = parse(f"s_nop {req-1}")
            out.append(f"s_nop {req-1}    ; hazard")
            window.append(nop); inserted += 1
            if verbose: print(f"[{name}] nop {req} before: {l}")
        out.append(l)
        window.append(I)
        if len(window) > 40: window = window[-40:]
        if I.mn.startswith(("s_cbranch", "s_branch")):
            tgt = I.text.split()[-1]
            if tgt in labels: start = labels[tgt]
            else:
                start = None
                for j in range(idx + 1, len(lines)):
                    if lines[j] == tgt + ":": start = j; break
            if start is not None:
                w2 = list(window); cnt = 0
                for j in range(start, len(lines)):
                    J = parsed[j]
                    if J is None: continue
                    r = required(w2, J)
                    if r > 0:
                        raise ValueError(f"[{name}] hazard across branch {I.text} -> {J.text}: need {r} more")
                    w2.append(J); cnt += J.states
                    if cnt > 24 or J.mn in ("s_branch", "s_endpgm", "s_setpc_b64"): break
            if I.mn == "s_branch":
                window = []
        if I.mn in ("s_endpgm", "s_setpc_b64"):
            window = []
    return out, inserted

def interleave(slots, fillers, per=None, start=0):
    out = []
    n = len(slots) - start
    k = 0
    for i, s in enumerate(slots):
        out += s
        if i >= start and n > 0:
            tgt = (len(fillers) * (i - start + 1) + n - 1) // n if per is None else min(len(fillers), (i - start + 1) * per)
            while k < tgt:
                out.append(fillers[k]); k += 1
    out += fillers[k:]
    return out
```

```python
import math, struct, sys
from asmlib import *

NAME = "recurrent_scan__sliding_local_dilated__mixer_gmlp__prompt"
def f32(x): return "0x%08x" % struct.unpack("<I", struct.pack("<f", x))[0]

C0 = -2.0 * math.sqrt(2.0 / math.pi) * math.log2(math.e)
C1 = C0 * 0.044715
KSC = -((-C1) ** (1.0 / 3.0))
DELTA = C0 / KSC
EPS = 1e-5
OCT = 32768

class Cfg:
    ws_base = 0
    st_aux_a = ""
    st_aux_n = ""
    st_aux_b = ""
CFG = Cfg()

ZQ_OFF, ZQ_SZ = 0, 792 * OCT
UO_OFF, UO_SZ = 26 << 20, 360 * OCT
WP_OFF, WP_SZ = 38 << 20, 2048 * 4096
ST_OFF, ST_SZ = 47 << 20, 16 * 32 * 1024
CP_OFF, CP_SZ = 48 << 20, 2048 * 64

def kd(name, vgpr, accum, sgpr=96):
    return f""".section .rodata,"a"
.p2align 6
.amdhsa_kernel {name}
  .amdhsa_next_free_vgpr {vgpr}
  .amdhsa_next_free_sgpr {sgpr}
  .amdhsa_accum_offset {accum}
  .amdhsa_group_segment_fixed_size 0
  .amdhsa_kernarg_size 88
  .amdhsa_user_sgpr_count 2
  .amdhsa_user_sgpr_kernarg_segment_ptr 1
  .amdhsa_system_sgpr_workgroup_id_x 1
.end_amdhsa_kernel
"""

def prologue(a, name, ngrid):
    a.lines.append(".text")
    a.lines.append(f".globl {name}")
    a.lines.append(".p2align 8")
    a.lines.append(f".type {name},@function")
    a.label(name)
    a(f"s_cmp_ge_u32 s2, {ngrid}")
    a(f"s_cbranch_scc1 {name}_end")

def gen_KA():
    a = Asm(); N = "ka_kernel"
    X, ACC, W, T = 112, 80, 48, 40
    vL, vXo, vSW0, vSW1, vSR = 1, 2, 3, 4, 32
    vD, vDin, vDq = 8, 12, 13
    vA0, vA1, vPn, vO8, vSt = 14, 15, 16, 17, 18
    vNm, vSc = 20, 21
    vSum = 22
    S = 24
    vSS, vSRd, vStO = 36, 37, 38
    sX, sWI, sWQ, sZQ, sST, sDM = 12, 16, 20, 24, 28, 32
    sWave, sRb, sCg = 36, 37, 38
    sNz2, sNg, sN, sZ2s, sZ1m, sQm = 39, 40, 41, 42, 43, 44
    sU, sV, sUn, sMz2, sP8, sOb = 45, 46, 47, 48, 49, 50
    sMq = 52
    sDma, sDstep, sDvs = 54, 55, 56
    sDp, sDc, sDn = 57, 58, 59
    sBufC, sBufN, sW18 = 60, 61, 62
    sDl, sOlo, sOhi, sOnes = 63, 64, 65, 66
    sXr = 68
    sT0, sT1, sT2, sSo, sSt, sP8i, sP8q = 72, 73, 74, 75, 76, 77, 78
    UB = 73728; STG = 2 * UB
    prologue(a, N, 256)
    a("s_load_dwordx4 s[4:7], s[0:1], 0")
    a("s_load_dwordx2 s[8:9], s[0:1], 32")
    a("s_load_dwordx2 s[10:11], s[0:1], 80")
    a(f"v_and_b32 v{vL}, 63, v0")
    a(f"v_lshrrev_b32 v{T}, 6, v0")
    a(f"v_readfirstlane_b32 s{sWave}, v{T}")
    a(f"""s_and_b32 s{sT0}, s2, 7
    s_lshr_b32 s{sT1}, s2, 3
    s_and_b32 s{sRb}, s{sT0}, 1
    s_lshl_b32 s{sRb}, s{sRb}, 3
    s_and_b32 s{sT2}, s{sT1}, 7
    s_add_u32 s{sRb}, s{sRb}, s{sT2}
    s_lshr_b32 s{sCg}, s{sT0}, 1
    s_lshl_b32 s{sCg}, s{sCg}, 2
    s_lshr_b32 s{sT2}, s{sT1}, 3
    s_add_u32 s{sCg}, s{sCg}, s{sT2}""")
    a(f"""v_lshrrev_b32 v{T}, 3, v{vL}
    v_and_b32 v{T+1}, 7, v{vL}
    v_mul_u32_u24 v{vXo}, 1152, v{T}
    v_lshl_add_u32 v{vXo}, v{T+1}, 4, v{vXo}
    s_lshl_b32 s{sT0}, s{sRb}, 7
    s_lshl_b32 s{sT1}, s{sWave}, 5
    s_add_u32 s{sT0}, s{sT0}, s{sT1}
    s_mul_i32 s{sXr}, s{sT0}, 1152
    s_add_u32 s{sXr+1}, s{sXr}, 9216
    s_add_u32 s{sXr+2}, s{sXr}, 18432
    s_add_u32 s{sXr+3}, s{sXr}, 27648""")
    a("s_waitcnt lgkmcnt(0)")
    a.srd(sX, 4, 5, 2048 * 1152)
    for j in range(9):
        for rg in range(4):
            a(f"buffer_load_dwordx4 {vr(X+16*j+4*rg,4)}, v{vXo}, s[{sX}:{sX+3}], s{sXr+rg} offen offset:{j*128}")
    a.srd(sWI, 8, 9, 576 * 9216)
    a.srd(sWQ, 6, 7, 576 * 3456)
    a.srd_off(sZQ, 10, 11, CFG.ws_base + ZQ_OFF, ZQ_SZ)
    a.srd_off(sST, 10, 11, CFG.ws_base + ST_OFF, ST_SZ)
    a(f"s_mov_b32 s{sDM+3}, 0x00020000")
    a(f"""s_min_u32 s{sT0}, s{sCg}, 4
    s_lshl_b32 s{sZ2s}, s{sCg}, 1
    s_add_u32 s{sZ2s}, s{sZ2s}, s{sT0}
    s_add_u32 s{sZ2s}, s{sZ2s}, 36
    s_cmp_lt_u32 s{sCg}, 4
    s_cselect_b32 s{sNz2}, 3, 2
    s_max_u32 s{sT0}, s{sCg}, 4
    s_min_u32 s{sT0}, s{sT0}, 8
    s_sub_u32 s{sT0}, s{sT0}, 4
    s_lshl_b32 s{sZ1m}, s{sCg}, 1
    s_add_u32 s{sZ1m}, s{sZ1m}, s{sT0}
    s_sub_u32 s{sZ1m}, s{sZ1m}, s{sNz2}
    s_cmp_lt_u32 s{sCg}, 8
    s_cselect_b32 s{sNg}, 5, 4
    s_max_u32 s{sT0}, s{sCg}, 8
    s_sub_u32 s{sT0}, s{sT0}, 8
    s_max_u32 s{sT1}, s{sCg}, 13
    s_sub_u32 s{sT1}, s{sT1}, 13
    s_add_u32 s{sQm}, s{sCg}, s{sT0}
    s_add_u32 s{sQm}, s{sQm}, s{sT1}
    s_sub_u32 s{sQm}, s{sQm}, s{sNg}
    s_cmp_lt_u32 s{sCg}, 13
    s_cselect_b32 s{sN}, 6, 7
    s_mul_i32 s{sW18}, s{sWave}, 18
    s_mov_b32 s{sDl}, {f32(DELTA)}
    s_mov_b32 s{sOlo}, 0x00003f80
    s_mov_b32 s{sOhi}, 0x3f800000
    s_mov_b32 s{sOnes}, 0x3f803f80
    s_mov_b32 s{sP8i}, {8*9216}
    s_mov_b32 s{sP8q}, {8*3456}""")
    a(f"""v_lshrrev_b32 v{T+2}, 2, v{vL}
    v_and_b32 v{T+2}, 4, v{T+2}
    v_xor_b32 v{T+2}, v{T+2}, v{T+1}
    v_lshlrev_b32 v{T+2}, 4, v{T+2}
    v_mul_u32_u24 v{vDin}, 9216, v{T}
    v_add_u32 v{vDin}, v{vDin}, v{T+2}
    v_mul_u32_u24 v{vDq}, 3456, v{T}
    v_add_u32 v{vDq}, v{vDq}, v{T+2}""")
    def params():
        return [
            f"s_add_u32 s{sT0}, s{sZ2s}, s{sV}",
            f"s_add_u32 s{sT1}, s{sZ1m}, s{sV}",
            f"s_add_u32 s{sT2}, s{sQm}, s{sV}",
            f"s_cmp_lt_u32 s{sV}, s{sNz2}\n"
            f"s_cselect_b32 s{sUn}, s{sT0}, s{sT1}\n"
            f"s_cselect_b32 s{sMz2}, -1, 0",
            f"s_cmp_lt_u32 s{sV}, s{sNg}\n"
            f"s_cselect_b32 s{sUn}, s{sUn}, s{sT2}\n"
            f"s_cselect_b64 s[{sMq}:{sMq+1}], 0, -1\n"
            f"s_cselect_b64 s[{sDM}:{sDM+1}], s[{sWI}:{sWI+1}], s[{sWQ}:{sWQ+1}]\n"
            f"s_cselect_b32 s{sDM+2}, s{sWI+2}, s{sWQ+2}\n"
            f"s_cselect_b32 s{sP8}, s{sP8i}, s{sP8q}\n"
            f"s_cselect_b32 s{sOb}, 0, 72",
            f"s_add_u32 s{sOb}, s{sOb}, s{sUn}",
            f"s_lshl_b32 s{sDn}, s{sOb}, 18",
            f"s_mul_i32 s{sDma}, s{sW18}, s{sP8}",
            f"s_lshl_b32 s{sUn}, s{sUn}, 7",
            f"s_add_u32 s{sDma}, s{sDma}, s{sUn}",
            f"s_cmp_lt_u32 s{sV}, s{sN}\n"
            f"s_cselect_b32 s{sDma}, s{sDma}, 0x7f000000",
            f"s_lshl_b32 s{sDstep}, s{sP8}, 2",
            f"s_sub_u32 s{sDvs}, s{sP8}, 1024",
            f"v_cndmask_b32 v{vD}, v{vDin}, v{vDq}, s[{sMq}:{sMq+1}]",
            f"s_lshl_b32 s{sT0}, s{sW18}, 10",
            f"s_add_u32 m0, s{sBufN}, s{sT0}",
            f"v_add_u32 v{vD+1}, s{sDvs}, v{vD}",
            f"v_add_u32 v{vD+2}, s{sDvs}, v{vD+1}",
            f"v_add_u32 v{vD+3}, s{sDvs}, v{vD+2}",
        ]
    def dmas():
        out = []
        for i in range(18):
            j = i % 4
            out.append(f"buffer_load_dwordx4 v{vD+j}, s[{sDM}:{sDM+3}], s{sDma} offen offset:{1024*j} lds")
            if j == 3:
                out.append(f"s_add_u32 m0, m0, 4096")
                out.append(f"s_add_u32 s{sDma}, s{sDma}, s{sDstep}")
        return out
    def traddr():
        return [f"v_and_b32 v{T+7}, s{sMz2}, v{vO8}",
                f"v_xor_b32 v{T+7}, v{T+7}, v{vPn}",
                f"v_add_u32 v{vA0}, s{sBufN}, v{T+7}",
                f"v_xor_b32 v{vA1}, 64, v{vA0}"]
    a(f"s_mov_b32 s{sV}, 0")
    a(f"s_mov_b32 s{sBufN}, 0")
    for l in params() + dmas(): a(l)
    a(f"""v_lshrrev_b32 v{T+2}, 5, v{vL}
    v_lshlrev_b32 v{T+2}, 3, v{T+2}
    v_bfe_u32 v{T+3}, v{vL}, 2, 2
    v_add_u32 v{T+2}, v{T+2}, v{T+3}
    v_lshlrev_b32 v{vPn}, 7, v{T+2}
    v_lshrrev_b32 v{T+3}, 1, v{T+3}
    v_lshl_add_u32 v{vPn}, v{T+3}, 6, v{vPn}
    v_bfe_u32 v{T+3}, v{vL}, 4, 1
    v_lshl_add_u32 v{vPn}, v{T+3}, 5, v{vPn}
    v_and_b32 v{T+3}, 1, v{vL}
    v_lshl_add_u32 v{vPn}, v{T+3}, 4, v{vPn}
    v_lshlrev_b32 v{vO8}, 3, v{T+3}
    v_bfe_u32 v{T+3}, v{vL}, 1, 1
    v_lshl_add_u32 v{vPn}, v{T+3}, 3, v{vPn}""")
    for l in traddr(): a(l)
    a(f"""s_lshl_b32 s{sT0}, s{sWave}, 12
    s_add_u32 s{sT0}, s{sT0}, {STG}
    v_lshrrev_b32 v{T+2}, 4, v{vL}
    v_xor_b32 v{T+2}, v{T+2}, v{T+1}
    v_lshlrev_b32 v{T+2}, 4, v{T+2}
    v_lshl_add_u32 v{vSW0}, v{T}, 7, v{T+2}
    v_add_u32 v{vSW0}, s{sT0}, v{vSW0}
    v_xor_b32 v{vSW1}, 64, v{vSW0}
    v_and_b32 v{T+2}, 31, v{vL}
    v_bfe_u32 v{T+3}, v{vL}, 1, 3
    v_lshrrev_b32 v{T+4}, 5, v{vL}
    v_xor_b32 v{T+3}, v{T+3}, v{T+4}
    v_lshlrev_b32 v{T+3}, 4, v{T+3}
    v_lshl_add_u32 v{vSR}, v{T+2}, 7, v{T+3}
    v_add_u32 v{vSR}, s{sT0}, v{vSR}
    v_xor_b32 v{vSR+1}, 32, v{vSR}
    v_xor_b32 v{vSR+2}, 64, v{vSR}
    v_xor_b32 v{vSR+3}, 96, v{vSR}
    v_lshlrev_b32 v{vSS}, 3, v{T}
    v_add_u32 v{vSS}, s{sT0}, v{vSS}
    v_lshlrev_b32 v{vSRd}, 3, v{T+2}
    v_add_u32 v{vSRd}, s{sT0}, v{vSRd}""")
    a(f"""s_lshl_b32 s{sT0}, s{sRb}, 7
    s_lshl_b32 s{sT1}, s{sWave}, 5
    s_add_u32 s{sT0}, s{sT0}, s{sT1}
    v_add_u32 v{vSt}, s{sT0}, v{T+2}
    v_lshlrev_b32 v{vSt}, 4, v{vSt}
    v_lshl_add_u32 v{vSt}, v{T+4}, 15, v{vSt}
    v_add_u32 v{vStO}, s{sT1}, v{T+2}
    v_lshlrev_b32 v{vStO}, 3, v{vStO}
    v_lshl_add_u32 v{vStO}, v{T+4}, 10, v{vStO}
    s_lshl_b32 s{sSo}, s{sRb}, 4
    s_add_u32 s{sSo}, s{sSo}, s{sCg}
    s_lshl_b32 s{sSo}, s{sSo}, 11
    v_mov_b32 v{vSum}, 0
    v_mov_b32 v{vSum+1}, 0""")
    for j in range(9):
        a(f"s_waitcnt vmcnt({4*(8-j)+18})")
        for r in range(4):
            for rg in range(4):
                x = X + 16*j + 4*rg + r
                c0 = "0" if (j == 0 and r == 0) else f"v{S+2*rg}"
                c1 = "0" if (j == 0 and r == 0) else f"v{S+2*rg+1}"
                a(f"v_dot2_f32_bf16 v{S+2*rg}, v{x}, s{sOnes}, {c0}")
                a(f"v_dot2_f32_bf16 v{S+2*rg+1}, v{x}, v{x}, {c1}")
        for rg in range(4):
            a(f"ds_write_b128 v{vSW1 if rg&1 else vSW0}, {vr(X+16*j+4*rg,4)} offset:{rg*1024}")
        for i in range(4):
            a(f"ds_read_b128 {vr(X+16*j+4*i,4)}, v{vSR+i}")
    for ctrl in ["quad_perm:[1,0,3,2]", "quad_perm:[2,3,0,1]", "row_half_mirror"]:
        for q in range(8):
            a(f"v_add_f32_dpp v{S+q}, v{S+q}, v{S+q} {ctrl} row_mask:0xf bank_mask:0xf")
    a(f"s_mov_b32 s{sT0}, {f32(-1.0/576)}")
    a(f"s_mov_b32 s{sT1}, {f32(1.0/576)}")
    a(f"s_mov_b32 s{sT2}, {f32(KSC)}")
    for rg in range(4): a(f"v_mul_f32 v{S+2*rg}, s{sT0}, v{S+2*rg}")
    for rg in range(4): a(f"v_mul_f32 v{S+2*rg+1}, s{sT1}, v{S+2*rg+1}")
    for rg in range(4): a(f"v_fma_f32 v{S+2*rg+1}, -v{S+2*rg}, v{S+2*rg}, v{S+2*rg+1}")
    for rg in range(4): a(f"v_max_f32 v{S+2*rg+1}, 0, v{S+2*rg+1}")
    for rg in range(4): a(f"v_add_f32 v{S+2*rg+1}, {f32(EPS)}, v{S+2*rg+1}")
    for rg in range(4): a(f"v_rsq_f32 v{S+2*rg+1}, v{S+2*rg+1}")
    for rg in range(4): a(f"v_mul_f32 v{S+2*rg+1}, s{sT2}, v{S+2*rg+1}")
    for rg in range(4): a(f"ds_write_b64 v{vSS}, {vr(S+2*rg,2)} offset:{rg*64}")
    a(f"ds_read_b64 {vr(vNm,2)}, v{vSRd}")
    a(f"s_mov_b32 s{sU}, 0")
    a(f"s_mov_b32 s{sDc}, s{sDn}")
    a(f"s_mov_b32 s{sDp}, s{sDn}")
    a(f"s_mov_b32 s{sBufN}, {UB}")
    a("s_waitcnt vmcnt(0) lgkmcnt(0)")
    a("s_barrier")

    def reads(kk, t):
        st = kk % 3
        off = (kk % 18) * 2048
        return [f"ds_read_b64_tr_b16 {ar(8*st+4*t+2*h,2)}, v{vA1 if t else vA0} offset:{off+512*h}" for h in range(2)]
    def mfma(kk, t):
        st = kk % 3
        c = "0" if kk == 0 else vr(ACC+16*t, 16)
        return f"v_mfma_f32_32x32x16_bf16 {vr(ACC+16*t,16)}, {ar(8*st+4*t,4)}, {vr(X+4*kk,4)}, {c}"
    def center(kk):
        o = []
        for r in range(4):
            x = X + 4*kk + r
            o.append(f"v_dot2_f32_bf16 v{CT[r]}, v{x}, s{sOlo}, v{vNm}")
            o.append(f"v_dot2_f32_bf16 v{CT[r]+1}, v{x}, s{sOhi}, v{vNm}")
        for r in range(4):
            o.append(f"v_cvt_pk_bf16_f32 v{X+4*kk+r}, v{CT[r]}, v{CT[r]+1}")
        return o
    CT = [W, W+2, W+4, W+6]
    def copyout(t):
        return [f"v_mul_f32 v{W+16*t+j}, v{vSc}, v{ACC+16*t+j}" for j in range(16)]
    def stores(m):
        return [f"s_add_u32 s{sSt}, s{sDp}, {2*m*OCT}",
                f"buffer_store_dwordx4 {vr(W+8*m,4)}, v{vSt}, s[{sZQ}:{sZQ+3}], s{sSt} offen {CFG.st_aux_a}"]
    def epi(kind):
        out = []
        for m in range(4):
            b = W + 8*m
            if kind == "G":
                for half in range(2):
                    e = [b + 4*half + i for i in range(4)]
                    t = [T + i for i in range(4)]
                    out += [f"v_fma_f32 v{t[i]}, v{e[i]}, v{e[i]}, s{sDl}" for i in range(4)]
                    out += [f"v_mul_f32 v{t[i]}, v{t[i]}, v{e[i]}" for i in range(4)]
                    out += [f"v_exp_f32 v{t[i]}, v{t[i]}" for i in range(4)]
                    out += [f"v_add_f32 v{t[i]}, 1.0, v{t[i]}" for i in range(4)]
                    out += [f"v_rcp_f32 v{t[i]}, v{t[i]}" for i in range(4)]
                    out += [f"v_mul_f32 v{e[i]}, v{t[i]}, v{e[i]}" for i in range(4)]
            out += [f"v_cvt_pk_bf16_f32 v{b+i}, v{b+2*i}, v{b+2*i+1}" for i in range(4)]
            if kind == "G":
                for i in range(4):
                    out.append(f"v_dot2_f32_bf16 v{vSum}, v{b+i}, s{sOnes}, v{vSum}")
                    out.append(f"v_dot2_f32_bf16 v{vSum+1}, v{b+i}, v{b+i}, v{vSum+1}")
            out += stores(m)
        return out
    def body(kind):
        a.label(f"{N}_{kind}")
        a(f"s_add_u32 s{sV}, s{sU}, 1")
        for t in range(2):
            for l in reads(0, t): a(l)
        for t in range(2):
            for l in reads(1, t): a(l)
        if kind == "F":
            for l in center(0): a(l)
        else:
            for l in copyout(0): a(l)
        a("s_waitcnt lgkmcnt(4)")
        a(mfma(0, 0))
        for l in reads(2, 0): a(l)
        if kind == "F":
            for l in center(1): a(l)
        else:
            for l in copyout(1): a(l)
        a(mfma(0, 1))
        for l in reads(2, 1): a(l)
        slots = []
        for kk in range(1, 36):
            s0 = ["s_waitcnt lgkmcnt(4)" if kk < 35 else "s_waitcnt lgkmcnt(0)", mfma(kk, 0)]
            s1 = [mfma(kk, 1)]
            if kk + 2 == 18:
                s0 += [f"v_add_u32 v{vA0}, {18*2048}, v{vA0}", f"v_add_u32 v{vA1}, {18*2048}, v{vA1}"]
            if kk + 2 <= 35:
                s0 += reads(kk+2, 0); s1 += reads(kk+2, 1)
            if kind == "F" and kk + 1 <= 35:
                c = center(kk+1)
                s0 += c[:8]; s1 += c[8:]
            if kk == 34: s1 += traddr()
            slots += [s0, s1]
        pd = params() + dmas()
        if kind == "F":
            fl = pd
            out = interleave(slots[:40], fl) + sum(slots[40:], [])
            nst = 0
        else:
            ep = epi(kind)
            fl = []
            n1 = int(len(ep) * 0.4)
            k = 0
            for i, l in enumerate(ep):
                if i < n1:
                    tgt = len(pd) * (i + 1) // n1
                    while k < tgt:
                        fl.append(pd[k]); k += 1
                fl.append(l)
            if kind == "P":
                out = interleave(slots[:40], fl) + sum(slots[40:], [])
            else:
                out = interleave(slots[:-2], fl) + sum(slots[-2:], [])
            last = max(i for i, l in enumerate(out) if l.endswith("lds"))
            nst = sum(1 for l in out[last:] if l.startswith("buffer_store"))
        for l in out: a(l)
        a(f"s_mov_b32 s{sDp}, s{sDc}")
        a(f"s_mov_b32 s{sDc}, s{sDn}")
        a(f"s_sub_u32 s{sBufN}, {UB}, s{sBufN}")
        a(f"s_waitcnt vmcnt({nst})")
        if kind == "G":
            sk = a.newlabel(N + "_nost")
            a(f"s_cmp_lg_u32 s{sU}, s{sNz2}")
            a(f"s_cbranch_scc1 {sk}")
            a(f"buffer_store_dwordx2 {vr(vSum,2)}, v{vStO}, s[{sST}:{sST+3}], s{sSo} offen {CFG.st_aux_a}")
            a.label(sk)
        a(f"s_add_u32 s{sU}, s{sU}, 1")
        a("s_barrier")
        a(f"s_cmp_eq_u32 s{sU}, s{sN}")
        a(f"s_cbranch_scc1 {N}_tail")
        a(f"s_cmp_le_u32 s{sU}, s{sNg}")
        a(f"s_cbranch_scc1 {N}_G")
        if kind != "G":
            a(f"s_branch {N}_P")
    body("F")
    body("G")
    body("P")
    a.label(f"{N}_tail")
    a("s_nop 7")
    for l in copyout(0) + copyout(1) + epi("P"): a(l)
    a.label(f"{N}_end")
    a("s_endpgm")
    return a, kd(N, 280, 256), (N, 256, 256, 163840)

def emit_attention(a, sZQ, sUO, sTb, sHg, ldsb, sT, aux, nbar=0):
    vL, vQo, vRd = 1, 2, 3
    vDo = 4
    Q, KB, LG, O = 16, 52, 124, 156
    PL, PH = 228, 236
    TM = 244
    a(f"v_and_b32 v{vL}, 63, v0")
    a(f"v_lshlrev_b32 v{vQo}, 4, v{vL}")
    a(f"s_mul_i32 s{sT}, s{sHg}, 9")
    a(f"s_add_u32 s{sT}, s{sT}, 576")
    a(f"s_lshl_b32 s{sT}, s{sT}, 15")
    a(f"s_lshl_b32 s{sT+1}, s{sTb}, 10")
    a(f"s_add_u32 s{sT}, s{sT}, s{sT+1}")
    a(f"s_add_u32 s{sT+2}, s{sT}, {72*OCT-256}")
    a(f"s_add_u32 s{sT+3}, s{sT}, {144*OCT-256}")
    for n in range(12):
        a(f"v_add_u32 v{TM}, {64*n}, v{vL}")
        a(f"v_mul_u32_u24 v{TM+1}, 3277, v{TM}")
        a(f"v_lshrrev_b32 v{TM+1}, 18, v{TM+1}")
        a(f"v_mul_u32_u24 v{TM+2}, 80, v{TM+1}")
        a(f"v_sub_u32 v{TM}, v{TM}, v{TM+2}")
        a(f"v_lshlrev_b32 v{TM}, 4, v{TM}")
        a(f"v_lshl_add_u32 v{vDo+n}, v{TM+1}, 15, v{TM}")
    for n in range(12):
        a(f"s_mov_b32 m0, {ldsb+n*1024}")
        a(f"buffer_load_dwordx4 v{vDo+n}, s[{sZQ}:{sZQ+3}], s{sT+2} offen lds")
    a(f"s_mov_b32 s{sT+4}, s{sT}")
    for j in range(9):
        a(f"buffer_load_dwordx4 {vr(Q+4*j,4)}, v{vQo}, s[{sZQ}:{sZQ+3}], s{sT+4} offen")
        if j < 8: a(f"s_add_u32 s{sT+4}, s{sT+4}, {OCT}")
    for n in range(12):
        a(f"s_mov_b32 m0, {ldsb+12288+n*1024}")
        a(f"buffer_load_dwordx4 v{vDo+n}, s[{sZQ}:{sZQ+3}], s{sT+3} offen lds")
    a(f"v_add_u32 v{vRd}, {ldsb+32}, v{vQo}")
    for _ in range(nbar): a("s_barrier")
    a("s_waitcnt vmcnt(12)")
    def rd(base, w, buf):
        return [f"ds_read_b128 {vr(KB+36*buf+4*j,4)}, v{vRd} offset:{base+j*1280+224-32*w}" for j in range(9)]
    for l in rd(0, 0, 0): a(l)
    for w in range(8):
        if w < 7:
            for l in rd(0, w+1, (w+1) % 2): a(l)
            a("s_waitcnt lgkmcnt(9)")
        else:
            a("s_waitcnt lgkmcnt(0)")
        for i in range(9):
            for hh in range(4):
                d = 9*hh + i
                c = "0" if i == 0 else f"v{LG+8*hh+w}"
                a(f"v_dot2_f32_bf16 v{LG+8*hh+w}, v{Q+d}, v{KB+36*(w%2)+d}, {c}")
    a("s_waitcnt vmcnt(0)")
    for l in rd(12288, 0, 0): a(l)
    a(f"s_lshl_b32 s{sT+4}, s{sTb}, 6")
    a(f"v_add_u32 v{TM}, s{sT+4}, v{vL}")
    a(f"v_mov_b32 v{TM+1}, 0xff800000")
    for w in range(1, 8):
        a(f"v_cmp_le_u32 vcc, {2*w}, v{TM}")
        for hh in range(4):
            a(f"v_cndmask_b32 v{LG+8*hh+w}, v{TM+1}, v{LG+8*hh+w}, vcc")
    sc = (18 ** -0.5) * math.log2(math.e) / (KSC * KSC)
    a(f"s_mov_b32 s{sT+4}, {f32(sc)}")
    a(f"s_mov_b32 s{sT+5}, {f32(KSC)}")
    for hh in range(4):
        g = LG + 8*hh; m = TM + 2 + hh
        a(f"v_max3_f32 v{m}, v{g}, v{g+1}, v{g+2}")
        a(f"v_max3_f32 v{m}, v{m}, v{g+3}, v{g+4}")
        a(f"v_max3_f32 v{m}, v{m}, v{g+5}, v{g+6}")
        a(f"v_max_f32 v{m}, v{m}, v{g+7}")
    for hh in range(4):
        g = LG + 8*hh; m = TM + 2 + hh
        for w in range(8): a(f"v_sub_f32 v{g+w}, v{g+w}, v{m}")
        for w in range(8): a(f"v_mul_f32 v{g+w}, s{sT+4}, v{g+w}")
        for w in range(8): a(f"v_exp_f32 v{g+w}, v{g+w}")
        for w in range(8): a(f"v_cvt_pk_bf16_f32 v{g+w}, v{g+w}, 0")
        for w in range(8): a(f"v_lshlrev_b32 v{Q+8*hh+w}, 16, v{g+w}")
        s = TM + 6 + hh
        a(f"v_add_f32 v{s}, v{Q+8*hh}, v{Q+8*hh+1}")
        for w in range(2, 8): a(f"v_add_f32 v{s}, v{s}, v{Q+8*hh+w}")
        a(f"v_mul_f32 v{s}, s{sT+5}, v{s}")
        a(f"v_rcp_f32 v{s}, v{s}")
    for w in range(8):
        if w < 7:
            for l in rd(12288, w+1, (w+1) % 2): a(l)
            a("s_waitcnt lgkmcnt(9)")
        else:
            a("s_waitcnt lgkmcnt(0)")
        for d in range(36):
            hh = d // 9
            c0 = "0" if w == 0 else f"v{O+2*d}"
            c1 = "0" if w == 0 else f"v{O+2*d+1}"
            a(f"v_dot2_f32_bf16 v{O+2*d}, v{KB+36*(w%2)+d}, v{LG+8*hh+w}, {c0}")
            a(f"v_dot2_f32_bf16 v{O+2*d+1}, v{KB+36*(w%2)+d}, v{Q+8*hh+w}, {c1}")
    for d in range(36):
        s = TM + 6 + d // 9
        a(f"v_mul_f32 v{O+2*d}, v{s}, v{O+2*d}")
        a(f"v_mul_f32 v{O+2*d+1}, v{s}, v{O+2*d+1}")
    for d in range(36):
        a(f"v_cvt_pk_bf16_f32 v{KB+d}, v{O+2*d}, v{O+2*d+1}")
    a(f"s_mul_i32 s{sT}, s{sHg}, 9")
    a(f"s_add_u32 s{sT}, s{sT}, 288")
    a(f"s_lshl_b32 s{sT}, s{sT}, 15")
    a(f"s_add_u32 s{sT}, s{sT}, s{sT+1}")
    for j in range(9):
        a(f"buffer_store_dwordx4 {vr(KB+4*j,4)}, v{vQo}, s[{sUO}:{sUO+3}], s{sT} offen {aux}")
        if j < 8: a(f"s_add_u32 s{sT}, s{sT}, {OCT}")

def gen_KN():
    a = Asm(); N = "kn_kernel"
    sWS, sWP, sST, sCP, sZQ, sUO = 12, 16, 20, 24, 28, 32
    sWave, sSb, sTb, sT = 36, 37, 38, 40
    prologue(a, N, 256)
    a("s_load_dwordx2 s[8:9], s[0:1], 40")
    a("s_load_dwordx2 s[10:11], s[0:1], 80")
    a("v_lshrrev_b32 v1, 6, v0")
    a(f"v_readfirstlane_b32 s{sWave}, v1")
    a("s_waitcnt lgkmcnt(0)")
    a.srd(sWS, 8, 9, 2048 * 4096)
    a.srd_off(sWP, 10, 11, CFG.ws_base + WP_OFF, WP_SZ)
    a.srd_off(sST, 10, 11, CFG.ws_base + ST_OFF, ST_SZ)
    a.srd_off(sCP, 10, 11, CFG.ws_base + CP_OFF, CP_SZ)
    a.srd_off(sZQ, 10, 11, CFG.ws_base + ZQ_OFF, ZQ_SZ)
    a.srd_off(sUO, 10, 11, CFG.ws_base + UO_OFF, UO_SZ)
    a(f"s_cmp_eq_u32 s{sWave}, 4")
    a(f"s_cbranch_scc1 {N}_attn")
    a(f"s_and_b32 s{sSb}, s2, 15")
    a(f"s_lshr_b32 s{sTb}, s2, 4")
    WR, P, R, MH, ML, C, T = 16, 48, 80, 88, 92, 96, 104
    vL, vWo, vSo, vLw, vLr, vCo = 1, 2, 3, 4, 5, 6
    a(f"""v_and_b32 v{vL}, 63, v0
    v_lshrrev_b32 v{T}, 4, v{vL}
    v_and_b32 v{T+1}, 15, v{vL}
    v_lshlrev_b32 v{vWo}, 12, v{T}
    v_lshl_add_u32 v{vWo}, v{T+1}, 4, v{vWo}
    s_lshl_b32 s{sT}, s{sTb}, 7
    s_lshl_b32 s{sT+1}, s{sWave}, 5
    s_add_u32 s{sT}, s{sT}, s{sT+1}
    s_lshl_b32 s{sT+2}, s{sT}, 12
    s_lshl_b32 s{sT+1}, s{sSb}, 8
    s_add_u32 s{sT+2}, s{sT+2}, s{sT+1}
    s_mov_b32 s{sT+3}, s{sT+2}
    v_and_b32 v{T+2}, 127, v0
    v_lshrrev_b32 v{T+3}, 7, v0
    v_lshlrev_b32 v{vSo}, 3, v{T+2}
    v_lshl_add_u32 v{vLw}, v{T+3}, 10, v{vSo}
    v_lshl_add_u32 v{vSo}, v{T+3}, 14, v{vSo}
    s_lshl_b32 s{sT+4}, s{sSb}, 15
    v_lshlrev_b32 v{vLr}, 6, v{T+1}""")
    for i in range(16):
        a(f"buffer_load_dwordx2 {vr(P+2*i,2)}, v{vSo}, s[{sST}:{sST+3}], s{sT+4} offen offset:{(i%4)*1024}")
        if i % 4 == 3: a(f"s_add_u32 s{sT+4}, s{sT+4}, 4096")
    for i in range(8):
        a(f"buffer_load_dwordx4 {vr(WR+4*i,4)}, v{vWo}, s[{sWS}:{sWS+3}], s{sT+3} offen")
        a(f"s_add_u32 s{sT+3}, s{sT+3}, 16384")
    a("s_waitcnt vmcnt(8)")
    for i in range(1, 16):
        a(f"v_add_f32 v{P}, v{P}, v{P+2*i}")
        a(f"v_add_f32 v{P+1}, v{P+1}, v{P+2*i+1}")
    a(f"ds_write_b64 v{vLw}, {vr(P,2)}")
    a("s_waitcnt lgkmcnt(0)")
    a("s_barrier")
    for h in range(2):
        for q in range(4):
            a(f"ds_read_b128 {vr(P+16*h+4*q,4)}, v{vLr} offset:{1024*h+16*q}")
    a(f"s_mov_b32 s{sT+4}, {f32(1.0/2304)}")
    a(f"s_mov_b32 s{sT+5}, {f32(1.0/abs(KSC))}")
    a("s_waitcnt lgkmcnt(0)")
    for e in range(16): a(f"v_add_f32 v{P+e}, v{P+e}, v{P+16+e}")
    for e in range(16): a(f"v_mul_f32 v{P+e}, s{sT+4}, v{P+e}")
    for e in range(8): a(f"v_fma_f32 v{R+e}, -v{P+2*e}, v{P+2*e}, v{P+2*e+1}")
    for e in range(8): a(f"v_max_f32 v{R+e}, 0, v{R+e}")
    for e in range(8): a(f"v_add_f32 v{R+e}, {f32(EPS*KSC*KSC)}, v{R+e}")
    for e in range(8): a(f"v_rsq_f32 v{R+e}, v{R+e}")
    for e in range(8): a(f"v_mul_f32 v{R+e}, s{sT+5}, v{R+e}")
    for p in range(4): a(f"v_cvt_pk_bf16_f32 v{MH+p}, v{P+4*p}, v{P+4*p+2}")
    for p in range(4):
        a(f"v_lshlrev_b32 v{T}, 16, v{MH+p}")
        a(f"v_and_b32 v{T+1}, 0xffff0000, v{MH+p}")
        a(f"v_sub_f32 v{T}, v{P+4*p}, v{T}")
        a(f"v_sub_f32 v{T+1}, v{P+4*p+2}, v{T+1}")
        a(f"v_cvt_pk_bf16_f32 v{ML+p}, v{T}, v{T+1}")
    for i in range(8):
        a(f"s_waitcnt vmcnt({7})")
        for r in range(4):
            x = WR + 4*i + r
            a(f"v_lshlrev_b32 v{T+2*r}, 16, v{x}")
            a(f"v_and_b32 v{T+2*r+1}, 0xffff0000, v{x}")
        for r in range(8): a(f"v_mul_f32 v{T+r}, v{R+r}, v{T+r}")
        for r in range(4): a(f"v_cvt_pk_bf16_f32 v{WR+4*i+r}, v{T+2*r}, v{T+2*r+1}")
        a(f"buffer_store_dwordx4 {vr(WR+4*i,4)}, v{vWo}, s[{sWP}:{sWP+3}], s{sT+2} offen {CFG.st_aux_n}")
        a(f"s_add_u32 s{sT+2}, s{sT+2}, 16384")
        for r in range(4):
            a(f"v_dot2_f32_bf16 v{C+i}, v{WR+4*i+r}, v{MH+r}, {'0' if r==0 else 'v%d'%(C+i)}")
            a(f"v_dot2_f32_bf16 v{C+i}, v{WR+4*i+r}, v{ML+r}, v{C+i}")
    for ctrl in ["quad_perm:[1,0,3,2]", "quad_perm:[2,3,0,1]", "row_half_mirror", "row_mirror"]:
        for q in range(8):
            a(f"v_add_f32_dpp v{C+q}, v{C+q}, v{C+q} {ctrl} row_mask:0xf bank_mask:0xf")
    a(f"""v_lshrrev_b32 v{T}, 4, v{vL}
    v_lshlrev_b32 v{vCo}, 6, v{T}
    s_lshl_b32 s{sT}, s{sT}, 6
    s_lshl_b32 s{sT+1}, s{sSb}, 2
    s_add_u32 s{sT}, s{sT}, s{sT+1}
    v_and_b32 v{T+1}, 15, v{vL}
    v_cmp_eq_u32 vcc, 0, v{T+1}
    s_and_saveexec_b64 s[{sT+6}:{sT+7}], vcc""")
    for i in range(8):
        a(f"buffer_store_dword v{C+i}, v{vCo}, s[{sCP}:{sCP+3}], s{sT} offen offset:{256*i} {CFG.st_aux_n}")
    a("s_endpgm")
    a.label(f"{N}_attn")
    a(f"s_and_b32 s{sSb}, s2, 7")
    a(f"s_lshr_b32 s{sTb}, s2, 3")
    emit_attention(a, sZQ, sUO, sTb, sSb, 2048, sT, CFG.st_aux_n, nbar=1)
    a.label(f"{N}_end")
    a("s_endpgm")
    return a, kd(N, 256, 256), (N, 256, 320, 2048 + 24576)

def gen_KB():
    a = Asm(); N = "kb_kernel"
    NS = 4
    ZO = 16384
    def zb(j): return ZO + j*1024 + (j >> 1)*64 + (64 if j == 17 else 0)
    STG = zb(17) + 1024
    sWP, sZQ, sUO, sCP, sBS = 12, 16, 20, 24, 28
    sWave, sTb, sFb, sOdd, sT = 36, 37, 38, 39, 40
    sI, sSlot, sInc, sA, sZm, sZs, sStg = 50, 51, 52, 53, 54, 55, 56
    prologue(a, N, 256)
    a("s_load_dwordx2 s[8:9], s[0:1], 48")
    a("s_load_dwordx2 s[10:11], s[0:1], 80")
    a("v_lshrrev_b32 v1, 6, v0")
    a(f"v_readfirstlane_b32 s{sWave}, v1")
    a(f"""s_and_b32 s{sT}, s2, 7
    s_lshr_b32 s{sT+1}, s2, 3
    s_and_b32 s{sTb}, s{sT}, 1
    s_lshl_b32 s{sTb}, s{sTb}, 3
    s_and_b32 s{sT+2}, s{sT+1}, 7
    s_add_u32 s{sTb}, s{sTb}, s{sT+2}
    s_lshr_b32 s{sFb}, s{sT}, 1
    s_lshl_b32 s{sFb}, s{sFb}, 2
    s_lshr_b32 s{sT+2}, s{sT+1}, 3
    s_add_u32 s{sFb}, s{sFb}, s{sT+2}
    s_and_b32 s{sOdd}, s{sFb}, 1
    s_mul_i32 s{sZm}, s{sFb}, 18
    s_lshl_b32 s{sT}, s{sOdd}, 1
    s_add_u32 s{sZs}, s{sZm}, 16
    s_lshl_b32 s{sT+1}, s{sOdd}, 4
    s_sub_u32 s{sZs}, s{sZs}, s{sT+1}
    s_add_u32 s{sZm}, s{sZm}, s{sT}
    s_lshl_b32 s{sZm}, s{sZm}, 15
    s_lshl_b32 s{sZs}, s{sZs}, 15
    v_and_b32 v1, 63, v0""")
    a("s_waitcnt lgkmcnt(0)")
    a.srd_off(sWP, 10, 11, CFG.ws_base + WP_OFF, WP_SZ)
    a.srd_off(sZQ, 10, 11, CFG.ws_base + ZQ_OFF, ZQ_SZ)
    a.srd_off(sUO, 10, 11, CFG.ws_base + UO_OFF, UO_SZ)
    a.srd_off(sCP, 10, 11, CFG.ws_base + CP_OFF, CP_SZ)
    a.srd(sBS, 8, 9, 4096)
    a(f"s_cmp_ge_u32 s{sWave}, 4")
    a(f"s_cbranch_scc1 {N}_prod")
    ACC, FA, FB, Z1, T = 16, 88, 160, 176, 212
    vL, vZ0, vZ1, vZs, vB0, vB1, vE, vEs = 1, 2, 3, 4, 5, 6, 7, 8
    vBC = 10
    a(f"""v_lshrrev_b32 v{T}, 4, v{vL}
    v_and_b32 v{T+1}, 15, v{vL}
    v_bfe_u32 v{T+2}, v{vL}, 2, 2
    v_and_b32 v{T+3}, 3, v{vL}
    v_lshl_add_u32 v{T+4}, v{T}, 3, v{T+2}
    v_lshlrev_b32 v{T+4}, 4, v{T+4}
    v_lshrrev_b32 v{T+5}, 1, v{T+3}
    v_and_b32 v{T+6}, 1, v{T+3}
    v_lshl_add_u32 v{vZ0}, v{T+3}, 10, v{T+4}
    v_lshl_add_u32 v{vZ0}, v{T+5}, 6, v{vZ0}
    v_lshl_add_u32 v{vZ0}, v{T+6}, 3, v{vZ0}
    v_xor_b32 v{vZ1}, 8, v{vZ0}
    v_mul_u32_u24 v{vZs}, 1088, v{T+5}
    v_add_u32 v{vZs}, v{vZs}, v{T+4}
    v_xor_b32 v{T+6}, v{T+6}, v{T+5}
    v_lshl_add_u32 v{vZs}, v{T+6}, 3, v{vZs}
    s_lshl_b32 s{sT}, s{sWave}, 5
    v_add_u32 v{T+7}, s{sT}, v{T+1}
    v_and_b32 v{T+8}, 7, v{vL}
    v_xor_b32 v{T+8}, v{T+8}, v{T}
    v_lshlrev_b32 v{T+8}, 4, v{T+8}
    v_lshl_add_u32 v{vB0}, v{T+7}, 7, v{T+8}
    v_xor_b32 v{vB1}, 64, v{vB0}
    s_lshl_b32 s{sT+1}, s{sTb}, 7
    v_add_u32 v{T+7}, s{sT+1}, v{T+7}
    v_lshlrev_b32 v{vE}, 4, v{T+7}
    v_lshrrev_b32 v{T+8}, 1, v{T}
    v_lshl_add_u32 v{vEs}, v{T+8}, 15, v{vE}
    v_and_b32 v{T+8}, 1, v{T}
    v_lshl_add_u32 v{vEs}, v{T+8}, 3, v{vEs}
    v_lshl_add_u32 v{vE}, v{T}, 15, v{vE}
    v_lshlrev_b32 v{T+9}, 6, v{T+7}
    v_lshl_add_u32 v{T+9}, v{T}, 4, v{T+9}
    v_lshlrev_b32 v{T+10}, 1, v{T+7}""")
    CPR = 228
    for tt in range(2):
        a(f"buffer_load_dwordx4 {vr(CPR+4*tt,4)}, v{T+9}, s[{sCP}:{sCP+3}], 0 offen offset:{1024*tt}")
        a(f"buffer_load_ushort v{CPR+8+tt}, v{T+10}, s[{sBS}:{sBS+3}], 0 offen offset:{32*tt}")
    a(f"s_mov_b32 s{sT}, s{sZm}")
    for i in range(4):
        for tt in range(2):
            a(f"buffer_load_dwordx4 {vr(Z1+8*i+4*tt,4)}, v{vE}, s[{sZQ}:{sZQ+3}], s{sT} offen offset:{256*tt}")
        a(f"s_add_u32 s{sT}, s{sT}, {4*OCT}")
    for tt in range(2):
        a(f"buffer_load_dwordx2 {vr(Z1+32+2*tt,2)}, v{vEs}, s[{sZQ}:{sZQ+3}], s{sZs} offen offset:{256*tt}")
    for i in range(72): a(f"v_mov_b32 v{ACC+i}, 0")
    def reads(h, st):
        out = [f"ds_read_b128 {vr(FB+8*st+4*tt,4)}, v{vB1 if h else vB0} offset:{2048*tt}" for tt in range(2)]
        for j in range(9):
            for rd in range(2):
                if j < 8:
                    out.append(f"ds_read_b64_tr_b16 {vr(FA+36*st+4*j+2*rd,2)}, v{vZ1 if j&1 else vZ0} offset:{zb(4*(j>>1))+512*h+64*rd}")
                else:
                    out.append(f"ds_read_b64_tr_b16 {vr(FA+36*st+4*j+2*rd,2)}, v{vZs} offset:{zb(16)+512*h+64*rd}")
        return out
    def phase(st, rds):
        out = []; k = 0
        for j in range(9):
            for tt in range(2):
                if tt == 0:
                    out.append(f"s_waitcnt lgkmcnt({min(15, 19-(3+2*j)+(k if rds else 0))})")
                out.append(f"v_mfma_f32_16x16x32_bf16 {vr(ACC+8*j+4*tt,4)}, {vr(FA+36*st+4*j,4)}, {vr(FB+8*st+4*tt,4)}, {vr(ACC+8*j+4*tt,4)}")
                n = 2 if (j == 0) else 1
                for _ in range(n):
                    if k < len(rds): out.append(rds[k]); k += 1
        return out
    def adv():
        return [f"s_add_u32 s{sSlot}, s{sSlot}, 1", f"s_cmp_eq_u32 s{sSlot}, {NS}",
                f"s_cselect_b32 s{sInc}, {-(NS-1)*STG & 0xffffffff}, s{sStg}", f"s_cselect_b32 s{sSlot}, 0, s{sSlot}"] + \
               [f"v_add_u32 v{r}, s{sInc}, v{r}" for r in (vB0, vB1, vZ0, vZ1, vZs)]
    a(f"s_mov_b32 s{sSlot}, 0")
    a(f"s_mov_b32 s{sI}, 31")
    a(f"s_mov_b32 s{sStg}, {STG}")
    a("s_barrier")
    for l in reads(0, 0): a(l)
    a.lines.append(".p2align 6")
    a.label(f"{N}_loop")
    for l in phase(0, reads(1, 1)): a(l)
    for l in adv(): a(l)
    a("s_barrier")
    for l in phase(1, reads(0, 0)): a(l)
    a(f"s_sub_u32 s{sI}, s{sI}, 1")
    a(f"s_cmp_lg_u32 s{sI}, 0")
    a(f"s_cbranch_scc1 {N}_loop")
    for l in phase(0, reads(1, 1)): a(l)
    for l in phase(1, []): a(l)
    a("s_waitcnt vmcnt(0)")
    a(f"s_mov_b32 s{sT}, {f32(1.0/KSC)}")
    for tt in range(2):
        c = CPR + 4*tt
        a(f"v_add_f32 v{c}, v{c}, v{c+1}")
        a(f"v_add_f32 v{c+2}, v{c+2}, v{c+3}")
        a(f"v_add_f32 v{c}, v{c}, v{c+2}")
        a(f"v_mov_b32 v{c+1}, v{c}")
        a(f"v_permlane16_swap_b32 v{c}, v{c+1}")
        a(f"v_add_f32 v{c}, v{c}, v{c+1}")
        a(f"v_mov_b32 v{c+1}, v{c}")
        a(f"v_permlane32_swap_b32 v{c}, v{c+1}")
        a(f"v_add_f32 v{c}, v{c}, v{c+1}")
        a(f"v_lshlrev_b32 v{c+2}, 16, v{CPR+8+tt}")
        a(f"v_fma_f32 v{vBC+tt}, v{c+2}, s{sT}, -v{c}")
    a(f"s_mov_b32 s{sT}, s{sZm}")
    for i in range(5):
        for tt in range(2):
            n = 4 if i < 4 else 2
            z = Z1 + 8*i + n*tt
            for r in range(n):
                j = 2*i + (r >> 1)
                ac = ACC + 8*j + 4*tt + 2*(r & 1)
                t = T + 4*(r % 2)
                a(f"v_add_f32 v{ac}, v{vBC+tt}, v{ac}")
                a(f"v_add_f32 v{ac+1}, v{vBC+tt}, v{ac+1}")
                a(f"v_lshlrev_b32 v{t}, 16, v{z+r}")
                a(f"v_and_b32 v{t+1}, 0xffff0000, v{z+r}")
                a(f"v_mul_f32 v{t}, v{t}, v{ac}")
                a(f"v_mul_f32 v{t+1}, v{t+1}, v{ac+1}")
                a(f"v_cvt_pk_bf16_f32 v{z+r}, v{t}, v{t+1}")
            if i < 4:
                a(f"buffer_store_dwordx4 {vr(z,4)}, v{vE}, s[{sUO}:{sUO+3}], s{sT} offen offset:{256*tt} {CFG.st_aux_b}")
            else:
                a(f"buffer_store_dwordx2 {vr(z,2)}, v{vEs}, s[{sUO}:{sUO+3}], s{sZs} offen offset:{256*tt} {CFG.st_aux_b}")
        a(f"s_add_u32 s{sT}, s{sT}, {4*OCT}")
    a("s_endpgm")
    a.label(f"{N}_prod")
    vA, vZ = 2, 3
    a(f"""v_lshrrev_b32 v4, 3, v1
    v_and_b32 v5, 7, v1
    v_xor_b32 v5, v5, v4
    v_lshlrev_b32 v5, 4, v5
    v_lshl_add_u32 v{vA}, v4, 12, v5
    v_lshlrev_b32 v{vZ}, 4, v1
    s_lshl_b32 s{sA}, s{sTb}, 19
    s_add_u32 s{sZm}, s{sZm}, {288*OCT}
    s_add_u32 s{sZs}, s{sZs}, {288*OCT}
    s_mov_b32 s{sSlot}, 0""")
    items = [("A", i) for i in range(16)] + [("Z", j) for j in range(18)]
    def issue(p):
        out = []
        for kind, i in items[17*p:17*p+17]:
            if kind == "A":
                out.append(f"s_add_u32 m0, s{sSlot}, {i*1024}")
                out.append(f"s_add_u32 s{sT}, s{sA}, {i*8*4096}")
                out.append(f"buffer_load_dwordx4 v{vA}, s[{sWP}:{sWP+3}], s{sT} offen lds")
            else:
                out.append(f"s_add_u32 m0, s{sSlot}, {zb(i)}")
                out.append(f"s_add_u32 s{sT}, s{sZm if i < 16 else sZs}, {(i if i < 16 else i-16)*OCT}")
                out.append(f"buffer_load_dwordx4 v{vZ}, s[{sZQ}:{sZQ+3}], s{sT} offen lds")
        out += [f"s_add_u32 s{sA}, s{sA}, 128", f"s_add_u32 s{sZm}, s{sZm}, 1024", f"s_add_u32 s{sZs}, s{sZs}, 1024",
                f"s_add_u32 s{sSlot}, s{sSlot}, {STG}", f"s_cmp_eq_u32 s{sSlot}, {NS*STG}", f"s_cselect_b32 s{sSlot}, 0, s{sSlot}"]
        return out
    for p in range(2):
        if p == 0:
            a(f"s_cmp_eq_u32 s{sWave}, 5")
            a(f"s_cbranch_scc1 {N}_prod1")
        else:
            a.label(f"{N}_prod1")
        for st in range(3):
            for l in issue(p): a(l)
        a("s_waitcnt vmcnt(34)")
        a("s_barrier")
        a(f"s_mov_b32 s{sI}, 29")
        a.label(f"{N}_ploop{p}")
        a("s_waitcnt vmcnt(17)")
        a("s_barrier")
        for l in issue(p): a(l)
        a(f"s_sub_u32 s{sI}, s{sI}, 1")
        a(f"s_cmp_lg_u32 s{sI}, 0")
        a(f"s_cbranch_scc1 {N}_ploop{p}")
        a("s_waitcnt vmcnt(17)")
        a("s_barrier")
        a("s_waitcnt vmcnt(0)")
        a("s_barrier")
        a("s_endpgm")
    a.label(f"{N}_end")
    a("s_endpgm")
    return a, kd(N, 240, 240), (N, 256, 384, NS * STG)

def gen_KC():
    a = Asm(); N = "kc_kernel"
    NS = 9
    sUO, sWO, sWA, sX, sOUT, sDM = 12, 16, 20, 24, 28, 32
    sWave, sRb, sCg, sT = 36, 37, 38, 40
    sI, sU, sW = 50, 51, 52
    prologue(a, N, 234)
    a("s_load_dwordx2 s[4:5], s[0:1], 0")
    a("s_load_dwordx2 s[6:7], s[0:1], 16")
    a("s_load_dwordx4 s[8:11], s[0:1], 56")
    a("s_load_dwordx2 s[60:61], s[0:1], 80")
    a("v_lshrrev_b32 v1, 6, v0")
    a(f"v_readfirstlane_b32 s{sWave}, v1")
    a(f"""s_and_b32 s{sT}, s2, 7
    s_lshr_b32 s{sT+1}, s2, 3
    s_mul_i32 s{sT+2}, s{sT}, 29
    s_min_u32 s{sT}, s{sT}, 2
    s_add_u32 s{sT+2}, s{sT+2}, s{sT}
    s_add_u32 s{sT+2}, s{sT+2}, s{sT+1}
    s_mul_i32 s{sRb}, s{sT+2}, 7282
    s_lshr_b32 s{sRb}, s{sRb}, 16
    s_mul_i32 s{sT}, s{sRb}, 9
    s_sub_u32 s{sCg}, s{sT+2}, s{sT}
    v_and_b32 v1, 63, v0""")
    a("s_waitcnt lgkmcnt(0)")
    a.srd_off(sUO, 60, 61, CFG.ws_base + UO_OFF, UO_SZ)
    a.srd(sWO, 8, 9, 2304 * 1152)
    a.srd(sWA, 6, 7, 576 * 1152)
    a.srd(sX, 4, 5, 2048 * 1152)
    a.srd(sOUT, 10, 11, 2048 * 1152)
    a(f"s_cmp_ge_u32 s{sWave}, 5")
    a(f"s_cbranch_scc1 {N}_prod")
    a(f"s_mul_i32 s{sT}, s{sRb}, 5")
    a(f"s_add_u32 s{sT}, s{sT}, s{sWave}")
    a(f"s_cmp_ge_u32 s{sT}, 128")
    a(f"s_cbranch_scc1 {N}_end")
    ACC, SV, FA, UF, XR, T = 16, 32, 48, 80, 152, 160
    vL, vU, vA, vXo = 1, 2, 4, 3
    a(f"""v_lshrrev_b32 v{T}, 4, v{vL}
    v_and_b32 v{T+1}, 15, v{vL}
    s_lshl_b32 s{sT}, s{sT}, 4
    v_add_u32 v{T+2}, s{sT}, v{T+1}
    v_lshlrev_b32 v{vU}, 4, v{T+2}
    v_lshl_add_u32 v{vU}, v{T}, 15, v{vU}
    s_mov_b32 s{sU}, 0""")
    def uload(slot):
        return [f"buffer_load_dwordx4 {vr(UF+4*slot,4)}, v{vU}, s[{sUO}:{sUO+3}], s{sU} offen",
                f"s_add_u32 s{sU}, s{sU}, {4*OCT}"]
    a(f"""v_mul_u32_u24 v{vXo}, 1152, v{T+2}
    v_and_b32 v{T+3}, 1, v{T}
    v_lshl_add_u32 v{vXo}, v{T+3}, 5, v{vXo}
    v_lshrrev_b32 v{T+3}, 1, v{T}
    v_lshl_add_u32 v{vXo}, v{T+3}, 4, v{vXo}
    s_lshl_b32 s{sT+1}, s{sCg}, 7""")
    for p in range(2):
        a(f"buffer_load_dwordx4 {vr(XR+4*p,4)}, v{vXo}, s[{sX}:{sX+3}], s{sT+1} offen offset:{64*p}")
    for s in range(16):
        for l in uload(s): a(l)
    a(f"""v_bfe_u32 v{T+3}, v{vL}, 2, 2
    v_lshl_add_u32 v{T+4}, v{T}, 3, v{T+3}
    v_lshlrev_b32 v{T+4}, 7, v{T+4}
    v_and_b32 v{T+5}, 3, v{vL}
    v_lshl_add_u32 v{T+4}, v{T+5}, 3, v{T+4}
    v_lshrrev_b32 v{T+3}, 1, v{T+3}
    v_and_b32 v{T+5}, 1, v{T}
    v_lshl_add_u32 v{T+3}, v{T+5}, 1, v{T+3}
    v_lshl_add_u32 v{vA}, v{T+3}, 5, v{T+4}
    v_xor_b32 v{vA+1}, 32, v{vA}
    v_xor_b32 v{vA+2}, 64, v{vA}
    v_xor_b32 v{vA+3}, 96, v{vA}""")
    for i in range(16): a(f"v_mov_b32 v{ACC+i}, 0")
    a(f"s_mov_b32 s{sI}, 5")
    a.lines.append(".p2align 6")
    a.label(f"{N}_loop")
    for st in range(9):
        if st == 8:
            for j in range(4): a(f"v_add_u32 v{vA+j}, {8*8192}, v{vA+j}")
        a("s_barrier")
        ob = (st % 8) * 8192
        for h in range(2):
            for j in range(4):
                for rd in range(2):
                    a(f"ds_read_b64_tr_b16 {vr(FA+16*h+4*j+2*rd,2)}, v{vA+j} offset:{ob+4096*h+512*rd}")
        if st == 8:
            for j in range(4): a(f"v_subrev_u32 v{vA+j}, {8*8192}, v{vA+j}")
        for h in range(2):
            ks = 2*st + h
            for l in uload((ks + 16) % 18): a(l)
            a(f"s_waitcnt vmcnt(16) lgkmcnt({8 if h == 0 else 0})")
            for j in range(4):
                a(f"v_mfma_f32_16x16x32_bf16 {vr(ACC+4*j,4)}, {vr(FA+16*h+4*j,4)}, {vr(UF+4*ks,4)}, {vr(ACC+4*j,4)}")
    a(f"s_sub_u32 s{sI}, s{sI}, 1")
    a(f"s_cmp_eq_u32 s{sI}, 0")
    a(f"s_cbranch_scc1 {N}_epi")
    a(f"s_cmp_lg_u32 s{sI}, 1")
    a(f"s_cbranch_scc1 {N}_loop")
    a("s_nop 7")
    for i in range(16):
        a(f"v_mov_b32 v{SV+i}, v{ACC+i}")
    for i in range(16):
        a(f"v_mov_b32 v{ACC+i}, 0")
    a(f"s_branch {N}_loop")
    a.label(f"{N}_epi")
    a(f"s_mov_b32 s{sT}, {f32(-math.log2(math.e))}")
    for i in range(16): a(f"v_mul_f32 v{T+i}, s{sT}, v{SV+i}")
    for i in range(16): a(f"v_exp_f32 v{T+i}, v{T+i}")
    for i in range(16): a(f"v_add_f32 v{T+i}, 1.0, v{T+i}")
    for i in range(16): a(f"v_rcp_f32 v{T+i}, v{T+i}")
    for i in range(16): a(f"v_mul_f32 v{SV+i}, v{SV+i}, v{T+i}")
    for i in range(16): a(f"v_mul_f32 v{SV+i}, v{SV+i}, v{ACC+i}")
    for p in range(2):
        x = XR + 4*p
        a(f"v_permlane16_swap_b32 v{x}, v{x+2}")
        a(f"v_permlane16_swap_b32 v{x+1}, v{x+3}")
        for r in range(4):
            s = SV + 8*p + 2*r
            a(f"v_lshlrev_b32 v{T}, 16, v{x+r}")
            a(f"v_and_b32 v{T+1}, 0xffff0000, v{x+r}")
            a(f"v_add_f32 v{T}, v{T}, v{s}")
            a(f"v_add_f32 v{T+1}, v{T+1}, v{s+1}")
            a(f"v_cvt_pk_bf16_f32 v{x+r}, v{T}, v{T+1}")
        a(f"v_permlane16_swap_b32 v{x}, v{x+2}")
        a(f"v_permlane16_swap_b32 v{x+1}, v{x+3}")
        a(f"buffer_store_dwordx4 {vr(x,4)}, v{vXo}, s[{sOUT}:{sOUT+3}], s{sT+1} offen offset:{64*p}")
    a("s_endpgm")
    a.label(f"{N}_prod")
    vD = 2
    a(f"""v_lshrrev_b32 v8, 3, v1
    v_and_b32 v9, 7, v1
    v_lshrrev_b32 v10, 3, v1
    v_and_b32 v10, 2, v10
    v_xor_b32 v9, v9, v10
    v_lshlrev_b32 v9, 4, v9
    v_mul_u32_u24 v{vD}, 1152, v8
    v_add_u32 v{vD}, v{vD}, v9
    v_xor_b32 v{vD+1}, 64, v{vD}
    v_add_u32 v{vD+1}, {8*1152-1024}, v{vD+1}
    v_add_u32 v{vD+2}, {2*(8*1152-1024)}, v{vD}
    v_add_u32 v{vD+3}, {2*(8*1152-1024)}, v{vD+1}
    s_sub_u32 s{sT}, s{sWave}, 5
    s_mul_i32 s{sW}, s{sT}, {32*1152}
    s_lshl_b32 s{sT+1}, s{sCg}, 7
    s_add_u32 s{sW}, s{sW}, s{sT+1}
    s_mov_b32 s{sT+3}, s{sW}
    s_lshl_b32 s{sT+2}, s{sT}, 12
    s_mov_b32 s{sDM}, s{sWO}
    s_mov_b32 s{sDM+1}, s{sWO+1}
    s_mov_b32 s{sDM+2}, s{sWO+2}
    s_mov_b32 s{sDM+3}, 0x00020000
    s_mov_b32 s{sU}, 0""")
    a(f"s_mov_b32 s{sT+4}, s{sT+2}")
    def issue():
        out = [f"s_mov_b32 m0, s{sT+4}",
               f"s_add_u32 s{sT+4}, s{sT+4}, 8192"]
        out += [f"buffer_load_dwordx4 v{vD+j}, s[{sDM}:{sDM+3}], s{sW} offen offset:{1024*j} lds" for j in range(4)]
        out += [f"s_add_u32 s{sW}, s{sW}, {64*1152}",
                f"s_cmp_ge_u32 s{sT+4}, {NS*8192}",
                f"s_cselect_b32 s{sT+4}, s{sT+2}, s{sT+4}",
                f"s_add_u32 s{sU}, s{sU}, 1",
                f"s_cmp_eq_u32 s{sU}, 36",
                f"s_cselect_b64 s[{sDM}:{sDM+1}], s[{sWA}:{sWA+1}], s[{sDM}:{sDM+1}]",
                f"s_cselect_b32 s{sDM+2}, s{sWA+2}, s{sDM+2}",
                f"s_cselect_b32 s{sW}, s{sT+3}, s{sW}"]
        return out
    for st in range(8):
        for l in issue(): a(l)
    a("s_waitcnt vmcnt(28)")
    a("s_barrier")
    a(f"s_mov_b32 s{sI}, 37")
    a.label(f"{N}_ploop")
    for l in issue(): a(l)
    a("s_waitcnt vmcnt(28)")
    a("s_barrier")
    a(f"s_sub_u32 s{sI}, s{sI}, 1")
    a(f"s_cmp_lg_u32 s{sI}, 0")
    a(f"s_cbranch_scc1 {N}_ploop")
    for n in range(7):
        a(f"s_waitcnt vmcnt({24-4*n})")
        a("s_barrier")
    a.label(f"{N}_end")
    a("s_endpgm")
    return a, kd(N, 176, 176), (N, 234, 448, NS * 8192)

HEADER = open("cdna_kernels/" + NAME + ".s.ref").read().split("; Override")[0]

def build(kernels, verbose=False):
    txt = HEADER
    body = ""
    kds = ""
    for g in kernels:
        a, k, (n, grid, block, lds) = g()
        txt += f"; @launch kernel={n} grid=({grid},1,1) block=({block},1,1) lds={lds}\n"
        lines, ins = fix_hazards(a.lines, verbose, n)
        print(f"{n}: {len(lines)} lines, {ins} hazard nops", file=sys.stderr)
        body += "\n".join(("    " + l if not (l.endswith(":") or l.startswith(".")) else l) for l in lines) + "\n"
        kds += k
    txt += '.amdgcn_target "amdgcn-amd-amdhsa--gfx950"\n' + body + kds
    return txt

if __name__ == "__main__":
    out = sys.argv[1] if len(sys.argv) > 1 else "cdna_kernels/" + NAME + ".s"
    open(out, "w").write(build([gen_KA, gen_KN, gen_KB, gen_KC], verbose="-v" in sys.argv))
```

```python
import re

class Asm:
    def __init__(self):
        self.lines = []
        self.uid = 0
    def __call__(self, s):
        for l in s.split("\n"):
            l = l.strip()
            if l:
                self.lines.append(l)
    def label(self, name):
        self.lines.append(name + ":")
    def newlabel(self, base="L"):
        self.uid += 1
        return f"{base}_{self.uid}"
    def c(self, s):
        self.lines.append("; " + s)
    def srd(self, d, base_lo, base_hi, nbytes):
        self(f"s_mov_b32 s{d}, s{base_lo}")
        self(f"s_mov_b32 s{d+1}, s{base_hi}")
        self(f"s_mov_b32 s{d+2}, {nbytes}")
        self(f"s_mov_b32 s{d+3}, 0x00020000")
    def srd_off(self, d, base_lo, base_hi, off, nbytes):
        self(f"s_add_u32 s{d}, s{base_lo}, {off}")
        self(f"s_addc_u32 s{d+1}, s{base_hi}, 0")
        self(f"s_mov_b32 s{d+2}, {nbytes}")
        self(f"s_mov_b32 s{d+3}, 0x00020000")

def vr(b, n=1):
    return f"v{b}" if n == 1 else f"v[{b}:{b+n-1}]"
def ar(b, n=1):
    return f"a{b}" if n == 1 else f"a[{b}:{b+n-1}]"
def sr(b, n=1):
    return f"s{b}" if n == 1 else f"s[{b}:{b+n-1}]"

_REG = re.compile(r"^-?\|?(?:neg\(|abs\()?([vas])(?:(\d+)|\[(\d+):(\d+)\])\)?\|?$")
def regs_of(tok):
    tok = tok.strip()
    if tok == "vcc": return [("s", 106), ("s", 107)]
    if tok == "exec": return [("s", 126), ("s", 127)]
    if tok == "m0": return [("s", 124)]
    m = _REG.match(tok)
    if not m: return []
    f = m.group(1)
    if m.group(2) is not None:
        return [(f, int(m.group(2)))]
    return [(f, i) for i in range(int(m.group(3)), int(m.group(4)) + 1)]

TRANS = ("v_exp_f32", "v_log_f32", "v_rcp_f32", "v_rsq_f32", "v_sqrt_f32", "v_sin_f32", "v_cos_f32", "v_rcp_iflag_f32")

def split_ops(rest):
    ops, depth, cur = [], 0, ""
    for ch in rest + ",":
        if ch in "[(": depth += 1
        elif ch in "])": depth -= 1
        if ch == "," and depth == 0:
            ops.append(cur.strip()); cur = ""
        else:
            cur += ch
    return ops

class Ins:
    __slots__ = ("text", "mn", "kind", "dst", "src", "mods", "passes", "srcC", "srcAB", "states")

def parse(line):
    t = line.split(";")[0].strip()
    if not t or t.endswith(":") or t.startswith("."):
        return None
    parts = t.split(None, 1)
    mn = parts[0]
    rest = parts[1] if len(parts) > 1 else ""
    ops = split_ops(rest) if rest else []
    mods = ""
    if ops:
        last = ops[-1].split(None, 1)
        if len(last) > 1 and not last[0].endswith(":"):
            ops[-1] = last[0]; mods = last[1]
    I = Ins(); I.text = t; I.mn = mn; I.mods = mods; I.passes = 0; I.srcC = []; I.srcAB = []; I.states = 1
    R = [regs_of(o) for o in ops]
    if mn == "s_nop":
        I.kind = "nop"; I.dst = []; I.src = []; I.states = int(ops[0], 0) + 1
    elif mn.startswith("v_mfma"):
        I.kind = "mfma"; I.dst = R[0]; I.srcAB = R[1] + R[2]; I.srcC = R[3]; I.src = I.srcAB + I.srcC
        I.passes = 8 if "32x32x16" in mn else 4 if "16x16x32" in mn else 16
    elif mn.startswith("v_"):
        I.kind = "valu"
        base = mn.replace("_e32", "").replace("_e64", "").replace("_dpp", "").replace("_sdwa", "")
        if base.startswith("v_cmp"):
            I.dst = R[0]; I.src = sum(R[1:], [])
        elif base in ("v_permlane16_swap_b32", "v_permlane32_swap_b32", "v_swap_b32"):
            I.dst = R[0] + R[1]; I.src = R[0] + R[1]; I.kind = "perm"
        elif base in ("v_add_co_u32", "v_sub_co_u32", "v_addc_co_u32", "v_subb_co_u32"):
            I.dst = R[0] + R[1]; I.src = sum(R[2:], [])
        else:
            I.dst = R[0]; I.src = sum(R[1:], [])
            if base in ("v_fmac_f32", "v_dot2c_f32_bf16", "v_pk_fmac_f16"): I.src = I.src + R[0]
            if base == "v_cndmask_b32" and len(ops) == 3: I.src = I.src + regs_of("vcc")
        if base in TRANS: I.kind = "trans"
        if base.startswith("v_dot"): I.kind = "dot"
        if base in ("v_readfirstlane_b32", "v_readlane_b32"): I.kind = "rdlane"
        if "dpp" in mn or "row_" in mods or "quad_perm" in mods or "wave_" in mods: I.kind = "dpp"
    elif mn.startswith("ds_"):
        I.kind = "ds"
        if "read" in mn or "permute" in mn or "swizzle" in mn:
            I.dst = R[0]; I.src = sum(R[1:], [])
        else:
            I.dst = []; I.src = sum(R, [])
    elif mn.startswith("buffer_") or mn.startswith("global_"):
        I.kind = "vmem"
        lds = " lds" in (" " + mods) or "_lds_" in mn
        if "load" in mn and not lds:
            I.dst = R[0]; I.src = sum(R[1:], [])
        elif "load" in mn:
            I.dst = []; I.src = sum(R, []) + [("s", 124)]; I.kind = "dma"
        elif "atomic" in mn and "sc0" in mods:
            I.dst = R[0]; I.src = sum(R, [])
        else:
            I.dst = []; I.src = sum(R, [])
            if "store" in mn and ("x3" in mn or "x4" in mn):
                I.kind = "wstore"
                I.srcC = R[0] if mn.startswith("buffer_") else R[1]
    elif mn.startswith("s_"):
        I.kind = "salu"
        if mn.startswith(("s_cmp", "s_cbranch", "s_branch", "s_waitcnt", "s_barrier", "s_endpgm", "s_sleep", "s_setprio", "s_bitcmp", "s_setpc")):
            I.dst = []; I.src = sum(R, [])
        else:
            I.dst = R[0] if R else []; I.src = sum(R[1:], [])
    else:
        raise ValueError("unknown instr " + t)
    return I

VALU_KINDS = ("valu", "trans", "dot", "rdlane", "dpp", "perm")
XDL_D_VALU = {4: 8, 8: 12, 16: 20}
XDL_C_WAR = {4: 3, 8: 7, 16: 15}
XDL_OVERLAP_C = {4: 6, 8: 10, 16: 18}

def need(prod, cons):
    n = 0
    pd = set(prod.dst); cs = set(cons.src); cd = set(cons.dst)
    pv = prod.kind in VALU_KINDS
    cv = cons.kind in VALU_KINDS
    if pv:
        vd = {r for r in pd if r[0] in "va"}
        sd = {r for r in pd if r[0] == "s"}
        if cons.kind == "mfma" and vd & cs: n = max(n, 2)
        if cons.kind in ("perm", "dpp") and vd & cs: n = max(n, 2)
        if cons.kind == "rdlane" and vd & cs: n = max(n, 1)
        if prod.kind == "trans" and cv and cons.kind != "trans" and vd & cs: n = max(n, 1)
        if prod.kind == "trans" and cons.kind in ("ds", "vmem", "wstore") and vd & cs: n = max(n, 1)
        if prod.kind == "dot" and (vd & (cs | cd)) and cons.kind != "salu":
            if not (cons.kind == "dot" and cons.mn == prod.mn and not (vd & set(cons.src[:-len(cons.dst)] if cons.mn.endswith("c_f32_bf16") else cons.src[:2]))):
                n = max(n, 3)
        if sd:
            if cons.kind in ("vmem", "dma", "wstore") and sd & cs: n = max(n, 5)
            if cv and sd & cs: n = max(n, 2 if cons.kind != "rdlane" else 4)
            if cons.kind == "salu" and sd & cs: n = max(n, 1)
            if ("s", 126) in sd and cons.kind == "mfma": n = max(n, 4)
            if ("s", 126) in sd and cons.kind == "dpp": n = max(n, 5)
        if "sdwa" in prod.mn and cv and vd & cs: n = max(n, 1)
    if prod.kind == "salu" and ("s", 124) in pd and cons.kind == "dma": n = max(n, 1)
    if prod.kind == "wstore" and (cv or cons.kind in ("ds", "vmem", "mfma")) and set(prod.srcC) & cd:
        n = max(n, 2)
    if prod.kind == "mfma":
        p = prod.passes
        if cons.kind == "mfma":
            if pd & set(cons.srcAB): n = max(n, XDL_D_VALU[p])
            if pd & set(cons.srcC):
                if not (set(cons.srcC) == pd and cons.passes == p): n = max(n, XDL_OVERLAP_C[p])
            elif pd & cd: n = max(n, XDL_D_VALU[p])
        elif cons.kind != "salu":
            if pd & (cs | cd): n = max(n, XDL_D_VALU[p])
            if cv and set(prod.srcC) & cd: n = max(n, XDL_C_WAR[p])
    return n

def fix_hazards(lines, verbose=False, name=""):
    out = []
    window = []
    inserted = 0
    labels = {}
    parsed = []
    for l in lines:
        I = parse(l)
        parsed.append(I)
    def required(window, I):
        dist = 0; req = 0
        for P in reversed(window):
            nn = need(P, I)
            if nn > dist: req = max(req, nn - dist)
            dist += P.states
            if dist > 24: break
        return req
    for idx, l in enumerate(lines):
        I = parsed[idx]
        if I is None:
            if l.endswith(":"):
                labels[l[:-1]] = idx
            out.append(l); continue
        req = required(window, I)
        if req > 0:
            nop = parse(f"s_nop {req-1}")
            out.append(f"s_nop {req-1}    ; hazard")
            window.append(nop); inserted += 1
            if verbose: print(f"[{name}] nop {req} before: {l}")
        out.append(l)
        window.append(I)
        if len(window) > 40: window = window[-40:]
        if I.mn.startswith(("s_cbranch", "s_branch")):
            tgt = I.text.split()[-1]
            if tgt in labels: start = labels[tgt]
            else:
                start = None
                for j in range(idx + 1, len(lines)):
                    if lines[j] == tgt + ":": start = j; break
            if start is not None:
                w2 = list(window); cnt = 0
                for j in range(start, len(lines)):
                    J = parsed[j]
                    if J is None: continue
                    r = required(w2, J)
                    if r > 0:
                        raise ValueError(f"[{name}] hazard across branch {I.text} -> {J.text}: need {r} more")
                    w2.append(J); cnt += J.states
                    if cnt > 24 or J.mn in ("s_branch", "s_endpgm", "s_setpc_b64"): break
            if I.mn == "s_branch":
                window = []
        if I.mn in ("s_endpgm", "s_setpc_b64"):
            window = []
    return out, inserted

def interleave(slots, fillers, per=None, start=0):
    out = []
    n = len(slots) - start
    k = 0
    for i, s in enumerate(slots):
        out += s
        if i >= start and n > 0:
            tgt = (len(fillers) * (i - start + 1) + n - 1) // n if per is None else min(len(fillers), (i - start + 1) * per)
            while k < tgt:
                out.append(fillers[k]); k += 1
    out += fillers[k:]
    return out

import subprocess, tempfile, os
FLEX = ("v_mul_f32", "v_add_f32", "v_sub_f32", "v_exp_f32", "v_rcp_f32", "v_rsq_f32", "v_mov_b32", "v_and_b32", "v_or_b32",
        "v_xor_b32", "v_lshlrev_b32", "v_lshrrev_b32", "v_add_u32", "v_sub_u32", "v_subrev_u32", "v_max_f32", "v_min_u32",
        "v_mul_u32_u24", "v_cndmask_b32")
def sizes_of(lines):
    txt = '.amdgcn_target "amdgcn-amd-amdhsa--gfx950"\n.text\ncode_begin:\n'
    idx = []
    for i, l in enumerate(lines):
        if parse(l) is not None:
            txt += f"__m{i}:\n"; idx.append(i)
        if l.startswith(".p2align") or l.startswith(".text") or l.startswith(".globl") or l.startswith(".type"): continue
        txt += l + "\n"
    txt += "__mend:\ncode_end:\n"
    with tempfile.TemporaryDirectory() as d:
        open(d + "/a.s", "w").write(txt)
        r = subprocess.run(["clang", "-x", "assembler", "-target", "amdgcn-amd-amdhsa", "-mcpu=gfx950", "-c", d + "/a.s", "-o", d + "/a.o"], capture_output=True, text=True)
        if r.returncode: raise SystemExit(r.stderr[:3000])
        o = subprocess.run(["llvm-readelf", "-s", d + "/a.o"], capture_output=True, text=True).stdout
    addr = {}
    for ln in o.split("\n"):
        p = ln.split()
        if len(p) >= 8 and p[7].startswith("__m"): addr[p[7][3:]] = int(p[1], 16)
    sz = [0] * len(lines)
    for n, i in enumerate(idx):
        nxt = addr[str(idx[n + 1])] if n + 1 < len(idx) else addr["end"]
        sz[i] = nxt - addr[str(i)]
    return sz

def align8(lines, move=True):
    lines = list(lines)
    sz = sizes_of(lines)
    def flex(i):
        return sz[i] == 4 and lines[i].split()[0] in FLEX and lines[i].split()[0] != "v_cndmask_b32"
    def plain_valu(i):
        I = parse(lines[i])
        return I is not None and I.kind in ("valu", "trans") and not lines[i].startswith(("v_cmp", "v_readfirst"))
    n = len(lines)
    for i in range(2, n - 1 if move else 0):
        if lines[i].startswith("s_waitcnt lgkmcnt") and sz[i-1] == 8 and sz[i+1] == 8:
            j = i
            while j > i - 4 and sz[j-1] == 8 and plain_valu(j-1): j -= 1
            if j < i and sz[j-1] == 4:
                w = lines.pop(i); lines.insert(j, w)
                z = sz.pop(i); sz.insert(j, z)
    out = []; nops = 0
    i = 0; ph = 0
    while i < n:
        l = lines[i]
        if l.startswith(".p2align"):
            ph = 0; out.append(l); i += 1; continue
        if sz[i] != 4:
            if sz[i] and ph == 4:
                out.append("s_nop 0    ; align"); nops += 1; ph = 0
            out.append(l)
            if sz[i] % 8: ph ^= 4
            i += 1; continue
        j = i; run = []
        while j < n and (sz[j] == 4 or (sz[j] == 0 and not lines[j].startswith(".p2align"))):
            if sz[j] == 4: run.append(j)
            j += 1
        odd = (len(run) + ph // 4) % 2
        widen = None
        if odd:
            for cand in reversed(run):
                pos = run.index(cand)
                if flex(cand) and (pos + ph // 4) % 2 == 0:
                    widen = cand; break
        for k in range(i, j):
            if k == widen:
                mn, rest = lines[k].split(None, 1)
                out.append(mn + "_e64 " + rest)
            else:
                out.append(lines[k])
                if sz[k] == 4: ph ^= 4
        i = j
    return out, nops
```

```python
import math, struct, sys
from asmlib import *

NAME = "recurrent_scan__sliding_local_dilated__mixer_gmlp__prompt"
def f32(x): return "0x%08x" % struct.unpack("<I", struct.pack("<f", x))[0]

C0 = -2.0 * math.sqrt(2.0 / math.pi) * math.log2(math.e)
C1 = C0 * 0.044715
KSC = -((-C1) ** (1.0 / 3.0))
DELTA = C0 / KSC
EPS = 1e-5
OCT = 32768

class Cfg:
    ws_base = 0
    st_aux_a = "sc1"
    st_aux_n = "sc1"
    st_aux_b = "sc1"
    prof = False
    ka_xbar = -1
    ka_prio = 0
    ka_xpf = 0
    ka_head = 24
    ka_xfirst = 5
    ka_rot = 0
    align = 0
    ka_rbl = 2
    ka_nostore = 0
    ka_nodma = 0
    ka_wsp_slot = 2
    ka_wsp_aux = "nt"
    ka_npre = 26
    codepf = 1
    ka_l2pf = 1
    attn_seg = 36
    ka_stpos = 5
    kb_nomfma = 0
    kb_pf = 1
    kb_eit = 8
    kb_abar = 1
    kb_nodma = 0
    kb_noattn = 0
CFG = Cfg()

ZQ_OFF, ZQ_SZ = 0, 792 * OCT
UO_OFF, UO_SZ = 26 << 20, 360 * OCT
WP_OFF, WP_SZ = 38 << 20, 2048 * 4096
ST_OFF, ST_SZ = 47 << 20, 16 * 16 * 1024
CP_OFF, CP_SZ = 48 << 20, 2048 * 128

def kd(name, vgpr, accum, sgpr=96):
    return f""".section .rodata,"a"
.p2align 6
.amdhsa_kernel {name}
  .amdhsa_next_free_vgpr {vgpr}
  .amdhsa_next_free_sgpr {sgpr}
  .amdhsa_accum_offset {accum}
  .amdhsa_group_segment_fixed_size 0
  .amdhsa_kernarg_size 88
  .amdhsa_user_sgpr_count 2
  .amdhsa_user_sgpr_kernarg_segment_ptr 1
  .amdhsa_system_sgpr_workgroup_id_x 1
.end_amdhsa_kernel
"""

PROF_OFF = 64 << 20
class Prof:
    def __init__(self, a, vreg, kidx):
        self.a, self.v, self.k = a, vreg, kidx
    def init(self):
        if not CFG.prof: return
        a = self.a
        a(f"v_mov_b32 v{self.v}, 0")
        a("s_mov_b64 s[84:85], 2")
        a("s_memrealtime s[82:83]")
        a("s_waitcnt lgkmcnt(0)")
        a(f"v_writelane_b32 v{self.v}, s82, 0")
        self.stamp()
    def stamp(self):
        if not CFG.prof: return
        a = self.a
        a("s_memtime s[80:81]")
        a("s_waitcnt lgkmcnt(0)")
        a("s_mov_b64 s[92:93], exec")
        a("s_mov_b64 exec, s[84:85]")
        a(f"v_mov_b32 v{self.v}, s80")
        a("s_mov_b64 exec, s[92:93]")
        a("s_lshl_b64 s[84:85], s[84:85], 1")
    def flush(self, sWave):
        if not CFG.prof: return
        a = self.a
        self.stamp()
        a("s_memrealtime s[82:83]")
        a("s_load_dwordx2 s[86:87], s[0:1], 80")
        a("s_waitcnt lgkmcnt(0)")
        a(f"v_writelane_b32 v{self.v}, s82, 63")
        a.srd_off(88, 86, 87, PROF_OFF + self.k * (1 << 20), 1 << 20)
        a("s_lshl_b32 s85, s2, 3")
        a(f"s_add_u32 s85, s85, s{sWave}")
        a("s_lshl_b32 s85, s85, 8")
        a("s_mov_b64 exec, -1")
        a("v_mbcnt_lo_u32_b32 v0, -1, 0")
        a("v_mbcnt_hi_u32_b32 v0, -1, v0")
        a("v_lshlrev_b32 v0, 2, v0")
        a(f"buffer_store_dword v{self.v}, v0, s[88:91], s85 offen")

def code_prefetch(a, sS, vT, vL, name):
    if not CFG.codepf: return
    h = a.newlabel(name + "_pc")
    a(f"s_getpc_b64 s[{sS}:{sS+1}]")
    a.label(h)
    a(f"s_sub_u32 s{sS}, s{sS}, {h}-code_begin")
    a(f"s_subb_u32 s{sS+1}, s{sS+1}, 0")
    a(f"s_mov_b32 s{sS+2}, code_end-code_begin")
    a(f"s_mov_b32 s{sS+3}, 0x00020000")
    a(f"s_lshr_b32 s{sS+4}, s2, 3")
    a(f"s_lshl_b32 s{sS+4}, s{sS+4}, 13")
    a(f"v_lshlrev_b32 v{vT}, 7, v{vL}")
    a(f"buffer_load_dword v{vT+1}, v{vT}, s[{sS}:{sS+3}], s{sS+4} offen")

def prologue(a, name, ngrid):
    a.lines.append(".text")
    a.lines.append(f".globl {name}")
    a.lines.append(".p2align 8")
    a.lines.append(f".type {name},@function")
    a.label(name)
    a(f"s_cmp_ge_u32 s2, {ngrid}")
    a(f"s_cbranch_scc1 {name}_end")

def cost(l):
    c = 0
    for x in l.split("\n"):
        c += 8 if x.startswith(TRANS) else 4
    return c

def spread(slots, fillers, base=None):
    base = [sum(cost(x) + (4 if x.startswith("v_mfma") else 0) for x in sl) for sl in slots]
    tot = sum(base) + sum(cost(f) for f in fillers)
    out = []; k = 0; cum = 0
    for i, sl in enumerate(slots):
        out += sl; cum += base[i]
        tgt = tot * (i + 1) / len(slots)
        while k < len(fillers) and cum + cost(fillers[k]) / 2 <= tgt:
            out.append(fillers[k]); cum += cost(fillers[k]); k += 1
    return out + fillers[k:]

def gen_KA():
    a = Asm(); N = "ka_kernel"
    X, FR, T = 112, 24, 16
    AC = [80, 48]
    W = AC[1]
    vL, vA0, vA1, vPn, vO8, vSt, vStO = 1, 2, 3, 4, 5, 6, 7
    vNm, vSc, vSum = 8, 9, 10
    S = W
    vX0, vX1, vX2, vX3, vSR, vSRs, vXw = W+8, W+9, W+10, W+11, W+12, W+16, W+20
    sX, sWI, sWQ, sZQ, sST, sDM = 12, 16, 20, 24, 28, 32
    sWave, sRb, sCg = 36, 37, 38
    sNz2, sNg, sN, sZ2s, sZ1m, sQm = 39, 40, 41, 42, 43, 44
    sU, sV, sUn, sMz2, sP8, sOb = 45, 46, 47, 48, 49, 50
    sMq = 52
    sDma, sDstep, sDvs = 54, 55, 56
    sDp, sDc, sDn = 57, 58, 59
    sBufN, sPw, sRot, sRw = 61, 62, 60, 51
    sDl, sOlo, sOhi, sOnes = 63, 64, 65, 66
    sXr = 68
    sT0, sT1, sT2, sSt, sP8i, sP8q, sXb, sXs = 72, 73, 74, 76, 77, 78, 75, 79
    UB = 73728; STG = 2 * UB
    RBL = CFG.ka_rbl
    prologue(a, N, 256)
    pf = Prof(a, 15, 0); pf.init()
    a("s_load_dwordx4 s[4:7], s[0:1], 0")
    a("s_load_dwordx4 s[8:11], s[0:1], 32")
    a("s_load_dwordx4 s[96:99], s[0:1], 72")
    a(f"v_and_b32 v{vL}, 63, v0")
    a(f"v_lshrrev_b32 v{T}, 6, v0")
    a(f"v_readfirstlane_b32 s{sWave}, v{T}")
    a(f"""s_and_b32 s{sT0}, s2, 7
    s_lshr_b32 s{sT1}, s2, 3
    s_and_b32 s{sRb}, s{sT0}, {(16>>RBL)-1}
    s_lshl_b32 s{sRb}, s{sRb}, {RBL}
    s_and_b32 s{sT2}, s{sT1}, {(1<<RBL)-1}
    s_add_u32 s{sRb}, s{sRb}, s{sT2}
    s_lshr_b32 s{sCg}, s{sT0}, {4-RBL}
    s_lshl_b32 s{sCg}, s{sCg}, {5-RBL}
    s_lshr_b32 s{sT2}, s{sT1}, {RBL}
    s_add_u32 s{sCg}, s{sCg}, s{sT2}
    s_and_b32 s{sRot}, s{sT1}, {(1<<RBL)-1}
    s_lshl_b32 s{sRot}, s{sRot}, 1
    s_add_u32 s{sRot}, s{sRot}, s{sT2}
    s_mul_i32 s{sRot}, s{sRot}, {CFG.ka_rot}
    s_sub_u32 s{sT2}, s{sRot}, 9
    s_min_u32 s{sRot}, s{sRot}, s{sT2}
    s_sub_u32 s{sT2}, s{sRot}, 9
    s_min_u32 s{sRot}, s{sRot}, s{sT2}
    v_lshrrev_b32 v{T}, 3, v{vL}
    v_and_b32 v{T+1}, 7, v{vL}""")
    unit_lists = f"""s_min_u32 s{sT0}, s{sCg}, 4
    s_lshl_b32 s{sZ2s}, s{sCg}, 1
    s_add_u32 s{sZ2s}, s{sZ2s}, s{sT0}
    s_add_u32 s{sZ2s}, s{sZ2s}, 36
    s_cmp_lt_u32 s{sCg}, 4
    s_cselect_b32 s{sNz2}, 3, 2
    s_max_u32 s{sT0}, s{sCg}, 4
    s_min_u32 s{sT0}, s{sT0}, 8
    s_sub_u32 s{sT0}, s{sT0}, 4
    s_lshl_b32 s{sZ1m}, s{sCg}, 1
    s_add_u32 s{sZ1m}, s{sZ1m}, s{sT0}
    s_sub_u32 s{sZ1m}, s{sZ1m}, s{sNz2}
    s_cmp_lt_u32 s{sCg}, 8
    s_cselect_b32 s{sNg}, 5, 4
    s_max_u32 s{sT0}, s{sCg}, 8
    s_sub_u32 s{sT0}, s{sT0}, 8
    s_max_u32 s{sT1}, s{sCg}, 13
    s_sub_u32 s{sT1}, s{sT1}, 13
    s_add_u32 s{sQm}, s{sCg}, s{sT0}
    s_add_u32 s{sQm}, s{sQm}, s{sT1}
    s_sub_u32 s{sQm}, s{sQm}, s{sNg}
    s_cmp_lt_u32 s{sCg}, 13
    s_cselect_b32 s{sN}, 6, 7"""
    a(f"s_cmp_ge_u32 s{sWave}, 4")
    a(f"s_cbranch_scc1 {N}_prod")
    a(f"""v_lshrrev_b32 v{T+2}, 4, v{vL}
    v_xor_b32 v{T+2}, v{T+2}, v{T+1}
    v_lshlrev_b32 v{T+2}, 4, v{T+2}
    v_mul_u32_u24 v{vX0}, 1152, v{T}
    v_add_u32 v{vX0}, v{vX0}, v{T+2}
    v_xor_b32 v{vX1}, 64, v{vX0}
    s_lshl_b32 s{sT0}, s{sRb}, 7
    s_lshl_b32 s{sT1}, s{sWave}, 5
    s_add_u32 s{sT0}, s{sT0}, s{sT1}
    s_mul_i32 s{sXr}, s{sT0}, 1152
    s_add_u32 s{sXr+1}, s{sXr}, 8192
    s_add_u32 s{sXr+2}, s{sXr}, 16384
    s_add_u32 s{sXr+3}, s{sXr}, 24576
    s_lshl_b32 s{sXb}, s{sWave}, 14
    s_add_u32 s{sXb}, s{sXb}, {UB}
    s_lshl_b32 s{sXs}, s{sWave}, 12
    s_add_u32 s{sXs}, s{sXs}, {STG}""")
    a("s_waitcnt lgkmcnt(0)")
    a.srd(sX, 4, 5, 2048 * 1152)
    a(f"s_lshl_b32 s{sRw}, s{sRot}, 7")
    def xload(j):
        a(f"v_add_u32 v{vX2}, s{sRw}, v{vX0}")
        a(f"v_add_u32 v{vX3}, s{sRw}, v{vX1}")
        if j < 4: a(f"s_add_u32 m0, s{sXb}, {j*4096}")
        elif j == 4: a(f"s_mov_b32 m0, s{sXs}")
        a(f"s_add_u32 s{sRw}, s{sRw}, 128")
        for rg in range(4):
            if j < 5:
                a(f"buffer_load_dwordx4 v{vX3 if rg&1 else vX2}, s[{sX}:{sX+3}], s{sXr+rg} offen offset:{rg*1024} lds")
            else:
                a(f"buffer_load_dwordx4 {vr(X+16*j+4*rg,4)}, v{vX3 if rg&1 else vX2}, s[{sX}:{sX+3}], s{sXr+rg} offen offset:{rg*1024}")
        a(f"s_cmp_eq_u32 s{sRw}, 1152")
        a(f"s_cselect_b32 s{sRw}, 0, s{sRw}")
    for j in range(CFG.ka_xfirst): xload(j)
    a.srd_off(sZQ, 98, 99, CFG.ws_base + ZQ_OFF, ZQ_SZ)
    a(unit_lists)
    a(f"""s_mov_b32 s{sDl}, {f32(DELTA)}
    s_mov_b32 s{sOlo}, 0x00003f80
    s_mov_b32 s{sOhi}, 0x3f800000
    s_mov_b32 s{sOnes}, 0x3f803f80""")
    def cparams():
        return [
            f"s_add_u32 s{sT0}, s{sZ2s}, s{sV}",
            f"s_add_u32 s{sT1}, s{sZ1m}, s{sV}",
            f"s_add_u32 s{sT2}, s{sQm}, s{sV}",
            f"s_add_u32 s{sT2}, s{sT2}, 72",
            f"s_cmp_lt_u32 s{sV}, s{sNz2}\n"
            f"s_cselect_b32 s{sUn}, s{sT0}, s{sT1}\n"
            f"s_cselect_b32 s{sMz2}, -1, 0",
            f"s_cmp_lt_u32 s{sV}, s{sNg}\n"
            f"s_cselect_b32 s{sUn}, s{sUn}, s{sT2}",
            f"s_lshl_b32 s{sDn}, s{sUn}, 18",
        ]
    def traddr(buf):
        return [f"v_and_b32 v{T+7}, s{sMz2}, v{vO8}",
                f"v_xor_b32 v{vA0}, v{T+7}, v{vPn}"] + \
               ([f"v_add_u32 v{vA0}, {UB}, v{vA0}"] if buf else []) + [f"v_xor_b32 v{vA1}, 64, v{vA0}"]
    a(f"s_mov_b32 s{sV}, 0")
    for l in cparams(): a(l)
    a(f"""v_lshrrev_b32 v{T+2}, 5, v{vL}
    v_lshlrev_b32 v{T+2}, 3, v{T+2}
    v_bfe_u32 v{T+3}, v{vL}, 2, 2
    v_add_u32 v{T+2}, v{T+2}, v{T+3}
    v_lshlrev_b32 v{vPn}, 7, v{T+2}
    v_lshrrev_b32 v{T+3}, 1, v{T+3}
    v_lshl_add_u32 v{vPn}, v{T+3}, 6, v{vPn}
    v_bfe_u32 v{T+3}, v{vL}, 4, 1
    v_lshl_add_u32 v{vPn}, v{T+3}, 5, v{vPn}
    v_and_b32 v{T+3}, 1, v{vL}
    v_lshl_add_u32 v{vPn}, v{T+3}, 4, v{vPn}
    v_lshlrev_b32 v{vO8}, 3, v{T+3}
    v_bfe_u32 v{T+3}, v{vL}, 1, 1
    v_lshl_add_u32 v{vPn}, v{T+3}, 3, v{vPn}""")
    for l in traddr(0): a(l)
    a(f"""v_and_b32 v{T+2}, 31, v{vL}
    v_bfe_u32 v{T+3}, v{vL}, 1, 3
    v_lshrrev_b32 v{T+4}, 5, v{vL}
    v_xor_b32 v{T+3}, v{T+3}, v{T+4}
    v_lshlrev_b32 v{T+3}, 4, v{T+3}
    v_lshl_add_u32 v{T+3}, v{T+2}, 7, v{T+3}
    v_add_u32 v{vSR}, s{sXb}, v{T+3}
    v_xor_b32 v{vSR+1}, 32, v{vSR}
    v_xor_b32 v{vSR+2}, 64, v{vSR}
    v_xor_b32 v{vSR+3}, 96, v{vSR}
    v_add_u32 v{vSRs}, s{sXs}, v{T+3}
    v_xor_b32 v{vSRs+1}, 32, v{vSRs}
    v_xor_b32 v{vSRs+2}, 64, v{vSRs}
    v_xor_b32 v{vSRs+3}, 96, v{vSRs}
    v_lshlrev_b32 v{vStO}, 3, v{vL}
    v_add_u32 v{vStO}, s{sXs}, v{vStO}
    s_lshl_b32 s{sT0}, s{sRb}, 7
    s_lshl_b32 s{sT1}, s{sWave}, 5
    s_add_u32 s{sT0}, s{sT0}, s{sT1}
    v_add_u32 v{vSt}, s{sT0}, v{T+2}
    v_lshlrev_b32 v{vSt}, 4, v{vSt}
    v_lshl_add_u32 v{vSt}, v{T+4}, 15, v{vSt}
    v_mov_b32 v{vSum}, 0
    v_mov_b32 v{vSum+1}, 0""")
    pf.stamp()
    def xstats(j):
        for r in range(16):
            x = X + 16*j + r
            q = S + 2*(r % 2)
            first = (j == 0 and r < 2)
            a(f"v_dot2_f32_bf16 v{q}, v{x}, s{sOnes}, {'0' if first else 'v%d' % q}")
            a(f"v_dot2_f32_bf16 v{q+1}, v{x}, v{x}, {'0' if first else 'v%d' % (q+1)}")
    a(f"v_lshlrev_b32 v{vXw}, 4, v{vL}")
    a(f"v_add_u32 v{vXw}, s{sXb}, v{vXw}")
    issued = CFG.ka_xfirst
    for j in range(9):
        a(f"s_waitcnt vmcnt({4*(issued-1-j)})")
        if j >= 5:
            for rg in range(4):
                a(f"ds_write_b128 v{vXw}, {vr(X+16*j+4*rg,4)} offset:{(j%5)*4096+rg*1024}")
        for i in range(4):
            if j % 5 < 4: a(f"ds_read_b128 {vr(X+16*j+4*i,4)}, v{vSR+i} offset:{(j%5)*4096}")
            else: a(f"ds_read_b128 {vr(X+16*j+4*i,4)}, v{vSRs+i}")
        if issued < 9:
            xload(issued); issued += 1
        if j > 0:
            a(f"s_waitcnt lgkmcnt({8 if j >= 5 else 4})")
            a.lines.append(".p2align 3")
            xstats(j-1)
    a("s_waitcnt lgkmcnt(0)")
    a.lines.append(".p2align 3")
    xstats(8)
    pf.stamp()
    a(f"""v_add_f32 v{S}, v{S}, v{S+2}
    v_add_f32 v{S+1}, v{S+1}, v{S+3}
    s_mov_b32 s{sT0}, {f32(-1.0/576)}
    s_mov_b32 s{sT1}, {f32(1.0/576)}
    s_mov_b32 s{sT2}, {f32(KSC)}
    v_mov_b32 v{S+2}, v{S}
    v_mov_b32 v{S+3}, v{S+1}
    v_permlane32_swap_b32 v{S}, v{S+2}
    v_permlane32_swap_b32 v{S+1}, v{S+3}
    v_add_f32 v{S}, v{S}, v{S+2}
    v_add_f32 v{S+1}, v{S+1}, v{S+3}
    v_mul_f32 v{vNm}, s{sT0}, v{S}
    v_mul_f32 v{S+1}, s{sT1}, v{S+1}
    v_fma_f32 v{S+1}, -v{vNm}, v{vNm}, v{S+1}
    v_max_f32 v{S+1}, 0, v{S+1}
    v_add_f32 v{S+1}, {f32(EPS)}, v{S+1}
    v_rsq_f32 v{S+1}, v{S+1}
    s_mov_b32 s{sU}, 0
    s_mov_b32 s{sDc}, s{sDn}
    s_mov_b32 s{sDp}, s{sDn}
    v_mul_f32 v{vSc}, s{sT2}, v{S+1}""")
    CT = [W, W+2, W+4, W+6]
    def center(kk):
        o = []
        for r in range(4):
            x = X + 4*kk + r
            o.append(f"v_dot2_f32_bf16 v{CT[r]}, v{x}, s{sOlo}, v{vNm}")
            o.append(f"v_dot2_f32_bf16 v{CT[r]+1}, v{x}, s{sOhi}, v{vNm}")
        for r in range(4):
            o.append(f"v_cvt_pk_bf16_f32 v{X+4*kk+r}, v{CT[r]}, v{CT[r]+1}")
        return o
    def center_plain(kk):
        o = []
        for r in range(4):
            x = X + 4*kk + r
            o += [f"v_lshlrev_b32 v{CT[r]}, 16, v{x}", f"v_and_b32 v{CT[r]+1}, 0xffff0000, v{x}",
                  f"v_add_f32 v{CT[r]}, v{vNm}, v{CT[r]}", f"v_add_f32 v{CT[r]+1}, v{vNm}, v{CT[r]+1}",
                  f"v_cvt_pk_bf16_f32 v{x}, v{CT[r]}, v{CT[r]+1}"]
        return o
    NPRE = CFG.ka_npre
    a.lines.append(".p2align 3")
    for kk in range(NPRE):
        for l in center(kk): a(l)
    pf.stamp()
    a("s_barrier")
    pf.stamp()

    def reads(kk, t):
        st = kk % 3
        off = (kk % 18) * 2048
        return [f"ds_read_b64_tr_b16 {vr(FR+8*st+4*t+2*h,2)}, v{vA1 if t else vA0} offset:{off+512*h}" for h in range(2)]
    def mfma(par, kk, t):
        st = kk % 3; acc = AC[par] + 16*t
        c = "0" if kk == 0 else vr(acc, 16)
        return f"v_mfma_f32_32x32x16_bf16 {vr(acc,16)}, {vr(FR+8*st+4*t,4)}, {vr(X+4*kk,4)}, {c}"
    def stores(E, m):
        if CFG.ka_nostore: return []
        return [f"s_add_u32 s{sSt}, s{sDp}, {2*m*OCT}",
                f"buffer_store_dwordx4 {vr(E+8*m,4)}, v{vSt}, s[{sZQ}:{sZQ+3}], s{sSt} offen {CFG.st_aux_a}"]
    def epi(kind, E):
        out = []
        if kind == "P":
            for e in range(32):
                out.append(f"v_mul_f32 v{E+e}, v{vSc}, v{E+e}")
                if e % 2 == 1 and e >= 3:
                    p = e - 3; out.append(f"v_cvt_pk_bf16_f32 v{E+(p//8)*8+(p%8)//2}, v{E+p}, v{E+p+1}")
            out.append(f"v_cvt_pk_bf16_f32 v{E+27}, v{E+30}, v{E+31}")
            return out
        def st(k, e):
            w = E + e; t = T + e % 6
            return [f"v_mul_f32 v{w}, v{vSc}, v{w}", f"v_fma_f32 v{t}, v{w}, v{w}, s{sDl}", f"v_mul_f32 v{t}, v{t}, v{w}",
                    f"v_exp_f32 v{t}, v{t}", f"v_add_f32 v{t}, 1.0, v{t}", f"v_rcp_f32 v{t}, v{t}", f"v_mul_f32 v{w}, v{t}, v{w}"][k]
        for i in range(32 + 7):
            for k in (6, 3, 0, 4, 1, 5, 2):
                e = i - k
                if 0 <= e < 32: out.append(st(k, e))
            e = i - 7
            if 0 <= e < 32 and e % 2 == 1:
                p = e - 1; out.append(f"v_cvt_pk_bf16_f32 v{E+(p//8)*8+(p%8)//2}, v{E+p}, v{E+p+1}")
        return out
    def stats(E):
        out = []
        for m in range(4):
            for i in range(4):
                b = E + 8*m
                out.append(f"v_dot2_f32_bf16 v{vSum}, v{b+i}, s{sOnes}, v{vSum}")
                out.append(f"v_dot2_f32_bf16 v{vSum+1}, v{b+i}, v{b+i}, v{vSum+1}")
        return out
    def body(kind, par):
        E = AC[1 - par]
        a.label(f"{N}_{kind}{par}")
        head = reads(0, 0) + reads(0, 1) + reads(1, 0) + reads(1, 1) + [f"s_add_u32 s{sV}, s{sU}, 1"]
        slots = []
        for kk in range(0, 36):
            s0 = ["s_waitcnt lgkmcnt(4)" if kk < 35 else "s_waitcnt lgkmcnt(0)", mfma(par, kk, 0)]
            s1 = [mfma(par, kk, 1)]
            if kk + 2 == 18:
                s0 += [f"v_add_u32 v{vA0}, {18*2048}, v{vA0}", f"v_add_u32 v{vA1}, {18*2048}, v{vA1}"]
            if kk + 2 <= 35:
                s0 += reads(kk+2, 0); s1 += reads(kk+2, 1)
            if kind != "F" and kk >= 36 - CFG.ka_stpos and kk < 40 - CFG.ka_stpos:
                s0 += stores(E, kk - (36 - CFG.ka_stpos))
            if kk == 34: s1 += traddr(1 - par)
            slots += [s0, s1]
        if kind == "F":
            ne = 2 * NPRE - 2
            out = head + spread(slots[:ne], sum([center_plain(kk) for kk in range(NPRE, 36)], []))
            out += interleave(slots[ne:-4], cparams()) + sum(slots[-4:], [])
        else:
            ep = epi(kind, E)
            nh = CFG.ka_head if kind != "P" else 16
            head = head + cparams()[:4] + ep[:nh]
            ne = len(slots) - 2*CFG.ka_stpos + 4 if kind != "P" else 20
            out = head + spread(slots[:ne], cparams()[4:] + ep[nh:]) + sum(slots[ne:], [])
        for l in out:
            if CFG.prof > 1 and l in (mfma(par, 30, 0), mfma(par, 2, 0)): pf.stamp()
            a(l)
        if kind == "G":
            for l in stats(E): a(l)
            a(f"ds_write_b64 v{vStO}, {vr(vSum,2)}")
        a(f"s_mov_b32 s{sDp}, s{sDc}")
        a(f"s_mov_b32 s{sDc}, s{sDn}")
        a(f"s_add_u32 s{sU}, s{sU}, 1")
        if kind in "HP":
            a(f"s_cmp_eq_u32 s{sU}, s{sN}")
            a(f"s_cbranch_scc1 {N}_tail{par}")
        pf.stamp()
        if kind == "G": a("s_waitcnt lgkmcnt(0)")
        a("s_barrier")
        pf.stamp()
        q = 1 - par
        if kind == "F":
            a(f"s_branch {N}_G{q}")
        if kind == "G":
            a(f"s_cmp_le_u32 s{sU}, s{sNz2}")
            a(f"s_cbranch_scc1 {N}_G{q}")
            a(f"s_branch {N}_H{q}")
        if kind == "H":
            a(f"s_cmp_le_u32 s{sU}, s{sNg}")
            a(f"s_cbranch_scc1 {N}_H{q}")
            a(f"s_branch {N}_P{q}")
        if kind == "P":
            a(f"s_branch {N}_P{q}")
    body("F", 0)
    for kind in "GHP":
        for par in (1, 0): body(kind, par)
    for par in range(2):
        a.label(f"{N}_tail{par}")
        pf.stamp()
        a("s_nop 7")
        E = AC[par]
        ep = epi("P", E)
        for l in ep:
            a(l)
            for m in range(4):
                if l.startswith(f"v_cvt_pk_bf16_f32 v{E+8*m+3},"):
                    for x in stores(E, m): a(x)
        if CFG.prof:
            pf.stamp(); a("s_waitcnt vmcnt(0)")
        pf.flush(sWave)
        a("s_endpgm")
    a.label(f"{N}_prod")
    vD, vDin, vDq, vPi, vPq, vWo, vT = 2, 6, 7, 8, 9, 10, 12
    WU, P, MH, ML, C, TT = 128, 32, 64, 68, 72, 88
    sWS, sWP, sCP, sDB = 12, 24, 4, 8
    sPc = sXr + 2
    if CFG.ka_prio: a(f"s_setprio {CFG.ka_prio}")
    a(f"s_cmp_lg_u32 s{sWave}, 4")
    a(f"s_cbranch_scc1 {N}_nopf1")
    code_prefetch(a, 88, vT, vL, N)
    a.label(f"{N}_nopf1")
    if CFG.ka_xpf:
        a(f"""s_sub_u32 s{sT1}, s{sWave}, 4
        s_lshl_b32 s{sT1}, s{sT1}, 5
        s_lshl_b32 s{sT0}, s{sRb}, 7
        s_add_u32 s{sT0}, s{sT0}, s{sT1}
        s_mul_i32 s{sT0}, s{sT0}, 1152
        v_lshrrev_b32 v{vT}, 2, v{vL}
        v_mul_u32_u24 v{vT}, 1152, v{vT}
        v_and_b32 v{vT+1}, 3, v{vL}
        v_lshl_add_u32 v{vT}, v{vT+1}, 7, v{vT}
        s_add_u32 s{sT1}, s{sT0}, {16*1152}
        s_waitcnt lgkmcnt(0)""")
        a.srd(sX, 4, 5, 2048 * 1152)
        a(f"buffer_load_dword v{vT+1}, v{vT}, s[{sX}:{sX+3}], s{sT0} offen offset:640")
        a(f"buffer_load_dword v{vT+2}, v{vT}, s[{sX}:{sX+3}], s{sT1} offen offset:640")
    a(unit_lists)
    a(f"""s_sub_u32 s{sPw}, s{sWave}, 4
    s_and_b32 s{sPc}, s{sPw}, 1
    s_mov_b32 s{sP8i}, {8*9216}
    s_mov_b32 s{sP8q}, {8*3456}
    v_lshrrev_b32 v{T+2}, 2, v{vL}
    v_and_b32 v{T+2}, 4, v{T+2}
    v_xor_b32 v{T+2}, v{T+2}, v{T+1}
    v_lshlrev_b32 v{T+2}, 4, v{T+2}
    v_mul_u32_u24 v{vDin}, 9216, v{T}
    v_add_u32 v{vDin}, v{vDin}, v{T+2}
    v_mul_u32_u24 v{vDq}, 3456, v{T}
    v_add_u32 v{vDq}, v{vDq}, v{T+2}
    v_lshlrev_b32 v{vWo}, 12, v{T}
    v_lshl_add_u32 v{vWo}, v{T+1}, 4, v{vWo}
    s_and_b32 s{sT0}, s{sRb}, {(1<<RBL)-1}
    s_mul_i32 s{sT0}, s{sT0}, {576>>RBL}
    s_mul_i32 s{sT1}, s{sPw}, {144>>RBL}
    s_add_u32 s{sT0}, s{sT0}, s{sT1}
    v_min_u32 v{T+2}, {(144>>RBL)-1}, v{vL}
    v_add_u32 v{T+2}, s{sT0}, v{T+2}
    v_mul_u32_u24 v{vPi}, 9216, v{T+2}
    v_mul_u32_u24 v{vPq}, 3456, v{T+2}""")
    a("s_waitcnt lgkmcnt(0)")
    a.srd(sWI, 8, 9, 576 * 9216)
    a.srd(sWQ, 6, 7, 576 * 3456)
    a(f"s_mov_b32 s{sDM+3}, 0x00020000")
    a.srd(sWS, 10, 11, 2048 * 4096)
    a.srd_off(sWP, 98, 99, CFG.ws_base + WP_OFF, WP_SZ)
    a.srd_off(sST, 98, 99, CFG.ws_base + ST_OFF, ST_SZ)
    a.srd_off(sCP, 98, 99, CFG.ws_base + CP_OFF, CP_SZ)
    a.srd(sDB, 96, 97, 256)
    def pparams():
        a(f"""s_add_u32 s{sT0}, s{sZ2s}, s{sV}
        s_add_u32 s{sT1}, s{sZ1m}, s{sV}
        s_add_u32 s{sT2}, s{sQm}, s{sV}
        s_cmp_lt_u32 s{sV}, s{sNz2}
        s_cselect_b32 s{sUn}, s{sT0}, s{sT1}
        s_cmp_lt_u32 s{sV}, s{sNg}
        s_cselect_b32 s{sUn}, s{sUn}, s{sT2}
        s_cselect_b64 s[{sMq}:{sMq+1}], 0, -1
        s_cselect_b64 s[{sDM}:{sDM+1}], s[{sWI}:{sWI+1}], s[{sWQ}:{sWQ+1}]
        s_cselect_b32 s{sDM+2}, s{sWI+2}, s{sWQ+2}
        s_cselect_b32 s{sP8}, s{sP8i}, s{sP8q}
        s_lshl_b32 s{sUn}, s{sUn}, 7
        s_cmp_lt_u32 s{sV}, s{sN}
        s_cselect_b32 s{sUn}, s{sUn}, 0x7f000000""")
    def issue():
        pparams()
        a(f"""v_cndmask_b32 v{vD}, v{vDin}, v{vDq}, s[{sMq}:{sMq+1}]
        s_sub_u32 s{sDvs}, s{sP8}, 1024
        s_lshl_b32 s{sDstep}, s{sP8}, 1
        s_mul_i32 s{sDma}, s{sDstep}, s{sPw}
        s_add_u32 s{sUn}, s{sDma}, s{sUn}
        s_lshl_b32 s{sDstep}, s{sDstep}, 2
        s_mul_i32 s{sDma}, s{sDstep}, s{sRot}
        s_add_u32 s{sDma}, s{sDma}, s{sUn}
        s_mov_b32 s{sRw}, s{sRot}
        v_add_u32 v{vD+1}, s{sDvs}, v{vD}
        s_lshl_b32 s{sT0}, s{sPw}, 11
        s_add_u32 m0, s{sBufN}, s{sT0}
        s_sub_u32 s{sBufN}, {UB}, s{sBufN}
        s_add_u32 s{sV}, s{sV}, 1""")
        for i in range(9):
            for j in range(2):
                if CFG.ka_nodma: continue
                a(f"buffer_load_dwordx4 v{vD+j}, s[{sDM}:{sDM+3}], s{sDma} offen offset:{1024*j} lds")
            if i < 8:
                a(f"s_add_u32 m0, m0, 8192")
                a(f"s_add_u32 s{sDma}, s{sDma}, s{sDstep}")
                a(f"s_add_u32 s{sRw}, s{sRw}, 1")
                a(f"s_cmp_eq_u32 s{sRw}, 9")
                a(f"s_cselect_b32 s{sDma}, s{sUn}, s{sDma}")
    a(f"s_mov_b32 s{sV}, 0")
    a(f"s_mov_b32 s{sBufN}, 0")
    if CFG.ka_xbar >= 0: a("s_barrier")
    issue()
    def l2pf():
        pparams()
        a(f"v_cndmask_b32 v{vT}, v{vPi}, v{vPq}, s[{sMq}:{sMq+1}]")
        a(f"buffer_load_dword v14, v{vT}, s[{sDM}:{sDM+3}], s{sUn} offen")
    npf = 1 if CFG.ka_l2pf else 0
    if npf: l2pf()
    a(f"""s_lshl_b32 s{sXr}, s{sCg}, 19
    s_lshl_b32 s{sT0}, s{sRb}, 8
    s_add_u32 s{sXr}, s{sXr}, s{sT0}
    s_lshl_b32 s{sT0}, s{sPc}, 7
    s_add_u32 s{sXr}, s{sXr}, s{sT0}
    s_lshr_b32 s{sT0}, s{sPw}, 1
    s_lshl_b32 s{sT0}, s{sT0}, 18
    s_add_u32 s{sXr}, s{sXr}, s{sT0}
    s_mov_b32 s{sXr+1}, s{sXr}""")
    a(f"s_waitcnt vmcnt({npf})")
    pf.stamp()
    a("s_barrier")
    a.label(f"{N}_ploop")
    nopub = a.newlabel(N + "_nopub")
    a(f"s_sub_u32 s{sT0}, s{sV}, 2")
    a(f"s_cmp_lg_u32 s{sT0}, s{sNz2}")
    a(f"s_cbranch_scc1 {nopub}")
    a(f"s_cmp_lg_u32 s{sPw}, 0")
    a(f"s_cbranch_scc1 {nopub}")
    a(f"""v_lshrrev_b32 v{vT}, 4, v{vL}
    v_and_b32 v{vT+1}, 15, v{vL}
    v_lshlrev_b32 v{vT}, 12, v{vT}
    v_lshl_add_u32 v{vT}, v{vT+1}, 4, v{vT}
    v_add_u32 v{vT}, {STG}, v{vT}
    ds_read_b128 {vr(P,4)}, v{vT}
    ds_read_b128 {vr(P+4,4)}, v{vT} offset:256
    v_lshlrev_b32 v{vT+1}, 4, v{vL}
    s_lshl_b32 s{sT0}, s{sRb}, 4
    s_add_u32 s{sT0}, s{sT0}, s{sCg}
    s_lshl_b32 s{sT0}, s{sT0}, 10
    s_waitcnt lgkmcnt(0)""")
    for i in range(4): a(f"v_add_f32 v{P+i}, v{P+i}, v{P+4+i}")
    a(f"buffer_store_dwordx4 {vr(P,4)}, v{vT+1}, s[{sST}:{sST+3}], s{sT0} offen sc1")
    a(f"""s_lshl_b32 s{sT0}, s{sRb}, 4
    v_mov_b32 v{vT}, s{sT0}
    v_mov_b32 v{vT+1}, 1
    s_waitcnt vmcnt(0)
    s_mov_b64 exec, 1
    buffer_atomic_add v{vT+1}, v{vT}, s[{sDB}:{sDB+3}], 0 offen sc1
    s_mov_b64 exec, -1""")
    a.label(nopub)
    issue()
    if npf: l2pf()
    l1 = a.newlabel(N + "_l"); l2 = a.newlabel(N + "_l"); l3 = a.newlabel(N + "_l")
    a(f"s_cmp_lg_u32 s{sV}, {CFG.ka_wsp_slot+2}")
    a(f"s_cbranch_scc1 {l1}")
    for i in range(8):
        a(f"buffer_load_dwordx4 {vr(WU+8*i+4,4)}, v{vWo}, s[{sWS}:{sWS+3}], s{sXr+1} offen {CFG.ka_wsp_aux}")
        a(f"s_add_u32 s{sXr+1}, s{sXr+1}, 32768")
    a(f"s_waitcnt vmcnt({8+npf})")
    a(f"s_branch {l3}")
    a.label(l1)
    a(f"s_cmp_lg_u32 s{sV}, 6")
    a(f"s_cbranch_scc1 {l2}")
    a(f"s_waitcnt vmcnt({18+npf})")
    for i in range(8):
        for r in range(4):
            x = WU + 8*i + 4 + r
            a(f"v_lshlrev_b32 v{WU+8*i+2*r}, 16, v{x}")
            a(f"v_and_b32 v{WU+8*i+2*r+1}, 0xffff0000, v{x}")
    def poll(lbl_done, single):
        a(f"""buffer_load_dword v{vT+1}, v{vT}, s[{sDB}:{sDB+3}], 0 offen sc1
        s_waitcnt vmcnt(0)
        v_readfirstlane_b32 s{sT2}, v{vT+1}""")
    def stat_loads():
        a(f"""v_lshlrev_b32 v{vT}, 3, v{vL}
        s_lshl_b32 s{sT0}, s{sRb}, 14
        s_lshl_b32 s{sT1}, s{sPc}, 9
        s_add_u32 s{sT0}, s{sT0}, s{sT1}""")
        for i in range(16):
            a(f"buffer_load_dwordx2 {vr(P+2*i,2)}, v{vT}, s[{sST}:{sST+3}], s{sT0} offen offset:{(i%4)*1024} sc1")
            if i % 4 == 3: a(f"s_add_u32 s{sT0}, s{sT0}, 4096")
    a(f"s_mov_b32 s{sOb}, 0")
    a.label(l2)
    a(f"s_waitcnt vmcnt({npf})")
    a.label(l3)
    a("s_barrier")
    a(f"s_cmp_lt_u32 s{sV}, 6")
    a(f"s_cbranch_scc1 {N}_ploop")
    pf.stamp()
    a(f"s_cmp_lt_u32 s{sN}, 7")
    a(f"s_cbranch_scc1 {N}_noi6")
    issue()
    a(f"""s_lshl_b32 s{sT0}, s{sRb}, 4
    v_mov_b32 v{vT}, s{sT0}""")
    poll(None, True)
    a(f"s_cmp_ge_u32 s{sT2}, 16")
    a(f"s_cselect_b32 s{sOb}, 1, 0")
    a(f"s_cbranch_scc0 {N}_b6")
    stat_loads()
    a.label(f"{N}_b6")
    a("s_barrier")
    a.label(f"{N}_noi6")
    a(f"s_cmp_eq_u32 s{sOb}, 1")
    a(f"s_cbranch_scc1 {N}_have")
    a(f"""s_lshl_b32 s{sT0}, s{sRb}, 4
    v_mov_b32 v{vT}, s{sT0}
    s_mov_b32 s{sT1}, 200000""")
    a.label(f"{N}_poll")
    poll(None, False)
    a(f"""s_sub_u32 s{sT1}, s{sT1}, 1
    s_cmp_eq_u32 s{sT1}, 0
    s_cbranch_scc1 {N}_polled
    s_cmp_ge_u32 s{sT2}, 16
    s_cbranch_scc1 {N}_polled
    s_sleep 4
    s_branch {N}_poll""")
    a.label(f"{N}_polled")
    stat_loads()
    a.label(f"{N}_have")
    pf.stamp()
    a(f"s_waitcnt vmcnt(0)")
    a(f"v_lshlrev_b32 v{vT}, 3, v{vL}")
    a(f"""s_lshl_b32 s{sT1}, s{sPw}, 9
    s_add_u32 s{sT1}, s{sT1}, {STG+4096+2048}
    v_add_u32 v{vT}, s{sT1}, v{vT}
    v_lshlrev_b32 v{vT+1}, 6, v{T+1}
    v_add_u32 v{vT+1}, s{sT1}, v{vT+1}
    s_mov_b32 s{sT0}, {f32(1.0/2304)}
    s_mov_b32 s{sT2}, {f32(1.0/abs(KSC))}""")
    for i in range(1, 16):
        a(f"v_add_f32 v{P}, v{P}, v{P+2*i}")
        a(f"v_add_f32 v{P+1}, v{P+1}, v{P+2*i+1}")
    a(f"""v_mul_f32 v{P}, s{sT0}, v{P}
    v_mul_f32 v{P+1}, s{sT0}, v{P+1}
    v_fma_f32 v{P+1}, -v{P}, v{P}, v{P+1}
    v_max_f32 v{P+1}, 0, v{P+1}
    v_add_f32 v{P+1}, {f32(EPS*KSC*KSC)}, v{P+1}
    v_rsq_f32 v{P+1}, v{P+1}
    v_mul_f32 v{P+1}, s{sT2}, v{P+1}
    ds_write_b64 v{vT}, {vr(P,2)}""")
    for q in range(4):
        a(f"ds_read_b128 {vr(P+4*q,4)}, v{vT+1} offset:{16*q}")
    a("s_waitcnt lgkmcnt(0)")
    pf.stamp()
    for i in range(8):
        for r in range(8): a(f"v_mul_f32 v{WU+8*i+r}, v{P+2*r+1}, v{WU+8*i+r}")
        for r in range(4): a(f"v_cvt_pk_bf16_f32 v{WU+8*i+r}, v{WU+8*i+2*r}, v{WU+8*i+2*r+1}")
        a(f"buffer_store_dwordx4 {vr(WU+8*i,4)}, v{vWo}, s[{sWP}:{sWP+3}], s{sXr} offen {CFG.st_aux_n}")
        a(f"s_add_u32 s{sXr}, s{sXr}, 32768")
    pf.stamp()
    for p in range(4): a(f"v_cvt_pk_bf16_f32 v{MH+p}, v{P+4*p}, v{P+4*p+2}")
    for p in range(4):
        a(f"v_lshlrev_b32 v{TT}, 16, v{MH+p}")
        a(f"v_and_b32 v{TT+1}, 0xffff0000, v{MH+p}")
        a(f"v_sub_f32 v{TT}, v{P+4*p}, v{TT}")
        a(f"v_sub_f32 v{TT+1}, v{P+4*p+2}, v{TT+1}")
        a(f"v_cvt_pk_bf16_f32 v{ML+p}, v{TT}, v{TT+1}")
    for i in range(0, 8, 2):
        for r in range(4):
            for q in range(2):
                a(f"v_dot2_f32_bf16 v{C+i+q}, v{WU+8*(i+q)+r}, v{MH+r}, {'0' if r==0 else 'v%d'%(C+i+q)}")
            for q in range(2):
                a(f"v_dot2_f32_bf16 v{C+i+q}, v{WU+8*(i+q)+r}, v{ML+r}, v{C+i+q}")
    for ctrl in ["quad_perm:[1,0,3,2]", "quad_perm:[2,3,0,1]", "row_half_mirror"]:
        for q in range(8):
            a(f"v_add_f32_dpp v{C+q}, v{C+q}, v{C+q} {ctrl} row_mask:0xf bank_mask:0xf")
    for i in range(1, 8):
        a(f"v_cmp_eq_u32 vcc, {i}, v{T+1}")
        a(f"v_cndmask_b32 v{C}, v{C}, v{C+i}, vcc")
    a(f"""v_lshlrev_b32 v{vT}, 7, v{T}
    v_lshl_add_u32 v{vT}, v{T+1}, 10, v{vT}
    s_lshl_b32 s{sT0}, s{sCg}, 14
    s_lshl_b32 s{sT1}, s{sRb}, 3
    s_add_u32 s{sT0}, s{sT0}, s{sT1}
    s_lshl_b32 s{sT1}, s{sPc}, 2
    s_add_u32 s{sT0}, s{sT0}, s{sT1}
    s_lshr_b32 s{sT1}, s{sPw}, 1
    s_lshl_b32 s{sT1}, s{sT1}, 13
    s_add_u32 s{sT0}, s{sT0}, s{sT1}
    buffer_store_dword v{C}, v{vT}, s[{sCP}:{sCP+3}], s{sT0} offen {CFG.st_aux_n}""")
    a(f"s_cmp_lg_u32 s{sPw}, 0")
    a(f"s_cbranch_scc1 {N}_nopf2")
    code_prefetch(a, 88, vT, vL, N)
    a.label(f"{N}_nopf2")
    if CFG.prof:
        pf.stamp(); a("s_waitcnt vmcnt(0)")
    pf.flush(sWave)
    a.label(f"{N}_end")
    a("s_endpgm")
    return a, kd(N, 256, 256, 102), (N, 256, 512, 163840)

class Attn:
    def __init__(self, a, sZQ, sUO, sT, sWave, ldsb, aux):
        self.a, self.sZQ, self.sUO, self.sT, self.sWave, self.ldsb, self.aux = a, sZQ, sUO, sT, sWave, ldsb, aux
        self.KV, self.Q, self.LG, self.PH, self.O, self.TM = 88, 184, 196, 204, 212, 230
        self.vQo, self.vRd, self.vDo = 14, 15, 236
    def loads(self):
        a, sT, sZQ, TM, vL = self.a, self.sT, self.sZQ, self.TM, 1
        a(f"""v_lshlrev_b32 v{self.vQo}, 4, v{vL}
        s_and_b32 s{sT}, s2, 7
        s_mul_i32 s{sT}, s{sT}, 9
        s_mul_i32 s{sT+1}, s{self.sWave}, 9
        s_lshr_b32 s{sT+1}, s{sT+1}, 2
        s_add_u32 s{sT}, s{sT}, s{sT+1}
        s_lshl_b32 s{sT}, s{sT}, 15
        s_lshr_b32 s{sT+1}, s2, 3
        s_lshl_b32 s{sT+1}, s{sT+1}, 10
        s_add_u32 s{sT}, s{sT}, s{sT+1}
        s_add_u32 s{sT+2}, s{sT}, {(576+72)*OCT-256}
        s_add_u32 s{sT+3}, s{sT}, {(576+144)*OCT-256}
        s_add_u32 s{sT+4}, s{sT}, {576*OCT}
        s_lshl_b32 s{sT+5}, s{self.sWave}, 13
        s_add_u32 s{sT+5}, s{sT+5}, {self.ldsb}""")
        for n in range(4):
            a(f"v_add_u32 v{TM}, {64*n}, v{vL}")
            a(f"v_mul_u32_u24 v{TM+1}, 3277, v{TM}")
            a(f"v_lshrrev_b32 v{TM+1}, 18, v{TM+1}")
            a(f"v_mul_u32_u24 v{TM+2}, 80, v{TM+1}")
            a(f"v_sub_u32 v{TM}, v{TM}, v{TM+2}")
            a(f"v_lshlrev_b32 v{TM}, 4, v{TM}")
            a(f"v_lshl_add_u32 v{self.vDo+n}, v{TM+1}, 15, v{TM}")
            if n: a(f"v_subrev_u32 v{self.vDo+n}, {1024*n}, v{self.vDo+n}")
    def issue(self):
        a, sT, sZQ = self.a, self.sT, self.sZQ
        a(f"s_mov_b32 m0, s{sT+5}")
        for n in range(4):
            a(f"buffer_load_dwordx4 v{self.vDo+n}, s[{sZQ}:{sZQ+3}], s{sT+2} offen offset:{1024*n} lds")
        for j in range(3):
            a(f"buffer_load_dwordx4 {vr(self.Q+4*j,4)}, v{self.vQo}, s[{sZQ}:{sZQ+3}], s{sT+4} offen")
            a(f"s_add_u32 s{sT+4}, s{sT+4}, {OCT}")
        a(f"s_add_u32 m0, s{sT+5}, 4096")
        for n in range(4):
            a(f"buffer_load_dwordx4 v{self.vDo+n}, s[{sZQ}:{sZQ+3}], s{sT+3} offen offset:{1024*n} lds")
        a(f"s_add_u32 s{sT+5}, s{sT+5}, 32")
        a(f"v_add_u32 v{self.vRd}, s{sT+5}, v{self.vQo}")
    def compute(self, do):
        a, sT, KV, Q, LG, PH, O, TM, vL = self.a, self.sT, self.KV, self.Q, self.LG, self.PH, self.O, self.TM, 1
        def rd(base):
            for w in range(8):
                for j in range(3):
                    a(f"ds_read_b128 {vr(KV+12*w+4*j,4)}, v{self.vRd} offset:{base+j*1280+224-32*w}")
        a("s_waitcnt vmcnt(4)")
        rd(0)
        a(f"s_lshr_b32 s{sT+4}, s2, 3")
        a(f"s_lshl_b32 s{sT+4}, s{sT+4}, 6")
        a(f"v_add_u32 v{TM}, s{sT+4}, v{vL}")
        a(f"v_mov_b32 v{TM+1}, 0xff800000")
        sc = (18 ** -0.5) * math.log2(math.e) / (KSC * KSC)
        a(f"s_mov_b32 s{sT+4}, {f32(sc)}")
        a(f"s_mov_b32 s{sT+5}, {f32(KSC)}")
        for w0 in range(0, 8, 2):
            a(f"s_waitcnt lgkmcnt({min(15, 24-3*(w0+2))})")
            for i in range(9):
                for w in (w0, w0+1):
                    c = "0" if i == 0 else f"v{LG+w}"
                    a(f"v_dot2_f32_bf16 v{LG+w}, v{Q+do+i}, v{KV+12*w+do+i}, {c}")
        a("s_waitcnt vmcnt(0)")
        rd(4096)
        for w in range(1, 8):
            a(f"v_cmp_le_u32 vcc, {2*w}, v{TM}")
            a(f"v_cndmask_b32 v{LG+w}, v{TM+1}, v{LG+w}, vcc")
        g = LG; m = TM + 2; s = TM + 3
        a(f"v_max3_f32 v{m}, v{g}, v{g+1}, v{g+2}")
        a(f"v_max3_f32 v{m}, v{m}, v{g+3}, v{g+4}")
        a(f"v_max3_f32 v{m}, v{m}, v{g+5}, v{g+6}")
        a(f"v_max_f32 v{m}, v{m}, v{g+7}")
        for w in range(8): a(f"v_sub_f32 v{g+w}, v{g+w}, v{m}")
        for w in range(8): a(f"v_mul_f32 v{g+w}, s{sT+4}, v{g+w}")
        for w in range(8): a(f"v_exp_f32 v{g+w}, v{g+w}")
        for w in range(8): a(f"v_cvt_pk_bf16_f32 v{g+w}, v{g+w}, 0")
        for w in range(8): a(f"v_lshlrev_b32 v{PH+w}, 16, v{g+w}")
        a(f"v_add_f32 v{s}, v{PH}, v{PH+1}")
        for w in range(2, 8): a(f"v_add_f32 v{s}, v{s}, v{PH+w}")
        a(f"v_mul_f32 v{s}, s{sT+5}, v{s}")
        a(f"v_rcp_f32 v{s}, v{s}")
        for w in range(8):
            if w % 2 == 0: a(f"s_waitcnt lgkmcnt({min(15, 24-3*(w+2))})")
            for d in range(9):
                c0 = "0" if w == 0 else f"v{O+2*d}"
                c1 = "0" if w == 0 else f"v{O+2*d+1}"
                a(f"v_dot2_f32_bf16 v{O+2*d}, v{KV+12*w+do+d}, v{LG+w}, {c0}")
                a(f"v_dot2_f32_bf16 v{O+2*d+1}, v{KV+12*w+do+d}, v{PH+w}, {c1}")
        for d in range(18): a(f"v_mul_f32 v{O+d}, v{s}, v{O+d}")
        for d in range(9): a(f"v_cvt_pk_bf16_f32 v{Q+do+d}, v{O+2*d}, v{O+2*d+1}")
        a(f"s_add_u32 s{sT}, s{sT}, {288*OCT}")
        for j in range(3):
            lo, hi = max(do, 4*j), min(do + 9, 4*j + 4)
            while lo < hi:
                n = 1 if lo % 2 else hi - lo
                sfx = {1: "dword", 2: "dwordx2", 3: "dwordx3", 4: "dwordx4"}[n]
                a(f"buffer_store_{sfx} {vr(Q+lo,n)}, v{self.vQo}, s[{self.sUO}:{self.sUO+3}], s{sT} offen offset:{4*(lo-4*j)} {self.aux}")
                lo += n
            if j < 2: a(f"s_add_u32 s{sT}, s{sT}, {OCT}")

def gen_KB():
    a = Asm(); N = "kb_kernel"
    NS = 4
    ZO = 16384
    def zb(j): return ZO + j*1024 + (j >> 1)*64 + (64 if j == 17 else 0)
    STG = zb(17) + 1024
    sWP, sZQ, sUO, sCP, sBS = 12, 16, 20, 24, 28
    sWave, sTb, sFb, sOdd, sT = 36, 37, 38, 39, 40
    sI, sSlot, sInc, sA, sZm, sZs, sStg = 50, 51, 52, 53, 54, 55, 56
    prologue(a, N, 256)
    pf = Prof(a, 247, 1); pf.init()
    a("s_load_dwordx4 s[4:7], s[0:1], 48")
    a("s_load_dwordx2 s[8:9], s[0:1], 16")
    a("s_load_dwordx2 s[10:11], s[0:1], 80")
    a("v_lshrrev_b32 v1, 6, v0")
    a(f"v_readfirstlane_b32 s{sWave}, v1")
    a(f"""s_and_b32 s{sT}, s2, 7
    s_lshr_b32 s{sT+1}, s2, 3
    s_and_b32 s{sTb}, s{sT}, 1
    s_lshl_b32 s{sTb}, s{sTb}, 3
    s_and_b32 s{sT+2}, s{sT+1}, 7
    s_add_u32 s{sTb}, s{sTb}, s{sT+2}
    s_lshr_b32 s{sFb}, s{sT}, 1
    s_lshl_b32 s{sFb}, s{sFb}, 2
    s_lshr_b32 s{sT+2}, s{sT+1}, 3
    s_add_u32 s{sFb}, s{sFb}, s{sT+2}
    s_and_b32 s{sOdd}, s{sFb}, 1
    s_mul_i32 s{sZm}, s{sFb}, 18
    s_lshl_b32 s{sT}, s{sOdd}, 1
    s_add_u32 s{sZs}, s{sZm}, 16
    s_lshl_b32 s{sT+1}, s{sOdd}, 4
    s_sub_u32 s{sZs}, s{sZs}, s{sT+1}
    s_add_u32 s{sZm}, s{sZm}, s{sT}
    s_lshl_b32 s{sZm}, s{sZm}, 15
    s_lshl_b32 s{sZs}, s{sZs}, 15
    v_and_b32 v1, 63, v0""")
    a(f"s_cmp_ge_u32 s{sWave}, 4")
    a(f"s_cbranch_scc1 {N}_prod")
    at = Attn(a, sZQ, sUO, 70, sWave, 3 * STG, CFG.st_aux_b)
    at.loads()
    a("s_waitcnt lgkmcnt(0)")
    a.srd_off(sZQ, 10, 11, CFG.ws_base + ZQ_OFF, ZQ_SZ)
    at.issue()
    if CFG.kb_abar: a("s_barrier")
    a.srd_off(sUO, 10, 11, CFG.ws_base + UO_OFF, UO_SZ)
    a.srd_off(sCP, 10, 11, CFG.ws_base + CP_OFF, CP_SZ)
    a.srd(sBS, 4, 5, 4096)
    ACC, FA, FB, Z1, T = 16, 88, 160, 176, 212
    vL, vZ0, vZ1, vZs, vB0, vB1, vE, vEs = 1, 2, 3, 4, 5, 6, 7, 8
    vBC, vCo, vBo = 10, 12, 13
    a(f"""v_lshrrev_b32 v{T}, 4, v{vL}
    v_and_b32 v{T+1}, 15, v{vL}
    v_bfe_u32 v{T+2}, v{vL}, 2, 2
    v_and_b32 v{T+3}, 3, v{vL}
    v_lshl_add_u32 v{T+4}, v{T}, 3, v{T+2}
    v_lshlrev_b32 v{T+4}, 4, v{T+4}
    v_lshrrev_b32 v{T+5}, 1, v{T+3}
    v_and_b32 v{T+6}, 1, v{T+3}
    v_lshl_add_u32 v{vZ0}, v{T+3}, 10, v{T+4}
    v_lshl_add_u32 v{vZ0}, v{T+5}, 6, v{vZ0}
    v_lshl_add_u32 v{vZ0}, v{T+6}, 3, v{vZ0}
    v_xor_b32 v{vZ1}, 8, v{vZ0}
    v_mul_u32_u24 v{vZs}, 1088, v{T+5}
    v_add_u32 v{vZs}, v{vZs}, v{T+4}
    v_xor_b32 v{T+6}, v{T+6}, v{T+5}
    v_lshl_add_u32 v{vZs}, v{T+6}, 3, v{vZs}
    s_lshl_b32 s{sT}, s{sWave}, 5
    v_add_u32 v{T+7}, s{sT}, v{T+1}
    v_and_b32 v{T+8}, 7, v{vL}
    v_xor_b32 v{T+8}, v{T+8}, v{T}
    v_lshlrev_b32 v{T+8}, 4, v{T+8}
    v_lshl_add_u32 v{vB0}, v{T+7}, 7, v{T+8}
    v_xor_b32 v{vB1}, 64, v{vB0}
    s_lshl_b32 s{sT+1}, s{sTb}, 7
    v_add_u32 v{T+7}, s{sT+1}, v{T+7}
    v_lshlrev_b32 v{vE}, 4, v{T+7}
    v_lshrrev_b32 v{T+8}, 1, v{T}
    v_lshl_add_u32 v{vEs}, v{T+8}, 15, v{vE}
    v_and_b32 v{T+8}, 1, v{T}
    v_lshl_add_u32 v{vEs}, v{T+8}, 3, v{vEs}
    v_lshl_add_u32 v{vE}, v{T}, 15, v{vE}
    v_lshlrev_b32 v{vCo}, 7, v{T+7}
    v_lshl_add_u32 v{vCo}, v{T}, 5, v{vCo}
    v_lshlrev_b32 v{vBo}, 1, v{T+7}""")
    CPR = 228
    def eloads():
        o = []
        for tt in range(2):
            for q in range(2):
                o.append(f"buffer_load_dwordx4 {vr(T+8*tt+4*q,4)}, v{vCo}, s[{sCP}:{sCP+3}], 0 offen offset:{2048*tt+16*q}")
            o.append(f"buffer_load_ushort v{CPR+8+tt}, v{vBo}, s[{sBS}:{sBS+3}], 0 offen offset:{32*tt}")
        o.append(f"s_mov_b32 s{sT}, s{sZm}")
        for i in range(4):
            for tt in range(2):
                o.append(f"buffer_load_dwordx4 {vr(Z1+8*i+4*tt,4)}, v{vE}, s[{sZQ}:{sZQ+3}], s{sT} offen offset:{256*tt}")
            o.append(f"s_add_u32 s{sT}, s{sT}, {4*OCT}")
        for tt in range(2):
            o.append(f"buffer_load_dwordx2 {vr(Z1+32+2*tt,2)}, v{vEs}, s[{sZQ}:{sZQ+3}], s{sZs} offen offset:{256*tt}")
        return o
    for i in range(72): a(f"v_mov_b32 v{ACC+i}, 0")
    AD = {vB0: 240, vB1: 241, vZ0: 242, vZ1: 243, vZs: 244}
    for r in (vZ0, vZ1, vZs): a(f"v_add_u32 v{r}, {ZO}, v{r}")
    for r, r2 in AD.items(): a(f"v_add_u32 v{r2}, {2*STG}, v{r}")
    def reads(slot, h, st):
        R = (lambda r: AD[r]) if slot >= 2 else (lambda r: r)
        so = (slot & 1) * STG
        out = [f"ds_read_b128 {vr(FB+8*st+4*tt,4)}, v{R(vB1 if h else vB0)} offset:{so+2048*tt}" for tt in range(2)]
        for j in range(9):
            for rd in range(2):
                if j < 8:
                    out.append(f"ds_read_b64_tr_b16 {vr(FA+36*st+4*j+2*rd,2)}, v{R(vZ1 if j&1 else vZ0)} offset:{so+zb(4*(j>>1))-ZO+512*h+64*rd}")
                else:
                    out.append(f"ds_read_b64_tr_b16 {vr(FA+36*st+4*j+2*rd,2)}, v{R(vZs)} offset:{so+zb(16)-ZO+512*h+64*rd}")
        return out
    def phase(st, rds):
        out = []; k = 0; lastw = None
        for j in range(9):
            for tt in range(2):
                if tt == 0:
                    if j % 2 == 0:
                        jj = min(j + 1, 8)
                        out.append(f"s_waitcnt lgkmcnt({min(15, 19-(3+2*jj)+k)})")
                if not CFG.kb_nomfma: out.append(f"v_mfma_f32_16x16x32_bf16 {vr(ACC+8*j+4*tt,4)}, {vr(FA+36*st+4*j,4)}, {vr(FB+8*st+4*tt,4)}, {vr(ACC+8*j+4*tt,4)}")
                n = 2 if (j == 1) else 1
                for _ in range(n):
                    if k < len(rds): out.append(rds[k]); k += 1
        return out
    el = eloads()
    groups = [el[:7], el[7:13], el[13:19], el[19:]]
    a(f"s_mov_b32 s{sI}, 8")
    pf.stamp()
    for w in range(4):
        if w < 3:
            a(f"s_cmp_lg_u32 s{sWave}, {w}")
            a(f"s_cbranch_scc1 {N}_at{w+1}")
        at.compute(w)
        if w < 3:
            a(f"s_branch {N}_atd")
            a.label(f"{N}_at{w+1}")
    a.label(f"{N}_atd")
    pf.stamp()
    a("s_barrier")
    pf.stamp()
    for l in reads(0, 0, 0): a(l)
    a.lines.append(".p2align 6")
    a.label(f"{N}_loop")
    for slot in range(4):
        for l in phase(0, reads(slot, 1, 1)): a(l)
        if slot == 3:
            a(f"s_sub_u32 s{sI}, s{sI}, 1")
        a("s_barrier")
        if CFG.prof > 1: pf.stamp()
        ph = phase(1, reads((slot + 1) % 4, 0, 0))
        sk = a.newlabel(N + "_sk")
        for i, l in enumerate(ph):
            a(l)
            if i == 4:
                a(f"s_cmp_lg_u32 s{sI}, {CFG.kb_eit - (1 if slot == 3 else 0)}")
                a(f"s_cbranch_scc1 {sk}")
                for x in groups[slot]: a(x)
                a.label(sk)
    a(f"s_cmp_lg_u32 s{sI}, 0")
    a(f"s_cbranch_scc1 {N}_loop")
    pf.stamp()
    a("s_waitcnt vmcnt(0)")
    a(f"s_mov_b32 s{sT}, {f32(1.0/KSC)}")
    for tt in range(2):
        c = CPR + 4*tt
        p = T + 8*tt
        a(f"v_add_f32 v{c}, v{p}, v{p+1}")
        for q in range(2, 8): a(f"v_add_f32 v{c}, v{c}, v{p+q}")
        a(f"v_mov_b32 v{c+1}, v{c}")
        a(f"v_permlane16_swap_b32 v{c}, v{c+1}")
        a(f"v_add_f32 v{c}, v{c}, v{c+1}")
        a(f"v_mov_b32 v{c+1}, v{c}")
        a(f"v_permlane32_swap_b32 v{c}, v{c+1}")
        a(f"v_add_f32 v{c}, v{c}, v{c+1}")
        a(f"v_lshlrev_b32 v{c+2}, 16, v{CPR+8+tt}")
        a(f"v_fma_f32 v{vBC+tt}, v{c+2}, s{sT}, -v{c}")
    a(f"s_mov_b32 s{sT}, s{sZm}")
    for i in range(5):
        for tt in range(2):
            n = 4 if i < 4 else 2
            z = Z1 + 8*i + n*tt
            for r in range(n):
                j = 2*i + (r >> 1)
                ac = ACC + 8*j + 4*tt + 2*(r & 1)
                t = T + 4*(r % 2)
                a(f"v_add_f32 v{ac}, v{vBC+tt}, v{ac}")
                a(f"v_add_f32 v{ac+1}, v{vBC+tt}, v{ac+1}")
                a(f"v_lshlrev_b32 v{t}, 16, v{z+r}")
                a(f"v_and_b32 v{t+1}, 0xffff0000, v{z+r}")
                a(f"v_mul_f32 v{t}, v{t}, v{ac}")
                a(f"v_mul_f32 v{t+1}, v{t+1}, v{ac+1}")
                a(f"v_cvt_pk_bf16_f32 v{z+r}, v{t}, v{t+1}")
            if i < 4:
                a(f"buffer_store_dwordx4 {vr(z,4)}, v{vE}, s[{sUO}:{sUO+3}], s{sT} offen offset:{256*tt} {CFG.st_aux_b}")
            else:
                a(f"buffer_store_dwordx2 {vr(z,2)}, v{vEs}, s[{sUO}:{sUO+3}], s{sZs} offen offset:{256*tt} {CFG.st_aux_b}")
        a(f"s_add_u32 s{sT}, s{sT}, {4*OCT}")
    if CFG.prof:
        pf.stamp(); a("s_waitcnt vmcnt(0)")
    pf.flush(sWave)
    a("s_endpgm")
    a.label(f"{N}_prod")
    a("s_waitcnt lgkmcnt(0)")
    a.srd_off(sWP, 10, 11, CFG.ws_base + WP_OFF, WP_SZ)
    a.srd_off(sZQ, 10, 11, CFG.ws_base + ZQ_OFF, ZQ_SZ)
    vA, vZ = 2, 3
    a(f"""v_lshrrev_b32 v4, 3, v1
    v_and_b32 v5, 7, v1
    v_xor_b32 v5, v5, v4
    v_lshlrev_b32 v5, 4, v5
    v_lshl_add_u32 v{vA}, v4, 12, v5
    v_lshlrev_b32 v{vZ}, 4, v1
    s_lshl_b32 s{sA}, s{sTb}, 19
    s_add_u32 s{sZm}, s{sZm}, {288*OCT}
    s_add_u32 s{sZs}, s{sZs}, {288*OCT}
    s_mov_b32 s{sSlot}, 0""")
    if CFG.kb_abar: a("s_barrier")
    items = [("A", i) for i in range(16)] + [("Z", j) for j in range(18)]
    def issue(p):
        out = []
        for kind, i in items[17*p:17*p+17]:
            if CFG.kb_nodma: continue
            if kind == "A":
                out.append(f"s_add_u32 m0, s{sSlot}, {i*1024}")
                out.append(f"s_add_u32 s{sT}, s{sA}, {i*8*4096}")
                out.append(f"buffer_load_dwordx4 v{vA}, s[{sWP}:{sWP+3}], s{sT} offen lds")
            else:
                out.append(f"s_add_u32 m0, s{sSlot}, {zb(i)}")
                out.append(f"s_add_u32 s{sT}, s{sZm if i < 16 else sZs}, {(i if i < 16 else i-16)*OCT}")
                out.append(f"buffer_load_dwordx4 v{vZ}, s[{sZQ}:{sZQ+3}], s{sT} offen lds")
        out += [f"s_add_u32 s{sA}, s{sA}, 128", f"s_add_u32 s{sZm}, s{sZm}, 1024", f"s_add_u32 s{sZs}, s{sZs}, 1024",
                f"s_add_u32 s{sSlot}, s{sSlot}, {STG}", f"s_cmp_eq_u32 s{sSlot}, {NS*STG}", f"s_cselect_b32 s{sSlot}, 0, s{sSlot}"]
        return out
    for p in range(2):
        if p == 0:
            a(f"s_cmp_eq_u32 s{sWave}, 5")
            a(f"s_cbranch_scc1 {N}_prod1")
        else:
            a.label(f"{N}_prod1")
        for st in range(3):
            for l in issue(p): a(l)
        a("s_waitcnt vmcnt(34)")
        a("s_barrier")
        a(f"s_mov_b32 s{sI}, 29")
        a.label(f"{N}_ploop{p}")
        a("s_waitcnt vmcnt(17)")
        a("s_barrier")
        for l in issue(p): a(l)
        a(f"s_sub_u32 s{sI}, s{sI}, 1")
        a(f"s_cmp_lg_u32 s{sI}, 0")
        a(f"s_cbranch_scc1 {N}_ploop{p}")
        a("s_waitcnt vmcnt(17)")
        a("s_barrier")
        a("s_waitcnt vmcnt(0)")
        a("s_barrier")
        if CFG.kb_pf:
            a.srd(60, 6, 7, 2304 * 1152)
            a(f"s_mul_i32 s{sT+1}, s2, {81*128}")
            if p == 0:
                a(f"v_lshlrev_b32 v4, 7, v1")
                a(f"buffer_load_dword v5, v4, s[60:63], s{sT+1} offen")
            else:
                a.srd(64, 8, 9, 576 * 1152)
                a(f"s_add_u32 s{sT+1}, s{sT+1}, 8192")
                a(f"s_mul_i32 s{sT+2}, s2, {21*128}")
                a(f"v_min_u32 v4, 20, v1")
                a(f"v_lshlrev_b32 v4, 7, v4")
                a(f"buffer_load_dword v5, v4, s[60:63], s{sT+1} offen")
                a(f"buffer_load_dword v6, v4, s[64:67], s{sT+2} offen")
        if p == 0: code_prefetch(a, 68, 6, 1, N)
        a("s_endpgm")
    a.label(f"{N}_end")
    a("s_endpgm")
    return a, kd(N, 248, 248), (N, 256, 384, NS * STG)

def gen_KC():
    a = Asm(); N = "kc_kernel"
    NS = 9
    sUO, sWO, sWA, sX, sOUT, sDM = 12, 16, 20, 24, 28, 32
    sWave, sRb, sCg, sT = 36, 37, 38, 40
    sI, sU, sW = 50, 51, 52
    prologue(a, N, 234)
    pf = Prof(a, 247, 2); pf.init()
    a("s_load_dwordx2 s[4:5], s[0:1], 0")
    a("s_load_dwordx2 s[6:7], s[0:1], 16")
    a("s_load_dwordx4 s[8:11], s[0:1], 56")
    a("s_load_dwordx2 s[60:61], s[0:1], 80")
    a("v_lshrrev_b32 v1, 6, v0")
    a(f"v_readfirstlane_b32 s{sWave}, v1")
    a(f"""s_and_b32 s{sT}, s2, 7
    s_lshr_b32 s{sT+1}, s2, 3
    s_mul_i32 s{sT+2}, s{sT}, 29
    s_min_u32 s{sT}, s{sT}, 2
    s_add_u32 s{sT+2}, s{sT+2}, s{sT}
    s_add_u32 s{sT+2}, s{sT+2}, s{sT+1}
    s_mul_i32 s{sRb}, s{sT+2}, 7282
    s_lshr_b32 s{sRb}, s{sRb}, 16
    s_mul_i32 s{sT}, s{sRb}, 9
    s_sub_u32 s{sCg}, s{sT+2}, s{sT}
    v_and_b32 v1, 63, v0""")
    a("s_waitcnt lgkmcnt(0)")
    a.srd_off(sUO, 60, 61, CFG.ws_base + UO_OFF, UO_SZ)
    a.srd(sWO, 8, 9, 2304 * 1152)
    a.srd(sWA, 6, 7, 576 * 1152)
    a.srd(sX, 4, 5, 2048 * 1152)
    a.srd(sOUT, 10, 11, 2048 * 1152)
    a(f"s_cmp_ge_u32 s{sWave}, 5")
    a(f"s_cbranch_scc1 {N}_prod")
    a(f"s_mul_i32 s{sT}, s{sRb}, 5")
    a(f"s_add_u32 s{sT}, s{sT}, s{sWave}")
    a(f"s_cmp_ge_u32 s{sT}, 128")
    a(f"s_cbranch_scc1 {N}_end")
    ACC, SV, FA, UF, XR, T = 16, 32, 48, 144, 216, 224
    vL, vU, vA, vXo, vA8 = 1, 2, 4, 3, 8
    a(f"""v_lshrrev_b32 v{T}, 4, v{vL}
    v_and_b32 v{T+1}, 15, v{vL}
    s_lshl_b32 s{sT}, s{sT}, 4
    v_add_u32 v{T+2}, s{sT}, v{T+1}
    v_lshlrev_b32 v{vU}, 4, v{T+2}
    v_lshl_add_u32 v{vU}, v{T}, 15, v{vU}
    s_mov_b32 s{sU}, 0""")
    def uload(slot):
        return [f"buffer_load_dwordx4 {vr(UF+4*slot,4)}, v{vU}, s[{sUO}:{sUO+3}], s{sU} offen",
                f"s_add_u32 s{sU}, s{sU}, {4*OCT}"]
    for s_ in range(16):
        for l in uload(s_): a(l)
    a(f"""v_mul_u32_u24 v{vXo}, 1152, v{T+2}
    v_and_b32 v{T+3}, 1, v{T}
    v_lshl_add_u32 v{vXo}, v{T+3}, 5, v{vXo}
    v_lshrrev_b32 v{T+3}, 1, v{T}
    v_lshl_add_u32 v{vXo}, v{T+3}, 4, v{vXo}
    s_lshl_b32 s{sT+1}, s{sCg}, 7
    v_bfe_u32 v{T+3}, v{vL}, 2, 2
    v_lshl_add_u32 v{T+4}, v{T}, 3, v{T+3}
    v_lshlrev_b32 v{T+4}, 7, v{T+4}
    v_and_b32 v{T+5}, 3, v{vL}
    v_lshl_add_u32 v{T+4}, v{T+5}, 3, v{T+4}
    v_lshrrev_b32 v{T+3}, 1, v{T+3}
    v_and_b32 v{T+5}, 1, v{T}
    v_lshl_add_u32 v{T+3}, v{T+5}, 1, v{T+3}
    v_lshl_add_u32 v{vA}, v{T+3}, 5, v{T+4}
    v_xor_b32 v{vA+1}, 32, v{vA}
    v_xor_b32 v{vA+2}, 64, v{vA}
    v_xor_b32 v{vA+3}, 96, v{vA}""")
    for j in range(4): a(f"v_add_u32 v{vA8+j}, {8*8192}, v{vA+j}")
    for i in range(16): a(f"v_mov_b32 v{ACC+i}, 0")
    def reads(st):
        st %= 9
        return [f"ds_read_b64_tr_b16 {vr(FA+32*(st%3)+16*h+4*j+2*rd,2)}, v{(vA8 if st == 8 else vA)+j} offset:{(st%8)*8192+4096*h+512*rd}"
                for h in range(2) for j in range(4) for rd in range(2)]
    a(f"s_mov_b32 s{sI}, 5")
    pf.stamp()
    a("s_barrier")
    for l in reads(0): a(l)
    a("s_waitcnt lgkmcnt(0)")
    a.lines.append(".p2align 6")
    a.label(f"{N}_loop")
    for st in range(9):
        a("s_barrier")
        rd = reads(st + 1)
        k = 0
        for h in range(2):
            ks = 2*st + h
            a(f"s_waitcnt vmcnt({15})")
            for j in range(4):
                a(f"v_mfma_f32_16x16x32_bf16 {vr(ACC+4*j,4)}, {vr(FA+32*(st%3)+16*h+4*j,4)}, {vr(UF+4*ks,4)}, {vr(ACC+4*j,4)}")
                for _ in range(3):
                    if k < 16: a(rd[k]); k += 1
            for l in uload((ks + 16) % 18): a(l)
        a("s_waitcnt lgkmcnt(0)")
    pf.stamp()
    a(f"s_sub_u32 s{sI}, s{sI}, 1")
    a(f"s_cmp_eq_u32 s{sI}, 0")
    a(f"s_cbranch_scc1 {N}_epi")
    a(f"s_cmp_lg_u32 s{sI}, 1")
    a(f"s_cbranch_scc1 {N}_loop")
    for p in range(2):
        a(f"buffer_load_dwordx4 {vr(XR+4*p,4)}, v{vXo}, s[{sX}:{sX+3}], s{sT+1} offen offset:{64*p}")
    a("s_nop 5")
    for i in range(16):
        a(f"v_mov_b32 v{SV+i}, v{ACC+i}")
    for i in range(16):
        a(f"v_mov_b32 v{ACC+i}, 0")
    a(f"s_branch {N}_loop")
    a.label(f"{N}_epi")
    a(f"s_mov_b32 s{sT}, {f32(-math.log2(math.e))}")
    for i in range(16): a(f"v_mul_f32 v{T+i}, s{sT}, v{SV+i}")
    for i in range(16): a(f"v_exp_f32 v{T+i}, v{T+i}")
    for i in range(16): a(f"v_add_f32 v{T+i}, 1.0, v{T+i}")
    for i in range(16): a(f"v_rcp_f32 v{T+i}, v{T+i}")
    for i in range(16): a(f"v_mul_f32 v{SV+i}, v{SV+i}, v{T+i}")
    for i in range(16): a(f"v_mul_f32 v{SV+i}, v{SV+i}, v{ACC+i}")
    for p in range(2):
        x = XR + 4*p
        a(f"v_permlane16_swap_b32 v{x}, v{x+2}")
        a(f"v_permlane16_swap_b32 v{x+1}, v{x+3}")
        for r in range(4):
            s = SV + 8*p + 2*r
            a(f"v_lshlrev_b32 v{T}, 16, v{x+r}")
            a(f"v_and_b32 v{T+1}, 0xffff0000, v{x+r}")
            a(f"v_add_f32 v{T}, v{T}, v{s}")
            a(f"v_add_f32 v{T+1}, v{T+1}, v{s+1}")
            a(f"v_cvt_pk_bf16_f32 v{x+r}, v{T}, v{T+1}")
        a(f"v_permlane16_swap_b32 v{x}, v{x+2}")
        a(f"v_permlane16_swap_b32 v{x+1}, v{x+3}")
        a(f"buffer_store_dwordx4 {vr(x,4)}, v{vXo}, s[{sOUT}:{sOUT+3}], s{sT+1} offen offset:{64*p}")
    if CFG.prof:
        pf.stamp(); a("s_waitcnt vmcnt(0)")
    pf.flush(sWave)
    a("s_endpgm")
    a.label(f"{N}_prod")
    vD = 2
    a(f"""v_lshrrev_b32 v8, 3, v1
    v_and_b32 v9, 7, v1
    v_lshrrev_b32 v10, 3, v1
    v_and_b32 v10, 2, v10
    v_xor_b32 v9, v9, v10
    v_lshlrev_b32 v9, 4, v9
    v_mul_u32_u24 v{vD}, 1152, v8
    v_add_u32 v{vD}, v{vD}, v9
    v_xor_b32 v{vD+1}, 64, v{vD}
    v_add_u32 v{vD+1}, {8*1152-1024}, v{vD+1}
    v_add_u32 v{vD+2}, {2*(8*1152-1024)}, v{vD}
    v_add_u32 v{vD+3}, {2*(8*1152-1024)}, v{vD+1}
    s_sub_u32 s{sT}, s{sWave}, 5
    s_mul_i32 s{sW}, s{sT}, {32*1152}
    s_lshl_b32 s{sT+1}, s{sCg}, 7
    s_add_u32 s{sW}, s{sW}, s{sT+1}
    s_mov_b32 s{sT+3}, s{sW}
    s_lshl_b32 s{sT+2}, s{sT}, 12
    s_mov_b32 s{sDM}, s{sWO}
    s_mov_b32 s{sDM+1}, s{sWO+1}
    s_mov_b32 s{sDM+2}, s{sWO+2}
    s_mov_b32 s{sDM+3}, 0x00020000
    s_mov_b32 s{sU}, 0""")
    a(f"s_mov_b32 s{sT+4}, s{sT+2}")
    def issue():
        out = [f"s_mov_b32 m0, s{sT+4}",
               f"s_add_u32 s{sT+4}, s{sT+4}, 8192"]
        out += [f"buffer_load_dwordx4 v{vD+j}, s[{sDM}:{sDM+3}], s{sW} offen offset:{1024*j} lds" for j in range(4)]
        out += [f"s_add_u32 s{sW}, s{sW}, {64*1152}",
                f"s_cmp_ge_u32 s{sT+4}, {NS*8192}",
                f"s_cselect_b32 s{sT+4}, s{sT+2}, s{sT+4}",
                f"s_add_u32 s{sU}, s{sU}, 1",
                f"s_cmp_eq_u32 s{sU}, 36",
                f"s_cselect_b64 s[{sDM}:{sDM+1}], s[{sWA}:{sWA+1}], s[{sDM}:{sDM+1}]",
                f"s_cselect_b32 s{sDM+2}, s{sWA+2}, s{sDM+2}",
                f"s_cselect_b32 s{sW}, s{sT+3}, s{sW}"]
        return out
    for st in range(9):
        for l in issue(): a(l)
    a("s_waitcnt vmcnt(32)")
    a("s_barrier")
    a(f"s_mov_b32 s{sI}, 36")
    a.label(f"{N}_ploop")
    a("s_waitcnt vmcnt(28)")
    a("s_barrier")
    for l in issue(): a(l)
    a(f"s_sub_u32 s{sI}, s{sI}, 1")
    a(f"s_cmp_lg_u32 s{sI}, 0")
    a(f"s_cbranch_scc1 {N}_ploop")
    for n in range(8):
        a(f"s_waitcnt vmcnt({28-4*n})")
        a("s_barrier")
    a.label(f"{N}_end")
    a("s_endpgm")
    return a, kd(N, 248, 248), (N, 234, 448, NS * 8192)

HEADER = open("cdna_kernels/" + NAME + ".s.ref").read().split("; Override")[0]

def build(kernels, verbose=False):
    txt = HEADER
    body = ""
    kds = ""
    for g in kernels:
        a, k, (n, grid, block, lds) = g()
        txt += f"; @launch kernel={n} grid=({grid},1,1) block=({block},1,1) lds={lds}\n"
        lines, ins = fix_hazards(a.lines, verbose, n)
        an = 0
        if CFG.align:
            lines, an = align8(lines)
            lines, ins2 = fix_hazards(lines, verbose, n)
            if ins2:
                lines, an2 = align8(lines, move=False); an += an2; ins += ins2
                assert fix_hazards(lines, False, n)[1] == 0
        print(f"{n}: {len(lines)} lines, {ins} hazard nops, {an} align nops", file=sys.stderr)
        body += "\n".join(("    " + l if not (l.endswith(":") or l.startswith(".")) else l) for l in lines) + "\n"
        kds += k
    txt += '.amdgcn_target "amdgcn-amd-amdhsa--gfx950"\n.text\n.p2align 8\ncode_begin:\n' + body + "code_end:\n" + kds
    return txt

if __name__ == "__main__":
    for arg in sys.argv[2:]:
        if "=" in arg:
            k_, v_ = arg.split("=", 1)
            setattr(CFG, k_, type(getattr(CFG, k_))(v_) if not isinstance(getattr(CFG, k_), bool) else int(v_))
    out = sys.argv[1] if len(sys.argv) > 1 else "cdna_kernels/" + NAME + ".s"
    open(out, "w").write(build([gen_KA, gen_KB, gen_KC], verbose="-v" in sys.argv))
```

```python
import re

class Asm:
    def __init__(self):
        self.lines = []
        self.uid = 0
    def __call__(self, s):
        for l in s.split("\n"):
            l = l.strip()
            if l:
                self.lines.append(l)
    def label(self, name):
        self.lines.append(name + ":")
    def newlabel(self, base="L"):
        self.uid += 1
        return f"{base}_{self.uid}"
    def c(self, s):
        self.lines.append("; " + s)
    def srd(self, d, base_lo, base_hi, nbytes):
        self(f"s_mov_b32 s{d}, s{base_lo}")
        self(f"s_mov_b32 s{d+1}, s{base_hi}")
        self(f"s_mov_b32 s{d+2}, {nbytes}")
        self(f"s_mov_b32 s{d+3}, 0x00020000")
    def srd_off(self, d, base_lo, base_hi, off, nbytes):
        self(f"s_add_u32 s{d}, s{base_lo}, {off}")
        self(f"s_addc_u32 s{d+1}, s{base_hi}, 0")
        self(f"s_mov_b32 s{d+2}, {nbytes}")
        self(f"s_mov_b32 s{d+3}, 0x00020000")

def vr(b, n=1):
    return f"v{b}" if n == 1 else f"v[{b}:{b+n-1}]"
def ar(b, n=1):
    return f"a{b}" if n == 1 else f"a[{b}:{b+n-1}]"
def sr(b, n=1):
    return f"s{b}" if n == 1 else f"s[{b}:{b+n-1}]"

_REG = re.compile(r"^-?\|?(?:neg\(|abs\()?([vas])(?:(\d+)|\[(\d+):(\d+)\])\)?\|?$")
def regs_of(tok):
    tok = tok.strip()
    if tok == "vcc": return [("s", 106), ("s", 107)]
    if tok == "exec": return [("s", 126), ("s", 127)]
    if tok == "m0": return [("s", 124)]
    m = _REG.match(tok)
    if not m: return []
    f = m.group(1)
    if m.group(2) is not None:
        return [(f, int(m.group(2)))]
    return [(f, i) for i in range(int(m.group(3)), int(m.group(4)) + 1)]

TRANS = ("v_exp_f32", "v_log_f32", "v_rcp_f32", "v_rsq_f32", "v_sqrt_f32", "v_sin_f32", "v_cos_f32", "v_rcp_iflag_f32")

def split_ops(rest):
    ops, depth, cur = [], 0, ""
    for ch in rest + ",":
        if ch in "[(": depth += 1
        elif ch in "])": depth -= 1
        if ch == "," and depth == 0:
            ops.append(cur.strip()); cur = ""
        else:
            cur += ch
    return ops

class Ins:
    __slots__ = ("text", "mn", "kind", "dst", "src", "mods", "passes", "srcC", "srcAB", "states")

def parse(line):
    t = line.split(";")[0].strip()
    if not t or t.endswith(":") or t.startswith("."):
        return None
    parts = t.split(None, 1)
    mn = parts[0]
    rest = parts[1] if len(parts) > 1 else ""
    ops = split_ops(rest) if rest else []
    mods = ""
    if ops:
        last = ops[-1].split(None, 1)
        if len(last) > 1 and not last[0].endswith(":"):
            ops[-1] = last[0]; mods = last[1]
    I = Ins(); I.text = t; I.mn = mn; I.mods = mods; I.passes = 0; I.srcC = []; I.srcAB = []; I.states = 1
    R = [regs_of(o) for o in ops]
    if mn == "s_nop":
        I.kind = "nop"; I.dst = []; I.src = []; I.states = int(ops[0], 0) + 1
    elif mn.startswith("v_mfma"):
        I.kind = "mfma"; I.dst = R[0]; I.srcAB = R[1] + R[2]; I.srcC = R[3]; I.src = I.srcAB + I.srcC
        I.passes = 8 if "32x32x16" in mn else 4 if "16x16x32" in mn else 16
    elif mn.startswith("v_"):
        I.kind = "valu"
        base = mn.replace("_e32", "").replace("_e64", "").replace("_dpp", "").replace("_sdwa", "")
        if base.startswith("v_cmp"):
            I.dst = R[0]; I.src = sum(R[1:], [])
        elif base in ("v_permlane16_swap_b32", "v_permlane32_swap_b32", "v_swap_b32"):
            I.dst = R[0] + R[1]; I.src = R[0] + R[1]; I.kind = "perm"
        elif base in ("v_add_co_u32", "v_sub_co_u32", "v_addc_co_u32", "v_subb_co_u32"):
            I.dst = R[0] + R[1]; I.src = sum(R[2:], [])
        else:
            I.dst = R[0]; I.src = sum(R[1:], [])
            if base in ("v_fmac_f32", "v_dot2c_f32_bf16", "v_pk_fmac_f16"): I.src = I.src + R[0]
            if base == "v_cndmask_b32" and len(ops) == 3: I.src = I.src + regs_of("vcc")
        if base in TRANS: I.kind = "trans"
        if base.startswith("v_dot"): I.kind = "dot"
        if base in ("v_readfirstlane_b32", "v_readlane_b32"): I.kind = "rdlane"
        if "dpp" in mn or "row_" in mods or "quad_perm" in mods or "wave_" in mods: I.kind = "dpp"
    elif mn.startswith("ds_"):
        I.kind = "ds"
        if "read" in mn or "permute" in mn or "swizzle" in mn:
            I.dst = R[0]; I.src = sum(R[1:], [])
        else:
            I.dst = []; I.src = sum(R, [])
    elif mn.startswith("buffer_") or mn.startswith("global_"):
        I.kind = "vmem"
        lds = " lds" in (" " + mods) or "_lds_" in mn
        if "load" in mn and not lds:
            I.dst = R[0]; I.src = sum(R[1:], [])
        elif "load" in mn:
            I.dst = []; I.src = sum(R, []) + [("s", 124)]; I.kind = "dma"
        elif "atomic" in mn and "sc0" in mods:
            I.dst = R[0]; I.src = sum(R, [])
        else:
            I.dst = []; I.src = sum(R, [])
            if "store" in mn and ("x3" in mn or "x4" in mn):
                I.kind = "wstore"
                I.srcC = R[0] if mn.startswith("buffer_") else R[1]
    elif mn.startswith("s_"):
        I.kind = "salu"
        if mn.startswith(("s_cmp", "s_cbranch", "s_branch", "s_waitcnt", "s_barrier", "s_endpgm", "s_sleep", "s_setprio", "s_bitcmp", "s_setpc")):
            I.dst = []; I.src = sum(R, [])
        else:
            I.dst = R[0] if R else []; I.src = sum(R[1:], [])
    else:
        raise ValueError("unknown instr " + t)
    return I

VALU_KINDS = ("valu", "trans", "dot", "rdlane", "dpp", "perm")
XDL_D_VALU = {4: 8, 8: 12, 16: 20}
XDL_C_WAR = {4: 3, 8: 7, 16: 15}
XDL_OVERLAP_C = {4: 6, 8: 10, 16: 18}

def need(prod, cons):
    n = 0
    pd = set(prod.dst); cs = set(cons.src); cd = set(cons.dst)
    pv = prod.kind in VALU_KINDS
    cv = cons.kind in VALU_KINDS
    if pv:
        vd = {r for r in pd if r[0] in "va"}
        sd = {r for r in pd if r[0] == "s"}
        if cons.kind == "mfma" and vd & cs: n = max(n, 2)
        if cons.kind in ("perm", "dpp") and vd & cs: n = max(n, 2)
        if cons.kind == "rdlane" and vd & cs: n = max(n, 1)
        if prod.kind == "trans" and cv and cons.kind != "trans" and vd & cs: n = max(n, 1)
        if prod.kind == "trans" and cons.kind in ("ds", "vmem", "wstore") and vd & cs: n = max(n, 1)
        if prod.kind == "dot" and (vd & (cs | cd)) and cons.kind != "salu":
            if not (cons.kind == "dot" and cons.mn == prod.mn and not (vd & set(cons.src[:-len(cons.dst)] if cons.mn.endswith("c_f32_bf16") else cons.src[:2]))):
                n = max(n, 3)
        if sd:
            if cons.kind in ("vmem", "dma", "wstore") and sd & cs: n = max(n, 5)
            if cv and sd & cs: n = max(n, 2 if cons.kind != "rdlane" else 4)
            if cons.kind == "salu" and sd & cs: n = max(n, 1)
            if ("s", 126) in sd and cons.kind == "mfma": n = max(n, 4)
            if ("s", 126) in sd and cons.kind == "dpp": n = max(n, 5)
        if "sdwa" in prod.mn and cv and vd & cs: n = max(n, 1)
    if prod.kind == "salu" and ("s", 124) in pd and cons.kind == "dma": n = max(n, 1)
    if prod.kind == "wstore" and (cv or cons.kind in ("ds", "vmem", "mfma")) and set(prod.srcC) & cd:
        n = max(n, 2)
    if prod.kind == "mfma":
        p = prod.passes
        if cons.kind == "mfma":
            if pd & set(cons.srcAB): n = max(n, XDL_D_VALU[p])
            if pd & set(cons.srcC):
                if not (set(cons.srcC) == pd and cons.passes == p): n = max(n, XDL_OVERLAP_C[p])
            elif pd & cd: n = max(n, XDL_D_VALU[p])
        elif cons.kind != "salu":
            if pd & (cs | cd): n = max(n, XDL_D_VALU[p])
            if cv and set(prod.srcC) & cd: n = max(n, XDL_C_WAR[p])
    return n

def fix_hazards(lines, verbose=False, name=""):
    out = []
    window = []
    inserted = 0
    labels = {}
    parsed = []
    for l in lines:
        I = parse(l)
        parsed.append(I)
    def required(window, I, skip=0):
        dist = 0; req = 0
        for k, P in enumerate(reversed(window)):
            nn = need(P, I) if k >= skip else 0
            if nn > dist: req = max(req, nn - dist)
            dist += P.states
            if dist > 24: break
        return req
    for idx, l in enumerate(lines):
        I = parsed[idx]
        if I is None:
            if l.endswith(":"):
                labels[l[:-1]] = idx
            out.append(l); continue
        req = required(window, I)
        if req > 0:
            nop = parse(f"s_nop {req-1}")
            out.append(f"s_nop {req-1}    ; hazard")
            window.append(nop); inserted += 1
            if verbose: print(f"[{name}] nop {req} before: {l}")
        out.append(l)
        window.append(I)
        if len(window) > 40: window = window[-40:]
        if I.mn.startswith(("s_cbranch", "s_branch")):
            tgt = I.text.split()[-1]
            if tgt in labels: start = labels[tgt]
            else:
                start = None
                for j in range(idx + 1, len(lines)):
                    if lines[j] == tgt + ":": start = j; break
            if start is not None:
                w2 = list(window); cnt = 0
                for j in range(start, len(lines)):
                    J = parsed[j]
                    if J is None: continue
                    r = required(w2, J, len(w2) - len(window))
                    if r > 0:
                        raise ValueError(f"[{name}] hazard across branch {I.text} -> {J.text}: need {r} more")
                    w2.append(J); cnt += J.states
                    if cnt > 24 or J.mn in ("s_branch", "s_endpgm", "s_setpc_b64"): break
            if I.mn == "s_branch":
                window = []
        if I.mn in ("s_endpgm", "s_setpc_b64"):
            window = []
    return out, inserted

def interleave(slots, fillers, per=None, start=0):
    out = []
    n = len(slots) - start
    k = 0
    for i, s in enumerate(slots):
        out += s
        if i >= start and n > 0:
            tgt = (len(fillers) * (i - start + 1) + n - 1) // n if per is None else min(len(fillers), (i - start + 1) * per)
            while k < tgt:
                out.append(fillers[k]); k += 1
    out += fillers[k:]
    return out

import subprocess, tempfile, os
FLEX = ("v_mul_f32", "v_add_f32", "v_sub_f32", "v_exp_f32", "v_rcp_f32", "v_rsq_f32", "v_mov_b32", "v_and_b32", "v_or_b32",
        "v_xor_b32", "v_lshlrev_b32", "v_lshrrev_b32", "v_add_u32", "v_sub_u32", "v_subrev_u32", "v_max_f32", "v_min_u32",
        "v_mul_u32_u24", "v_cndmask_b32")
def sizes_of(lines):
    txt = '.amdgcn_target "amdgcn-amd-amdhsa--gfx950"\n.text\ncode_begin:\n'
    idx = []
    for i, l in enumerate(lines):
        if parse(l) is not None:
            txt += f"__m{i}:\n"; idx.append(i)
        if l.startswith(".p2align") or l.startswith(".text") or l.startswith(".globl") or l.startswith(".type"): continue
        txt += l + "\n"
    txt += "__mend:\ncode_end:\n"
    with tempfile.TemporaryDirectory() as d:
        open(d + "/a.s", "w").write(txt)
        r = subprocess.run(["clang", "-x", "assembler", "-target", "amdgcn-amd-amdhsa", "-mcpu=gfx950", "-c", d + "/a.s", "-o", d + "/a.o"], capture_output=True, text=True)
        if r.returncode: raise SystemExit(r.stderr[:3000])
        o = subprocess.run(["llvm-readelf", "-s", d + "/a.o"], capture_output=True, text=True).stdout
    addr = {}
    for ln in o.split("\n"):
        p = ln.split()
        if len(p) >= 8 and p[7].startswith("__m"): addr[p[7][3:]] = int(p[1], 16)
    sz = [0] * len(lines)
    for n, i in enumerate(idx):
        nxt = addr[str(idx[n + 1])] if n + 1 < len(idx) else addr["end"]
        sz[i] = nxt - addr[str(i)]
    return sz

def align8(lines, move=True):
    lines = list(lines)
    sz = sizes_of(lines)
    def flex(i):
        return sz[i] == 4 and lines[i].split()[0] in FLEX and lines[i].split()[0] != "v_cndmask_b32"
    def plain_valu(i):
        I = parse(lines[i])
        return I is not None and I.kind in ("valu", "trans") and not lines[i].startswith(("v_cmp", "v_readfirst"))
    n = len(lines)
    for i in range(2, n - 1 if move else 0):
        if lines[i].startswith("s_waitcnt lgkmcnt") and sz[i-1] == 8 and sz[i+1] == 8:
            j = i
            while j > i - 4 and sz[j-1] == 8 and plain_valu(j-1): j -= 1
            if j < i and sz[j-1] == 4:
                w = lines.pop(i); lines.insert(j, w)
                z = sz.pop(i); sz.insert(j, z)
    out = []; nops = 0
    i = 0; ph = 0
    while i < n:
        l = lines[i]
        if l.startswith(".p2align"):
            ph = 0; out.append(l); i += 1; continue
        if sz[i] != 4:
            if sz[i] and ph == 4:
                out.append("s_nop 0    ; align"); nops += 1; ph = 0
            out.append(l)
            if sz[i] % 8: ph ^= 4
            i += 1; continue
        j = i; run = []
        while j < n and (sz[j] == 4 or (sz[j] == 0 and not lines[j].startswith(".p2align"))):
            if sz[j] == 4: run.append(j)
            j += 1
        odd = (len(run) + ph // 4) % 2
        widen = None
        if odd:
            for cand in reversed(run):
                pos = run.index(cand)
                if flex(cand) and (pos + ph // 4) % 2 == 0:
                    widen = cand; break
        for k in range(i, j):
            if k == widen:
                mn, rest = lines[k].split(None, 1)
                out.append(mn + "_e64 " + rest)
            else:
                out.append(lines[k])
                if sz[k] == 4: ph ^= 4
        i = j
    return out, nops
```

```python
import math, struct, sys
from asmlib import *

NAME = "recurrent_scan__sliding_local_dilated__mixer_gmlp__prompt"
def f32(x): return "0x%08x" % struct.unpack("<I", struct.pack("<f", x))[0]

C0 = -2.0 * math.sqrt(2.0 / math.pi) * math.log2(math.e)
C1 = C0 * 0.044715
KSC = -((-C1) ** (1.0 / 3.0))
DELTA = C0 / KSC
EPS = 1e-5
OCT = 32768

class Cfg:
    ws_base = 0
    st_aux_a = "sc1"
    st_aux_n = "sc1"
    st_aux_b = "sc1"
    prof = False
    ka_xbar = -1
    ka_prio = 0
    ka_xpf = 0
    ka_head = 24
    ka_xfirst = 5
    ka_rot = 0
    align = 0
    hprof = 0
    ka_rbl = 2
    ka_nostore = 0
    ka_nodma = 0
    ka_wsp_slot = 2
    ka_wsp_aux = "nt"
    ka_npre = 26
    codepf = 1
    ka_l2pf = 1
    attn_seg = 36
    ka_stpos = 5
    kb_nomfma = 0
    kb_pf = 1
    kb_eit = 8
    kb_abar = 1
    kb_nodma = 0
    kb_noattn = 0
CFG = Cfg()

ZQ_OFF, ZQ_SZ = 0, 792 * OCT
UO_OFF, UO_SZ = 26 << 20, 360 * OCT
WP_OFF, WP_SZ = 38 << 20, 2048 * 4096
ST_OFF, ST_SZ = 47 << 20, 16 * 16 * 1024
CP_OFF, CP_SZ = 48 << 20, 2048 * 128

def kd(name, vgpr, accum, sgpr=96):
    return f""".section .rodata,"a"
.p2align 6
.amdhsa_kernel {name}
  .amdhsa_next_free_vgpr {vgpr}
  .amdhsa_next_free_sgpr {sgpr}
  .amdhsa_accum_offset {accum}
  .amdhsa_group_segment_fixed_size 0
  .amdhsa_kernarg_size 88
  .amdhsa_user_sgpr_count 2
  .amdhsa_user_sgpr_kernarg_segment_ptr 1
  .amdhsa_system_sgpr_workgroup_id_x 1
.end_amdhsa_kernel
"""

PROF_OFF = 64 << 20
class Prof:
    def __init__(self, a, vreg, kidx):
        self.a, self.v, self.k = a, vreg, kidx
    def init(self):
        if not CFG.prof: return
        a = self.a
        a(f"v_mov_b32 v{self.v}, 0")
        a("s_mov_b64 s[84:85], 2")
        a("s_memrealtime s[82:83]")
        a("s_waitcnt lgkmcnt(0)")
        a(f"v_writelane_b32 v{self.v}, s82, 0")
        self.stamp()
    def stamp(self):
        if not CFG.prof: return
        a = self.a
        a("s_memtime s[80:81]")
        a("s_waitcnt lgkmcnt(0)")
        a("s_mov_b64 s[92:93], exec")
        a("s_mov_b64 exec, s[84:85]")
        a(f"v_mov_b32 v{self.v}, s80")
        a("s_mov_b64 exec, s[92:93]")
        a("s_lshl_b64 s[84:85], s[84:85], 1")
    def flush(self, sWave):
        if not CFG.prof: return
        a = self.a
        self.stamp()
        a("s_memrealtime s[82:83]")
        a("s_load_dwordx2 s[86:87], s[0:1], 80")
        a("s_waitcnt lgkmcnt(0)")
        a(f"v_writelane_b32 v{self.v}, s82, 63")
        a.srd_off(88, 86, 87, PROF_OFF + self.k * (1 << 20), 1 << 20)
        a("s_lshl_b32 s85, s2, 3")
        a(f"s_add_u32 s85, s85, s{sWave}")
        a("s_lshl_b32 s85, s85, 8")
        a("s_mov_b64 exec, -1")
        a("v_mbcnt_lo_u32_b32 v0, -1, 0")
        a("v_mbcnt_hi_u32_b32 v0, -1, v0")
        a("v_lshlrev_b32 v0, 2, v0")
        a(f"buffer_store_dword v{self.v}, v0, s[88:91], s85 offen")

def code_prefetch(a, sS, vT, vL, name):
    if not CFG.codepf: return
    h = a.newlabel(name + "_pc")
    a(f"s_getpc_b64 s[{sS}:{sS+1}]")
    a.label(h)
    a(f"s_sub_u32 s{sS}, s{sS}, {h}-code_begin")
    a(f"s_subb_u32 s{sS+1}, s{sS+1}, 0")
    a(f"s_mov_b32 s{sS+2}, code_end-code_begin")
    a(f"s_mov_b32 s{sS+3}, 0x00020000")
    a(f"s_lshr_b32 s{sS+4}, s2, 3")
    a(f"s_lshl_b32 s{sS+4}, s{sS+4}, 13")
    a(f"v_lshlrev_b32 v{vT}, 7, v{vL}")
    a(f"buffer_load_dword v{vT+1}, v{vT}, s[{sS}:{sS+3}], s{sS+4} offen")

def prologue(a, name, ngrid):
    a.lines.append(".text")
    a.lines.append(f".globl {name}")
    a.lines.append(".p2align 8")
    a.lines.append(f".type {name},@function")
    a.label(name)
    a(f"s_cmp_ge_u32 s2, {ngrid}")
    a(f"s_cbranch_scc1 {name}_end")
    if CFG.hprof:
        k = {"ka": 0, "kb": 1, "kc": 2}[name[:2]]
        a(f"""s_cmp_lg_u32 s2, 0
        s_cbranch_scc1 {name}_hp
        s_memrealtime s[82:83]
        s_load_dwordx2 s[86:87], s[0:1], 80
        s_waitcnt lgkmcnt(0)""")
        a.srd_off(88, 86, 87, PROF_OFF, 4096)
        a(f"""v_mov_b32 v1, s82
        v_mov_b32 v2, 0
        buffer_store_dword v1, v2, s[88:91], 0 offen offset:{4*k} sc1
        s_waitcnt vmcnt(0)""")
        a.label(f"{name}_hp")

def hprof_end(a, name):
    if not CFG.hprof: return
    a(f"""s_cmp_lg_u32 s2, 0
    s_cbranch_scc1 {name}_hpe
    s_waitcnt vmcnt(0)
    s_memrealtime s[82:83]
    s_load_dwordx4 s[84:87], s[0:1], 72
    s_waitcnt lgkmcnt(0)""")
    a.srd_off(88, 86, 87, PROF_OFF, 4096)
    a.srd(92, 84, 85, 256)
    a(f"""v_mov_b32 v2, 0
    buffer_load_dwordx3 v[4:6], v2, s[88:91], 0 offen sc1
    v_mov_b32 v7, s82
    s_waitcnt vmcnt(0)
    v_sub_u32 v7, v7, v6
    v_sub_u32 v6, v6, v5
    v_sub_u32 v5, v5, v4
    buffer_store_dwordx4 v[4:7], v2, s[92:95], 0 offen""")
    a.label(f"{name}_hpe")

def cost(l):
    c = 0
    for x in l.split("\n"):
        c += 8 if x.startswith(TRANS) else 4
    return c

def spread(slots, fillers, base=None):
    base = [sum(cost(x) + (4 if x.startswith("v_mfma") else 0) for x in sl) for sl in slots]
    tot = sum(base) + sum(cost(f) for f in fillers)
    out = []; k = 0; cum = 0
    for i, sl in enumerate(slots):
        out += sl; cum += base[i]
        tgt = tot * (i + 1) / len(slots)
        while k < len(fillers) and cum + cost(fillers[k]) / 2 <= tgt:
            out.append(fillers[k]); cum += cost(fillers[k]); k += 1
    return out + fillers[k:]

def gen_KA():
    a = Asm(); N = "ka_kernel"
    X, FR, T = 112, 24, 16
    AC = [80, 48]
    W = AC[1]
    vL, vA0, vA1, vPn, vO8, vSt, vStO = 1, 2, 3, 4, 5, 6, 7
    vNm, vSc, vSum = 8, 9, 10
    S = W
    vX0, vX1, vX2, vX3, vSR, vSRs, vXw = W+8, W+9, W+10, W+11, W+12, W+16, W+20
    sX, sWI, sWQ, sZQ, sST, sDM = 12, 16, 20, 24, 28, 32
    sWave, sRb, sCg = 36, 37, 38
    sNz2, sNg, sN, sZ2s, sZ1m, sQm = 39, 40, 41, 42, 43, 44
    sU, sV, sUn, sMz2, sP8, sOb = 45, 46, 47, 48, 49, 50
    sMq = 52
    sDma, sDstep, sDvs = 54, 55, 56
    sDp, sDc, sDn = 57, 58, 59
    sBufN, sPw, sRot, sRw = 61, 62, 60, 51
    sDl, sOlo, sOhi, sOnes = 63, 64, 65, 66
    sXr = 68
    sT0, sT1, sT2, sSt, sP8i, sP8q, sXb, sXs = 72, 73, 74, 76, 77, 78, 75, 79
    UB = 73728; STG = 2 * UB
    RBL = CFG.ka_rbl
    prologue(a, N, 256)
    pf = Prof(a, 15, 0); pf.init()
    a("s_load_dwordx4 s[4:7], s[0:1], 0")
    a("s_load_dwordx4 s[8:11], s[0:1], 32")
    a("s_load_dwordx4 s[96:99], s[0:1], 72")
    a(f"v_and_b32 v{vL}, 63, v0")
    a(f"v_lshrrev_b32 v{T}, 6, v0")
    a(f"v_readfirstlane_b32 s{sWave}, v{T}")
    a(f"""s_and_b32 s{sT0}, s2, 7
    s_lshr_b32 s{sT1}, s2, 3
    s_and_b32 s{sRb}, s{sT0}, {(16>>RBL)-1}
    s_lshl_b32 s{sRb}, s{sRb}, {RBL}
    s_and_b32 s{sT2}, s{sT1}, {(1<<RBL)-1}
    s_add_u32 s{sRb}, s{sRb}, s{sT2}
    s_lshr_b32 s{sCg}, s{sT0}, {4-RBL}
    s_lshl_b32 s{sCg}, s{sCg}, {5-RBL}
    s_lshr_b32 s{sT2}, s{sT1}, {RBL}
    s_add_u32 s{sCg}, s{sCg}, s{sT2}
    s_and_b32 s{sRot}, s{sT1}, {(1<<RBL)-1}
    s_lshl_b32 s{sRot}, s{sRot}, 1
    s_add_u32 s{sRot}, s{sRot}, s{sT2}
    s_mul_i32 s{sRot}, s{sRot}, {CFG.ka_rot}
    s_sub_u32 s{sT2}, s{sRot}, 9
    s_min_u32 s{sRot}, s{sRot}, s{sT2}
    s_sub_u32 s{sT2}, s{sRot}, 9
    s_min_u32 s{sRot}, s{sRot}, s{sT2}
    v_lshrrev_b32 v{T}, 3, v{vL}
    v_and_b32 v{T+1}, 7, v{vL}""")
    unit_lists = f"""s_min_u32 s{sT0}, s{sCg}, 4
    s_lshl_b32 s{sZ2s}, s{sCg}, 1
    s_add_u32 s{sZ2s}, s{sZ2s}, s{sT0}
    s_add_u32 s{sZ2s}, s{sZ2s}, 36
    s_cmp_lt_u32 s{sCg}, 4
    s_cselect_b32 s{sNz2}, 3, 2
    s_max_u32 s{sT0}, s{sCg}, 4
    s_min_u32 s{sT0}, s{sT0}, 8
    s_sub_u32 s{sT0}, s{sT0}, 4
    s_lshl_b32 s{sZ1m}, s{sCg}, 1
    s_add_u32 s{sZ1m}, s{sZ1m}, s{sT0}
    s_sub_u32 s{sZ1m}, s{sZ1m}, s{sNz2}
    s_cmp_lt_u32 s{sCg}, 8
    s_cselect_b32 s{sNg}, 5, 4
    s_max_u32 s{sT0}, s{sCg}, 8
    s_sub_u32 s{sT0}, s{sT0}, 8
    s_max_u32 s{sT1}, s{sCg}, 13
    s_sub_u32 s{sT1}, s{sT1}, 13
    s_add_u32 s{sQm}, s{sCg}, s{sT0}
    s_add_u32 s{sQm}, s{sQm}, s{sT1}
    s_sub_u32 s{sQm}, s{sQm}, s{sNg}
    s_cmp_lt_u32 s{sCg}, 13
    s_cselect_b32 s{sN}, 6, 7"""
    a(f"s_cmp_ge_u32 s{sWave}, 4")
    a(f"s_cbranch_scc1 {N}_prod")
    a(f"""v_lshrrev_b32 v{T+2}, 4, v{vL}
    v_xor_b32 v{T+2}, v{T+2}, v{T+1}
    v_lshlrev_b32 v{T+2}, 4, v{T+2}
    v_mul_u32_u24 v{vX0}, 1152, v{T}
    v_add_u32 v{vX0}, v{vX0}, v{T+2}
    v_xor_b32 v{vX1}, 64, v{vX0}
    s_lshl_b32 s{sT0}, s{sRb}, 7
    s_lshl_b32 s{sT1}, s{sWave}, 5
    s_add_u32 s{sT0}, s{sT0}, s{sT1}
    s_mul_i32 s{sXr}, s{sT0}, 1152
    s_add_u32 s{sXr+1}, s{sXr}, 8192
    s_add_u32 s{sXr+2}, s{sXr}, 16384
    s_add_u32 s{sXr+3}, s{sXr}, 24576
    s_lshl_b32 s{sXb}, s{sWave}, 14
    s_add_u32 s{sXb}, s{sXb}, {UB}
    s_lshl_b32 s{sXs}, s{sWave}, 12
    s_add_u32 s{sXs}, s{sXs}, {STG}""")
    a("s_waitcnt lgkmcnt(0)")
    a.srd(sX, 4, 5, 2048 * 1152)
    a(f"s_lshl_b32 s{sRw}, s{sRot}, 7")
    def xload(j):
        a(f"v_add_u32 v{vX2}, s{sRw}, v{vX0}")
        a(f"v_add_u32 v{vX3}, s{sRw}, v{vX1}")
        if j < 4: a(f"s_add_u32 m0, s{sXb}, {j*4096}")
        elif j == 4: a(f"s_mov_b32 m0, s{sXs}")
        a(f"s_add_u32 s{sRw}, s{sRw}, 128")
        for rg in range(4):
            if j < 5:
                a(f"buffer_load_dwordx4 v{vX3 if rg&1 else vX2}, s[{sX}:{sX+3}], s{sXr+rg} offen offset:{rg*1024} lds")
            else:
                a(f"buffer_load_dwordx4 {vr(X+16*j+4*rg,4)}, v{vX3 if rg&1 else vX2}, s[{sX}:{sX+3}], s{sXr+rg} offen offset:{rg*1024}")
        a(f"s_cmp_eq_u32 s{sRw}, 1152")
        a(f"s_cselect_b32 s{sRw}, 0, s{sRw}")
    for j in range(CFG.ka_xfirst): xload(j)
    a.srd_off(sZQ, 98, 99, CFG.ws_base + ZQ_OFF, ZQ_SZ)
    a(unit_lists)
    a(f"""s_mov_b32 s{sDl}, {f32(DELTA)}
    s_mov_b32 s{sOlo}, 0x00003f80
    s_mov_b32 s{sOhi}, 0x3f800000
    s_mov_b32 s{sOnes}, 0x3f803f80""")
    def cparams():
        return [
            f"s_add_u32 s{sT0}, s{sZ2s}, s{sV}",
            f"s_add_u32 s{sT1}, s{sZ1m}, s{sV}",
            f"s_add_u32 s{sT2}, s{sQm}, s{sV}",
            f"s_add_u32 s{sT2}, s{sT2}, 72",
            f"s_cmp_lt_u32 s{sV}, s{sNz2}\n"
            f"s_cselect_b32 s{sUn}, s{sT0}, s{sT1}\n"
            f"s_cselect_b32 s{sMz2}, -1, 0",
            f"s_cmp_lt_u32 s{sV}, s{sNg}\n"
            f"s_cselect_b32 s{sUn}, s{sUn}, s{sT2}",
            f"s_lshl_b32 s{sDn}, s{sUn}, 18",
        ]
    def traddr(buf):
        return [f"v_and_b32 v{T+7}, s{sMz2}, v{vO8}",
                f"v_xor_b32 v{vA0}, v{T+7}, v{vPn}"] + \
               ([f"v_add_u32 v{vA0}, {UB}, v{vA0}"] if buf else []) + [f"v_xor_b32 v{vA1}, 64, v{vA0}"]
    a(f"s_mov_b32 s{sV}, 0")
    for l in cparams(): a(l)
    a(f"""v_lshrrev_b32 v{T+2}, 5, v{vL}
    v_lshlrev_b32 v{T+2}, 3, v{T+2}
    v_bfe_u32 v{T+3}, v{vL}, 2, 2
    v_add_u32 v{T+2}, v{T+2}, v{T+3}
    v_lshlrev_b32 v{vPn}, 7, v{T+2}
    v_lshrrev_b32 v{T+3}, 1, v{T+3}
    v_lshl_add_u32 v{vPn}, v{T+3}, 6, v{vPn}
    v_bfe_u32 v{T+3}, v{vL}, 4, 1
    v_lshl_add_u32 v{vPn}, v{T+3}, 5, v{vPn}
    v_and_b32 v{T+3}, 1, v{vL}
    v_lshl_add_u32 v{vPn}, v{T+3}, 4, v{vPn}
    v_lshlrev_b32 v{vO8}, 3, v{T+3}
    v_bfe_u32 v{T+3}, v{vL}, 1, 1
    v_lshl_add_u32 v{vPn}, v{T+3}, 3, v{vPn}""")
    for l in traddr(0): a(l)
    a(f"""v_and_b32 v{T+2}, 31, v{vL}
    v_bfe_u32 v{T+3}, v{vL}, 1, 3
    v_lshrrev_b32 v{T+4}, 5, v{vL}
    v_xor_b32 v{T+3}, v{T+3}, v{T+4}
    v_lshlrev_b32 v{T+3}, 4, v{T+3}
    v_lshl_add_u32 v{T+3}, v{T+2}, 7, v{T+3}
    v_add_u32 v{vSR}, s{sXb}, v{T+3}
    v_xor_b32 v{vSR+1}, 32, v{vSR}
    v_xor_b32 v{vSR+2}, 64, v{vSR}
    v_xor_b32 v{vSR+3}, 96, v{vSR}
    v_add_u32 v{vSRs}, s{sXs}, v{T+3}
    v_xor_b32 v{vSRs+1}, 32, v{vSRs}
    v_xor_b32 v{vSRs+2}, 64, v{vSRs}
    v_xor_b32 v{vSRs+3}, 96, v{vSRs}
    v_lshlrev_b32 v{vStO}, 3, v{vL}
    v_add_u32 v{vStO}, s{sXs}, v{vStO}
    s_lshl_b32 s{sT0}, s{sRb}, 7
    s_lshl_b32 s{sT1}, s{sWave}, 5
    s_add_u32 s{sT0}, s{sT0}, s{sT1}
    v_add_u32 v{vSt}, s{sT0}, v{T+2}
    v_lshlrev_b32 v{vSt}, 4, v{vSt}
    v_lshl_add_u32 v{vSt}, v{T+4}, 15, v{vSt}
    v_mov_b32 v{vSum}, 0
    v_mov_b32 v{vSum+1}, 0""")
    pf.stamp()
    def xstats(j):
        for r in range(16):
            x = X + 16*j + r
            q = S + 2*(r % 2)
            first = (j == 0 and r < 2)
            a(f"v_dot2_f32_bf16 v{q}, v{x}, s{sOnes}, {'0' if first else 'v%d' % q}")
            a(f"v_dot2_f32_bf16 v{q+1}, v{x}, v{x}, {'0' if first else 'v%d' % (q+1)}")
    a(f"v_lshlrev_b32 v{vXw}, 4, v{vL}")
    a(f"v_add_u32 v{vXw}, s{sXb}, v{vXw}")
    issued = CFG.ka_xfirst
    for j in range(9):
        a(f"s_waitcnt vmcnt({4*(issued-1-j)})")
        if j >= 5:
            for rg in range(4):
                a(f"ds_write_b128 v{vXw}, {vr(X+16*j+4*rg,4)} offset:{(j%5)*4096+rg*1024}")
        for i in range(4):
            if j % 5 < 4: a(f"ds_read_b128 {vr(X+16*j+4*i,4)}, v{vSR+i} offset:{(j%5)*4096}")
            else: a(f"ds_read_b128 {vr(X+16*j+4*i,4)}, v{vSRs+i}")
        if issued < 9:
            xload(issued); issued += 1
        if j > 0:
            a(f"s_waitcnt lgkmcnt({8 if j >= 5 else 4})")
            a.lines.append(".p2align 3")
            xstats(j-1)
    a("s_waitcnt lgkmcnt(0)")
    a.lines.append(".p2align 3")
    xstats(8)
    pf.stamp()
    a(f"""v_add_f32 v{S}, v{S}, v{S+2}
    v_add_f32 v{S+1}, v{S+1}, v{S+3}
    s_mov_b32 s{sT0}, {f32(-1.0/576)}
    s_mov_b32 s{sT1}, {f32(1.0/576)}
    s_mov_b32 s{sT2}, {f32(KSC)}
    v_mov_b32 v{S+2}, v{S}
    v_mov_b32 v{S+3}, v{S+1}
    v_permlane32_swap_b32 v{S}, v{S+2}
    v_permlane32_swap_b32 v{S+1}, v{S+3}
    v_add_f32 v{S}, v{S}, v{S+2}
    v_add_f32 v{S+1}, v{S+1}, v{S+3}
    v_mul_f32 v{vNm}, s{sT0}, v{S}
    v_mul_f32 v{S+1}, s{sT1}, v{S+1}
    v_fma_f32 v{S+1}, -v{vNm}, v{vNm}, v{S+1}
    v_max_f32 v{S+1}, 0, v{S+1}
    v_add_f32 v{S+1}, {f32(EPS)}, v{S+1}
    v_rsq_f32 v{S+1}, v{S+1}
    s_mov_b32 s{sU}, 0
    s_mov_b32 s{sDc}, s{sDn}
    s_mov_b32 s{sDp}, s{sDn}
    v_mul_f32 v{vSc}, s{sT2}, v{S+1}""")
    CT = [W, W+2, W+4, W+6]
    def center(kk):
        o = []
        for r in range(4):
            x = X + 4*kk + r
            o.append(f"v_dot2_f32_bf16 v{CT[r]}, v{x}, s{sOlo}, v{vNm}")
            o.append(f"v_dot2_f32_bf16 v{CT[r]+1}, v{x}, s{sOhi}, v{vNm}")
        for r in range(4):
            o.append(f"v_cvt_pk_bf16_f32 v{X+4*kk+r}, v{CT[r]}, v{CT[r]+1}")
        return o
    def center_plain(kk):
        o = []
        for r in range(4):
            x = X + 4*kk + r
            o += [f"v_lshlrev_b32 v{CT[r]}, 16, v{x}", f"v_and_b32 v{CT[r]+1}, 0xffff0000, v{x}",
                  f"v_add_f32 v{CT[r]}, v{vNm}, v{CT[r]}", f"v_add_f32 v{CT[r]+1}, v{vNm}, v{CT[r]+1}",
                  f"v_cvt_pk_bf16_f32 v{x}, v{CT[r]}, v{CT[r]+1}"]
        return o
    NPRE = CFG.ka_npre
    a.lines.append(".p2align 3")
    for kk in range(NPRE):
        for l in center(kk): a(l)
    pf.stamp()
    a("s_barrier")
    pf.stamp()

    def reads(kk, t):
        st = kk % 3
        off = (kk % 18) * 2048
        return [f"ds_read_b64_tr_b16 {vr(FR+8*st+4*t+2*h,2)}, v{vA1 if t else vA0} offset:{off+512*h}" for h in range(2)]
    def mfma(par, kk, t):
        st = kk % 3; acc = AC[par] + 16*t
        c = "0" if kk == 0 else vr(acc, 16)
        return f"v_mfma_f32_32x32x16_bf16 {vr(acc,16)}, {vr(FR+8*st+4*t,4)}, {vr(X+4*kk,4)}, {c}"
    def stores(E, m):
        if CFG.ka_nostore: return []
        return [f"s_add_u32 s{sSt}, s{sDp}, {2*m*OCT}",
                f"buffer_store_dwordx4 {vr(E+8*m,4)}, v{vSt}, s[{sZQ}:{sZQ+3}], s{sSt} offen {CFG.st_aux_a}"]
    def epi(kind, E):
        out = []
        if kind == "P":
            for e in range(32):
                out.append(f"v_mul_f32 v{E+e}, v{vSc}, v{E+e}")
                if e % 2 == 1 and e >= 3:
                    p = e - 3; out.append(f"v_cvt_pk_bf16_f32 v{E+(p//8)*8+(p%8)//2}, v{E+p}, v{E+p+1}")
            out.append(f"v_cvt_pk_bf16_f32 v{E+27}, v{E+30}, v{E+31}")
            return out
        def st(k, e):
            w = E + e; t = T + e % 6
            return [f"v_mul_f32 v{w}, v{vSc}, v{w}", f"v_fma_f32 v{t}, v{w}, v{w}, s{sDl}", f"v_mul_f32 v{t}, v{t}, v{w}",
                    f"v_exp_f32 v{t}, v{t}", f"v_add_f32 v{t}, 1.0, v{t}", f"v_rcp_f32 v{t}, v{t}", f"v_mul_f32 v{w}, v{t}, v{w}"][k]
        for i in range(32 + 7):
            for k in (6, 3, 0, 4, 1, 5, 2):
                e = i - k
                if 0 <= e < 32: out.append(st(k, e))
            e = i - 7
            if 0 <= e < 32 and e % 2 == 1:
                p = e - 1; out.append(f"v_cvt_pk_bf16_f32 v{E+(p//8)*8+(p%8)//2}, v{E+p}, v{E+p+1}")
        return out
    def stats(E):
        out = []
        for m in range(4):
            for i in range(4):
                b = E + 8*m
                out.append(f"v_dot2_f32_bf16 v{vSum}, v{b+i}, s{sOnes}, v{vSum}")
                out.append(f"v_dot2_f32_bf16 v{vSum+1}, v{b+i}, v{b+i}, v{vSum+1}")
        return out
    def body(kind, par):
        E = AC[1 - par]
        a.label(f"{N}_{kind}{par}")
        head = reads(0, 0) + reads(0, 1) + reads(1, 0) + reads(1, 1) + [f"s_add_u32 s{sV}, s{sU}, 1"]
        slots = []
        for kk in range(0, 36):
            s0 = ["s_waitcnt lgkmcnt(4)" if kk < 35 else "s_waitcnt lgkmcnt(0)", mfma(par, kk, 0)]
            s1 = [mfma(par, kk, 1)]
            if kk + 2 == 18:
                s0 += [f"v_add_u32 v{vA0}, {18*2048}, v{vA0}", f"v_add_u32 v{vA1}, {18*2048}, v{vA1}"]
            if kk + 2 <= 35:
                s0 += reads(kk+2, 0); s1 += reads(kk+2, 1)
            if kind != "F" and kk >= 36 - CFG.ka_stpos and kk < 40 - CFG.ka_stpos:
                s0 += stores(E, kk - (36 - CFG.ka_stpos))
            if kk == 34: s1 += traddr(1 - par)
            slots += [s0, s1]
        if kind == "F":
            ne = 2 * NPRE - 2
            out = head + spread(slots[:ne], sum([center_plain(kk) for kk in range(NPRE, 36)], []))
            out += interleave(slots[ne:-4], cparams()) + sum(slots[-4:], [])
        else:
            ep = epi(kind, E)
            nh = CFG.ka_head if kind != "P" else 16
            head = head + cparams()[:4] + ep[:nh]
            ne = len(slots) - 2*CFG.ka_stpos + 4 if kind != "P" else 20
            out = head + spread(slots[:ne], cparams()[4:] + ep[nh:]) + sum(slots[ne:], [])
        for l in out:
            if CFG.prof > 1 and l in (mfma(par, 30, 0), mfma(par, 2, 0)): pf.stamp()
            a(l)
        if kind == "G":
            for l in stats(E): a(l)
            a(f"ds_write_b64 v{vStO}, {vr(vSum,2)}")
        a(f"s_mov_b32 s{sDp}, s{sDc}")
        a(f"s_mov_b32 s{sDc}, s{sDn}")
        a(f"s_add_u32 s{sU}, s{sU}, 1")
        if kind in "HP":
            a(f"s_cmp_eq_u32 s{sU}, s{sN}")
            a(f"s_cbranch_scc1 {N}_tail{par}")
        pf.stamp()
        if kind == "G": a("s_waitcnt lgkmcnt(0)")
        a("s_barrier")
        pf.stamp()
        q = 1 - par
        if kind == "F":
            a(f"s_branch {N}_G{q}")
        if kind == "G":
            a(f"s_cmp_le_u32 s{sU}, s{sNz2}")
            a(f"s_cbranch_scc1 {N}_G{q}")
            a(f"s_branch {N}_H{q}")
        if kind == "H":
            a(f"s_cmp_le_u32 s{sU}, s{sNg}")
            a(f"s_cbranch_scc1 {N}_H{q}")
            a(f"s_branch {N}_P{q}")
        if kind == "P":
            a(f"s_branch {N}_P{q}")
    body("F", 0)
    for kind in "GHP":
        for par in (1, 0): body(kind, par)
    for par in range(2):
        a.label(f"{N}_tail{par}")
        pf.stamp()
        a("s_nop 7")
        E = AC[par]
        ep = epi("P", E)
        for l in ep:
            a(l)
            for m in range(4):
                if l.startswith(f"v_cvt_pk_bf16_f32 v{E+8*m+3},"):
                    for x in stores(E, m): a(x)
        if CFG.prof:
            pf.stamp(); a("s_waitcnt vmcnt(0)")
        pf.flush(sWave)
        a("s_endpgm")
    a.label(f"{N}_prod")
    vD, vDin, vDq, vPi, vPq, vWo, vT = 2, 6, 7, 8, 9, 10, 12
    WU, P, MH, ML, C, TT = 128, 32, 64, 68, 72, 88
    sWS, sWP, sCP, sDB = 12, 24, 4, 8
    sPc = sXr + 2
    if CFG.ka_prio: a(f"s_setprio {CFG.ka_prio}")
    a(f"s_cmp_lg_u32 s{sWave}, 4")
    a(f"s_cbranch_scc1 {N}_nopf1")
    code_prefetch(a, 88, vT, vL, N)
    a.label(f"{N}_nopf1")
    if CFG.ka_xpf:
        a(f"""s_sub_u32 s{sT1}, s{sWave}, 4
        s_lshl_b32 s{sT1}, s{sT1}, 5
        s_lshl_b32 s{sT0}, s{sRb}, 7
        s_add_u32 s{sT0}, s{sT0}, s{sT1}
        s_mul_i32 s{sT0}, s{sT0}, 1152
        v_lshrrev_b32 v{vT}, 2, v{vL}
        v_mul_u32_u24 v{vT}, 1152, v{vT}
        v_and_b32 v{vT+1}, 3, v{vL}
        v_lshl_add_u32 v{vT}, v{vT+1}, 7, v{vT}
        s_add_u32 s{sT1}, s{sT0}, {16*1152}
        s_waitcnt lgkmcnt(0)""")
        a.srd(sX, 4, 5, 2048 * 1152)
        a(f"buffer_load_dword v{vT+1}, v{vT}, s[{sX}:{sX+3}], s{sT0} offen offset:640")
        a(f"buffer_load_dword v{vT+2}, v{vT}, s[{sX}:{sX+3}], s{sT1} offen offset:640")
    a(unit_lists)
    a(f"""s_sub_u32 s{sPw}, s{sWave}, 4
    s_and_b32 s{sPc}, s{sPw}, 1
    s_mov_b32 s{sP8i}, {8*9216}
    s_mov_b32 s{sP8q}, {8*3456}
    v_lshrrev_b32 v{T+2}, 2, v{vL}
    v_and_b32 v{T+2}, 4, v{T+2}
    v_xor_b32 v{T+2}, v{T+2}, v{T+1}
    v_lshlrev_b32 v{T+2}, 4, v{T+2}
    v_mul_u32_u24 v{vDin}, 9216, v{T}
    v_add_u32 v{vDin}, v{vDin}, v{T+2}
    v_mul_u32_u24 v{vDq}, 3456, v{T}
    v_add_u32 v{vDq}, v{vDq}, v{T+2}
    v_lshlrev_b32 v{vWo}, 12, v{T}
    v_lshl_add_u32 v{vWo}, v{T+1}, 4, v{vWo}
    s_and_b32 s{sT0}, s{sRb}, {(1<<RBL)-1}
    s_mul_i32 s{sT0}, s{sT0}, {576>>RBL}
    s_mul_i32 s{sT1}, s{sPw}, {144>>RBL}
    s_add_u32 s{sT0}, s{sT0}, s{sT1}
    v_min_u32 v{T+2}, {(144>>RBL)-1}, v{vL}
    v_add_u32 v{T+2}, s{sT0}, v{T+2}
    v_mul_u32_u24 v{vPi}, 9216, v{T+2}
    v_mul_u32_u24 v{vPq}, 3456, v{T+2}""")
    a("s_waitcnt lgkmcnt(0)")
    a.srd(sWI, 8, 9, 576 * 9216)
    a.srd(sWQ, 6, 7, 576 * 3456)
    a(f"s_mov_b32 s{sDM+3}, 0x00020000")
    a.srd(sWS, 10, 11, 2048 * 4096)
    a.srd_off(sWP, 98, 99, CFG.ws_base + WP_OFF, WP_SZ)
    a.srd_off(sST, 98, 99, CFG.ws_base + ST_OFF, ST_SZ)
    a.srd_off(sCP, 98, 99, CFG.ws_base + CP_OFF, CP_SZ)
    a.srd(sDB, 96, 97, 256)
    def pparams():
        a(f"""s_add_u32 s{sT0}, s{sZ2s}, s{sV}
        s_add_u32 s{sT1}, s{sZ1m}, s{sV}
        s_add_u32 s{sT2}, s{sQm}, s{sV}
        s_cmp_lt_u32 s{sV}, s{sNz2}
        s_cselect_b32 s{sUn}, s{sT0}, s{sT1}
        s_cmp_lt_u32 s{sV}, s{sNg}
        s_cselect_b32 s{sUn}, s{sUn}, s{sT2}
        s_cselect_b64 s[{sMq}:{sMq+1}], 0, -1
        s_cselect_b64 s[{sDM}:{sDM+1}], s[{sWI}:{sWI+1}], s[{sWQ}:{sWQ+1}]
        s_cselect_b32 s{sDM+2}, s{sWI+2}, s{sWQ+2}
        s_cselect_b32 s{sP8}, s{sP8i}, s{sP8q}
        s_lshl_b32 s{sUn}, s{sUn}, 7
        s_cmp_lt_u32 s{sV}, s{sN}
        s_cselect_b32 s{sUn}, s{sUn}, 0x7f000000""")
    def issue():
        pparams()
        a(f"""v_cndmask_b32 v{vD}, v{vDin}, v{vDq}, s[{sMq}:{sMq+1}]
        s_sub_u32 s{sDvs}, s{sP8}, 1024
        s_lshl_b32 s{sDstep}, s{sP8}, 1
        s_mul_i32 s{sDma}, s{sDstep}, s{sPw}
        s_add_u32 s{sUn}, s{sDma}, s{sUn}
        s_lshl_b32 s{sDstep}, s{sDstep}, 2
        s_mul_i32 s{sDma}, s{sDstep}, s{sRot}
        s_add_u32 s{sDma}, s{sDma}, s{sUn}
        s_mov_b32 s{sRw}, s{sRot}
        v_add_u32 v{vD+1}, s{sDvs}, v{vD}
        s_lshl_b32 s{sT0}, s{sPw}, 11
        s_add_u32 m0, s{sBufN}, s{sT0}
        s_sub_u32 s{sBufN}, {UB}, s{sBufN}
        s_add_u32 s{sV}, s{sV}, 1""")
        for i in range(9):
            for j in range(2):
                if CFG.ka_nodma: continue
                a(f"buffer_load_dwordx4 v{vD+j}, s[{sDM}:{sDM+3}], s{sDma} offen offset:{1024*j} lds")
            if i < 8:
                a(f"s_add_u32 m0, m0, 8192")
                a(f"s_add_u32 s{sDma}, s{sDma}, s{sDstep}")
                a(f"s_add_u32 s{sRw}, s{sRw}, 1")
                a(f"s_cmp_eq_u32 s{sRw}, 9")
                a(f"s_cselect_b32 s{sDma}, s{sUn}, s{sDma}")
    a(f"s_mov_b32 s{sV}, 0")
    a(f"s_mov_b32 s{sBufN}, 0")
    if CFG.ka_xbar >= 0: a("s_barrier")
    issue()
    def l2pf():
        pparams()
        a(f"v_cndmask_b32 v{vT}, v{vPi}, v{vPq}, s[{sMq}:{sMq+1}]")
        a(f"buffer_load_dword v14, v{vT}, s[{sDM}:{sDM+3}], s{sUn} offen")
    npf = 1 if CFG.ka_l2pf else 0
    if npf: l2pf()
    a(f"""s_lshl_b32 s{sXr}, s{sCg}, 19
    s_lshl_b32 s{sT0}, s{sRb}, 8
    s_add_u32 s{sXr}, s{sXr}, s{sT0}
    s_lshl_b32 s{sT0}, s{sPc}, 7
    s_add_u32 s{sXr}, s{sXr}, s{sT0}
    s_lshr_b32 s{sT0}, s{sPw}, 1
    s_lshl_b32 s{sT0}, s{sT0}, 18
    s_add_u32 s{sXr}, s{sXr}, s{sT0}
    s_mov_b32 s{sXr+1}, s{sXr}""")
    a(f"s_waitcnt vmcnt({npf})")
    pf.stamp()
    a("s_barrier")
    a.label(f"{N}_ploop")
    nopub = a.newlabel(N + "_nopub")
    a(f"s_sub_u32 s{sT0}, s{sV}, 2")
    a(f"s_cmp_lg_u32 s{sT0}, s{sNz2}")
    a(f"s_cbranch_scc1 {nopub}")
    a(f"s_cmp_lg_u32 s{sPw}, 0")
    a(f"s_cbranch_scc1 {nopub}")
    a(f"""v_lshrrev_b32 v{vT}, 4, v{vL}
    v_and_b32 v{vT+1}, 15, v{vL}
    v_lshlrev_b32 v{vT}, 12, v{vT}
    v_lshl_add_u32 v{vT}, v{vT+1}, 4, v{vT}
    v_add_u32 v{vT}, {STG}, v{vT}
    ds_read_b128 {vr(P,4)}, v{vT}
    ds_read_b128 {vr(P+4,4)}, v{vT} offset:256
    v_lshlrev_b32 v{vT+1}, 4, v{vL}
    s_lshl_b32 s{sT0}, s{sRb}, 4
    s_add_u32 s{sT0}, s{sT0}, s{sCg}
    s_lshl_b32 s{sT0}, s{sT0}, 10
    s_waitcnt lgkmcnt(0)""")
    for i in range(4): a(f"v_add_f32 v{P+i}, v{P+i}, v{P+4+i}")
    a(f"buffer_store_dwordx4 {vr(P,4)}, v{vT+1}, s[{sST}:{sST+3}], s{sT0} offen sc1")
    a(f"""s_lshl_b32 s{sT0}, s{sRb}, 4
    v_mov_b32 v{vT}, s{sT0}
    v_mov_b32 v{vT+1}, 1
    s_waitcnt vmcnt(0)
    s_mov_b64 exec, 1
    buffer_atomic_add v{vT+1}, v{vT}, s[{sDB}:{sDB+3}], 0 offen sc1
    s_mov_b64 exec, -1""")
    a.label(nopub)
    issue()
    if npf: l2pf()
    l1 = a.newlabel(N + "_l"); l2 = a.newlabel(N + "_l"); l3 = a.newlabel(N + "_l")
    a(f"s_cmp_lg_u32 s{sV}, {CFG.ka_wsp_slot+2}")
    a(f"s_cbranch_scc1 {l1}")
    for i in range(8):
        a(f"buffer_load_dwordx4 {vr(WU+8*i+4,4)}, v{vWo}, s[{sWS}:{sWS+3}], s{sXr+1} offen {CFG.ka_wsp_aux}")
        a(f"s_add_u32 s{sXr+1}, s{sXr+1}, 32768")
    a(f"s_waitcnt vmcnt({8+npf})")
    a(f"s_branch {l3}")
    a.label(l1)
    a(f"s_cmp_lg_u32 s{sV}, 6")
    a(f"s_cbranch_scc1 {l2}")
    a(f"s_waitcnt vmcnt({18+npf})")
    for i in range(8):
        for r in range(4):
            x = WU + 8*i + 4 + r
            a(f"v_lshlrev_b32 v{WU+8*i+2*r}, 16, v{x}")
            a(f"v_and_b32 v{WU+8*i+2*r+1}, 0xffff0000, v{x}")
    def poll(lbl_done, single):
        a(f"""buffer_load_dword v{vT+1}, v{vT}, s[{sDB}:{sDB+3}], 0 offen sc1
        s_waitcnt vmcnt(0)
        v_readfirstlane_b32 s{sT2}, v{vT+1}""")
    def stat_loads():
        a(f"""v_lshlrev_b32 v{vT}, 3, v{vL}
        s_lshl_b32 s{sT0}, s{sRb}, 14
        s_lshl_b32 s{sT1}, s{sPc}, 9
        s_add_u32 s{sT0}, s{sT0}, s{sT1}""")
        for i in range(16):
            a(f"buffer_load_dwordx2 {vr(P+2*i,2)}, v{vT}, s[{sST}:{sST+3}], s{sT0} offen offset:{(i%4)*1024} sc1")
            if i % 4 == 3: a(f"s_add_u32 s{sT0}, s{sT0}, 4096")
    a(f"s_mov_b32 s{sOb}, 0")
    a.label(l2)
    a(f"s_waitcnt vmcnt({npf})")
    a.label(l3)
    a("s_barrier")
    a(f"s_cmp_lt_u32 s{sV}, 6")
    a(f"s_cbranch_scc1 {N}_ploop")
    pf.stamp()
    a(f"s_cmp_lt_u32 s{sN}, 7")
    a(f"s_cbranch_scc1 {N}_noi6")
    issue()
    a(f"""s_lshl_b32 s{sT0}, s{sRb}, 4
    v_mov_b32 v{vT}, s{sT0}""")
    poll(None, True)
    a(f"s_cmp_ge_u32 s{sT2}, 16")
    a(f"s_cselect_b32 s{sOb}, 1, 0")
    a(f"s_cbranch_scc0 {N}_b6")
    stat_loads()
    a.label(f"{N}_b6")
    a("s_barrier")
    a.label(f"{N}_noi6")
    a(f"s_cmp_eq_u32 s{sOb}, 1")
    a(f"s_cbranch_scc1 {N}_have")
    a(f"""s_lshl_b32 s{sT0}, s{sRb}, 4
    v_mov_b32 v{vT}, s{sT0}
    s_mov_b32 s{sT1}, 200000""")
    a.label(f"{N}_poll")
    poll(None, False)
    a(f"""s_sub_u32 s{sT1}, s{sT1}, 1
    s_cmp_eq_u32 s{sT1}, 0
    s_cbranch_scc1 {N}_polled
    s_cmp_ge_u32 s{sT2}, 16
    s_cbranch_scc1 {N}_polled
    s_sleep 4
    s_branch {N}_poll""")
    a.label(f"{N}_polled")
    stat_loads()
    a.label(f"{N}_have")
    pf.stamp()
    a(f"s_waitcnt vmcnt(0)")
    a(f"v_lshlrev_b32 v{vT}, 3, v{vL}")
    a(f"""s_lshl_b32 s{sT1}, s{sPw}, 9
    s_add_u32 s{sT1}, s{sT1}, {STG+4096+2048}
    v_add_u32 v{vT}, s{sT1}, v{vT}
    v_lshlrev_b32 v{vT+1}, 6, v{T+1}
    v_add_u32 v{vT+1}, s{sT1}, v{vT+1}
    s_mov_b32 s{sT0}, {f32(1.0/2304)}
    s_mov_b32 s{sT2}, {f32(1.0/abs(KSC))}""")
    for i in range(1, 16):
        a(f"v_add_f32 v{P}, v{P}, v{P+2*i}")
        a(f"v_add_f32 v{P+1}, v{P+1}, v{P+2*i+1}")
    a(f"""v_mul_f32 v{P}, s{sT0}, v{P}
    v_mul_f32 v{P+1}, s{sT0}, v{P+1}
    v_fma_f32 v{P+1}, -v{P}, v{P}, v{P+1}
    v_max_f32 v{P+1}, 0, v{P+1}
    v_add_f32 v{P+1}, {f32(EPS*KSC*KSC)}, v{P+1}
    v_rsq_f32 v{P+1}, v{P+1}
    v_mul_f32 v{P+1}, s{sT2}, v{P+1}
    ds_write_b64 v{vT}, {vr(P,2)}""")
    for q in range(4):
        a(f"ds_read_b128 {vr(P+4*q,4)}, v{vT+1} offset:{16*q}")
    a("s_waitcnt lgkmcnt(0)")
    pf.stamp()
    for i in range(8):
        for r in range(8): a(f"v_mul_f32 v{WU+8*i+r}, v{P+2*r+1}, v{WU+8*i+r}")
        for r in range(4): a(f"v_cvt_pk_bf16_f32 v{WU+8*i+r}, v{WU+8*i+2*r}, v{WU+8*i+2*r+1}")
        a(f"buffer_store_dwordx4 {vr(WU+8*i,4)}, v{vWo}, s[{sWP}:{sWP+3}], s{sXr} offen {CFG.st_aux_n}")
        a(f"s_add_u32 s{sXr}, s{sXr}, 32768")
    pf.stamp()
    for p in range(4): a(f"v_cvt_pk_bf16_f32 v{MH+p}, v{P+4*p}, v{P+4*p+2}")
    for p in range(4):
        a(f"v_lshlrev_b32 v{TT}, 16, v{MH+p}")
        a(f"v_and_b32 v{TT+1}, 0xffff0000, v{MH+p}")
        a(f"v_sub_f32 v{TT}, v{P+4*p}, v{TT}")
        a(f"v_sub_f32 v{TT+1}, v{P+4*p+2}, v{TT+1}")
        a(f"v_cvt_pk_bf16_f32 v{ML+p}, v{TT}, v{TT+1}")
    for i in range(0, 8, 2):
        for r in range(4):
            for q in range(2):
                a(f"v_dot2_f32_bf16 v{C+i+q}, v{WU+8*(i+q)+r}, v{MH+r}, {'0' if r==0 else 'v%d'%(C+i+q)}")
            for q in range(2):
                a(f"v_dot2_f32_bf16 v{C+i+q}, v{WU+8*(i+q)+r}, v{ML+r}, v{C+i+q}")
    for ctrl in ["quad_perm:[1,0,3,2]", "quad_perm:[2,3,0,1]", "row_half_mirror"]:
        for q in range(8):
            a(f"v_add_f32_dpp v{C+q}, v{C+q}, v{C+q} {ctrl} row_mask:0xf bank_mask:0xf")
    for i in range(1, 8):
        a(f"v_cmp_eq_u32 vcc, {i}, v{T+1}")
        a(f"v_cndmask_b32 v{C}, v{C}, v{C+i}, vcc")
    a(f"""v_lshlrev_b32 v{vT}, 7, v{T}
    v_lshl_add_u32 v{vT}, v{T+1}, 10, v{vT}
    s_lshl_b32 s{sT0}, s{sCg}, 14
    s_lshl_b32 s{sT1}, s{sRb}, 3
    s_add_u32 s{sT0}, s{sT0}, s{sT1}
    s_lshl_b32 s{sT1}, s{sPc}, 2
    s_add_u32 s{sT0}, s{sT0}, s{sT1}
    s_lshr_b32 s{sT1}, s{sPw}, 1
    s_lshl_b32 s{sT1}, s{sT1}, 13
    s_add_u32 s{sT0}, s{sT0}, s{sT1}
    buffer_store_dword v{C}, v{vT}, s[{sCP}:{sCP+3}], s{sT0} offen {CFG.st_aux_n}""")
    a(f"s_cmp_lg_u32 s{sPw}, 0")
    a(f"s_cbranch_scc1 {N}_nopf2")
    code_prefetch(a, 88, vT, vL, N)
    a.label(f"{N}_nopf2")
    if CFG.prof:
        pf.stamp(); a("s_waitcnt vmcnt(0)")
    pf.flush(sWave)
    a.label(f"{N}_end")
    a("s_endpgm")
    return a, kd(N, 256, 256, 102), (N, 256, 512, 163840)

class Attn:
    def __init__(self, a, sZQ, sUO, sT, sWave, ldsb, aux):
        self.a, self.sZQ, self.sUO, self.sT, self.sWave, self.ldsb, self.aux = a, sZQ, sUO, sT, sWave, ldsb, aux
        self.KV, self.Q, self.LG, self.PH, self.O, self.TM = 88, 184, 196, 204, 212, 230
        self.vQo, self.vRd, self.vDo = 14, 15, 236
    def loads(self):
        a, sT, sZQ, TM, vL = self.a, self.sT, self.sZQ, self.TM, 1
        a(f"""v_lshlrev_b32 v{self.vQo}, 4, v{vL}
        s_and_b32 s{sT}, s2, 7
        s_mul_i32 s{sT}, s{sT}, 9
        s_mul_i32 s{sT+1}, s{self.sWave}, 9
        s_lshr_b32 s{sT+1}, s{sT+1}, 2
        s_add_u32 s{sT}, s{sT}, s{sT+1}
        s_lshl_b32 s{sT}, s{sT}, 15
        s_lshr_b32 s{sT+1}, s2, 3
        s_lshl_b32 s{sT+1}, s{sT+1}, 10
        s_add_u32 s{sT}, s{sT}, s{sT+1}
        s_add_u32 s{sT+2}, s{sT}, {(576+72)*OCT-256}
        s_add_u32 s{sT+3}, s{sT}, {(576+144)*OCT-256}
        s_add_u32 s{sT+4}, s{sT}, {576*OCT}
        s_lshl_b32 s{sT+5}, s{self.sWave}, 13
        s_add_u32 s{sT+5}, s{sT+5}, {self.ldsb}""")
        for n in range(4):
            a(f"v_add_u32 v{TM}, {64*n}, v{vL}")
            a(f"v_mul_u32_u24 v{TM+1}, 3277, v{TM}")
            a(f"v_lshrrev_b32 v{TM+1}, 18, v{TM+1}")
            a(f"v_mul_u32_u24 v{TM+2}, 80, v{TM+1}")
            a(f"v_sub_u32 v{TM}, v{TM}, v{TM+2}")
            a(f"v_lshlrev_b32 v{TM}, 4, v{TM}")
            a(f"v_lshl_add_u32 v{self.vDo+n}, v{TM+1}, 15, v{TM}")
            if n: a(f"v_subrev_u32 v{self.vDo+n}, {1024*n}, v{self.vDo+n}")
    def issue(self):
        a, sT, sZQ = self.a, self.sT, self.sZQ
        a(f"s_mov_b32 m0, s{sT+5}")
        for n in range(4):
            a(f"buffer_load_dwordx4 v{self.vDo+n}, s[{sZQ}:{sZQ+3}], s{sT+2} offen offset:{1024*n} lds")
        for j in range(3):
            a(f"buffer_load_dwordx4 {vr(self.Q+4*j,4)}, v{self.vQo}, s[{sZQ}:{sZQ+3}], s{sT+4} offen")
            a(f"s_add_u32 s{sT+4}, s{sT+4}, {OCT}")
        a(f"s_add_u32 m0, s{sT+5}, 4096")
        for n in range(4):
            a(f"buffer_load_dwordx4 v{self.vDo+n}, s[{sZQ}:{sZQ+3}], s{sT+3} offen offset:{1024*n} lds")
        a(f"s_add_u32 s{sT+5}, s{sT+5}, 32")
        a(f"v_add_u32 v{self.vRd}, s{sT+5}, v{self.vQo}")
    def compute(self, do):
        a, sT, KV, Q, LG, PH, O, TM, vL = self.a, self.sT, self.KV, self.Q, self.LG, self.PH, self.O, self.TM, 1
        def rd(base):
            for w in range(8):
                for j in range(3):
                    a(f"ds_read_b128 {vr(KV+12*w+4*j,4)}, v{self.vRd} offset:{base+j*1280+224-32*w}")
        a("s_waitcnt vmcnt(4)")
        rd(0)
        a(f"s_lshr_b32 s{sT+4}, s2, 3")
        a(f"s_lshl_b32 s{sT+4}, s{sT+4}, 6")
        a(f"v_add_u32 v{TM}, s{sT+4}, v{vL}")
        a(f"v_mov_b32 v{TM+1}, 0xff800000")
        sc = (18 ** -0.5) * math.log2(math.e) / (KSC * KSC)
        a(f"s_mov_b32 s{sT+4}, {f32(sc)}")
        a(f"s_mov_b32 s{sT+5}, {f32(KSC)}")
        for w0 in range(0, 8, 2):
            a(f"s_waitcnt lgkmcnt({min(15, 24-3*(w0+2))})")
            for i in range(9):
                for w in (w0, w0+1):
                    c = "0" if i == 0 else f"v{LG+w}"
                    a(f"v_dot2_f32_bf16 v{LG+w}, v{Q+do+i}, v{KV+12*w+do+i}, {c}")
        a("s_waitcnt vmcnt(0)")
        rd(4096)
        for w in range(1, 8):
            a(f"v_cmp_le_u32 vcc, {2*w}, v{TM}")
            a(f"v_cndmask_b32 v{LG+w}, v{TM+1}, v{LG+w}, vcc")
        g = LG; m = TM + 2; s = TM + 3
        a(f"v_max3_f32 v{m}, v{g}, v{g+1}, v{g+2}")
        a(f"v_max3_f32 v{m}, v{m}, v{g+3}, v{g+4}")
        a(f"v_max3_f32 v{m}, v{m}, v{g+5}, v{g+6}")
        a(f"v_max_f32 v{m}, v{m}, v{g+7}")
        for w in range(8): a(f"v_sub_f32 v{g+w}, v{g+w}, v{m}")
        for w in range(8): a(f"v_mul_f32 v{g+w}, s{sT+4}, v{g+w}")
        for w in range(8): a(f"v_exp_f32 v{g+w}, v{g+w}")
        for w in range(8): a(f"v_cvt_pk_bf16_f32 v{g+w}, v{g+w}, 0")
        for w in range(8): a(f"v_lshlrev_b32 v{PH+w}, 16, v{g+w}")
        a(f"v_add_f32 v{s}, v{PH}, v{PH+1}")
        for w in range(2, 8): a(f"v_add_f32 v{s}, v{s}, v{PH+w}")
        a(f"v_mul_f32 v{s}, s{sT+5}, v{s}")
        a(f"v_rcp_f32 v{s}, v{s}")
        for w in range(8):
            if w % 2 == 0: a(f"s_waitcnt lgkmcnt({min(15, 24-3*(w+2))})")
            for d in range(9):
                c0 = "0" if w == 0 else f"v{O+2*d}"
                c1 = "0" if w == 0 else f"v{O+2*d+1}"
                a(f"v_dot2_f32_bf16 v{O+2*d}, v{KV+12*w+do+d}, v{LG+w}, {c0}")
                a(f"v_dot2_f32_bf16 v{O+2*d+1}, v{KV+12*w+do+d}, v{PH+w}, {c1}")
        for d in range(18): a(f"v_mul_f32 v{O+d}, v{s}, v{O+d}")
        for d in range(9): a(f"v_cvt_pk_bf16_f32 v{Q+do+d}, v{O+2*d}, v{O+2*d+1}")
        a(f"s_add_u32 s{sT}, s{sT}, {288*OCT}")
        for j in range(3):
            lo, hi = max(do, 4*j), min(do + 9, 4*j + 4)
            while lo < hi:
                n = 1 if lo % 2 else hi - lo
                sfx = {1: "dword", 2: "dwordx2", 3: "dwordx3", 4: "dwordx4"}[n]
                a(f"buffer_store_{sfx} {vr(Q+lo,n)}, v{self.vQo}, s[{self.sUO}:{self.sUO+3}], s{sT} offen offset:{4*(lo-4*j)} {self.aux}")
                lo += n
            if j < 2: a(f"s_add_u32 s{sT}, s{sT}, {OCT}")

def gen_KB():
    a = Asm(); N = "kb_kernel"
    NS = 4
    ZO = 16384
    def zb(j): return ZO + j*1024 + (j >> 1)*64 + (64 if j == 17 else 0)
    STG = zb(17) + 1024
    sWP, sZQ, sUO, sCP, sBS = 12, 16, 20, 24, 28
    sWave, sTb, sFb, sOdd, sT = 36, 37, 38, 39, 40
    sI, sSlot, sInc, sA, sZm, sZs, sStg = 50, 51, 52, 53, 54, 55, 56
    prologue(a, N, 256)
    pf = Prof(a, 247, 1); pf.init()
    a("s_load_dwordx4 s[4:7], s[0:1], 48")
    a("s_load_dwordx2 s[8:9], s[0:1], 16")
    a("s_load_dwordx2 s[10:11], s[0:1], 80")
    a("v_lshrrev_b32 v1, 6, v0")
    a(f"v_readfirstlane_b32 s{sWave}, v1")
    a(f"""s_and_b32 s{sT}, s2, 7
    s_lshr_b32 s{sT+1}, s2, 3
    s_and_b32 s{sTb}, s{sT}, 1
    s_lshl_b32 s{sTb}, s{sTb}, 3
    s_and_b32 s{sT+2}, s{sT+1}, 7
    s_add_u32 s{sTb}, s{sTb}, s{sT+2}
    s_lshr_b32 s{sFb}, s{sT}, 1
    s_lshl_b32 s{sFb}, s{sFb}, 2
    s_lshr_b32 s{sT+2}, s{sT+1}, 3
    s_add_u32 s{sFb}, s{sFb}, s{sT+2}
    s_and_b32 s{sOdd}, s{sFb}, 1
    s_mul_i32 s{sZm}, s{sFb}, 18
    s_lshl_b32 s{sT}, s{sOdd}, 1
    s_add_u32 s{sZs}, s{sZm}, 16
    s_lshl_b32 s{sT+1}, s{sOdd}, 4
    s_sub_u32 s{sZs}, s{sZs}, s{sT+1}
    s_add_u32 s{sZm}, s{sZm}, s{sT}
    s_lshl_b32 s{sZm}, s{sZm}, 15
    s_lshl_b32 s{sZs}, s{sZs}, 15
    v_and_b32 v1, 63, v0""")
    a(f"s_cmp_ge_u32 s{sWave}, 4")
    a(f"s_cbranch_scc1 {N}_prod")
    at = Attn(a, sZQ, sUO, 70, sWave, 3 * STG, CFG.st_aux_b)
    at.loads()
    a("s_waitcnt lgkmcnt(0)")
    a.srd_off(sZQ, 10, 11, CFG.ws_base + ZQ_OFF, ZQ_SZ)
    at.issue()
    if CFG.kb_abar: a("s_barrier")
    a.srd_off(sUO, 10, 11, CFG.ws_base + UO_OFF, UO_SZ)
    a.srd_off(sCP, 10, 11, CFG.ws_base + CP_OFF, CP_SZ)
    a.srd(sBS, 4, 5, 4096)
    ACC, FA, FB, Z1, T = 16, 88, 160, 176, 212
    vL, vZ0, vZ1, vZs, vB0, vB1, vE, vEs = 1, 2, 3, 4, 5, 6, 7, 8
    vBC, vCo, vBo = 10, 12, 13
    a(f"""v_lshrrev_b32 v{T}, 4, v{vL}
    v_and_b32 v{T+1}, 15, v{vL}
    v_bfe_u32 v{T+2}, v{vL}, 2, 2
    v_and_b32 v{T+3}, 3, v{vL}
    v_lshl_add_u32 v{T+4}, v{T}, 3, v{T+2}
    v_lshlrev_b32 v{T+4}, 4, v{T+4}
    v_lshrrev_b32 v{T+5}, 1, v{T+3}
    v_and_b32 v{T+6}, 1, v{T+3}
    v_lshl_add_u32 v{vZ0}, v{T+3}, 10, v{T+4}
    v_lshl_add_u32 v{vZ0}, v{T+5}, 6, v{vZ0}
    v_lshl_add_u32 v{vZ0}, v{T+6}, 3, v{vZ0}
    v_xor_b32 v{vZ1}, 8, v{vZ0}
    v_mul_u32_u24 v{vZs}, 1088, v{T+5}
    v_add_u32 v{vZs}, v{vZs}, v{T+4}
    v_xor_b32 v{T+6}, v{T+6}, v{T+5}
    v_lshl_add_u32 v{vZs}, v{T+6}, 3, v{vZs}
    s_lshl_b32 s{sT}, s{sWave}, 5
    v_add_u32 v{T+7}, s{sT}, v{T+1}
    v_and_b32 v{T+8}, 7, v{vL}
    v_xor_b32 v{T+8}, v{T+8}, v{T}
    v_lshlrev_b32 v{T+8}, 4, v{T+8}
    v_lshl_add_u32 v{vB0}, v{T+7}, 7, v{T+8}
    v_xor_b32 v{vB1}, 64, v{vB0}
    s_lshl_b32 s{sT+1}, s{sTb}, 7
    v_add_u32 v{T+7}, s{sT+1}, v{T+7}
    v_lshlrev_b32 v{vE}, 4, v{T+7}
    v_lshrrev_b32 v{T+8}, 1, v{T}
    v_lshl_add_u32 v{vEs}, v{T+8}, 15, v{vE}
    v_and_b32 v{T+8}, 1, v{T}
    v_lshl_add_u32 v{vEs}, v{T+8}, 3, v{vEs}
    v_lshl_add_u32 v{vE}, v{T}, 15, v{vE}
    v_lshlrev_b32 v{vCo}, 7, v{T+7}
    v_lshl_add_u32 v{vCo}, v{T}, 5, v{vCo}
    v_lshlrev_b32 v{vBo}, 1, v{T+7}""")
    CPR = 228
    def eloads():
        o = []
        for tt in range(2):
            for q in range(2):
                o.append(f"buffer_load_dwordx4 {vr(T+8*tt+4*q,4)}, v{vCo}, s[{sCP}:{sCP+3}], 0 offen offset:{2048*tt+16*q}")
            o.append(f"buffer_load_ushort v{CPR+8+tt}, v{vBo}, s[{sBS}:{sBS+3}], 0 offen offset:{32*tt}")
        o.append(f"s_mov_b32 s{sT}, s{sZm}")
        for i in range(4):
            for tt in range(2):
                o.append(f"buffer_load_dwordx4 {vr(Z1+8*i+4*tt,4)}, v{vE}, s[{sZQ}:{sZQ+3}], s{sT} offen offset:{256*tt}")
            o.append(f"s_add_u32 s{sT}, s{sT}, {4*OCT}")
        for tt in range(2):
            o.append(f"buffer_load_dwordx2 {vr(Z1+32+2*tt,2)}, v{vEs}, s[{sZQ}:{sZQ+3}], s{sZs} offen offset:{256*tt}")
        return o
    for i in range(72): a(f"v_mov_b32 v{ACC+i}, 0")
    AD = {vB0: 240, vB1: 241, vZ0: 242, vZ1: 243, vZs: 244}
    for r in (vZ0, vZ1, vZs): a(f"v_add_u32 v{r}, {ZO}, v{r}")
    for r, r2 in AD.items(): a(f"v_add_u32 v{r2}, {2*STG}, v{r}")
    def reads(slot, h, st):
        R = (lambda r: AD[r]) if slot >= 2 else (lambda r: r)
        so = (slot & 1) * STG
        out = [f"ds_read_b128 {vr(FB+8*st+4*tt,4)}, v{R(vB1 if h else vB0)} offset:{so+2048*tt}" for tt in range(2)]
        for j in range(9):
            for rd in range(2):
                if j < 8:
                    out.append(f"ds_read_b64_tr_b16 {vr(FA+36*st+4*j+2*rd,2)}, v{R(vZ1 if j&1 else vZ0)} offset:{so+zb(4*(j>>1))-ZO+512*h+64*rd}")
                else:
                    out.append(f"ds_read_b64_tr_b16 {vr(FA+36*st+4*j+2*rd,2)}, v{R(vZs)} offset:{so+zb(16)-ZO+512*h+64*rd}")
        return out
    def phase(st, rds):
        out = []; k = 0; lastw = None
        for j in range(9):
            for tt in range(2):
                if tt == 0:
                    if j % 2 == 0:
                        jj = min(j + 1, 8)
                        out.append(f"s_waitcnt lgkmcnt({min(15, 19-(3+2*jj)+k)})")
                if not CFG.kb_nomfma: out.append(f"v_mfma_f32_16x16x32_bf16 {vr(ACC+8*j+4*tt,4)}, {vr(FA+36*st+4*j,4)}, {vr(FB+8*st+4*tt,4)}, {vr(ACC+8*j+4*tt,4)}")
                n = 2 if (j == 1) else 1
                for _ in range(n):
                    if k < len(rds): out.append(rds[k]); k += 1
        return out
    el = eloads()
    groups = [el[:7], el[7:13], el[13:19], el[19:]]
    a(f"s_mov_b32 s{sI}, 8")
    pf.stamp()
    for w in range(4):
        if w < 3:
            a(f"s_cmp_lg_u32 s{sWave}, {w}")
            a(f"s_cbranch_scc1 {N}_at{w+1}")
        at.compute(w)
        if w < 3:
            a(f"s_branch {N}_atd")
            a.label(f"{N}_at{w+1}")
    a.label(f"{N}_atd")
    pf.stamp()
    a("s_barrier")
    pf.stamp()
    for l in reads(0, 0, 0): a(l)
    a.lines.append(".p2align 6")
    a.label(f"{N}_loop")
    for slot in range(4):
        for l in phase(0, reads(slot, 1, 1)): a(l)
        if slot == 3:
            a(f"s_sub_u32 s{sI}, s{sI}, 1")
        a("s_barrier")
        if CFG.prof > 1: pf.stamp()
        ph = phase(1, reads((slot + 1) % 4, 0, 0))
        sk = a.newlabel(N + "_sk")
        for i, l in enumerate(ph):
            a(l)
            if i == 4:
                a(f"s_cmp_lg_u32 s{sI}, {CFG.kb_eit - (1 if slot == 3 else 0)}")
                a(f"s_cbranch_scc1 {sk}")
                for x in groups[slot]: a(x)
                a.label(sk)
    a(f"s_cmp_lg_u32 s{sI}, 0")
    a(f"s_cbranch_scc1 {N}_loop")
    pf.stamp()
    a("s_waitcnt vmcnt(0)")
    a(f"s_mov_b32 s{sT}, {f32(1.0/KSC)}")
    for tt in range(2):
        c = CPR + 4*tt
        p = T + 8*tt
        a(f"v_add_f32 v{c}, v{p}, v{p+1}")
        for q in range(2, 8): a(f"v_add_f32 v{c}, v{c}, v{p+q}")
        a(f"v_mov_b32 v{c+1}, v{c}")
        a(f"v_permlane16_swap_b32 v{c}, v{c+1}")
        a(f"v_add_f32 v{c}, v{c}, v{c+1}")
        a(f"v_mov_b32 v{c+1}, v{c}")
        a(f"v_permlane32_swap_b32 v{c}, v{c+1}")
        a(f"v_add_f32 v{c}, v{c}, v{c+1}")
        a(f"v_lshlrev_b32 v{c+2}, 16, v{CPR+8+tt}")
        a(f"v_fma_f32 v{vBC+tt}, v{c+2}, s{sT}, -v{c}")
    a(f"s_mov_b32 s{sT}, s{sZm}")
    for i in range(5):
        for tt in range(2):
            n = 4 if i < 4 else 2
            z = Z1 + 8*i + n*tt
            for r in range(n):
                j = 2*i + (r >> 1)
                ac = ACC + 8*j + 4*tt + 2*(r & 1)
                t = T + 4*(r % 2)
                a(f"v_add_f32 v{ac}, v{vBC+tt}, v{ac}")
                a(f"v_add_f32 v{ac+1}, v{vBC+tt}, v{ac+1}")
                a(f"v_lshlrev_b32 v{t}, 16, v{z+r}")
                a(f"v_and_b32 v{t+1}, 0xffff0000, v{z+r}")
                a(f"v_mul_f32 v{t}, v{t}, v{ac}")
                a(f"v_mul_f32 v{t+1}, v{t+1}, v{ac+1}")
                a(f"v_cvt_pk_bf16_f32 v{z+r}, v{t}, v{t+1}")
            if i < 4:
                a(f"buffer_store_dwordx4 {vr(z,4)}, v{vE}, s[{sUO}:{sUO+3}], s{sT} offen offset:{256*tt} {CFG.st_aux_b}")
            else:
                a(f"buffer_store_dwordx2 {vr(z,2)}, v{vEs}, s[{sUO}:{sUO+3}], s{sZs} offen offset:{256*tt} {CFG.st_aux_b}")
        a(f"s_add_u32 s{sT}, s{sT}, {4*OCT}")
    if CFG.prof:
        pf.stamp(); a("s_waitcnt vmcnt(0)")
    pf.flush(sWave)
    a("s_endpgm")
    a.label(f"{N}_prod")
    a("s_waitcnt lgkmcnt(0)")
    a.srd_off(sWP, 10, 11, CFG.ws_base + WP_OFF, WP_SZ)
    a.srd_off(sZQ, 10, 11, CFG.ws_base + ZQ_OFF, ZQ_SZ)
    vA, vZ = 2, 3
    a(f"""v_lshrrev_b32 v4, 3, v1
    v_and_b32 v5, 7, v1
    v_xor_b32 v5, v5, v4
    v_lshlrev_b32 v5, 4, v5
    v_lshl_add_u32 v{vA}, v4, 12, v5
    v_lshlrev_b32 v{vZ}, 4, v1
    s_lshl_b32 s{sA}, s{sTb}, 19
    s_add_u32 s{sZm}, s{sZm}, {288*OCT}
    s_add_u32 s{sZs}, s{sZs}, {288*OCT}
    s_mov_b32 s{sSlot}, 0""")
    if CFG.kb_abar: a("s_barrier")
    items = [("A", i) for i in range(16)] + [("Z", j) for j in range(18)]
    def issue(p):
        out = []
        for kind, i in items[17*p:17*p+17]:
            if CFG.kb_nodma: continue
            if kind == "A":
                out.append(f"s_add_u32 m0, s{sSlot}, {i*1024}")
                out.append(f"s_add_u32 s{sT}, s{sA}, {i*8*4096}")
                out.append(f"buffer_load_dwordx4 v{vA}, s[{sWP}:{sWP+3}], s{sT} offen lds")
            else:
                out.append(f"s_add_u32 m0, s{sSlot}, {zb(i)}")
                out.append(f"s_add_u32 s{sT}, s{sZm if i < 16 else sZs}, {(i if i < 16 else i-16)*OCT}")
                out.append(f"buffer_load_dwordx4 v{vZ}, s[{sZQ}:{sZQ+3}], s{sT} offen lds")
        out += [f"s_add_u32 s{sA}, s{sA}, 128", f"s_add_u32 s{sZm}, s{sZm}, 1024", f"s_add_u32 s{sZs}, s{sZs}, 1024",
                f"s_add_u32 s{sSlot}, s{sSlot}, {STG}", f"s_cmp_eq_u32 s{sSlot}, {NS*STG}", f"s_cselect_b32 s{sSlot}, 0, s{sSlot}"]
        return out
    for p in range(2):
        if p == 0:
            a(f"s_cmp_eq_u32 s{sWave}, 5")
            a(f"s_cbranch_scc1 {N}_prod1")
        else:
            a.label(f"{N}_prod1")
        for st in range(3):
            for l in issue(p): a(l)
        a("s_waitcnt vmcnt(34)")
        a("s_barrier")
        a(f"s_mov_b32 s{sI}, 29")
        a.label(f"{N}_ploop{p}")
        a("s_waitcnt vmcnt(17)")
        a("s_barrier")
        for l in issue(p): a(l)
        a(f"s_sub_u32 s{sI}, s{sI}, 1")
        a(f"s_cmp_lg_u32 s{sI}, 0")
        a(f"s_cbranch_scc1 {N}_ploop{p}")
        a("s_waitcnt vmcnt(17)")
        a("s_barrier")
        a("s_waitcnt vmcnt(0)")
        a("s_barrier")
        if CFG.kb_pf:
            a.srd(60, 6, 7, 2304 * 1152)
            a(f"s_mul_i32 s{sT+1}, s2, {81*128}")
            if p == 0:
                a(f"v_lshlrev_b32 v4, 7, v1")
                a(f"buffer_load_dword v5, v4, s[60:63], s{sT+1} offen")
            else:
                a.srd(64, 8, 9, 576 * 1152)
                a(f"s_add_u32 s{sT+1}, s{sT+1}, 8192")
                a(f"s_mul_i32 s{sT+2}, s2, {21*128}")
                a(f"v_min_u32 v4, 20, v1")
                a(f"v_lshlrev_b32 v4, 7, v4")
                a(f"buffer_load_dword v5, v4, s[60:63], s{sT+1} offen")
                a(f"buffer_load_dword v6, v4, s[64:67], s{sT+2} offen")
        if p == 0: code_prefetch(a, 68, 6, 1, N)
        a("s_endpgm")
    a.label(f"{N}_end")
    a("s_endpgm")
    return a, kd(N, 248, 248), (N, 256, 384, NS * STG)

def gen_KC():
    a = Asm(); N = "kc_kernel"
    NS = 9
    sUO, sWO, sWA, sX, sOUT, sDM = 12, 16, 20, 24, 28, 32
    sWave, sRb, sCg, sT = 36, 37, 38, 40
    sI, sU, sW = 50, 51, 52
    prologue(a, N, 234)
    pf = Prof(a, 247, 2); pf.init()
    a("s_load_dwordx2 s[4:5], s[0:1], 0")
    a("s_load_dwordx2 s[6:7], s[0:1], 16")
    a("s_load_dwordx4 s[8:11], s[0:1], 56")
    a("s_load_dwordx2 s[60:61], s[0:1], 80")
    a("v_lshrrev_b32 v1, 6, v0")
    a(f"v_readfirstlane_b32 s{sWave}, v1")
    a(f"""s_and_b32 s{sT}, s2, 7
    s_lshr_b32 s{sT+1}, s2, 3
    s_mul_i32 s{sT+2}, s{sT}, 29
    s_min_u32 s{sT}, s{sT}, 2
    s_add_u32 s{sT+2}, s{sT+2}, s{sT}
    s_add_u32 s{sT+2}, s{sT+2}, s{sT+1}
    s_mul_i32 s{sRb}, s{sT+2}, 7282
    s_lshr_b32 s{sRb}, s{sRb}, 16
    s_mul_i32 s{sT}, s{sRb}, 9
    s_sub_u32 s{sCg}, s{sT+2}, s{sT}
    v_and_b32 v1, 63, v0""")
    a("s_waitcnt lgkmcnt(0)")
    a.srd_off(sUO, 60, 61, CFG.ws_base + UO_OFF, UO_SZ)
    a.srd(sWO, 8, 9, 2304 * 1152)
    a.srd(sWA, 6, 7, 576 * 1152)
    a.srd(sX, 4, 5, 2048 * 1152)
    a.srd(sOUT, 10, 11, 2048 * 1152)
    a(f"s_cmp_ge_u32 s{sWave}, 5")
    a(f"s_cbranch_scc1 {N}_prod")
    a(f"s_mul_i32 s{sT}, s{sRb}, 5")
    a(f"s_add_u32 s{sT}, s{sT}, s{sWave}")
    a(f"s_cmp_ge_u32 s{sT}, 128")
    a(f"s_cbranch_scc1 {N}_end")
    ACC, SV, FA, UF, XR, T = 16, 32, 48, 144, 216, 224
    vL, vU, vA, vXo, vA8 = 1, 2, 4, 3, 8
    a(f"""v_lshrrev_b32 v{T}, 4, v{vL}
    v_and_b32 v{T+1}, 15, v{vL}
    s_lshl_b32 s{sT}, s{sT}, 4
    v_add_u32 v{T+2}, s{sT}, v{T+1}
    v_lshlrev_b32 v{vU}, 4, v{T+2}
    v_lshl_add_u32 v{vU}, v{T}, 15, v{vU}
    s_mov_b32 s{sU}, 0""")
    def uload(slot):
        return [f"buffer_load_dwordx4 {vr(UF+4*slot,4)}, v{vU}, s[{sUO}:{sUO+3}], s{sU} offen",
                f"s_add_u32 s{sU}, s{sU}, {4*OCT}"]
    for s_ in range(16):
        for l in uload(s_): a(l)
    a(f"""v_mul_u32_u24 v{vXo}, 1152, v{T+2}
    v_and_b32 v{T+3}, 1, v{T}
    v_lshl_add_u32 v{vXo}, v{T+3}, 5, v{vXo}
    v_lshrrev_b32 v{T+3}, 1, v{T}
    v_lshl_add_u32 v{vXo}, v{T+3}, 4, v{vXo}
    s_lshl_b32 s{sT+1}, s{sCg}, 7
    v_bfe_u32 v{T+3}, v{vL}, 2, 2
    v_lshl_add_u32 v{T+4}, v{T}, 3, v{T+3}
    v_lshlrev_b32 v{T+4}, 7, v{T+4}
    v_and_b32 v{T+5}, 3, v{vL}
    v_lshl_add_u32 v{T+4}, v{T+5}, 3, v{T+4}
    v_lshrrev_b32 v{T+3}, 1, v{T+3}
    v_and_b32 v{T+5}, 1, v{T}
    v_lshl_add_u32 v{T+3}, v{T+5}, 1, v{T+3}
    v_lshl_add_u32 v{vA}, v{T+3}, 5, v{T+4}
    v_xor_b32 v{vA+1}, 32, v{vA}
    v_xor_b32 v{vA+2}, 64, v{vA}
    v_xor_b32 v{vA+3}, 96, v{vA}""")
    for j in range(4): a(f"v_add_u32 v{vA8+j}, {8*8192}, v{vA+j}")
    for i in range(16): a(f"v_mov_b32 v{ACC+i}, 0")
    def reads(st):
        st %= 9
        return [f"ds_read_b64_tr_b16 {vr(FA+32*(st%3)+16*h+4*j+2*rd,2)}, v{(vA8 if st == 8 else vA)+j} offset:{(st%8)*8192+4096*h+512*rd}"
                for h in range(2) for j in range(4) for rd in range(2)]
    a(f"s_mov_b32 s{sI}, 5")
    pf.stamp()
    a("s_barrier")
    for l in reads(0): a(l)
    a("s_waitcnt lgkmcnt(0)")
    a.lines.append(".p2align 6")
    a.label(f"{N}_loop")
    for st in range(9):
        a("s_barrier")
        rd = reads(st + 1)
        k = 0
        for h in range(2):
            ks = 2*st + h
            a(f"s_waitcnt vmcnt({15})")
            for j in range(4):
                a(f"v_mfma_f32_16x16x32_bf16 {vr(ACC+4*j,4)}, {vr(FA+32*(st%3)+16*h+4*j,4)}, {vr(UF+4*ks,4)}, {vr(ACC+4*j,4)}")
                for _ in range(3):
                    if k < 16: a(rd[k]); k += 1
            for l in uload((ks + 16) % 18): a(l)
        a("s_waitcnt lgkmcnt(0)")
    pf.stamp()
    a(f"s_sub_u32 s{sI}, s{sI}, 1")
    a(f"s_cmp_eq_u32 s{sI}, 0")
    a(f"s_cbranch_scc1 {N}_epi")
    a(f"s_cmp_lg_u32 s{sI}, 1")
    a(f"s_cbranch_scc1 {N}_loop")
    for p in range(2):
        a(f"buffer_load_dwordx4 {vr(XR+4*p,4)}, v{vXo}, s[{sX}:{sX+3}], s{sT+1} offen offset:{64*p}")
    a("s_nop 5")
    for i in range(16):
        a(f"v_mov_b32 v{SV+i}, v{ACC+i}")
    for i in range(16):
        a(f"v_mov_b32 v{ACC+i}, 0")
    a(f"s_branch {N}_loop")
    a.label(f"{N}_epi")
    a(f"s_mov_b32 s{sT}, {f32(-math.log2(math.e))}")
    for i in range(16): a(f"v_mul_f32 v{T+i}, s{sT}, v{SV+i}")
    for i in range(16): a(f"v_exp_f32 v{T+i}, v{T+i}")
    for i in range(16): a(f"v_add_f32 v{T+i}, 1.0, v{T+i}")
    for i in range(16): a(f"v_rcp_f32 v{T+i}, v{T+i}")
    for i in range(16): a(f"v_mul_f32 v{SV+i}, v{SV+i}, v{T+i}")
    for i in range(16): a(f"v_mul_f32 v{SV+i}, v{SV+i}, v{ACC+i}")
    for p in range(2):
        x = XR + 4*p
        a(f"v_permlane16_swap_b32 v{x}, v{x+2}")
        a(f"v_permlane16_swap_b32 v{x+1}, v{x+3}")
        for r in range(4):
            s = SV + 8*p + 2*r
            a(f"v_lshlrev_b32 v{T}, 16, v{x+r}")
            a(f"v_and_b32 v{T+1}, 0xffff0000, v{x+r}")
            a(f"v_add_f32 v{T}, v{T}, v{s}")
            a(f"v_add_f32 v{T+1}, v{T+1}, v{s+1}")
            a(f"v_cvt_pk_bf16_f32 v{x+r}, v{T}, v{T+1}")
        a(f"v_permlane16_swap_b32 v{x}, v{x+2}")
        a(f"v_permlane16_swap_b32 v{x+1}, v{x+3}")
        a(f"buffer_store_dwordx4 {vr(x,4)}, v{vXo}, s[{sOUT}:{sOUT+3}], s{sT+1} offen offset:{64*p}")
    if CFG.prof:
        pf.stamp(); a("s_waitcnt vmcnt(0)")
    pf.flush(sWave)
    hprof_end(a, N)
    a("s_endpgm")
    a.label(f"{N}_prod")
    vD = 2
    a(f"""v_lshrrev_b32 v8, 3, v1
    v_and_b32 v9, 7, v1
    v_lshrrev_b32 v10, 3, v1
    v_and_b32 v10, 2, v10
    v_xor_b32 v9, v9, v10
    v_lshlrev_b32 v9, 4, v9
    v_mul_u32_u24 v{vD}, 1152, v8
    v_add_u32 v{vD}, v{vD}, v9
    v_xor_b32 v{vD+1}, 64, v{vD}
    v_add_u32 v{vD+1}, {8*1152-1024}, v{vD+1}
    v_add_u32 v{vD+2}, {2*(8*1152-1024)}, v{vD}
    v_add_u32 v{vD+3}, {2*(8*1152-1024)}, v{vD+1}
    s_sub_u32 s{sT}, s{sWave}, 5
    s_mul_i32 s{sW}, s{sT}, {32*1152}
    s_lshl_b32 s{sT+1}, s{sCg}, 7
    s_add_u32 s{sW}, s{sW}, s{sT+1}
    s_mov_b32 s{sT+3}, s{sW}
    s_lshl_b32 s{sT+2}, s{sT}, 12
    s_mov_b32 s{sDM}, s{sWO}
    s_mov_b32 s{sDM+1}, s{sWO+1}
    s_mov_b32 s{sDM+2}, s{sWO+2}
    s_mov_b32 s{sDM+3}, 0x00020000
    s_mov_b32 s{sU}, 0""")
    a(f"s_mov_b32 s{sT+4}, s{sT+2}")
    def issue():
        out = [f"s_mov_b32 m0, s{sT+4}",
               f"s_add_u32 s{sT+4}, s{sT+4}, 8192"]
        out += [f"buffer_load_dwordx4 v{vD+j}, s[{sDM}:{sDM+3}], s{sW} offen offset:{1024*j} lds" for j in range(4)]
        out += [f"s_add_u32 s{sW}, s{sW}, {64*1152}",
                f"s_cmp_ge_u32 s{sT+4}, {NS*8192}",
                f"s_cselect_b32 s{sT+4}, s{sT+2}, s{sT+4}",
                f"s_add_u32 s{sU}, s{sU}, 1",
                f"s_cmp_eq_u32 s{sU}, 36",
                f"s_cselect_b64 s[{sDM}:{sDM+1}], s[{sWA}:{sWA+1}], s[{sDM}:{sDM+1}]",
                f"s_cselect_b32 s{sDM+2}, s{sWA+2}, s{sDM+2}",
                f"s_cselect_b32 s{sW}, s{sT+3}, s{sW}"]
        return out
    for st in range(9):
        for l in issue(): a(l)
    a("s_waitcnt vmcnt(32)")
    a("s_barrier")
    a(f"s_mov_b32 s{sI}, 36")
    a.label(f"{N}_ploop")
    a("s_waitcnt vmcnt(28)")
    a("s_barrier")
    for l in issue(): a(l)
    a(f"s_sub_u32 s{sI}, s{sI}, 1")
    a(f"s_cmp_lg_u32 s{sI}, 0")
    a(f"s_cbranch_scc1 {N}_ploop")
    for n in range(8):
        a(f"s_waitcnt vmcnt({28-4*n})")
        a("s_barrier")
    a.label(f"{N}_end")
    a("s_endpgm")
    return a, kd(N, 248, 248), (N, 234, 448, NS * 8192)

HEADER = open("cdna_kernels/" + NAME + ".s.ref").read().split("; Override")[0]

def build(kernels, verbose=False):
    txt = HEADER
    body = ""
    kds = ""
    for g in kernels:
        a, k, (n, grid, block, lds) = g()
        txt += f"; @launch kernel={n} grid=({grid},1,1) block=({block},1,1) lds={lds}\n"
        lines, ins = fix_hazards(a.lines, verbose, n)
        an = 0
        if CFG.align:
            lines, an = align8(lines)
            lines, ins2 = fix_hazards(lines, verbose, n)
            if ins2:
                lines, an2 = align8(lines, move=False); an += an2; ins += ins2
                assert fix_hazards(lines, False, n)[1] == 0
        print(f"{n}: {len(lines)} lines, {ins} hazard nops, {an} align nops", file=sys.stderr)
        body += "\n".join(("    " + l if not (l.endswith(":") or l.startswith(".")) else l) for l in lines) + "\n"
        kds += k
    txt += '.amdgcn_target "amdgcn-amd-amdhsa--gfx950"\n.text\n.p2align 8\ncode_begin:\n' + body + "code_end:\n" + kds
    return txt

if __name__ == "__main__":
    for arg in sys.argv[2:]:
        if "=" in arg:
            k_, v_ = arg.split("=", 1)
            setattr(CFG, k_, type(getattr(CFG, k_))(v_) if not isinstance(getattr(CFG, k_), bool) else int(v_))
    out = sys.argv[1] if len(sys.argv) > 1 else "cdna_kernels/" + NAME + ".s"
    open(out, "w").write(build([gen_KA, gen_KB, gen_KC], verbose="-v" in sys.argv))
```

```python
import math, struct, sys
from asmlib import *

NAME = "recurrent_scan__sliding_local_dilated__mixer_gmlp__prompt"
def f32(x): return "0x%08x" % struct.unpack("<I", struct.pack("<f", x))[0]

C0 = -2.0 * math.sqrt(2.0 / math.pi) * math.log2(math.e)
C1 = C0 * 0.044715
KSC = -((-C1) ** (1.0 / 3.0))
DELTA = C0 / KSC
EPS = 1e-5
OCT = 32768

class Cfg:
    ws_base = 0
    st_aux_a = "sc1"
    st_aux_n = ""
    st_aux_b = "sc1"
    prof = False
    ka_xbar = -1
    ka_prio = 0
    ka_xpf = 0
    ka_head = 24
    ka_xfirst = 5
    ka_rot = 0
    align = 0
    hprof = 0
    kc_test = 0
    ka_rbl = 2
    ka_nostore = 0
    ka_nodma = 0
    ka_wsp_slot = 0
    ka_x_aux = ""
    ka_pf_aux = ""
    ka_wsp_aux = "nt"
    ka_npre = 26
    codepf = 1
    ka_l2pf = 1
    attn_seg = 36
    ka_stpos = 5
    kb_nomfma = 0
    kb_pf = 1
    kb_eit = 8
    kb_abar = 0
    kb_nodma = 0
    kb_noattn = 0
CFG = Cfg()

ZQ_OFF, ZQ_SZ = 0, 792 * OCT
UO_OFF, UO_SZ = 26 << 20, 360 * OCT
WP_OFF, WP_SZ = 38 << 20, 2048 * 4096
ST_OFF, ST_SZ = 47 << 20, 16 * 16 * 1024
CP_OFF, CP_SZ = 48 << 20, 2048 * 128

def kd(name, vgpr, accum, sgpr=96):
    return f""".section .rodata,"a"
.p2align 6
.amdhsa_kernel {name}
  .amdhsa_next_free_vgpr {vgpr}
  .amdhsa_next_free_sgpr {sgpr}
  .amdhsa_accum_offset {accum}
  .amdhsa_group_segment_fixed_size 0
  .amdhsa_kernarg_size 88
  .amdhsa_user_sgpr_count 2
  .amdhsa_user_sgpr_kernarg_segment_ptr 1
  .amdhsa_system_sgpr_workgroup_id_x 1
.end_amdhsa_kernel
"""

PROF_OFF = 64 << 20
class Prof:
    def __init__(self, a, vreg, kidx):
        self.a, self.v, self.k = a, vreg, kidx
    def init(self):
        if not CFG.prof: return
        a = self.a
        a(f"v_mov_b32 v{self.v}, 0")
        a("s_mov_b64 s[84:85], 2")
        a("s_memrealtime s[82:83]")
        a("s_waitcnt lgkmcnt(0)")
        a(f"v_writelane_b32 v{self.v}, s82, 0")
        self.stamp()
    def stamp(self):
        if not CFG.prof: return
        a = self.a
        a("s_memtime s[80:81]")
        a("s_waitcnt lgkmcnt(0)")
        a("s_mov_b64 s[92:93], exec")
        a("s_mov_b64 exec, s[84:85]")
        a(f"v_mov_b32 v{self.v}, s80")
        a("s_mov_b64 exec, s[92:93]")
        a("s_lshl_b64 s[84:85], s[84:85], 1")
    def flush(self, sWave):
        if not CFG.prof: return
        a = self.a
        self.stamp()
        a("s_memrealtime s[82:83]")
        a("s_load_dwordx2 s[86:87], s[0:1], 80")
        a("s_waitcnt lgkmcnt(0)")
        a(f"v_writelane_b32 v{self.v}, s82, 63")
        a.srd_off(88, 86, 87, PROF_OFF + self.k * (1 << 20), 1 << 20)
        a("s_lshl_b32 s85, s2, 3")
        a(f"s_add_u32 s85, s85, s{sWave}")
        a("s_lshl_b32 s85, s85, 8")
        a("s_mov_b64 exec, -1")
        a("v_mbcnt_lo_u32_b32 v0, -1, 0")
        a("v_mbcnt_hi_u32_b32 v0, -1, v0")
        a("v_lshlrev_b32 v0, 2, v0")
        a(f"buffer_store_dword v{self.v}, v0, s[88:91], s85 offen")

def code_prefetch(a, sS, vT, vL, name):
    if not CFG.codepf: return
    h = a.newlabel(name + "_pc")
    a(f"s_getpc_b64 s[{sS}:{sS+1}]")
    a.label(h)
    a(f"s_sub_u32 s{sS}, s{sS}, {h}-code_begin")
    a(f"s_subb_u32 s{sS+1}, s{sS+1}, 0")
    a(f"s_mov_b32 s{sS+2}, code_end-code_begin")
    a(f"s_mov_b32 s{sS+3}, 0x00020000")
    a(f"s_lshr_b32 s{sS+4}, s2, 3")
    a(f"s_lshl_b32 s{sS+4}, s{sS+4}, 13")
    a(f"v_lshlrev_b32 v{vT}, 7, v{vL}")
    a(f"buffer_load_dword v{vT+1}, v{vT}, s[{sS}:{sS+3}], s{sS+4} offen")

def prologue(a, name, ngrid):
    a.lines.append(".text")
    a.lines.append(f".globl {name}")
    a.lines.append(".p2align 8")
    a.lines.append(f".type {name},@function")
    a.label(name)
    a(f"s_cmp_ge_u32 s2, {ngrid}")
    a(f"s_cbranch_scc1 {name}_end")
    if CFG.hprof:
        k = {"ka": 0, "kb": 1, "kc": 2}[name[:2]]
        a(f"""s_cmp_lg_u32 s2, 0
        s_cbranch_scc1 {name}_hp
        s_memrealtime s[82:83]
        s_load_dwordx2 s[86:87], s[0:1], 80
        s_waitcnt lgkmcnt(0)""")
        a.srd_off(88, 86, 87, PROF_OFF, 4096)
        a(f"""v_mov_b32 v1, s82
        v_mov_b32 v2, 0
        buffer_store_dword v1, v2, s[88:91], 0 offen offset:{4*k} sc1
        s_waitcnt vmcnt(0)""")
        a.label(f"{name}_hp")

def hprof_end(a, name):
    if not CFG.hprof: return
    a(f"""s_cmp_lg_u32 s2, 0
    s_cbranch_scc1 {name}_hpe
    s_waitcnt vmcnt(0)
    s_memrealtime s[82:83]
    s_load_dwordx4 s[84:87], s[0:1], 72
    s_waitcnt lgkmcnt(0)""")
    a.srd_off(88, 86, 87, PROF_OFF, 4096)
    a.srd(92, 84, 85, 256)
    a(f"""v_mov_b32 v2, 0
    buffer_load_dwordx3 v[4:6], v2, s[88:91], 0 offen sc1
    v_mov_b32 v7, s82
    s_waitcnt vmcnt(0)
    v_sub_u32 v7, v7, v6
    v_sub_u32 v6, v6, v5
    v_sub_u32 v5, v5, v4
    buffer_store_dwordx4 v[4:7], v2, s[92:95], 0 offen""")
    a.label(f"{name}_hpe")

def cost(l):
    c = 0
    for x in l.split("\n"):
        c += 8 if x.startswith(TRANS) else 4
    return c

def spread(slots, fillers, base=None):
    base = [sum(cost(x) + (4 if x.startswith("v_mfma") else 0) for x in sl) for sl in slots]
    tot = sum(base) + sum(cost(f) for f in fillers)
    out = []; k = 0; cum = 0
    for i, sl in enumerate(slots):
        out += sl; cum += base[i]
        tgt = tot * (i + 1) / len(slots)
        while k < len(fillers) and cum + cost(fillers[k]) / 2 <= tgt:
            out.append(fillers[k]); cum += cost(fillers[k]); k += 1
    return out + fillers[k:]

def gen_KA():
    a = Asm(); N = "ka_kernel"
    X, FR, T = 112, 24, 16
    AC = [80, 48]
    W = AC[1]
    vL, vA0, vA1, vPn, vO8, vSt, vStO = 1, 2, 3, 4, 5, 6, 7
    vNm, vSc, vSum = 8, 9, 10
    S = W
    vX0, vX1, vX2, vX3, vSR, vSRs, vXw = W+8, W+9, W+10, W+11, W+12, W+16, W+20
    sX, sWI, sWQ, sZQ, sST, sDM = 12, 16, 20, 24, 28, 32
    sWave, sRb, sCg = 36, 37, 38
    sNz2, sNg, sN, sZ2s, sZ1m, sQm = 39, 40, 41, 42, 43, 44
    sU, sV, sUn, sMz2, sP8, sOb = 45, 46, 47, 48, 49, 50
    sMq = 52
    sDma, sDstep, sDvs = 54, 55, 56
    sDp, sDc, sDn = 57, 58, 59
    sBufN, sPw, sRot, sRw = 61, 62, 60, 51
    sDl, sOlo, sOhi, sOnes = 63, 64, 65, 66
    sXr = 68
    sT0, sT1, sT2, sSt, sP8i, sP8q, sXb, sXs = 72, 73, 74, 76, 77, 78, 75, 79
    UB = 73728; STG = 2 * UB
    RBL = CFG.ka_rbl
    prologue(a, N, 256)
    pf = Prof(a, 15, 0); pf.init()
    a("s_load_dwordx4 s[4:7], s[0:1], 0")
    a("s_load_dwordx4 s[8:11], s[0:1], 32")
    a("s_load_dwordx4 s[96:99], s[0:1], 72")
    a(f"v_and_b32 v{vL}, 63, v0")
    a(f"v_lshrrev_b32 v{T}, 6, v0")
    a(f"v_readfirstlane_b32 s{sWave}, v{T}")
    a(f"""s_and_b32 s{sT0}, s2, 7
    s_lshr_b32 s{sT1}, s2, 3
    s_and_b32 s{sRb}, s{sT0}, {(16>>RBL)-1}
    s_lshl_b32 s{sRb}, s{sRb}, {RBL}
    s_and_b32 s{sT2}, s{sT1}, {(1<<RBL)-1}
    s_add_u32 s{sRb}, s{sRb}, s{sT2}
    s_lshr_b32 s{sCg}, s{sT0}, {4-RBL}
    s_lshl_b32 s{sCg}, s{sCg}, {5-RBL}
    s_lshr_b32 s{sT2}, s{sT1}, {RBL}
    s_add_u32 s{sCg}, s{sCg}, s{sT2}
    s_and_b32 s{sRot}, s{sT1}, {(1<<RBL)-1}
    s_lshl_b32 s{sRot}, s{sRot}, 1
    s_add_u32 s{sRot}, s{sRot}, s{sT2}
    s_mul_i32 s{sRot}, s{sRot}, {CFG.ka_rot}
    s_sub_u32 s{sT2}, s{sRot}, 9
    s_min_u32 s{sRot}, s{sRot}, s{sT2}
    s_sub_u32 s{sT2}, s{sRot}, 9
    s_min_u32 s{sRot}, s{sRot}, s{sT2}
    v_lshrrev_b32 v{T}, 3, v{vL}
    v_and_b32 v{T+1}, 7, v{vL}""")
    unit_lists = f"""s_min_u32 s{sT0}, s{sCg}, 4
    s_lshl_b32 s{sZ2s}, s{sCg}, 1
    s_add_u32 s{sZ2s}, s{sZ2s}, s{sT0}
    s_add_u32 s{sZ2s}, s{sZ2s}, 36
    s_cmp_lt_u32 s{sCg}, 4
    s_cselect_b32 s{sNz2}, 3, 2
    s_max_u32 s{sT0}, s{sCg}, 4
    s_min_u32 s{sT0}, s{sT0}, 8
    s_sub_u32 s{sT0}, s{sT0}, 4
    s_lshl_b32 s{sZ1m}, s{sCg}, 1
    s_add_u32 s{sZ1m}, s{sZ1m}, s{sT0}
    s_sub_u32 s{sZ1m}, s{sZ1m}, s{sNz2}
    s_cmp_lt_u32 s{sCg}, 8
    s_cselect_b32 s{sNg}, 5, 4
    s_max_u32 s{sT0}, s{sCg}, 8
    s_sub_u32 s{sT0}, s{sT0}, 8
    s_max_u32 s{sT1}, s{sCg}, 13
    s_sub_u32 s{sT1}, s{sT1}, 13
    s_add_u32 s{sQm}, s{sCg}, s{sT0}
    s_add_u32 s{sQm}, s{sQm}, s{sT1}
    s_sub_u32 s{sQm}, s{sQm}, s{sNg}
    s_cmp_lt_u32 s{sCg}, 13
    s_cselect_b32 s{sN}, 6, 7"""
    a(f"s_cmp_ge_u32 s{sWave}, 4")
    a(f"s_cbranch_scc1 {N}_prod")
    a(f"""v_lshrrev_b32 v{T+2}, 4, v{vL}
    v_xor_b32 v{T+2}, v{T+2}, v{T+1}
    v_lshlrev_b32 v{T+2}, 4, v{T+2}
    v_mul_u32_u24 v{vX0}, 1152, v{T}
    v_add_u32 v{vX0}, v{vX0}, v{T+2}
    v_xor_b32 v{vX1}, 64, v{vX0}
    s_lshl_b32 s{sT0}, s{sRb}, 7
    s_lshl_b32 s{sT1}, s{sWave}, 5
    s_add_u32 s{sT0}, s{sT0}, s{sT1}
    s_mul_i32 s{sXr}, s{sT0}, 1152
    s_add_u32 s{sXr+1}, s{sXr}, 8192
    s_add_u32 s{sXr+2}, s{sXr}, 16384
    s_add_u32 s{sXr+3}, s{sXr}, 24576
    s_lshl_b32 s{sXb}, s{sWave}, 14
    s_add_u32 s{sXb}, s{sXb}, {UB}
    s_lshl_b32 s{sXs}, s{sWave}, 12
    s_add_u32 s{sXs}, s{sXs}, {STG}""")
    a("s_waitcnt lgkmcnt(0)")
    a.srd(sX, 4, 5, 2048 * 1152)
    a(f"s_lshl_b32 s{sRw}, s{sRot}, 7")
    def xload(j):
        a(f"v_add_u32 v{vX2}, s{sRw}, v{vX0}")
        a(f"v_add_u32 v{vX3}, s{sRw}, v{vX1}")
        if j < 4: a(f"s_add_u32 m0, s{sXb}, {j*4096}")
        elif j == 4: a(f"s_mov_b32 m0, s{sXs}")
        a(f"s_add_u32 s{sRw}, s{sRw}, 128")
        for rg in range(4):
            if j < 5:
                a(f"buffer_load_dwordx4 v{vX3 if rg&1 else vX2}, s[{sX}:{sX+3}], s{sXr+rg} offen offset:{rg*1024} {CFG.ka_x_aux} lds")
            else:
                a(f"buffer_load_dwordx4 {vr(X+16*j+4*rg,4)}, v{vX3 if rg&1 else vX2}, s[{sX}:{sX+3}], s{sXr+rg} offen offset:{rg*1024} {CFG.ka_x_aux}")
        a(f"s_cmp_eq_u32 s{sRw}, 1152")
        a(f"s_cselect_b32 s{sRw}, 0, s{sRw}")
    for j in range(CFG.ka_xfirst): xload(j)
    a.srd_off(sZQ, 98, 99, CFG.ws_base + ZQ_OFF, ZQ_SZ)
    a(unit_lists)
    a(f"""s_mov_b32 s{sDl}, {f32(DELTA)}
    s_mov_b32 s{sOlo}, 0x00003f80
    s_mov_b32 s{sOhi}, 0x3f800000
    s_mov_b32 s{sOnes}, 0x3f803f80""")
    def cparams():
        return [
            f"s_add_u32 s{sT0}, s{sZ2s}, s{sV}",
            f"s_add_u32 s{sT1}, s{sZ1m}, s{sV}",
            f"s_add_u32 s{sT2}, s{sQm}, s{sV}",
            f"s_add_u32 s{sT2}, s{sT2}, 72",
            f"s_cmp_lt_u32 s{sV}, s{sNz2}\n"
            f"s_cselect_b32 s{sUn}, s{sT0}, s{sT1}\n"
            f"s_cselect_b32 s{sMz2}, -1, 0",
            f"s_cmp_lt_u32 s{sV}, s{sNg}\n"
            f"s_cselect_b32 s{sUn}, s{sUn}, s{sT2}",
            f"s_lshl_b32 s{sDn}, s{sUn}, 18",
        ]
    def traddr(buf):
        return [f"v_and_b32 v{T+7}, s{sMz2}, v{vO8}",
                f"v_xor_b32 v{vA0}, v{T+7}, v{vPn}"] + \
               ([f"v_add_u32 v{vA0}, {UB}, v{vA0}"] if buf else []) + [f"v_xor_b32 v{vA1}, 64, v{vA0}"]
    a(f"s_mov_b32 s{sV}, 0")
    for l in cparams(): a(l)
    a(f"""v_lshrrev_b32 v{T+2}, 5, v{vL}
    v_lshlrev_b32 v{T+2}, 3, v{T+2}
    v_bfe_u32 v{T+3}, v{vL}, 2, 2
    v_add_u32 v{T+2}, v{T+2}, v{T+3}
    v_lshlrev_b32 v{vPn}, 7, v{T+2}
    v_lshrrev_b32 v{T+3}, 1, v{T+3}
    v_lshl_add_u32 v{vPn}, v{T+3}, 6, v{vPn}
    v_bfe_u32 v{T+3}, v{vL}, 4, 1
    v_lshl_add_u32 v{vPn}, v{T+3}, 5, v{vPn}
    v_and_b32 v{T+3}, 1, v{vL}
    v_lshl_add_u32 v{vPn}, v{T+3}, 4, v{vPn}
    v_lshlrev_b32 v{vO8}, 3, v{T+3}
    v_bfe_u32 v{T+3}, v{vL}, 1, 1
    v_lshl_add_u32 v{vPn}, v{T+3}, 3, v{vPn}""")
    for l in traddr(0): a(l)
    a(f"""v_and_b32 v{T+2}, 31, v{vL}
    v_bfe_u32 v{T+3}, v{vL}, 1, 3
    v_lshrrev_b32 v{T+4}, 5, v{vL}
    v_xor_b32 v{T+3}, v{T+3}, v{T+4}
    v_lshlrev_b32 v{T+3}, 4, v{T+3}
    v_lshl_add_u32 v{T+3}, v{T+2}, 7, v{T+3}
    v_add_u32 v{vSR}, s{sXb}, v{T+3}
    v_xor_b32 v{vSR+1}, 32, v{vSR}
    v_xor_b32 v{vSR+2}, 64, v{vSR}
    v_xor_b32 v{vSR+3}, 96, v{vSR}
    v_add_u32 v{vSRs}, s{sXs}, v{T+3}
    v_xor_b32 v{vSRs+1}, 32, v{vSRs}
    v_xor_b32 v{vSRs+2}, 64, v{vSRs}
    v_xor_b32 v{vSRs+3}, 96, v{vSRs}
    v_lshlrev_b32 v{vStO}, 3, v{vL}
    v_add_u32 v{vStO}, s{sXs}, v{vStO}
    s_lshl_b32 s{sT0}, s{sRb}, 7
    s_lshl_b32 s{sT1}, s{sWave}, 5
    s_add_u32 s{sT0}, s{sT0}, s{sT1}
    v_add_u32 v{vSt}, s{sT0}, v{T+2}
    v_lshlrev_b32 v{vSt}, 4, v{vSt}
    v_lshl_add_u32 v{vSt}, v{T+4}, 15, v{vSt}
    v_mov_b32 v{vSum}, 0
    v_mov_b32 v{vSum+1}, 0""")
    pf.stamp()
    def xstats(j):
        for r in range(16):
            x = X + 16*j + r
            q = S + 2*(r % 2)
            first = (j == 0 and r < 2)
            a(f"v_dot2_f32_bf16 v{q}, v{x}, s{sOnes}, {'0' if first else 'v%d' % q}")
            a(f"v_dot2_f32_bf16 v{q+1}, v{x}, v{x}, {'0' if first else 'v%d' % (q+1)}")
    a(f"v_lshlrev_b32 v{vXw}, 4, v{vL}")
    a(f"v_add_u32 v{vXw}, s{sXb}, v{vXw}")
    issued = CFG.ka_xfirst
    for j in range(9):
        a(f"s_waitcnt vmcnt({4*(issued-1-j)})")
        if j >= 5:
            for rg in range(4):
                a(f"ds_write_b128 v{vXw}, {vr(X+16*j+4*rg,4)} offset:{(j%5)*4096+rg*1024}")
        for i in range(4):
            if j % 5 < 4: a(f"ds_read_b128 {vr(X+16*j+4*i,4)}, v{vSR+i} offset:{(j%5)*4096}")
            else: a(f"ds_read_b128 {vr(X+16*j+4*i,4)}, v{vSRs+i}")
        if issued < 9:
            xload(issued); issued += 1
        if j > 0:
            a(f"s_waitcnt lgkmcnt({8 if j >= 5 else 4})")
            a.lines.append(".p2align 3")
            xstats(j-1)
    a("s_waitcnt lgkmcnt(0)")
    a.lines.append(".p2align 3")
    xstats(8)
    pf.stamp()
    a(f"""v_add_f32 v{S}, v{S}, v{S+2}
    v_add_f32 v{S+1}, v{S+1}, v{S+3}
    s_mov_b32 s{sT0}, {f32(-1.0/576)}
    s_mov_b32 s{sT1}, {f32(1.0/576)}
    s_mov_b32 s{sT2}, {f32(KSC)}
    v_mov_b32 v{S+2}, v{S}
    v_mov_b32 v{S+3}, v{S+1}
    v_permlane32_swap_b32 v{S}, v{S+2}
    v_permlane32_swap_b32 v{S+1}, v{S+3}
    v_add_f32 v{S}, v{S}, v{S+2}
    v_add_f32 v{S+1}, v{S+1}, v{S+3}
    v_mul_f32 v{vNm}, s{sT0}, v{S}
    v_mul_f32 v{S+1}, s{sT1}, v{S+1}
    v_fma_f32 v{S+1}, -v{vNm}, v{vNm}, v{S+1}
    v_max_f32 v{S+1}, 0, v{S+1}
    v_add_f32 v{S+1}, {f32(EPS)}, v{S+1}
    v_rsq_f32 v{S+1}, v{S+1}
    s_mov_b32 s{sU}, 0
    s_mov_b32 s{sDc}, s{sDn}
    s_mov_b32 s{sDp}, s{sDn}
    v_mul_f32 v{vSc}, s{sT2}, v{S+1}""")
    CT = [W, W+2, W+4, W+6]
    def center(kk):
        o = []
        for r in range(4):
            x = X + 4*kk + r
            o.append(f"v_dot2_f32_bf16 v{CT[r]}, v{x}, s{sOlo}, v{vNm}")
            o.append(f"v_dot2_f32_bf16 v{CT[r]+1}, v{x}, s{sOhi}, v{vNm}")
        for r in range(4):
            o.append(f"v_cvt_pk_bf16_f32 v{X+4*kk+r}, v{CT[r]}, v{CT[r]+1}")
        return o
    def center_plain(kk):
        o = []
        for r in range(4):
            x = X + 4*kk + r
            o += [f"v_lshlrev_b32 v{CT[r]}, 16, v{x}", f"v_and_b32 v{CT[r]+1}, 0xffff0000, v{x}",
                  f"v_add_f32 v{CT[r]}, v{vNm}, v{CT[r]}", f"v_add_f32 v{CT[r]+1}, v{vNm}, v{CT[r]+1}",
                  f"v_cvt_pk_bf16_f32 v{x}, v{CT[r]}, v{CT[r]+1}"]
        return o
    NPRE = CFG.ka_npre
    a.lines.append(".p2align 3")
    for kk in range(NPRE):
        for l in center(kk): a(l)
    pf.stamp()
    a("s_barrier")
    pf.stamp()

    def reads(kk, t):
        st = kk % 3
        off = (kk % 18) * 2048
        return [f"ds_read_b64_tr_b16 {vr(FR+8*st+4*t+2*h,2)}, v{vA1 if t else vA0} offset:{off+512*h}" for h in range(2)]
    def mfma(par, kk, t):
        st = kk % 3; acc = AC[par] + 16*t
        c = "0" if kk == 0 else vr(acc, 16)
        return f"v_mfma_f32_32x32x16_bf16 {vr(acc,16)}, {vr(FR+8*st+4*t,4)}, {vr(X+4*kk,4)}, {c}"
    def stores(E, m):
        if CFG.ka_nostore: return []
        return [f"s_add_u32 s{sSt}, s{sDp}, {2*m*OCT}",
                f"buffer_store_dwordx4 {vr(E+8*m,4)}, v{vSt}, s[{sZQ}:{sZQ+3}], s{sSt} offen {CFG.st_aux_a}"]
    def epi(kind, E):
        out = []
        if kind == "P":
            for e in range(32):
                out.append(f"v_mul_f32 v{E+e}, v{vSc}, v{E+e}")
                if e % 2 == 1 and e >= 3:
                    p = e - 3; out.append(f"v_cvt_pk_bf16_f32 v{E+(p//8)*8+(p%8)//2}, v{E+p}, v{E+p+1}")
            out.append(f"v_cvt_pk_bf16_f32 v{E+27}, v{E+30}, v{E+31}")
            return out
        def st(k, e):
            w = E + e; t = T + e % 6
            return [f"v_mul_f32 v{w}, v{vSc}, v{w}", f"v_fma_f32 v{t}, v{w}, v{w}, s{sDl}", f"v_mul_f32 v{t}, v{t}, v{w}",
                    f"v_exp_f32 v{t}, v{t}", f"v_add_f32 v{t}, 1.0, v{t}", f"v_rcp_f32 v{t}, v{t}", f"v_mul_f32 v{w}, v{t}, v{w}"][k]
        for i in range(32 + 7):
            for k in (6, 3, 0, 4, 1, 5, 2):
                e = i - k
                if 0 <= e < 32: out.append(st(k, e))
            e = i - 7
            if 0 <= e < 32 and e % 2 == 1:
                p = e - 1; out.append(f"v_cvt_pk_bf16_f32 v{E+(p//8)*8+(p%8)//2}, v{E+p}, v{E+p+1}")
        return out
    def stats(E):
        out = []
        for m in range(4):
            for i in range(4):
                b = E + 8*m
                out.append(f"v_dot2_f32_bf16 v{vSum}, v{b+i}, s{sOnes}, v{vSum}")
                out.append(f"v_dot2_f32_bf16 v{vSum+1}, v{b+i}, v{b+i}, v{vSum+1}")
        return out
    def body(kind, par):
        E = AC[1 - par]
        if kind == "F":
            for l in reads(0, 0) + reads(0, 1) + reads(1, 0) + reads(1, 1): a(l)
        a.label(f"{N}_{kind}{par}")
        def cbar():
            if kind in "FG": return ["s_barrier"]
            sk = a.newlabel(N + "_sk")
            return [f"s_cmp_eq_u32 s{sV}, s{sN}\ns_cbranch_scc1 {sk}\ns_barrier\n{sk}:"]
        slots = []
        for kk in range(0, 36):
            s0 = ["s_waitcnt lgkmcnt(4)", mfma(par, kk, 0)]
            s1 = [mfma(par, kk, 1)]
            if kk == 0: s0 += [f"s_add_u32 s{sV}, s{sU}, 1"]
            if kk == 1 and kind != "F": s0 += cbar()
            if kk == 34: s0 += cbar()
            if kk + 2 == 18:
                s0 += [f"v_add_u32 v{vA0}, {18*2048}, v{vA0}", f"v_add_u32 v{vA1}, {18*2048}, v{vA1}"]
            s0 += reads((kk+2) % 36, 0); s1 += reads((kk+2) % 36, 1)
            if kind != "F" and kk >= 36 - CFG.ka_stpos and kk < 40 - CFG.ka_stpos:
                s0 += stores(E, kk - (36 - CFG.ka_stpos))
            if kk == 33: s1 += traddr(1 - par)
            slots += [s0, s1]
        if kind == "F":
            ne = 2 * NPRE - 2
            out = spread(slots[:ne], sum([center_plain(kk) for kk in range(NPRE, 36)], []))
            out += interleave(slots[ne:-6], cparams()) + sum(slots[-6:], [])
        else:
            ep = epi(kind, E)
            ne = len(slots) - 2*CFG.ka_stpos + 4 if kind != "P" else 24
            out = slots[0] + spread(slots[1:ne], cparams() + ep) + sum(slots[ne:], [])
        for l in out:
            if CFG.prof > 1 and l in (mfma(par, 30, 0), mfma(par, 2, 0)): pf.stamp()
            a(l)
        if kind == "G":
            a.lines.append(".p2align 3")
            for l in stats(E): a(l)
            a(f"ds_write_b64 v{vStO}, {vr(vSum,2)}")
        a(f"s_mov_b32 s{sDp}, s{sDc}")
        a(f"s_mov_b32 s{sDc}, s{sDn}")
        a(f"s_mov_b32 s{sU}, s{sV}")
        pf.stamp()
        q = 1 - par
        if kind in "HP":
            a(f"s_cmp_eq_u32 s{sU}, s{sN}")
            a(f"s_cbranch_scc1 {N}_tail{par}")
        if kind == "F":
            a(f"s_branch {N}_G{q}")
        if kind == "G":
            a(f"s_cmp_le_u32 s{sU}, s{sNz2}")
            a(f"s_cbranch_scc1 {N}_G{q}")
            a(f"s_branch {N}_H{q}")
        if kind == "H":
            a(f"s_cmp_le_u32 s{sU}, s{sNg}")
            a(f"s_cbranch_scc1 {N}_H{q}")
            a(f"s_branch {N}_P{q}")
        if kind == "P":
            a(f"s_branch {N}_P{q}")
    body("F", 0)
    for kind in "GHP":
        for par in (1, 0): body(kind, par)
    for par in range(2):
        a.label(f"{N}_tail{par}")
        pf.stamp()
        a("s_nop 7")
        E = AC[par]
        ep = epi("P", E)
        for l in ep:
            a(l)
            for m in range(4):
                if l.startswith(f"v_cvt_pk_bf16_f32 v{E+8*m+3},"):
                    for x in stores(E, m): a(x)
        if CFG.prof:
            pf.stamp(); a("s_waitcnt vmcnt(0)")
        pf.flush(sWave)
        a("s_endpgm")
    a.label(f"{N}_prod")
    vD, vDin, vDq, vPi, vPq, vWo, vT = 2, 6, 7, 8, 9, 10, 12
    WU, P, MH, ML, C, TT = 128, 32, 64, 68, 72, 88
    sWS, sWP, sCP, sDB = 12, 24, 4, 8
    sPc = sXr + 2
    if CFG.ka_prio: a(f"s_setprio {CFG.ka_prio}")
    a(f"s_cmp_lg_u32 s{sWave}, 4")
    a(f"s_cbranch_scc1 {N}_nopf1")
    code_prefetch(a, 88, vT, vL, N)
    a.label(f"{N}_nopf1")
    if CFG.ka_xpf:
        a(f"""s_sub_u32 s{sT1}, s{sWave}, 4
        s_lshl_b32 s{sT1}, s{sT1}, 5
        s_lshl_b32 s{sT0}, s{sRb}, 7
        s_add_u32 s{sT0}, s{sT0}, s{sT1}
        s_mul_i32 s{sT0}, s{sT0}, 1152
        v_lshrrev_b32 v{vT}, 2, v{vL}
        v_mul_u32_u24 v{vT}, 1152, v{vT}
        v_and_b32 v{vT+1}, 3, v{vL}
        v_lshl_add_u32 v{vT}, v{vT+1}, 7, v{vT}
        s_add_u32 s{sT1}, s{sT0}, {16*1152}
        s_waitcnt lgkmcnt(0)""")
        a.srd(sX, 4, 5, 2048 * 1152)
        a(f"buffer_load_dword v{vT+1}, v{vT}, s[{sX}:{sX+3}], s{sT0} offen offset:640")
        a(f"buffer_load_dword v{vT+2}, v{vT}, s[{sX}:{sX+3}], s{sT1} offen offset:640")
    a(unit_lists)
    a(f"""s_sub_u32 s{sPw}, s{sWave}, 4
    s_and_b32 s{sPc}, s{sPw}, 1
    s_mov_b32 s{sP8i}, {8*9216}
    s_mov_b32 s{sP8q}, {8*3456}
    v_lshrrev_b32 v{T+2}, 2, v{vL}
    v_and_b32 v{T+2}, 4, v{T+2}
    v_xor_b32 v{T+2}, v{T+2}, v{T+1}
    v_lshlrev_b32 v{T+2}, 4, v{T+2}
    v_mul_u32_u24 v{vDin}, 9216, v{T}
    v_add_u32 v{vDin}, v{vDin}, v{T+2}
    v_mul_u32_u24 v{vDq}, 3456, v{T}
    v_add_u32 v{vDq}, v{vDq}, v{T+2}
    v_lshlrev_b32 v{vWo}, 12, v{T}
    v_lshl_add_u32 v{vWo}, v{T+1}, 4, v{vWo}
    s_and_b32 s{sT0}, s{sRb}, {(1<<RBL)-1}
    s_mul_i32 s{sT0}, s{sT0}, {576>>RBL}
    s_mul_i32 s{sT1}, s{sPw}, {144>>RBL}
    s_add_u32 s{sT0}, s{sT0}, s{sT1}
    v_min_u32 v{T+2}, {(144>>RBL)-1}, v{vL}
    v_add_u32 v{T+2}, s{sT0}, v{T+2}
    v_mul_u32_u24 v{vPi}, 9216, v{T+2}
    v_mul_u32_u24 v{vPq}, 3456, v{T+2}""")
    a("s_waitcnt lgkmcnt(0)")
    a.srd(sWI, 8, 9, 576 * 9216)
    a.srd(sWQ, 6, 7, 576 * 3456)
    a(f"s_mov_b32 s{sDM+3}, 0x00020000")
    a.srd(sWS, 10, 11, 2048 * 4096)
    a.srd_off(sWP, 98, 99, CFG.ws_base + WP_OFF, WP_SZ)
    a.srd_off(sST, 98, 99, CFG.ws_base + ST_OFF, ST_SZ)
    a.srd_off(sCP, 98, 99, CFG.ws_base + CP_OFF, CP_SZ)
    a.srd(sDB, 96, 97, 256)
    def pparams():
        a(f"""s_add_u32 s{sT0}, s{sZ2s}, s{sV}
        s_add_u32 s{sT1}, s{sZ1m}, s{sV}
        s_add_u32 s{sT2}, s{sQm}, s{sV}
        s_cmp_lt_u32 s{sV}, s{sNz2}
        s_cselect_b32 s{sUn}, s{sT0}, s{sT1}
        s_cmp_lt_u32 s{sV}, s{sNg}
        s_cselect_b32 s{sUn}, s{sUn}, s{sT2}
        s_cselect_b64 s[{sMq}:{sMq+1}], 0, -1
        s_cselect_b64 s[{sDM}:{sDM+1}], s[{sWI}:{sWI+1}], s[{sWQ}:{sWQ+1}]
        s_cselect_b32 s{sDM+2}, s{sWI+2}, s{sWQ+2}
        s_cselect_b32 s{sP8}, s{sP8i}, s{sP8q}
        s_lshl_b32 s{sUn}, s{sUn}, 7
        s_cmp_lt_u32 s{sV}, s{sN}
        s_cselect_b32 s{sUn}, s{sUn}, 0x7f000000""")
    def issue():
        pparams()
        a(f"""v_cndmask_b32 v{vD}, v{vDin}, v{vDq}, s[{sMq}:{sMq+1}]
        s_sub_u32 s{sDvs}, s{sP8}, 1024
        s_lshl_b32 s{sDstep}, s{sP8}, 1
        s_mul_i32 s{sDma}, s{sDstep}, s{sPw}
        s_add_u32 s{sUn}, s{sDma}, s{sUn}
        s_lshl_b32 s{sDstep}, s{sDstep}, 2
        s_mul_i32 s{sDma}, s{sDstep}, s{sRot}
        s_add_u32 s{sDma}, s{sDma}, s{sUn}
        s_mov_b32 s{sRw}, s{sRot}
        v_add_u32 v{vD+1}, s{sDvs}, v{vD}
        s_lshl_b32 s{sT0}, s{sPw}, 11
        s_add_u32 m0, s{sBufN}, s{sT0}
        s_sub_u32 s{sBufN}, {UB}, s{sBufN}
        s_add_u32 s{sV}, s{sV}, 1""")
        for i in range(9):
            for j in range(2):
                if CFG.ka_nodma: continue
                a(f"buffer_load_dwordx4 v{vD+j}, s[{sDM}:{sDM+3}], s{sDma} offen offset:{1024*j} lds")
            if i < 8:
                a(f"s_add_u32 m0, m0, 8192")
                a(f"s_add_u32 s{sDma}, s{sDma}, s{sDstep}")
                a(f"s_add_u32 s{sRw}, s{sRw}, 1")
                a(f"s_cmp_eq_u32 s{sRw}, 9")
                a(f"s_cselect_b32 s{sDma}, s{sUn}, s{sDma}")
    a(f"s_mov_b32 s{sV}, 0")
    a(f"s_mov_b32 s{sBufN}, 0")
    if CFG.ka_xbar >= 0: a("s_barrier")
    issue()
    def l2pf():
        pparams()
        a(f"v_cndmask_b32 v{vT}, v{vPi}, v{vPq}, s[{sMq}:{sMq+1}]")
        a(f"buffer_load_dword v14, v{vT}, s[{sDM}:{sDM+3}], s{sUn} offen {CFG.ka_pf_aux}")
    npf = 1 if CFG.ka_l2pf else 0
    if npf: l2pf()
    a(f"""s_lshl_b32 s{sXr}, s{sCg}, 19
    s_lshl_b32 s{sT0}, s{sRb}, 8
    s_add_u32 s{sXr}, s{sXr}, s{sT0}
    s_lshl_b32 s{sT0}, s{sPc}, 7
    s_add_u32 s{sXr}, s{sXr}, s{sT0}
    s_lshr_b32 s{sT0}, s{sPw}, 1
    s_lshl_b32 s{sT0}, s{sT0}, 18
    s_add_u32 s{sXr}, s{sXr}, s{sT0}
    s_mov_b32 s{sXr+1}, s{sXr}""")
    a(f"s_mov_b32 s{sOb}, 0")
    a(f"s_waitcnt vmcnt({npf})")
    pf.stamp()
    a("s_barrier")
    a.label(f"{N}_ploop")
    nopub = a.newlabel(N + "_nopub")
    a(f"s_sub_u32 s{sT0}, s{sV}, 2")
    a(f"s_cmp_lg_u32 s{sT0}, s{sNz2}")
    a(f"s_cbranch_scc1 {nopub}")
    a(f"s_cmp_lg_u32 s{sPw}, 0")
    a(f"s_cbranch_scc1 {nopub}")
    a(f"""v_lshrrev_b32 v{vT}, 4, v{vL}
    v_and_b32 v{vT+1}, 15, v{vL}
    v_lshlrev_b32 v{vT}, 12, v{vT}
    v_lshl_add_u32 v{vT}, v{vT+1}, 4, v{vT}
    v_add_u32 v{vT}, {STG}, v{vT}
    ds_read_b128 {vr(P,4)}, v{vT}
    ds_read_b128 {vr(P+4,4)}, v{vT} offset:256
    v_lshlrev_b32 v{vT+1}, 4, v{vL}
    s_lshl_b32 s{sT0}, s{sRb}, 4
    s_add_u32 s{sT0}, s{sT0}, s{sCg}
    s_lshl_b32 s{sT0}, s{sT0}, 10
    s_waitcnt lgkmcnt(0)""")
    for i in range(4): a(f"v_add_f32 v{P+i}, v{P+i}, v{P+4+i}")
    a(f"buffer_store_dwordx4 {vr(P,4)}, v{vT+1}, s[{sST}:{sST+3}], s{sT0} offen sc1")
    a(f"s_mov_b32 s{sOb}, 1")
    a.label(nopub)
    issue()
    nosig = a.newlabel(N + "_nosig")
    a(f"""s_cmp_lg_u32 s{sOb}, 1
    s_cbranch_scc1 {nosig}
    s_mov_b32 s{sOb}, 2
    s_lshl_b32 s{sT0}, s{sRb}, 4
    v_mov_b32 v{vT}, s{sT0}
    v_mov_b32 v{vT+1}, 1
    s_waitcnt vmcnt(18)
    s_mov_b64 exec, 1
    buffer_atomic_add v{vT+1}, v{vT}, s[{sDB}:{sDB+3}], 0 offen sc1
    s_mov_b64 exec, -1
    s_waitcnt vmcnt(1)""")
    a.label(nosig)
    if npf: l2pf()
    l1 = a.newlabel(N + "_l"); l2 = a.newlabel(N + "_l"); l3 = a.newlabel(N + "_l")
    a(f"s_cmp_lg_u32 s{sV}, {CFG.ka_wsp_slot+2}")
    a(f"s_cbranch_scc1 {l1}")
    for i in range(8):
        a(f"buffer_load_dwordx4 {vr(WU+8*i+4,4)}, v{vWo}, s[{sWS}:{sWS+3}], s{sXr+1} offen {CFG.ka_wsp_aux}")
        a(f"s_add_u32 s{sXr+1}, s{sXr+1}, 32768")
    a(f"s_waitcnt vmcnt({8+npf})")
    a(f"s_branch {l3}")
    a.label(l1)
    a(f"s_cmp_lg_u32 s{sV}, 6")
    a(f"s_cbranch_scc1 {l2}")
    a(f"s_waitcnt vmcnt({18+npf})")
    for i in range(8):
        for r in range(4):
            x = WU + 8*i + 4 + r
            a(f"v_lshlrev_b32 v{WU+8*i+2*r}, 16, v{x}")
            a(f"v_and_b32 v{WU+8*i+2*r+1}, 0xffff0000, v{x}")
    def poll(lbl_done, single):
        a(f"""buffer_load_dword v{vT+1}, v{vT}, s[{sDB}:{sDB+3}], 0 offen sc1
        s_waitcnt vmcnt(0)
        v_readfirstlane_b32 s{sT2}, v{vT+1}""")
    def stat_loads():
        a(f"""v_lshlrev_b32 v{vT}, 3, v{vL}
        s_lshl_b32 s{sT0}, s{sRb}, 14
        s_lshl_b32 s{sT1}, s{sPc}, 9
        s_add_u32 s{sT0}, s{sT0}, s{sT1}""")
        for i in range(16):
            a(f"buffer_load_dwordx2 {vr(P+2*i,2)}, v{vT}, s[{sST}:{sST+3}], s{sT0} offen offset:{(i%4)*1024} sc1")
            if i % 4 == 3: a(f"s_add_u32 s{sT0}, s{sT0}, 4096")
    a.label(l2)
    a(f"s_cmp_eq_u32 s{sOb}, 2")
    a(f"s_mov_b32 s{sOb}, 0")
    a(f"s_cbranch_scc1 {l3}")
    a(f"s_waitcnt vmcnt({npf})")
    a.label(l3)
    a("s_barrier")
    a(f"s_cmp_ge_u32 s{sV}, s{sN}")
    a(f"s_cbranch_scc1 {N}_noi6")
    a("s_barrier")
    a(f"s_cmp_lt_u32 s{sV}, 6")
    a(f"s_cbranch_scc1 {N}_ploop")
    pf.stamp()
    issue()
    a(f"""s_lshl_b32 s{sT0}, s{sRb}, 4
    v_mov_b32 v{vT}, s{sT0}""")
    poll(None, True)
    a(f"s_cmp_ge_u32 s{sT2}, 16")
    a(f"s_cselect_b32 s{sOb}, 1, 0")
    a(f"s_cbranch_scc0 {N}_b6")
    stat_loads()
    a.label(f"{N}_b6")
    a("s_barrier")
    a.label(f"{N}_noi6")
    a(f"s_cmp_eq_u32 s{sOb}, 1")
    a(f"s_cbranch_scc1 {N}_have")
    a(f"""s_lshl_b32 s{sT0}, s{sRb}, 4
    v_mov_b32 v{vT}, s{sT0}
    s_mov_b32 s{sT1}, 200000""")
    a.label(f"{N}_poll")
    poll(None, False)
    a(f"""s_sub_u32 s{sT1}, s{sT1}, 1
    s_cmp_eq_u32 s{sT1}, 0
    s_cbranch_scc1 {N}_polled
    s_cmp_ge_u32 s{sT2}, 16
    s_cbranch_scc1 {N}_polled
    s_sleep 4
    s_branch {N}_poll""")
    a.label(f"{N}_polled")
    stat_loads()
    a.label(f"{N}_have")
    pf.stamp()
    a(f"s_waitcnt vmcnt(0)")
    a(f"v_lshlrev_b32 v{vT}, 3, v{vL}")
    a(f"""s_lshl_b32 s{sT1}, s{sPw}, 9
    s_add_u32 s{sT1}, s{sT1}, {STG+4096+2048}
    v_add_u32 v{vT}, s{sT1}, v{vT}
    v_lshlrev_b32 v{vT+1}, 6, v{T+1}
    v_add_u32 v{vT+1}, s{sT1}, v{vT+1}
    s_mov_b32 s{sT0}, {f32(1.0/2304)}
    s_mov_b32 s{sT2}, {f32(1.0/abs(KSC))}""")
    for i in range(1, 16):
        a(f"v_add_f32 v{P}, v{P}, v{P+2*i}")
        a(f"v_add_f32 v{P+1}, v{P+1}, v{P+2*i+1}")
    a(f"""v_mul_f32 v{P}, s{sT0}, v{P}
    v_mul_f32 v{P+1}, s{sT0}, v{P+1}
    v_fma_f32 v{P+1}, -v{P}, v{P}, v{P+1}
    v_max_f32 v{P+1}, 0, v{P+1}
    v_add_f32 v{P+1}, {f32(EPS*KSC*KSC)}, v{P+1}
    v_rsq_f32 v{P+1}, v{P+1}
    v_mul_f32 v{P+1}, s{sT2}, v{P+1}
    ds_write_b64 v{vT}, {vr(P,2)}""")
    for q in range(4):
        a(f"ds_read_b128 {vr(P+4*q,4)}, v{vT+1} offset:{16*q}")
    a("s_waitcnt lgkmcnt(0)")
    pf.stamp()
    for i in range(8):
        for r in range(8): a(f"v_mul_f32 v{WU+8*i+r}, v{P+2*r+1}, v{WU+8*i+r}")
        for r in range(4): a(f"v_cvt_pk_bf16_f32 v{WU+8*i+r}, v{WU+8*i+2*r}, v{WU+8*i+2*r+1}")
        a(f"buffer_store_dwordx4 {vr(WU+8*i,4)}, v{vWo}, s[{sWP}:{sWP+3}], s{sXr} offen {CFG.st_aux_n}")
        a(f"s_add_u32 s{sXr}, s{sXr}, 32768")
    pf.stamp()
    for p in range(4): a(f"v_cvt_pk_bf16_f32 v{MH+p}, v{P+4*p}, v{P+4*p+2}")
    for p in range(4):
        a(f"v_lshlrev_b32 v{TT}, 16, v{MH+p}")
        a(f"v_and_b32 v{TT+1}, 0xffff0000, v{MH+p}")
        a(f"v_sub_f32 v{TT}, v{P+4*p}, v{TT}")
        a(f"v_sub_f32 v{TT+1}, v{P+4*p+2}, v{TT+1}")
        a(f"v_cvt_pk_bf16_f32 v{ML+p}, v{TT}, v{TT+1}")
    for i in range(0, 8, 2):
        for r in range(4):
            for q in range(2):
                a(f"v_dot2_f32_bf16 v{C+i+q}, v{WU+8*(i+q)+r}, v{MH+r}, {'0' if r==0 else 'v%d'%(C+i+q)}")
            for q in range(2):
                a(f"v_dot2_f32_bf16 v{C+i+q}, v{WU+8*(i+q)+r}, v{ML+r}, v{C+i+q}")
    for ctrl in ["quad_perm:[1,0,3,2]", "quad_perm:[2,3,0,1]", "row_half_mirror"]:
        for q in range(8):
            a(f"v_add_f32_dpp v{C+q}, v{C+q}, v{C+q} {ctrl} row_mask:0xf bank_mask:0xf")
    for i in range(1, 8):
        a(f"v_cmp_eq_u32 vcc, {i}, v{T+1}")
        a(f"v_cndmask_b32 v{C}, v{C}, v{C+i}, vcc")
    a(f"""v_lshlrev_b32 v{vT}, 7, v{T}
    v_lshl_add_u32 v{vT}, v{T+1}, 10, v{vT}
    s_lshl_b32 s{sT0}, s{sCg}, 14
    s_lshl_b32 s{sT1}, s{sRb}, 3
    s_add_u32 s{sT0}, s{sT0}, s{sT1}
    s_lshl_b32 s{sT1}, s{sPc}, 2
    s_add_u32 s{sT0}, s{sT0}, s{sT1}
    s_lshr_b32 s{sT1}, s{sPw}, 1
    s_lshl_b32 s{sT1}, s{sT1}, 13
    s_add_u32 s{sT0}, s{sT0}, s{sT1}
    buffer_store_dword v{C}, v{vT}, s[{sCP}:{sCP+3}], s{sT0} offen {CFG.st_aux_n}""")
    a(f"s_cmp_lg_u32 s{sPw}, 0")
    a(f"s_cbranch_scc1 {N}_nopf2")
    code_prefetch(a, 88, vT, vL, N)
    a.label(f"{N}_nopf2")
    if CFG.prof:
        pf.stamp(); a("s_waitcnt vmcnt(0)")
    pf.flush(sWave)
    a.label(f"{N}_end")
    a("s_endpgm")
    return a, kd(N, 256, 256, 102), (N, 256, 512, 163840)

class Attn:
    def __init__(self, a, sZQ, sUO, sT, sWave, ldsb, aux):
        self.a, self.sZQ, self.sUO, self.sT, self.sWave, self.ldsb, self.aux = a, sZQ, sUO, sT, sWave, ldsb, aux
        self.KV, self.Q, self.LG, self.PH, self.O, self.TM = 88, 184, 196, 204, 212, 230
        self.vQo, self.vRd, self.vDo = 14, 15, 236
    def loads(self):
        a, sT, sZQ, TM, vL = self.a, self.sT, self.sZQ, self.TM, 1
        a(f"""v_lshlrev_b32 v{self.vQo}, 4, v{vL}
        s_and_b32 s{sT}, s2, 7
        s_mul_i32 s{sT}, s{sT}, 9
        s_mul_i32 s{sT+1}, s{self.sWave}, 9
        s_lshr_b32 s{sT+1}, s{sT+1}, 2
        s_add_u32 s{sT}, s{sT}, s{sT+1}
        s_lshl_b32 s{sT}, s{sT}, 15
        s_lshr_b32 s{sT+1}, s2, 3
        s_lshl_b32 s{sT+1}, s{sT+1}, 10
        s_add_u32 s{sT}, s{sT}, s{sT+1}
        s_add_u32 s{sT+2}, s{sT}, {(576+72)*OCT-256}
        s_add_u32 s{sT+3}, s{sT}, {(576+144)*OCT-256}
        s_add_u32 s{sT+4}, s{sT}, {576*OCT}
        s_lshl_b32 s{sT+5}, s{self.sWave}, 13
        s_add_u32 s{sT+5}, s{sT+5}, {self.ldsb}""")
        for n in range(4):
            a(f"v_add_u32 v{TM}, {64*n}, v{vL}")
            a(f"v_mul_u32_u24 v{TM+1}, 3277, v{TM}")
            a(f"v_lshrrev_b32 v{TM+1}, 18, v{TM+1}")
            a(f"v_mul_u32_u24 v{TM+2}, 80, v{TM+1}")
            a(f"v_sub_u32 v{TM}, v{TM}, v{TM+2}")
            a(f"v_lshlrev_b32 v{TM}, 4, v{TM}")
            a(f"v_lshl_add_u32 v{self.vDo+n}, v{TM+1}, 15, v{TM}")
            if n: a(f"v_subrev_u32 v{self.vDo+n}, {1024*n}, v{self.vDo+n}")
    def issue(self):
        a, sT, sZQ = self.a, self.sT, self.sZQ
        a(f"s_mov_b32 m0, s{sT+5}")
        for n in range(4):
            a(f"buffer_load_dwordx4 v{self.vDo+n}, s[{sZQ}:{sZQ+3}], s{sT+2} offen offset:{1024*n} lds")
        for j in range(3):
            a(f"buffer_load_dwordx4 {vr(self.Q+4*j,4)}, v{self.vQo}, s[{sZQ}:{sZQ+3}], s{sT+4} offen")
            a(f"s_add_u32 s{sT+4}, s{sT+4}, {OCT}")
        a(f"s_add_u32 m0, s{sT+5}, 4096")
        for n in range(4):
            a(f"buffer_load_dwordx4 v{self.vDo+n}, s[{sZQ}:{sZQ+3}], s{sT+3} offen offset:{1024*n} lds")
        a(f"s_add_u32 s{sT+5}, s{sT+5}, 32")
        a(f"v_add_u32 v{self.vRd}, s{sT+5}, v{self.vQo}")
    def compute(self, do):
        a, sT, KV, Q, LG, PH, O, TM, vL = self.a, self.sT, self.KV, self.Q, self.LG, self.PH, self.O, self.TM, 1
        def rd(base):
            for w in range(8):
                for j in range(3):
                    a(f"ds_read_b128 {vr(KV+12*w+4*j,4)}, v{self.vRd} offset:{base+j*1280+224-32*w}")
        a("s_waitcnt vmcnt(4)")
        rd(0)
        a(f"s_lshr_b32 s{sT+4}, s2, 3")
        a(f"s_lshl_b32 s{sT+4}, s{sT+4}, 6")
        a(f"v_add_u32 v{TM}, s{sT+4}, v{vL}")
        a(f"v_mov_b32 v{TM+1}, 0xff800000")
        sc = (18 ** -0.5) * math.log2(math.e) / (KSC * KSC)
        a(f"s_mov_b32 s{sT+4}, {f32(sc)}")
        a(f"s_mov_b32 s{sT+5}, {f32(KSC)}")
        for w0 in range(0, 8, 2):
            a(f"s_waitcnt lgkmcnt({min(15, 24-3*(w0+2))})")
            for i in range(9):
                for w in (w0, w0+1):
                    c = "0" if i == 0 else f"v{LG+w}"
                    a(f"v_dot2_f32_bf16 v{LG+w}, v{Q+do+i}, v{KV+12*w+do+i}, {c}")
        a("s_waitcnt vmcnt(0)")
        rd(4096)
        for w in range(1, 8):
            a(f"v_cmp_le_u32 vcc, {2*w}, v{TM}")
            a(f"v_cndmask_b32 v{LG+w}, v{TM+1}, v{LG+w}, vcc")
        g = LG; m = TM + 2; s = TM + 3
        a(f"v_max3_f32 v{m}, v{g}, v{g+1}, v{g+2}")
        a(f"v_max3_f32 v{m}, v{m}, v{g+3}, v{g+4}")
        a(f"v_max3_f32 v{m}, v{m}, v{g+5}, v{g+6}")
        a(f"v_max_f32 v{m}, v{m}, v{g+7}")
        for w in range(8): a(f"v_sub_f32 v{g+w}, v{g+w}, v{m}")
        for w in range(8): a(f"v_mul_f32 v{g+w}, s{sT+4}, v{g+w}")
        for w in range(8): a(f"v_exp_f32 v{g+w}, v{g+w}")
        for w in range(8): a(f"v_cvt_pk_bf16_f32 v{g+w}, v{g+w}, 0")
        for w in range(8): a(f"v_lshlrev_b32 v{PH+w}, 16, v{g+w}")
        a(f"v_add_f32 v{s}, v{PH}, v{PH+1}")
        for w in range(2, 8): a(f"v_add_f32 v{s}, v{s}, v{PH+w}")
        a(f"v_mul_f32 v{s}, s{sT+5}, v{s}")
        a(f"v_rcp_f32 v{s}, v{s}")
        for w in range(8):
            if w % 2 == 0: a(f"s_waitcnt lgkmcnt({min(15, 24-3*(w+2))})")
            for d in range(9):
                c0 = "0" if w == 0 else f"v{O+2*d}"
                c1 = "0" if w == 0 else f"v{O+2*d+1}"
                a(f"v_dot2_f32_bf16 v{O+2*d}, v{KV+12*w+do+d}, v{LG+w}, {c0}")
                a(f"v_dot2_f32_bf16 v{O+2*d+1}, v{KV+12*w+do+d}, v{PH+w}, {c1}")
        for d in range(18): a(f"v_mul_f32 v{O+d}, v{s}, v{O+d}")
        for d in range(9): a(f"v_cvt_pk_bf16_f32 v{Q+do+d}, v{O+2*d}, v{O+2*d+1}")
        a(f"s_add_u32 s{sT}, s{sT}, {288*OCT}")
        for j in range(3):
            lo, hi = max(do, 4*j), min(do + 9, 4*j + 4)
            while lo < hi:
                n = 1 if lo % 2 else hi - lo
                sfx = {1: "dword", 2: "dwordx2", 3: "dwordx3", 4: "dwordx4"}[n]
                a(f"buffer_store_{sfx} {vr(Q+lo,n)}, v{self.vQo}, s[{self.sUO}:{self.sUO+3}], s{sT} offen offset:{4*(lo-4*j)} {self.aux}")
                lo += n
            if j < 2: a(f"s_add_u32 s{sT}, s{sT}, {OCT}")

def gen_KB():
    a = Asm(); N = "kb_kernel"
    NS = 4
    ZO = 16384
    def zb(j): return ZO + j*1024 + (j >> 1)*64 + (64 if j == 17 else 0)
    STG = zb(17) + 1024
    sWP, sZQ, sUO, sCP, sBS = 12, 16, 20, 24, 28
    sWave, sTb, sFb, sOdd, sT = 36, 37, 38, 39, 40
    sI, sSlot, sInc, sA, sZm, sZs, sStg = 50, 51, 52, 53, 54, 55, 56
    prologue(a, N, 256)
    pf = Prof(a, 247, 1); pf.init()
    a("s_load_dwordx4 s[4:7], s[0:1], 48")
    a("s_load_dwordx2 s[8:9], s[0:1], 16")
    a("s_load_dwordx2 s[10:11], s[0:1], 80")
    a("v_lshrrev_b32 v1, 6, v0")
    a(f"v_readfirstlane_b32 s{sWave}, v1")
    a(f"""s_and_b32 s{sT}, s2, 7
    s_lshr_b32 s{sT+1}, s2, 3
    s_and_b32 s{sTb}, s{sT}, 1
    s_lshl_b32 s{sTb}, s{sTb}, 3
    s_and_b32 s{sT+2}, s{sT+1}, 7
    s_add_u32 s{sTb}, s{sTb}, s{sT+2}
    s_lshr_b32 s{sFb}, s{sT}, 1
    s_lshl_b32 s{sFb}, s{sFb}, 2
    s_lshr_b32 s{sT+2}, s{sT+1}, 3
    s_add_u32 s{sFb}, s{sFb}, s{sT+2}
    s_and_b32 s{sOdd}, s{sFb}, 1
    s_mul_i32 s{sZm}, s{sFb}, 18
    s_lshl_b32 s{sT}, s{sOdd}, 1
    s_add_u32 s{sZs}, s{sZm}, 16
    s_lshl_b32 s{sT+1}, s{sOdd}, 4
    s_sub_u32 s{sZs}, s{sZs}, s{sT+1}
    s_add_u32 s{sZm}, s{sZm}, s{sT}
    s_lshl_b32 s{sZm}, s{sZm}, 15
    s_lshl_b32 s{sZs}, s{sZs}, 15
    v_and_b32 v1, 63, v0""")
    a(f"s_cmp_ge_u32 s{sWave}, 4")
    a(f"s_cbranch_scc1 {N}_prod")
    at = Attn(a, sZQ, sUO, 70, sWave, 3 * STG, CFG.st_aux_b)
    at.loads()
    a("s_waitcnt lgkmcnt(0)")
    a.srd_off(sZQ, 10, 11, CFG.ws_base + ZQ_OFF, ZQ_SZ)
    at.issue()
    if CFG.kb_abar: a("s_barrier")
    a.srd_off(sUO, 10, 11, CFG.ws_base + UO_OFF, UO_SZ)
    a.srd_off(sCP, 10, 11, CFG.ws_base + CP_OFF, CP_SZ)
    a.srd(sBS, 4, 5, 4096)
    ACC, FA, FB, Z1, T = 16, 88, 160, 176, 212
    vL, vZ0, vZ1, vZs, vB0, vB1, vE, vEs = 1, 2, 3, 4, 5, 6, 7, 8
    vBC, vCo, vBo = 10, 12, 13
    a(f"""v_lshrrev_b32 v{T}, 4, v{vL}
    v_and_b32 v{T+1}, 15, v{vL}
    v_bfe_u32 v{T+2}, v{vL}, 2, 2
    v_and_b32 v{T+3}, 3, v{vL}
    v_lshl_add_u32 v{T+4}, v{T}, 3, v{T+2}
    v_lshlrev_b32 v{T+4}, 4, v{T+4}
    v_lshrrev_b32 v{T+5}, 1, v{T+3}
    v_and_b32 v{T+6}, 1, v{T+3}
    v_lshl_add_u32 v{vZ0}, v{T+3}, 10, v{T+4}
    v_lshl_add_u32 v{vZ0}, v{T+5}, 6, v{vZ0}
    v_lshl_add_u32 v{vZ0}, v{T+6}, 3, v{vZ0}
    v_xor_b32 v{vZ1}, 8, v{vZ0}
    v_mul_u32_u24 v{vZs}, 1088, v{T+5}
    v_add_u32 v{vZs}, v{vZs}, v{T+4}
    v_xor_b32 v{T+6}, v{T+6}, v{T+5}
    v_lshl_add_u32 v{vZs}, v{T+6}, 3, v{vZs}
    s_lshl_b32 s{sT}, s{sWave}, 5
    v_add_u32 v{T+7}, s{sT}, v{T+1}
    v_and_b32 v{T+8}, 7, v{vL}
    v_xor_b32 v{T+8}, v{T+8}, v{T}
    v_lshlrev_b32 v{T+8}, 4, v{T+8}
    v_lshl_add_u32 v{vB0}, v{T+7}, 7, v{T+8}
    v_xor_b32 v{vB1}, 64, v{vB0}
    s_lshl_b32 s{sT+1}, s{sTb}, 7
    v_add_u32 v{T+7}, s{sT+1}, v{T+7}
    v_lshlrev_b32 v{vE}, 4, v{T+7}
    v_lshrrev_b32 v{T+8}, 1, v{T}
    v_lshl_add_u32 v{vEs}, v{T+8}, 15, v{vE}
    v_and_b32 v{T+8}, 1, v{T}
    v_lshl_add_u32 v{vEs}, v{T+8}, 3, v{vEs}
    v_lshl_add_u32 v{vE}, v{T}, 15, v{vE}
    v_lshlrev_b32 v{vCo}, 7, v{T+7}
    v_lshl_add_u32 v{vCo}, v{T}, 5, v{vCo}
    v_lshlrev_b32 v{vBo}, 1, v{T+7}""")
    CPR = 228
    def eloads():
        o = []
        for tt in range(2):
            for q in range(2):
                o.append(f"buffer_load_dwordx4 {vr(T+8*tt+4*q,4)}, v{vCo}, s[{sCP}:{sCP+3}], 0 offen offset:{2048*tt+16*q}")
            o.append(f"buffer_load_ushort v{CPR+8+tt}, v{vBo}, s[{sBS}:{sBS+3}], 0 offen offset:{32*tt}")
        o.append(f"s_mov_b32 s{sT}, s{sZm}")
        for i in range(4):
            for tt in range(2):
                o.append(f"buffer_load_dwordx4 {vr(Z1+8*i+4*tt,4)}, v{vE}, s[{sZQ}:{sZQ+3}], s{sT} offen offset:{256*tt}")
            o.append(f"s_add_u32 s{sT}, s{sT}, {4*OCT}")
        for tt in range(2):
            o.append(f"buffer_load_dwordx2 {vr(Z1+32+2*tt,2)}, v{vEs}, s[{sZQ}:{sZQ+3}], s{sZs} offen offset:{256*tt}")
        return o
    for i in range(72): a(f"v_mov_b32 v{ACC+i}, 0")
    AD = {vB0: 240, vB1: 241, vZ0: 242, vZ1: 243, vZs: 244}
    for r in (vZ0, vZ1, vZs): a(f"v_add_u32 v{r}, {ZO}, v{r}")
    for r, r2 in AD.items(): a(f"v_add_u32 v{r2}, {2*STG}, v{r}")
    def reads(slot, h, st):
        R = (lambda r: AD[r]) if slot >= 2 else (lambda r: r)
        so = (slot & 1) * STG
        out = [f"ds_read_b128 {vr(FB+8*st+4*tt,4)}, v{R(vB1 if h else vB0)} offset:{so+2048*tt}" for tt in range(2)]
        for j in range(9):
            for rd in range(2):
                if j < 8:
                    out.append(f"ds_read_b64_tr_b16 {vr(FA+36*st+4*j+2*rd,2)}, v{R(vZ1 if j&1 else vZ0)} offset:{so+zb(4*(j>>1))-ZO+512*h+64*rd}")
                else:
                    out.append(f"ds_read_b64_tr_b16 {vr(FA+36*st+4*j+2*rd,2)}, v{R(vZs)} offset:{so+zb(16)-ZO+512*h+64*rd}")
        return out
    def phase(st, rds):
        out = []; k = 0; lastw = None
        for j in range(9):
            for tt in range(2):
                if tt == 0:
                    if j % 2 == 0:
                        jj = min(j + 1, 8)
                        out.append(f"s_waitcnt lgkmcnt({min(15, 19-(3+2*jj)+k)})")
                if not CFG.kb_nomfma: out.append(f"v_mfma_f32_16x16x32_bf16 {vr(ACC+8*j+4*tt,4)}, {vr(FA+36*st+4*j,4)}, {vr(FB+8*st+4*tt,4)}, {vr(ACC+8*j+4*tt,4)}")
                n = 2 if (j == 1) else 1
                for _ in range(n):
                    if k < len(rds): out.append(rds[k]); k += 1
        return out
    el = eloads()
    groups = [el[:7], el[7:13], el[13:19], el[19:]]
    a(f"s_mov_b32 s{sI}, 8")
    pf.stamp()
    for w in range(4):
        if w < 3:
            a(f"s_cmp_lg_u32 s{sWave}, {w}")
            a(f"s_cbranch_scc1 {N}_at{w+1}")
        at.compute(w)
        if w < 3:
            a(f"s_branch {N}_atd")
            a.label(f"{N}_at{w+1}")
    a.label(f"{N}_atd")
    pf.stamp()
    a("s_barrier")
    pf.stamp()
    for l in reads(0, 0, 0): a(l)
    a.lines.append(".p2align 6")
    a.label(f"{N}_loop")
    for slot in range(4):
        for l in phase(0, reads(slot, 1, 1)): a(l)
        if slot == 3:
            a(f"s_sub_u32 s{sI}, s{sI}, 1")
        a("s_barrier")
        if CFG.prof > 1: pf.stamp()
        ph = phase(1, reads((slot + 1) % 4, 0, 0))
        sk = a.newlabel(N + "_sk")
        for i, l in enumerate(ph):
            a(l)
            if i == 4:
                a(f"s_cmp_lg_u32 s{sI}, {CFG.kb_eit - (1 if slot == 3 else 0)}")
                a(f"s_cbranch_scc1 {sk}")
                for x in groups[slot]: a(x)
                a.label(sk)
    a(f"s_cmp_lg_u32 s{sI}, 0")
    a(f"s_cbranch_scc1 {N}_loop")
    pf.stamp()
    a("s_waitcnt vmcnt(0)")
    a(f"s_mov_b32 s{sT}, {f32(1.0/KSC)}")
    for tt in range(2):
        c = CPR + 4*tt
        p = T + 8*tt
        a(f"v_add_f32 v{c}, v{p}, v{p+1}")
        for q in range(2, 8): a(f"v_add_f32 v{c}, v{c}, v{p+q}")
        a(f"v_mov_b32 v{c+1}, v{c}")
        a(f"v_permlane16_swap_b32 v{c}, v{c+1}")
        a(f"v_add_f32 v{c}, v{c}, v{c+1}")
        a(f"v_mov_b32 v{c+1}, v{c}")
        a(f"v_permlane32_swap_b32 v{c}, v{c+1}")
        a(f"v_add_f32 v{c}, v{c}, v{c+1}")
        a(f"v_lshlrev_b32 v{c+2}, 16, v{CPR+8+tt}")
        a(f"v_fma_f32 v{vBC+tt}, v{c+2}, s{sT}, -v{c}")
    a(f"s_mov_b32 s{sT}, s{sZm}")
    for i in range(5):
        for tt in range(2):
            n = 4 if i < 4 else 2
            z = Z1 + 8*i + n*tt
            for r in range(n):
                j = 2*i + (r >> 1)
                ac = ACC + 8*j + 4*tt + 2*(r & 1)
                t = T + 4*(r % 2)
                a(f"v_add_f32 v{ac}, v{vBC+tt}, v{ac}")
                a(f"v_add_f32 v{ac+1}, v{vBC+tt}, v{ac+1}")
                a(f"v_lshlrev_b32 v{t}, 16, v{z+r}")
                a(f"v_and_b32 v{t+1}, 0xffff0000, v{z+r}")
                a(f"v_mul_f32 v{t}, v{t}, v{ac}")
                a(f"v_mul_f32 v{t+1}, v{t+1}, v{ac+1}")
                a(f"v_cvt_pk_bf16_f32 v{z+r}, v{t}, v{t+1}")
            if i < 4:
                a(f"buffer_store_dwordx4 {vr(z,4)}, v{vE}, s[{sUO}:{sUO+3}], s{sT} offen offset:{256*tt} {CFG.st_aux_b}")
            else:
                a(f"buffer_store_dwordx2 {vr(z,2)}, v{vEs}, s[{sUO}:{sUO+3}], s{sZs} offen offset:{256*tt} {CFG.st_aux_b}")
        a(f"s_add_u32 s{sT}, s{sT}, {4*OCT}")
    if CFG.prof:
        pf.stamp(); a("s_waitcnt vmcnt(0)")
    pf.flush(sWave)
    a("s_endpgm")
    a.label(f"{N}_prod")
    a("s_waitcnt lgkmcnt(0)")
    a.srd_off(sWP, 10, 11, CFG.ws_base + WP_OFF, WP_SZ)
    a.srd_off(sZQ, 10, 11, CFG.ws_base + ZQ_OFF, ZQ_SZ)
    vA, vZ = 2, 3
    a(f"""v_lshrrev_b32 v4, 3, v1
    v_and_b32 v5, 7, v1
    v_xor_b32 v5, v5, v4
    v_lshlrev_b32 v5, 4, v5
    v_lshl_add_u32 v{vA}, v4, 12, v5
    v_lshlrev_b32 v{vZ}, 4, v1
    s_lshl_b32 s{sA}, s{sTb}, 19
    s_add_u32 s{sZm}, s{sZm}, {288*OCT}
    s_add_u32 s{sZs}, s{sZs}, {288*OCT}
    s_mov_b32 s{sSlot}, 0""")
    items = [("A", i) for i in range(16)] + [("Z", j) for j in range(18)]
    def issue(p):
        out = []
        for kind, i in items[17*p:17*p+17]:
            if CFG.kb_nodma: continue
            if kind == "A":
                out.append(f"s_add_u32 m0, s{sSlot}, {i*1024}")
                out.append(f"s_add_u32 s{sT}, s{sA}, {i*8*4096}")
                out.append(f"buffer_load_dwordx4 v{vA}, s[{sWP}:{sWP+3}], s{sT} offen lds")
            else:
                out.append(f"s_add_u32 m0, s{sSlot}, {zb(i)}")
                out.append(f"s_add_u32 s{sT}, s{sZm if i < 16 else sZs}, {(i if i < 16 else i-16)*OCT}")
                out.append(f"buffer_load_dwordx4 v{vZ}, s[{sZQ}:{sZQ+3}], s{sT} offen lds")
        out += [f"s_add_u32 s{sA}, s{sA}, 128", f"s_add_u32 s{sZm}, s{sZm}, 1024", f"s_add_u32 s{sZs}, s{sZs}, 1024",
                f"s_add_u32 s{sSlot}, s{sSlot}, {STG}", f"s_cmp_eq_u32 s{sSlot}, {NS*STG}", f"s_cselect_b32 s{sSlot}, 0, s{sSlot}"]
        return out
    for p in range(2):
        if p == 0:
            a(f"s_cmp_eq_u32 s{sWave}, 5")
            a(f"s_cbranch_scc1 {N}_prod1")
        else:
            a.label(f"{N}_prod1")
        for st in range(3):
            if CFG.kb_abar and st == CFG.kb_abar - 1: a("s_barrier")
            for l in issue(p): a(l)
        a("s_waitcnt vmcnt(34)")
        a("s_barrier")
        a(f"s_mov_b32 s{sI}, 29")
        a.label(f"{N}_ploop{p}")
        a("s_waitcnt vmcnt(17)")
        a("s_barrier")
        for l in issue(p): a(l)
        a(f"s_sub_u32 s{sI}, s{sI}, 1")
        a(f"s_cmp_lg_u32 s{sI}, 0")
        a(f"s_cbranch_scc1 {N}_ploop{p}")
        a("s_waitcnt vmcnt(17)")
        a("s_barrier")
        a("s_waitcnt vmcnt(0)")
        a("s_barrier")
        if CFG.kb_pf:
            a.srd(60, 6, 7, 2304 * 1152)
            a(f"s_mul_i32 s{sT+1}, s2, {81*128}")
            if p == 0:
                a(f"v_lshlrev_b32 v4, 7, v1")
                a(f"buffer_load_dword v5, v4, s[60:63], s{sT+1} offen")
            else:
                a.srd(64, 8, 9, 576 * 1152)
                a(f"s_add_u32 s{sT+1}, s{sT+1}, 8192")
                a(f"s_mul_i32 s{sT+2}, s2, {21*128}")
                a(f"v_min_u32 v4, 20, v1")
                a(f"v_lshlrev_b32 v4, 7, v4")
                a(f"buffer_load_dword v5, v4, s[60:63], s{sT+1} offen")
                a(f"buffer_load_dword v6, v4, s[64:67], s{sT+2} offen")
        if p == 0: code_prefetch(a, 68, 6, 1, N)
        a("s_endpgm")
    a.label(f"{N}_end")
    a("s_endpgm")
    return a, kd(N, 248, 248), (N, 256, 384, NS * STG)

def gen_KC():
    a = Asm(); N = "kc_kernel"
    NS = 9
    sUO, sWO, sWA, sX, sOUT, sDM = 12, 16, 20, 24, 28, 32
    sWave, sRb, sCg, sT = 36, 37, 38, 40
    sI, sU, sW = 50, 51, 52
    prologue(a, N, 234)
    pf = Prof(a, 247, 2); pf.init()
    a("s_load_dwordx2 s[4:5], s[0:1], 0")
    a("s_load_dwordx2 s[6:7], s[0:1], 16")
    a("s_load_dwordx4 s[8:11], s[0:1], 56")
    a("s_load_dwordx2 s[60:61], s[0:1], 80")
    a("v_lshrrev_b32 v1, 6, v0")
    a(f"v_readfirstlane_b32 s{sWave}, v1")
    a(f"""s_and_b32 s{sT}, s2, 7
    s_lshr_b32 s{sT+1}, s2, 3
    s_mul_i32 s{sT+2}, s{sT}, 29
    s_min_u32 s{sT}, s{sT}, 2
    s_add_u32 s{sT+2}, s{sT+2}, s{sT}
    s_add_u32 s{sT+2}, s{sT+2}, s{sT+1}
    s_mul_i32 s{sRb}, s{sT+2}, 7282
    s_lshr_b32 s{sRb}, s{sRb}, 16
    s_mul_i32 s{sT}, s{sRb}, 9
    s_sub_u32 s{sCg}, s{sT+2}, s{sT}
    v_and_b32 v1, 63, v0""")
    a("s_waitcnt lgkmcnt(0)")
    a.srd_off(sUO, 60, 61, CFG.ws_base + UO_OFF, UO_SZ)
    a.srd(sWO, 8, 9, 2304 * 1152)
    a.srd(sWA, 6, 7, 576 * 1152)
    a.srd(sX, 4, 5, 2048 * 1152)
    a.srd(sOUT, 10, 11, 2048 * 1152)
    a(f"s_cmp_ge_u32 s{sWave}, 5")
    a(f"s_cbranch_scc1 {N}_prod")
    a(f"s_mul_i32 s{sT}, s{sRb}, 5")
    a(f"s_add_u32 s{sT}, s{sT}, s{sWave}")
    a(f"s_cmp_ge_u32 s{sT}, 128")
    a(f"s_cbranch_scc1 {N}_end")
    ACC, SV, FA, UF, XR, T = 16, 32, 48, 144, 216, 224
    vL, vU, vA, vXo, vA8 = 1, 2, 4, 3, 8
    a(f"""v_lshrrev_b32 v{T}, 4, v{vL}
    v_and_b32 v{T+1}, 15, v{vL}
    s_lshl_b32 s{sT}, s{sT}, 4
    v_add_u32 v{T+2}, s{sT}, v{T+1}
    v_lshlrev_b32 v{vU}, 4, v{T+2}
    v_lshl_add_u32 v{vU}, v{T}, 15, v{vU}
    s_mov_b32 s{sU}, 0""")
    def uload(slot):
        return [f"buffer_load_dwordx4 {vr(UF+4*slot,4)}, v{vU}, s[{sUO}:{sUO+3}], s{sU} offen",
                f"s_add_u32 s{sU}, s{sU}, {4*OCT}"]
    for s_ in range(16):
        for l in uload(s_): a(l)
    a(f"""v_mul_u32_u24 v{vXo}, 1152, v{T+2}
    v_and_b32 v{T+3}, 1, v{T}
    v_lshl_add_u32 v{vXo}, v{T+3}, 5, v{vXo}
    v_lshrrev_b32 v{T+3}, 1, v{T}
    v_lshl_add_u32 v{vXo}, v{T+3}, 4, v{vXo}
    s_lshl_b32 s{sT+1}, s{sCg}, 7
    v_bfe_u32 v{T+3}, v{vL}, 2, 2
    v_lshl_add_u32 v{T+4}, v{T}, 3, v{T+3}
    v_lshlrev_b32 v{T+4}, 7, v{T+4}
    v_and_b32 v{T+5}, 3, v{vL}
    v_lshl_add_u32 v{T+4}, v{T+5}, 3, v{T+4}
    v_lshrrev_b32 v{T+3}, 1, v{T+3}
    v_and_b32 v{T+5}, 1, v{T}
    v_lshl_add_u32 v{T+3}, v{T+5}, 1, v{T+3}
    v_lshl_add_u32 v{vA}, v{T+3}, 5, v{T+4}
    v_xor_b32 v{vA+1}, 32, v{vA}
    v_xor_b32 v{vA+2}, 64, v{vA}
    v_xor_b32 v{vA+3}, 96, v{vA}""")
    for j in range(4): a(f"v_add_u32 v{vA8+j}, {8*8192}, v{vA+j}")
    for i in range(16): a(f"v_mov_b32 v{ACC+i}, 0")
    def reads(st):
        st %= 9
        return [f"ds_read_b64_tr_b16 {vr(FA+32*(st%3)+16*h+4*j+2*rd,2)}, v{(vA8 if st == 8 else vA)+j} offset:{(st%8)*8192+4096*h+512*rd}"
                for h in range(2) for j in range(4) for rd in range(2)]
    a(f"s_mov_b32 s{sI}, 5")
    pf.stamp()
    a("s_barrier")
    for l in reads(0): a(l)
    a("s_waitcnt lgkmcnt(0)")
    a.lines.append(".p2align 6")
    a.label(f"{N}_loop")
    for st in range(9):
        a("s_barrier")
        rd = reads(st + 1)
        k = 0
        for h in range(2):
            ks = 2*st + h
            a(f"s_waitcnt vmcnt({15})")
            for j in range(4):
                if CFG.kc_test & 1: continue
                a(f"v_mfma_f32_16x16x32_bf16 {vr(ACC+4*j,4)}, {vr(FA+32*(st%3)+16*h+4*j,4)}, {vr(UF+4*ks,4)}, {vr(ACC+4*j,4)}")
                for _ in range(3):
                    if k < 16: a(rd[k]); k += 1
            if not CFG.kc_test & 2:
                for l in uload((ks + 16) % 18): a(l)
        a("s_waitcnt lgkmcnt(0)")
    pf.stamp()
    a(f"s_sub_u32 s{sI}, s{sI}, 1")
    a(f"s_cmp_eq_u32 s{sI}, 0")
    a(f"s_cbranch_scc1 {N}_epi")
    a(f"s_cmp_lg_u32 s{sI}, 1")
    a(f"s_cbranch_scc1 {N}_loop")
    for p in range(2):
        a(f"buffer_load_dwordx4 {vr(XR+4*p,4)}, v{vXo}, s[{sX}:{sX+3}], s{sT+1} offen offset:{64*p}")
    a("s_nop 5")
    for i in range(16):
        a(f"v_mov_b32 v{SV+i}, v{ACC+i}")
    for i in range(16):
        a(f"v_mov_b32 v{ACC+i}, 0")
    a(f"s_branch {N}_loop")
    a.label(f"{N}_epi")
    a(f"s_mov_b32 s{sT}, {f32(-math.log2(math.e))}")
    for i in range(16): a(f"v_mul_f32 v{T+i}, s{sT}, v{SV+i}")
    for i in range(16): a(f"v_exp_f32 v{T+i}, v{T+i}")
    for i in range(16): a(f"v_add_f32 v{T+i}, 1.0, v{T+i}")
    for i in range(16): a(f"v_rcp_f32 v{T+i}, v{T+i}")
    for i in range(16): a(f"v_mul_f32 v{SV+i}, v{SV+i}, v{T+i}")
    for i in range(16): a(f"v_mul_f32 v{SV+i}, v{SV+i}, v{ACC+i}")
    for p in range(2):
        x = XR + 4*p
        a(f"v_permlane16_swap_b32 v{x}, v{x+2}")
        a(f"v_permlane16_swap_b32 v{x+1}, v{x+3}")
        for r in range(4):
            s = SV + 8*p + 2*r
            a(f"v_lshlrev_b32 v{T}, 16, v{x+r}")
            a(f"v_and_b32 v{T+1}, 0xffff0000, v{x+r}")
            a(f"v_add_f32 v{T}, v{T}, v{s}")
            a(f"v_add_f32 v{T+1}, v{T+1}, v{s+1}")
            a(f"v_cvt_pk_bf16_f32 v{x+r}, v{T}, v{T+1}")
        a(f"v_permlane16_swap_b32 v{x}, v{x+2}")
        a(f"v_permlane16_swap_b32 v{x+1}, v{x+3}")
        a(f"buffer_store_dwordx4 {vr(x,4)}, v{vXo}, s[{sOUT}:{sOUT+3}], s{sT+1} offen offset:{64*p}")
    if CFG.prof:
        pf.stamp(); a("s_waitcnt vmcnt(0)")
    pf.flush(sWave)
    hprof_end(a, N)
    a("s_endpgm")
    a.label(f"{N}_prod")
    vD = 2
    a(f"""v_lshrrev_b32 v8, 3, v1
    v_and_b32 v9, 7, v1
    v_lshrrev_b32 v10, 3, v1
    v_and_b32 v10, 2, v10
    v_xor_b32 v9, v9, v10
    v_lshlrev_b32 v9, 4, v9
    v_mul_u32_u24 v{vD}, 1152, v8
    v_add_u32 v{vD}, v{vD}, v9
    v_xor_b32 v{vD+1}, 64, v{vD}
    v_add_u32 v{vD+1}, {8*1152-1024}, v{vD+1}
    v_add_u32 v{vD+2}, {2*(8*1152-1024)}, v{vD}
    v_add_u32 v{vD+3}, {2*(8*1152-1024)}, v{vD+1}
    s_sub_u32 s{sT}, s{sWave}, 5
    s_mul_i32 s{sW}, s{sT}, {32*1152}
    s_lshl_b32 s{sT+1}, s{sCg}, 7
    s_add_u32 s{sW}, s{sW}, s{sT+1}
    s_mov_b32 s{sT+3}, s{sW}
    s_lshl_b32 s{sT+2}, s{sT}, 12
    s_mov_b32 s{sDM}, s{sWO}
    s_mov_b32 s{sDM+1}, s{sWO+1}
    s_mov_b32 s{sDM+2}, s{sWO+2}
    s_mov_b32 s{sDM+3}, 0x00020000
    s_mov_b32 s{sU}, 0""")
    a(f"s_mov_b32 s{sT+4}, s{sT+2}")
    def issue():
        out = [f"s_mov_b32 m0, s{sT+4}",
               f"s_add_u32 s{sT+4}, s{sT+4}, 8192"]
        if not CFG.kc_test & 4: out += [f"buffer_load_dwordx4 v{vD+j}, s[{sDM}:{sDM+3}], s{sW} offen offset:{1024*j} lds" for j in range(4)]
        out += [f"s_add_u32 s{sW}, s{sW}, {64*1152}",
                f"s_cmp_ge_u32 s{sT+4}, {NS*8192}",
                f"s_cselect_b32 s{sT+4}, s{sT+2}, s{sT+4}",
                f"s_add_u32 s{sU}, s{sU}, 1",
                f"s_cmp_eq_u32 s{sU}, 36",
                f"s_cselect_b64 s[{sDM}:{sDM+1}], s[{sWA}:{sWA+1}], s[{sDM}:{sDM+1}]",
                f"s_cselect_b32 s{sDM+2}, s{sWA+2}, s{sDM+2}",
                f"s_cselect_b32 s{sW}, s{sT+3}, s{sW}"]
        return out
    for st in range(9):
        for l in issue(): a(l)
    a("s_waitcnt vmcnt(32)")
    a("s_barrier")
    a(f"s_mov_b32 s{sI}, 36")
    a.label(f"{N}_ploop")
    a("s_waitcnt vmcnt(28)")
    a("s_barrier")
    for l in issue(): a(l)
    a(f"s_sub_u32 s{sI}, s{sI}, 1")
    a(f"s_cmp_lg_u32 s{sI}, 0")
    a(f"s_cbranch_scc1 {N}_ploop")
    for n in range(8):
        a(f"s_waitcnt vmcnt({28-4*n})")
        a("s_barrier")
    a.label(f"{N}_end")
    a("s_endpgm")
    return a, kd(N, 248, 248), (N, 234, 448, NS * 8192)

HEADER = open("cdna_kernels/" + NAME + ".s.ref").read().split("; Override")[0]

def build(kernels, verbose=False):
    txt = HEADER
    body = ""
    kds = ""
    for g in kernels:
        a, k, (n, grid, block, lds) = g()
        txt += f"; @launch kernel={n} grid=({grid},1,1) block=({block},1,1) lds={lds}\n"
        lines, ins = fix_hazards(a.lines, verbose, n)
        an = 0
        if CFG.align:
            lines, an = align8(lines)
            lines, ins2 = fix_hazards(lines, verbose, n)
            if ins2:
                lines, an2 = align8(lines, move=False); an += an2; ins += ins2
                assert fix_hazards(lines, False, n)[1] == 0
        print(f"{n}: {len(lines)} lines, {ins} hazard nops, {an} align nops", file=sys.stderr)
        body += "\n".join(("    " + l if not (l.endswith(":") or l.startswith(".")) else l) for l in lines) + "\n"
        kds += k
    txt += '.amdgcn_target "amdgcn-amd-amdhsa--gfx950"\n.text\n.p2align 8\ncode_begin:\n' + body + "code_end:\n" + kds
    return txt

if __name__ == "__main__":
    for arg in sys.argv[2:]:
        if "=" in arg:
            k_, v_ = arg.split("=", 1)
            setattr(CFG, k_, type(getattr(CFG, k_))(v_) if not isinstance(getattr(CFG, k_), bool) else int(v_))
    out = sys.argv[1] if len(sys.argv) > 1 else "cdna_kernels/" + NAME + ".s"
    open(out, "w").write(build([gen_KA, gen_KB, gen_KC], verbose="-v" in sys.argv))
```

```python
import math, struct, sys
from asmlib import *

NAME = "recurrent_scan__sliding_local_dilated__mixer_gmlp__prompt"
def f32(x): return "0x%08x" % struct.unpack("<I", struct.pack("<f", x))[0]

C0 = -2.0 * math.sqrt(2.0 / math.pi) * math.log2(math.e)
C1 = C0 * 0.044715
KSC = -((-C1) ** (1.0 / 3.0))
DELTA = C0 / KSC
EPS = 1e-5
OCT = 32768

class Cfg:
    ws_base = 0
    st_aux_a = "sc1"
    st_aux_n = ""
    st_aux_b = "sc1"
    prof = False
    ka_xbar = -1
    ka_prio = 0
    ka_xpf = 0
    ka_head = 24
    ka_xfirst = 5
    ka_rot = 0
    align = 0
    hprof = 0
    kc_test = 0
    ka_rbl = 2
    ka_nostore = 0
    ka_nodma = 0
    ka_wsp_slot = 0
    ka_x_aux = ""
    ka_pf_aux = ""
    ka_wsp_aux = "nt"
    ka_npre = 26
    codepf = 1
    ka_l2pf = 1
    attn_seg = 36
    ka_stpos = 5
    kb_nomfma = 0
    kb_pf = 1
    kb_eit = 8
    kb_wg = 3
    kb_spf = 9
    kb_abar = 0
    kb_nodma = 0
    kb_noattn = 0
CFG = Cfg()

ZQ_OFF, ZQ_SZ = 0, 792 * OCT
UO_OFF, UO_SZ = 26 << 20, 360 * OCT
WP_OFF, WP_SZ = 38 << 20, 2048 * 4096
ST_OFF, ST_SZ = 47 << 20, 16 * 16 * 1024
CP_OFF, CP_SZ = 48 << 20, 2048 * 128

def kd(name, vgpr, accum, sgpr=96):
    return f""".section .rodata,"a"
.p2align 6
.amdhsa_kernel {name}
  .amdhsa_next_free_vgpr {vgpr}
  .amdhsa_next_free_sgpr {sgpr}
  .amdhsa_accum_offset {accum}
  .amdhsa_group_segment_fixed_size 0
  .amdhsa_kernarg_size 88
  .amdhsa_user_sgpr_count 2
  .amdhsa_user_sgpr_kernarg_segment_ptr 1
  .amdhsa_system_sgpr_workgroup_id_x 1
.end_amdhsa_kernel
"""

PROF_OFF = 64 << 20
class Prof:
    def __init__(self, a, vreg, kidx):
        self.a, self.v, self.k = a, vreg, kidx
    def init(self):
        if not CFG.prof: return
        a = self.a
        a(f"v_mov_b32 v{self.v}, 0")
        a("s_mov_b64 s[84:85], 2")
        a("s_memrealtime s[82:83]")
        a("s_waitcnt lgkmcnt(0)")
        a(f"v_writelane_b32 v{self.v}, s82, 0")
        self.stamp()
    def stamp(self):
        if not CFG.prof: return
        a = self.a
        a("s_memtime s[80:81]")
        a("s_waitcnt lgkmcnt(0)")
        a("s_mov_b64 s[92:93], exec")
        a("s_mov_b64 exec, s[84:85]")
        a(f"v_mov_b32 v{self.v}, s80")
        a("s_mov_b64 exec, s[92:93]")
        a("s_lshl_b64 s[84:85], s[84:85], 1")
    def flush(self, sWave):
        if not CFG.prof: return
        a = self.a
        self.stamp()
        a("s_memrealtime s[82:83]")
        a("s_load_dwordx2 s[86:87], s[0:1], 80")
        a("s_waitcnt lgkmcnt(0)")
        a(f"v_writelane_b32 v{self.v}, s82, 63")
        a.srd_off(88, 86, 87, PROF_OFF + self.k * (1 << 20), 1 << 20)
        a("s_lshl_b32 s85, s2, 3")
        a(f"s_add_u32 s85, s85, s{sWave}")
        a("s_lshl_b32 s85, s85, 8")
        a("s_mov_b64 exec, -1")
        a("v_mbcnt_lo_u32_b32 v0, -1, 0")
        a("v_mbcnt_hi_u32_b32 v0, -1, v0")
        a("v_lshlrev_b32 v0, 2, v0")
        a(f"buffer_store_dword v{self.v}, v0, s[88:91], s85 offen")

def code_prefetch(a, sS, vT, vL, name):
    if not CFG.codepf: return
    h = a.newlabel(name + "_pc")
    a(f"s_getpc_b64 s[{sS}:{sS+1}]")
    a.label(h)
    a(f"s_sub_u32 s{sS}, s{sS}, {h}-code_begin")
    a(f"s_subb_u32 s{sS+1}, s{sS+1}, 0")
    a(f"s_mov_b32 s{sS+2}, code_end-code_begin")
    a(f"s_mov_b32 s{sS+3}, 0x00020000")
    a(f"s_lshr_b32 s{sS+4}, s2, 3")
    a(f"s_lshl_b32 s{sS+4}, s{sS+4}, 13")
    a(f"v_lshlrev_b32 v{vT}, 7, v{vL}")
    a(f"buffer_load_dword v{vT+1}, v{vT}, s[{sS}:{sS+3}], s{sS+4} offen")

def prologue(a, name, ngrid):
    a.lines.append(".text")
    a.lines.append(f".globl {name}")
    a.lines.append(".p2align 8")
    a.lines.append(f".type {name},@function")
    a.label(name)
    a(f"s_cmp_ge_u32 s2, {ngrid}")
    a(f"s_cbranch_scc1 {name}_end")
    if CFG.hprof:
        k = {"ka": 0, "kb": 1, "kc": 2}[name[:2]]
        a(f"""s_cmp_lg_u32 s2, 0
        s_cbranch_scc1 {name}_hp
        s_memrealtime s[82:83]
        s_load_dwordx2 s[86:87], s[0:1], 80
        s_waitcnt lgkmcnt(0)""")
        a.srd_off(88, 86, 87, PROF_OFF, 4096)
        a(f"""v_mov_b32 v1, s82
        v_mov_b32 v2, 0
        buffer_store_dword v1, v2, s[88:91], 0 offen offset:{4*k} sc1
        s_waitcnt vmcnt(0)""")
        a.label(f"{name}_hp")

def hprof_end(a, name):
    if not CFG.hprof: return
    a(f"""s_cmp_lg_u32 s2, 0
    s_cbranch_scc1 {name}_hpe
    s_waitcnt vmcnt(0)
    s_memrealtime s[82:83]
    s_load_dwordx4 s[84:87], s[0:1], 72
    s_waitcnt lgkmcnt(0)""")
    a.srd_off(88, 86, 87, PROF_OFF, 4096)
    a.srd(92, 84, 85, 256)
    a(f"""v_mov_b32 v2, 0
    buffer_load_dwordx3 v[4:6], v2, s[88:91], 0 offen sc1
    v_mov_b32 v7, s82
    s_waitcnt vmcnt(0)
    v_sub_u32 v7, v7, v6
    v_sub_u32 v6, v6, v5
    v_sub_u32 v5, v5, v4
    buffer_store_dwordx4 v[4:7], v2, s[92:95], 0 offen""")
    a.label(f"{name}_hpe")

def cost(l):
    c = 0
    for x in l.split("\n"):
        c += 8 if x.startswith(TRANS) else 4
    return c

def spread(slots, fillers, base=None):
    base = [sum(cost(x) + (4 if x.startswith("v_mfma") else 0) for x in sl) for sl in slots]
    tot = sum(base) + sum(cost(f) for f in fillers)
    out = []; k = 0; cum = 0
    for i, sl in enumerate(slots):
        out += sl; cum += base[i]
        tgt = tot * (i + 1) / len(slots)
        while k < len(fillers) and cum + cost(fillers[k]) / 2 <= tgt:
            out.append(fillers[k]); cum += cost(fillers[k]); k += 1
    return out + fillers[k:]

def gen_KA():
    a = Asm(); N = "ka_kernel"
    X, FR, T = 112, 24, 16
    AC = [80, 48]
    W = AC[1]
    vL, vA0, vA1, vPn, vO8, vSt, vStO = 1, 2, 3, 4, 5, 6, 7
    vNm, vSc, vSum = 8, 9, 10
    S = W
    vX0, vX1, vX2, vX3, vSR, vSRs, vXw = W+8, W+9, W+10, W+11, W+12, W+16, W+20
    sX, sWI, sWQ, sZQ, sST, sDM = 12, 16, 20, 24, 28, 32
    sWave, sRb, sCg = 36, 37, 38
    sNz2, sNg, sN, sZ2s, sZ1m, sQm = 39, 40, 41, 42, 43, 44
    sU, sV, sUn, sMz2, sP8, sOb = 45, 46, 47, 48, 49, 50
    sMq = 52
    sDma, sDstep, sDvs = 54, 55, 56
    sDp, sDc, sDn = 57, 58, 59
    sBufN, sPw, sRot, sRw = 61, 62, 60, 51
    sDl, sOlo, sOhi, sOnes = 63, 64, 65, 66
    sXr = 68
    sT0, sT1, sT2, sSt, sP8i, sP8q, sXb, sXs = 72, 73, 74, 76, 77, 78, 75, 79
    UB = 73728; STG = 2 * UB
    RBL = CFG.ka_rbl
    prologue(a, N, 256)
    pf = Prof(a, 15, 0); pf.init()
    a("s_load_dwordx4 s[4:7], s[0:1], 0")
    a("s_load_dwordx4 s[8:11], s[0:1], 32")
    a("s_load_dwordx4 s[96:99], s[0:1], 72")
    a(f"v_and_b32 v{vL}, 63, v0")
    a(f"v_lshrrev_b32 v{T}, 6, v0")
    a(f"v_readfirstlane_b32 s{sWave}, v{T}")
    a(f"""s_and_b32 s{sT0}, s2, 7
    s_lshr_b32 s{sT1}, s2, 3
    s_and_b32 s{sRb}, s{sT0}, {(16>>RBL)-1}
    s_lshl_b32 s{sRb}, s{sRb}, {RBL}
    s_and_b32 s{sT2}, s{sT1}, {(1<<RBL)-1}
    s_add_u32 s{sRb}, s{sRb}, s{sT2}
    s_lshr_b32 s{sCg}, s{sT0}, {4-RBL}
    s_lshl_b32 s{sCg}, s{sCg}, {5-RBL}
    s_lshr_b32 s{sT2}, s{sT1}, {RBL}
    s_add_u32 s{sCg}, s{sCg}, s{sT2}
    s_and_b32 s{sRot}, s{sT1}, {(1<<RBL)-1}
    s_lshl_b32 s{sRot}, s{sRot}, 1
    s_add_u32 s{sRot}, s{sRot}, s{sT2}
    s_mul_i32 s{sRot}, s{sRot}, {CFG.ka_rot}
    s_sub_u32 s{sT2}, s{sRot}, 9
    s_min_u32 s{sRot}, s{sRot}, s{sT2}
    s_sub_u32 s{sT2}, s{sRot}, 9
    s_min_u32 s{sRot}, s{sRot}, s{sT2}
    v_lshrrev_b32 v{T}, 3, v{vL}
    v_and_b32 v{T+1}, 7, v{vL}""")
    unit_lists = f"""s_min_u32 s{sT0}, s{sCg}, 4
    s_lshl_b32 s{sZ2s}, s{sCg}, 1
    s_add_u32 s{sZ2s}, s{sZ2s}, s{sT0}
    s_add_u32 s{sZ2s}, s{sZ2s}, 36
    s_cmp_lt_u32 s{sCg}, 4
    s_cselect_b32 s{sNz2}, 3, 2
    s_max_u32 s{sT0}, s{sCg}, 4
    s_min_u32 s{sT0}, s{sT0}, 8
    s_sub_u32 s{sT0}, s{sT0}, 4
    s_lshl_b32 s{sZ1m}, s{sCg}, 1
    s_add_u32 s{sZ1m}, s{sZ1m}, s{sT0}
    s_sub_u32 s{sZ1m}, s{sZ1m}, s{sNz2}
    s_cmp_lt_u32 s{sCg}, 8
    s_cselect_b32 s{sNg}, 5, 4
    s_max_u32 s{sT0}, s{sCg}, 8
    s_sub_u32 s{sT0}, s{sT0}, 8
    s_max_u32 s{sT1}, s{sCg}, 13
    s_sub_u32 s{sT1}, s{sT1}, 13
    s_add_u32 s{sQm}, s{sCg}, s{sT0}
    s_add_u32 s{sQm}, s{sQm}, s{sT1}
    s_sub_u32 s{sQm}, s{sQm}, s{sNg}
    s_cmp_lt_u32 s{sCg}, 13
    s_cselect_b32 s{sN}, 6, 7"""
    a(f"s_cmp_ge_u32 s{sWave}, 4")
    a(f"s_cbranch_scc1 {N}_prod")
    a(f"""v_lshrrev_b32 v{T+2}, 4, v{vL}
    v_xor_b32 v{T+2}, v{T+2}, v{T+1}
    v_lshlrev_b32 v{T+2}, 4, v{T+2}
    v_mul_u32_u24 v{vX0}, 1152, v{T}
    v_add_u32 v{vX0}, v{vX0}, v{T+2}
    v_xor_b32 v{vX1}, 64, v{vX0}
    s_lshl_b32 s{sT0}, s{sRb}, 7
    s_lshl_b32 s{sT1}, s{sWave}, 5
    s_add_u32 s{sT0}, s{sT0}, s{sT1}
    s_mul_i32 s{sXr}, s{sT0}, 1152
    s_add_u32 s{sXr+1}, s{sXr}, 8192
    s_add_u32 s{sXr+2}, s{sXr}, 16384
    s_add_u32 s{sXr+3}, s{sXr}, 24576
    s_lshl_b32 s{sXb}, s{sWave}, 14
    s_add_u32 s{sXb}, s{sXb}, {UB}
    s_lshl_b32 s{sXs}, s{sWave}, 12
    s_add_u32 s{sXs}, s{sXs}, {STG}""")
    a("s_waitcnt lgkmcnt(0)")
    if CFG.prof > 2: pf.stamp()
    a.srd(sX, 4, 5, 2048 * 1152)
    a(f"s_lshl_b32 s{sRw}, s{sRot}, 7")
    def xload(j):
        a(f"v_add_u32 v{vX2}, s{sRw}, v{vX0}")
        a(f"v_add_u32 v{vX3}, s{sRw}, v{vX1}")
        if j < 4: a(f"s_add_u32 m0, s{sXb}, {j*4096}")
        elif j == 4: a(f"s_mov_b32 m0, s{sXs}")
        a(f"s_add_u32 s{sRw}, s{sRw}, 128")
        for rg in range(4):
            if j < 5:
                a(f"buffer_load_dwordx4 v{vX3 if rg&1 else vX2}, s[{sX}:{sX+3}], s{sXr+rg} offen offset:{rg*1024} {CFG.ka_x_aux} lds")
            else:
                a(f"buffer_load_dwordx4 {vr(X+16*j+4*rg,4)}, v{vX3 if rg&1 else vX2}, s[{sX}:{sX+3}], s{sXr+rg} offen offset:{rg*1024} {CFG.ka_x_aux}")
        a(f"s_cmp_eq_u32 s{sRw}, 1152")
        a(f"s_cselect_b32 s{sRw}, 0, s{sRw}")
    for j in range(CFG.ka_xfirst): xload(j)
    a.srd_off(sZQ, 98, 99, CFG.ws_base + ZQ_OFF, ZQ_SZ)
    a(unit_lists)
    a(f"""s_mov_b32 s{sDl}, {f32(DELTA)}
    s_mov_b32 s{sOlo}, 0x00003f80
    s_mov_b32 s{sOhi}, 0x3f800000
    s_mov_b32 s{sOnes}, 0x3f803f80""")
    def cparams():
        return [
            f"s_add_u32 s{sT0}, s{sZ2s}, s{sV}",
            f"s_add_u32 s{sT1}, s{sZ1m}, s{sV}",
            f"s_add_u32 s{sT2}, s{sQm}, s{sV}",
            f"s_add_u32 s{sT2}, s{sT2}, 72",
            f"s_cmp_lt_u32 s{sV}, s{sNz2}\n"
            f"s_cselect_b32 s{sUn}, s{sT0}, s{sT1}\n"
            f"s_cselect_b32 s{sMz2}, -1, 0",
            f"s_cmp_lt_u32 s{sV}, s{sNg}\n"
            f"s_cselect_b32 s{sUn}, s{sUn}, s{sT2}",
            f"s_lshl_b32 s{sDn}, s{sUn}, 18",
        ]
    def traddr(buf):
        return [f"v_and_b32 v{T+7}, s{sMz2}, v{vO8}",
                f"v_xor_b32 v{vA0}, v{T+7}, v{vPn}"] + \
               ([f"v_add_u32 v{vA0}, {UB}, v{vA0}"] if buf else []) + [f"v_xor_b32 v{vA1}, 64, v{vA0}"]
    a(f"s_mov_b32 s{sV}, 0")
    for l in cparams(): a(l)
    a(f"""v_lshrrev_b32 v{T+2}, 5, v{vL}
    v_lshlrev_b32 v{T+2}, 3, v{T+2}
    v_bfe_u32 v{T+3}, v{vL}, 2, 2
    v_add_u32 v{T+2}, v{T+2}, v{T+3}
    v_lshlrev_b32 v{vPn}, 7, v{T+2}
    v_lshrrev_b32 v{T+3}, 1, v{T+3}
    v_lshl_add_u32 v{vPn}, v{T+3}, 6, v{vPn}
    v_bfe_u32 v{T+3}, v{vL}, 4, 1
    v_lshl_add_u32 v{vPn}, v{T+3}, 5, v{vPn}
    v_and_b32 v{T+3}, 1, v{vL}
    v_lshl_add_u32 v{vPn}, v{T+3}, 4, v{vPn}
    v_lshlrev_b32 v{vO8}, 3, v{T+3}
    v_bfe_u32 v{T+3}, v{vL}, 1, 1
    v_lshl_add_u32 v{vPn}, v{T+3}, 3, v{vPn}""")
    for l in traddr(0): a(l)
    a(f"""v_and_b32 v{T+2}, 31, v{vL}
    v_bfe_u32 v{T+3}, v{vL}, 1, 3
    v_lshrrev_b32 v{T+4}, 5, v{vL}
    v_xor_b32 v{T+3}, v{T+3}, v{T+4}
    v_lshlrev_b32 v{T+3}, 4, v{T+3}
    v_lshl_add_u32 v{T+3}, v{T+2}, 7, v{T+3}
    v_add_u32 v{vSR}, s{sXb}, v{T+3}
    v_xor_b32 v{vSR+1}, 32, v{vSR}
    v_xor_b32 v{vSR+2}, 64, v{vSR}
    v_xor_b32 v{vSR+3}, 96, v{vSR}
    v_add_u32 v{vSRs}, s{sXs}, v{T+3}
    v_xor_b32 v{vSRs+1}, 32, v{vSRs}
    v_xor_b32 v{vSRs+2}, 64, v{vSRs}
    v_xor_b32 v{vSRs+3}, 96, v{vSRs}
    v_lshlrev_b32 v{vStO}, 3, v{vL}
    v_add_u32 v{vStO}, s{sXs}, v{vStO}
    s_lshl_b32 s{sT0}, s{sRb}, 7
    s_lshl_b32 s{sT1}, s{sWave}, 5
    s_add_u32 s{sT0}, s{sT0}, s{sT1}
    v_add_u32 v{vSt}, s{sT0}, v{T+2}
    v_lshlrev_b32 v{vSt}, 4, v{vSt}
    v_lshl_add_u32 v{vSt}, v{T+4}, 15, v{vSt}
    v_mov_b32 v{vSum}, 0
    v_mov_b32 v{vSum+1}, 0""")
    pf.stamp()
    def xstats(j):
        for r in range(16):
            x = X + 16*j + r
            q = S + 2*(r % 2)
            first = (j == 0 and r < 2)
            a(f"v_dot2_f32_bf16 v{q}, v{x}, s{sOnes}, {'0' if first else 'v%d' % q}")
            a(f"v_dot2_f32_bf16 v{q+1}, v{x}, v{x}, {'0' if first else 'v%d' % (q+1)}")
    a(f"v_lshlrev_b32 v{vXw}, 4, v{vL}")
    a(f"v_add_u32 v{vXw}, s{sXb}, v{vXw}")
    issued = CFG.ka_xfirst
    for j in range(9):
        a(f"s_waitcnt vmcnt({4*(issued-1-j)})")
        if CFG.prof > 2: pf.stamp()
        if j >= 5:
            for rg in range(4):
                a(f"ds_write_b128 v{vXw}, {vr(X+16*j+4*rg,4)} offset:{(j%5)*4096+rg*1024}")
        for i in range(4):
            if j % 5 < 4: a(f"ds_read_b128 {vr(X+16*j+4*i,4)}, v{vSR+i} offset:{(j%5)*4096}")
            else: a(f"ds_read_b128 {vr(X+16*j+4*i,4)}, v{vSRs+i}")
        if issued < 9:
            xload(issued); issued += 1
        if j > 0:
            a(f"s_waitcnt lgkmcnt({8 if j >= 5 else 4})")
            a.lines.append(".p2align 3")
            xstats(j-1)
    a("s_waitcnt lgkmcnt(0)")
    a.lines.append(".p2align 3")
    xstats(8)
    pf.stamp()
    a(f"""v_add_f32 v{S}, v{S}, v{S+2}
    v_add_f32 v{S+1}, v{S+1}, v{S+3}
    s_mov_b32 s{sT0}, {f32(-1.0/576)}
    s_mov_b32 s{sT1}, {f32(1.0/576)}
    s_mov_b32 s{sT2}, {f32(KSC)}
    v_mov_b32 v{S+2}, v{S}
    v_mov_b32 v{S+3}, v{S+1}
    v_permlane32_swap_b32 v{S}, v{S+2}
    v_permlane32_swap_b32 v{S+1}, v{S+3}
    v_add_f32 v{S}, v{S}, v{S+2}
    v_add_f32 v{S+1}, v{S+1}, v{S+3}
    v_mul_f32 v{vNm}, s{sT0}, v{S}
    v_mul_f32 v{S+1}, s{sT1}, v{S+1}
    v_fma_f32 v{S+1}, -v{vNm}, v{vNm}, v{S+1}
    v_max_f32 v{S+1}, 0, v{S+1}
    v_add_f32 v{S+1}, {f32(EPS)}, v{S+1}
    v_rsq_f32 v{S+1}, v{S+1}
    s_mov_b32 s{sU}, 0
    s_mov_b32 s{sDc}, s{sDn}
    s_mov_b32 s{sDp}, s{sDn}
    v_mul_f32 v{vSc}, s{sT2}, v{S+1}""")
    CT = [W, W+2, W+4, W+6]
    def center(kk):
        o = []
        for r in range(4):
            x = X + 4*kk + r
            o.append(f"v_dot2_f32_bf16 v{CT[r]}, v{x}, s{sOlo}, v{vNm}")
            o.append(f"v_dot2_f32_bf16 v{CT[r]+1}, v{x}, s{sOhi}, v{vNm}")
        for r in range(4):
            o.append(f"v_cvt_pk_bf16_f32 v{X+4*kk+r}, v{CT[r]}, v{CT[r]+1}")
        return o
    def center_plain(kk):
        o = []
        for r in range(4):
            x = X + 4*kk + r
            o += [f"v_lshlrev_b32 v{CT[r]}, 16, v{x}", f"v_and_b32 v{CT[r]+1}, 0xffff0000, v{x}",
                  f"v_add_f32 v{CT[r]}, v{vNm}, v{CT[r]}", f"v_add_f32 v{CT[r]+1}, v{vNm}, v{CT[r]+1}",
                  f"v_cvt_pk_bf16_f32 v{x}, v{CT[r]}, v{CT[r]+1}"]
        return o
    NPRE = CFG.ka_npre
    a.lines.append(".p2align 3")
    for kk in range(NPRE):
        for l in center(kk): a(l)
    pf.stamp()
    a("s_barrier")
    pf.stamp()

    def reads(kk, t):
        st = kk % 3
        off = (kk % 18) * 2048
        return [f"ds_read_b64_tr_b16 {vr(FR+8*st+4*t+2*h,2)}, v{vA1 if t else vA0} offset:{off+512*h}" for h in range(2)]
    def mfma(par, kk, t):
        st = kk % 3; acc = AC[par] + 16*t
        c = "0" if kk == 0 else vr(acc, 16)
        return f"v_mfma_f32_32x32x16_bf16 {vr(acc,16)}, {vr(FR+8*st+4*t,4)}, {vr(X+4*kk,4)}, {c}"
    def stores(E, m):
        if CFG.ka_nostore: return []
        return [f"s_add_u32 s{sSt}, s{sDp}, {2*m*OCT}",
                f"buffer_store_dwordx4 {vr(E+8*m,4)}, v{vSt}, s[{sZQ}:{sZQ+3}], s{sSt} offen {CFG.st_aux_a}"]
    def epi(kind, E):
        out = []
        if kind == "P":
            for e in range(32):
                out.append(f"v_mul_f32 v{E+e}, v{vSc}, v{E+e}")
                if e % 2 == 1 and e >= 3:
                    p = e - 3; out.append(f"v_cvt_pk_bf16_f32 v{E+(p//8)*8+(p%8)//2}, v{E+p}, v{E+p+1}")
            out.append(f"v_cvt_pk_bf16_f32 v{E+27}, v{E+30}, v{E+31}")
            return out
        def st(k, e):
            w = E + e; t = T + e % 6
            return [f"v_mul_f32 v{w}, v{vSc}, v{w}", f"v_fma_f32 v{t}, v{w}, v{w}, s{sDl}", f"v_mul_f32 v{t}, v{t}, v{w}",
                    f"v_exp_f32 v{t}, v{t}", f"v_add_f32 v{t}, 1.0, v{t}", f"v_rcp_f32 v{t}, v{t}", f"v_mul_f32 v{w}, v{t}, v{w}"][k]
        for i in range(32 + 7):
            for k in (6, 3, 0, 4, 1, 5, 2):
                e = i - k
                if 0 <= e < 32: out.append(st(k, e))
            e = i - 7
            if 0 <= e < 32 and e % 2 == 1:
                p = e - 1; out.append(f"v_cvt_pk_bf16_f32 v{E+(p//8)*8+(p%8)//2}, v{E+p}, v{E+p+1}")
        return out
    def stats(E):
        out = []
        for m in range(4):
            for i in range(4):
                b = E + 8*m
                out.append(f"v_dot2_f32_bf16 v{vSum}, v{b+i}, s{sOnes}, v{vSum}")
                out.append(f"v_dot2_f32_bf16 v{vSum+1}, v{b+i}, v{b+i}, v{vSum+1}")
        return out
    def body(kind, par):
        E = AC[1 - par]
        if kind == "F":
            for l in reads(0, 0) + reads(0, 1) + reads(1, 0) + reads(1, 1): a(l)
        a.label(f"{N}_{kind}{par}")
        def cbar():
            if kind in "FG": return ["s_barrier"]
            sk = a.newlabel(N + "_sk")
            return [f"s_cmp_eq_u32 s{sV}, s{sN}\ns_cbranch_scc1 {sk}\ns_barrier\n{sk}:"]
        slots = []
        for kk in range(0, 36):
            s0 = ["s_waitcnt lgkmcnt(4)", mfma(par, kk, 0)]
            s1 = [mfma(par, kk, 1)]
            if kk == 0: s0 += [f"s_add_u32 s{sV}, s{sU}, 1"]
            if kk == 1 and kind != "F": s0 += cbar()
            if kk == 34: s0 += cbar()
            if kk + 2 == 18:
                s0 += [f"v_add_u32 v{vA0}, {18*2048}, v{vA0}", f"v_add_u32 v{vA1}, {18*2048}, v{vA1}"]
            s0 += reads((kk+2) % 36, 0); s1 += reads((kk+2) % 36, 1)
            if kind != "F" and kk >= 36 - CFG.ka_stpos and kk < 40 - CFG.ka_stpos:
                s0 += stores(E, kk - (36 - CFG.ka_stpos))
            if kk == 33: s1 += traddr(1 - par)
            slots += [s0, s1]
        if kind == "F":
            ne = 2 * NPRE - 2
            out = spread(slots[:ne], sum([center_plain(kk) for kk in range(NPRE, 36)], []))
            out += interleave(slots[ne:-6], cparams()) + sum(slots[-6:], [])
        else:
            ep = epi(kind, E)
            ne = len(slots) - 2*CFG.ka_stpos + 4 if kind != "P" else 24
            out = slots[0] + spread(slots[1:ne], cparams() + ep) + sum(slots[ne:], [])
        for l in out:
            if CFG.prof > 1 and l in (mfma(par, 30, 0), mfma(par, 2, 0)): pf.stamp()
            a(l)
        if kind == "G":
            a.lines.append(".p2align 3")
            for l in stats(E): a(l)
            a(f"ds_write_b64 v{vStO}, {vr(vSum,2)}")
        a(f"s_mov_b32 s{sDp}, s{sDc}")
        a(f"s_mov_b32 s{sDc}, s{sDn}")
        a(f"s_mov_b32 s{sU}, s{sV}")
        pf.stamp()
        q = 1 - par
        if kind in "HP":
            a(f"s_cmp_eq_u32 s{sU}, s{sN}")
            a(f"s_cbranch_scc1 {N}_tail{par}")
        if kind == "F":
            a(f"s_branch {N}_G{q}")
        if kind == "G":
            a(f"s_cmp_le_u32 s{sU}, s{sNz2}")
            a(f"s_cbranch_scc1 {N}_G{q}")
            a(f"s_branch {N}_H{q}")
        if kind == "H":
            a(f"s_cmp_le_u32 s{sU}, s{sNg}")
            a(f"s_cbranch_scc1 {N}_H{q}")
            a(f"s_branch {N}_P{q}")
        if kind == "P":
            a(f"s_branch {N}_P{q}")
    body("F", 0)
    for kind in "GHP":
        for par in (1, 0): body(kind, par)
    for par in range(2):
        a.label(f"{N}_tail{par}")
        pf.stamp()
        a("s_nop 7")
        E = AC[par]
        ep = epi("P", E)
        for l in ep:
            a(l)
            for m in range(4):
                if l.startswith(f"v_cvt_pk_bf16_f32 v{E+8*m+3},"):
                    for x in stores(E, m): a(x)
        if CFG.prof:
            pf.stamp(); a("s_waitcnt vmcnt(0)")
        pf.flush(sWave)
        a("s_endpgm")
    a.label(f"{N}_prod")
    vD, vDin, vDq, vPi, vPq, vWo, vT = 2, 6, 7, 8, 9, 10, 12
    WU, P, MH, ML, C, TT = 128, 32, 64, 68, 72, 88
    sWS, sWP, sCP, sDB = 12, 24, 4, 8
    sPc = sXr + 2
    if CFG.ka_prio: a(f"s_setprio {CFG.ka_prio}")
    a(f"s_cmp_lg_u32 s{sWave}, 4")
    a(f"s_cbranch_scc1 {N}_nopf1")
    code_prefetch(a, 88, vT, vL, N)
    a.label(f"{N}_nopf1")
    if CFG.ka_xpf:
        a(f"""s_sub_u32 s{sT1}, s{sWave}, 4
        s_lshl_b32 s{sT1}, s{sT1}, 5
        s_lshl_b32 s{sT0}, s{sRb}, 7
        s_add_u32 s{sT0}, s{sT0}, s{sT1}
        s_mul_i32 s{sT0}, s{sT0}, 1152
        v_lshrrev_b32 v{vT}, 2, v{vL}
        v_mul_u32_u24 v{vT}, 1152, v{vT}
        v_and_b32 v{vT+1}, 3, v{vL}
        v_lshl_add_u32 v{vT}, v{vT+1}, 7, v{vT}
        s_add_u32 s{sT1}, s{sT0}, {16*1152}
        s_waitcnt lgkmcnt(0)""")
        a.srd(sX, 4, 5, 2048 * 1152)
        a(f"buffer_load_dword v{vT+1}, v{vT}, s[{sX}:{sX+3}], s{sT0} offen offset:640")
        a(f"buffer_load_dword v{vT+2}, v{vT}, s[{sX}:{sX+3}], s{sT1} offen offset:640")
    a(unit_lists)
    a(f"""s_sub_u32 s{sPw}, s{sWave}, 4
    s_and_b32 s{sPc}, s{sPw}, 1
    s_mov_b32 s{sP8i}, {8*9216}
    s_mov_b32 s{sP8q}, {8*3456}
    v_lshrrev_b32 v{T+2}, 2, v{vL}
    v_and_b32 v{T+2}, 4, v{T+2}
    v_xor_b32 v{T+2}, v{T+2}, v{T+1}
    v_lshlrev_b32 v{T+2}, 4, v{T+2}
    v_mul_u32_u24 v{vDin}, 9216, v{T}
    v_add_u32 v{vDin}, v{vDin}, v{T+2}
    v_mul_u32_u24 v{vDq}, 3456, v{T}
    v_add_u32 v{vDq}, v{vDq}, v{T+2}
    v_lshlrev_b32 v{vWo}, 12, v{T}
    v_lshl_add_u32 v{vWo}, v{T+1}, 4, v{vWo}
    s_and_b32 s{sT0}, s{sRb}, {(1<<RBL)-1}
    s_mul_i32 s{sT0}, s{sT0}, {576>>RBL}
    s_mul_i32 s{sT1}, s{sPw}, {144>>RBL}
    s_add_u32 s{sT0}, s{sT0}, s{sT1}
    v_min_u32 v{T+2}, {(144>>RBL)-1}, v{vL}
    v_add_u32 v{T+2}, s{sT0}, v{T+2}
    v_mul_u32_u24 v{vPi}, 9216, v{T+2}
    v_mul_u32_u24 v{vPq}, 3456, v{T+2}""")
    a("s_waitcnt lgkmcnt(0)")
    a.srd(sWI, 8, 9, 576 * 9216)
    a.srd(sWQ, 6, 7, 576 * 3456)
    a(f"s_mov_b32 s{sDM+3}, 0x00020000")
    a.srd(sWS, 10, 11, 2048 * 4096)
    a.srd_off(sWP, 98, 99, CFG.ws_base + WP_OFF, WP_SZ)
    a.srd_off(sST, 98, 99, CFG.ws_base + ST_OFF, ST_SZ)
    a.srd_off(sCP, 98, 99, CFG.ws_base + CP_OFF, CP_SZ)
    a.srd(sDB, 96, 97, 256)
    def pparams():
        a(f"""s_add_u32 s{sT0}, s{sZ2s}, s{sV}
        s_add_u32 s{sT1}, s{sZ1m}, s{sV}
        s_add_u32 s{sT2}, s{sQm}, s{sV}
        s_cmp_lt_u32 s{sV}, s{sNz2}
        s_cselect_b32 s{sUn}, s{sT0}, s{sT1}
        s_cmp_lt_u32 s{sV}, s{sNg}
        s_cselect_b32 s{sUn}, s{sUn}, s{sT2}
        s_cselect_b64 s[{sMq}:{sMq+1}], 0, -1
        s_cselect_b64 s[{sDM}:{sDM+1}], s[{sWI}:{sWI+1}], s[{sWQ}:{sWQ+1}]
        s_cselect_b32 s{sDM+2}, s{sWI+2}, s{sWQ+2}
        s_cselect_b32 s{sP8}, s{sP8i}, s{sP8q}
        s_lshl_b32 s{sUn}, s{sUn}, 7
        s_cmp_lt_u32 s{sV}, s{sN}
        s_cselect_b32 s{sUn}, s{sUn}, 0x7f000000""")
    def issue():
        pparams()
        a(f"""v_cndmask_b32 v{vD}, v{vDin}, v{vDq}, s[{sMq}:{sMq+1}]
        s_sub_u32 s{sDvs}, s{sP8}, 1024
        s_lshl_b32 s{sDstep}, s{sP8}, 1
        s_mul_i32 s{sDma}, s{sDstep}, s{sPw}
        s_add_u32 s{sUn}, s{sDma}, s{sUn}
        s_lshl_b32 s{sDstep}, s{sDstep}, 2
        s_mul_i32 s{sDma}, s{sDstep}, s{sRot}
        s_add_u32 s{sDma}, s{sDma}, s{sUn}
        s_mov_b32 s{sRw}, s{sRot}
        v_add_u32 v{vD+1}, s{sDvs}, v{vD}
        s_lshl_b32 s{sT0}, s{sPw}, 11
        s_add_u32 m0, s{sBufN}, s{sT0}
        s_sub_u32 s{sBufN}, {UB}, s{sBufN}
        s_add_u32 s{sV}, s{sV}, 1""")
        for i in range(9):
            for j in range(2):
                if CFG.ka_nodma: continue
                a(f"buffer_load_dwordx4 v{vD+j}, s[{sDM}:{sDM+3}], s{sDma} offen offset:{1024*j} lds")
            if i < 8:
                a(f"s_add_u32 m0, m0, 8192")
                a(f"s_add_u32 s{sDma}, s{sDma}, s{sDstep}")
                a(f"s_add_u32 s{sRw}, s{sRw}, 1")
                a(f"s_cmp_eq_u32 s{sRw}, 9")
                a(f"s_cselect_b32 s{sDma}, s{sUn}, s{sDma}")
    a(f"s_mov_b32 s{sV}, 0")
    a(f"s_mov_b32 s{sBufN}, 0")
    if CFG.ka_xbar >= 0: a("s_barrier")
    issue()
    def l2pf():
        pparams()
        a(f"v_cndmask_b32 v{vT}, v{vPi}, v{vPq}, s[{sMq}:{sMq+1}]")
        a(f"buffer_load_dword v14, v{vT}, s[{sDM}:{sDM+3}], s{sUn} offen {CFG.ka_pf_aux}")
    npf = 1 if CFG.ka_l2pf else 0
    if npf: l2pf()
    a(f"""s_lshl_b32 s{sXr}, s{sCg}, 19
    s_lshl_b32 s{sT0}, s{sRb}, 8
    s_add_u32 s{sXr}, s{sXr}, s{sT0}
    s_lshl_b32 s{sT0}, s{sPc}, 7
    s_add_u32 s{sXr}, s{sXr}, s{sT0}
    s_lshr_b32 s{sT0}, s{sPw}, 1
    s_lshl_b32 s{sT0}, s{sT0}, 18
    s_add_u32 s{sXr}, s{sXr}, s{sT0}
    s_mov_b32 s{sXr+1}, s{sXr}""")
    a(f"s_mov_b32 s{sOb}, 0")
    a(f"s_waitcnt vmcnt({npf})")
    pf.stamp()
    a("s_barrier")
    a.label(f"{N}_ploop")
    nopub = a.newlabel(N + "_nopub")
    a(f"s_sub_u32 s{sT0}, s{sV}, 2")
    a(f"s_cmp_lg_u32 s{sT0}, s{sNz2}")
    a(f"s_cbranch_scc1 {nopub}")
    a(f"s_cmp_lg_u32 s{sPw}, 0")
    a(f"s_cbranch_scc1 {nopub}")
    a(f"""v_lshrrev_b32 v{vT}, 4, v{vL}
    v_and_b32 v{vT+1}, 15, v{vL}
    v_lshlrev_b32 v{vT}, 12, v{vT}
    v_lshl_add_u32 v{vT}, v{vT+1}, 4, v{vT}
    v_add_u32 v{vT}, {STG}, v{vT}
    ds_read_b128 {vr(P,4)}, v{vT}
    ds_read_b128 {vr(P+4,4)}, v{vT} offset:256
    v_lshlrev_b32 v{vT+1}, 4, v{vL}
    s_lshl_b32 s{sT0}, s{sRb}, 4
    s_add_u32 s{sT0}, s{sT0}, s{sCg}
    s_lshl_b32 s{sT0}, s{sT0}, 10
    s_waitcnt lgkmcnt(0)""")
    for i in range(4): a(f"v_add_f32 v{P+i}, v{P+i}, v{P+4+i}")
    a(f"buffer_store_dwordx4 {vr(P,4)}, v{vT+1}, s[{sST}:{sST+3}], s{sT0} offen sc1")
    a(f"s_mov_b32 s{sOb}, 1")
    a.label(nopub)
    issue()
    nosig = a.newlabel(N + "_nosig")
    a(f"""s_cmp_lg_u32 s{sOb}, 1
    s_cbranch_scc1 {nosig}
    s_mov_b32 s{sOb}, 2
    s_lshl_b32 s{sT0}, s{sRb}, 4
    v_mov_b32 v{vT}, s{sT0}
    v_mov_b32 v{vT+1}, 1
    s_waitcnt vmcnt(18)
    s_mov_b64 exec, 1
    buffer_atomic_add v{vT+1}, v{vT}, s[{sDB}:{sDB+3}], 0 offen sc1
    s_mov_b64 exec, -1
    s_waitcnt vmcnt(1)""")
    a.label(nosig)
    if npf: l2pf()
    l1 = a.newlabel(N + "_l"); l2 = a.newlabel(N + "_l"); l3 = a.newlabel(N + "_l")
    a(f"s_cmp_lg_u32 s{sV}, {CFG.ka_wsp_slot+2}")
    a(f"s_cbranch_scc1 {l1}")
    for i in range(8):
        a(f"buffer_load_dwordx4 {vr(WU+8*i+4,4)}, v{vWo}, s[{sWS}:{sWS+3}], s{sXr+1} offen {CFG.ka_wsp_aux}")
        a(f"s_add_u32 s{sXr+1}, s{sXr+1}, 32768")
    a(f"s_waitcnt vmcnt({8+npf})")
    a(f"s_branch {l3}")
    a.label(l1)
    a(f"s_cmp_lg_u32 s{sV}, 6")
    a(f"s_cbranch_scc1 {l2}")
    a(f"s_waitcnt vmcnt({18+npf})")
    for i in range(8):
        for r in range(4):
            x = WU + 8*i + 4 + r
            a(f"v_lshlrev_b32 v{WU+8*i+2*r}, 16, v{x}")
            a(f"v_and_b32 v{WU+8*i+2*r+1}, 0xffff0000, v{x}")
    def poll(lbl_done, single):
        a(f"""buffer_load_dword v{vT+1}, v{vT}, s[{sDB}:{sDB+3}], 0 offen sc1
        s_waitcnt vmcnt(0)
        v_readfirstlane_b32 s{sT2}, v{vT+1}""")
    def stat_loads():
        a(f"""v_lshlrev_b32 v{vT}, 3, v{vL}
        s_lshl_b32 s{sT0}, s{sRb}, 14
        s_lshl_b32 s{sT1}, s{sPc}, 9
        s_add_u32 s{sT0}, s{sT0}, s{sT1}""")
        for i in range(16):
            a(f"buffer_load_dwordx2 {vr(P+2*i,2)}, v{vT}, s[{sST}:{sST+3}], s{sT0} offen offset:{(i%4)*1024} sc1")
            if i % 4 == 3: a(f"s_add_u32 s{sT0}, s{sT0}, 4096")
    a.label(l2)
    a(f"s_cmp_eq_u32 s{sOb}, 2")
    a(f"s_mov_b32 s{sOb}, 0")
    a(f"s_cbranch_scc1 {l3}")
    a(f"s_waitcnt vmcnt({npf})")
    a.label(l3)
    a("s_barrier")
    a(f"s_cmp_ge_u32 s{sV}, s{sN}")
    a(f"s_cbranch_scc1 {N}_noi6")
    a("s_barrier")
    a(f"s_cmp_lt_u32 s{sV}, 6")
    a(f"s_cbranch_scc1 {N}_ploop")
    pf.stamp()
    issue()
    a(f"""s_lshl_b32 s{sT0}, s{sRb}, 4
    v_mov_b32 v{vT}, s{sT0}""")
    poll(None, True)
    a(f"s_cmp_ge_u32 s{sT2}, 16")
    a(f"s_cselect_b32 s{sOb}, 1, 0")
    a(f"s_cbranch_scc0 {N}_b6")
    stat_loads()
    a.label(f"{N}_b6")
    a("s_barrier")
    a.label(f"{N}_noi6")
    a(f"s_cmp_eq_u32 s{sOb}, 1")
    a(f"s_cbranch_scc1 {N}_have")
    a(f"""s_lshl_b32 s{sT0}, s{sRb}, 4
    v_mov_b32 v{vT}, s{sT0}
    s_mov_b32 s{sT1}, 200000""")
    a.label(f"{N}_poll")
    poll(None, False)
    a(f"""s_sub_u32 s{sT1}, s{sT1}, 1
    s_cmp_eq_u32 s{sT1}, 0
    s_cbranch_scc1 {N}_polled
    s_cmp_ge_u32 s{sT2}, 16
    s_cbranch_scc1 {N}_polled
    s_sleep 4
    s_branch {N}_poll""")
    a.label(f"{N}_polled")
    stat_loads()
    a.label(f"{N}_have")
    pf.stamp()
    a(f"s_waitcnt vmcnt(0)")
    a(f"v_lshlrev_b32 v{vT}, 3, v{vL}")
    a(f"""s_lshl_b32 s{sT1}, s{sPw}, 9
    s_add_u32 s{sT1}, s{sT1}, {STG+4096+2048}
    v_add_u32 v{vT}, s{sT1}, v{vT}
    v_lshlrev_b32 v{vT+1}, 6, v{T+1}
    v_add_u32 v{vT+1}, s{sT1}, v{vT+1}
    s_mov_b32 s{sT0}, {f32(1.0/2304)}
    s_mov_b32 s{sT2}, {f32(1.0/abs(KSC))}""")
    for i in range(1, 16):
        a(f"v_add_f32 v{P}, v{P}, v{P+2*i}")
        a(f"v_add_f32 v{P+1}, v{P+1}, v{P+2*i+1}")
    a(f"""v_mul_f32 v{P}, s{sT0}, v{P}
    v_mul_f32 v{P+1}, s{sT0}, v{P+1}
    v_fma_f32 v{P+1}, -v{P}, v{P}, v{P+1}
    v_max_f32 v{P+1}, 0, v{P+1}
    v_add_f32 v{P+1}, {f32(EPS*KSC*KSC)}, v{P+1}
    v_rsq_f32 v{P+1}, v{P+1}
    v_mul_f32 v{P+1}, s{sT2}, v{P+1}
    ds_write_b64 v{vT}, {vr(P,2)}""")
    for q in range(4):
        a(f"ds_read_b128 {vr(P+4*q,4)}, v{vT+1} offset:{16*q}")
    a("s_waitcnt lgkmcnt(0)")
    pf.stamp()
    for i in range(8):
        for r in range(8): a(f"v_mul_f32 v{WU+8*i+r}, v{P+2*r+1}, v{WU+8*i+r}")
        for r in range(4): a(f"v_cvt_pk_bf16_f32 v{WU+8*i+r}, v{WU+8*i+2*r}, v{WU+8*i+2*r+1}")
        a(f"buffer_store_dwordx4 {vr(WU+8*i,4)}, v{vWo}, s[{sWP}:{sWP+3}], s{sXr} offen {CFG.st_aux_n}")
        a(f"s_add_u32 s{sXr}, s{sXr}, 32768")
    pf.stamp()
    for p in range(4): a(f"v_cvt_pk_bf16_f32 v{MH+p}, v{P+4*p}, v{P+4*p+2}")
    for p in range(4):
        a(f"v_lshlrev_b32 v{TT}, 16, v{MH+p}")
        a(f"v_and_b32 v{TT+1}, 0xffff0000, v{MH+p}")
        a(f"v_sub_f32 v{TT}, v{P+4*p}, v{TT}")
        a(f"v_sub_f32 v{TT+1}, v{P+4*p+2}, v{TT+1}")
        a(f"v_cvt_pk_bf16_f32 v{ML+p}, v{TT}, v{TT+1}")
    for i in range(0, 8, 2):
        for r in range(4):
            for q in range(2):
                a(f"v_dot2_f32_bf16 v{C+i+q}, v{WU+8*(i+q)+r}, v{MH+r}, {'0' if r==0 else 'v%d'%(C+i+q)}")
            for q in range(2):
                a(f"v_dot2_f32_bf16 v{C+i+q}, v{WU+8*(i+q)+r}, v{ML+r}, v{C+i+q}")
    for ctrl in ["quad_perm:[1,0,3,2]", "quad_perm:[2,3,0,1]", "row_half_mirror"]:
        for q in range(8):
            a(f"v_add_f32_dpp v{C+q}, v{C+q}, v{C+q} {ctrl} row_mask:0xf bank_mask:0xf")
    for i in range(1, 8):
        a(f"v_cmp_eq_u32 vcc, {i}, v{T+1}")
        a(f"v_cndmask_b32 v{C}, v{C}, v{C+i}, vcc")
    a(f"""v_lshlrev_b32 v{vT}, 2, v{T}
    v_lshl_add_u32 v{vT}, v{T+1}, 5, v{vT}
    s_lshl_b32 s{sT0}, s{sCg}, 9
    s_lshl_b32 s{sT1}, s{sRb}, 14
    s_add_u32 s{sT0}, s{sT0}, s{sT1}
    s_lshl_b32 s{sT1}, s{sPc}, 13
    s_add_u32 s{sT0}, s{sT0}, s{sT1}
    s_lshr_b32 s{sT1}, s{sPw}, 1
    s_lshl_b32 s{sT1}, s{sT1}, 8
    s_add_u32 s{sT0}, s{sT0}, s{sT1}
    buffer_store_dword v{C}, v{vT}, s[{sCP}:{sCP+3}], s{sT0} offen {CFG.st_aux_n}""")
    a(f"s_cmp_lg_u32 s{sPw}, 0")
    a(f"s_cbranch_scc1 {N}_nopf2")
    code_prefetch(a, 88, vT, vL, N)
    a.label(f"{N}_nopf2")
    if CFG.prof:
        pf.stamp(); a("s_waitcnt vmcnt(0)")
    pf.flush(sWave)
    a.label(f"{N}_end")
    a("s_endpgm")
    return a, kd(N, 256, 256, 102), (N, 256, 512, 163840)

class Attn:
    def __init__(self, a, sZQ, sUO, sT, sWave, ldsb, aux):
        self.a, self.sZQ, self.sUO, self.sT, self.sWave, self.ldsb, self.aux = a, sZQ, sUO, sT, sWave, ldsb, aux
        self.KV, self.Q, self.LG, self.PH, self.O, self.TM = 88, 184, 196, 204, 212, 230
        self.vQo, self.vRd, self.vDo = 14, 15, 236
    def loads(self):
        a, sT, sZQ, TM, vL = self.a, self.sT, self.sZQ, self.TM, 1
        a(f"""v_lshlrev_b32 v{self.vQo}, 4, v{vL}
        s_and_b32 s{sT}, s2, 7
        s_mul_i32 s{sT}, s{sT}, 9
        s_mul_i32 s{sT+1}, s{self.sWave}, 9
        s_lshr_b32 s{sT+1}, s{sT+1}, 2
        s_add_u32 s{sT}, s{sT}, s{sT+1}
        s_lshl_b32 s{sT}, s{sT}, 15
        s_lshr_b32 s{sT+1}, s2, 3
        s_lshl_b32 s{sT+1}, s{sT+1}, 10
        s_add_u32 s{sT}, s{sT}, s{sT+1}
        s_add_u32 s{sT+2}, s{sT}, {(576+72)*OCT-256}
        s_add_u32 s{sT+3}, s{sT}, {(576+144)*OCT-256}
        s_add_u32 s{sT+4}, s{sT}, {576*OCT}
        s_lshl_b32 s{sT+5}, s{self.sWave}, 13
        s_add_u32 s{sT+5}, s{sT+5}, {self.ldsb}""")
        for n in range(4):
            a(f"v_add_u32 v{TM}, {64*n}, v{vL}")
            a(f"v_mul_u32_u24 v{TM+1}, 3277, v{TM}")
            a(f"v_lshrrev_b32 v{TM+1}, 18, v{TM+1}")
            a(f"v_mul_u32_u24 v{TM+2}, 80, v{TM+1}")
            a(f"v_sub_u32 v{TM}, v{TM}, v{TM+2}")
            a(f"v_lshlrev_b32 v{TM}, 4, v{TM}")
            a(f"v_lshl_add_u32 v{self.vDo+n}, v{TM+1}, 15, v{TM}")
            if n: a(f"v_subrev_u32 v{self.vDo+n}, {1024*n}, v{self.vDo+n}")
    def issue(self):
        a, sT, sZQ = self.a, self.sT, self.sZQ
        a(f"s_mov_b32 m0, s{sT+5}")
        for n in range(4):
            a(f"buffer_load_dwordx4 v{self.vDo+n}, s[{sZQ}:{sZQ+3}], s{sT+2} offen offset:{1024*n} lds")
        for j in range(3):
            a(f"buffer_load_dwordx4 {vr(self.Q+4*j,4)}, v{self.vQo}, s[{sZQ}:{sZQ+3}], s{sT+4} offen")
            a(f"s_add_u32 s{sT+4}, s{sT+4}, {OCT}")
        a(f"s_add_u32 m0, s{sT+5}, 4096")
        for n in range(4):
            a(f"buffer_load_dwordx4 v{self.vDo+n}, s[{sZQ}:{sZQ+3}], s{sT+3} offen offset:{1024*n} lds")
        a(f"s_add_u32 s{sT+5}, s{sT+5}, 32")
        a(f"v_add_u32 v{self.vRd}, s{sT+5}, v{self.vQo}")
    def compute(self, do):
        a, sT, KV, Q, LG, PH, O, TM, vL = self.a, self.sT, self.KV, self.Q, self.LG, self.PH, self.O, self.TM, 1
        def rd(base):
            for w in range(8):
                for j in range(3):
                    a(f"ds_read_b128 {vr(KV+12*w+4*j,4)}, v{self.vRd} offset:{base+j*1280+224-32*w}")
        a("s_waitcnt vmcnt(4)")
        rd(0)
        a(f"s_lshr_b32 s{sT+4}, s2, 3")
        a(f"s_lshl_b32 s{sT+4}, s{sT+4}, 6")
        a(f"v_add_u32 v{TM}, s{sT+4}, v{vL}")
        a(f"v_mov_b32 v{TM+1}, 0xff800000")
        sc = (18 ** -0.5) * math.log2(math.e) / (KSC * KSC)
        a(f"s_mov_b32 s{sT+4}, {f32(sc)}")
        a(f"s_mov_b32 s{sT+5}, {f32(KSC)}")
        for w0 in range(0, 8, 2):
            a(f"s_waitcnt lgkmcnt({min(15, 24-3*(w0+2))})")
            a.lines.append(".p2align 3")
            for i in range(9):
                for w in (w0, w0+1):
                    c = "0" if i == 0 else f"v{LG+w}"
                    a(f"v_dot2_f32_bf16 v{LG+w}, v{Q+do+i}, v{KV+12*w+do+i}, {c}")
        a("s_waitcnt vmcnt(0)")
        rd(4096)
        for w in range(1, 8):
            a(f"v_cmp_le_u32 vcc, {2*w}, v{TM}")
            a(f"v_cndmask_b32 v{LG+w}, v{TM+1}, v{LG+w}, vcc")
        g = LG; m = TM + 2; s = TM + 3
        a(f"v_max3_f32 v{m}, v{g}, v{g+1}, v{g+2}")
        a(f"v_max3_f32 v{m}, v{m}, v{g+3}, v{g+4}")
        a(f"v_max3_f32 v{m}, v{m}, v{g+5}, v{g+6}")
        a(f"v_max_f32 v{m}, v{m}, v{g+7}")
        for w in range(8): a(f"v_sub_f32 v{g+w}, v{g+w}, v{m}")
        for w in range(8): a(f"v_mul_f32 v{g+w}, s{sT+4}, v{g+w}")
        for w in range(8): a(f"v_exp_f32 v{g+w}, v{g+w}")
        for w in range(8): a(f"v_cvt_pk_bf16_f32 v{g+w}, v{g+w}, 0")
        for w in range(8): a(f"v_lshlrev_b32 v{PH+w}, 16, v{g+w}")
        a(f"v_add_f32 v{s}, v{PH}, v{PH+1}")
        for w in range(2, 8): a(f"v_add_f32 v{s}, v{s}, v{PH+w}")
        a(f"v_mul_f32 v{s}, s{sT+5}, v{s}")
        a(f"v_rcp_f32 v{s}, v{s}")
        for w in range(8):
            if w % 2 == 0:
                a(f"s_waitcnt lgkmcnt({min(15, 24-3*(w+2))})")
                a.lines.append(".p2align 3")
            for d in range(9):
                c0 = "0" if w == 0 else f"v{O+2*d}"
                c1 = "0" if w == 0 else f"v{O+2*d+1}"
                a(f"v_dot2_f32_bf16 v{O+2*d}, v{KV+12*w+do+d}, v{LG+w}, {c0}")
                a(f"v_dot2_f32_bf16 v{O+2*d+1}, v{KV+12*w+do+d}, v{PH+w}, {c1}")
        for d in range(18): a(f"v_mul_f32 v{O+d}, v{s}, v{O+d}")
        for d in range(9): a(f"v_cvt_pk_bf16_f32 v{Q+do+d}, v{O+2*d}, v{O+2*d+1}")
        a(f"s_add_u32 s{sT}, s{sT}, {288*OCT}")
        for j in range(3):
            lo, hi = max(do, 4*j), min(do + 9, 4*j + 4)
            while lo < hi:
                n = 1 if lo % 2 else hi - lo
                sfx = {1: "dword", 2: "dwordx2", 3: "dwordx3", 4: "dwordx4"}[n]
                a(f"buffer_store_{sfx} {vr(Q+lo,n)}, v{self.vQo}, s[{self.sUO}:{self.sUO+3}], s{sT} offen offset:{4*(lo-4*j)} {self.aux}")
                lo += n
            if j < 2: a(f"s_add_u32 s{sT}, s{sT}, {OCT}")

def gen_KB():
    a = Asm(); N = "kb_kernel"
    NS = 4
    ZO = 16384
    def zb(j): return ZO + j*1024 + (j >> 1)*64 + (64 if j == 17 else 0)
    STG = zb(17) + 1024
    FREE = NS * STG
    sWP, sZQ, sUO, sCP, sBS = 12, 16, 20, 24, 28
    sWave, sTb, sFb, sOdd, sT = 36, 37, 38, 39, 40
    sI, sSlot, sInc, sA, sZm, sZs, sZ1m, sZ1s = 50, 51, 52, 53, 54, 55, 56, 57
    prologue(a, N, 256)
    pf = Prof(a, 247, 1); pf.init()
    a("s_load_dwordx4 s[4:7], s[0:1], 48")
    a("s_load_dwordx2 s[8:9], s[0:1], 16")
    a("s_load_dwordx2 s[10:11], s[0:1], 80")
    a("v_lshrrev_b32 v1, 6, v0")
    a(f"v_readfirstlane_b32 s{sWave}, v1")
    a(f"""s_and_b32 s{sT}, s2, 7
    s_lshr_b32 s{sT+1}, s2, 3
    s_and_b32 s{sTb}, s{sT}, 1
    s_lshl_b32 s{sTb}, s{sTb}, 3
    s_and_b32 s{sT+2}, s{sT+1}, 7
    s_add_u32 s{sTb}, s{sTb}, s{sT+2}
    s_lshr_b32 s{sFb}, s{sT}, 1
    s_lshl_b32 s{sFb}, s{sFb}, 2
    s_lshr_b32 s{sT+2}, s{sT+1}, 3
    s_add_u32 s{sFb}, s{sFb}, s{sT+2}
    s_and_b32 s{sOdd}, s{sFb}, 1
    s_mul_i32 s{sZm}, s{sFb}, 18
    s_lshl_b32 s{sT}, s{sOdd}, 1
    s_add_u32 s{sZs}, s{sZm}, 16
    s_lshl_b32 s{sT+1}, s{sOdd}, 4
    s_sub_u32 s{sZs}, s{sZs}, s{sT+1}
    s_add_u32 s{sZm}, s{sZm}, s{sT}
    s_lshl_b32 s{sZm}, s{sZm}, 15
    s_lshl_b32 s{sZs}, s{sZs}, 15
    v_and_b32 v1, 63, v0""")
    a(f"s_cmp_ge_u32 s{sWave}, 4")
    a(f"s_cbranch_scc1 {N}_prod")
    at = Attn(a, sZQ, sUO, 70, sWave, 3 * STG, CFG.st_aux_b)
    at.loads()
    a("s_waitcnt lgkmcnt(0)")
    a.srd_off(sZQ, 10, 11, CFG.ws_base + ZQ_OFF, ZQ_SZ)
    at.issue()
    if CFG.kb_abar: a("s_barrier")
    a.srd_off(sUO, 10, 11, CFG.ws_base + UO_OFF, UO_SZ)
    ACC, FA, FB, Z1, T = 16, 88, 160, 176, 212
    vL, vZ0, vZ1, vZs, vB0, vB1, vE, vEs = 1, 2, 3, 4, 5, 6, 7, 8
    vBC, vCo, vBo, vC2 = 10, 12, 13, 9
    a(f"""v_lshrrev_b32 v{T}, 4, v{vL}
    v_and_b32 v{T+1}, 15, v{vL}
    v_bfe_u32 v{T+2}, v{vL}, 2, 2
    v_and_b32 v{T+3}, 3, v{vL}
    v_lshl_add_u32 v{T+4}, v{T}, 3, v{T+2}
    v_lshlrev_b32 v{T+4}, 4, v{T+4}
    v_lshrrev_b32 v{T+5}, 1, v{T+3}
    v_and_b32 v{T+6}, 1, v{T+3}
    v_lshl_add_u32 v{vZ0}, v{T+3}, 10, v{T+4}
    v_lshl_add_u32 v{vZ0}, v{T+5}, 6, v{vZ0}
    v_lshl_add_u32 v{vZ0}, v{T+6}, 3, v{vZ0}
    v_xor_b32 v{vZ1}, 8, v{vZ0}
    v_mul_u32_u24 v{vZs}, 1088, v{T+5}
    v_add_u32 v{vZs}, v{vZs}, v{T+4}
    v_xor_b32 v{T+6}, v{T+6}, v{T+5}
    v_lshl_add_u32 v{vZs}, v{T+6}, 3, v{vZs}
    s_lshl_b32 s{sT}, s{sWave}, 5
    v_add_u32 v{T+7}, s{sT}, v{T+1}
    v_and_b32 v{T+8}, 7, v{vL}
    v_xor_b32 v{T+8}, v{T+8}, v{T}
    v_lshlrev_b32 v{T+8}, 4, v{T+8}
    v_lshl_add_u32 v{vB0}, v{T+7}, 7, v{T+8}
    v_xor_b32 v{vB1}, 64, v{vB0}
    s_lshl_b32 s{sT+1}, s{sTb}, 7
    v_add_u32 v{T+7}, s{sT+1}, v{T+7}
    v_lshlrev_b32 v{vE}, 4, v{T+7}
    v_lshrrev_b32 v{T+8}, 1, v{T}
    v_lshl_add_u32 v{vEs}, v{T+8}, 15, v{vE}
    v_and_b32 v{T+8}, 1, v{T}
    v_lshl_add_u32 v{vEs}, v{T+8}, 3, v{vEs}
    v_lshl_add_u32 v{vE}, v{T}, 15, v{vE}
    v_add_u32 v{T+7}, s{sT}, v{T+1}
    v_lshlrev_b32 v{vCo}, 4, v{T+7}
    v_lshrrev_b32 v{T+8}, 1, v{T}
    v_lshl_add_u32 v{vBo}, v{T+8}, 11, v{vCo}
    v_and_b32 v{T+8}, 1, v{T}
    v_lshl_add_u32 v{vBo}, v{T+8}, 3, v{vBo}
    v_add_u32 v{vBo}, {FREE}, v{vBo}
    v_lshl_add_u32 v{vCo}, v{T}, 11, v{vCo}
    v_add_u32 v{vC2}, {FREE}, v{vCo}
    v_lshlrev_b32 v{vBC}, 2, v{T+7}
    v_add_u32 v{vBC}, {FREE}, v{vBC}""")
    for i in range(72): a(f"v_mov_b32 v{ACC+i}, 0")
    AD = {vB0: 240, vB1: 241, vZ0: 242, vZ1: 243, vZs: 244}
    for r in (vZ0, vZ1, vZs): a(f"v_add_u32 v{r}, {ZO}, v{r}")
    for r, r2 in AD.items(): a(f"v_add_u32 v{r2}, {2*STG}, v{r}")
    def reads(slot, h, st):
        R = (lambda r: AD[r]) if slot >= 2 else (lambda r: r)
        so = (slot & 1) * STG
        out = [f"ds_read_b128 {vr(FB+8*st+4*tt,4)}, v{R(vB1 if h else vB0)} offset:{so+2048*tt}" for tt in range(2)]
        for j in range(9):
            for rd in range(2):
                if j < 8:
                    out.append(f"ds_read_b64_tr_b16 {vr(FA+36*st+4*j+2*rd,2)}, v{R(vZ1 if j&1 else vZ0)} offset:{so+zb(4*(j>>1))-ZO+512*h+64*rd}")
                else:
                    out.append(f"ds_read_b64_tr_b16 {vr(FA+36*st+4*j+2*rd,2)}, v{R(vZs)} offset:{so+zb(16)-ZO+512*h+64*rd}")
        return out
    def phase(st, rds):
        out = []; k = 0; lastw = None
        for j in range(9):
            for tt in range(2):
                if tt == 0:
                    if j % CFG.kb_wg == 0:
                        jj = min(j + CFG.kb_wg - 1, 8)
                        out.append(f"s_waitcnt lgkmcnt({min(15, 19-(3+2*jj)+k)})")
                if not CFG.kb_nomfma: out.append(f"v_mfma_f32_16x16x32_bf16 {vr(ACC+8*j+4*tt,4)}, {vr(FA+36*st+4*j,4)}, {vr(FB+8*st+4*tt,4)}, {vr(ACC+8*j+4*tt,4)}")
                n = 2 if (j == 1) else 1
                for _ in range(n):
                    if k < len(rds): out.append(rds[k]); k += 1
        return out
    a(f"s_mov_b32 s{sI}, 8")
    pf.stamp()
    for w in range(4):
        if w < 3:
            a(f"s_cmp_lg_u32 s{sWave}, {w}")
            a(f"s_cbranch_scc1 {N}_at{w+1}")
        at.compute(w)
        if w < 3:
            a(f"s_branch {N}_atd")
            a.label(f"{N}_at{w+1}")
    a.label(f"{N}_atd")
    pf.stamp()
    a("s_barrier")
    pf.stamp()
    for l in reads(0, 0, 0): a(l)
    a.lines.append(".p2align 6")
    a.label(f"{N}_loop")
    for slot in range(4):
        for l in phase(0, reads(slot, 1, 1)): a(l)
        if slot == 3:
            a(f"s_sub_u32 s{sI}, s{sI}, 1")
        a("s_barrier")
        if CFG.prof > 1: pf.stamp()
        for l in phase(1, reads((slot + 1) % 4, 0, 0)): a(l)
    a(f"s_cmp_lg_u32 s{sI}, 0")
    a(f"s_cbranch_scc1 {N}_loop")
    order = [2, 3, 4, 0, 1]
    a(f"ds_read_b32 v{vBC+1}, v{vBC} offset:{20480+64}")
    a(f"ds_read_b32 v{vBC}, v{vBC} offset:{20480}")
    for i in order:
        if i == 0: a("s_barrier")
        for tt in range(2):
            if i < 4: a(f"ds_read_b128 {vr(Z1+8*i+4*tt,4)}, v{vCo if i < 2 else vC2} offset:{8192*(i%2)+256*tt}")
            else: a(f"ds_read_b64 {vr(Z1+32+2*tt,2)}, v{vBo} offset:{8*2048+256*tt}")
    pf.stamp()
    for oi, i in enumerate(order):
        if i < 4: a(f"s_add_u32 s{sT}, s{sZm}, {4*OCT*i}")
        for tt in range(2):
            n = 4 if i < 4 else 2
            z = Z1 + 8*i + n*tt
            a(f"s_waitcnt lgkmcnt({9-2*oi-tt})")
            for r in range(n):
                j = 2*i + (r >> 1)
                ac = ACC + 8*j + 4*tt + 2*(r & 1)
                t = T + 4*(r % 2)
                a(f"v_add_f32 v{ac}, v{vBC+tt}, v{ac}")
                a(f"v_add_f32 v{ac+1}, v{vBC+tt}, v{ac+1}")
                a(f"v_lshlrev_b32 v{t}, 16, v{z+r}")
                a(f"v_and_b32 v{t+1}, 0xffff0000, v{z+r}")
                a(f"v_mul_f32 v{t}, v{t}, v{ac}")
                a(f"v_mul_f32 v{t+1}, v{t+1}, v{ac+1}")
                a(f"v_cvt_pk_bf16_f32 v{z+r}, v{t}, v{t+1}")
            if i < 4:
                a(f"buffer_store_dwordx4 {vr(z,4)}, v{vE}, s[{sUO}:{sUO+3}], s{sT} offen offset:{256*tt} {CFG.st_aux_b}")
            else:
                a(f"buffer_store_dwordx2 {vr(z,2)}, v{vEs}, s[{sUO}:{sUO+3}], s{sZs} offen offset:{256*tt} {CFG.st_aux_b}")
    if CFG.prof:
        pf.stamp(); a("s_waitcnt vmcnt(0)")
    pf.flush(sWave)
    a("s_endpgm")
    a.label(f"{N}_prod")
    a("s_waitcnt lgkmcnt(0)")
    a.srd_off(sWP, 10, 11, CFG.ws_base + WP_OFF, WP_SZ)
    a.srd_off(sZQ, 10, 11, CFG.ws_base + ZQ_OFF, ZQ_SZ)
    a.srd_off(sCP, 10, 11, CFG.ws_base + CP_OFF, CP_SZ)
    a.srd(sBS, 4, 5, 4096)
    vA, vZ = 2, 3
    a(f"""v_lshrrev_b32 v4, 3, v1
    v_and_b32 v5, 7, v1
    v_xor_b32 v5, v5, v4
    v_lshlrev_b32 v5, 4, v5
    v_lshl_add_u32 v{vA}, v4, 12, v5
    v_lshlrev_b32 v{vZ}, 4, v1
    s_lshl_b32 s{sA}, s{sTb}, 19
    s_lshl_b32 s{sT+1}, s{sTb}, 11
    s_add_u32 s{sZ1m}, s{sZm}, s{sT+1}
    s_add_u32 s{sZ1s}, s{sZs}, s{sT+1}
    s_add_u32 s{sZm}, s{sZm}, {288*OCT}
    s_add_u32 s{sZs}, s{sZs}, {288*OCT}
    s_mov_b32 s{sSlot}, 0""")
    items = [("A", i) for i in range(16)] + [("Z", j) for j in range(18)]
    def issue(p):
        out = []
        for kind, i in items[17*p:17*p+17]:
            if CFG.kb_nodma: continue
            if kind == "A":
                out.append(f"s_add_u32 m0, s{sSlot}, {i*1024}")
                out.append(f"s_add_u32 s{sT}, s{sA}, {i*8*4096}")
                out.append(f"buffer_load_dwordx4 v{vA}, s[{sWP}:{sWP+3}], s{sT} offen lds")
            else:
                out.append(f"s_add_u32 m0, s{sSlot}, {zb(i)}")
                out.append(f"s_add_u32 s{sT}, s{sZm if i < 16 else sZs}, {(i if i < 16 else i-16)*OCT}")
                out.append(f"buffer_load_dwordx4 v{vZ}, s[{sZQ}:{sZQ+3}], s{sT} offen lds")
        out += [f"s_add_u32 s{sA}, s{sA}, 128", f"s_add_u32 s{sZm}, s{sZm}, 1024", f"s_add_u32 s{sZs}, s{sZs}, 1024",
                f"s_add_u32 s{sSlot}, s{sSlot}, {STG}", f"s_cmp_eq_u32 s{sSlot}, {NS*STG}", f"s_cselect_b32 s{sSlot}, 0, s{sSlot}"]
        return out
    a(f"s_cmp_eq_u32 s{sWave}, 6")
    a(f"s_cbranch_scc1 {N}_xtra")
    for p in range(2):
        if p == 0:
            a(f"s_cmp_eq_u32 s{sWave}, 5")
            a(f"s_cbranch_scc1 {N}_prod1")
        else:
            a.label(f"{N}_prod1")
        for st in range(3):
            if CFG.kb_abar and st == CFG.kb_abar - 1: a("s_barrier")
            for l in issue(p): a(l)
        a("s_waitcnt vmcnt(34)")
        a("s_barrier")
        def ploop(n, name):
            a(f"s_mov_b32 s{sI}, {n}")
            a.label(name)
            a("s_waitcnt vmcnt(17)")
            a("s_barrier")
            for l in issue(p): a(l)
            a(f"s_sub_u32 s{sI}, s{sI}, 1")
            a(f"s_cmp_lg_u32 s{sI}, 0")
            a(f"s_cbranch_scc1 {name}")
        ploop(29, f"{N}_ploop{p}")
        a("s_waitcnt vmcnt(17)")
        a("s_barrier")
        a("s_waitcnt vmcnt(0)")
        a("s_barrier")
        a("s_endpgm")
    a.label(f"{N}_xtra")
    nb = [0]
    spf = []
    if CFG.kb_pf:
        a(f"""s_mul_i32 s{sT+1}, s2, {81*128}
        s_add_u32 s60, s6, s{sT+1}
        s_addc_u32 s61, s7, 0
        s_mul_i32 s{sT+1}, s2, {21*128}
        s_min_u32 s{sT+1}, s{sT+1}, {(5184-21)*128}
        s_add_u32 s62, s8, s{sT+1}
        s_addc_u32 s63, s9, 0""")
        spf = [f"s_load_dword s{74+i%6}, s[60:61], {64*i}" for i in range(162)] + [f"s_load_dword s{74+i%6}, s[62:63], {64*i}" for i in range(42)]
    def bar(n=1):
        for _ in range(n):
            a("s_barrier"); nb[0] += 1
            if nb[0] >= 3:
                for _ in range(CFG.kb_spf):
                    if spf: a(spf.pop(0))
    def z1dma(j):
        a(f"s_mov_b32 m0, {j*2048 if j < 8 else FREE+(j-8)*2048}")
        a(f"s_add_u32 s{sT}, s{sZ1m if j < 16 else sZ1s}, {(j if j < 16 else j-16)*OCT}")
        for h in range(2):
            a(f"buffer_load_dwordx4 v{vZ}, s[{sZQ}:{sZQ+3}], s{sT} offen offset:{1024*h} lds")
    if CFG.kb_abar: a("s_barrier")
    bar(4)
    for j in range(8, 18):
        z1dma(j); bar()
    a(f"""s_lshl_b32 s{sT}, s{sTb}, 9
    s_lshr_b32 s{sT+1}, s{sT}, 1
    v_lshlrev_b32 v4, 3, v1
    v_lshlrev_b32 v5, 2, v1
    buffer_load_dword v8, v5, s[{sBS}:{sBS+3}], s{sT+1} offen""")
    for i in range(32):
        a(f"buffer_load_dwordx2 {vr(16+2*i,2)}, v4, s[{sCP}:{sCP+3}], s{sT} offen")
        a(f"s_add_u32 s{sT}, s{sT}, 8192")
        if i % 4 == 3: bar()
    bar()
    a(f"s_waitcnt vmcnt(0)")
    for i in range(1, 32):
        a(f"v_add_f32 v16, v16, v{16+2*i}")
        a(f"v_add_f32 v17, v17, v{17+2*i}")
        if i % 12 == 0: bar()
    a(f"""s_mov_b32 s{sT}, {f32(1.0/KSC)}
    v_and_b32 v9, 0xffff0000, v8
    v_lshlrev_b32 v8, 16, v8
    v_fma_f32 v8, v8, s{sT}, -v16
    v_fma_f32 v9, v9, s{sT}, -v17
    v_add_u32 v4, {FREE+20480}, v4
    ds_write_b64 v4, v[8:9]
    s_waitcnt lgkmcnt(0)""")
    assert nb[0] <= 30 and not spf, (nb[0], len(spf))
    bar(31 - nb[0])
    for j in range(8): z1dma(j)
    bar(2)
    code_prefetch(a, 68, 6, 1, N)
    a(f"s_waitcnt vmcnt({1 if CFG.codepf else 0})")
    bar()
    a.label(f"{N}_end")
    a("s_endpgm")
    return a, kd(N, 248, 248), (N, 256, 448, NS * STG + 20992)

def gen_KC():
    a = Asm(); N = "kc_kernel"
    NS = 9
    sUO, sWO, sWA, sX, sOUT, sDM = 12, 16, 20, 24, 28, 32
    sWave, sRb, sCg, sT = 36, 37, 38, 40
    sI, sU, sW = 50, 51, 52
    prologue(a, N, 234)
    pf = Prof(a, 247, 2); pf.init()
    a("s_load_dwordx2 s[4:5], s[0:1], 0")
    a("s_load_dwordx2 s[6:7], s[0:1], 16")
    a("s_load_dwordx4 s[8:11], s[0:1], 56")
    a("s_load_dwordx2 s[60:61], s[0:1], 80")
    a("v_lshrrev_b32 v1, 6, v0")
    a(f"v_readfirstlane_b32 s{sWave}, v1")
    a(f"""s_and_b32 s{sT}, s2, 7
    s_lshr_b32 s{sT+1}, s2, 3
    s_mul_i32 s{sT+2}, s{sT}, 29
    s_min_u32 s{sT}, s{sT}, 2
    s_add_u32 s{sT+2}, s{sT+2}, s{sT}
    s_add_u32 s{sT+2}, s{sT+2}, s{sT+1}
    s_mul_i32 s{sRb}, s{sT+2}, 7282
    s_lshr_b32 s{sRb}, s{sRb}, 16
    s_mul_i32 s{sT}, s{sRb}, 9
    s_sub_u32 s{sCg}, s{sT+2}, s{sT}
    v_and_b32 v1, 63, v0""")
    a("s_waitcnt lgkmcnt(0)")
    a.srd_off(sUO, 60, 61, CFG.ws_base + UO_OFF, UO_SZ)
    a.srd(sWO, 8, 9, 2304 * 1152)
    a.srd(sWA, 6, 7, 576 * 1152)
    a.srd(sX, 4, 5, 2048 * 1152)
    a.srd(sOUT, 10, 11, 2048 * 1152)
    a(f"s_cmp_ge_u32 s{sWave}, 5")
    a(f"s_cbranch_scc1 {N}_prod")
    a(f"s_mul_i32 s{sT}, s{sRb}, 5")
    a(f"s_add_u32 s{sT}, s{sT}, s{sWave}")
    a(f"s_cmp_ge_u32 s{sT}, 128")
    a(f"s_cbranch_scc1 {N}_end")
    ACC, SV, FA, UF, XR, T = 16, 32, 48, 144, 216, 224
    vL, vU, vA, vXo, vA8 = 1, 2, 4, 3, 8
    a(f"""v_lshrrev_b32 v{T}, 4, v{vL}
    v_and_b32 v{T+1}, 15, v{vL}
    s_lshl_b32 s{sT}, s{sT}, 4
    v_add_u32 v{T+2}, s{sT}, v{T+1}
    v_lshlrev_b32 v{vU}, 4, v{T+2}
    v_lshl_add_u32 v{vU}, v{T}, 15, v{vU}
    s_mov_b32 s{sU}, 0""")
    def uload(slot):
        return [f"buffer_load_dwordx4 {vr(UF+4*slot,4)}, v{vU}, s[{sUO}:{sUO+3}], s{sU} offen",
                f"s_add_u32 s{sU}, s{sU}, {4*OCT}"]
    for s_ in range(16):
        for l in uload(s_): a(l)
    a(f"""v_mul_u32_u24 v{vXo}, 1152, v{T+2}
    v_and_b32 v{T+3}, 1, v{T}
    v_lshl_add_u32 v{vXo}, v{T+3}, 5, v{vXo}
    v_lshrrev_b32 v{T+3}, 1, v{T}
    v_lshl_add_u32 v{vXo}, v{T+3}, 4, v{vXo}
    s_lshl_b32 s{sT+1}, s{sCg}, 7
    v_bfe_u32 v{T+3}, v{vL}, 2, 2
    v_lshl_add_u32 v{T+4}, v{T}, 3, v{T+3}
    v_lshlrev_b32 v{T+4}, 7, v{T+4}
    v_and_b32 v{T+5}, 3, v{vL}
    v_lshl_add_u32 v{T+4}, v{T+5}, 3, v{T+4}
    v_lshrrev_b32 v{T+3}, 1, v{T+3}
    v_and_b32 v{T+5}, 1, v{T}
    v_lshl_add_u32 v{T+3}, v{T+5}, 1, v{T+3}
    v_lshl_add_u32 v{vA}, v{T+3}, 5, v{T+4}
    v_xor_b32 v{vA+1}, 32, v{vA}
    v_xor_b32 v{vA+2}, 64, v{vA}
    v_xor_b32 v{vA+3}, 96, v{vA}""")
    for j in range(4): a(f"v_add_u32 v{vA8+j}, {8*8192}, v{vA+j}")
    for i in range(16): a(f"v_mov_b32 v{ACC+i}, 0")
    def reads(st):
        st %= 9
        return [f"ds_read_b64_tr_b16 {vr(FA+32*(st%3)+16*h+4*j+2*rd,2)}, v{(vA8 if st == 8 else vA)+j} offset:{(st%8)*8192+4096*h+512*rd}"
                for h in range(2) for j in range(4) for rd in range(2)]
    a(f"s_mov_b32 s{sI}, 5")
    pf.stamp()
    a("s_barrier")
    for l in reads(0): a(l)
    a("s_waitcnt lgkmcnt(0)")
    a.lines.append(".p2align 6")
    a.label(f"{N}_loop")
    for st in range(9):
        a("s_barrier")
        rd = reads(st + 1)
        k = 0
        for h in range(2):
            ks = 2*st + h
            a(f"s_waitcnt vmcnt({15})")
            for j in range(4):
                if CFG.kc_test & 1: continue
                a(f"v_mfma_f32_16x16x32_bf16 {vr(ACC+4*j,4)}, {vr(FA+32*(st%3)+16*h+4*j,4)}, {vr(UF+4*ks,4)}, {vr(ACC+4*j,4)}")
                for _ in range(3):
                    if k < 16: a(rd[k]); k += 1
            if not CFG.kc_test & 2:
                for l in uload((ks + 16) % 18): a(l)
        a("s_waitcnt lgkmcnt(0)")
    pf.stamp()
    a(f"s_sub_u32 s{sI}, s{sI}, 1")
    a(f"s_cmp_eq_u32 s{sI}, 0")
    a(f"s_cbranch_scc1 {N}_epi")
    a(f"s_cmp_lg_u32 s{sI}, 1")
    a(f"s_cbranch_scc1 {N}_loop")
    for p in range(2):
        a(f"buffer_load_dwordx4 {vr(XR+4*p,4)}, v{vXo}, s[{sX}:{sX+3}], s{sT+1} offen offset:{64*p}")
    a("s_nop 5")
    for i in range(16):
        a(f"v_mov_b32 v{SV+i}, v{ACC+i}")
    for i in range(16):
        a(f"v_mov_b32 v{ACC+i}, 0")
    a(f"s_branch {N}_loop")
    a.label(f"{N}_epi")
    a(f"s_mov_b32 s{sT}, {f32(-math.log2(math.e))}")
    for i in range(16): a(f"v_mul_f32 v{T+i}, s{sT}, v{SV+i}")
    for i in range(16): a(f"v_exp_f32 v{T+i}, v{T+i}")
    for i in range(16): a(f"v_add_f32 v{T+i}, 1.0, v{T+i}")
    for i in range(16): a(f"v_rcp_f32 v{T+i}, v{T+i}")
    for i in range(16): a(f"v_mul_f32 v{SV+i}, v{SV+i}, v{T+i}")
    for i in range(16): a(f"v_mul_f32 v{SV+i}, v{SV+i}, v{ACC+i}")
    for p in range(2):
        x = XR + 4*p
        a(f"v_permlane16_swap_b32 v{x}, v{x+2}")
        a(f"v_permlane16_swap_b32 v{x+1}, v{x+3}")
        for r in range(4):
            s = SV + 8*p + 2*r
            a(f"v_lshlrev_b32 v{T}, 16, v{x+r}")
            a(f"v_and_b32 v{T+1}, 0xffff0000, v{x+r}")
            a(f"v_add_f32 v{T}, v{T}, v{s}")
            a(f"v_add_f32 v{T+1}, v{T+1}, v{s+1}")
            a(f"v_cvt_pk_bf16_f32 v{x+r}, v{T}, v{T+1}")
        a(f"v_permlane16_swap_b32 v{x}, v{x+2}")
        a(f"v_permlane16_swap_b32 v{x+1}, v{x+3}")
        a(f"buffer_store_dwordx4 {vr(x,4)}, v{vXo}, s[{sOUT}:{sOUT+3}], s{sT+1} offen offset:{64*p}")
    if CFG.prof:
        pf.stamp(); a("s_waitcnt vmcnt(0)")
    pf.flush(sWave)
    hprof_end(a, N)
    a("s_endpgm")
    a.label(f"{N}_prod")
    vD = 2
    a(f"""v_lshrrev_b32 v8, 3, v1
    v_and_b32 v9, 7, v1
    v_lshrrev_b32 v10, 3, v1
    v_and_b32 v10, 2, v10
    v_xor_b32 v9, v9, v10
    v_lshlrev_b32 v9, 4, v9
    v_mul_u32_u24 v{vD}, 1152, v8
    v_add_u32 v{vD}, v{vD}, v9
    v_xor_b32 v{vD+1}, 64, v{vD}
    v_add_u32 v{vD+1}, {8*1152-1024}, v{vD+1}
    v_add_u32 v{vD+2}, {2*(8*1152-1024)}, v{vD}
    v_add_u32 v{vD+3}, {2*(8*1152-1024)}, v{vD+1}
    s_sub_u32 s{sT}, s{sWave}, 5
    s_mul_i32 s{sW}, s{sT}, {32*1152}
    s_lshl_b32 s{sT+1}, s{sCg}, 7
    s_add_u32 s{sW}, s{sW}, s{sT+1}
    s_mov_b32 s{sT+3}, s{sW}
    s_lshl_b32 s{sT+2}, s{sT}, 12
    s_mov_b32 s{sDM}, s{sWO}
    s_mov_b32 s{sDM+1}, s{sWO+1}
    s_mov_b32 s{sDM+2}, s{sWO+2}
    s_mov_b32 s{sDM+3}, 0x00020000
    s_mov_b32 s{sU}, 0""")
    a(f"s_mov_b32 s{sT+4}, s{sT+2}")
    def issue():
        out = [f"s_mov_b32 m0, s{sT+4}",
               f"s_add_u32 s{sT+4}, s{sT+4}, 8192"]
        if not CFG.kc_test & 4: out += [f"buffer_load_dwordx4 v{vD+j}, s[{sDM}:{sDM+3}], s{sW} offen offset:{1024*j} lds" for j in range(4)]
        out += [f"s_add_u32 s{sW}, s{sW}, {64*1152}",
                f"s_cmp_ge_u32 s{sT+4}, {NS*8192}",
                f"s_cselect_b32 s{sT+4}, s{sT+2}, s{sT+4}",
                f"s_add_u32 s{sU}, s{sU}, 1",
                f"s_cmp_eq_u32 s{sU}, 36",
                f"s_cselect_b64 s[{sDM}:{sDM+1}], s[{sWA}:{sWA+1}], s[{sDM}:{sDM+1}]",
                f"s_cselect_b32 s{sDM+2}, s{sWA+2}, s{sDM+2}",
                f"s_cselect_b32 s{sW}, s{sT+3}, s{sW}"]
        return out
    for st in range(9):
        for l in issue(): a(l)
    a("s_waitcnt vmcnt(32)")
    a("s_barrier")
    a(f"s_mov_b32 s{sI}, 36")
    a.label(f"{N}_ploop")
    a("s_waitcnt vmcnt(28)")
    a("s_barrier")
    for l in issue(): a(l)
    a(f"s_sub_u32 s{sI}, s{sI}, 1")
    a(f"s_cmp_lg_u32 s{sI}, 0")
    a(f"s_cbranch_scc1 {N}_ploop")
    for n in range(8):
        a(f"s_waitcnt vmcnt({28-4*n})")
        a("s_barrier")
    a.label(f"{N}_end")
    a("s_endpgm")
    return a, kd(N, 248, 248), (N, 234, 448, NS * 8192)

HEADER = open("cdna_kernels/" + NAME + ".s.ref").read().split("; Override")[0]

def build(kernels, verbose=False):
    txt = HEADER
    body = ""
    kds = ""
    for g in kernels:
        a, k, (n, grid, block, lds) = g()
        txt += f"; @launch kernel={n} grid=({grid},1,1) block=({block},1,1) lds={lds}\n"
        lines, ins = fix_hazards(a.lines, verbose, n)
        an = 0
        if CFG.align:
            lines, an = align8(lines)
            lines, ins2 = fix_hazards(lines, verbose, n)
            if ins2:
                lines, an2 = align8(lines, move=False); an += an2; ins += ins2
                assert fix_hazards(lines, False, n)[1] == 0
        print(f"{n}: {len(lines)} lines, {ins} hazard nops, {an} align nops", file=sys.stderr)
        body += "\n".join(("    " + l if not (l.endswith(":") or l.startswith(".")) else l) for l in lines) + "\n"
        kds += k
    txt += '.amdgcn_target "amdgcn-amd-amdhsa--gfx950"\n.text\n.p2align 8\ncode_begin:\n' + body + "code_end:\n" + kds
    return txt

if __name__ == "__main__":
    for arg in sys.argv[2:]:
        if "=" in arg:
            k_, v_ = arg.split("=", 1)
            setattr(CFG, k_, type(getattr(CFG, k_))(v_) if not isinstance(getattr(CFG, k_), bool) else int(v_))
    out = sys.argv[1] if len(sys.argv) > 1 else "cdna_kernels/" + NAME + ".s"
    open(out, "w").write(build([gen_KA, gen_KB, gen_KC], verbose="-v" in sys.argv))
```

```python
import math, struct, sys
from asmlib import *

NAME = "recurrent_scan__sliding_local_dilated__mixer_gmlp__prompt"
def f32(x): return "0x%08x" % struct.unpack("<I", struct.pack("<f", x))[0]

C0 = -2.0 * math.sqrt(2.0 / math.pi) * math.log2(math.e)
C1 = C0 * 0.044715
KSC = -((-C1) ** (1.0 / 3.0))
DELTA = C0 / KSC
EPS = 1e-5
OCT = 32768

class Cfg:
    ws_base = 0
    st_aux_a = "sc1"
    st_aux_n = ""
    st_aux_b = "sc1"
    prof = False
    ka_xbar = -1
    ka_prio = 0
    ka_xpf = 0
    ka_head = 24
    ka_xfirst = 5
    ka_rot = 0
    align = 0
    hprof = 0
    bound = 20000
    ka_try = 2
    kb_xb = 28
    kc_fu = 3
    ka_pst = 13
    ka_st_aux = ""
    sleep = 8
    kc_test = 0
    ka_rbl = 2
    ka_nostore = 0
    ka_nodma = 0
    ka_wsp_slot = 0
    ka_x_aux = ""
    ka_pf_aux = ""
    ka_wsp_aux = "nt"
    ka_npre = 26
    codepf = 1
    ka_l2pf = 1
    attn_seg = 36
    ka_stpos = 5
    kb_nomfma = 0
    kb_pf = 1
    kb_eit = 8
    kb_wg = 3
    kb_spf = 10
    kb_abar = 0
    kb_nodma = 0
    kb_noattn = 0
CFG = Cfg()

ZQ_OFF, ZQ_SZ = 0, 792 * OCT
UO_OFF, UO_SZ = 26 << 20, 360 * OCT
WP_OFF, WP_SZ = 38 << 20, 2048 * 4096
ST_OFF, ST_SZ = 47 << 20, 16 * 16 * 2048
CP_OFF, CP_SZ = 48 << 20, 2048 * 128

def kd(name, vgpr, accum, sgpr=96):
    return f""".section .rodata,"a"
.p2align 6
.amdhsa_kernel {name}
  .amdhsa_next_free_vgpr {vgpr}
  .amdhsa_next_free_sgpr {sgpr}
  .amdhsa_accum_offset {accum}
  .amdhsa_group_segment_fixed_size 0
  .amdhsa_kernarg_size 88
  .amdhsa_user_sgpr_count 2
  .amdhsa_user_sgpr_kernarg_segment_ptr 1
  .amdhsa_system_sgpr_workgroup_id_x 1
.end_amdhsa_kernel
"""

PROF_OFF = 64 << 20
class Prof:
    def __init__(self, a, vreg, kidx):
        self.a, self.v, self.k = a, vreg, kidx
    def init(self):
        if not CFG.prof: return
        a = self.a
        a(f"v_mov_b32 v{self.v}, 0")
        a("s_mov_b64 s[84:85], 2")
        a("s_memrealtime s[82:83]")
        a("s_waitcnt lgkmcnt(0)")
        a(f"v_writelane_b32 v{self.v}, s82, 0")
        self.stamp()
    def stamp(self):
        if not CFG.prof: return
        a = self.a
        a("s_memtime s[80:81]")
        a("s_waitcnt lgkmcnt(0)")
        a("s_mov_b64 s[92:93], exec")
        a("s_mov_b64 exec, s[84:85]")
        a(f"v_mov_b32 v{self.v}, s80")
        a("s_mov_b64 exec, s[92:93]")
        a("s_lshl_b64 s[84:85], s[84:85], 1")
    def flush(self, sWave):
        if not CFG.prof: return
        a = self.a
        self.stamp()
        a("s_memrealtime s[82:83]")
        a("s_load_dwordx2 s[86:87], s[0:1], 80")
        a("s_waitcnt lgkmcnt(0)")
        a(f"v_writelane_b32 v{self.v}, s82, 63")
        a.srd_off(88, 86, 87, PROF_OFF + self.k * (1 << 20), 1 << 20)
        a("s_lshl_b32 s85, s2, 3")
        a(f"s_add_u32 s85, s85, s{sWave}")
        a("s_lshl_b32 s85, s85, 8")
        a("s_mov_b64 exec, -1")
        a("v_mbcnt_lo_u32_b32 v0, -1, 0")
        a("v_mbcnt_hi_u32_b32 v0, -1, v0")
        a("v_lshlrev_b32 v0, 2, v0")
        a(f"buffer_store_dword v{self.v}, v0, s[88:91], s85 offen")

def code_prefetch(a, sS, vT, vL, name):
    if not CFG.codepf: return
    h = a.newlabel(name + "_pc")
    a(f"s_getpc_b64 s[{sS}:{sS+1}]")
    a.label(h)
    a(f"s_sub_u32 s{sS}, s{sS}, {h}-code_begin")
    a(f"s_subb_u32 s{sS+1}, s{sS+1}, 0")
    a(f"s_mov_b32 s{sS+2}, code_end-code_begin")
    a(f"s_mov_b32 s{sS+3}, 0x00020000")
    a(f"s_lshr_b32 s{sS+4}, s2, 3")
    a(f"s_lshl_b32 s{sS+4}, s{sS+4}, 13")
    a(f"v_lshlrev_b32 v{vT}, 7, v{vL}")
    a(f"buffer_load_dword v{vT+1}, v{vT}, s[{sS}:{sS+3}], s{sS+4} offen")

def prologue(a, name, ngrid):
    a.lines.append(".text")
    a.lines.append(f".globl {name}")
    a.lines.append(".p2align 8")
    a.lines.append(f".type {name},@function")
    a.label(name)
    a(f"s_cmp_ge_u32 s2, {ngrid}")
    a(f"s_cbranch_scc1 {name}_end")
    if CFG.hprof:
        k = {"ka": 0, "kb": 1, "kc": 2}[name[:2]]
        a(f"""s_cmp_lg_u32 s2, 0
        s_cbranch_scc1 {name}_hp
        s_memrealtime s[82:83]
        s_load_dwordx2 s[86:87], s[0:1], 80
        s_waitcnt lgkmcnt(0)""")
        a.srd_off(88, 86, 87, PROF_OFF, 4096)
        a(f"""v_mov_b32 v1, s82
        v_mov_b32 v2, 0
        buffer_store_dword v1, v2, s[88:91], 0 offen offset:{4*k} sc1
        s_waitcnt vmcnt(0)""")
        a.label(f"{name}_hp")

def hprof_end(a, name):
    if not CFG.hprof: return
    a(f"""s_cmp_lg_u32 s2, 0
    s_cbranch_scc1 {name}_hpe
    s_waitcnt vmcnt(0)
    s_memrealtime s[82:83]
    s_load_dwordx4 s[84:87], s[0:1], 72
    s_waitcnt lgkmcnt(0)""")
    a.srd_off(88, 86, 87, PROF_OFF, 4096)
    a.srd(92, 84, 85, 256)
    a(f"""v_mov_b32 v2, 0
    buffer_load_dwordx3 v[4:6], v2, s[88:91], 0 offen sc1
    v_mov_b32 v7, s82
    s_waitcnt vmcnt(0)
    v_sub_u32 v7, v7, v6
    v_sub_u32 v6, v6, v5
    v_sub_u32 v5, v5, v4
    buffer_store_dwordx4 v[4:7], v2, s[92:95], 0 offen""")
    a.label(f"{name}_hpe")

def cost(l):
    c = 0
    for x in l.split("\n"):
        c += 8 if x.startswith(TRANS) else 4
    return c

def spread(slots, fillers, base=None):
    base = [sum(cost(x) + (4 if x.startswith("v_mfma") else 0) for x in sl) for sl in slots]
    tot = sum(base) + sum(cost(f) for f in fillers)
    out = []; k = 0; cum = 0
    for i, sl in enumerate(slots):
        out += sl; cum += base[i]
        tgt = tot * (i + 1) / len(slots)
        while k < len(fillers) and cum + cost(fillers[k]) / 2 <= tgt:
            out.append(fillers[k]); cum += cost(fillers[k]); k += 1
    return out + fillers[k:]


FL_OFF, FL_SZ = 49 << 20, 20480
FL_W, FL_E, FL_U, FL_Q, FL_TAG = 0, 4096, 8192, 12288, 16384
sTag, sLo = 100, 101
TAG_LDS = 163832

def poll_flags(a, name, sFL, items, vt, sT, on_fail=None):
    a(f"s_mov_b32 s{sT}, {CFG.bound}")
    a.label(name)
    regs = []
    r = vt
    for vo, so, w in items:
        sfx = {1: "dword", 4: "dwordx4"}[w]
        a(f"buffer_load_{sfx} {vr(r,w)}, v{vo}, s[{sFL}:{sFL+3}], {so} offen sc1")
        regs += list(range(r, r + w)); r += w
    a("s_waitcnt vmcnt(0)")
    for x in regs: a(f"v_xor_b32 v{x}, s{sTag}, v{x}")
    for x in regs[1:]: a(f"v_or_b32 v{regs[0]}, v{regs[0]}, v{x}")
    a(f"""v_cmp_ne_u32 vcc, 0, v{regs[0]}
    s_sub_u32 s{sT}, s{sT}, 1
    s_cmp_eq_u32 s{sT}, 0
    s_cbranch_scc1 {name}_ok
    s_cmp_eq_u64 vcc, 0
    s_cbranch_scc1 {name}_ok""")
    if on_fail: on_fail()
    a(f"""s_sleep {CFG.sleep}
    s_branch {name}""")
    a.label(f"{name}_ok")

def phase_A(a, N):
    X, FR, T = 112, 24, 16
    AC = [80, 48]
    W = AC[1]
    vL, vA0, vA1, vPn, vO8, vSt, vStO = 1, 2, 3, 4, 5, 6, 7
    vNm, vSc, vSum = 8, 9, 10
    S = W
    vX0, vX1, vX2, vX3, vSR, vSRs, vXw = W+8, W+9, W+10, W+11, W+12, W+16, W+20
    sX, sWI, sWQ, sZQ, sST, sDM = 12, 16, 20, 24, 28, 32
    sFQ, sFq = 28, 32
    sWave, sRb, sCg = 36, 37, 38
    sNz2, sNg, sN, sZ2s, sZ1m, sQm = 39, 40, 41, 42, 43, 44
    sU, sV, sUn, sMz2, sP8, sOb = 45, 46, 47, 48, 49, 50
    sMq = 52
    sDma, sDstep, sDvs = 54, 55, 56
    sDp, sDc, sDn = 57, 58, 59
    sBufN, sPw, sRot, sRw = 61, 62, 60, 51
    sDl, sOlo, sOhi, sOnes = 63, 64, 65, 66
    sXr = 68
    sT0, sT1, sT2, sSt, sP8i, sP8q, sXb, sXs = 72, 73, 74, 76, 77, 78, 75, 79
    UB = 73728; STG = 2 * UB
    RBL = CFG.ka_rbl
    prologue(a, N, 256)
    pf = Prof(a, 15, 0); pf.init(); a.pf = pf
    a("s_load_dwordx4 s[4:7], s[0:1], 0")
    a("s_load_dwordx4 s[8:11], s[0:1], 32")
    a("s_load_dwordx4 s[96:99], s[0:1], 72")
    a(f"v_and_b32 v{vL}, 63, v0")
    a(f"v_lshrrev_b32 v{T}, 6, v0")
    a(f"v_readfirstlane_b32 s{sWave}, v{T}")
    a(f"""s_and_b32 s{sT0}, s2, 7
    s_lshr_b32 s{sT1}, s2, 3
    s_and_b32 s{sRb}, s{sT0}, {(16>>RBL)-1}
    s_lshl_b32 s{sRb}, s{sRb}, {RBL}
    s_and_b32 s{sT2}, s{sT1}, {(1<<RBL)-1}
    s_add_u32 s{sRb}, s{sRb}, s{sT2}
    s_lshr_b32 s{sCg}, s{sT0}, {4-RBL}
    s_lshl_b32 s{sCg}, s{sCg}, {5-RBL}
    s_lshr_b32 s{sT2}, s{sT1}, {RBL}
    s_add_u32 s{sCg}, s{sCg}, s{sT2}
    s_and_b32 s{sRot}, s{sT1}, {(1<<RBL)-1}
    s_lshl_b32 s{sRot}, s{sRot}, 1
    s_add_u32 s{sRot}, s{sRot}, s{sT2}
    s_mul_i32 s{sRot}, s{sRot}, {CFG.ka_rot}
    s_sub_u32 s{sT2}, s{sRot}, 9
    s_min_u32 s{sRot}, s{sRot}, s{sT2}
    s_sub_u32 s{sT2}, s{sRot}, 9
    s_min_u32 s{sRot}, s{sRot}, s{sT2}
    v_lshrrev_b32 v{T}, 3, v{vL}
    v_and_b32 v{T+1}, 7, v{vL}""")
    unit_lists = f"""s_min_u32 s{sT0}, s{sCg}, 4
    s_lshl_b32 s{sZ2s}, s{sCg}, 1
    s_add_u32 s{sZ2s}, s{sZ2s}, s{sT0}
    s_add_u32 s{sZ2s}, s{sZ2s}, 36
    s_cmp_lt_u32 s{sCg}, 4
    s_cselect_b32 s{sNz2}, 3, 2
    s_max_u32 s{sT0}, s{sCg}, 5
    s_sub_u32 s{sT0}, s{sT0}, 5
    s_add_u32 s{sQm}, s{sCg}, s{sT0}
    s_sub_u32 s{sQm}, s{sQm}, s{sNz2}
    s_cmp_eq_u32 s{sCg}, 4
    s_cselect_b32 s{sNg}, 3, 4
    s_min_u32 s{sT0}, s{sCg}, 5
    s_max_u32 s{sT0}, s{sT0}, 4
    s_sub_u32 s{sT0}, s{sT0}, 4
    s_max_u32 s{sT1}, s{sCg}, 13
    s_sub_u32 s{sT1}, s{sT1}, 13
    s_lshl_b32 s{sZ1m}, s{sCg}, 1
    s_add_u32 s{sZ1m}, s{sZ1m}, s{sT0}
    s_add_u32 s{sZ1m}, s{sZ1m}, s{sT1}
    s_sub_u32 s{sZ1m}, s{sZ1m}, s{sNg}
    s_cmp_lt_u32 s{sCg}, 13
    s_cselect_b32 s{sN}, 6, 7
    s_cselect_b32 s{sLo}, 0, 73728"""
    a(f"s_cmp_ge_u32 s{sWave}, 4")
    a(f"s_cbranch_scc1 {N}_prod")
    a(f"""v_lshrrev_b32 v{T+2}, 4, v{vL}
    v_xor_b32 v{T+2}, v{T+2}, v{T+1}
    v_lshlrev_b32 v{T+2}, 4, v{T+2}
    v_mul_u32_u24 v{vX0}, 1152, v{T}
    v_add_u32 v{vX0}, v{vX0}, v{T+2}
    v_xor_b32 v{vX1}, 64, v{vX0}
    s_lshl_b32 s{sT0}, s{sRb}, 7
    s_lshl_b32 s{sT1}, s{sWave}, 5
    s_add_u32 s{sT0}, s{sT0}, s{sT1}
    s_mul_i32 s{sXr}, s{sT0}, 1152
    s_add_u32 s{sXr+1}, s{sXr}, 8192
    s_add_u32 s{sXr+2}, s{sXr}, 16384
    s_add_u32 s{sXr+3}, s{sXr}, 24576
    s_lshl_b32 s{sXb}, s{sWave}, 14
    s_add_u32 s{sXb}, s{sXb}, {UB}
    s_lshl_b32 s{sXs}, s{sWave}, 12
    s_add_u32 s{sXs}, s{sXs}, {STG}""")
    a("s_waitcnt lgkmcnt(0)")
    if CFG.prof > 2: pf.stamp()
    a.srd(sX, 4, 5, 2048 * 1152)
    a(f"s_lshl_b32 s{sRw}, s{sRot}, 7")
    def xload(j):
        a(f"v_add_u32 v{vX2}, s{sRw}, v{vX0}")
        a(f"v_add_u32 v{vX3}, s{sRw}, v{vX1}")
        if j < 4: a(f"s_add_u32 m0, s{sXb}, {j*4096}")
        elif j == 4: a(f"s_mov_b32 m0, s{sXs}")
        a(f"s_add_u32 s{sRw}, s{sRw}, 128")
        for rg in range(4):
            if j < 5:
                a(f"buffer_load_dwordx4 v{vX3 if rg&1 else vX2}, s[{sX}:{sX+3}], s{sXr+rg} offen offset:{rg*1024} {CFG.ka_x_aux} lds")
            else:
                a(f"buffer_load_dwordx4 {vr(X+16*j+4*rg,4)}, v{vX3 if rg&1 else vX2}, s[{sX}:{sX+3}], s{sXr+rg} offen offset:{rg*1024} {CFG.ka_x_aux}")
        a(f"s_cmp_eq_u32 s{sRw}, 1152")
        a(f"s_cselect_b32 s{sRw}, 0, s{sRw}")
    for j in range(CFG.ka_xfirst): xload(j)
    a.srd_off(sZQ, 98, 99, CFG.ws_base + ZQ_OFF, ZQ_SZ)
    a.srd_off(sFQ, 98, 99, CFG.ws_base + FL_OFF + FL_Q, 4096)
    a(f"""s_lshl_b32 s{sFq}, s{sRb}, 8
    s_lshl_b32 s{sT0}, s{sCg}, 4
    s_add_u32 s{sFq}, s{sFq}, s{sT0}
    s_lshl_b32 s{sT0}, s{sWave}, 2
    s_add_u32 s{sFq}, s{sFq}, s{sT0}
    v_mov_b32 v12, {TAG_LDS}
    v_mov_b32 v13, 0""")
    a(unit_lists)
    a(f"""s_mov_b32 s{sDl}, {f32(DELTA)}
    s_mov_b32 s{sOlo}, 0x00003f80
    s_mov_b32 s{sOhi}, 0x3f800000
    s_mov_b32 s{sOnes}, 0x3f803f80""")
    def cparams():
        return [
            f"s_add_u32 s{sT0}, s{sZ2s}, s{sV}",
            f"s_add_u32 s{sT1}, s{sZ1m}, s{sV}",
            f"s_add_u32 s{sT2}, s{sQm}, s{sV}",
            f"s_add_u32 s{sT2}, s{sT2}, 72",
            f"s_cmp_lt_u32 s{sV}, s{sNg}\n"
            f"s_cselect_b32 s{sUn}, s{sT2}, s{sT1}",
            f"s_cmp_lt_u32 s{sV}, s{sNz2}\n"
            f"s_cselect_b32 s{sUn}, s{sT0}, s{sUn}\n"
            f"s_cselect_b32 s{sMz2}, -1, 0",
            f"s_lshl_b32 s{sDn}, s{sUn}, 18",
        ]
    def traddr(buf):
        return [f"v_and_b32 v{T+7}, s{sMz2}, v{vO8}",
                f"v_xor_b32 v{vA0}, v{T+7}, v{vPn}"] + \
               ([f"v_add_u32 v{vA0}, {UB}, v{vA0}"] if buf else []) + [f"v_xor_b32 v{vA1}, 64, v{vA0}"]
    a(f"s_mov_b32 s{sV}, 0")
    for l in cparams(): a(l)
    a(f"""v_lshrrev_b32 v{T+2}, 5, v{vL}
    v_lshlrev_b32 v{T+2}, 3, v{T+2}
    v_bfe_u32 v{T+3}, v{vL}, 2, 2
    v_add_u32 v{T+2}, v{T+2}, v{T+3}
    v_lshlrev_b32 v{vPn}, 7, v{T+2}
    v_lshrrev_b32 v{T+3}, 1, v{T+3}
    v_lshl_add_u32 v{vPn}, v{T+3}, 6, v{vPn}
    v_bfe_u32 v{T+3}, v{vL}, 4, 1
    v_lshl_add_u32 v{vPn}, v{T+3}, 5, v{vPn}
    v_and_b32 v{T+3}, 1, v{vL}
    v_lshl_add_u32 v{vPn}, v{T+3}, 4, v{vPn}
    v_lshlrev_b32 v{vO8}, 3, v{T+3}
    v_bfe_u32 v{T+3}, v{vL}, 1, 1
    v_lshl_add_u32 v{vPn}, v{T+3}, 3, v{vPn}""")
    for l in traddr(0): a(l)
    a(f"""v_and_b32 v{T+2}, 31, v{vL}
    v_bfe_u32 v{T+3}, v{vL}, 1, 3
    v_lshrrev_b32 v{T+4}, 5, v{vL}
    v_xor_b32 v{T+3}, v{T+3}, v{T+4}
    v_lshlrev_b32 v{T+3}, 4, v{T+3}
    v_lshl_add_u32 v{T+3}, v{T+2}, 7, v{T+3}
    v_add_u32 v{vSR}, s{sXb}, v{T+3}
    v_xor_b32 v{vSR+1}, 32, v{vSR}
    v_xor_b32 v{vSR+2}, 64, v{vSR}
    v_xor_b32 v{vSR+3}, 96, v{vSR}
    v_add_u32 v{vSRs}, s{sXs}, v{T+3}
    v_xor_b32 v{vSRs+1}, 32, v{vSRs}
    v_xor_b32 v{vSRs+2}, 64, v{vSRs}
    v_xor_b32 v{vSRs+3}, 96, v{vSRs}
    v_lshlrev_b32 v{vStO}, 3, v{vL}
    v_add_u32 v{vStO}, s{sXs}, v{vStO}
    s_lshl_b32 s{sT0}, s{sRb}, 7
    s_lshl_b32 s{sT1}, s{sWave}, 5
    s_add_u32 s{sT0}, s{sT0}, s{sT1}
    v_add_u32 v{vSt}, s{sT0}, v{T+2}
    v_lshlrev_b32 v{vSt}, 4, v{vSt}
    v_lshl_add_u32 v{vSt}, v{T+4}, 15, v{vSt}
    v_mov_b32 v{vSum}, 0
    v_mov_b32 v{vSum+1}, 0""")
    pf.stamp()
    def xstats(j):
        for r in range(16):
            x = X + 16*j + r
            q = S + 2*(r % 2)
            first = (j == 0 and r < 2)
            a(f"v_dot2_f32_bf16 v{q}, v{x}, s{sOnes}, {'0' if first else 'v%d' % q}")
            a(f"v_dot2_f32_bf16 v{q+1}, v{x}, v{x}, {'0' if first else 'v%d' % (q+1)}")
    a(f"v_lshlrev_b32 v{vXw}, 4, v{vL}")
    a(f"v_add_u32 v{vXw}, s{sXb}, v{vXw}")
    issued = CFG.ka_xfirst
    for j in range(9):
        a(f"s_waitcnt vmcnt({4*(issued-1-j)})")
        if CFG.prof > 2: pf.stamp()
        if j >= 5:
            for rg in range(4):
                a(f"ds_write_b128 v{vXw}, {vr(X+16*j+4*rg,4)} offset:{(j%5)*4096+rg*1024}")
        for i in range(4):
            if j % 5 < 4: a(f"ds_read_b128 {vr(X+16*j+4*i,4)}, v{vSR+i} offset:{(j%5)*4096}")
            else: a(f"ds_read_b128 {vr(X+16*j+4*i,4)}, v{vSRs+i}")
        if issued < 9:
            xload(issued); issued += 1
        if j > 0:
            a(f"s_waitcnt lgkmcnt({8 if j >= 5 else 4})")
            a.lines.append(".p2align 3")
            xstats(j-1)
    a("s_waitcnt lgkmcnt(0)")
    a.lines.append(".p2align 3")
    xstats(8)
    pf.stamp()
    a(f"""v_add_f32 v{S}, v{S}, v{S+2}
    v_add_f32 v{S+1}, v{S+1}, v{S+3}
    s_mov_b32 s{sT0}, {f32(-1.0/576)}
    s_mov_b32 s{sT1}, {f32(1.0/576)}
    s_mov_b32 s{sT2}, {f32(KSC)}
    v_mov_b32 v{S+2}, v{S}
    v_mov_b32 v{S+3}, v{S+1}
    v_permlane32_swap_b32 v{S}, v{S+2}
    v_permlane32_swap_b32 v{S+1}, v{S+3}
    v_add_f32 v{S}, v{S}, v{S+2}
    v_add_f32 v{S+1}, v{S+1}, v{S+3}
    v_mul_f32 v{vNm}, s{sT0}, v{S}
    v_mul_f32 v{S+1}, s{sT1}, v{S+1}
    v_fma_f32 v{S+1}, -v{vNm}, v{vNm}, v{S+1}
    v_max_f32 v{S+1}, 0, v{S+1}
    v_add_f32 v{S+1}, {f32(EPS)}, v{S+1}
    v_rsq_f32 v{S+1}, v{S+1}
    s_mov_b32 s{sU}, 0
    s_mov_b32 s{sDc}, s{sDn}
    s_mov_b32 s{sDp}, s{sDn}
    v_mul_f32 v{vSc}, s{sT2}, v{S+1}""")
    CT = [W, W+2, W+4, W+6]
    def center(kk):
        o = []
        for r in range(4):
            x = X + 4*kk + r
            o.append(f"v_dot2_f32_bf16 v{CT[r]}, v{x}, s{sOlo}, v{vNm}")
            o.append(f"v_dot2_f32_bf16 v{CT[r]+1}, v{x}, s{sOhi}, v{vNm}")
        for r in range(4):
            o.append(f"v_cvt_pk_bf16_f32 v{X+4*kk+r}, v{CT[r]}, v{CT[r]+1}")
        return o
    def center_plain(kk):
        o = []
        for r in range(4):
            x = X + 4*kk + r
            o += [f"v_lshlrev_b32 v{CT[r]}, 16, v{x}", f"v_and_b32 v{CT[r]+1}, 0xffff0000, v{x}",
                  f"v_add_f32 v{CT[r]}, v{vNm}, v{CT[r]}", f"v_add_f32 v{CT[r]+1}, v{vNm}, v{CT[r]+1}",
                  f"v_cvt_pk_bf16_f32 v{x}, v{CT[r]}, v{CT[r]+1}"]
        return o
    NPRE = CFG.ka_npre
    a.lines.append(".p2align 3")
    for kk in range(NPRE):
        for l in center(kk): a(l)
    pf.stamp()
    a("s_barrier")
    pf.stamp()

    def reads(kk, t):
        st = kk % 3
        off = (kk % 18) * 2048
        return [f"ds_read_b64_tr_b16 {vr(FR+8*st+4*t+2*h,2)}, v{vA1 if t else vA0} offset:{off+512*h}" for h in range(2)]
    def mfma(par, kk, t):
        st = kk % 3; acc = AC[par] + 16*t
        c = "0" if kk == 0 else vr(acc, 16)
        return f"v_mfma_f32_32x32x16_bf16 {vr(acc,16)}, {vr(FR+8*st+4*t,4)}, {vr(X+4*kk,4)}, {c}"
    def stores(E, m):
        if CFG.ka_nostore: return []
        return [f"s_add_u32 s{sSt}, s{sDp}, {2*m*OCT}",
                f"buffer_store_dwordx4 {vr(E+8*m,4)}, v{vSt}, s[{sZQ}:{sZQ+3}], s{sSt} offen {CFG.st_aux_a}"]
    def epi(kind, E):
        out = []
        if kind == "P":
            for e in range(32):
                out.append(f"v_mul_f32 v{E+e}, v{vSc}, v{E+e}")
                if e % 2 == 1 and e >= 3:
                    p = e - 3; out.append(f"v_cvt_pk_bf16_f32 v{E+(p//8)*8+(p%8)//2}, v{E+p}, v{E+p+1}")
            out.append(f"v_cvt_pk_bf16_f32 v{E+27}, v{E+30}, v{E+31}")
            return out
        def st(k, e):
            w = E + e; t = T + e % 6
            return [f"v_mul_f32 v{w}, v{vSc}, v{w}", f"v_fma_f32 v{t}, v{w}, v{w}, s{sDl}", f"v_mul_f32 v{t}, v{t}, v{w}",
                    f"v_exp_f32 v{t}, v{t}", f"v_add_f32 v{t}, 1.0, v{t}", f"v_rcp_f32 v{t}, v{t}", f"v_mul_f32 v{w}, v{t}, v{w}"][k]
        for i in range(32 + 7):
            for k in (6, 3, 0, 4, 1, 5, 2):
                e = i - k
                if 0 <= e < 32: out.append(st(k, e))
            e = i - 7
            if 0 <= e < 32 and e % 2 == 1:
                p = e - 1; out.append(f"v_cvt_pk_bf16_f32 v{E+(p//8)*8+(p%8)//2}, v{E+p}, v{E+p+1}")
        return out
    def stats(E):
        out = []
        for m in range(4):
            for i in range(4):
                b = E + 8*m
                out.append(f"v_dot2_f32_bf16 v{vSum}, v{b+i}, s{sOnes}, v{vSum}")
                out.append(f"v_dot2_f32_bf16 v{vSum+1}, v{b+i}, v{b+i}, v{vSum+1}")
        return out
    def body(kind, par):
        E = AC[1 - par]
        if kind == "F":
            for l in reads(0, 0) + reads(0, 1) + reads(1, 0) + reads(1, 1): a(l)
        a.label(f"{N}_{kind}{par}")
        def cbar():
            if kind in "FG": return ["s_barrier"]
            sk = a.newlabel(N + "_sk")
            return [f"s_cmp_eq_u32 s{sV}, s{sN}\ns_cbranch_scc1 {sk}\ns_barrier\n{sk}:"]
        slots = []
        for kk in range(0, 36):
            s0 = ["s_waitcnt lgkmcnt(4)", mfma(par, kk, 0)]
            s1 = [mfma(par, kk, 1)]
            if kk == 0: s0 += [f"s_add_u32 s{sV}, s{sU}, 1"]
            if kk == 1 and kind != "F": s0 += ["s_barrier"]
            if kk == 33 and kind == "P":
                s0 += [f"s_cmp_eq_u32 s{sU}, s{sNg}\ns_cselect_b32 s{sSt}, s{sFq}, 0x7f000000", "s_waitcnt vmcnt(0)",
                       f"buffer_store_dword v14, v13, s[{sFQ}:{sFQ+3}], s{sSt} offen sc1"]
            if kk == 20 and kind == "P": s1 += ["ds_read_b32 v14, v12"]
            if kk == 34: s0 += ["s_barrier"]
            if kk + 2 == 18:
                s0 += [f"v_add_u32 v{vA0}, {18*2048}, v{vA0}", f"v_add_u32 v{vA1}, {18*2048}, v{vA1}"]
            s0 += reads((kk+2) % 36, 0); s1 += reads((kk+2) % 36, 1)
            st0 = CFG.ka_pst if kind == "P" else 36 - CFG.ka_stpos
            if kind not in "FN" and st0 <= kk < st0 + 4:
                s0 += stores(E, kk - st0)
            if kk == 33: s1 += traddr(1 - par)
            slots += [s0, s1]
        if kind == "F":
            ne = 2 * NPRE - 2
            out = spread(slots[:ne], sum([center_plain(kk) for kk in range(NPRE, 36)], []))
            out += interleave(slots[ne:-6], cparams()) + sum(slots[-6:], [])
        elif kind == "N":
            out = slots[0] + interleave(slots[1:20], cparams()) + sum(slots[20:], [])
        else:
            ep = epi(kind, E)
            ne = len(slots) - 2*CFG.ka_stpos + 4 if kind != "P" else 24
            out = slots[0] + spread(slots[1:ne], cparams() + ep) + sum(slots[ne:], [])
        for l in out:
            if CFG.prof > 3 and l in (mfma(par, 30, 0), mfma(par, 2, 0)): pf.stamp()
            a(l)
        if kind == "G":
            a.lines.append(".p2align 3")
            for l in stats(E): a(l)
            a(f"ds_write_b64 v{vStO}, {vr(vSum,2)}")
        a(f"s_mov_b32 s{sDp}, s{sDc}")
        a(f"s_mov_b32 s{sDc}, s{sDn}")
        a(f"s_mov_b32 s{sU}, s{sV}")
        pf.stamp()
        q = 1 - par
        if kind == "F":
            a(f"s_branch {N}_G{q}")
        if kind == "G" and par == 1:
            a(f"s_branch {N}_G0")
        if kind == "G" and par == 0:
            a(f"s_cmp_lt_u32 s{sNz2}, 3")
            a(f"s_cbranch_scc1 {N}_P1")
            E2 = AC[0]
            a("s_nop 7")
            for l in epi("G", E2):
                a(l)
                for m in range(4):
                    if l.startswith(f"v_cvt_pk_bf16_f32 v{E2+8*m+3},"):
                        for x in stores(E2, m): a(x)
            a.lines.append(".p2align 3")
            for l in stats(E2): a(l)
            a(f"ds_write_b64 v{vStO}, {vr(vSum,2)}")
            a("s_waitcnt lgkmcnt(0)")
            pf.stamp()
            a(f"s_branch {N}_N1")
        if kind == "N":
            a(f"s_branch {N}_P{q}")
        if kind == "P":
            a(f"s_cmp_le_u32 s{sU}, s{sNg}")
            a(f"s_cbranch_scc1 {N}_P{q}")
            a(f"s_branch {N}_H{q}")
        if kind == "H":
            a(f"s_cmp_lg_u32 s{sU}, s{sN}")
            a(f"s_cbranch_scc1 {N}_H{q}")
            a(f"s_branch {N}_tail{par}")
    body("F", 0)
    for kind in "GHP":
        for par in (1, 0): body(kind, par)
    body("N", 1)
    for par in range(2):
        a.label(f"{N}_tail{par}")
        pf.stamp()
        a("s_nop 7")
        E = AC[par]
        ep = epi("H", E)
        for l in ep:
            a(l)
            for m in range(4):
                if l.startswith(f"v_cvt_pk_bf16_f32 v{E+8*m+3},"):
                    for x in stores(E, m): a(x)
        pf.stamp()
        a(f"s_branch {N}_At")
    a.label(f"{N}_prod")
    vD, vDin, vDq, vPi, vPq, vWo, vT, vZero, vTg = 2, 6, 7, 8, 9, 10, 20, 11, 24
    sIsT, sSo2 = 63, 50
    a(f"v_mov_b32 v{vZero}, 0")
    WU, P, MH, ML, C, TT = 128, 32, 96, 100, 104, 112
    sWS, sWP, sCP, sDB, sFL = 12, 24, 4, 8, 64
    sPc = sXr + 2
    if CFG.ka_prio: a(f"s_setprio {CFG.ka_prio}")
    a(f"s_cmp_lg_u32 s{sWave}, 4")
    a(f"s_cbranch_scc1 {N}_nopf1")
    code_prefetch(a, 88, vT, vL, N)
    a.label(f"{N}_nopf1")
    if CFG.ka_xpf:
        a(f"""s_sub_u32 s{sT1}, s{sWave}, 4
        s_lshl_b32 s{sT1}, s{sT1}, 5
        s_lshl_b32 s{sT0}, s{sRb}, 7
        s_add_u32 s{sT0}, s{sT0}, s{sT1}
        s_mul_i32 s{sT0}, s{sT0}, 1152
        v_lshrrev_b32 v{vT}, 2, v{vL}
        v_mul_u32_u24 v{vT}, 1152, v{vT}
        v_and_b32 v{vT+1}, 3, v{vL}
        v_lshl_add_u32 v{vT}, v{vT+1}, 7, v{vT}
        s_add_u32 s{sT1}, s{sT0}, {16*1152}
        s_waitcnt lgkmcnt(0)""")
        a.srd(sX, 4, 5, 2048 * 1152)
        a(f"buffer_load_dword v{vT+1}, v{vT}, s[{sX}:{sX+3}], s{sT0} offen offset:640")
        a(f"buffer_load_dword v{vT+2}, v{vT}, s[{sX}:{sX+3}], s{sT1} offen offset:640")
    a(unit_lists)
    a(f"""s_sub_u32 s{sPw}, s{sWave}, 4
    s_and_b32 s{sPc}, s{sPw}, 1
    s_mov_b32 s{sP8i}, {8*9216}
    s_mov_b32 s{sP8q}, {8*3456}
    v_lshrrev_b32 v{T+2}, 2, v{vL}
    v_and_b32 v{T+2}, 4, v{T+2}
    v_xor_b32 v{T+2}, v{T+2}, v{T+1}
    v_lshlrev_b32 v{T+2}, 4, v{T+2}
    v_mul_u32_u24 v{vDin}, 9216, v{T}
    v_add_u32 v{vDin}, v{vDin}, v{T+2}
    v_mul_u32_u24 v{vDq}, 3456, v{T}
    v_add_u32 v{vDq}, v{vDq}, v{T+2}
    v_lshlrev_b32 v{vWo}, 12, v{T}
    v_lshl_add_u32 v{vWo}, v{T+1}, 4, v{vWo}
    s_and_b32 s{sT0}, s{sRb}, {(1<<RBL)-1}
    s_mul_i32 s{sT0}, s{sT0}, {576>>RBL}
    s_mul_i32 s{sT1}, s{sPw}, {144>>RBL}
    s_add_u32 s{sT0}, s{sT0}, s{sT1}
    v_min_u32 v{T+2}, {(144>>RBL)-1}, v{vL}
    v_add_u32 v{T+2}, s{sT0}, v{T+2}
    v_mul_u32_u24 v{vPi}, 9216, v{T+2}
    v_mul_u32_u24 v{vPq}, 3456, v{T+2}""")
    a("s_waitcnt lgkmcnt(0)")
    a.srd(sWI, 8, 9, 576 * 9216)
    a.srd(sWQ, 6, 7, 576 * 3456)
    a(f"s_mov_b32 s{sDM+3}, 0x00020000")
    a.srd(sWS, 10, 11, 2048 * 4096)
    a.srd_off(sWP, 98, 99, CFG.ws_base + WP_OFF, WP_SZ)
    a.srd_off(sST, 98, 99, CFG.ws_base + ST_OFF, ST_SZ)
    a.srd_off(sCP, 98, 99, CFG.ws_base + CP_OFF, CP_SZ)
    a.srd(sDB, 96, 97, 256)
    a.srd_off(sFL, 98, 99, CFG.ws_base + FL_OFF, FL_SZ)
    a(f"""s_lshl_b32 s{sIsT}, s2, 3
    s_or_b32 s{sIsT}, s{sIsT}, s{sPw}
    v_mov_b32 v{vTg}, {FL_TAG}
    s_cmp_lg_u32 s{sIsT}, 0
    s_cbranch_scc1 {N}_notag
    buffer_load_dword v{vTg+1}, v{vTg}, s[{sFL}:{sFL+3}], 0 offen sc1""")
    a.label(f"{N}_notag")
    def pparams():
        a(f"""s_add_u32 s{sT0}, s{sZ2s}, s{sV}
        s_add_u32 s{sT1}, s{sZ1m}, s{sV}
        s_add_u32 s{sT2}, s{sQm}, s{sV}
        s_cmp_lt_u32 s{sV}, s{sNz2}
        s_cselect_b32 s{sUn}, s{sT0}, s{sT1}
        s_sub_u32 s{sT0}, s{sV}, s{sNz2}
        s_sub_u32 s{sT1}, s{sNg}, s{sNz2}
        s_cmp_ge_u32 s{sT0}, s{sT1}
        s_cselect_b32 s{sUn}, s{sUn}, s{sT2}
        s_cselect_b64 s[{sMq}:{sMq+1}], 0, -1
        s_cselect_b64 s[{sDM}:{sDM+1}], s[{sWI}:{sWI+1}], s[{sWQ}:{sWQ+1}]
        s_cselect_b32 s{sDM+2}, s{sWI+2}, s{sWQ+2}
        s_cselect_b32 s{sP8}, s{sP8i}, s{sP8q}
        s_lshl_b32 s{sUn}, s{sUn}, 7
        s_cmp_lt_u32 s{sV}, s{sN}
        s_cselect_b32 s{sUn}, s{sUn}, 0x7f000000""")
    def issue():
        pparams()
        a(f"""v_cndmask_b32 v{vD}, v{vDin}, v{vDq}, s[{sMq}:{sMq+1}]
        s_sub_u32 s{sDvs}, s{sP8}, 1024
        s_lshl_b32 s{sDstep}, s{sP8}, 1
        s_mul_i32 s{sDma}, s{sDstep}, s{sPw}
        s_add_u32 s{sUn}, s{sDma}, s{sUn}
        s_lshl_b32 s{sDstep}, s{sDstep}, 2
        s_mul_i32 s{sDma}, s{sDstep}, s{sRot}
        s_add_u32 s{sDma}, s{sDma}, s{sUn}
        s_mov_b32 s{sRw}, s{sRot}
        v_add_u32 v{vD+1}, s{sDvs}, v{vD}
        s_lshl_b32 s{sT0}, s{sPw}, 11
        s_add_u32 m0, s{sBufN}, s{sT0}
        s_sub_u32 s{sBufN}, {UB}, s{sBufN}
        s_add_u32 s{sV}, s{sV}, 1""")
        for i in range(9):
            for j in range(2):
                if CFG.ka_nodma: continue
                a(f"buffer_load_dwordx4 v{vD+j}, s[{sDM}:{sDM+3}], s{sDma} offen offset:{1024*j} lds")
            if i < 8:
                a(f"s_add_u32 m0, m0, 8192")
                a(f"s_add_u32 s{sDma}, s{sDma}, s{sDstep}")
                a(f"s_add_u32 s{sRw}, s{sRw}, 1")
                a(f"s_cmp_eq_u32 s{sRw}, 9")
                a(f"s_cselect_b32 s{sDma}, s{sUn}, s{sDma}")
    a(f"s_mov_b32 s{sV}, 0")
    a(f"s_mov_b32 s{sBufN}, 0")
    if CFG.ka_xbar >= 0: a("s_barrier")
    issue()
    def l2pf():
        pparams()
        a(f"v_cndmask_b32 v{vT}, v{vPi}, v{vPq}, s[{sMq}:{sMq+1}]")
        a(f"buffer_load_dword v14, v{vT}, s[{sDM}:{sDM+3}], s{sUn} offen {CFG.ka_pf_aux}")
    npf = 1 if CFG.ka_l2pf else 0
    if npf: l2pf()
    a(f"""s_lshl_b32 s{sXr}, s{sCg}, 19
    s_lshl_b32 s{sT0}, s{sRb}, 8
    s_add_u32 s{sXr}, s{sXr}, s{sT0}
    s_lshl_b32 s{sT0}, s{sPc}, 7
    s_add_u32 s{sXr}, s{sXr}, s{sT0}
    s_mov_b32 s{sXr+1}, s{sXr}""")
    a(f"s_waitcnt vmcnt({npf})")
    a(f"""s_cmp_lg_u32 s{sIsT}, 0
    s_cbranch_scc1 {N}_notag2
    v_add_u32 v{vTg+1}, 1, v{vTg+1}
    v_max_u32 v{vTg+1}, 1, v{vTg+1}
    buffer_store_dword v{vTg+1}, v{vTg}, s[{sFL}:{sFL+3}], 0 offen sc1""")
    a.label(f"{N}_notag2")
    pf.stamp()
    a("s_barrier")
    def special(v):
        l = a.newlabel(N + "_sp")
        a(f"s_cmp_lg_u32 s{sV}, {v}")
        a(f"s_cbranch_scc1 {l}")
        return l
    a.label(f"{N}_ploop")
    nopub = a.newlabel(N + "_nopub")
    a(f"s_cmp_lg_u32 s{sV}, 4")
    a(f"s_cbranch_scc1 {nopub}")
    a(f"s_cmp_lg_u32 s{sPw}, 0")
    a(f"s_cbranch_scc1 {nopub}")
    a(f"""v_lshrrev_b32 v{vT}, 5, v{vL}
    v_and_b32 v{vT+1}, 31, v{vL}
    v_lshlrev_b32 v{vT}, 12, v{vT}
    v_lshl_add_u32 v{vT}, v{vT+1}, 3, v{vT}
    v_add_u32 v{vT}, {STG}, v{vT}
    ds_read_b64 {vr(P,2)}, v{vT}
    ds_read_b64 {vr(P+8,2)}, v{vT} offset:256
    ds_read_b64 {vr(P+4,2)}, v{vT} offset:8192
    ds_read_b64 {vr(P+10,2)}, v{vT} offset:{8192+256}
    v_lshlrev_b32 v{vT+1}, 4, v{vL}
    s_lshl_b32 s{sT0}, s{sRb}, 4
    s_add_u32 s{sT0}, s{sT0}, s{sCg}
    s_lshl_b32 s{sT0}, s{sT0}, 11
    v_mov_b32 v{P+2}, s{sTag}
    v_mov_b32 v{P+3}, s{sTag}
    v_mov_b32 v{P+6}, s{sTag}
    v_mov_b32 v{P+7}, s{sTag}
    s_waitcnt lgkmcnt(0)
    v_add_f32 v{P}, v{P}, v{P+8}
    v_add_f32 v{P+1}, v{P+1}, v{P+9}
    v_add_f32 v{P+4}, v{P+4}, v{P+10}
    v_add_f32 v{P+5}, v{P+5}, v{P+11}
    buffer_store_dwordx4 {vr(P,4)}, v{vT+1}, s[{sST}:{sST+3}], s{sT0} offen sc1
    buffer_store_dwordx4 {vr(P+4,4)}, v{vT+1}, s[{sST}:{sST+3}], s{sT0} offen offset:1024 sc1""")
    a.label(nopub)
    issue()
    if npf: l2pf()
    l3 = a.newlabel(N + "_l"); l4 = a.newlabel(N + "_l")
    l = special(2)
    a(f"s_cmp_lt_u32 s{sPw}, 2")
    a(f"s_cbranch_scc1 {N}_s0b")
    for i in range(16):
        a(f"buffer_load_dwordx4 {vr(WU+8*i+4,4)}, v{vWo}, s[{sWS}:{sWS+3}], s{sXr+1} offen {CFG.ka_wsp_aux}")
        a(f"s_add_u32 s{sXr+1}, s{sXr+1}, 32768")
    a(f"s_waitcnt vmcnt({16+npf})")
    a(f"s_branch {l3}")
    a.label(f"{N}_s0b")
    a(f"""s_waitcnt vmcnt({npf})
    s_cmp_lg_u32 s{sIsT}, 0
    s_cbranch_scc1 {l3}
    buffer_store_dword v{vTg+1}, v{vZero}, s[{sDB}:{sDB+3}], 0 offen sc1""")
    a(f"s_branch {l3}")
    a.label(l)
    l = special(4)
    a(f"s_mov_b32 s{sT1}, {CFG.bound}")
    a.label(f"{N}_ptag")
    a(f"""buffer_load_dword v{vT+2}, v{vZero}, s[{sDB}:{sDB+3}], 0 offen sc1
    s_waitcnt vmcnt(0)
    v_readfirstlane_b32 s{sTag}, v{vT+2}
    v_mov_b32 v{vT+1}, {TAG_LDS}
    ds_write_b32 v{vT+1}, v{vT+2}
    s_waitcnt lgkmcnt(0)
    s_sub_u32 s{sT1}, s{sT1}, 1
    s_cmp_eq_u32 s{sT1}, 0
    s_cbranch_scc1 {l3}
    s_cmp_lg_u32 s{sTag}, 0
    s_cbranch_scc1 {l3}
    s_sleep 8
    s_branch {N}_ptag""")
    a.label(l)
    a(f"s_cmp_lt_u32 s{sPw}, 2")
    a(f"s_cbranch_scc1 {l4}")
    l = special(5)
    for i in range(16):
        for r in range(4):
            x = WU + 8*i + 4 + r
            a(f"v_lshlrev_b32 v{WU+8*i+2*r}, 16, v{x}")
            a(f"v_and_b32 v{WU+8*i+2*r+1}, 0xffff0000, v{x}")
    a.label(l)
    a(f"s_cmp_eq_u32 s{sV}, 6")
    a(f"s_cbranch_scc1 {N}_job")
    a.label(l4)
    a(f"s_waitcnt vmcnt({npf})")
    a.label(l3)
    a("s_barrier")
    a("s_barrier")
    a(f"s_cmp_lt_u32 s{sV}, s{sN}")
    a(f"s_cbranch_scc1 {N}_ploop")
    a("s_barrier")
    a(f"s_branch {N}_Bh")
    a.label(f"{N}_job")
    pf.stamp()
    sTry = sXr + 3
    a(f"""v_lshlrev_b32 v{vT}, 4, v{vL}
    s_lshl_b32 s{sT0}, s{sRb}, 15
    s_lshl_b32 s{sT1}, s{sPc}, 10
    s_add_u32 s{sSo2}, s{sT0}, s{sT1}
    s_mov_b32 s{sTry}, {CFG.bound}""")
    def full(aux="sc1"):
        a(f"s_mov_b32 s{sT0}, s{sSo2}")
        for i in range(16):
            a(f"buffer_load_dwordx4 {vr(P+4*i,4)}, v{vT}, s[{sST}:{sST+3}], s{sT0} offen offset:{(i%2)*2048} {aux}")
            if i % 2 == 1: a(f"s_add_u32 s{sT0}, s{sT0}, 4096")
    full(CFG.ka_st_aux)
    a(f"""s_waitcnt vmcnt({16+npf})
    s_barrier
    s_barrier
    s_cmp_lt_u32 s{sN}, 7
    s_cbranch_scc1 {N}_pst_w""")
    issue()
    a("s_waitcnt vmcnt(18)")
    a(f"s_branch {N}_pst_chk")
    a.label(f"{N}_pst")
    a("s_sleep 8")
    full()
    a.label(f"{N}_pst_w")
    a("s_waitcnt vmcnt(0)")
    a.label(f"{N}_pst_chk")
    for i in range(16): a(f"v_xor_b32 v{P+4*i+2}, s{sTag}, v{P+4*i+2}")
    for i in range(1, 16): a(f"v_or_b32 v{P+2}, v{P+2}, v{P+4*i+2}")
    a(f"""v_cmp_ne_u32 vcc, 0, v{P+2}
    s_sub_u32 s{sTry}, s{sTry}, 1
    s_cmp_eq_u32 s{sTry}, 0
    s_cbranch_scc1 {N}_pst_ok
    s_cmp_lg_u64 vcc, 0
    s_cbranch_scc1 {N}_pst""")
    a.label(f"{N}_pst_ok")
    pf.stamp()
    a(f"""v_lshlrev_b32 v{vT}, 3, v{vL}
    s_lshl_b32 s{sT1}, s{sPw}, 9
    s_add_u32 s{sT1}, s{sT1}, {STG+4096+2048}
    v_add_u32 v{vT}, s{sT1}, v{vT}
    v_lshlrev_b32 v{vT+1}, 6, v{T+1}
    v_add_u32 v{vT+1}, s{sT1}, v{vT+1}
    s_mov_b32 s{sT0}, {f32(1.0/2304)}
    s_mov_b32 s{sT2}, {f32(1.0/abs(KSC))}""")
    for i in range(1, 16):
        a(f"v_add_f32 v{P}, v{P}, v{P+4*i}")
        a(f"v_add_f32 v{P+1}, v{P+1}, v{P+4*i+1}")
    a(f"""v_mul_f32 v{P}, s{sT0}, v{P}
    v_mul_f32 v{P+1}, s{sT0}, v{P+1}
    v_fma_f32 v{P+1}, -v{P}, v{P}, v{P+1}
    v_max_f32 v{P+1}, 0, v{P+1}
    v_add_f32 v{P+1}, {f32(EPS*KSC*KSC)}, v{P+1}
    v_rsq_f32 v{P+1}, v{P+1}
    v_mul_f32 v{P+1}, s{sT2}, v{P+1}
    ds_write_b64 v{vT}, {vr(P,2)}""")
    for q in range(4):
        a(f"ds_read_b128 {vr(P+4*q,4)}, v{vT+1} offset:{16*q}")
    a("s_waitcnt lgkmcnt(0)")
    for i in range(16):
        for r in range(8): a(f"v_mul_f32 v{WU+8*i+r}, v{P+2*r+1}, v{WU+8*i+r}")
        for r in range(4): a(f"v_cvt_pk_bf16_f32 v{WU+8*i+r}, v{WU+8*i+2*r}, v{WU+8*i+2*r+1}")
        a(f"buffer_store_dwordx4 {vr(WU+8*i,4)}, v{vWo}, s[{sWP}:{sWP+3}], s{sXr} offen sc1")
        a(f"s_add_u32 s{sXr}, s{sXr}, 32768")
    pf.stamp()
    a(f"""s_lshl_b32 s{sXr}, s2, 3
    s_lshl_b32 s{sT1}, s{sPc}, 2
    s_add_u32 s{sXr}, s{sXr}, s{sT1}
    v_mov_b32 v{vTg}, s{sTag}
    s_waitcnt vmcnt(16)
    s_barrier
    s_cmp_lt_u32 s{sN}, 7
    s_cbranch_scc1 {N}_noc6
    s_barrier""")
    a.label(f"{N}_noc6")
    a(f"""s_waitcnt vmcnt(0)
    buffer_store_dword v{vTg}, v{vZero}, s[{sFL}:{sFL+3}], s{sXr} offen offset:{FL_W} sc1""")
    pf.stamp()
    C2 = 48
    for p in range(4): a(f"v_cvt_pk_bf16_f32 v{MH+p}, v{P+4*p}, v{P+4*p+2}")
    for p in range(4):
        a(f"v_lshlrev_b32 v{TT}, 16, v{MH+p}")
        a(f"v_and_b32 v{TT+1}, 0xffff0000, v{MH+p}")
        a(f"v_sub_f32 v{TT}, v{P+4*p}, v{TT}")
        a(f"v_sub_f32 v{TT+1}, v{P+4*p+2}, v{TT+1}")
        a(f"v_cvt_pk_bf16_f32 v{ML+p}, v{TT}, v{TT+1}")
    a.lines.append(".p2align 3")
    for i in range(0, 16, 2):
        for r in range(4):
            for q in range(2):
                a(f"v_dot2_f32_bf16 v{C2+i+q}, v{WU+8*(i+q)+r}, v{MH+r}, {'0' if r==0 else 'v%d'%(C2+i+q)}")
            for q in range(2):
                a(f"v_dot2_f32_bf16 v{C2+i+q}, v{WU+8*(i+q)+r}, v{ML+r}, v{C2+i+q}")
    a(f"""s_cmp_lt_u32 s{sN}, 7
    s_cbranch_scc1 {N}_nod7
    s_barrier""")
    a.label(f"{N}_nod7")
    for ctrl in ["quad_perm:[1,0,3,2]", "quad_perm:[2,3,0,1]", "row_half_mirror"]:
        for q in range(16):
            a(f"v_add_f32_dpp v{C2+q}, v{C2+q}, v{C2+q} {ctrl} row_mask:0xf bank_mask:0xf")
    for i in range(1, 8):
        a(f"v_cmp_eq_u32 vcc, {i}, v{T+1}")
        a(f"v_cndmask_b32 v{C2}, v{C2}, v{C2+i}, vcc")
        a(f"v_cndmask_b32 v{C2+8}, v{C2+8}, v{C2+8+i}, vcc")
    a(f"""v_lshlrev_b32 v{vT}, 2, v{T}
    v_lshl_add_u32 v{vT}, v{T+1}, 5, v{vT}
    s_lshl_b32 s{sT0}, s{sCg}, 9
    s_lshl_b32 s{sT1}, s{sRb}, 14
    s_add_u32 s{sT0}, s{sT0}, s{sT1}
    s_lshl_b32 s{sT1}, s{sPc}, 13
    s_add_u32 s{sT0}, s{sT0}, s{sT1}
    buffer_store_dword v{C2}, v{vT}, s[{sCP}:{sCP+3}], s{sT0} offen sc1
    buffer_store_dword v{C2+8}, v{vT}, s[{sCP}:{sCP+3}], s{sT0} offen offset:256 sc1
    s_branch {N}_Bh""")

class Attn:
    KV, Q, LG, PH, O = 88, 184, 196, 204, 212
    vQo, vRd = 245, 246
    def __init__(self, a, sZQ, sUO, sT):
        self.a, self.sZQ, self.sUO, self.sT = a, sZQ, sUO, sT
    def base(self, sD, sT):
        self.a(f"""s_and_b32 s{sD}, s2, 7
        s_mul_i32 s{sD}, s{sD}, {9*OCT}
        s_lshr_b32 s{sT}, s2, 3
        s_lshl_b32 s{sT}, s{sT}, 10
        s_add_u32 s{sD}, s{sD}, s{sT}""")
    def kv_prep(self, vDo, TM):
        a = self.a
        for n in range(4):
            a(f"v_add_u32 v{TM}, {64*n}, v1")
            a(f"v_mul_u32_u24 v{TM+1}, 3277, v{TM}")
            a(f"v_lshrrev_b32 v{TM+1}, 18, v{TM+1}")
            a(f"v_mul_u32_u24 v{TM+2}, 80, v{TM+1}")
            a(f"v_sub_u32 v{TM}, v{TM}, v{TM+2}")
            a(f"v_lshlrev_b32 v{TM}, 4, v{TM}")
            a(f"v_lshl_add_u32 v{vDo+n}, v{TM+1}, 15, v{TM}")
            if n: a(f"v_subrev_u32 v{vDo+n}, {1024*n}, v{vDo+n}")
    def stage(self, heads, vDo, vZ, sB, sL, sT):
        a, sZQ = self.a, self.sZQ
        for kv in (0, 2, 1):
            for w in heads:
                if kv < 2:
                    a(f"s_add_u32 m0, s{sL}, {12288*w+4096*kv}")
                    a(f"s_add_u32 s{sT}, s{sB}, {(576+72+72*kv+(9*w>>2))*OCT-256}")
                    for n in range(4):
                        a(f"buffer_load_dwordx4 v{vDo+n}, s[{sZQ}:{sZQ+3}], s{sT} offen offset:{1024*n} lds")
                else:
                    for j in range(3):
                        a(f"s_add_u32 m0, s{sL}, {12288*w+8192+1024*j}")
                        a(f"s_add_u32 s{sT}, s{sB}, {(576+(9*w>>2)+j)*OCT}")
                        a(f"buffer_load_dwordx4 v{vZ}, s[{sZQ}:{sZQ+3}], s{sT} offen lds")
    def setup(self, sWave, sL):
        a, sT = self.a, self.sT
        self.base(sT, sT+1)
        a(f"""s_mul_i32 s{sT+1}, s{sWave}, 9
        s_lshr_b32 s{sT+1}, s{sT+1}, 2
        s_add_u32 s{sT+1}, s{sT+1}, 288
        s_lshl_b32 s{sT+1}, s{sT+1}, 15
        s_add_u32 s{sT}, s{sT}, s{sT+1}
        v_lshlrev_b32 v{self.vQo}, 4, v1
        s_mul_i32 s{sT+5}, s{sWave}, 12288
        s_add_u32 s{sT+5}, s{sT+5}, s{sL}
        s_add_u32 s{sT+5}, s{sT+5}, 32
        v_add_u32 v{self.vRd}, s{sT+5}, v{self.vQo}
        s_lshr_b32 s{sT+4}, s2, 3
        s_lshl_b32 s{sT+4}, s{sT+4}, 6
        v_add_u32 v16, s{sT+4}, v1
        v_mov_b32 v17, 0xff800000""")
        for w in range(1, 8):
            a(f"v_cmp_le_u32 s[{40+2*w}:{41+2*w}], {2*w}, v16")
        sc = (18 ** -0.5) * math.log2(math.e) / (KSC * KSC)
        a(f"s_mov_b32 s{sT+4}, {f32(sc)}")
        a(f"s_mov_b32 s{sT+5}, {f32(KSC)}")
    def reads(self):
        a = self.a
        for j in range(3):
            a(f"ds_read_b128 {vr(self.Q+4*j,4)}, v{self.vRd} offset:{8192-32+1024*j}")
        self.rd(0)
    def rd(self, base):
        for w in range(8):
            for j in range(3):
                self.a(f"ds_read_b128 {vr(self.KV+12*w+4*j,4)}, v{self.vRd} offset:{base+j*1280+224-32*w}")
    def compute(self, do):
        a, sT, KV, Q, LG, PH, O = self.a, self.sT, self.KV, self.Q, self.LG, self.PH, self.O
        for w0 in range(0, 8, 2):
            a(f"s_waitcnt lgkmcnt({min(15, 24-3*(w0+2))})")
            a.lines.append(".p2align 3")
            for i in range(9):
                for w in (w0, w0+1):
                    c = "0" if i == 0 else f"v{LG+w}"
                    a(f"v_dot2_f32_bf16 v{LG+w}, v{Q+do+i}, v{KV+12*w+do+i}, {c}")
        self.rd(4096)
        for w in range(1, 8):
            a(f"v_cndmask_b32 v{LG+w}, v17, v{LG+w}, s[{40+2*w}:{41+2*w}]")
        g = LG; m = 18; s = 19
        a(f"v_max3_f32 v{m}, v{g}, v{g+1}, v{g+2}")
        a(f"v_max3_f32 v{m}, v{m}, v{g+3}, v{g+4}")
        a(f"v_max3_f32 v{m}, v{m}, v{g+5}, v{g+6}")
        a(f"v_max_f32 v{m}, v{m}, v{g+7}")
        for w in range(8): a(f"v_sub_f32 v{g+w}, v{g+w}, v{m}")
        for w in range(8): a(f"v_mul_f32 v{g+w}, s{sT+4}, v{g+w}")
        for w in range(8): a(f"v_exp_f32 v{g+w}, v{g+w}")
        for w in range(8): a(f"v_cvt_pk_bf16_f32 v{g+w}, v{g+w}, 0")
        for w in range(8): a(f"v_lshlrev_b32 v{PH+w}, 16, v{g+w}")
        a(f"v_add_f32 v{s}, v{PH}, v{PH+1}")
        for w in range(2, 8): a(f"v_add_f32 v{s}, v{s}, v{PH+w}")
        a(f"v_mul_f32 v{s}, s{sT+5}, v{s}")
        a(f"v_rcp_f32 v{s}, v{s}")
        for w in range(8):
            if w % 2 == 0:
                a(f"s_waitcnt lgkmcnt({min(15, 24-3*(w+2))})")
                a.lines.append(".p2align 3")
            for d in range(9):
                c0 = "0" if w == 0 else f"v{O+2*d}"
                c1 = "0" if w == 0 else f"v{O+2*d+1}"
                a(f"v_dot2_f32_bf16 v{O+2*d}, v{KV+12*w+do+d}, v{LG+w}, {c0}")
                a(f"v_dot2_f32_bf16 v{O+2*d+1}, v{KV+12*w+do+d}, v{PH+w}, {c1}")
        for d in range(18): a(f"v_mul_f32 v{O+d}, v{s}, v{O+d}")
        for d in range(9): a(f"v_cvt_pk_bf16_f32 v{Q+do+d}, v{O+2*d}, v{O+2*d+1}")
        for j in range(3):
            lo, hi = max(do, 4*j), min(do + 9, 4*j + 4)
            while lo < hi:
                n = 1 if lo % 2 else hi - lo
                sfx = {1: "dword", 2: "dwordx2", 3: "dwordx3", 4: "dwordx4"}[n]
                a(f"buffer_store_{sfx} {vr(Q+lo,n)}, v{self.vQo}, s[{self.sUO}:{self.sUO+3}], s{sT} offen offset:{4*(lo-4*j)} sc1")
                lo += n
            if j < 2: a(f"s_add_u32 s{sT}, s{sT}, {OCT}")

UB = 73728
def c_tile(a, sRb, sCg, sT):
    a(f"""s_and_b32 s{sT}, s2, 7
    s_lshr_b32 s{sT+1}, s2, 3
    s_mul_i32 s{sT+2}, s{sT}, 29
    s_min_u32 s{sT}, s{sT}, 2
    s_add_u32 s{sT+2}, s{sT+2}, s{sT}
    s_add_u32 s{sT+2}, s{sT+2}, s{sT+1}
    s_mul_i32 s{sRb}, s{sT+2}, 7282
    s_lshr_b32 s{sRb}, s{sRb}, 16
    s_mul_i32 s{sT}, s{sRb}, 9
    s_sub_u32 s{sCg}, s{sT+2}, s{sT}""")
UFC, vUC = 88, 247
def o_prefetch(a, sWave, sUO, sTt, sT):
    c_tile(a, sT+3, sT+4, sT)
    a(f"""s_min_u32 s{sT+1}, s{sWave}, 4
    s_mul_i32 s{sTt}, s{sT+3}, 5
    s_add_u32 s{sTt}, s{sTt}, s{sT+1}
    s_cmp_ge_u32 s2, 234
    s_cselect_b32 s{sTt}, 128, s{sTt}
    s_min_u32 s{sT}, s{sTt}, 127
    s_lshl_b32 s{sT}, s{sT}, 8
    v_lshrrev_b32 v{vUC}, 4, v1
    v_lshlrev_b32 v{vUC}, 15, v{vUC}
    v_and_b32 v248, 15, v1
    v_lshl_add_u32 v{vUC}, v248, 4, v{vUC}
    v_add_u32 v{vUC}, s{sT}, v{vUC}
    s_mov_b32 s{sT}, {288*OCT}""")
    for k in range(18):
        a(f"buffer_load_dwordx4 {vr(UFC+4*k,4)}, v{vUC}, s[{sUO}:{sUO+3}], s{sT} offen")
        if k < 17: a(f"s_add_u32 s{sT}, s{sT}, {4*OCT}")

def phase_B(a, N):
    pf = a.pf
    ZO = 16384
    def zb(j): return ZO + j*1024 + (j >> 1)*64 + (64 if j == 17 else 0)
    STG = zb(17) + 1024
    FREE = 2 * UB
    NE = 12
    BC = FREE + (18 - NE) * 2048
    sWP, sZQ, sUO, sCP, sBS, sFL = 12, 16, 20, 24, 28, 64
    sWave, sTb, sFb, sOdd, sT = 36, 37, 38, 39, 40
    sI, sSlot, sHi, sA, sZm, sZs, sZ1m, sZ1s = 56, 57, 58, 59, 60, 61, 62, 63
    sTt, sFu = 98, 99
    def common():
        a("s_load_dwordx4 s[4:7], s[0:1], 48")
        a("s_load_dwordx2 s[8:9], s[0:1], 16")
        a("s_load_dwordx2 s[10:11], s[0:1], 80")
        a(f"""s_and_b32 s{sT}, s2, 7
        s_lshr_b32 s{sT+1}, s2, 3
        s_and_b32 s{sTb}, s{sT}, 1
        s_lshl_b32 s{sTb}, s{sTb}, 3
        s_and_b32 s{sT+2}, s{sT+1}, 7
        s_add_u32 s{sTb}, s{sTb}, s{sT+2}
        s_lshr_b32 s{sFb}, s{sT}, 1
        s_lshl_b32 s{sFb}, s{sFb}, 2
        s_lshr_b32 s{sT+2}, s{sT+1}, 3
        s_add_u32 s{sFb}, s{sFb}, s{sT+2}
        s_and_b32 s{sOdd}, s{sFb}, 1
        s_mul_i32 s{sZm}, s{sFb}, 18
        s_lshl_b32 s{sT}, s{sOdd}, 1
        s_add_u32 s{sZs}, s{sZm}, 16
        s_lshl_b32 s{sT+1}, s{sOdd}, 4
        s_sub_u32 s{sZs}, s{sZs}, s{sT+1}
        s_add_u32 s{sZm}, s{sZm}, s{sT}
        s_lshl_b32 s{sZm}, s{sZm}, 15
        s_lshl_b32 s{sZs}, s{sZs}, 15
        s_sub_u32 s{sHi}, {UB}, s{sLo}""")
    ACC, FA, FB, Z1, T = 16, 88, 160, 176, 212
    vL, vZ0, vZ1, vZs, vB0, vB1, vE, vEs = 1, 2, 3, 4, 5, 6, 7, 8
    vBC, vCo, vBo, vC2 = 10, 12, 249, 9
    AD = {vB0: 240, vB1: 241, vZ0: 242, vZ1: 243, vZs: 244}
    a.label(f"{N}_At")
    common()
    a(f"""v_lshrrev_b32 v{T}, 4, v{vL}
    v_and_b32 v{T+1}, 15, v{vL}
    v_bfe_u32 v{T+2}, v{vL}, 2, 2
    v_and_b32 v{T+3}, 3, v{vL}
    v_lshl_add_u32 v{T+4}, v{T}, 3, v{T+2}
    v_lshlrev_b32 v{T+4}, 4, v{T+4}
    v_add_u32 v{T+4}, {ZO}, v{T+4}
    v_lshrrev_b32 v{T+5}, 1, v{T+3}
    v_and_b32 v{T+6}, 1, v{T+3}
    v_lshl_add_u32 v{vZ0}, v{T+3}, 10, v{T+4}
    v_lshl_add_u32 v{vZ0}, v{T+5}, 6, v{vZ0}
    v_lshl_add_u32 v{vZ0}, v{T+6}, 3, v{vZ0}
    v_xor_b32 v{vZ1}, 8, v{vZ0}
    v_mul_u32_u24 v{vZs}, 1088, v{T+5}
    v_add_u32 v{vZs}, v{vZs}, v{T+4}
    v_xor_b32 v{T+6}, v{T+6}, v{T+5}
    v_lshl_add_u32 v{vZs}, v{T+6}, 3, v{vZs}
    s_lshl_b32 s{sT}, s{sWave}, 5
    v_add_u32 v{T+7}, s{sT}, v{T+1}
    v_and_b32 v{T+8}, 7, v{vL}
    v_xor_b32 v{T+8}, v{T+8}, v{T}
    v_lshlrev_b32 v{T+8}, 4, v{T+8}
    v_lshl_add_u32 v{vB0}, v{T+7}, 7, v{T+8}
    v_xor_b32 v{vB1}, 64, v{vB0}""")
    for r, r2 in AD.items(): a(f"v_add_u32 v{r2}, s{sHi}, v{r}")
    for r in AD: a(f"v_add_u32 v{r}, s{sLo}, v{r}")
    a(f"""s_lshl_b32 s{sT+1}, s{sTb}, 7
    v_add_u32 v{T+9}, s{sT+1}, v{T+7}
    v_lshlrev_b32 v{vE}, 4, v{T+9}
    v_lshrrev_b32 v{T+8}, 1, v{T}
    v_lshl_add_u32 v{vEs}, v{T+8}, 15, v{vE}
    v_and_b32 v{T+10}, 1, v{T}
    v_lshl_add_u32 v{vEs}, v{T+10}, 3, v{vEs}
    v_lshl_add_u32 v{vE}, v{T}, 15, v{vE}
    v_lshlrev_b32 v{vCo}, 4, v{T+7}
    v_lshl_add_u32 v{vBo}, v{T+8}, 11, v{vCo}
    v_lshl_add_u32 v{vBo}, v{T+10}, 3, v{vBo}
    v_add_u32 v{vBo}, {FREE+(16-NE)*2048}, v{vBo}
    v_lshl_add_u32 v{vCo}, v{T}, 11, v{vCo}
    v_add_u32 v{vC2}, {FREE}, v{vCo}
    v_add_u32 v{vCo}, s{sLo}, v{vCo}
    v_lshlrev_b32 v{vBC}, 2, v{T+7}
    v_add_u32 v{vBC}, {BC}, v{vBC}
    s_lshl_b32 s{sFu}, s{sTb}, 8
    s_lshl_b32 s{sT}, s{sFb}, 4
    s_add_u32 s{sFu}, s{sFu}, s{sT}
    s_lshl_b32 s{sT}, s{sWave}, 2
    s_add_u32 s{sFu}, s{sFu}, s{sT}
    s_add_u32 s{sFu}, s{sFu}, {FL_U}""")
    for i in range(4, 72): a(f"v_mov_b32 v{ACC+i}, 0")
    at = Attn(a, sZQ, sUO, 70)
    at.setup(sWave, sHi)
    a(f"s_mov_b32 s{sI}, 8")
    a("s_waitcnt lgkmcnt(0)")
    a.srd_off(sUO, 10, 11, CFG.ws_base + UO_OFF, UO_SZ)
    a.srd_off(sFL, 10, 11, CFG.ws_base + FL_OFF, FL_SZ)
    pf.stamp()
    a(f"""v_mov_b32 v18, {TAG_LDS-8}
    v_readfirstlane_b32 s{sTag}, v14
    s_mov_b32 s{sA}, {CFG.bound*16}""")
    a.label(f"{N}_kvw")
    a(f"""ds_read_b64 v[184:185], v18
    s_waitcnt lgkmcnt(0)
    v_xor_b32 v184, s{sTag}, v184
    v_xor_b32 v185, s{sTag}, v185
    v_or_b32 v184, v184, v185
    s_sub_u32 s{sA}, s{sA}, 1
    v_readfirstlane_b32 s{sSlot}, v184
    s_cmp_eq_u32 s{sA}, 0
    s_cbranch_scc1 {N}_kvd
    s_cmp_lg_u32 s{sSlot}, 0
    s_cbranch_scc1 {N}_kvw""")
    a.label(f"{N}_kvd")
    pf.stamp()
    at.reads()
    for w in range(4):
        if w < 3:
            a(f"s_cmp_lg_u32 s{sWave}, {w}")
            a(f"s_cbranch_scc1 {N}_at{w+1}")
        at.compute(w)
        if w < 3:
            a(f"s_branch {N}_atd")
            a.label(f"{N}_at{w+1}")
    a.label(f"{N}_atd")
    for i in range(4): a(f"v_mov_b32 v{ACC+i}, 0")
    def reads(slot, h, st):
        R = (lambda r: AD[r]) if slot >= 2 else (lambda r: r)
        so = (slot & 1) * STG
        out = [f"ds_read_b128 {vr(FB+8*st+4*tt,4)}, v{R(vB1 if h else vB0)} offset:{so+2048*tt}" for tt in range(2)]
        for j in range(9):
            for rd in range(2):
                if j < 8:
                    out.append(f"ds_read_b64_tr_b16 {vr(FA+36*st+4*j+2*rd,2)}, v{R(vZ1 if j&1 else vZ0)} offset:{so+zb(4*(j>>1))-ZO+512*h+64*rd}")
                else:
                    out.append(f"ds_read_b64_tr_b16 {vr(FA+36*st+4*j+2*rd,2)}, v{R(vZs)} offset:{so+zb(16)-ZO+512*h+64*rd}")
        return out
    def phase(st, rds):
        out = []; k = 0
        for j in range(9):
            for tt in range(2):
                if tt == 0 and j % 3 == 0:
                    jj = min(j + 2, 8)
                    out.append(f"s_waitcnt lgkmcnt({min(15, 19-(3+2*jj)+k)})")
                out.append(f"v_mfma_f32_16x16x32_bf16 {vr(ACC+8*j+4*tt,4)}, {vr(FA+36*st+4*j,4)}, {vr(FB+8*st+4*tt,4)}, {vr(ACC+8*j+4*tt,4)}")
                for _ in range(2 if j == 1 else 1):
                    if k < len(rds): out.append(rds[k]); k += 1
        return out
    pf.stamp()
    a("s_barrier")
    pf.stamp()
    for l in reads(0, 0, 0): a(l)
    a.lines.append(".p2align 6")
    a.label(f"{N}_Bloop")
    for slot in range(4):
        for l in phase(0, reads(slot, 1, 1)): a(l)
        if slot == 3:
            a(f"s_sub_u32 s{sI}, s{sI}, 1")
            a("s_waitcnt vmcnt(0)")
        a("s_barrier")
        if CFG.prof > 1: pf.stamp()
        for l in phase(1, reads((slot + 1) % 4, 0, 0)): a(l)
    a(f"s_cmp_lg_u32 s{sI}, 0")
    a(f"s_cbranch_scc1 {N}_Bloop")
    a("s_waitcnt lgkmcnt(0)")
    o_prefetch(a, sWave, sUO, sTt, sT)
    order = [3, 4, 0, 1, 2]
    a("s_barrier")
    a(f"ds_read_b32 v{vBC+1}, v{vBC} offset:64")
    a(f"ds_read_b32 v{vBC}, v{vBC}")
    for i in order:
        for tt in range(2):
            if i < 4: a(f"ds_read_b128 {vr(Z1+8*i+4*tt,4)}, v{vCo if i < 3 else vC2} offset:{8192*(i%3)+256*tt}")
            else: a(f"ds_read_b64 {vr(Z1+32+2*tt,2)}, v{vBo} offset:{256*tt}")
    pf.stamp()
    for oi, i in enumerate(order):
        if i < 4: a(f"s_add_u32 s{sT}, s{sZm}, {4*OCT*i}")
        for tt in range(2):
            n = 4 if i < 4 else 2
            z = Z1 + 8*i + n*tt
            a(f"s_waitcnt lgkmcnt({9-2*oi-tt})")
            for r in range(n):
                j = 2*i + (r >> 1)
                ac = ACC + 8*j + 4*tt + 2*(r & 1)
                t = T + 4*(r % 2)
                a(f"v_add_f32 v{ac}, v{vBC+tt}, v{ac}")
                a(f"v_add_f32 v{ac+1}, v{vBC+tt}, v{ac+1}")
                a(f"v_lshlrev_b32 v{t}, 16, v{z+r}")
                a(f"v_and_b32 v{t+1}, 0xffff0000, v{z+r}")
                a(f"v_mul_f32 v{t}, v{t}, v{ac}")
                a(f"v_mul_f32 v{t+1}, v{t+1}, v{ac+1}")
                a(f"v_cvt_pk_bf16_f32 v{z+r}, v{t}, v{t+1}")
            if i < 4:
                a(f"buffer_store_dwordx4 {vr(z,4)}, v{vE}, s[{sUO}:{sUO+3}], s{sT} offen offset:{256*tt} sc1")
            else:
                a(f"buffer_store_dwordx2 {vr(z,2)}, v{vEs}, s[{sUO}:{sUO+3}], s{sZs} offen offset:{256*tt} sc1")
    a("s_waitcnt vmcnt(10)")
    a(f"s_branch {N}_Cc")
    a.label(f"{N}_Bh")
    common()
    vA, vZ = 2, 3
    a(f"""v_lshrrev_b32 v4, 3, v1
    v_and_b32 v5, 7, v1
    v_xor_b32 v5, v5, v4
    v_lshlrev_b32 v5, 4, v5
    v_lshl_add_u32 v{vA}, v4, 12, v5
    v_lshlrev_b32 v{vZ}, 4, v1
    s_lshl_b32 s{sA}, s{sTb}, 19
    s_lshl_b32 s{sT+1}, s{sTb}, 11
    s_add_u32 s{sZ1m}, s{sZm}, s{sT+1}
    s_add_u32 s{sZ1s}, s{sZs}, s{sT+1}
    s_add_u32 s{sZm}, s{sZm}, {288*OCT}
    s_add_u32 s{sZs}, s{sZs}, {288*OCT}
    s_mov_b32 s{sSlot}, s{sLo}
    s_waitcnt lgkmcnt(0)""")
    a.srd_off(sWP, 10, 11, CFG.ws_base + WP_OFF, WP_SZ)
    a.srd_off(sZQ, 10, 11, CFG.ws_base + ZQ_OFF, ZQ_SZ)
    a.srd_off(sUO, 10, 11, CFG.ws_base + UO_OFF, UO_SZ)
    a.srd_off(sCP, 10, 11, CFG.ws_base + CP_OFF, CP_SZ)
    a.srd(sBS, 4, 5, 4096)
    a(f"s_cmp_ge_u32 s{sWave}, 6")
    a(f"s_cbranch_scc1 {N}_xt")
    at = Attn(a, sZQ, sUO, 70)
    at.kv_prep(4, 8)
    at.base(sT+2, sT+3)
    a(f"""s_lshr_b32 s{sT+1}, s2, 4
    s_max_u32 s{sT+3}, s{sT+1}, 1
    s_sub_u32 s{sT+3}, s{sT+3}, 1
    s_lshl_b32 s{sT+1}, s{sT+1}, 8
    s_lshl_b32 s{sT+3}, s{sT+3}, 8
    s_add_u32 s{sT+1}, s{sT+1}, {FL_Q}
    s_add_u32 s{sT+3}, s{sT+3}, {FL_Q}
    v_lshlrev_b32 v8, 2, v1""")
    poll_flags(a, f"{N}_pq", sFL, [(8, f"s{sT+1}", 1), (8, f"s{sT+3}", 1)], 12, sT)
    pf.stamp()
    a(f"s_cmp_eq_u32 s{sWave}, 5")
    a(f"s_cbranch_scc1 {N}_st1")
    at.stage((0, 1), 4, vZ, sT+2, sHi, sT)
    a(f"s_branch {N}_st2")
    a.label(f"{N}_st1")
    at.stage((2, 3), 4, vZ, sT+2, sHi, sT)
    a.label(f"{N}_st2")
    a(f"""s_mov_b32 s{sT+2}, 1024
    s_lshl_b32 s{sT+3}, s{sWave}, 2
    s_add_u32 s{sT+3}, s{sT+3}, {TAG_LDS-8-16}
    v_mov_b32 v8, s{sT+3}
    v_mov_b32 v9, s{sTag}
    s_waitcnt vmcnt(0)
    ds_write_b32 v8, v9""")
    pf.stamp()
    poll_flags(a, f"{N}_pw", sFL, [(vZ, "0", 4), (vZ, f"s{sT+2}", 4)], 16, sT)
    pf.stamp()
    items = [("A", i) for i in range(16)] + [("Z", j) for j in range(18)]
    sN4 = sT + 5
    a(f"s_mov_b32 s{sN4}, 0")
    def issue(p):
        out = []
        for kind, i in items[17*p:17*p+17]:
            if kind == "A":
                out.append(f"s_add_u32 m0, s{sSlot}, {i*1024}")
                out.append(f"s_add_u32 s{sT}, s{sA}, {i*8*4096}")
                out.append(f"buffer_load_dwordx4 v{vA}, s[{sWP}:{sWP+3}], s{sT} offen lds")
            else:
                out.append(f"s_add_u32 m0, s{sSlot}, {zb(i)}")
                out.append(f"s_add_u32 s{sT}, s{sZm if i < 16 else sZs}, {(i if i < 16 else i-16)*OCT}")
                out.append(f"buffer_load_dwordx4 v{vZ}, s[{sZQ}:{sZQ+3}], s{sT} offen lds")
        out += [f"s_add_u32 s{sA}, s{sA}, 128", f"s_add_u32 s{sZm}, s{sZm}, 1024", f"s_add_u32 s{sZs}, s{sZs}, 1024",
                f"s_add_u32 s{sN4}, s{sN4}, 1", f"s_bitcmp1_b32 s{sN4}, 1", f"s_cselect_b32 s{sSlot}, s{sHi}, s{sLo}",
                f"s_bitcmp1_b32 s{sN4}, 0", f"s_cselect_b32 s{sT}, {STG}, 0", f"s_add_u32 s{sSlot}, s{sSlot}, s{sT}"]
        return out
    for p in range(2):
        if p == 0:
            a(f"s_cmp_eq_u32 s{sWave}, 5")
            a(f"s_cbranch_scc1 {N}_prod1")
        else:
            a.label(f"{N}_prod1")
        for st in range(2):
            for l in issue(p): a(l)
        a("s_waitcnt vmcnt(17)")
        a("s_barrier")
        a(f"s_mov_b32 s{sI}, 30")
        a.label(f"{N}_Bploop{p}")
        for l in issue(p): a(l)
        a("s_waitcnt vmcnt(17)")
        a("s_barrier")
        a(f"s_sub_u32 s{sI}, s{sI}, 1")
        a(f"s_cmp_lg_u32 s{sI}, 0")
        a(f"s_cbranch_scc1 {N}_Bploop{p}")
        a(f"s_branch {N}_Bpend")
    a.label(f"{N}_Bpend")
    a("s_waitcnt vmcnt(0)")
    a("s_barrier")
    a("s_barrier")
    a("s_barrier")
    a(f"s_branch {N}_Cp")
    a.label(f"{N}_xt")
    a(f"s_cmp_eq_u32 s{sWave}, 7")
    a(f"s_cbranch_scc1 {N}_xtrb")
    nb = [0]
    a(f"""s_mul_i32 s{sT+1}, s2, {81*128}
    s_add_u32 s68, s6, s{sT+1}
    s_addc_u32 s69, s7, 0
    s_mul_i32 s{sT+1}, s2, {21*128}
    s_min_u32 s{sT+1}, s{sT+1}, {(5184-21)*128}
    s_add_u32 s70, s8, s{sT+1}
    s_addc_u32 s71, s9, 0""")
    spf = [f"s_load_dword s{74+i%6}, s[70:71], {64*i}" for i in range(42)] + [f"s_load_dword s{74+i%6}, s[68:69], {64*i}" for i in range(162)]
    def bar(n=1, pfn=CFG.kb_spf):
        for _ in range(n):
            a("s_barrier"); nb[0] += 1
            if nb[0] >= 3:
                for _ in range(pfn):
                    if spf: a(spf.pop(0))
    RBL = CFG.ka_rbl
    a(f"""s_and_b32 s{sT}, s2, 7
    s_lshr_b32 s{sT+1}, s2, 3
    s_and_b32 s{sT+2}, s{sT}, {(16>>RBL)-1}
    s_lshl_b32 s{sT+2}, s{sT+2}, {RBL}
    s_and_b32 s{sT+3}, s{sT+1}, {(1<<RBL)-1}
    s_add_u32 s{sT+2}, s{sT+2}, s{sT+3}
    s_lshr_b32 s{sT+3}, s{sT}, {4-RBL}
    s_lshl_b32 s{sT+3}, s{sT+3}, {5-RBL}
    s_lshr_b32 s{sT+4}, s{sT+1}, {RBL}
    s_add_u32 s{sT+3}, s{sT+3}, s{sT+4}
    s_lshl_b32 s{sT+2}, s{sT+2}, 6
    s_lshl_b32 s{sT+3}, s{sT+3}, 2
    s_add_u32 s{sT+2}, s{sT+2}, s{sT+3}
    s_add_u32 s{sT+2}, s{sT+2}, {FL_E}
    v_mov_b32 v4, 0
    v_mov_b32 v5, s{sTag}""")
    bar(2)
    a("s_waitcnt vmcnt(0)")
    bar(3)
    a(f"buffer_store_dword v5, v4, s[{sFL}:{sFL+3}], s{sT+2} offen sc1")
    XB = CFG.kb_xb
    bar(XB - 9)
    a(f"s_mov_b32 s{sT+1}, {FL_E}")
    poll_flags(a, f"{N}_pe", sFL, [(vZ, f"s{sT+1}", 4)], 8, sT)
    a(f"""s_lshl_b32 s{sT}, s{sTb}, 9
    s_lshr_b32 s{sT+1}, s{sT}, 1
    v_lshlrev_b32 v4, 3, v1
    v_lshlrev_b32 v5, 2, v1""")
    bar()
    a(f"buffer_load_dword v8, v5, s[{sBS}:{sBS+3}], s{sT+1} offen")
    for i in range(32):
        a(f"buffer_load_dwordx2 {vr(16+2*i,2)}, v4, s[{sCP}:{sCP+3}], s{sT} offen")
        a(f"s_add_u32 s{sT}, s{sT}, 8192")
        if i in (10, 21, 31): bar()
    assert not spf and nb[0] == XB, (len(spf), nb[0])
    for j in range(NE, 18):
        a(f"s_mov_b32 m0, {FREE+(j-NE)*2048}")
        a(f"s_add_u32 s{sT}, s{sZ1m if j < 16 else sZ1s}, {(j if j < 16 else j-16)*OCT}")
        for h in range(2):
            a(f"buffer_load_dwordx4 v{vZ}, s[{sZQ}:{sZQ+3}], s{sT} offen offset:{1024*h} lds")
    bar(32 - nb[0])
    a("s_waitcnt vmcnt(12)")
    for i in range(1, 32):
        a(f"v_add_f32 v16, v16, v{16+2*i}")
        a(f"v_add_f32 v17, v17, v{17+2*i}")
        if i == 12: bar()
    a(f"""s_mov_b32 s{sT}, {f32(1.0/KSC)}
    v_and_b32 v9, 0xffff0000, v8
    v_lshlrev_b32 v8, 16, v8
    v_fma_f32 v8, v8, s{sT}, -v16
    v_fma_f32 v9, v9, s{sT}, -v17
    v_add_u32 v4, {BC}, v4
    ds_write_b64 v4, v[8:9]
    s_waitcnt vmcnt(0) lgkmcnt(0)""")
    bar()
    assert nb[0] == 34, nb[0]
    pf.flush(sWave)
    a("s_endpgm")
    a.label(f"{N}_xtrb")
    def barloop(n, nm):
        a(f"s_mov_b32 s{sI}, {n}")
        a.label(nm)
        a("s_barrier")
        a(f"s_sub_u32 s{sI}, s{sI}, 1")
        a(f"s_cmp_lg_u32 s{sI}, 0")
        a(f"s_cbranch_scc1 {nm}")
    a("s_barrier")
    a("s_barrier")
    a("s_waitcnt vmcnt(0)")
    barloop(XB - 2, f"{N}_xb_loop")
    a(f"v_add_u32 v4, s{sLo}, v{vZ}")
    for j in range(NE):
        a(f"s_add_u32 s{sT}, s{sZ1m}, {j*OCT}")
        for h in range(2):
            a(f"buffer_load_dwordx4 {vr(160+8*j+4*h,4)}, v{vZ}, s[{sZQ}:{sZQ+3}], s{sT} offen offset:{1024*h}")
        if j == NE // 2 - 1: a("s_barrier")
    for _ in range(32 - XB - 1): a("s_barrier")
    for j in range(NE):
        a(f"s_waitcnt vmcnt({2*(NE-1-j)})")
        for h in range(2): a(f"ds_write_b128 v4, {vr(160+8*j+4*h,4)} offset:{2048*j+1024*h}")
        if j == NE // 2 - 1: a("s_barrier")
    a("s_waitcnt lgkmcnt(0)")
    a("s_barrier")
    o_prefetch(a, sWave, sUO, sTt, sT)
    a(f"s_mov_b32 s{sFu}, 0x7f000000")
    a("s_waitcnt vmcnt(0)")
    a(f"s_branch {N}_Cc")

def phase_C(a, N):
    pf = a.pf
    NS = 9
    sUO, sWO, sWA, sX, sOUT, sDM, sFL = 20, 16, 12, 24, 28, 32, 64
    sWave, sRb, sCg, sT = 36, 37, 38, 40
    sI, sU, sW, sHi = 50, 51, 52, 53
    sTt, sFu = 98, 99
    def common():
        a("s_load_dwordx2 s[4:5], s[0:1], 0")
        a("s_load_dwordx2 s[6:7], s[0:1], 16")
        a("s_load_dwordx4 s[8:11], s[0:1], 56")
        c_tile(a, sRb, sCg, sT)
        a(f"s_sub_u32 s{sHi}, {UB}, s{sLo}")
    a.label(f"{N}_Cc")
    pf.stamp()
    a(f"""v_mov_b32 v13, 0
    s_cmp_lt_u32 s{sTt}, 128
    s_cbranch_scc1 {N}_Ctile
    s_waitcnt vmcnt(0)
    buffer_store_dword v14, v13, s[{sFL}:{sFL+3}], s{sFu} offen sc1""")
    pf.flush(sWave)
    a("s_endpgm")
    a.label(f"{N}_Ctile")
    common()
    ACC, SV, XR, T, UF, FA = 16, 32, 48, 56, UFC, 160
    FAS = [160, 192, 72 - 0]
    vL, vU, vA, vXo, vA8 = 1, vUC, 4, 3, 8
    FAB = [160, 192, 224]
    vU2 = 12
    a(f"""v_mov_b32 v{vU2}, v{vUC}
    v_lshrrev_b32 v{T}, 4, v{vL}
    v_and_b32 v{T+1}, 15, v{vL}
    s_lshl_b32 s{sT}, s{sTt}, 4
    v_add_u32 v{T+2}, s{sT}, v{T+1}
    s_mov_b32 s{sU}, 0
    v_mul_u32_u24 v{vXo}, 1152, v{T+2}
    v_and_b32 v{T+3}, 1, v{T}
    v_lshl_add_u32 v{vXo}, v{T+3}, 5, v{vXo}
    v_lshrrev_b32 v{T+3}, 1, v{T}
    v_lshl_add_u32 v{vXo}, v{T+3}, 4, v{vXo}
    s_lshl_b32 s{sT+1}, s{sCg}, 7
    v_bfe_u32 v{T+3}, v{vL}, 2, 2
    v_lshl_add_u32 v{T+4}, v{T}, 3, v{T+3}
    v_lshlrev_b32 v{T+4}, 7, v{T+4}
    v_and_b32 v{T+5}, 3, v{vL}
    v_lshl_add_u32 v{T+4}, v{T+5}, 3, v{T+4}
    v_lshrrev_b32 v{T+3}, 1, v{T+3}
    v_and_b32 v{T+5}, 1, v{T}
    v_lshl_add_u32 v{T+3}, v{T+5}, 1, v{T+3}
    v_lshl_add_u32 v{vA}, v{T+3}, 5, v{T+4}
    v_add_u32 v{vA}, s{sHi}, v{vA}
    v_xor_b32 v{vA+1}, 32, v{vA}
    v_xor_b32 v{vA+2}, 64, v{vA}
    v_xor_b32 v{vA+3}, 96, v{vA}""")
    for j in range(4): a(f"v_add_u32 v{vA8+j}, {8*8192}, v{vA+j}")
    for i in range(16): a(f"v_mov_b32 v{ACC+i}, 0")
    def uload(slot):
        return [f"buffer_load_dwordx4 {vr(UF+4*slot,4)}, v{vU2}, s[{sUO}:{sUO+3}], s{sU} offen",
                f"s_add_u32 s{sU}, s{sU}, {4*OCT}"]
    def reads(st):
        st %= 9
        return [f"ds_read_b64_tr_b16 {vr(FAB[st%3]+16*h+4*j+2*rd,2)}, v{(vA8 if st == 8 else vA)+j} offset:{(st%8)*8192+4096*h+512*rd}"
                for h in range(2) for j in range(4) for rd in range(2)]
    a(f"s_mov_b32 s{sI}, 4")
    pf.stamp()
    a("s_barrier")
    pf.stamp()
    for l in reads(0): a(l)
    a("s_waitcnt lgkmcnt(0)")
    a.srd(sX, 4, 5, 2048 * 1152)
    a.srd(sOUT, 10, 11, 2048 * 1152)
    def cpass(first):
        acc = SV if first else ACC
        for st in range(9):
            a("s_barrier")
            rd = reads(st + 1)
            k = 0
            for h in range(2):
                ks = 2*st + h
                if not first: a(f"s_waitcnt vmcnt({15})")
                for j in range(4):
                    c = "0" if (first and ks == 0) else vr(acc+4*j, 4)
                    a(f"v_mfma_f32_16x16x32_bf16 {vr(acc+4*j,4)}, {vr(FAB[st%3]+16*h+4*j,4)}, {vr(UF+4*ks,4)}, {c}")
                    for _ in range(3):
                        if k < 16: a(rd[k]); k += 1
                if not first:
                    for l in uload((ks + 16) % 18): a(l)
                elif st >= 7:
                    for q in range(4):
                        for l in uload(4*(ks - 14) + q): a(l)
            if first and st == CFG.kc_fu:
                a("s_waitcnt vmcnt(0)")
                a(f"buffer_store_dword v14, v13, s[{sFL}:{sFL+3}], s{sFu} offen sc1")
                for p in range(2):
                    a(f"buffer_load_dwordx4 {vr(XR+4*p,4)}, v{vXo}, s[{sX}:{sX+3}], s{sT+1} offen offset:{64*p}")
            a("s_waitcnt lgkmcnt(0)")
        pf.stamp()
    cpass(True)
    a.lines.append(".p2align 6")
    a.label(f"{N}_Cloop")
    cpass(False)
    a(f"s_sub_u32 s{sI}, s{sI}, 1")
    a(f"s_cmp_lg_u32 s{sI}, 0")
    a(f"s_cbranch_scc1 {N}_Cloop")
    a(f"s_mov_b32 s{sT}, {f32(-math.log2(math.e))}")
    a("s_nop 4")
    for i in range(16): a(f"v_mul_f32 v{T+i}, s{sT}, v{ACC+i}")
    for i in range(16): a(f"v_exp_f32 v{T+i}, v{T+i}")
    for i in range(16): a(f"v_mul_f32 v{SV+i}, v{SV+i}, v{ACC+i}")
    for i in range(16): a(f"v_add_f32 v{T+i}, 1.0, v{T+i}")
    for i in range(16): a(f"v_rcp_f32 v{T+i}, v{T+i}")
    for i in range(16): a(f"v_mul_f32 v{SV+i}, v{SV+i}, v{T+i}")
    for p in range(2):
        x = XR + 4*p
        a(f"v_permlane16_swap_b32 v{x}, v{x+2}")
        a(f"v_permlane16_swap_b32 v{x+1}, v{x+3}")
        for r in range(4):
            s = SV + 8*p + 2*r
            a(f"v_lshlrev_b32 v{T}, 16, v{x+r}")
            a(f"v_and_b32 v{T+1}, 0xffff0000, v{x+r}")
            a(f"v_add_f32 v{T}, v{T}, v{s}")
            a(f"v_add_f32 v{T+1}, v{T+1}, v{s+1}")
            a(f"v_cvt_pk_bf16_f32 v{x+r}, v{T}, v{T+1}")
        a(f"v_permlane16_swap_b32 v{x}, v{x+2}")
        a(f"v_permlane16_swap_b32 v{x+1}, v{x+3}")
        a(f"buffer_store_dwordx4 {vr(x,4)}, v{vXo}, s[{sOUT}:{sOUT+3}], s{sT+1} offen offset:{64*p}")
    if CFG.prof:
        pf.stamp(); a("s_waitcnt vmcnt(0)")
    pf.flush(sWave)
    a("s_endpgm")
    a.label(f"{N}_Cp")
    a(f"s_cmp_ge_u32 s2, 234")
    a(f"s_cbranch_scc1 {N}_end")
    common()
    vD = 2
    a(f"""v_lshrrev_b32 v8, 3, v1
    v_and_b32 v9, 7, v1
    v_lshrrev_b32 v10, 3, v1
    v_and_b32 v10, 2, v10
    v_xor_b32 v9, v9, v10
    v_lshlrev_b32 v9, 4, v9
    v_mul_u32_u24 v{vD}, 1152, v8
    v_add_u32 v{vD}, v{vD}, v9
    v_xor_b32 v{vD+1}, 64, v{vD}
    v_add_u32 v{vD+1}, {8*1152-1024}, v{vD+1}
    v_add_u32 v{vD+2}, {2*(8*1152-1024)}, v{vD}
    v_add_u32 v{vD+3}, {2*(8*1152-1024)}, v{vD+1}
    s_sub_u32 s{sT}, s{sWave}, 4
    s_mul_i32 s{sW}, s{sT}, {32*1152}
    s_lshl_b32 s{sT+1}, s{sCg}, 7
    s_add_u32 s{sW}, s{sW}, s{sT+1}
    s_mov_b32 s{sT+3}, s{sW}
    s_lshl_b32 s{sT+2}, s{sT}, 12
    s_add_u32 s{sT+2}, s{sT+2}, s{sHi}
    s_add_u32 s{sT+5}, s{sHi}, {NS*8192}
    s_mov_b32 s{sT+4}, s{sT+2}
    s_mul_i32 s{sT+6}, s{sRb}, 80
    s_add_u32 s{sT+7}, s{sT+6}, 79
    s_min_u32 s{sT+7}, s{sT+7}, 2047
    s_lshr_b32 s{sT+8}, s{sT+6}, 7
    s_lshl_b32 s{sT+8}, s{sT+8}, 8
    s_add_u32 s{sT+8}, s{sT+8}, {FL_U}
    s_lshr_b32 s{sT+9}, s{sT+7}, 7
    s_lshl_b32 s{sT+9}, s{sT+9}, 8
    s_add_u32 s{sT+9}, s{sT+9}, {FL_U}
    v_lshlrev_b32 v8, 2, v1
    s_waitcnt lgkmcnt(0)""")
    a.srd(sDM, 6, 7, 576 * 1152)
    def issue():
        out = [f"s_mov_b32 m0, s{sT+4}",
               f"s_add_u32 s{sT+4}, s{sT+4}, 8192"]
        out += [f"buffer_load_dwordx4 v{vD+j}, s[{sDM}:{sDM+3}], s{sW} offen offset:{1024*j} lds" for j in range(4)]
        out += [f"s_add_u32 s{sW}, s{sW}, {64*1152}",
                f"s_cmp_ge_u32 s{sT+4}, s{sT+5}",
                f"s_cselect_b32 s{sT+4}, s{sT+2}, s{sT+4}"]
        return out
    for st in range(9):
        for l in issue(): a(l)
    a.srd(sDM, 8, 9, 2304 * 1152)
    a(f"s_mov_b32 s{sW}, s{sT+3}")
    a("s_waitcnt vmcnt(32)")
    pf.stamp()
    a("s_barrier")
    def ploop(n, name):
        a(f"s_mov_b32 s{sI}, {n}")
        a.label(name)
        a("s_waitcnt vmcnt(28)")
        a("s_barrier")
        for l in issue(): a(l)
        a(f"s_sub_u32 s{sI}, s{sI}, 1")
        a(f"s_cmp_lg_u32 s{sI}, 0")
        a(f"s_cbranch_scc1 {name}")
    ploop(7, f"{N}_Cploop")
    poll_flags(a, f"{N}_pu", sFL, [(8, f"s{sT+8}", 1), (8, f"s{sT+9}", 1)], 16, sI)
    pf.stamp()
    ploop(29, f"{N}_Cploop2")
    for n in range(8):
        a(f"s_waitcnt vmcnt({28-4*n})")
        a("s_barrier")
    pf.flush(sWave)
    a.label(f"{N}_end")
    a("s_endpgm")

def gen_M():
    a = Asm(); N = NAME + "_kernel"
    phase_A(a, N); phase_B(a, N); phase_C(a, N)
    return a, kd(N, 256, 256, 102), (N, 256, 512, 163840)

HEADER = open("cdna_kernels/" + NAME + ".s.ref").read().split("; Override")[0]

def build(verbose=False):
    a, k, (n, grid, block, lds) = gen_M()
    txt = HEADER + f"; @launch grid=({grid},1,1) block=({block},1,1) lds={lds}\n"
    lines, ins = fix_hazards(a.lines, verbose, "M")
    print(f"{len(lines)} lines, {ins} hazard nops", file=sys.stderr)
    body = "\n".join(("    " + l if not (l.endswith(":") or l.startswith(".")) else l) for l in lines) + "\n"
    txt += '.amdgcn_target "amdgcn-amd-amdhsa--gfx950"\n.text\n.p2align 8\ncode_begin:\n' + body + "code_end:\n" + k
    return txt

if __name__ == "__main__":
    for arg in sys.argv[2:]:
        if "=" in arg:
            k_, v_ = arg.split("=", 1)
            setattr(CFG, k_, type(getattr(CFG, k_))(v_) if not isinstance(getattr(CFG, k_), bool) else int(v_))
    open(sys.argv[1], "w").write(build(verbose="-v" in sys.argv))
```

```python
import math, struct, sys
from asmlib import *

NAME = "recurrent_scan__sliding_local_dilated__mixer_gmlp__prompt"
def f32(x): return "0x%08x" % struct.unpack("<I", struct.pack("<f", x))[0]

C0 = -2.0 * math.sqrt(2.0 / math.pi) * math.log2(math.e)
C1 = C0 * 0.044715
KSC = -((-C1) ** (1.0 / 3.0))
DELTA = C0 / KSC
EPS = 1e-5
OCT = 32768

class Cfg:
    ws_base = 0
    st_aux_a = "sc1"
    st_aux_n = ""
    st_aux_b = "sc1"
    prof = False
    ka_xbar = -1
    ka_prio = 0
    ka_xpf = 0
    ka_head = 24
    ka_xfirst = 5
    ka_rot = 0
    align = 0
    hprof = 0
    bound = 20000
    ka_try = 2
    kb_xb = 28
    kc_fu = 2
    ka_pst = 13
    ka_spf = 0
    ka_d5 = 8
    kb_x0 = 12
    ka_st_aux = ""
    sleep = 8
    kc_test = 0
    ka_rbl = 2
    ka_nostore = 0
    ka_nodma = 0
    ka_wsp_slot = 0
    ka_x_aux = ""
    ka_pf_aux = ""
    ka_wsp_aux = "nt"
    ka_npre = 26
    codepf = 1
    ka_l2pf = 1
    attn_seg = 36
    ka_stpos = 5
    kb_nomfma = 0
    kb_pf = 1
    kb_eit = 8
    kb_wg = 3
    kb_spf = 10
    kb_abar = 0
    kb_nodma = 0
    kb_noattn = 0
CFG = Cfg()

ZQ_OFF, ZQ_SZ = 0, 792 * OCT
UO_OFF, UO_SZ = 26 << 20, 360 * OCT
WP_OFF, WP_SZ = 38 << 20, 2048 * 4096
ST_OFF, ST_SZ = 47 << 20, 16 * 16 * 2048
CP_OFF, CP_SZ = 48 << 20, 2048 * 128

def kd(name, vgpr, accum, sgpr=96):
    return f""".section .rodata,"a"
.p2align 6
.amdhsa_kernel {name}
  .amdhsa_next_free_vgpr {vgpr}
  .amdhsa_next_free_sgpr {sgpr}
  .amdhsa_accum_offset {accum}
  .amdhsa_group_segment_fixed_size 0
  .amdhsa_kernarg_size 88
  .amdhsa_user_sgpr_count 2
  .amdhsa_user_sgpr_kernarg_segment_ptr 1
  .amdhsa_system_sgpr_workgroup_id_x 1
.end_amdhsa_kernel
"""

PROF_OFF = 64 << 20
class Prof:
    def __init__(self, a, vreg, kidx):
        self.a, self.v, self.k = a, vreg, kidx
    def init(self):
        if not CFG.prof: return
        a = self.a
        a(f"v_mov_b32 v{self.v}, 0")
        a("s_mov_b64 s[84:85], 2")
        a("s_memrealtime s[82:83]")
        a("s_waitcnt lgkmcnt(0)")
        a(f"v_writelane_b32 v{self.v}, s82, 0")
        self.stamp()
    def stamp(self):
        if not CFG.prof: return
        a = self.a
        a("s_memtime s[80:81]")
        a("s_waitcnt lgkmcnt(0)")
        a("s_mov_b64 s[92:93], exec")
        a("s_mov_b64 exec, s[84:85]")
        a(f"v_mov_b32 v{self.v}, s80")
        a("s_mov_b64 exec, s[92:93]")
        a("s_lshl_b64 s[84:85], s[84:85], 1")
    def flush(self, sWave):
        if not CFG.prof: return
        a = self.a
        self.stamp()
        a("s_memrealtime s[82:83]")
        a("s_load_dwordx2 s[86:87], s[0:1], 80")
        a("s_waitcnt lgkmcnt(0)")
        a(f"v_writelane_b32 v{self.v}, s82, 63")
        a.srd_off(88, 86, 87, PROF_OFF + self.k * (1 << 20), 1 << 20)
        a("s_lshl_b32 s85, s2, 3")
        a(f"s_add_u32 s85, s85, s{sWave}")
        a("s_lshl_b32 s85, s85, 8")
        a("s_mov_b64 exec, -1")
        a("v_mbcnt_lo_u32_b32 v0, -1, 0")
        a("v_mbcnt_hi_u32_b32 v0, -1, v0")
        a("v_lshlrev_b32 v0, 2, v0")
        a(f"buffer_store_dword v{self.v}, v0, s[88:91], s85 offen")

def code_prefetch(a, sS, vT, vL, name):
    if not CFG.codepf: return
    h = a.newlabel(name + "_pc")
    a(f"s_getpc_b64 s[{sS}:{sS+1}]")
    a.label(h)
    a(f"s_sub_u32 s{sS}, s{sS}, {h}-code_begin")
    a(f"s_subb_u32 s{sS+1}, s{sS+1}, 0")
    a(f"s_mov_b32 s{sS+2}, code_end-code_begin")
    a(f"s_mov_b32 s{sS+3}, 0x00020000")
    a(f"s_lshr_b32 s{sS+4}, s2, 3")
    a(f"s_lshl_b32 s{sS+4}, s{sS+4}, 13")
    a(f"v_lshlrev_b32 v{vT}, 7, v{vL}")
    a(f"buffer_load_dword v{vT+1}, v{vT}, s[{sS}:{sS+3}], s{sS+4} offen")

def prologue(a, name, ngrid):
    a.lines.append(".text")
    a.lines.append(f".globl {name}")
    a.lines.append(".p2align 8")
    a.lines.append(f".type {name},@function")
    a.label(name)
    a(f"s_cmp_ge_u32 s2, {ngrid}")
    a(f"s_cbranch_scc1 {name}_end")
    if CFG.hprof:
        k = {"ka": 0, "kb": 1, "kc": 2}[name[:2]]
        a(f"""s_cmp_lg_u32 s2, 0
        s_cbranch_scc1 {name}_hp
        s_memrealtime s[82:83]
        s_load_dwordx2 s[86:87], s[0:1], 80
        s_waitcnt lgkmcnt(0)""")
        a.srd_off(88, 86, 87, PROF_OFF, 4096)
        a(f"""v_mov_b32 v1, s82
        v_mov_b32 v2, 0
        buffer_store_dword v1, v2, s[88:91], 0 offen offset:{4*k} sc1
        s_waitcnt vmcnt(0)""")
        a.label(f"{name}_hp")

def hprof_end(a, name):
    if not CFG.hprof: return
    a(f"""s_cmp_lg_u32 s2, 0
    s_cbranch_scc1 {name}_hpe
    s_waitcnt vmcnt(0)
    s_memrealtime s[82:83]
    s_load_dwordx4 s[84:87], s[0:1], 72
    s_waitcnt lgkmcnt(0)""")
    a.srd_off(88, 86, 87, PROF_OFF, 4096)
    a.srd(92, 84, 85, 256)
    a(f"""v_mov_b32 v2, 0
    buffer_load_dwordx3 v[4:6], v2, s[88:91], 0 offen sc1
    v_mov_b32 v7, s82
    s_waitcnt vmcnt(0)
    v_sub_u32 v7, v7, v6
    v_sub_u32 v6, v6, v5
    v_sub_u32 v5, v5, v4
    buffer_store_dwordx4 v[4:7], v2, s[92:95], 0 offen""")
    a.label(f"{name}_hpe")

def cost(l):
    c = 0
    for x in l.split("\n"):
        c += 8 if x.startswith(TRANS) else 4
    return c

def spread(slots, fillers, base=None):
    base = [sum(cost(x) + (4 if x.startswith("v_mfma") else 0) for x in sl) for sl in slots]
    tot = sum(base) + sum(cost(f) for f in fillers)
    out = []; k = 0; cum = 0
    for i, sl in enumerate(slots):
        out += sl; cum += base[i]
        tgt = tot * (i + 1) / len(slots)
        while k < len(fillers) and cum + cost(fillers[k]) / 2 <= tgt:
            out.append(fillers[k]); cum += cost(fillers[k]); k += 1
    return out + fillers[k:]


FL_OFF, FL_SZ = 49 << 20, 20480
FL_W, FL_E, FL_U, FL_Q, FL_TAG = 0, 4096, 8192, 12288, 16384
sTag, sLo = 100, 101
TAG_LDS = 163832

def poll_flags(a, name, sFL, items, vt, sT, on_fail=None):
    a(f"s_mov_b32 s{sT}, {CFG.bound}")
    a.label(name)
    regs = []
    r = vt
    for vo, so, w in items:
        sfx = {1: "dword", 4: "dwordx4"}[w]
        a(f"buffer_load_{sfx} {vr(r,w)}, v{vo}, s[{sFL}:{sFL+3}], {so} offen sc1")
        regs += list(range(r, r + w)); r += w
    a("s_waitcnt vmcnt(0)")
    for x in regs: a(f"v_xor_b32 v{x}, s{sTag}, v{x}")
    for x in regs[1:]: a(f"v_or_b32 v{regs[0]}, v{regs[0]}, v{x}")
    a(f"""v_cmp_ne_u32 vcc, 0, v{regs[0]}
    s_sub_u32 s{sT}, s{sT}, 1
    s_cmp_eq_u32 s{sT}, 0
    s_cbranch_scc1 {name}_ok
    s_cmp_eq_u64 vcc, 0
    s_cbranch_scc1 {name}_ok""")
    if on_fail: on_fail()
    a(f"""s_sleep {CFG.sleep}
    s_branch {name}""")
    a.label(f"{name}_ok")

def phase_A(a, N):
    X, FR, T = 112, 24, 16
    AC = [80, 48]
    W = AC[1]
    vL, vA0, vA1, vPn, vO8, vSt, vStO = 1, 2, 3, 4, 5, 6, 7
    vNm, vSc, vSum = 8, 9, 10
    S = W
    vX0, vX1, vX2, vX3, vSR, vSRs, vXw = W+8, W+9, W+10, W+11, W+12, W+16, W+20
    sX, sWI, sWQ, sZQ, sST, sDM = 12, 16, 20, 24, 28, 32
    sFQ, sFq = 28, 32
    sWave, sRb, sCg = 36, 37, 38
    sNz2, sNg, sN, sZ2s, sZ1m, sQm = 39, 40, 41, 42, 43, 44
    sU, sV, sUn, sMz2, sP8, sOb = 45, 46, 47, 48, 49, 50
    sMq = 52
    sDma, sDstep, sDvs = 54, 55, 56
    sDp, sDc, sDn = 57, 58, 59
    sBufN, sPw, sRot, sRw = 61, 62, 60, 51
    sDl, sOlo, sOhi, sOnes = 63, 64, 65, 66
    sXr = 68
    sT0, sT1, sT2, sSt, sP8i, sP8q, sXb, sXs = 72, 73, 74, 76, 77, 78, 75, 79
    UB = 73728; STG = 2 * UB
    RBL = CFG.ka_rbl
    prologue(a, N, 256)
    pf = Prof(a, 15, 0); pf.init(); a.pf = pf
    a("s_load_dwordx4 s[4:7], s[0:1], 0")
    a("s_load_dwordx4 s[8:11], s[0:1], 32")
    a("s_load_dwordx4 s[96:99], s[0:1], 72")
    a(f"v_and_b32 v{vL}, 63, v0")
    a(f"v_lshrrev_b32 v{T}, 6, v0")
    a(f"v_readfirstlane_b32 s{sWave}, v{T}")
    a(f"""s_and_b32 s{sT0}, s2, 7
    s_lshr_b32 s{sT1}, s2, 3
    s_and_b32 s{sRb}, s{sT0}, {(16>>RBL)-1}
    s_lshl_b32 s{sRb}, s{sRb}, {RBL}
    s_and_b32 s{sT2}, s{sT1}, {(1<<RBL)-1}
    s_add_u32 s{sRb}, s{sRb}, s{sT2}
    s_lshr_b32 s{sCg}, s{sT0}, {4-RBL}
    s_lshl_b32 s{sCg}, s{sCg}, {5-RBL}
    s_lshr_b32 s{sT2}, s{sT1}, {RBL}
    s_add_u32 s{sCg}, s{sCg}, s{sT2}
    s_and_b32 s{sRot}, s{sT1}, {(1<<RBL)-1}
    s_lshl_b32 s{sRot}, s{sRot}, 1
    s_add_u32 s{sRot}, s{sRot}, s{sT2}
    s_mul_i32 s{sRot}, s{sRot}, {CFG.ka_rot}
    s_sub_u32 s{sT2}, s{sRot}, 9
    s_min_u32 s{sRot}, s{sRot}, s{sT2}
    s_sub_u32 s{sT2}, s{sRot}, 9
    s_min_u32 s{sRot}, s{sRot}, s{sT2}
    v_lshrrev_b32 v{T}, 3, v{vL}
    v_and_b32 v{T+1}, 7, v{vL}""")
    unit_lists = f"""s_min_u32 s{sT0}, s{sCg}, 4
    s_lshl_b32 s{sZ2s}, s{sCg}, 1
    s_add_u32 s{sZ2s}, s{sZ2s}, s{sT0}
    s_add_u32 s{sZ2s}, s{sZ2s}, 36
    s_cmp_lt_u32 s{sCg}, 4
    s_cselect_b32 s{sNz2}, 3, 2
    s_max_u32 s{sT0}, s{sCg}, 5
    s_sub_u32 s{sT0}, s{sT0}, 5
    s_add_u32 s{sQm}, s{sCg}, s{sT0}
    s_sub_u32 s{sQm}, s{sQm}, s{sNz2}
    s_cmp_eq_u32 s{sCg}, 4
    s_cselect_b32 s{sNg}, 3, 4
    s_min_u32 s{sT0}, s{sCg}, 5
    s_max_u32 s{sT0}, s{sT0}, 4
    s_sub_u32 s{sT0}, s{sT0}, 4
    s_max_u32 s{sT1}, s{sCg}, 13
    s_sub_u32 s{sT1}, s{sT1}, 13
    s_lshl_b32 s{sZ1m}, s{sCg}, 1
    s_add_u32 s{sZ1m}, s{sZ1m}, s{sT0}
    s_add_u32 s{sZ1m}, s{sZ1m}, s{sT1}
    s_sub_u32 s{sZ1m}, s{sZ1m}, s{sNg}
    s_cmp_lt_u32 s{sCg}, 13
    s_cselect_b32 s{sN}, 6, 7
    s_cselect_b32 s{sLo}, 0, 73728"""
    a(f"s_cmp_ge_u32 s{sWave}, 4")
    a(f"s_cbranch_scc1 {N}_prod")
    a(f"""v_lshrrev_b32 v{T+2}, 4, v{vL}
    v_xor_b32 v{T+2}, v{T+2}, v{T+1}
    v_lshlrev_b32 v{T+2}, 4, v{T+2}
    v_mul_u32_u24 v{vX0}, 1152, v{T}
    v_add_u32 v{vX0}, v{vX0}, v{T+2}
    v_xor_b32 v{vX1}, 64, v{vX0}
    s_lshl_b32 s{sT0}, s{sRb}, 7
    s_lshl_b32 s{sT1}, s{sWave}, 5
    s_add_u32 s{sT0}, s{sT0}, s{sT1}
    s_mul_i32 s{sXr}, s{sT0}, 1152
    s_add_u32 s{sXr+1}, s{sXr}, 8192
    s_add_u32 s{sXr+2}, s{sXr}, 16384
    s_add_u32 s{sXr+3}, s{sXr}, 24576
    s_lshl_b32 s{sXb}, s{sWave}, 14
    s_add_u32 s{sXb}, s{sXb}, {UB}
    s_lshl_b32 s{sXs}, s{sWave}, 12
    s_add_u32 s{sXs}, s{sXs}, {STG}""")
    a("s_waitcnt lgkmcnt(0)")
    if CFG.prof > 2: pf.stamp()
    a.srd(sX, 4, 5, 2048 * 1152)
    a(f"s_lshl_b32 s{sRw}, s{sRot}, 7")
    def xload(j):
        a(f"v_add_u32 v{vX2}, s{sRw}, v{vX0}")
        a(f"v_add_u32 v{vX3}, s{sRw}, v{vX1}")
        if j < 4: a(f"s_add_u32 m0, s{sXb}, {j*4096}")
        elif j == 4: a(f"s_mov_b32 m0, s{sXs}")
        a(f"s_add_u32 s{sRw}, s{sRw}, 128")
        for rg in range(4):
            if j < 5:
                a(f"buffer_load_dwordx4 v{vX3 if rg&1 else vX2}, s[{sX}:{sX+3}], s{sXr+rg} offen offset:{rg*1024} {CFG.ka_x_aux} lds")
            else:
                a(f"buffer_load_dwordx4 {vr(X+16*j+4*rg,4)}, v{vX3 if rg&1 else vX2}, s[{sX}:{sX+3}], s{sXr+rg} offen offset:{rg*1024} {CFG.ka_x_aux}")
        a(f"s_cmp_eq_u32 s{sRw}, 1152")
        a(f"s_cselect_b32 s{sRw}, 0, s{sRw}")
    for j in range(CFG.ka_xfirst): xload(j)
    a.srd_off(sZQ, 98, 99, CFG.ws_base + ZQ_OFF, ZQ_SZ)
    a.srd_off(sFQ, 98, 99, CFG.ws_base + FL_OFF + FL_Q, 4096)
    a(f"""s_lshl_b32 s{sFq}, s{sRb}, 8
    s_lshl_b32 s{sT0}, s{sCg}, 4
    s_add_u32 s{sFq}, s{sFq}, s{sT0}
    s_lshl_b32 s{sT0}, s{sWave}, 2
    s_add_u32 s{sFq}, s{sFq}, s{sT0}
    v_mov_b32 v12, {TAG_LDS}
    v_mov_b32 v13, 0""")
    a(unit_lists)
    a(f"""s_mov_b32 s{sDl}, {f32(DELTA)}
    s_mov_b32 s{sOlo}, 0x00003f80
    s_mov_b32 s{sOhi}, 0x3f800000
    s_mov_b32 s{sOnes}, 0x3f803f80""")
    def cparams():
        return [
            f"s_add_u32 s{sT0}, s{sZ2s}, s{sV}",
            f"s_add_u32 s{sT1}, s{sZ1m}, s{sV}",
            f"s_add_u32 s{sT2}, s{sQm}, s{sV}",
            f"s_add_u32 s{sT2}, s{sT2}, 72",
            f"s_cmp_lt_u32 s{sV}, s{sNg}\n"
            f"s_cselect_b32 s{sUn}, s{sT2}, s{sT1}",
            f"s_cmp_lt_u32 s{sV}, s{sNz2}\n"
            f"s_cselect_b32 s{sUn}, s{sT0}, s{sUn}\n"
            f"s_cselect_b32 s{sMz2}, -1, 0",
            f"s_lshl_b32 s{sDn}, s{sUn}, 18",
        ]
    def traddr(buf):
        return [f"v_and_b32 v{T+7}, s{sMz2}, v{vO8}",
                f"v_xor_b32 v{vA0}, v{T+7}, v{vPn}"] + \
               ([f"v_add_u32 v{vA0}, {UB}, v{vA0}"] if buf else []) + [f"v_xor_b32 v{vA1}, 64, v{vA0}"]
    a(f"s_mov_b32 s{sV}, 0")
    for l in cparams(): a(l)
    a(f"""v_lshrrev_b32 v{T+2}, 5, v{vL}
    v_lshlrev_b32 v{T+2}, 3, v{T+2}
    v_bfe_u32 v{T+3}, v{vL}, 2, 2
    v_add_u32 v{T+2}, v{T+2}, v{T+3}
    v_lshlrev_b32 v{vPn}, 7, v{T+2}
    v_lshrrev_b32 v{T+3}, 1, v{T+3}
    v_lshl_add_u32 v{vPn}, v{T+3}, 6, v{vPn}
    v_bfe_u32 v{T+3}, v{vL}, 4, 1
    v_lshl_add_u32 v{vPn}, v{T+3}, 5, v{vPn}
    v_and_b32 v{T+3}, 1, v{vL}
    v_lshl_add_u32 v{vPn}, v{T+3}, 4, v{vPn}
    v_lshlrev_b32 v{vO8}, 3, v{T+3}
    v_bfe_u32 v{T+3}, v{vL}, 1, 1
    v_lshl_add_u32 v{vPn}, v{T+3}, 3, v{vPn}""")
    for l in traddr(0): a(l)
    a(f"""v_and_b32 v{T+2}, 31, v{vL}
    v_bfe_u32 v{T+3}, v{vL}, 1, 3
    v_lshrrev_b32 v{T+4}, 5, v{vL}
    v_xor_b32 v{T+3}, v{T+3}, v{T+4}
    v_lshlrev_b32 v{T+3}, 4, v{T+3}
    v_lshl_add_u32 v{T+3}, v{T+2}, 7, v{T+3}
    v_add_u32 v{vSR}, s{sXb}, v{T+3}
    v_xor_b32 v{vSR+1}, 32, v{vSR}
    v_xor_b32 v{vSR+2}, 64, v{vSR}
    v_xor_b32 v{vSR+3}, 96, v{vSR}
    v_add_u32 v{vSRs}, s{sXs}, v{T+3}
    v_xor_b32 v{vSRs+1}, 32, v{vSRs}
    v_xor_b32 v{vSRs+2}, 64, v{vSRs}
    v_xor_b32 v{vSRs+3}, 96, v{vSRs}
    v_lshlrev_b32 v{vStO}, 3, v{vL}
    v_add_u32 v{vStO}, s{sXs}, v{vStO}
    s_lshl_b32 s{sT0}, s{sRb}, 7
    s_lshl_b32 s{sT1}, s{sWave}, 5
    s_add_u32 s{sT0}, s{sT0}, s{sT1}
    v_add_u32 v{vSt}, s{sT0}, v{T+2}
    v_lshlrev_b32 v{vSt}, 4, v{vSt}
    v_lshl_add_u32 v{vSt}, v{T+4}, 15, v{vSt}
    v_mov_b32 v{vSum}, 0
    v_mov_b32 v{vSum+1}, 0""")
    pf.stamp()
    def xstats(j):
        for r in range(16):
            x = X + 16*j + r
            q = S + 2*(r % 2)
            first = (j == 0 and r < 2)
            a(f"v_dot2_f32_bf16 v{q}, v{x}, s{sOnes}, {'0' if first else 'v%d' % q}")
            a(f"v_dot2_f32_bf16 v{q+1}, v{x}, v{x}, {'0' if first else 'v%d' % (q+1)}")
    a(f"v_lshlrev_b32 v{vXw}, 4, v{vL}")
    a(f"v_add_u32 v{vXw}, s{sXb}, v{vXw}")
    issued = CFG.ka_xfirst
    for j in range(9):
        a(f"s_waitcnt vmcnt({4*(issued-1-j)})")
        if CFG.prof > 2: pf.stamp()
        if j >= 5:
            for rg in range(4):
                a(f"ds_write_b128 v{vXw}, {vr(X+16*j+4*rg,4)} offset:{(j%5)*4096+rg*1024}")
        for i in range(4):
            if j % 5 < 4: a(f"ds_read_b128 {vr(X+16*j+4*i,4)}, v{vSR+i} offset:{(j%5)*4096}")
            else: a(f"ds_read_b128 {vr(X+16*j+4*i,4)}, v{vSRs+i}")
        if issued < 9:
            xload(issued); issued += 1
        if j > 0:
            a(f"s_waitcnt lgkmcnt({8 if j >= 5 else 4})")
            a.lines.append(".p2align 3")
            xstats(j-1)
    a("s_waitcnt lgkmcnt(0)")
    a.lines.append(".p2align 3")
    xstats(8)
    pf.stamp()
    a(f"""v_add_f32 v{S}, v{S}, v{S+2}
    v_add_f32 v{S+1}, v{S+1}, v{S+3}
    s_mov_b32 s{sT0}, {f32(-1.0/576)}
    s_mov_b32 s{sT1}, {f32(1.0/576)}
    s_mov_b32 s{sT2}, {f32(KSC)}
    v_mov_b32 v{S+2}, v{S}
    v_mov_b32 v{S+3}, v{S+1}
    v_permlane32_swap_b32 v{S}, v{S+2}
    v_permlane32_swap_b32 v{S+1}, v{S+3}
    v_add_f32 v{S}, v{S}, v{S+2}
    v_add_f32 v{S+1}, v{S+1}, v{S+3}
    v_mul_f32 v{vNm}, s{sT0}, v{S}
    v_mul_f32 v{S+1}, s{sT1}, v{S+1}
    v_fma_f32 v{S+1}, -v{vNm}, v{vNm}, v{S+1}
    v_max_f32 v{S+1}, 0, v{S+1}
    v_add_f32 v{S+1}, {f32(EPS)}, v{S+1}
    v_rsq_f32 v{S+1}, v{S+1}
    s_mov_b32 s{sU}, 0
    s_mov_b32 s{sDc}, s{sDn}
    s_mov_b32 s{sDp}, s{sDn}
    v_mul_f32 v{vSc}, s{sT2}, v{S+1}""")
    CT = [W, W+2, W+4, W+6]
    def center(kk):
        o = []
        for r in range(4):
            x = X + 4*kk + r
            o.append(f"v_dot2_f32_bf16 v{CT[r]}, v{x}, s{sOlo}, v{vNm}")
            o.append(f"v_dot2_f32_bf16 v{CT[r]+1}, v{x}, s{sOhi}, v{vNm}")
        for r in range(4):
            o.append(f"v_cvt_pk_bf16_f32 v{X+4*kk+r}, v{CT[r]}, v{CT[r]+1}")
        return o
    def center_plain(kk):
        o = []
        for r in range(4):
            x = X + 4*kk + r
            o += [f"v_lshlrev_b32 v{CT[r]}, 16, v{x}", f"v_and_b32 v{CT[r]+1}, 0xffff0000, v{x}",
                  f"v_add_f32 v{CT[r]}, v{vNm}, v{CT[r]}", f"v_add_f32 v{CT[r]+1}, v{vNm}, v{CT[r]+1}",
                  f"v_cvt_pk_bf16_f32 v{x}, v{CT[r]}, v{CT[r]+1}"]
        return o
    NPRE = CFG.ka_npre
    a.lines.append(".p2align 3")
    for kk in range(NPRE):
        for l in center(kk): a(l)
    pf.stamp()
    a("s_barrier")
    pf.stamp()

    def reads(kk, t):
        st = kk % 3
        off = (kk % 18) * 2048
        return [f"ds_read_b64_tr_b16 {vr(FR+8*st+4*t+2*h,2)}, v{vA1 if t else vA0} offset:{off+512*h}" for h in range(2)]
    def mfma(par, kk, t):
        st = kk % 3; acc = AC[par] + 16*t
        c = "0" if kk == 0 else vr(acc, 16)
        return f"v_mfma_f32_32x32x16_bf16 {vr(acc,16)}, {vr(FR+8*st+4*t,4)}, {vr(X+4*kk,4)}, {c}"
    def stores(E, m):
        if CFG.ka_nostore: return []
        return [f"s_add_u32 s{sSt}, s{sDp}, {2*m*OCT}",
                f"buffer_store_dwordx4 {vr(E+8*m,4)}, v{vSt}, s[{sZQ}:{sZQ+3}], s{sSt} offen {CFG.st_aux_a}"]
    def epi(kind, E):
        out = []
        if kind == "P":
            for e in range(32):
                out.append(f"v_mul_f32 v{E+e}, v{vSc}, v{E+e}")
                if e % 2 == 1 and e >= 3:
                    p = e - 3; out.append(f"v_cvt_pk_bf16_f32 v{E+(p//8)*8+(p%8)//2}, v{E+p}, v{E+p+1}")
            out.append(f"v_cvt_pk_bf16_f32 v{E+27}, v{E+30}, v{E+31}")
            return out
        def st(k, e):
            w = E + e; t = T + e % 6
            return [f"v_mul_f32 v{w}, v{vSc}, v{w}", f"v_fma_f32 v{t}, v{w}, v{w}, s{sDl}", f"v_mul_f32 v{t}, v{t}, v{w}",
                    f"v_exp_f32 v{t}, v{t}", f"v_add_f32 v{t}, 1.0, v{t}", f"v_rcp_f32 v{t}, v{t}", f"v_mul_f32 v{w}, v{t}, v{w}"][k]
        for i in range(32 + 7):
            for k in (6, 3, 0, 4, 1, 5, 2):
                e = i - k
                if 0 <= e < 32: out.append(st(k, e))
            e = i - 7
            if 0 <= e < 32 and e % 2 == 1:
                p = e - 1; out.append(f"v_cvt_pk_bf16_f32 v{E+(p//8)*8+(p%8)//2}, v{E+p}, v{E+p+1}")
        return out
    def stats(E):
        out = []
        for m in range(4):
            for i in range(4):
                b = E + 8*m
                out.append(f"v_dot2_f32_bf16 v{vSum}, v{b+i}, s{sOnes}, v{vSum}")
                out.append(f"v_dot2_f32_bf16 v{vSum+1}, v{b+i}, v{b+i}, v{vSum+1}")
        return out
    def body(kind, par):
        E = AC[1 - par]
        if kind == "F":
            for l in reads(0, 0) + reads(0, 1) + reads(1, 0) + reads(1, 1): a(l)
        a.label(f"{N}_{kind}{par}")
        def cbar():
            if kind in "FG": return ["s_barrier"]
            sk = a.newlabel(N + "_sk")
            return [f"s_cmp_eq_u32 s{sV}, s{sN}\ns_cbranch_scc1 {sk}\ns_barrier\n{sk}:"]
        slots = []
        for kk in range(0, 36):
            s0 = ["s_waitcnt lgkmcnt(4)", mfma(par, kk, 0)]
            s1 = [mfma(par, kk, 1)]
            if kk == 0: s0 += [f"s_add_u32 s{sV}, s{sU}, 1"]
            if kk == 1 and kind != "F": s0 += ["s_barrier"]
            if kk == 33 and kind == "P":
                s0 += [f"s_cmp_eq_u32 s{sU}, s{sNg}\ns_cselect_b32 s{sSt}, s{sFq}, 0x7f000000", "s_waitcnt vmcnt(0)",
                       f"buffer_store_dword v14, v13, s[{sFQ}:{sFQ+3}], s{sSt} offen sc1"]
            if kk == 20 and kind == "P": s1 += ["ds_read_b32 v14, v12"]
            if kk == 34: s0 += ["s_barrier"]
            if kk + 2 == 18:
                s0 += [f"v_add_u32 v{vA0}, {18*2048}, v{vA0}", f"v_add_u32 v{vA1}, {18*2048}, v{vA1}"]
            s0 += reads((kk+2) % 36, 0); s1 += reads((kk+2) % 36, 1)
            st0 = CFG.ka_pst if kind == "P" else 36 - CFG.ka_stpos
            if kind not in "FN" and st0 <= kk < st0 + 4:
                s0 += stores(E, kk - st0)
            if kk == 33: s1 += traddr(1 - par)
            slots += [s0, s1]
        if kind == "F":
            ne = 2 * NPRE - 2
            out = spread(slots[:ne], sum([center_plain(kk) for kk in range(NPRE, 36)], []))
            out += interleave(slots[ne:-6], cparams()) + sum(slots[-6:], [])
        elif kind == "N":
            out = slots[0] + interleave(slots[1:20], cparams()) + sum(slots[20:], [])
        else:
            ep = epi(kind, E)
            ne = len(slots) - 2*CFG.ka_stpos + 4 if kind != "P" else 24
            out = slots[0] + spread(slots[1:ne], cparams() + ep) + sum(slots[ne:], [])
        for l in out:
            if CFG.prof > 3 and l in (mfma(par, 30, 0), mfma(par, 2, 0)): pf.stamp()
            a(l)
        if kind == "G":
            a.lines.append(".p2align 3")
            for l in stats(E): a(l)
            a(f"ds_write_b64 v{vStO}, {vr(vSum,2)}")
        a(f"s_mov_b32 s{sDp}, s{sDc}")
        a(f"s_mov_b32 s{sDc}, s{sDn}")
        a(f"s_mov_b32 s{sU}, s{sV}")
        pf.stamp()
        q = 1 - par
        if kind == "F":
            a(f"s_branch {N}_G{q}")
        if kind == "G" and par == 1:
            a(f"s_branch {N}_G0")
        if kind == "G" and par == 0:
            a(f"s_cmp_lt_u32 s{sNz2}, 3")
            a(f"s_cbranch_scc1 {N}_P1")
            E2 = AC[0]
            a("s_nop 7")
            for l in epi("G", E2):
                a(l)
                for m in range(4):
                    if l.startswith(f"v_cvt_pk_bf16_f32 v{E2+8*m+3},"):
                        for x in stores(E2, m): a(x)
            a.lines.append(".p2align 3")
            for l in stats(E2): a(l)
            a(f"ds_write_b64 v{vStO}, {vr(vSum,2)}")
            a("s_waitcnt lgkmcnt(0)")
            pf.stamp()
            a(f"s_branch {N}_N1")
        if kind == "N":
            a(f"s_branch {N}_P{q}")
        if kind == "P":
            a(f"s_cmp_le_u32 s{sU}, s{sNg}")
            a(f"s_cbranch_scc1 {N}_P{q}")
            a(f"s_branch {N}_H{q}")
        if kind == "H":
            a(f"s_cmp_lg_u32 s{sU}, s{sN}")
            a(f"s_cbranch_scc1 {N}_H{q}")
            a(f"s_branch {N}_tail{par}")
    body("F", 0)
    for kind in "GHP":
        for par in (1, 0): body(kind, par)
    body("N", 1)
    for par in range(2):
        a.label(f"{N}_tail{par}")
        pf.stamp()
        a("s_nop 7")
        E = AC[par]
        ep = epi("H", E)
        for l in ep:
            a(l)
            for m in range(4):
                if l.startswith(f"v_cvt_pk_bf16_f32 v{E+8*m+3},"):
                    for x in stores(E, m): a(x)
        pf.stamp()
        a(f"s_branch {N}_At")
    a.label(f"{N}_prod")
    vD, vDin, vDq, vPi, vPq, vWo, vT, vZero, vTg = 2, 6, 7, 8, 9, 10, 20, 11, 24
    sIsT, sSo2 = 63, 50
    a(f"v_mov_b32 v{vZero}, 0")
    WU, P, MH, ML, C, TT = 128, 32, 96, 100, 104, 112
    sWS, sWP, sCP, sDB, sFL = 12, 24, 4, 8, 64
    sPc = sXr + 2
    if CFG.ka_prio: a(f"s_setprio {CFG.ka_prio}")
    a(f"s_cmp_lg_u32 s{sWave}, 4")
    a(f"s_cbranch_scc1 {N}_nopf1")
    code_prefetch(a, 88, vT, vL, N)
    a.label(f"{N}_nopf1")
    if CFG.ka_xpf:
        a(f"""s_sub_u32 s{sT1}, s{sWave}, 4
        s_lshl_b32 s{sT1}, s{sT1}, 5
        s_lshl_b32 s{sT0}, s{sRb}, 7
        s_add_u32 s{sT0}, s{sT0}, s{sT1}
        s_mul_i32 s{sT0}, s{sT0}, 1152
        v_lshrrev_b32 v{vT}, 2, v{vL}
        v_mul_u32_u24 v{vT}, 1152, v{vT}
        v_and_b32 v{vT+1}, 3, v{vL}
        v_lshl_add_u32 v{vT}, v{vT+1}, 7, v{vT}
        s_add_u32 s{sT1}, s{sT0}, {16*1152}
        s_waitcnt lgkmcnt(0)""")
        a.srd(sX, 4, 5, 2048 * 1152)
        a(f"buffer_load_dword v{vT+1}, v{vT}, s[{sX}:{sX+3}], s{sT0} offen offset:640")
        a(f"buffer_load_dword v{vT+2}, v{vT}, s[{sX}:{sX+3}], s{sT1} offen offset:640")
    a(unit_lists)
    a(f"""s_sub_u32 s{sPw}, s{sWave}, 4
    s_and_b32 s{sPc}, s{sPw}, 1
    s_mov_b32 s{sP8i}, {8*9216}
    s_mov_b32 s{sP8q}, {8*3456}
    v_lshrrev_b32 v{T+2}, 2, v{vL}
    v_and_b32 v{T+2}, 4, v{T+2}
    v_xor_b32 v{T+2}, v{T+2}, v{T+1}
    v_lshlrev_b32 v{T+2}, 4, v{T+2}
    v_mul_u32_u24 v{vDin}, 9216, v{T}
    v_add_u32 v{vDin}, v{vDin}, v{T+2}
    v_mul_u32_u24 v{vDq}, 3456, v{T}
    v_add_u32 v{vDq}, v{vDq}, v{T+2}
    v_lshlrev_b32 v{vWo}, 12, v{T}
    v_lshl_add_u32 v{vWo}, v{T+1}, 4, v{vWo}
    s_and_b32 s{sT0}, s{sRb}, {(1<<RBL)-1}
    s_mul_i32 s{sT0}, s{sT0}, {576>>RBL}
    s_mul_i32 s{sT1}, s{sPw}, {144>>RBL}
    s_add_u32 s{sT0}, s{sT0}, s{sT1}
    v_min_u32 v{T+2}, {(144>>RBL)-1}, v{vL}
    v_add_u32 v{T+2}, s{sT0}, v{T+2}
    v_mul_u32_u24 v{vPi}, 9216, v{T+2}
    v_mul_u32_u24 v{vPq}, 3456, v{T+2}""")
    a("s_waitcnt lgkmcnt(0)")
    a.srd(sWI, 8, 9, 576 * 9216)
    a.srd(sWQ, 6, 7, 576 * 3456)
    a(f"s_mov_b32 s{sDM+3}, 0x00020000")
    a.srd(sWS, 10, 11, 2048 * 4096)
    a.srd_off(sWP, 98, 99, CFG.ws_base + WP_OFF, WP_SZ)
    a.srd_off(sST, 98, 99, CFG.ws_base + ST_OFF, ST_SZ)
    a.srd_off(sCP, 98, 99, CFG.ws_base + CP_OFF, CP_SZ)
    a.srd(sDB, 96, 97, 256)
    a.srd_off(sFL, 98, 99, CFG.ws_base + FL_OFF, FL_SZ)
    a(f"""s_lshl_b32 s{sIsT}, s2, 3
    s_or_b32 s{sIsT}, s{sIsT}, s{sPw}
    v_mov_b32 v{vTg}, {FL_TAG}
    s_cmp_lg_u32 s{sIsT}, 0
    s_cbranch_scc1 {N}_notag
    buffer_load_dword v{vTg+1}, v{vTg}, s[{sFL}:{sFL+3}], 0 offen sc1""")
    a.label(f"{N}_notag")
    def pparams():
        a(f"""s_add_u32 s{sT0}, s{sZ2s}, s{sV}
        s_add_u32 s{sT1}, s{sZ1m}, s{sV}
        s_add_u32 s{sT2}, s{sQm}, s{sV}
        s_cmp_lt_u32 s{sV}, s{sNz2}
        s_cselect_b32 s{sUn}, s{sT0}, s{sT1}
        s_sub_u32 s{sT0}, s{sV}, s{sNz2}
        s_sub_u32 s{sT1}, s{sNg}, s{sNz2}
        s_cmp_ge_u32 s{sT0}, s{sT1}
        s_cselect_b32 s{sUn}, s{sUn}, s{sT2}
        s_cselect_b64 s[{sMq}:{sMq+1}], 0, -1
        s_cselect_b64 s[{sDM}:{sDM+1}], s[{sWI}:{sWI+1}], s[{sWQ}:{sWQ+1}]
        s_cselect_b32 s{sDM+2}, s{sWI+2}, s{sWQ+2}
        s_cselect_b32 s{sP8}, s{sP8i}, s{sP8q}
        s_lshl_b32 s{sUn}, s{sUn}, 7
        s_cmp_lt_u32 s{sV}, s{sN}
        s_cselect_b32 s{sUn}, s{sUn}, 0x7f000000""")
    def issue():
        pparams()
        a(f"""v_cndmask_b32 v{vD}, v{vDin}, v{vDq}, s[{sMq}:{sMq+1}]
        s_sub_u32 s{sDvs}, s{sP8}, 1024
        s_lshl_b32 s{sDstep}, s{sP8}, 1
        s_mul_i32 s{sDma}, s{sDstep}, s{sPw}
        s_add_u32 s{sUn}, s{sDma}, s{sUn}
        s_lshl_b32 s{sDstep}, s{sDstep}, 2
        s_mul_i32 s{sDma}, s{sDstep}, s{sRot}
        s_add_u32 s{sDma}, s{sDma}, s{sUn}
        s_mov_b32 s{sRw}, s{sRot}
        v_add_u32 v{vD+1}, s{sDvs}, v{vD}
        s_lshl_b32 s{sT0}, s{sPw}, 11
        s_add_u32 m0, s{sBufN}, s{sT0}
        s_sub_u32 s{sBufN}, {UB}, s{sBufN}
        s_add_u32 s{sV}, s{sV}, 1""")
        for i in range(9):
            for j in range(2):
                if CFG.ka_nodma: continue
                a(f"buffer_load_dwordx4 v{vD+j}, s[{sDM}:{sDM+3}], s{sDma} offen offset:{1024*j} lds")
            if i < 8:
                a(f"s_add_u32 m0, m0, 8192")
                a(f"s_add_u32 s{sDma}, s{sDma}, s{sDstep}")
                a(f"s_add_u32 s{sRw}, s{sRw}, 1")
                a(f"s_cmp_eq_u32 s{sRw}, 9")
                a(f"s_cselect_b32 s{sDma}, s{sUn}, s{sDma}")
    a(f"s_mov_b32 s{sV}, 0")
    a(f"s_mov_b32 s{sBufN}, 0")
    if CFG.ka_xbar >= 0: a("s_barrier")
    issue()
    def l2pf():
        pparams()
        a(f"v_cndmask_b32 v{vT}, v{vPi}, v{vPq}, s[{sMq}:{sMq+1}]")
        a(f"buffer_load_dword v14, v{vT}, s[{sDM}:{sDM+3}], s{sUn} offen {CFG.ka_pf_aux}")
    npf = 1 if CFG.ka_l2pf else 0
    if npf: l2pf()
    if CFG.ka_spf:
        a(f"""s_mul_i32 s{sXr}, s{sRb}, 36
        s_mul_i32 s{sT0}, s{sPw}, 9
        s_add_u32 s{sXr}, s{sXr}, s{sT0}""")
        a.label(f"{N}_spf")
        pparams()
        a(f"""s_lshr_b32 s{sT0}, s{sP8}, 3
        s_mul_i32 s{sT1}, s{sT0}, s{sXr}
        s_add_u32 s{sT1}, s{sT1}, s{sUn}
        s_add_u32 s96, s{sDM}, s{sT1}
        s_addc_u32 s97, s{sDM+1}, 0
        s_mov_b32 s{sT1}, 0""")
        for r in range(9):
            a(f"s_load_dword s{[98,94][r%2]}, s[96:97], s{sT1}")
            a(f"s_load_dword s{[99,95][r%2]}, s[96:97], s{sT1} offset:64")
            if r < 8: a(f"s_add_u32 s{sT1}, s{sT1}, s{sT0}")
        a(f"""s_add_u32 s{sV}, s{sV}, 1
        s_cmp_lt_u32 s{sV}, s{sN}
        s_cbranch_scc1 {N}_spf
        s_mov_b32 s{sV}, 1""")
    a(f"""s_lshl_b32 s{sXr}, s{sCg}, 19
    s_lshl_b32 s{sT0}, s{sRb}, 8
    s_add_u32 s{sXr}, s{sXr}, s{sT0}
    s_lshl_b32 s{sT0}, s{sPc}, 7
    s_add_u32 s{sXr}, s{sXr}, s{sT0}
    s_mov_b32 s{sXr+1}, s{sXr}""")
    a(f"s_waitcnt vmcnt({npf})")
    a(f"""s_cmp_lg_u32 s{sIsT}, 0
    s_cbranch_scc1 {N}_notag2
    v_add_u32 v{vTg+1}, 1, v{vTg+1}
    v_max_u32 v{vTg+1}, 1, v{vTg+1}
    buffer_store_dword v{vTg+1}, v{vTg}, s[{sFL}:{sFL+3}], 0 offen sc1""")
    a.label(f"{N}_notag2")
    pf.stamp()
    a("s_barrier")
    def special(v):
        l = a.newlabel(N + "_sp")
        a(f"s_cmp_lg_u32 s{sV}, {v}")
        a(f"s_cbranch_scc1 {l}")
        return l
    a.label(f"{N}_ploop")
    nopub = a.newlabel(N + "_nopub")
    a(f"s_add_u32 s{sT0}, s{sV}, s{sPw}")
    a(f"s_cmp_lt_u32 s{sT0}, 7")
    a(f"s_cbranch_scc1 {N}_nojob")
    a(f"s_cmp_lg_u32 s{sV}, 5")
    a(f"s_cbranch_scc1 {N}_nojob")
    a(f"s_branch {N}_job")
    a.label(f"{N}_nojob")
    a(f"s_cmp_lg_u32 s{sV}, 4")
    a(f"s_cbranch_scc1 {nopub}")
    a(f"s_cmp_lg_u32 s{sPw}, 0")
    a(f"s_cbranch_scc1 {nopub}")
    a(f"""v_lshrrev_b32 v{vT}, 5, v{vL}
    v_and_b32 v{vT+1}, 31, v{vL}
    v_lshlrev_b32 v{vT}, 12, v{vT}
    v_lshl_add_u32 v{vT}, v{vT+1}, 3, v{vT}
    v_add_u32 v{vT}, {STG}, v{vT}
    ds_read_b64 {vr(P,2)}, v{vT}
    ds_read_b64 {vr(P+8,2)}, v{vT} offset:256
    ds_read_b64 {vr(P+4,2)}, v{vT} offset:8192
    ds_read_b64 {vr(P+10,2)}, v{vT} offset:{8192+256}
    v_lshlrev_b32 v{vT+1}, 4, v{vL}
    s_lshl_b32 s{sT0}, s{sRb}, 4
    s_add_u32 s{sT0}, s{sT0}, s{sCg}
    s_lshl_b32 s{sT0}, s{sT0}, 11
    v_mov_b32 v{P+2}, s{sTag}
    v_mov_b32 v{P+3}, s{sTag}
    v_mov_b32 v{P+6}, s{sTag}
    v_mov_b32 v{P+7}, s{sTag}
    s_waitcnt lgkmcnt(0)
    v_add_f32 v{P}, v{P}, v{P+8}
    v_add_f32 v{P+1}, v{P+1}, v{P+9}
    v_add_f32 v{P+4}, v{P+4}, v{P+10}
    v_add_f32 v{P+5}, v{P+5}, v{P+11}
    buffer_store_dwordx4 {vr(P,4)}, v{vT+1}, s[{sST}:{sST+3}], s{sT0} offen sc1
    buffer_store_dwordx4 {vr(P+4,4)}, v{vT+1}, s[{sST}:{sST+3}], s{sT0} offen offset:1024 sc1""")
    a.label(nopub)
    issue()
    if npf: l2pf()
    l3 = a.newlabel(N + "_l"); l4 = a.newlabel(N + "_l")
    l = special(2)
    a(f"s_cmp_lt_u32 s{sPw}, 2")
    a(f"s_cbranch_scc1 {N}_s0b")
    for i in range(16):
        a(f"buffer_load_dwordx4 {vr(WU+8*i+4,4)}, v{vWo}, s[{sWS}:{sWS+3}], s{sXr+1} offen {CFG.ka_wsp_aux}")
        a(f"s_add_u32 s{sXr+1}, s{sXr+1}, 32768")
    a(f"s_waitcnt vmcnt({16+npf})")
    a(f"s_branch {l3}")
    a.label(f"{N}_s0b")
    a(f"""s_waitcnt vmcnt({npf})
    s_cmp_lg_u32 s{sIsT}, 0
    s_cbranch_scc1 {l3}
    buffer_store_dword v{vTg+1}, v{vZero}, s[{sDB}:{sDB+3}], 0 offen sc1""")
    a(f"s_branch {l3}")
    a.label(l)
    l = special(4)
    a(f"s_mov_b32 s{sT1}, {CFG.bound}")
    a.label(f"{N}_ptag")
    a(f"""buffer_load_dword v{vT+2}, v{vZero}, s[{sDB}:{sDB+3}], 0 offen sc1
    s_waitcnt vmcnt(0)
    v_readfirstlane_b32 s{sTag}, v{vT+2}
    v_mov_b32 v{vT+1}, {TAG_LDS}
    ds_write_b32 v{vT+1}, v{vT+2}
    s_waitcnt lgkmcnt(0)
    s_sub_u32 s{sT1}, s{sT1}, 1
    s_cmp_eq_u32 s{sT1}, 0
    s_cbranch_scc1 {l3}
    s_cmp_lg_u32 s{sTag}, 0
    s_cbranch_scc1 {l3}
    s_sleep 8
    s_branch {N}_ptag""")
    a.label(l)
    a(f"s_cmp_lt_u32 s{sPw}, 2")
    a(f"s_cbranch_scc1 {l4}")
    l = special(5)
    for i in range(16):
        for r in range(4):
            x = WU + 8*i + 4 + r
            a(f"v_lshlrev_b32 v{WU+8*i+2*r}, 16, v{x}")
            a(f"v_and_b32 v{WU+8*i+2*r+1}, 0xffff0000, v{x}")
    a.label(l)
    a.label(l4)
    a(f"s_waitcnt vmcnt({npf})")
    a.label(l3)
    a("s_barrier")
    a("s_barrier")
    a(f"s_cmp_lt_u32 s{sV}, s{sN}")
    a(f"s_cbranch_scc1 {N}_ploop")
    a(f"s_branch {N}_Bh")
    a.label(f"{N}_job")
    pf.stamp()
    sTry = sXr + 3
    a(f"""v_lshlrev_b32 v{vT}, 4, v{vL}
    s_lshl_b32 s{sT0}, s{sRb}, 15
    s_lshl_b32 s{sT1}, s{sPc}, 10
    s_add_u32 s{sSo2}, s{sT0}, s{sT1}
    s_mov_b32 s{sTry}, {CFG.bound}""")
    def full(aux="sc1"):
        a(f"s_mov_b32 s{sT0}, s{sSo2}")
        for i in range(16):
            a(f"buffer_load_dwordx4 {vr(P+4*i,4)}, v{vT}, s[{sST}:{sST+3}], s{sT0} offen offset:{(i%2)*2048} {aux}")
            if i % 2 == 1: a(f"s_add_u32 s{sT0}, s{sT0}, 4096")
    full(CFG.ka_st_aux)
    sSt8 = sXr + 1
    def d5():
        l = a.newlabel(N + "_d5")
        a(f"""s_cmp_lg_u32 s{sSt8}, 0
        s_cbranch_scc1 {l}
        s_mov_b32 s{sSt8}, 1
        s_waitcnt vmcnt({npf})
        s_barrier
        s_barrier
        s_cmp_lt_u32 s{sN}, 7
        s_cbranch_scc1 {l}""")
        issue()
        a.label(l)
    a(f"s_mov_b32 s{sSt8}, 0")
    issue()
    if npf:
        pparams()
        a(f"v_cndmask_b32 v{vT+3}, v{vPi}, v{vPq}, s[{sMq}:{sMq+1}]")
        a(f"buffer_load_dword v14, v{vT+3}, s[{sDM}:{sDM+3}], s{sUn} offen")
    a(f"s_waitcnt vmcnt({18+npf})")
    a(f"s_branch {N}_pst_c")
    a.label(f"{N}_pst")
    d5()
    a("s_sleep 8")
    full()
    a("s_waitcnt vmcnt(0)")
    a.label(f"{N}_pst_c")
    for i in range(16): a(f"v_xor_b32 v{P+4*i+2}, s{sTag}, v{P+4*i+2}")
    for i in range(1, 16): a(f"v_or_b32 v{P+2}, v{P+2}, v{P+4*i+2}")
    a(f"""v_cmp_ne_u32 vcc, 0, v{P+2}
    s_sub_u32 s{sTry}, s{sTry}, 1
    s_cmp_eq_u32 s{sTry}, 0
    s_cbranch_scc1 {N}_pst_ok
    s_cmp_lg_u64 vcc, 0
    s_cbranch_scc1 {N}_pst""")
    a.label(f"{N}_pst_ok")
    pf.stamp()
    a(f"""v_lshlrev_b32 v{vT}, 3, v{vL}
    s_lshl_b32 s{sT1}, s{sPw}, 9
    s_add_u32 s{sT1}, s{sT1}, {STG+4096+2048}
    v_add_u32 v{vT}, s{sT1}, v{vT}
    v_lshlrev_b32 v{vT+1}, 6, v{T+1}
    v_add_u32 v{vT+1}, s{sT1}, v{vT+1}
    s_mov_b32 s{sT0}, {f32(1.0/2304)}
    s_mov_b32 s{sT2}, {f32(1.0/abs(KSC))}""")
    for i in range(1, 16):
        a(f"v_add_f32 v{P}, v{P}, v{P+4*i}")
        a(f"v_add_f32 v{P+1}, v{P+1}, v{P+4*i+1}")
    a(f"""v_mul_f32 v{P}, s{sT0}, v{P}
    v_mul_f32 v{P+1}, s{sT0}, v{P+1}
    v_fma_f32 v{P+1}, -v{P}, v{P}, v{P+1}
    v_max_f32 v{P+1}, 0, v{P+1}
    v_add_f32 v{P+1}, {f32(EPS*KSC*KSC)}, v{P+1}
    v_rsq_f32 v{P+1}, v{P+1}
    v_mul_f32 v{P+1}, s{sT2}, v{P+1}
    ds_write_b64 v{vT}, {vr(P,2)}""")
    for q in range(4):
        a(f"ds_read_b128 {vr(P+4*q,4)}, v{vT+1} offset:{16*q}")
    a("s_waitcnt lgkmcnt(0)")
    for i in range(16):
        for r in range(8): a(f"v_mul_f32 v{WU+8*i+r}, v{P+2*r+1}, v{WU+8*i+r}")
        for r in range(4): a(f"v_cvt_pk_bf16_f32 v{WU+8*i+r}, v{WU+8*i+2*r}, v{WU+8*i+2*r+1}")
        if i == CFG.ka_d5: d5()
        if i >= CFG.ka_d5:
            for q in (range(i + 1) if i == CFG.ka_d5 else [i]):
                a(f"buffer_store_dwordx4 {vr(WU+8*q,4)}, v{vWo}, s[{sWP}:{sWP+3}], s{sXr} offen sc1")
                a(f"s_add_u32 s{sXr}, s{sXr}, 32768")
    pf.stamp()
    a(f"""s_lshl_b32 s{sXr}, s{sCg}, 7
    s_lshl_b32 s{sT1}, s{sRb}, 3
    s_add_u32 s{sXr}, s{sXr}, s{sT1}
    s_lshl_b32 s{sT1}, s{sPc}, 2
    s_add_u32 s{sXr}, s{sXr}, s{sT1}
    v_mov_b32 v{vTg}, s{sTag}
    s_waitcnt vmcnt(16)
    s_barrier
    s_cmp_lt_u32 s{sN}, 7
    s_cbranch_scc1 {N}_noc6
    s_barrier""")
    a.label(f"{N}_noc6")
    a(f"""s_waitcnt vmcnt(0)
    buffer_store_dword v{vTg}, v{vZero}, s[{sFL}:{sFL+3}], s{sXr} offen offset:{FL_W} sc1""")
    pf.stamp()
    C2 = 48
    for p in range(4): a(f"v_cvt_pk_bf16_f32 v{MH+p}, v{P+4*p}, v{P+4*p+2}")
    for p in range(4):
        a(f"v_lshlrev_b32 v{TT}, 16, v{MH+p}")
        a(f"v_and_b32 v{TT+1}, 0xffff0000, v{MH+p}")
        a(f"v_sub_f32 v{TT}, v{P+4*p}, v{TT}")
        a(f"v_sub_f32 v{TT+1}, v{P+4*p+2}, v{TT+1}")
        a(f"v_cvt_pk_bf16_f32 v{ML+p}, v{TT}, v{TT+1}")
    a.lines.append(".p2align 3")
    for i in range(0, 16, 2):
        for r in range(4):
            for q in range(2):
                a(f"v_dot2_f32_bf16 v{C2+i+q}, v{WU+8*(i+q)+r}, v{MH+r}, {'0' if r==0 else 'v%d'%(C2+i+q)}")
            for q in range(2):
                a(f"v_dot2_f32_bf16 v{C2+i+q}, v{WU+8*(i+q)+r}, v{ML+r}, v{C2+i+q}")
    a(f"""s_cmp_lt_u32 s{sN}, 7
    s_cbranch_scc1 {N}_nod7
    s_barrier""")
    a.label(f"{N}_nod7")
    for ctrl in ["quad_perm:[1,0,3,2]", "quad_perm:[2,3,0,1]", "row_half_mirror"]:
        for q in range(16):
            a(f"v_add_f32_dpp v{C2+q}, v{C2+q}, v{C2+q} {ctrl} row_mask:0xf bank_mask:0xf")
    for i in range(1, 8):
        a(f"v_cmp_eq_u32 vcc, {i}, v{T+1}")
        a(f"v_cndmask_b32 v{C2}, v{C2}, v{C2+i}, vcc")
        a(f"v_cndmask_b32 v{C2+8}, v{C2+8}, v{C2+8+i}, vcc")
    a(f"""v_lshlrev_b32 v{vT}, 2, v{T}
    v_lshl_add_u32 v{vT}, v{T+1}, 5, v{vT}
    s_lshl_b32 s{sT0}, s{sCg}, 9
    s_lshl_b32 s{sT1}, s{sRb}, 14
    s_add_u32 s{sT0}, s{sT0}, s{sT1}
    s_lshl_b32 s{sT1}, s{sPc}, 13
    s_add_u32 s{sT0}, s{sT0}, s{sT1}
    buffer_store_dword v{C2}, v{vT}, s[{sCP}:{sCP+3}], s{sT0} offen sc1
    buffer_store_dword v{C2+8}, v{vT}, s[{sCP}:{sCP+3}], s{sT0} offen offset:256 sc1
    s_branch {N}_Bh""")

class Attn:
    KV, Q, LG, PH, O = 88, 184, 196, 204, 212
    vQo, vRd = 245, 246
    def __init__(self, a, sZQ, sUO, sT):
        self.a, self.sZQ, self.sUO, self.sT = a, sZQ, sUO, sT
    def base(self, sD, sT):
        self.a(f"""s_and_b32 s{sD}, s2, 7
        s_mul_i32 s{sD}, s{sD}, {9*OCT}
        s_lshr_b32 s{sT}, s2, 3
        s_lshl_b32 s{sT}, s{sT}, 10
        s_add_u32 s{sD}, s{sD}, s{sT}""")
    def kv_prep(self, vDo, TM):
        a = self.a
        for n in range(4):
            a(f"v_add_u32 v{TM}, {64*n}, v1")
            a(f"v_mul_u32_u24 v{TM+1}, 3277, v{TM}")
            a(f"v_lshrrev_b32 v{TM+1}, 18, v{TM+1}")
            a(f"v_mul_u32_u24 v{TM+2}, 80, v{TM+1}")
            a(f"v_sub_u32 v{TM}, v{TM}, v{TM+2}")
            a(f"v_lshlrev_b32 v{TM}, 4, v{TM}")
            a(f"v_lshl_add_u32 v{vDo+n}, v{TM+1}, 15, v{TM}")
            if n: a(f"v_subrev_u32 v{vDo+n}, {1024*n}, v{vDo+n}")
    def stage(self, heads, vDo, vZ, sB, sL, sT):
        a, sZQ = self.a, self.sZQ
        for kv in (0, 2, 1):
            for w in heads:
                if kv < 2:
                    a(f"s_add_u32 m0, s{sL}, {12288*w+4096*kv}")
                    a(f"s_add_u32 s{sT}, s{sB}, {(576+72+72*kv+(9*w>>2))*OCT-256}")
                    for n in range(4):
                        a(f"buffer_load_dwordx4 v{vDo+n}, s[{sZQ}:{sZQ+3}], s{sT} offen offset:{1024*n} lds")
                else:
                    for j in range(3):
                        a(f"s_add_u32 m0, s{sL}, {12288*w+8192+1024*j}")
                        a(f"s_add_u32 s{sT}, s{sB}, {(576+(9*w>>2)+j)*OCT}")
                        a(f"buffer_load_dwordx4 v{vZ}, s[{sZQ}:{sZQ+3}], s{sT} offen lds")
    def setup(self, sWave, sL):
        a, sT = self.a, self.sT
        self.base(sT, sT+1)
        a(f"""s_mul_i32 s{sT+1}, s{sWave}, 9
        s_lshr_b32 s{sT+1}, s{sT+1}, 2
        s_add_u32 s{sT+1}, s{sT+1}, 288
        s_lshl_b32 s{sT+1}, s{sT+1}, 15
        s_add_u32 s{sT}, s{sT}, s{sT+1}
        v_lshlrev_b32 v{self.vQo}, 4, v1
        s_mul_i32 s{sT+5}, s{sWave}, 12288
        s_add_u32 s{sT+5}, s{sT+5}, s{sL}
        s_add_u32 s{sT+5}, s{sT+5}, 32
        v_add_u32 v{self.vRd}, s{sT+5}, v{self.vQo}
        s_lshr_b32 s{sT+4}, s2, 3
        s_lshl_b32 s{sT+4}, s{sT+4}, 6
        v_add_u32 v16, s{sT+4}, v1
        v_mov_b32 v17, 0xff800000""")
        for w in range(1, 8):
            a(f"v_cmp_le_u32 s[{40+2*w}:{41+2*w}], {2*w}, v16")
        sc = (18 ** -0.5) * math.log2(math.e) / (KSC * KSC)
        a(f"s_mov_b32 s{sT+4}, {f32(sc)}")
        a(f"s_mov_b32 s{sT+5}, {f32(KSC)}")
    def reads(self):
        a = self.a
        for j in range(3):
            a(f"ds_read_b128 {vr(self.Q+4*j,4)}, v{self.vRd} offset:{8192-32+1024*j}")
        self.rd(0)
    def rd(self, base):
        for w in range(8):
            for j in range(3):
                self.a(f"ds_read_b128 {vr(self.KV+12*w+4*j,4)}, v{self.vRd} offset:{base+j*1280+224-32*w}")
    def compute(self, do):
        a, sT, KV, Q, LG, PH, O = self.a, self.sT, self.KV, self.Q, self.LG, self.PH, self.O
        for w0 in range(0, 8, 2):
            a(f"s_waitcnt lgkmcnt({min(15, 24-3*(w0+2))})")
            a.lines.append(".p2align 3")
            for i in range(9):
                for w in (w0, w0+1):
                    c = "0" if i == 0 else f"v{LG+w}"
                    a(f"v_dot2_f32_bf16 v{LG+w}, v{Q+do+i}, v{KV+12*w+do+i}, {c}")
        self.rd(4096)
        for w in range(1, 8):
            a(f"v_cndmask_b32 v{LG+w}, v17, v{LG+w}, s[{40+2*w}:{41+2*w}]")
        g = LG; m = 18; s = 19
        a(f"v_max3_f32 v{m}, v{g}, v{g+1}, v{g+2}")
        a(f"v_max3_f32 v{m}, v{m}, v{g+3}, v{g+4}")
        a(f"v_max3_f32 v{m}, v{m}, v{g+5}, v{g+6}")
        a(f"v_max_f32 v{m}, v{m}, v{g+7}")
        for w in range(8): a(f"v_sub_f32 v{g+w}, v{g+w}, v{m}")
        for w in range(8): a(f"v_mul_f32 v{g+w}, s{sT+4}, v{g+w}")
        for w in range(8): a(f"v_exp_f32 v{g+w}, v{g+w}")
        for w in range(8): a(f"v_cvt_pk_bf16_f32 v{g+w}, v{g+w}, 0")
        for w in range(8): a(f"v_lshlrev_b32 v{PH+w}, 16, v{g+w}")
        a(f"v_add_f32 v{s}, v{PH}, v{PH+1}")
        for w in range(2, 8): a(f"v_add_f32 v{s}, v{s}, v{PH+w}")
        a(f"v_mul_f32 v{s}, s{sT+5}, v{s}")
        a(f"v_rcp_f32 v{s}, v{s}")
        for w in range(8):
            if w % 2 == 0:
                a(f"s_waitcnt lgkmcnt({min(15, 24-3*(w+2))})")
                a.lines.append(".p2align 3")
            for d in range(9):
                c0 = "0" if w == 0 else f"v{O+2*d}"
                c1 = "0" if w == 0 else f"v{O+2*d+1}"
                a(f"v_dot2_f32_bf16 v{O+2*d}, v{KV+12*w+do+d}, v{LG+w}, {c0}")
                a(f"v_dot2_f32_bf16 v{O+2*d+1}, v{KV+12*w+do+d}, v{PH+w}, {c1}")
        for d in range(18): a(f"v_mul_f32 v{O+d}, v{s}, v{O+d}")
        for d in range(9): a(f"v_cvt_pk_bf16_f32 v{Q+do+d}, v{O+2*d}, v{O+2*d+1}")
        for j in range(3):
            lo, hi = max(do, 4*j), min(do + 9, 4*j + 4)
            while lo < hi:
                n = 1 if lo % 2 else hi - lo
                sfx = {1: "dword", 2: "dwordx2", 3: "dwordx3", 4: "dwordx4"}[n]
                a(f"buffer_store_{sfx} {vr(Q+lo,n)}, v{self.vQo}, s[{self.sUO}:{self.sUO+3}], s{sT} offen offset:{4*(lo-4*j)} sc1")
                lo += n
            if j < 2: a(f"s_add_u32 s{sT}, s{sT}, {OCT}")

UB = 73728
def c_tile(a, sRb, sCg, sT):
    a(f"""s_and_b32 s{sT}, s2, 7
    s_lshr_b32 s{sT+1}, s2, 3
    s_mul_i32 s{sT+2}, s{sT}, 29
    s_min_u32 s{sT}, s{sT}, 2
    s_add_u32 s{sT+2}, s{sT+2}, s{sT}
    s_add_u32 s{sT+2}, s{sT+2}, s{sT+1}
    s_mul_i32 s{sRb}, s{sT+2}, 7282
    s_lshr_b32 s{sRb}, s{sRb}, 16
    s_mul_i32 s{sT}, s{sRb}, 9
    s_sub_u32 s{sCg}, s{sT+2}, s{sT}""")
UFC, vUC = 88, 247
def o_prefetch(a, sWave, sUO, sTt, sT, bar_every=0, vUC=vUC, vt=248):
    c_tile(a, sT+3, sT+4, sT)
    a(f"""s_min_u32 s{sT+1}, s{sWave}, 4
    s_mul_i32 s{sTt}, s{sT+3}, 5
    s_add_u32 s{sTt}, s{sTt}, s{sT+1}
    s_cmp_ge_u32 s2, 234
    s_cselect_b32 s{sTt}, 128, s{sTt}
    s_min_u32 s{sT}, s{sTt}, 127
    s_lshl_b32 s{sT}, s{sT}, 8
    v_lshrrev_b32 v{vUC}, 4, v1
    v_lshlrev_b32 v{vUC}, 15, v{vUC}
    v_and_b32 v{vt}, 15, v1
    v_lshl_add_u32 v{vUC}, v{vt}, 4, v{vUC}
    v_add_u32 v{vUC}, s{sT}, v{vUC}
    s_mov_b32 s{sT}, {288*OCT}""")
    for k in range(18):
        a(f"buffer_load_dwordx4 {vr(UFC+4*k,4)}, v{vUC}, s[{sUO}:{sUO+3}], s{sT} offen")
        if k < 17: a(f"s_add_u32 s{sT}, s{sT}, {4*OCT}")
        if bar_every and k % bar_every == bar_every - 1: a("s_barrier")

def phase_B(a, N):
    pf = a.pf
    ZO = 16384
    def zb(j): return ZO + j*1024 + (j >> 1)*64 + (64 if j == 17 else 0)
    STG = zb(17) + 1024
    FREE = 2 * UB
    NE = 12
    BC = FREE + (18 - NE) * 2048
    sWP, sZQ, sUO, sCP, sBS, sFL = 12, 16, 20, 24, 28, 64
    sWave, sTb, sFb, sOdd, sT = 36, 37, 38, 39, 40
    sI, sSlot, sHi, sA, sZm, sZs, sZ1m, sZ1s = 56, 57, 58, 59, 60, 61, 62, 63
    sTt, sFu = 98, 99
    RBL = CFG.ka_rbl
    def common():
        a("s_load_dwordx4 s[4:7], s[0:1], 48")
        a("s_load_dwordx2 s[8:9], s[0:1], 16")
        a("s_load_dwordx2 s[10:11], s[0:1], 80")
        a(f"""s_and_b32 s{sT}, s2, 7
        s_lshr_b32 s{sT+1}, s2, 3
        s_and_b32 s{sFb}, s{sT}, {(16>>RBL)-1}
        s_lshl_b32 s{sFb}, s{sFb}, {RBL}
        s_and_b32 s{sT+2}, s{sT+1}, {(1<<RBL)-1}
        s_add_u32 s{sFb}, s{sFb}, s{sT+2}
        s_lshr_b32 s{sTb}, s{sT}, {4-RBL}
        s_lshl_b32 s{sTb}, s{sTb}, {5-RBL}
        s_lshr_b32 s{sT+2}, s{sT+1}, {RBL}
        s_add_u32 s{sTb}, s{sTb}, s{sT+2}
        s_and_b32 s{sOdd}, s{sFb}, 1
        s_mul_i32 s{sZm}, s{sFb}, 18
        s_lshl_b32 s{sT}, s{sOdd}, 1
        s_add_u32 s{sZs}, s{sZm}, 16
        s_lshl_b32 s{sT+1}, s{sOdd}, 4
        s_sub_u32 s{sZs}, s{sZs}, s{sT+1}
        s_add_u32 s{sZm}, s{sZm}, s{sT}
        s_lshl_b32 s{sZm}, s{sZm}, 15
        s_lshl_b32 s{sZs}, s{sZs}, 15
        s_sub_u32 s{sHi}, {UB}, s{sLo}""")
    ACC, FA, FB, Z1, T = 16, 88, 160, 176, 212
    vL, vZ0, vZ1, vZs, vB0, vB1, vE, vEs = 1, 2, 3, 4, 5, 6, 7, 8
    vBC, vCo, vBo, vC2 = 10, 12, 249, 9
    AD = {vB0: 240, vB1: 241, vZ0: 242, vZ1: 243, vZs: 244}
    a.label(f"{N}_At")
    common()
    a(f"""v_lshrrev_b32 v{T}, 4, v{vL}
    v_and_b32 v{T+1}, 15, v{vL}
    v_bfe_u32 v{T+2}, v{vL}, 2, 2
    v_and_b32 v{T+3}, 3, v{vL}
    v_lshl_add_u32 v{T+4}, v{T}, 3, v{T+2}
    v_lshlrev_b32 v{T+4}, 4, v{T+4}
    v_add_u32 v{T+4}, {ZO}, v{T+4}
    v_lshrrev_b32 v{T+5}, 1, v{T+3}
    v_and_b32 v{T+6}, 1, v{T+3}
    v_lshl_add_u32 v{vZ0}, v{T+3}, 10, v{T+4}
    v_lshl_add_u32 v{vZ0}, v{T+5}, 6, v{vZ0}
    v_lshl_add_u32 v{vZ0}, v{T+6}, 3, v{vZ0}
    v_xor_b32 v{vZ1}, 8, v{vZ0}
    v_mul_u32_u24 v{vZs}, 1088, v{T+5}
    v_add_u32 v{vZs}, v{vZs}, v{T+4}
    v_xor_b32 v{T+6}, v{T+6}, v{T+5}
    v_lshl_add_u32 v{vZs}, v{T+6}, 3, v{vZs}
    s_lshl_b32 s{sT}, s{sWave}, 5
    v_add_u32 v{T+7}, s{sT}, v{T+1}
    v_and_b32 v{T+8}, 7, v{vL}
    v_xor_b32 v{T+8}, v{T+8}, v{T}
    v_lshlrev_b32 v{T+8}, 4, v{T+8}
    v_lshl_add_u32 v{vB0}, v{T+7}, 7, v{T+8}
    v_xor_b32 v{vB1}, 64, v{vB0}""")
    for r, r2 in AD.items(): a(f"v_add_u32 v{r2}, s{sHi}, v{r}")
    for r in AD: a(f"v_add_u32 v{r}, s{sLo}, v{r}")
    a(f"""s_lshl_b32 s{sT+1}, s{sTb}, 7
    v_add_u32 v{T+9}, s{sT+1}, v{T+7}
    v_lshlrev_b32 v{vE}, 4, v{T+9}
    v_lshrrev_b32 v{T+8}, 1, v{T}
    v_lshl_add_u32 v{vEs}, v{T+8}, 15, v{vE}
    v_and_b32 v{T+10}, 1, v{T}
    v_lshl_add_u32 v{vEs}, v{T+10}, 3, v{vEs}
    v_lshl_add_u32 v{vE}, v{T}, 15, v{vE}
    v_lshlrev_b32 v{vCo}, 4, v{T+7}
    v_lshl_add_u32 v{vBo}, v{T+8}, 11, v{vCo}
    v_lshl_add_u32 v{vBo}, v{T+10}, 3, v{vBo}
    v_add_u32 v{vBo}, {FREE+(16-NE)*2048}, v{vBo}
    v_lshl_add_u32 v{vCo}, v{T}, 11, v{vCo}
    v_add_u32 v{vC2}, {FREE}, v{vCo}
    v_add_u32 v{vCo}, s{sLo}, v{vCo}
    v_lshlrev_b32 v{vBC}, 2, v{T+7}
    v_add_u32 v{vBC}, {BC}, v{vBC}
    s_lshl_b32 s{sFu}, s{sTb}, 8
    s_lshl_b32 s{sT}, s{sFb}, 4
    s_add_u32 s{sFu}, s{sFu}, s{sT}
    s_lshl_b32 s{sT}, s{sWave}, 2
    s_add_u32 s{sFu}, s{sFu}, s{sT}
    s_add_u32 s{sFu}, s{sFu}, {FL_U}""")
    for i in range(4, 72): a(f"v_mov_b32 v{ACC+i}, 0")
    at = Attn(a, sZQ, sUO, 70)
    at.setup(sWave, sHi)
    a(f"s_mov_b32 s{sI}, 8")
    a("s_waitcnt lgkmcnt(0)")
    a.srd_off(sUO, 10, 11, CFG.ws_base + UO_OFF, UO_SZ)
    a.srd_off(sFL, 10, 11, CFG.ws_base + FL_OFF, FL_SZ)
    pf.stamp()
    a(f"""v_mov_b32 v18, {TAG_LDS-8}
    v_readfirstlane_b32 s{sTag}, v14
    s_mov_b32 s{sA}, {CFG.bound*16}""")
    a.label(f"{N}_kvw")
    a(f"""ds_read_b64 v[184:185], v18
    s_waitcnt lgkmcnt(0)
    v_xor_b32 v184, s{sTag}, v184
    v_xor_b32 v185, s{sTag}, v185
    v_or_b32 v184, v184, v185
    s_sub_u32 s{sA}, s{sA}, 1
    v_readfirstlane_b32 s{sSlot}, v184
    s_cmp_eq_u32 s{sA}, 0
    s_cbranch_scc1 {N}_kvd
    s_cmp_lg_u32 s{sSlot}, 0
    s_cbranch_scc1 {N}_kvw""")
    a.label(f"{N}_kvd")
    pf.stamp()
    at.reads()
    for w in range(4):
        if w < 3:
            a(f"s_cmp_lg_u32 s{sWave}, {w}")
            a(f"s_cbranch_scc1 {N}_at{w+1}")
        at.compute(w)
        if w < 3:
            a(f"s_branch {N}_atd")
            a.label(f"{N}_at{w+1}")
    a.label(f"{N}_atd")
    for i in range(4): a(f"v_mov_b32 v{ACC+i}, 0")
    def reads(slot, h, st):
        R = (lambda r: AD[r]) if slot >= 2 else (lambda r: r)
        so = (slot & 1) * STG
        out = [f"ds_read_b128 {vr(FB+8*st+4*tt,4)}, v{R(vB1 if h else vB0)} offset:{so+2048*tt}" for tt in range(2)]
        for j in range(9):
            for rd in range(2):
                if j < 8:
                    out.append(f"ds_read_b64_tr_b16 {vr(FA+36*st+4*j+2*rd,2)}, v{R(vZ1 if j&1 else vZ0)} offset:{so+zb(4*(j>>1))-ZO+512*h+64*rd}")
                else:
                    out.append(f"ds_read_b64_tr_b16 {vr(FA+36*st+4*j+2*rd,2)}, v{R(vZs)} offset:{so+zb(16)-ZO+512*h+64*rd}")
        return out
    def phase(st, rds):
        out = []; k = 0
        for j in range(9):
            for tt in range(2):
                if tt == 0 and j % 3 == 0:
                    jj = min(j + 2, 8)
                    out.append(f"s_waitcnt lgkmcnt({min(15, 19-(3+2*jj)+k)})")
                out.append(f"v_mfma_f32_16x16x32_bf16 {vr(ACC+8*j+4*tt,4)}, {vr(FA+36*st+4*j,4)}, {vr(FB+8*st+4*tt,4)}, {vr(ACC+8*j+4*tt,4)}")
                for _ in range(2 if j == 1 else 1):
                    if k < len(rds): out.append(rds[k]); k += 1
        return out
    pf.stamp()
    a("s_barrier")
    pf.stamp()
    for l in reads(0, 0, 0): a(l)
    a.lines.append(".p2align 6")
    a.label(f"{N}_Bloop")
    for slot in range(4):
        for l in phase(0, reads(slot, 1, 1)): a(l)
        if slot == 3:
            a(f"s_sub_u32 s{sI}, s{sI}, 1")
            a("s_waitcnt vmcnt(0)")
        a("s_barrier")
        if CFG.prof > 1: pf.stamp()
        for l in phase(1, reads((slot + 1) % 4, 0, 0)): a(l)
    a(f"s_cmp_lg_u32 s{sI}, 0")
    a(f"s_cbranch_scc1 {N}_Bloop")
    a("s_waitcnt lgkmcnt(0)")
    o_prefetch(a, sWave, sUO, sTt, sT)
    order = [3, 4, 0, 1, 2]
    a("s_barrier")
    a(f"ds_read_b32 v{vBC+1}, v{vBC} offset:64")
    a(f"ds_read_b32 v{vBC}, v{vBC}")
    for i in order:
        for tt in range(2):
            if i < 4: a(f"ds_read_b128 {vr(Z1+8*i+4*tt,4)}, v{vCo if i < 3 else vC2} offset:{8192*(i%3)+256*tt}")
            else: a(f"ds_read_b64 {vr(Z1+32+2*tt,2)}, v{vBo} offset:{256*tt}")
    pf.stamp()
    for oi, i in enumerate(order):
        if i < 4: a(f"s_add_u32 s{sT}, s{sZm}, {4*OCT*i}")
        for tt in range(2):
            n = 4 if i < 4 else 2
            z = Z1 + 8*i + n*tt
            a(f"s_waitcnt lgkmcnt({9-2*oi-tt})")
            for r in range(n):
                j = 2*i + (r >> 1)
                ac = ACC + 8*j + 4*tt + 2*(r & 1)
                t = T + 4*(r % 2)
                a(f"v_add_f32 v{ac}, v{vBC+tt}, v{ac}")
                a(f"v_add_f32 v{ac+1}, v{vBC+tt}, v{ac+1}")
                a(f"v_lshlrev_b32 v{t}, 16, v{z+r}")
                a(f"v_and_b32 v{t+1}, 0xffff0000, v{z+r}")
                a(f"v_mul_f32 v{t}, v{t}, v{ac}")
                a(f"v_mul_f32 v{t+1}, v{t+1}, v{ac+1}")
                a(f"v_cvt_pk_bf16_f32 v{z+r}, v{t}, v{t+1}")
            if i < 4:
                a(f"buffer_store_dwordx4 {vr(z,4)}, v{vE}, s[{sUO}:{sUO+3}], s{sT} offen offset:{256*tt} sc1")
            else:
                a(f"buffer_store_dwordx2 {vr(z,2)}, v{vEs}, s[{sUO}:{sUO+3}], s{sZs} offen offset:{256*tt} sc1")
    a("s_waitcnt vmcnt(10)")
    a(f"s_branch {N}_Cc")
    a.label(f"{N}_Bh")
    common()
    vA, vZ = 2, 3
    a(f"""v_lshrrev_b32 v4, 3, v1
    v_and_b32 v5, 7, v1
    v_xor_b32 v5, v5, v4
    v_lshlrev_b32 v5, 4, v5
    v_lshl_add_u32 v{vA}, v4, 12, v5
    v_lshlrev_b32 v{vZ}, 4, v1
    s_lshl_b32 s{sA}, s{sTb}, 19
    s_lshl_b32 s{sT+1}, s{sTb}, 11
    s_add_u32 s{sZ1m}, s{sZm}, s{sT+1}
    s_add_u32 s{sZ1s}, s{sZs}, s{sT+1}
    s_add_u32 s{sZm}, s{sZm}, {288*OCT}
    s_add_u32 s{sZs}, s{sZs}, {288*OCT}
    s_mov_b32 s{sSlot}, s{sLo}
    s_waitcnt lgkmcnt(0)""")
    a.srd_off(sWP, 10, 11, CFG.ws_base + WP_OFF, WP_SZ)
    a.srd_off(sZQ, 10, 11, CFG.ws_base + ZQ_OFF, ZQ_SZ)
    a.srd_off(sUO, 10, 11, CFG.ws_base + UO_OFF, UO_SZ)
    a.srd_off(sCP, 10, 11, CFG.ws_base + CP_OFF, CP_SZ)
    a.srd(sBS, 4, 5, 4096)
    a(f"s_cmp_ge_u32 s{sWave}, 6")
    a(f"s_cbranch_scc1 {N}_xt")
    at = Attn(a, sZQ, sUO, 70)
    at.kv_prep(4, 8)
    at.base(sT+2, sT+3)
    a(f"""s_lshr_b32 s{sT+1}, s2, 4
    s_max_u32 s{sT+3}, s{sT+1}, 1
    s_sub_u32 s{sT+3}, s{sT+3}, 1
    s_lshl_b32 s{sT+1}, s{sT+1}, 8
    s_lshl_b32 s{sT+3}, s{sT+3}, 8
    s_add_u32 s{sT+1}, s{sT+1}, {FL_Q}
    s_add_u32 s{sT+3}, s{sT+3}, {FL_Q}
    v_lshlrev_b32 v8, 2, v1
    s_mov_b32 s{sI}, 0""")
    def dnbar():
        l = a.newlabel(N + "_dn")
        a(f"s_cmp_lg_u32 s{sI}, 0")
        a(f"s_cbranch_scc1 {l}")
        a("s_barrier")
        a(f"s_mov_b32 s{sI}, 1")
        a.label(l)
    poll_flags(a, f"{N}_pq", sFL, [(8, f"s{sT+1}", 1), (8, f"s{sT+3}", 1)], 12, sT, dnbar)
    pf.stamp()
    dnbar()
    a(f"s_cmp_eq_u32 s{sWave}, 5")
    a(f"s_cbranch_scc1 {N}_st1")
    at.stage((0, 1), 4, vZ, sT+2, sHi, sT)
    a(f"s_branch {N}_st2")
    a.label(f"{N}_st1")
    at.stage((2, 3), 4, vZ, sT+2, sHi, sT)
    a.label(f"{N}_st2")
    a(f"""s_lshl_b32 s{sT+2}, s{sTb}, 7
    v_and_b32 v10, 31, v1
    v_lshlrev_b32 v10, 2, v10
    s_lshl_b32 s{sT+3}, s{sWave}, 2
    s_add_u32 s{sT+3}, s{sT+3}, {TAG_LDS-8-16}
    v_mov_b32 v8, s{sT+3}
    v_mov_b32 v9, s{sTag}
    s_waitcnt vmcnt(0)
    ds_write_b32 v8, v9""")
    pf.stamp()
    for q in range(4): a(f"s_mov_b32 s{sT+4+q}, {FL_Q+1024*q}")
    poll_flags(a, f"{N}_pz", sFL, [(vZ, f"s{sT+4+q}", 4) for q in range(4)] + [(10, f"s{sT+2}", 1)], 16, sT)
    pf.stamp()
    items = [("A", i) for i in range(16)] + [("Z", j) for j in range(18)]
    sN4 = sT + 5
    a(f"s_mov_b32 s{sN4}, 0")
    def issue(p):
        out = []
        for kind, i in items[17*p:17*p+17]:
            if kind == "A":
                out.append(f"s_add_u32 m0, s{sSlot}, {i*1024}")
                out.append(f"s_add_u32 s{sT}, s{sA}, {i*8*4096}")
                out.append(f"buffer_load_dwordx4 v{vA}, s[{sWP}:{sWP+3}], s{sT} offen lds")
            else:
                out.append(f"s_add_u32 m0, s{sSlot}, {zb(i)}")
                out.append(f"s_add_u32 s{sT}, s{sZm if i < 16 else sZs}, {(i if i < 16 else i-16)*OCT}")
                out.append(f"buffer_load_dwordx4 v{vZ}, s[{sZQ}:{sZQ+3}], s{sT} offen lds")
        out += [f"s_add_u32 s{sA}, s{sA}, 128", f"s_add_u32 s{sZm}, s{sZm}, 1024", f"s_add_u32 s{sZs}, s{sZs}, 1024",
                f"s_add_u32 s{sN4}, s{sN4}, 1", f"s_bitcmp1_b32 s{sN4}, 1", f"s_cselect_b32 s{sSlot}, s{sHi}, s{sLo}",
                f"s_bitcmp1_b32 s{sN4}, 0", f"s_cselect_b32 s{sT}, {STG}, 0", f"s_add_u32 s{sSlot}, s{sSlot}, s{sT}"]
        return out
    for p in range(2):
        if p == 0:
            a(f"s_cmp_eq_u32 s{sWave}, 5")
            a(f"s_cbranch_scc1 {N}_prod1")
        else:
            a.label(f"{N}_prod1")
        for st in range(2):
            for l in issue(p): a(l)
        a("s_waitcnt vmcnt(17)")
        a("s_barrier")
        a(f"s_mov_b32 s{sI}, 30")
        a.label(f"{N}_Bploop{p}")
        for l in issue(p): a(l)
        a("s_waitcnt vmcnt(17)")
        a("s_barrier")
        a(f"s_sub_u32 s{sI}, s{sI}, 1")
        a(f"s_cmp_lg_u32 s{sI}, 0")
        a(f"s_cbranch_scc1 {N}_Bploop{p}")
        a(f"s_branch {N}_Bpend")
    a.label(f"{N}_Bpend")
    a("s_waitcnt vmcnt(0)")
    a("s_barrier")
    a(f"s_branch {N}_Cp")
    a.label(f"{N}_xt")
    a(f"s_cmp_eq_u32 s{sWave}, 7")
    a(f"s_cbranch_scc1 {N}_xtrb")
    nb = [0]
    a(f"""s_mul_i32 s{sT+1}, s2, {81*128}
    s_add_u32 s68, s6, s{sT+1}
    s_addc_u32 s69, s7, 0
    s_mul_i32 s{sT+1}, s2, {21*128}
    s_min_u32 s{sT+1}, s{sT+1}, {(5184-21)*128}
    s_add_u32 s70, s8, s{sT+1}
    s_addc_u32 s71, s9, 0""")
    spf = [f"s_load_dword s{74+i%6}, s[70:71], {64*i}" for i in range(42)] + [f"s_load_dword s{74+i%6}, s[68:69], {64*i}" for i in range(162)]
    def bar(n=1, pfn=CFG.kb_spf):
        for _ in range(n):
            a("s_barrier"); nb[0] += 1
            if nb[0] >= 3:
                for _ in range(pfn):
                    if spf: a(spf.pop(0))
    a(f"""s_lshl_b32 s{sT+2}, s2, 2
    s_add_u32 s{sT+2}, s{sT+2}, {FL_E}
    v_mov_b32 v4, 0
    v_mov_b32 v5, s{sTag}""")
    bar(2)
    a("s_waitcnt vmcnt(0)")
    bar(3)
    a(f"buffer_store_dword v5, v4, s[{sFL}:{sFL+3}], s{sT+2} offen sc1")
    X0 = CFG.kb_x0
    bar(X0 - 1 - nb[0])
    a(f"s_mov_b32 s{sT+1}, {FL_E}")
    poll_flags(a, f"{N}_pe", sFL, [(vZ, f"s{sT+1}", 4)], 8, sT)
    a(f"""s_lshl_b32 s{sT+2}, s{sTb}, 9
    s_lshr_b32 s{sT+1}, s{sT+2}, 1
    v_lshlrev_b32 v4, 3, v1
    v_lshlrev_b32 v5, 2, v1""")
    bar()
    a(f"buffer_load_dword v8, v5, s[{sBS}:{sBS+3}], s{sT+1} offen")
    for i in range(32):
        a(f"buffer_load_dwordx2 {vr(16+2*i,2)}, v4, s[{sCP}:{sCP+3}], s{sT+2} offen")
        a(f"s_add_u32 s{sT+2}, s{sT+2}, 8192")
        if i % 4 == 3: bar()
    for j in range(NE, 18):
        a(f"s_mov_b32 m0, {FREE+(j-NE)*2048}")
        a(f"s_add_u32 s{sT}, s{sZ1m if j < 16 else sZ1s}, {(j if j < 16 else j-16)*OCT}")
        for h in range(2):
            a(f"buffer_load_dwordx4 v{vZ}, s[{sZQ}:{sZQ+3}], s{sT} offen offset:{1024*h} lds")
        bar()
    a("s_waitcnt vmcnt(12)")
    for i in range(1, 32):
        a(f"v_add_f32 v16, v16, v{16+2*i}")
        a(f"v_add_f32 v17, v17, v{17+2*i}")
        if i % 10 == 0: bar()
    a(f"""s_mov_b32 s{sT}, {f32(1.0/KSC)}
    v_and_b32 v9, 0xffff0000, v8
    v_lshlrev_b32 v8, 16, v8
    v_fma_f32 v8, v8, s{sT}, -v16
    v_fma_f32 v9, v9, s{sT}, -v17
    v_add_u32 v4, {BC}, v4
    ds_write_b64 v4, v[8:9]
    s_waitcnt vmcnt(0) lgkmcnt(0)""")
    assert nb[0] <= 33 and not spf, (nb[0], len(spf))
    bar()
    pf.flush(sWave)
    a("s_endpgm")
    a.label(f"{N}_xtrb")
    def barloop(n, nm):
        a(f"s_mov_b32 s{sI}, {n}")
        a.label(nm)
        a("s_barrier")
        a(f"s_sub_u32 s{sI}, s{sI}, 1")
        a(f"s_cmp_lg_u32 s{sI}, 0")
        a(f"s_cbranch_scc1 {nm}")
    a("s_barrier")
    a("s_barrier")
    a("s_waitcnt vmcnt(0)")
    barloop(X0 - 2, f"{N}_xb_loop")
    a(f"v_add_u32 v4, s{sLo}, v{vZ}")
    for j in range(NE):
        a(f"s_add_u32 s{sT}, s{sZ1m}, {j*OCT}")
        for h in range(2):
            a(f"buffer_load_dwordx4 {vr(160+8*j+4*h,4)}, v{vZ}, s[{sZQ}:{sZQ+3}], s{sT} offen offset:{1024*h}")
        a("s_barrier")
    o_prefetch(a, sWave, sUO, sTt, sT, bar_every=3, vUC=12, vt=13)
    assert X0 + NE + 6 <= 31
    for _ in range(31 - X0 - NE - 6): a("s_barrier")
    a(f"s_mov_b32 s{sFu}, 0x7f000000")
    a("s_waitcnt vmcnt(0)")
    for j in range(NE):
        for h in range(2): a(f"ds_write_b128 v4, {vr(160+8*j+4*h,4)} offset:{2048*j+1024*h}")
        if j in (4, 9): a("s_barrier")
    a(f"v_mov_b32 v{vUC}, v12")
    a("s_waitcnt lgkmcnt(0)")
    a("s_barrier")
    a(f"s_branch {N}_Cc")

def phase_C(a, N):
    pf = a.pf
    NS = 9
    sUO, sWO, sWA, sX, sOUT, sDM, sFL = 20, 16, 12, 24, 28, 32, 64
    sWave, sRb, sCg, sT = 36, 37, 38, 40
    sI, sU, sW, sHi = 50, 51, 52, 53
    sTt, sFu = 98, 99
    def common():
        a("s_load_dwordx2 s[4:5], s[0:1], 0")
        a("s_load_dwordx2 s[6:7], s[0:1], 16")
        a("s_load_dwordx4 s[8:11], s[0:1], 56")
        c_tile(a, sRb, sCg, sT)
        a(f"s_sub_u32 s{sHi}, {UB}, s{sLo}")
    a.label(f"{N}_Cc")
    pf.stamp()
    a(f"""v_mov_b32 v13, 0
    s_cmp_lt_u32 s{sTt}, 128
    s_cbranch_scc1 {N}_Ctile
    s_waitcnt vmcnt(0)
    buffer_store_dword v14, v13, s[{sFL}:{sFL+3}], s{sFu} offen sc1""")
    pf.flush(sWave)
    a("s_endpgm")
    a.label(f"{N}_Ctile")
    common()
    ACC, SV, XR, T, UF, FA = 16, 32, 48, 56, UFC, 160
    FAS = [160, 192, 72 - 0]
    vL, vU, vA, vXo, vA8 = 1, vUC, 4, 3, 8
    FAB = [160, 192, 224]
    vU2 = 12
    a(f"""v_mov_b32 v{vU2}, v{vUC}
    v_lshrrev_b32 v{T}, 4, v{vL}
    v_and_b32 v{T+1}, 15, v{vL}
    s_lshl_b32 s{sT}, s{sTt}, 4
    v_add_u32 v{T+2}, s{sT}, v{T+1}
    s_mov_b32 s{sU}, 0
    v_mul_u32_u24 v{vXo}, 1152, v{T+2}
    v_and_b32 v{T+3}, 1, v{T}
    v_lshl_add_u32 v{vXo}, v{T+3}, 5, v{vXo}
    v_lshrrev_b32 v{T+3}, 1, v{T}
    v_lshl_add_u32 v{vXo}, v{T+3}, 4, v{vXo}
    s_lshl_b32 s{sT+1}, s{sCg}, 7
    v_bfe_u32 v{T+3}, v{vL}, 2, 2
    v_lshl_add_u32 v{T+4}, v{T}, 3, v{T+3}
    v_lshlrev_b32 v{T+4}, 7, v{T+4}
    v_and_b32 v{T+5}, 3, v{vL}
    v_lshl_add_u32 v{T+4}, v{T+5}, 3, v{T+4}
    v_lshrrev_b32 v{T+3}, 1, v{T+3}
    v_and_b32 v{T+5}, 1, v{T}
    v_lshl_add_u32 v{T+3}, v{T+5}, 1, v{T+3}
    v_lshl_add_u32 v{vA}, v{T+3}, 5, v{T+4}
    v_add_u32 v{vA}, s{sHi}, v{vA}
    v_xor_b32 v{vA+1}, 32, v{vA}
    v_xor_b32 v{vA+2}, 64, v{vA}
    v_xor_b32 v{vA+3}, 96, v{vA}""")
    for j in range(4): a(f"v_add_u32 v{vA8+j}, {8*8192}, v{vA+j}")
    for i in range(16): a(f"v_mov_b32 v{ACC+i}, 0")
    def uload(slot):
        return [f"buffer_load_dwordx4 {vr(UF+4*slot,4)}, v{vU2}, s[{sUO}:{sUO+3}], s{sU} offen",
                f"s_add_u32 s{sU}, s{sU}, {4*OCT}"]
    def reads(st):
        st %= 9
        return [f"ds_read_b64_tr_b16 {vr(FAB[st%3]+16*h+4*j+2*rd,2)}, v{(vA8 if st == 8 else vA)+j} offset:{(st%8)*8192+4096*h+512*rd}"
                for h in range(2) for j in range(4) for rd in range(2)]
    a(f"s_mov_b32 s{sI}, 4")
    pf.stamp()
    a("s_barrier")
    pf.stamp()
    for l in reads(0): a(l)
    a("s_waitcnt lgkmcnt(0)")
    a.srd(sX, 4, 5, 2048 * 1152)
    a.srd(sOUT, 10, 11, 2048 * 1152)
    def cpass(first):
        acc = SV if first else ACC
        for st in range(9):
            a("s_barrier")
            rd = reads(st + 1)
            k = 0
            for h in range(2):
                ks = 2*st + h
                if not first: a(f"s_waitcnt vmcnt({15})")
                for j in range(4):
                    c = "0" if (first and ks == 0) else vr(acc+4*j, 4)
                    a(f"v_mfma_f32_16x16x32_bf16 {vr(acc+4*j,4)}, {vr(FAB[st%3]+16*h+4*j,4)}, {vr(UF+4*ks,4)}, {c}")
                    for _ in range(3):
                        if k < 16: a(rd[k]); k += 1
                if not first:
                    for l in uload((ks + 16) % 18): a(l)
                elif st >= 7:
                    for q in range(4):
                        for l in uload(4*(ks - 14) + q): a(l)
            if first and st == CFG.kc_fu:
                a("s_waitcnt vmcnt(0)")
                a(f"buffer_store_dword v14, v13, s[{sFL}:{sFL+3}], s{sFu} offen sc1")
                for p in range(2):
                    a(f"buffer_load_dwordx4 {vr(XR+4*p,4)}, v{vXo}, s[{sX}:{sX+3}], s{sT+1} offen offset:{64*p}")
            a("s_waitcnt lgkmcnt(0)")
        pf.stamp()
    cpass(True)
    a.lines.append(".p2align 6")
    a.label(f"{N}_Cloop")
    cpass(False)
    a(f"s_sub_u32 s{sI}, s{sI}, 1")
    a(f"s_cmp_lg_u32 s{sI}, 0")
    a(f"s_cbranch_scc1 {N}_Cloop")
    a(f"s_mov_b32 s{sT}, {f32(-math.log2(math.e))}")
    a("s_nop 4")
    for i in range(16): a(f"v_mul_f32 v{T+i}, s{sT}, v{ACC+i}")
    for i in range(16): a(f"v_exp_f32 v{T+i}, v{T+i}")
    for i in range(16): a(f"v_mul_f32 v{SV+i}, v{SV+i}, v{ACC+i}")
    for i in range(16): a(f"v_add_f32 v{T+i}, 1.0, v{T+i}")
    for i in range(16): a(f"v_rcp_f32 v{T+i}, v{T+i}")
    for i in range(16): a(f"v_mul_f32 v{SV+i}, v{SV+i}, v{T+i}")
    for p in range(2):
        x = XR + 4*p
        a(f"v_permlane16_swap_b32 v{x}, v{x+2}")
        a(f"v_permlane16_swap_b32 v{x+1}, v{x+3}")
        for r in range(4):
            s = SV + 8*p + 2*r
            a(f"v_lshlrev_b32 v{T}, 16, v{x+r}")
            a(f"v_and_b32 v{T+1}, 0xffff0000, v{x+r}")
            a(f"v_add_f32 v{T}, v{T}, v{s}")
            a(f"v_add_f32 v{T+1}, v{T+1}, v{s+1}")
            a(f"v_cvt_pk_bf16_f32 v{x+r}, v{T}, v{T+1}")
        a(f"v_permlane16_swap_b32 v{x}, v{x+2}")
        a(f"v_permlane16_swap_b32 v{x+1}, v{x+3}")
        a(f"buffer_store_dwordx4 {vr(x,4)}, v{vXo}, s[{sOUT}:{sOUT+3}], s{sT+1} offen offset:{64*p}")
    if CFG.prof:
        pf.stamp(); a("s_waitcnt vmcnt(0)")
    pf.flush(sWave)
    a("s_endpgm")
    a.label(f"{N}_Cp")
    a(f"s_cmp_ge_u32 s2, 234")
    a(f"s_cbranch_scc1 {N}_end")
    common()
    vD = 2
    a(f"""v_lshrrev_b32 v8, 3, v1
    v_and_b32 v9, 7, v1
    v_lshrrev_b32 v10, 3, v1
    v_and_b32 v10, 2, v10
    v_xor_b32 v9, v9, v10
    v_lshlrev_b32 v9, 4, v9
    v_mul_u32_u24 v{vD}, 1152, v8
    v_add_u32 v{vD}, v{vD}, v9
    v_xor_b32 v{vD+1}, 64, v{vD}
    v_add_u32 v{vD+1}, {8*1152-1024}, v{vD+1}
    v_add_u32 v{vD+2}, {2*(8*1152-1024)}, v{vD}
    v_add_u32 v{vD+3}, {2*(8*1152-1024)}, v{vD+1}
    s_sub_u32 s{sT}, s{sWave}, 4
    s_mul_i32 s{sW}, s{sT}, {32*1152}
    s_lshl_b32 s{sT+1}, s{sCg}, 7
    s_add_u32 s{sW}, s{sW}, s{sT+1}
    s_mov_b32 s{sT+3}, s{sW}
    s_lshl_b32 s{sT+2}, s{sT}, 12
    s_add_u32 s{sT+2}, s{sT+2}, s{sHi}
    s_add_u32 s{sT+5}, s{sHi}, {NS*8192}
    s_mov_b32 s{sT+4}, s{sT+2}
    s_mul_i32 s{sT+6}, s{sRb}, 80
    s_add_u32 s{sT+7}, s{sT+6}, 79
    s_min_u32 s{sT+7}, s{sT+7}, 2047
    s_lshr_b32 s{sT+8}, s{sT+6}, 7
    s_lshl_b32 s{sT+8}, s{sT+8}, 8
    s_add_u32 s{sT+8}, s{sT+8}, {FL_U}
    s_lshr_b32 s{sT+9}, s{sT+7}, 7
    s_lshl_b32 s{sT+9}, s{sT+9}, 8
    s_add_u32 s{sT+9}, s{sT+9}, {FL_U}
    v_lshlrev_b32 v8, 2, v1
    s_waitcnt lgkmcnt(0)""")
    a.srd(sDM, 6, 7, 576 * 1152)
    def issue():
        out = [f"s_mov_b32 m0, s{sT+4}",
               f"s_add_u32 s{sT+4}, s{sT+4}, 8192"]
        out += [f"buffer_load_dwordx4 v{vD+j}, s[{sDM}:{sDM+3}], s{sW} offen offset:{1024*j} lds" for j in range(4)]
        out += [f"s_add_u32 s{sW}, s{sW}, {64*1152}",
                f"s_cmp_ge_u32 s{sT+4}, s{sT+5}",
                f"s_cselect_b32 s{sT+4}, s{sT+2}, s{sT+4}"]
        return out
    a("s_barrier")
    for st in range(9):
        if st == 4: a("s_barrier")
        for l in issue(): a(l)
    a.srd(sDM, 8, 9, 2304 * 1152)
    a(f"s_mov_b32 s{sW}, s{sT+3}")
    a("s_waitcnt vmcnt(32)")
    pf.stamp()
    a("s_barrier")
    def ploop(n, name):
        a(f"s_mov_b32 s{sI}, {n}")
        a.label(name)
        a("s_waitcnt vmcnt(28)")
        a("s_barrier")
        for l in issue(): a(l)
        a(f"s_sub_u32 s{sI}, s{sI}, 1")
        a(f"s_cmp_lg_u32 s{sI}, 0")
        a(f"s_cbranch_scc1 {name}")
    ploop(7, f"{N}_Cploop")
    poll_flags(a, f"{N}_pu", sFL, [(8, f"s{sT+8}", 1), (8, f"s{sT+9}", 1)], 16, sI)
    pf.stamp()
    ploop(29, f"{N}_Cploop2")
    for n in range(8):
        a(f"s_waitcnt vmcnt({28-4*n})")
        a("s_barrier")
    pf.flush(sWave)
    a.label(f"{N}_end")
    a("s_endpgm")

def gen_M():
    a = Asm(); N = NAME + "_kernel"
    phase_A(a, N); phase_B(a, N); phase_C(a, N)
    return a, kd(N, 256, 256, 102), (N, 256, 512, 163840)

HEADER = open("cdna_kernels/" + NAME + ".s.ref").read().split("; Override")[0]

def build(verbose=False):
    a, k, (n, grid, block, lds) = gen_M()
    txt = HEADER + f"; @launch grid=({grid},1,1) block=({block},1,1) lds={lds}\n"
    lines, ins = fix_hazards(a.lines, verbose, "M")
    print(f"{len(lines)} lines, {ins} hazard nops", file=sys.stderr)
    body = "\n".join(("    " + l if not (l.endswith(":") or l.startswith(".")) else l) for l in lines) + "\n"
    txt += '.amdgcn_target "amdgcn-amd-amdhsa--gfx950"\n.text\n.p2align 8\ncode_begin:\n' + body + "code_end:\n" + k
    return txt

if __name__ == "__main__":
    for arg in sys.argv[2:]:
        if "=" in arg:
            k_, v_ = arg.split("=", 1)
            setattr(CFG, k_, type(getattr(CFG, k_))(v_) if not isinstance(getattr(CFG, k_), bool) else int(v_))
    open(sys.argv[1], "w").write(build(verbose="-v" in sys.argv))
```

```python
import math, struct, sys
from asmlib import *

NAME = "recurrent_scan__sliding_local_dilated__mixer_gmlp__prompt"
def f32(x): return "0x%08x" % struct.unpack("<I", struct.pack("<f", x))[0]

C0 = -2.0 * math.sqrt(2.0 / math.pi) * math.log2(math.e)
C1 = C0 * 0.044715
KSC = -((-C1) ** (1.0 / 3.0))
DELTA = C0 / KSC
EPS = 1e-5
OCT = 32768

class Cfg:
    ws_base = 0
    st_aux_a = "sc1"
    st_aux_n = ""
    st_aux_b = "sc1"
    prof = False
    ka_xbar = -1
    ka_prio = 0
    ka_xpf = 0
    ka_head = 24
    ka_xfirst = 5
    ka_rot = 0
    align = 0
    hprof = 0
    bound = 20000
    ka_try = 2
    kb_xb = 28
    kc_fu = 2
    ka_pst = 13
    ka_spf = 0
    ka_d5 = 9
    ka_fwe = 0
    kb_x0 = 12
    ka_st_aux = ""
    sleep = 8
    kc_test = 0
    ka_rbl = 2
    ka_nostore = 0
    ka_nodma = 0
    ka_wsp_slot = 0
    ka_x_aux = ""
    ka_pf_aux = ""
    ka_wsp_aux = "nt"
    ka_npre = 26
    codepf = 1
    ka_l2pf = 2
    attn_seg = 36
    ka_stpos = 5
    kb_nomfma = 0
    kb_pf = 1
    kb_eit = 8
    kb_wg = 3
    kb_spf = 10
    kb_abar = 0
    kb_nodma = 0
    kb_noattn = 0
CFG = Cfg()

ZQ_OFF, ZQ_SZ = 0, 792 * OCT
UO_OFF, UO_SZ = 26 << 20, 360 * OCT
WP_OFF, WP_SZ = 38 << 20, 2048 * 4096
ST_OFF, ST_SZ = 47 << 20, 16 * 16 * 2048
CP_OFF, CP_SZ = 48 << 20, 2048 * 128

def kd(name, vgpr, accum, sgpr=96):
    return f""".section .rodata,"a"
.p2align 6
.amdhsa_kernel {name}
  .amdhsa_next_free_vgpr {vgpr}
  .amdhsa_next_free_sgpr {sgpr}
  .amdhsa_accum_offset {accum}
  .amdhsa_group_segment_fixed_size 0
  .amdhsa_kernarg_size 88
  .amdhsa_user_sgpr_count 2
  .amdhsa_user_sgpr_kernarg_segment_ptr 1
  .amdhsa_system_sgpr_workgroup_id_x 1
.end_amdhsa_kernel
"""

PROF_OFF = 64 << 20
class Prof:
    def __init__(self, a, vreg, kidx):
        self.a, self.v, self.k = a, vreg, kidx
    def init(self):
        if not CFG.prof: return
        a = self.a
        a(f"v_mov_b32 v{self.v}, 0")
        a("s_mov_b64 s[84:85], 2")
        a("s_memrealtime s[82:83]")
        a("s_waitcnt lgkmcnt(0)")
        a(f"v_writelane_b32 v{self.v}, s82, 0")
        self.stamp()
    def stamp(self):
        if not CFG.prof: return
        a = self.a
        a("s_memtime s[80:81]")
        a("s_waitcnt lgkmcnt(0)")
        a("s_mov_b64 s[92:93], exec")
        a("s_mov_b64 exec, s[84:85]")
        a(f"v_mov_b32 v{self.v}, s80")
        a("s_mov_b64 exec, s[92:93]")
        a("s_lshl_b64 s[84:85], s[84:85], 1")
    def flush(self, sWave):
        if not CFG.prof: return
        a = self.a
        self.stamp()
        a("s_memrealtime s[82:83]")
        a("s_load_dwordx2 s[86:87], s[0:1], 80")
        a("s_waitcnt lgkmcnt(0)")
        a(f"v_writelane_b32 v{self.v}, s82, 63")
        a.srd_off(88, 86, 87, PROF_OFF + self.k * (1 << 20), 1 << 20)
        a("s_lshl_b32 s85, s2, 3")
        a(f"s_add_u32 s85, s85, s{sWave}")
        a("s_lshl_b32 s85, s85, 8")
        a("s_mov_b64 exec, -1")
        a("v_mbcnt_lo_u32_b32 v0, -1, 0")
        a("v_mbcnt_hi_u32_b32 v0, -1, v0")
        a("v_lshlrev_b32 v0, 2, v0")
        a(f"buffer_store_dword v{self.v}, v0, s[88:91], s85 offen")

def code_prefetch(a, sS, vT, vL, name):
    if not CFG.codepf: return
    h = a.newlabel(name + "_pc")
    a(f"s_getpc_b64 s[{sS}:{sS+1}]")
    a.label(h)
    a(f"s_sub_u32 s{sS}, s{sS}, {h}-code_begin")
    a(f"s_subb_u32 s{sS+1}, s{sS+1}, 0")
    a(f"s_mov_b32 s{sS+2}, code_end-code_begin")
    a(f"s_mov_b32 s{sS+3}, 0x00020000")
    a(f"s_lshr_b32 s{sS+4}, s2, 3")
    a(f"s_lshl_b32 s{sS+4}, s{sS+4}, 13")
    a(f"v_lshlrev_b32 v{vT}, 7, v{vL}")
    a(f"buffer_load_dword v{vT+1}, v{vT}, s[{sS}:{sS+3}], s{sS+4} offen")

def prologue(a, name, ngrid):
    a.lines.append(".text")
    a.lines.append(f".globl {name}")
    a.lines.append(".p2align 8")
    a.lines.append(f".type {name},@function")
    a.label(name)
    a(f"s_cmp_ge_u32 s2, {ngrid}")
    a(f"s_cbranch_scc1 {name}_end")
    if CFG.hprof:
        k = {"ka": 0, "kb": 1, "kc": 2}[name[:2]]
        a(f"""s_cmp_lg_u32 s2, 0
        s_cbranch_scc1 {name}_hp
        s_memrealtime s[82:83]
        s_load_dwordx2 s[86:87], s[0:1], 80
        s_waitcnt lgkmcnt(0)""")
        a.srd_off(88, 86, 87, PROF_OFF, 4096)
        a(f"""v_mov_b32 v1, s82
        v_mov_b32 v2, 0
        buffer_store_dword v1, v2, s[88:91], 0 offen offset:{4*k} sc1
        s_waitcnt vmcnt(0)""")
        a.label(f"{name}_hp")

def hprof_end(a, name):
    if not CFG.hprof: return
    a(f"""s_cmp_lg_u32 s2, 0
    s_cbranch_scc1 {name}_hpe
    s_waitcnt vmcnt(0)
    s_memrealtime s[82:83]
    s_load_dwordx4 s[84:87], s[0:1], 72
    s_waitcnt lgkmcnt(0)""")
    a.srd_off(88, 86, 87, PROF_OFF, 4096)
    a.srd(92, 84, 85, 256)
    a(f"""v_mov_b32 v2, 0
    buffer_load_dwordx3 v[4:6], v2, s[88:91], 0 offen sc1
    v_mov_b32 v7, s82
    s_waitcnt vmcnt(0)
    v_sub_u32 v7, v7, v6
    v_sub_u32 v6, v6, v5
    v_sub_u32 v5, v5, v4
    buffer_store_dwordx4 v[4:7], v2, s[92:95], 0 offen""")
    a.label(f"{name}_hpe")

def cost(l):
    c = 0
    for x in l.split("\n"):
        c += 8 if x.startswith(TRANS) else 4
    return c

def spread(slots, fillers, base=None):
    base = [sum(cost(x) + (4 if x.startswith("v_mfma") else 0) for x in sl) for sl in slots]
    tot = sum(base) + sum(cost(f) for f in fillers)
    out = []; k = 0; cum = 0
    for i, sl in enumerate(slots):
        out += sl; cum += base[i]
        tgt = tot * (i + 1) / len(slots)
        while k < len(fillers) and cum + cost(fillers[k]) / 2 <= tgt:
            out.append(fillers[k]); cum += cost(fillers[k]); k += 1
    return out + fillers[k:]


FL_OFF, FL_SZ = 49 << 20, 20480
FL_W, FL_E, FL_U, FL_Q, FL_TAG = 0, 4096, 8192, 12288, 16384
sTag, sLo = 100, 101
TAG_LDS = 163832

def poll_flags(a, name, sFL, items, vt, sT, on_fail=None):
    a(f"s_mov_b32 s{sT}, {CFG.bound}")
    a.label(name)
    regs = []
    r = vt
    for vo, so, w in items:
        sfx = {1: "dword", 4: "dwordx4"}[w]
        a(f"buffer_load_{sfx} {vr(r,w)}, v{vo}, s[{sFL}:{sFL+3}], {so} offen sc1")
        regs += list(range(r, r + w)); r += w
    a("s_waitcnt vmcnt(0)")
    for x in regs: a(f"v_xor_b32 v{x}, s{sTag}, v{x}")
    for x in regs[1:]: a(f"v_or_b32 v{regs[0]}, v{regs[0]}, v{x}")
    a(f"""v_cmp_ne_u32 vcc, 0, v{regs[0]}
    s_sub_u32 s{sT}, s{sT}, 1
    s_cmp_eq_u32 s{sT}, 0
    s_cbranch_scc1 {name}_ok
    s_cmp_eq_u64 vcc, 0
    s_cbranch_scc1 {name}_ok""")
    if on_fail: on_fail()
    a(f"""s_sleep {CFG.sleep}
    s_branch {name}""")
    a.label(f"{name}_ok")

def phase_A(a, N):
    X, FR, T = 112, 24, 16
    AC = [80, 48]
    W = AC[1]
    vL, vA0, vA1, vPn, vO8, vSt, vStO = 1, 2, 3, 4, 5, 6, 7
    vNm, vSc, vSum = 8, 9, 10
    S = W
    vX0, vX1, vX2, vX3, vSR, vSRs, vXw = W+8, W+9, W+10, W+11, W+12, W+16, W+20
    sX, sWI, sWQ, sZQ, sST, sDM = 12, 16, 20, 24, 28, 32
    sFQ, sFq = 28, 32
    sWave, sRb, sCg = 36, 37, 38
    sNz2, sNg, sN, sZ2s, sZ1m, sQm = 39, 40, 41, 42, 43, 44
    sU, sV, sUn, sMz2, sP8, sOb = 45, 46, 47, 48, 49, 50
    sMq = 52
    sDma, sDstep, sDvs = 54, 55, 56
    sDp, sDc, sDn = 57, 58, 59
    sBufN, sPw, sRot, sRw = 61, 62, 60, 51
    sHu, sHx = 3, 33
    sDl, sOlo, sOhi, sOnes = 63, 64, 65, 66
    sXr = 68
    sT0, sT1, sT2, sSt, sP8i, sP8q, sXb, sXs = 72, 73, 74, 76, 77, 78, 75, 79
    UB = 73728; STG = 2 * UB
    RBL = CFG.ka_rbl
    prologue(a, N, 256)
    pf = Prof(a, 15, 0); pf.init(); a.pf = pf
    a("s_load_dwordx4 s[4:7], s[0:1], 0")
    a("s_load_dwordx4 s[8:11], s[0:1], 32")
    a("s_load_dwordx4 s[96:99], s[0:1], 72")
    a(f"v_and_b32 v{vL}, 63, v0")
    a(f"v_lshrrev_b32 v{T}, 6, v0")
    a(f"v_readfirstlane_b32 s{sWave}, v{T}")
    a(f"""s_and_b32 s{sT0}, s2, 7
    s_lshr_b32 s{sT1}, s2, 3
    s_and_b32 s{sRb}, s{sT0}, {(16>>RBL)-1}
    s_lshl_b32 s{sRb}, s{sRb}, {RBL}
    s_and_b32 s{sT2}, s{sT1}, {(1<<RBL)-1}
    s_add_u32 s{sRb}, s{sRb}, s{sT2}
    s_lshr_b32 s{sCg}, s{sT0}, {4-RBL}
    s_lshl_b32 s{sCg}, s{sCg}, {5-RBL}
    s_lshr_b32 s{sT2}, s{sT1}, {RBL}
    s_add_u32 s{sCg}, s{sCg}, s{sT2}
    s_and_b32 s{sRot}, s{sT1}, {(1<<RBL)-1}
    s_lshl_b32 s{sRot}, s{sRot}, 1
    s_add_u32 s{sRot}, s{sRot}, s{sT2}
    s_mul_i32 s{sRot}, s{sRot}, {CFG.ka_rot}
    s_sub_u32 s{sT2}, s{sRot}, 9
    s_min_u32 s{sRot}, s{sRot}, s{sT2}
    s_sub_u32 s{sT2}, s{sRot}, 9
    s_min_u32 s{sRot}, s{sRot}, s{sT2}
    v_lshrrev_b32 v{T}, 3, v{vL}
    v_and_b32 v{T+1}, 7, v{vL}""")
    unit_lists = f"""s_min_u32 s{sT0}, s{sCg}, 4
    s_lshl_b32 s{sZ2s}, s{sCg}, 1
    s_add_u32 s{sZ2s}, s{sZ2s}, s{sT0}
    s_add_u32 s{sZ2s}, s{sZ2s}, 36
    s_cmp_lt_u32 s{sCg}, 4
    s_cselect_b32 s{sNz2}, 3, 2
    s_max_u32 s{sT0}, s{sCg}, 5
    s_sub_u32 s{sT0}, s{sT0}, 5
    s_add_u32 s{sQm}, s{sCg}, s{sT0}
    s_sub_u32 s{sQm}, s{sQm}, s{sNz2}
    s_cmp_eq_u32 s{sCg}, 4
    s_cselect_b32 s{sNg}, 3, 4
    s_min_u32 s{sT0}, s{sCg}, 5
    s_max_u32 s{sT0}, s{sT0}, 4
    s_sub_u32 s{sT0}, s{sT0}, 4
    s_lshl_b32 s{sZ1m}, s{sCg}, 1
    s_add_u32 s{sZ1m}, s{sZ1m}, s{sT0}
    s_sub_u32 s{sZ1m}, s{sZ1m}, s{sNg}
    s_lshr_b32 s{sHu}, s{sCg}, 1
    s_add_u32 s{sHu}, s{sHu}, 28
    s_cmp_lt_u32 s{sCg}, 10
    s_cselect_b32 s{sN}, 6, 7
    s_cselect_b32 s{sLo}, 0, 73728"""
    a(f"s_cmp_ge_u32 s{sWave}, 4")
    a(f"s_cbranch_scc1 {N}_prod")
    a(f"""v_lshrrev_b32 v{T+2}, 4, v{vL}
    v_xor_b32 v{T+2}, v{T+2}, v{T+1}
    v_lshlrev_b32 v{T+2}, 4, v{T+2}
    v_mul_u32_u24 v{vX0}, 1152, v{T}
    v_add_u32 v{vX0}, v{vX0}, v{T+2}
    v_xor_b32 v{vX1}, 64, v{vX0}
    s_lshl_b32 s{sT0}, s{sRb}, 7
    s_lshl_b32 s{sT1}, s{sWave}, 5
    s_add_u32 s{sT0}, s{sT0}, s{sT1}
    s_mul_i32 s{sXr}, s{sT0}, 1152
    s_add_u32 s{sXr+1}, s{sXr}, 8192
    s_add_u32 s{sXr+2}, s{sXr}, 16384
    s_add_u32 s{sXr+3}, s{sXr}, 24576
    s_lshl_b32 s{sXb}, s{sWave}, 14
    s_add_u32 s{sXb}, s{sXb}, {UB}
    s_lshl_b32 s{sXs}, s{sWave}, 12
    s_add_u32 s{sXs}, s{sXs}, {STG}""")
    a("s_waitcnt lgkmcnt(0)")
    if CFG.prof > 2: pf.stamp()
    a.srd(sX, 4, 5, 2048 * 1152)
    a(f"s_lshl_b32 s{sRw}, s{sRot}, 7")
    def xload(j):
        a(f"v_add_u32 v{vX2}, s{sRw}, v{vX0}")
        a(f"v_add_u32 v{vX3}, s{sRw}, v{vX1}")
        if j < 4: a(f"s_add_u32 m0, s{sXb}, {j*4096}")
        elif j == 4: a(f"s_mov_b32 m0, s{sXs}")
        a(f"s_add_u32 s{sRw}, s{sRw}, 128")
        for rg in range(4):
            if j < 5:
                a(f"buffer_load_dwordx4 v{vX3 if rg&1 else vX2}, s[{sX}:{sX+3}], s{sXr+rg} offen offset:{rg*1024} {CFG.ka_x_aux} lds")
            else:
                a(f"buffer_load_dwordx4 {vr(X+16*j+4*rg,4)}, v{vX3 if rg&1 else vX2}, s[{sX}:{sX+3}], s{sXr+rg} offen offset:{rg*1024} {CFG.ka_x_aux}")
        a(f"s_cmp_eq_u32 s{sRw}, 1152")
        a(f"s_cselect_b32 s{sRw}, 0, s{sRw}")
    for j in range(CFG.ka_xfirst): xload(j)
    a.srd_off(sZQ, 98, 99, CFG.ws_base + ZQ_OFF, ZQ_SZ)
    a.srd_off(sFQ, 98, 99, CFG.ws_base + FL_OFF + FL_Q, 4096)
    a(f"""s_lshl_b32 s{sFq}, s{sRb}, 8
    s_lshl_b32 s{sT0}, s{sCg}, 4
    s_add_u32 s{sFq}, s{sFq}, s{sT0}
    s_lshl_b32 s{sT0}, s{sWave}, 2
    s_add_u32 s{sFq}, s{sFq}, s{sT0}
    v_mov_b32 v12, {TAG_LDS}
    v_mov_b32 v13, 0""")
    a(unit_lists)
    a(f"""s_mov_b32 s{sDl}, {f32(DELTA)}
    s_mov_b32 s{sOlo}, 0x00003f80
    s_mov_b32 s{sOhi}, 0x3f800000
    s_mov_b32 s{sOnes}, 0x3f803f80""")
    def cparams():
        return [
            f"s_add_u32 s{sT0}, s{sZ2s}, s{sV}",
            f"s_add_u32 s{sT1}, s{sZ1m}, s{sV}",
            f"s_add_u32 s{sT2}, s{sQm}, s{sV}",
            f"s_add_u32 s{sT2}, s{sT2}, 72",
            f"s_cmp_lt_u32 s{sV}, s{sNg}\n"
            f"s_cselect_b32 s{sUn}, s{sT2}, s{sT1}",
            f"s_cmp_lt_u32 s{sV}, s{sNz2}\n"
            f"s_cselect_b32 s{sUn}, s{sT0}, s{sUn}\n"
            f"s_cselect_b32 s{sMz2}, -1, 0",
            f"s_and_b32 s{sT0}, s{sCg}, 1",
            f"s_cmp_eq_u32 s{sV}, 6\n"
            f"s_cselect_b32 s{sUn}, s{sHu}, s{sUn}\n"
            f"s_cselect_b32 s{sT0}, s{sT0}, 0",
            f"s_lshl_b32 s{sHx}, s{sT0}, 6",
            f"s_lshl_b32 s{sDn}, s{sUn}, 1",
            f"s_add_u32 s{sDn}, s{sDn}, s{sT0}",
            f"s_lshl_b32 s{sDn}, s{sDn}, 17",
        ]
    def traddr(buf):
        return [f"v_and_b32 v{T+7}, s{sMz2}, v{vO8}",
                f"v_xor_b32 v{T+7}, s{sHx}, v{T+7}",
                f"v_xor_b32 v{vA0}, v{T+7}, v{vPn}"] + \
               ([f"v_add_u32 v{vA0}, {UB}, v{vA0}"] if buf else []) + [f"v_xor_b32 v{vA1}, 64, v{vA0}"]
    a(f"s_mov_b32 s{sV}, 0")
    for l in cparams(): a(l)
    a(f"""v_lshrrev_b32 v{T+2}, 5, v{vL}
    v_lshlrev_b32 v{T+2}, 3, v{T+2}
    v_bfe_u32 v{T+3}, v{vL}, 2, 2
    v_add_u32 v{T+2}, v{T+2}, v{T+3}
    v_lshlrev_b32 v{vPn}, 7, v{T+2}
    v_lshrrev_b32 v{T+3}, 1, v{T+3}
    v_lshl_add_u32 v{vPn}, v{T+3}, 6, v{vPn}
    v_bfe_u32 v{T+3}, v{vL}, 4, 1
    v_lshl_add_u32 v{vPn}, v{T+3}, 5, v{vPn}
    v_and_b32 v{T+3}, 1, v{vL}
    v_lshl_add_u32 v{vPn}, v{T+3}, 4, v{vPn}
    v_lshlrev_b32 v{vO8}, 3, v{T+3}
    v_bfe_u32 v{T+3}, v{vL}, 1, 1
    v_lshl_add_u32 v{vPn}, v{T+3}, 3, v{vPn}""")
    for l in traddr(0): a(l)
    a(f"""v_and_b32 v{T+2}, 31, v{vL}
    v_bfe_u32 v{T+3}, v{vL}, 1, 3
    v_lshrrev_b32 v{T+4}, 5, v{vL}
    v_xor_b32 v{T+3}, v{T+3}, v{T+4}
    v_lshlrev_b32 v{T+3}, 4, v{T+3}
    v_lshl_add_u32 v{T+3}, v{T+2}, 7, v{T+3}
    v_add_u32 v{vSR}, s{sXb}, v{T+3}
    v_xor_b32 v{vSR+1}, 32, v{vSR}
    v_xor_b32 v{vSR+2}, 64, v{vSR}
    v_xor_b32 v{vSR+3}, 96, v{vSR}
    v_add_u32 v{vSRs}, s{sXs}, v{T+3}
    v_xor_b32 v{vSRs+1}, 32, v{vSRs}
    v_xor_b32 v{vSRs+2}, 64, v{vSRs}
    v_xor_b32 v{vSRs+3}, 96, v{vSRs}
    v_lshlrev_b32 v{vStO}, 3, v{vL}
    v_add_u32 v{vStO}, s{sXs}, v{vStO}
    s_lshl_b32 s{sT0}, s{sRb}, 7
    s_lshl_b32 s{sT1}, s{sWave}, 5
    s_add_u32 s{sT0}, s{sT0}, s{sT1}
    v_add_u32 v{vSt}, s{sT0}, v{T+2}
    v_lshlrev_b32 v{vSt}, 4, v{vSt}
    v_lshl_add_u32 v{vSt}, v{T+4}, 15, v{vSt}
    v_mov_b32 v{vSum}, 0
    v_mov_b32 v{vSum+1}, 0""")
    pf.stamp()
    def xstats(j):
        for r in range(16):
            x = X + 16*j + r
            q = S + 2*(r % 2)
            first = (j == 0 and r < 2)
            a(f"v_dot2_f32_bf16 v{q}, v{x}, s{sOnes}, {'0' if first else 'v%d' % q}")
            a(f"v_dot2_f32_bf16 v{q+1}, v{x}, v{x}, {'0' if first else 'v%d' % (q+1)}")
    a(f"v_lshlrev_b32 v{vXw}, 4, v{vL}")
    a(f"v_add_u32 v{vXw}, s{sXb}, v{vXw}")
    issued = CFG.ka_xfirst
    for j in range(9):
        a(f"s_waitcnt vmcnt({4*(issued-1-j)})")
        if CFG.prof > 2: pf.stamp()
        if j >= 5:
            for rg in range(4):
                a(f"ds_write_b128 v{vXw}, {vr(X+16*j+4*rg,4)} offset:{(j%5)*4096+rg*1024}")
        for i in range(4):
            if j % 5 < 4: a(f"ds_read_b128 {vr(X+16*j+4*i,4)}, v{vSR+i} offset:{(j%5)*4096}")
            else: a(f"ds_read_b128 {vr(X+16*j+4*i,4)}, v{vSRs+i}")
        if issued < 9:
            xload(issued); issued += 1
        if j > 0:
            a(f"s_waitcnt lgkmcnt({8 if j >= 5 else 4})")
            a.lines.append(".p2align 3")
            xstats(j-1)
    a("s_waitcnt lgkmcnt(0)")
    a.lines.append(".p2align 3")
    xstats(8)
    pf.stamp()
    a(f"""v_add_f32 v{S}, v{S}, v{S+2}
    v_add_f32 v{S+1}, v{S+1}, v{S+3}
    s_mov_b32 s{sT0}, {f32(-1.0/576)}
    s_mov_b32 s{sT1}, {f32(1.0/576)}
    s_mov_b32 s{sT2}, {f32(KSC)}
    v_mov_b32 v{S+2}, v{S}
    v_mov_b32 v{S+3}, v{S+1}
    v_permlane32_swap_b32 v{S}, v{S+2}
    v_permlane32_swap_b32 v{S+1}, v{S+3}
    v_add_f32 v{S}, v{S}, v{S+2}
    v_add_f32 v{S+1}, v{S+1}, v{S+3}
    v_mul_f32 v{vNm}, s{sT0}, v{S}
    v_mul_f32 v{S+1}, s{sT1}, v{S+1}
    v_fma_f32 v{S+1}, -v{vNm}, v{vNm}, v{S+1}
    v_max_f32 v{S+1}, 0, v{S+1}
    v_add_f32 v{S+1}, {f32(EPS)}, v{S+1}
    v_rsq_f32 v{S+1}, v{S+1}
    s_mov_b32 s{sU}, 0
    s_mov_b32 s{sDc}, s{sDn}
    s_mov_b32 s{sDp}, s{sDn}
    v_mul_f32 v{vSc}, s{sT2}, v{S+1}""")
    CT = [W, W+2, W+4, W+6]
    def center(kk):
        o = []
        for r in range(4):
            x = X + 4*kk + r
            o.append(f"v_dot2_f32_bf16 v{CT[r]}, v{x}, s{sOlo}, v{vNm}")
            o.append(f"v_dot2_f32_bf16 v{CT[r]+1}, v{x}, s{sOhi}, v{vNm}")
        for r in range(4):
            o.append(f"v_cvt_pk_bf16_f32 v{X+4*kk+r}, v{CT[r]}, v{CT[r]+1}")
        return o
    def center_plain(kk):
        o = []
        for r in range(4):
            x = X + 4*kk + r
            o += [f"v_lshlrev_b32 v{CT[r]}, 16, v{x}", f"v_and_b32 v{CT[r]+1}, 0xffff0000, v{x}",
                  f"v_add_f32 v{CT[r]}, v{vNm}, v{CT[r]}", f"v_add_f32 v{CT[r]+1}, v{vNm}, v{CT[r]+1}",
                  f"v_cvt_pk_bf16_f32 v{x}, v{CT[r]}, v{CT[r]+1}"]
        return o
    NPRE = CFG.ka_npre
    a.lines.append(".p2align 3")
    for kk in range(NPRE):
        for l in center(kk): a(l)
    pf.stamp()
    a("s_barrier")
    pf.stamp()

    def reads(kk, t):
        st = kk % 3
        off = (kk % 18) * 2048
        return [f"ds_read_b64_tr_b16 {vr(FR+8*st+4*t+2*h,2)}, v{vA1 if t else vA0} offset:{off+512*h}" for h in range(2)]
    def mfma(par, kk, t):
        st = kk % 3; acc = AC[par] + 16*t
        c = "0" if kk == 0 else vr(acc, 16)
        return f"v_mfma_f32_32x32x16_bf16 {vr(acc,16)}, {vr(FR+8*st+4*t,4)}, {vr(X+4*kk,4)}, {c}"
    def stores(E, m):
        if CFG.ka_nostore: return []
        return [f"s_add_u32 s{sSt}, s{sDp}, {2*m*OCT}",
                f"buffer_store_dwordx4 {vr(E+8*m,4)}, v{vSt}, s[{sZQ}:{sZQ+3}], s{sSt} offen {CFG.st_aux_a}"]
    def epi(kind, E, ne_=32):
        out = []
        if kind == "P":
            for e in range(32):
                out.append(f"v_mul_f32 v{E+e}, v{vSc}, v{E+e}")
                if e % 2 == 1 and e >= 3:
                    p = e - 3; out.append(f"v_cvt_pk_bf16_f32 v{E+(p//8)*8+(p%8)//2}, v{E+p}, v{E+p+1}")
            out.append(f"v_cvt_pk_bf16_f32 v{E+27}, v{E+30}, v{E+31}")
            return out
        def st(k, e):
            w = E + e; t = T + e % 6
            return [f"v_mul_f32 v{w}, v{vSc}, v{w}", f"v_fma_f32 v{t}, v{w}, v{w}, s{sDl}", f"v_mul_f32 v{t}, v{t}, v{w}",
                    f"v_exp_f32 v{t}, v{t}", f"v_add_f32 v{t}, 1.0, v{t}", f"v_rcp_f32 v{t}, v{t}", f"v_mul_f32 v{w}, v{t}, v{w}"][k]
        for i in range(ne_ + 7):
            for k in (6, 3, 0, 4, 1, 5, 2):
                e = i - k
                if 0 <= e < ne_: out.append(st(k, e))
            e = i - 7
            if 0 <= e < ne_ and e % 2 == 1:
                p = e - 1; out.append(f"v_cvt_pk_bf16_f32 v{E+(p//8)*8+(p%8)//2}, v{E+p}, v{E+p+1}")
        return out
    def stats(E):
        out = []
        for m in range(4):
            for i in range(4):
                b = E + 8*m
                out.append(f"v_dot2_f32_bf16 v{vSum}, v{b+i}, s{sOnes}, v{vSum}")
                out.append(f"v_dot2_f32_bf16 v{vSum+1}, v{b+i}, v{b+i}, v{vSum+1}")
        return out
    def body(kind, par):
        E = AC[1 - par]
        if kind == "F":
            for l in reads(0, 0) + reads(0, 1) + reads(1, 0) + reads(1, 1): a(l)
        a.label(f"{N}_{kind}{par}")
        def cbar():
            if kind in "FG": return ["s_barrier"]
            sk = a.newlabel(N + "_sk")
            return [f"s_cmp_eq_u32 s{sV}, s{sN}\ns_cbranch_scc1 {sk}\ns_barrier\n{sk}:"]
        slots = []
        for kk in range(0, 36):
            s0 = [f"s_waitcnt lgkmcnt({2 if kind == 'S' and kk else 4})", mfma(par, kk, 0)]
            s1 = [mfma(par, kk, 1)] if kind != "S" else []
            if kk == 0: s0 += [f"s_add_u32 s{sV}, s{sU}, 1"]
            if kk == 1 and kind != "F": s0 += ["s_barrier"]
            if kk == 33 and kind == "P":
                s0 += [f"s_cmp_eq_u32 s{sU}, s{sNg}\ns_cselect_b32 s{sSt}, s{sFq}, 0x7f000000", "s_waitcnt vmcnt(0)",
                       f"buffer_store_dword v14, v13, s[{sFQ}:{sFQ+3}], s{sSt} offen sc1"]
            if kk == 20 and kind == "P": s1 += ["ds_read_b32 v14, v12"]
            if kk == 34: s0 += ["s_barrier"]
            if kk + 2 == 18:
                s0 += [f"v_add_u32 v{vA0}, {18*2048}, v{vA0}", f"v_add_u32 v{vA1}, {18*2048}, v{vA1}"]
            s0 += reads((kk+2) % 36, 0)
            if kind != "S": s1 += reads((kk+2) % 36, 1)
            st0 = CFG.ka_pst if kind == "P" else 36 - CFG.ka_stpos
            if kind not in "FN" and st0 <= kk < st0 + 4:
                s0 += stores(E, kk - st0)
            if kk == 33: s1 += traddr(1 - par)
            slots += [s0, s1]
        if kind == "S":
            sl = [slots[2*i] + slots[2*i+1] for i in range(36)]
            ne = 36 - CFG.ka_stpos + 2
            out = sl[0] + spread(sl[1:ne], epi("H", E)) + sum(sl[ne:], [])
        elif kind == "F":
            ne = 2 * NPRE - 2
            out = spread(slots[:ne], sum([center_plain(kk) for kk in range(NPRE, 36)], []))
            out += interleave(slots[ne:-6], cparams()) + sum(slots[-6:], [])
        elif kind == "N":
            out = slots[0] + interleave(slots[1:20], cparams()) + sum(slots[20:], [])
        else:
            ep = epi(kind, E)
            ne = len(slots) - 2*CFG.ka_stpos + 4 if kind != "P" else 24
            out = slots[0] + spread(slots[1:ne], cparams() + ep) + sum(slots[ne:], [])
        for l in out:
            if CFG.prof > 3 and l in (mfma(par, 30, 0), mfma(par, 2, 0)): pf.stamp()
            a(l)
        if kind == "G":
            a.lines.append(".p2align 3")
            for l in stats(E): a(l)
            a(f"ds_write_b64 v{vStO}, {vr(vSum,2)}")
        a(f"s_mov_b32 s{sDp}, s{sDc}")
        a(f"s_mov_b32 s{sDc}, s{sDn}")
        a(f"s_mov_b32 s{sU}, s{sV}")
        pf.stamp()
        q = 1 - par
        if kind == "F":
            a(f"s_branch {N}_G{q}")
        if kind == "G" and par == 1:
            a(f"s_branch {N}_G0")
        if kind == "G" and par == 0:
            a(f"s_cmp_lt_u32 s{sNz2}, 3")
            a(f"s_cbranch_scc1 {N}_P1")
            E2 = AC[0]
            a("s_nop 7")
            for l in epi("G", E2):
                a(l)
                for m in range(4):
                    if l.startswith(f"v_cvt_pk_bf16_f32 v{E2+8*m+3},"):
                        for x in stores(E2, m): a(x)
            a.lines.append(".p2align 3")
            for l in stats(E2): a(l)
            a(f"ds_write_b64 v{vStO}, {vr(vSum,2)}")
            a("s_waitcnt lgkmcnt(0)")
            pf.stamp()
            a(f"s_branch {N}_N1")
        if kind == "N":
            a(f"s_branch {N}_P{q}")
        if kind == "P":
            a(f"s_cmp_le_u32 s{sU}, s{sNg}")
            a(f"s_cbranch_scc1 {N}_P{q}")
            a(f"s_branch {N}_H{q}")
        if kind == "H" and par == 0:
            a(f"s_branch {N}_H1")
        if kind == "H" and par == 1:
            a(f"s_cmp_lg_u32 s{sU}, s{sN}")
            a(f"s_cbranch_scc1 {N}_S0")
            a(f"s_branch {N}_tail1")
        if kind == "S":
            a(f"s_branch {N}_tail0")
    body("F", 0)
    for kind in "GHP":
        for par in (1, 0): body(kind, par)
    body("N", 1)
    body("S", 0)
    for par in range(2):
        a.label(f"{N}_tail{par}")
        pf.stamp()
        a("s_nop 7")
        E = AC[par]
        ep = epi("H", E, 32 if par else 16)
        for l in ep:
            a(l)
            for m in range(4):
                if l.startswith(f"v_cvt_pk_bf16_f32 v{E+8*m+3},"):
                    for x in stores(E, m): a(x)
        pf.stamp()
        a(f"s_branch {N}_At")
    a.label(f"{N}_prod")
    vD, vDin, vDq, vPi, vPq, vWo, vT, vZero, vTg = 2, 6, 7, 8, 9, 10, 20, 11, 24
    sIsT, sSo2 = 63, 50
    a(f"v_mov_b32 v{vZero}, 0")
    WU, P, MH, ML, C, TT = 128, 32, 96, 100, 104, 112
    sWS, sWP, sCP, sDB, sFL = 12, 24, 4, 8, 64
    sPc = sXr + 2
    if CFG.ka_prio: a(f"s_setprio {CFG.ka_prio}")
    a(f"s_cmp_lg_u32 s{sWave}, 4")
    a(f"s_cbranch_scc1 {N}_nopf1")
    code_prefetch(a, 88, vT, vL, N)
    a.label(f"{N}_nopf1")
    if CFG.ka_xpf:
        a(f"""s_sub_u32 s{sT1}, s{sWave}, 4
        s_lshl_b32 s{sT1}, s{sT1}, 5
        s_lshl_b32 s{sT0}, s{sRb}, 7
        s_add_u32 s{sT0}, s{sT0}, s{sT1}
        s_mul_i32 s{sT0}, s{sT0}, 1152
        v_lshrrev_b32 v{vT}, 2, v{vL}
        v_mul_u32_u24 v{vT}, 1152, v{vT}
        v_and_b32 v{vT+1}, 3, v{vL}
        v_lshl_add_u32 v{vT}, v{vT+1}, 7, v{vT}
        s_add_u32 s{sT1}, s{sT0}, {16*1152}
        s_waitcnt lgkmcnt(0)""")
        a.srd(sX, 4, 5, 2048 * 1152)
        a(f"buffer_load_dword v{vT+1}, v{vT}, s[{sX}:{sX+3}], s{sT0} offen offset:640")
        a(f"buffer_load_dword v{vT+2}, v{vT}, s[{sX}:{sX+3}], s{sT1} offen offset:640")
    a(unit_lists)
    a(f"""s_sub_u32 s{sPw}, s{sWave}, 4
    s_and_b32 s{sPc}, s{sPw}, 1
    s_mov_b32 s{sP8i}, {8*9216}
    s_mov_b32 s{sP8q}, {8*3456}
    v_lshrrev_b32 v{T+2}, 2, v{vL}
    v_and_b32 v{T+2}, 4, v{T+2}
    v_xor_b32 v{T+2}, v{T+2}, v{T+1}
    v_lshlrev_b32 v{T+2}, 4, v{T+2}
    v_mul_u32_u24 v{vDin}, 9216, v{T}
    v_add_u32 v{vDin}, v{vDin}, v{T+2}
    v_mul_u32_u24 v{vDq}, 3456, v{T}
    v_add_u32 v{vDq}, v{vDq}, v{T+2}
    v_lshlrev_b32 v{vWo}, 12, v{T}
    v_lshl_add_u32 v{vWo}, v{T+1}, 4, v{vWo}
    s_and_b32 s{sT0}, s{sRb}, {(1<<RBL)-1}
    s_mul_i32 s{sT0}, s{sT0}, {576>>RBL}
    s_mul_i32 s{sT1}, s{sPw}, {144>>RBL}
    s_add_u32 s{sT0}, s{sT0}, s{sT1}
    v_min_u32 v{T+2}, {(144>>RBL)-1}, v{vL}
    v_add_u32 v{T+2}, s{sT0}, v{T+2}
    v_mul_u32_u24 v{vPi}, 9216, v{T+2}
    v_mul_u32_u24 v{vPq}, 3456, v{T+2}""")
    a("s_waitcnt lgkmcnt(0)")
    a.srd(sWI, 8, 9, 576 * 9216)
    a.srd(sWQ, 6, 7, 576 * 3456)
    a(f"s_mov_b32 s{sDM+3}, 0x00020000")
    a.srd(sWS, 10, 11, 2048 * 4096)
    a.srd_off(sWP, 98, 99, CFG.ws_base + WP_OFF, WP_SZ)
    a.srd_off(sST, 98, 99, CFG.ws_base + ST_OFF, ST_SZ)
    a.srd_off(sCP, 98, 99, CFG.ws_base + CP_OFF, CP_SZ)
    a.srd(sDB, 96, 97, 256)
    a.srd_off(sFL, 98, 99, CFG.ws_base + FL_OFF, FL_SZ)
    a(f"""s_lshl_b32 s{sIsT}, s2, 3
    s_or_b32 s{sIsT}, s{sIsT}, s{sPw}
    v_mov_b32 v{vTg}, {FL_TAG}
    s_cmp_lg_u32 s{sIsT}, 0
    s_cbranch_scc1 {N}_notag
    buffer_load_dword v{vTg+1}, v{vTg}, s[{sFL}:{sFL+3}], 0 offen sc1""")
    a.label(f"{N}_notag")
    def pparams():
        a(f"""s_add_u32 s{sT0}, s{sZ2s}, s{sV}
        s_add_u32 s{sT1}, s{sZ1m}, s{sV}
        s_add_u32 s{sT2}, s{sQm}, s{sV}
        s_cmp_lt_u32 s{sV}, s{sNz2}
        s_cselect_b32 s{sUn}, s{sT0}, s{sT1}
        s_cmp_eq_u32 s{sV}, 6
        s_cselect_b32 s{sUn}, s{sHu}, s{sUn}
        s_sub_u32 s{sT0}, s{sV}, s{sNz2}
        s_sub_u32 s{sT1}, s{sNg}, s{sNz2}
        s_cmp_ge_u32 s{sT0}, s{sT1}
        s_cselect_b32 s{sUn}, s{sUn}, s{sT2}
        s_cselect_b64 s[{sMq}:{sMq+1}], 0, -1
        s_cselect_b64 s[{sDM}:{sDM+1}], s[{sWI}:{sWI+1}], s[{sWQ}:{sWQ+1}]
        s_cselect_b32 s{sDM+2}, s{sWI+2}, s{sWQ+2}
        s_cselect_b32 s{sP8}, s{sP8i}, s{sP8q}
        s_lshl_b32 s{sUn}, s{sUn}, 7
        s_cmp_lt_u32 s{sV}, s{sN}
        s_cselect_b32 s{sUn}, s{sUn}, 0x7f000000""")
    def issue(nw=4):
        pparams()
        a(f"""v_cndmask_b32 v{vD}, v{vDin}, v{vDq}, s[{sMq}:{sMq+1}]
        s_sub_u32 s{sDvs}, s{sP8}, 1024
        s_lshl_b32 s{sDstep}, s{sP8}, 1
        s_mul_i32 s{sDma}, s{sDstep}, s{sPw}
        s_add_u32 s{sDma}, s{sDma}, s{sUn}
        s_mul_i32 s{sDstep}, s{sDstep}, {nw}
        v_add_u32 v{vD+1}, s{sDvs}, v{vD}
        s_lshl_b32 s{sT0}, s{sPw}, 11
        s_add_u32 m0, s{sBufN}, s{sT0}
        s_sub_u32 s{sBufN}, {UB}, s{sBufN}
        s_add_u32 s{sV}, s{sV}, 1""")
        for i in range(36 // nw):
            for j in range(2):
                a(f"buffer_load_dwordx4 v{vD+j}, s[{sDM}:{sDM+3}], s{sDma} offen offset:{1024*j} lds")
            if i < 36 // nw - 1:
                a(f"s_add_u32 m0, m0, {2048*nw}")
                a(f"s_add_u32 s{sDma}, s{sDma}, s{sDstep}")
    a(f"s_mov_b32 s{sV}, 0")
    a(f"s_mov_b32 s{sBufN}, 0")
    if CFG.ka_xbar >= 0: a("s_barrier")
    issue()
    def l2pf(d=CFG.ka_l2pf-1):
        if d: a(f"s_add_u32 s{sV}, s{sV}, {d}")
        pparams()
        if d: a(f"s_sub_u32 s{sV}, s{sV}, {d}")
        a(f"v_cndmask_b32 v{vT+3}, v{vPi}, v{vPq}, s[{sMq}:{sMq+1}]")
        a(f"buffer_load_dword v14, v{vT+3}, s[{sDM}:{sDM+3}], s{sUn} offen {CFG.ka_pf_aux}")
    npf = 1 if CFG.ka_l2pf else 0
    for d in range(CFG.ka_l2pf): l2pf(d)
    if CFG.ka_spf:
        a(f"""s_mul_i32 s{sXr}, s{sRb}, 36
        s_mul_i32 s{sT0}, s{sPw}, 9
        s_add_u32 s{sXr}, s{sXr}, s{sT0}""")
        a.label(f"{N}_spf")
        pparams()
        a(f"""s_lshr_b32 s{sT0}, s{sP8}, 3
        s_mul_i32 s{sT1}, s{sT0}, s{sXr}
        s_add_u32 s{sT1}, s{sT1}, s{sUn}
        s_add_u32 s96, s{sDM}, s{sT1}
        s_addc_u32 s97, s{sDM+1}, 0
        s_mov_b32 s{sT1}, 0""")
        for r in range(9):
            a(f"s_load_dword s{[98,94][r%2]}, s[96:97], s{sT1}")
            a(f"s_load_dword s{[99,95][r%2]}, s[96:97], s{sT1} offset:64")
            if r < 8: a(f"s_add_u32 s{sT1}, s{sT1}, s{sT0}")
        a(f"""s_add_u32 s{sV}, s{sV}, 1
        s_cmp_lt_u32 s{sV}, s{sN}
        s_cbranch_scc1 {N}_spf
        s_mov_b32 s{sV}, 1""")
    a(f"""s_lshl_b32 s{sXr}, s{sCg}, 19
    s_lshl_b32 s{sT0}, s{sRb}, 8
    s_add_u32 s{sXr}, s{sXr}, s{sT0}
    s_lshl_b32 s{sT0}, s{sPc}, 7
    s_add_u32 s{sXr}, s{sXr}, s{sT0}
    s_mov_b32 s{sXr+1}, s{sXr}""")
    a(f"s_waitcnt vmcnt({CFG.ka_l2pf})")
    a(f"""s_cmp_lg_u32 s{sIsT}, 0
    s_cbranch_scc1 {N}_notag2
    v_add_u32 v{vTg+1}, 1, v{vTg+1}
    v_max_u32 v{vTg+1}, 1, v{vTg+1}
    buffer_store_dword v{vTg+1}, v{vTg}, s[{sFL}:{sFL+3}], 0 offen sc1""")
    a.label(f"{N}_notag2")
    pf.stamp()
    a("s_barrier")
    def special(v):
        l = a.newlabel(N + "_sp")
        a(f"s_cmp_lg_u32 s{sV}, {v}")
        a(f"s_cbranch_scc1 {l}")
        return l
    a.label(f"{N}_ploop")
    nopub = a.newlabel(N + "_nopub")
    a(f"s_cmp_lg_u32 s{sV}, 4")
    a(f"s_cbranch_scc1 {nopub}")
    a(f"s_cmp_lg_u32 s{sPw}, 0")
    a(f"s_cbranch_scc1 {nopub}")
    a(f"""v_lshrrev_b32 v{vT}, 5, v{vL}
    v_and_b32 v{vT+1}, 31, v{vL}
    v_lshlrev_b32 v{vT}, 12, v{vT}
    v_lshl_add_u32 v{vT}, v{vT+1}, 3, v{vT}
    v_add_u32 v{vT}, {STG}, v{vT}
    ds_read_b64 {vr(P,2)}, v{vT}
    ds_read_b64 {vr(P+8,2)}, v{vT} offset:256
    ds_read_b64 {vr(P+4,2)}, v{vT} offset:8192
    ds_read_b64 {vr(P+10,2)}, v{vT} offset:{8192+256}
    v_lshlrev_b32 v{vT+1}, 4, v{vL}
    s_lshl_b32 s{sT0}, s{sRb}, 4
    s_add_u32 s{sT0}, s{sT0}, s{sCg}
    s_lshl_b32 s{sT0}, s{sT0}, 11
    v_mov_b32 v{P+2}, s{sTag}
    v_mov_b32 v{P+3}, s{sTag}
    v_mov_b32 v{P+6}, s{sTag}
    v_mov_b32 v{P+7}, s{sTag}
    s_waitcnt lgkmcnt(0)
    v_add_f32 v{P}, v{P}, v{P+8}
    v_add_f32 v{P+1}, v{P+1}, v{P+9}
    v_add_f32 v{P+4}, v{P+4}, v{P+10}
    v_add_f32 v{P+5}, v{P+5}, v{P+11}
    buffer_store_dwordx4 {vr(P,4)}, v{vT+1}, s[{sST}:{sST+3}], s{sT0} offen sc1
    buffer_store_dwordx4 {vr(P+4,4)}, v{vT+1}, s[{sST}:{sST+3}], s{sT0} offen offset:1024 sc1""")
    a.label(nopub)
    issue()
    if npf: l2pf()
    l3 = a.newlabel(N + "_l"); l4 = a.newlabel(N + "_l")
    l = special(2)
    a(f"s_cmp_lt_u32 s{sPw}, 2")
    a(f"s_cbranch_scc1 {N}_s0b")
    for i in range(16):
        a(f"buffer_load_dwordx4 {vr(WU+8*i+4,4)}, v{vWo}, s[{sWS}:{sWS+3}], s{sXr+1} offen {CFG.ka_wsp_aux}")
        a(f"s_add_u32 s{sXr+1}, s{sXr+1}, 32768")
    a(f"s_waitcnt vmcnt({16+npf})")
    a(f"s_branch {l3}")
    a.label(f"{N}_s0b")
    a(f"""s_waitcnt vmcnt({npf})
    s_cmp_lg_u32 s{sIsT}, 0
    s_cbranch_scc1 {l3}
    buffer_store_dword v{vTg+1}, v{vZero}, s[{sDB}:{sDB+3}], 0 offen sc1""")
    a(f"s_branch {l3}")
    a.label(l)
    l = special(4)
    a(f"s_mov_b32 s{sT1}, {CFG.bound}")
    a.label(f"{N}_ptag")
    a(f"""buffer_load_dword v{vT+2}, v{vZero}, s[{sDB}:{sDB+3}], 0 offen sc1
    s_waitcnt vmcnt(0)
    v_readfirstlane_b32 s{sTag}, v{vT+2}
    v_mov_b32 v{vT+1}, {TAG_LDS}
    ds_write_b32 v{vT+1}, v{vT+2}
    s_waitcnt lgkmcnt(0)
    s_sub_u32 s{sT1}, s{sT1}, 1
    s_cmp_eq_u32 s{sT1}, 0
    s_cbranch_scc1 {l3}
    s_cmp_lg_u32 s{sTag}, 0
    s_cbranch_scc1 {l3}
    s_sleep 8
    s_branch {N}_ptag""")
    a.label(l)
    a(f"s_cmp_lt_u32 s{sPw}, 2")
    a(f"s_cbranch_scc1 {l4}")
    l = special(5)
    for i in range(16):
        for r in range(4):
            x = WU + 8*i + 4 + r
            a(f"v_lshlrev_b32 v{WU+8*i+2*r}, 16, v{x}")
            a(f"v_and_b32 v{WU+8*i+2*r+1}, 0xffff0000, v{x}")
    a.label(l)
    a.label(l4)
    a(f"s_waitcnt vmcnt({npf})")
    a.label(l3)
    a("s_barrier")
    a("s_barrier")
    a(f"s_cmp_lt_u32 s{sV}, 5")
    a(f"s_cbranch_scc1 {N}_ploop")
    a(f"s_cmp_ge_u32 s{sPw}, 2")
    a(f"s_cbranch_scc1 {N}_job")
    a.label(f"{N}_ploop2")
    issue(2)
    a(f"s_waitcnt vmcnt(0)")
    a("s_barrier")
    a("s_barrier")
    a(f"s_cmp_lt_u32 s{sV}, s{sN}")
    a(f"s_cbranch_scc1 {N}_ploop2")
    a(f"s_branch {N}_Bh")
    a.label(f"{N}_job")
    pf.stamp()
    sTry = sXr + 3
    a(f"""v_lshlrev_b32 v{vT}, 4, v{vL}
    s_lshl_b32 s{sT0}, s{sRb}, 15
    s_lshl_b32 s{sT1}, s{sPc}, 10
    s_add_u32 s{sSo2}, s{sT0}, s{sT1}
    s_mov_b32 s{sTry}, {CFG.bound}""")
    def full(aux="sc1"):
        a(f"s_mov_b32 s{sT0}, s{sSo2}")
        for i in range(16):
            a(f"buffer_load_dwordx4 {vr(P+4*i,4)}, v{vT}, s[{sST}:{sST+3}], s{sT0} offen offset:{(i%2)*2048} {aux}")
            if i % 2 == 1: a(f"s_add_u32 s{sT0}, s{sT0}, 4096")
    full(CFG.ka_st_aux)
    sSt8 = sXr + 1
    def d5():
        l = a.newlabel(N + "_d5")
        a(f"""s_cmp_lg_u32 s{sSt8}, 0
        s_cbranch_scc1 {l}
        s_mov_b32 s{sSt8}, 1
        s_barrier
        s_barrier""")
        a.label(l)
    a(f"s_mov_b32 s{sSt8}, 0")
    a(f"s_branch {N}_pst_w")
    a.label(f"{N}_pst")
    d5()
    a("s_sleep 8")
    full()
    a.label(f"{N}_pst_w")
    a("s_waitcnt vmcnt(0)")
    for i in range(16): a(f"v_xor_b32 v{P+4*i+2}, s{sTag}, v{P+4*i+2}")
    for i in range(1, 16): a(f"v_or_b32 v{P+2}, v{P+2}, v{P+4*i+2}")
    a(f"""v_cmp_ne_u32 vcc, 0, v{P+2}
    s_sub_u32 s{sTry}, s{sTry}, 1
    s_cmp_eq_u32 s{sTry}, 0
    s_cbranch_scc1 {N}_pst_ok
    s_cmp_lg_u64 vcc, 0
    s_cbranch_scc1 {N}_pst""")
    a.label(f"{N}_pst_ok")
    pf.stamp()
    a(f"""v_lshlrev_b32 v{vT}, 3, v{vL}
    s_lshl_b32 s{sT1}, s{sPw}, 9
    s_add_u32 s{sT1}, s{sT1}, {STG+4096+2048}
    v_add_u32 v{vT}, s{sT1}, v{vT}
    v_lshlrev_b32 v{vT+1}, 6, v{T+1}
    v_add_u32 v{vT+1}, s{sT1}, v{vT+1}
    s_mov_b32 s{sT0}, {f32(1.0/2304)}
    s_mov_b32 s{sT2}, {f32(1.0/abs(KSC))}""")
    for i in range(1, 16):
        a(f"v_add_f32 v{P}, v{P}, v{P+4*i}")
        a(f"v_add_f32 v{P+1}, v{P+1}, v{P+4*i+1}")
    a(f"""v_mul_f32 v{P}, s{sT0}, v{P}
    v_mul_f32 v{P+1}, s{sT0}, v{P+1}
    v_fma_f32 v{P+1}, -v{P}, v{P}, v{P+1}
    v_max_f32 v{P+1}, 0, v{P+1}
    v_add_f32 v{P+1}, {f32(EPS*KSC*KSC)}, v{P+1}
    v_rsq_f32 v{P+1}, v{P+1}
    v_mul_f32 v{P+1}, s{sT2}, v{P+1}
    ds_write_b64 v{vT}, {vr(P,2)}""")
    for q in range(4):
        a(f"ds_read_b128 {vr(P+4*q,4)}, v{vT+1} offset:{16*q}")
    a("s_waitcnt lgkmcnt(0)")
    for i in range(16):
        for r in range(8): a(f"v_mul_f32 v{WU+8*i+r}, v{P+2*r+1}, v{WU+8*i+r}")
        for r in range(4): a(f"v_cvt_pk_bf16_f32 v{WU+8*i+r}, v{WU+8*i+2*r}, v{WU+8*i+2*r+1}")
        a(f"buffer_store_dwordx4 {vr(WU+8*i,4)}, v{vWo}, s[{sWP}:{sWP+3}], s{sXr} offen sc1")
        a(f"s_add_u32 s{sXr}, s{sXr}, 32768")
        if i == CFG.ka_d5: d5()
    pf.stamp()
    a(f"""s_lshl_b32 s{sXr}, s{sCg}, 7
    s_lshl_b32 s{sT1}, s{sRb}, 3
    s_add_u32 s{sXr}, s{sXr}, s{sT1}
    s_lshl_b32 s{sT1}, s{sPc}, 2
    s_add_u32 s{sXr}, s{sXr}, s{sT1}
    v_mov_b32 v{vTg}, s{sTag}""")
    fw = f"""s_waitcnt vmcnt(0)
    buffer_store_dword v{vTg}, v{vZero}, s[{sFL}:{sFL+3}], s{sXr} offen offset:{FL_W} sc1"""
    if CFG.ka_fwe: a(fw)
    a(f"""s_barrier
    s_cmp_lt_u32 s{sN}, 7
    s_cbranch_scc1 {N}_noc6
    s_barrier""")
    a.label(f"{N}_noc6")
    if not CFG.ka_fwe: a(fw)
    pf.stamp()
    a(f"""s_cmp_lt_u32 s{sN}, 7
    s_cbranch_scc1 {N}_nod7
    s_barrier""")
    a.label(f"{N}_nod7")
    C2 = 48
    for p in range(4): a(f"v_cvt_pk_bf16_f32 v{MH+p}, v{P+4*p}, v{P+4*p+2}")
    for p in range(4):
        a(f"v_lshlrev_b32 v{TT}, 16, v{MH+p}")
        a(f"v_and_b32 v{TT+1}, 0xffff0000, v{MH+p}")
        a(f"v_sub_f32 v{TT}, v{P+4*p}, v{TT}")
        a(f"v_sub_f32 v{TT+1}, v{P+4*p+2}, v{TT+1}")
        a(f"v_cvt_pk_bf16_f32 v{ML+p}, v{TT}, v{TT+1}")
    a.lines.append(".p2align 3")
    for i in range(0, 16, 2):
        for r in range(4):
            for q in range(2):
                a(f"v_dot2_f32_bf16 v{C2+i+q}, v{WU+8*(i+q)+r}, v{MH+r}, {'0' if r==0 else 'v%d'%(C2+i+q)}")
            for q in range(2):
                a(f"v_dot2_f32_bf16 v{C2+i+q}, v{WU+8*(i+q)+r}, v{ML+r}, v{C2+i+q}")
    for ctrl in ["quad_perm:[1,0,3,2]", "quad_perm:[2,3,0,1]", "row_half_mirror"]:
        for q in range(16):
            a(f"v_add_f32_dpp v{C2+q}, v{C2+q}, v{C2+q} {ctrl} row_mask:0xf bank_mask:0xf")
    for i in range(1, 8):
        a(f"v_cmp_eq_u32 vcc, {i}, v{T+1}")
        a(f"v_cndmask_b32 v{C2}, v{C2}, v{C2+i}, vcc")
        a(f"v_cndmask_b32 v{C2+8}, v{C2+8}, v{C2+8+i}, vcc")
    a(f"""v_lshlrev_b32 v{vT}, 2, v{T}
    v_lshl_add_u32 v{vT}, v{T+1}, 5, v{vT}
    s_lshl_b32 s{sT0}, s{sCg}, 9
    s_lshl_b32 s{sT1}, s{sRb}, 14
    s_add_u32 s{sT0}, s{sT0}, s{sT1}
    s_lshl_b32 s{sT1}, s{sPc}, 13
    s_add_u32 s{sT0}, s{sT0}, s{sT1}
    buffer_store_dword v{C2}, v{vT}, s[{sCP}:{sCP+3}], s{sT0} offen sc1
    buffer_store_dword v{C2+8}, v{vT}, s[{sCP}:{sCP+3}], s{sT0} offen offset:256 sc1
    s_branch {N}_Bh""")

class Attn:
    KV, Q, LG, PH, O = 88, 184, 196, 204, 212
    vQo, vRd = 245, 246
    def __init__(self, a, sZQ, sUO, sT):
        self.a, self.sZQ, self.sUO, self.sT = a, sZQ, sUO, sT
    def base(self, sD, sT):
        self.a(f"""s_and_b32 s{sD}, s2, 7
        s_mul_i32 s{sD}, s{sD}, {9*OCT}
        s_lshr_b32 s{sT}, s2, 3
        s_lshl_b32 s{sT}, s{sT}, 10
        s_add_u32 s{sD}, s{sD}, s{sT}""")
    def kv_prep(self, vDo, TM):
        a = self.a
        for n in range(4):
            a(f"v_add_u32 v{TM}, {64*n}, v1")
            a(f"v_mul_u32_u24 v{TM+1}, 3277, v{TM}")
            a(f"v_lshrrev_b32 v{TM+1}, 18, v{TM+1}")
            a(f"v_mul_u32_u24 v{TM+2}, 80, v{TM+1}")
            a(f"v_sub_u32 v{TM}, v{TM}, v{TM+2}")
            a(f"v_lshlrev_b32 v{TM}, 4, v{TM}")
            a(f"v_lshl_add_u32 v{vDo+n}, v{TM+1}, 15, v{TM}")
            if n: a(f"v_subrev_u32 v{vDo+n}, {1024*n}, v{vDo+n}")
    def stage(self, heads, vDo, vZ, sB, sL, sT):
        a, sZQ = self.a, self.sZQ
        for kv in (0, 2, 1):
            for w in heads:
                if kv < 2:
                    a(f"s_add_u32 m0, s{sL}, {12288*w+4096*kv}")
                    a(f"s_add_u32 s{sT}, s{sB}, {(576+72+72*kv+(9*w>>2))*OCT-256}")
                    for n in range(4):
                        a(f"buffer_load_dwordx4 v{vDo+n}, s[{sZQ}:{sZQ+3}], s{sT} offen offset:{1024*n} lds")
                else:
                    for j in range(3):
                        a(f"s_add_u32 m0, s{sL}, {12288*w+8192+1024*j}")
                        a(f"s_add_u32 s{sT}, s{sB}, {(576+(9*w>>2)+j)*OCT}")
                        a(f"buffer_load_dwordx4 v{vZ}, s[{sZQ}:{sZQ+3}], s{sT} offen lds")
    def setup(self, sWave, sL):
        a, sT = self.a, self.sT
        self.base(sT, sT+1)
        a(f"""s_mul_i32 s{sT+1}, s{sWave}, 9
        s_lshr_b32 s{sT+1}, s{sT+1}, 2
        s_add_u32 s{sT+1}, s{sT+1}, 288
        s_lshl_b32 s{sT+1}, s{sT+1}, 15
        s_add_u32 s{sT}, s{sT}, s{sT+1}
        v_lshlrev_b32 v{self.vQo}, 4, v1
        s_mul_i32 s{sT+5}, s{sWave}, 12288
        s_add_u32 s{sT+5}, s{sT+5}, s{sL}
        s_add_u32 s{sT+5}, s{sT+5}, 32
        v_add_u32 v{self.vRd}, s{sT+5}, v{self.vQo}
        s_lshr_b32 s{sT+4}, s2, 3
        s_lshl_b32 s{sT+4}, s{sT+4}, 6
        v_add_u32 v16, s{sT+4}, v1
        v_mov_b32 v17, 0xff800000""")
        for w in range(1, 8):
            a(f"v_cmp_le_u32 s[{40+2*w}:{41+2*w}], {2*w}, v16")
        sc = (18 ** -0.5) * math.log2(math.e) / (KSC * KSC)
        a(f"s_mov_b32 s{sT+4}, {f32(sc)}")
        a(f"s_mov_b32 s{sT+5}, {f32(KSC)}")
    def reads(self):
        a = self.a
        for j in range(3):
            a(f"ds_read_b128 {vr(self.Q+4*j,4)}, v{self.vRd} offset:{8192-32+1024*j}")
        self.rd(0)
    def rd(self, base):
        for w in range(8):
            for j in range(3):
                self.a(f"ds_read_b128 {vr(self.KV+12*w+4*j,4)}, v{self.vRd} offset:{base+j*1280+224-32*w}")
    def compute(self, do):
        a, sT, KV, Q, LG, PH, O = self.a, self.sT, self.KV, self.Q, self.LG, self.PH, self.O
        for w0 in range(0, 8, 2):
            a(f"s_waitcnt lgkmcnt({min(15, 24-3*(w0+2))})")
            a.lines.append(".p2align 3")
            for i in range(9):
                for w in (w0, w0+1):
                    c = "0" if i == 0 else f"v{LG+w}"
                    a(f"v_dot2_f32_bf16 v{LG+w}, v{Q+do+i}, v{KV+12*w+do+i}, {c}")
        self.rd(4096)
        for w in range(1, 8):
            a(f"v_cndmask_b32 v{LG+w}, v17, v{LG+w}, s[{40+2*w}:{41+2*w}]")
        g = LG; m = 18; s = 19
        a(f"v_max3_f32 v{m}, v{g}, v{g+1}, v{g+2}")
        a(f"v_max3_f32 v{m}, v{m}, v{g+3}, v{g+4}")
        a(f"v_max3_f32 v{m}, v{m}, v{g+5}, v{g+6}")
        a(f"v_max_f32 v{m}, v{m}, v{g+7}")
        for w in range(8): a(f"v_sub_f32 v{g+w}, v{g+w}, v{m}")
        for w in range(8): a(f"v_mul_f32 v{g+w}, s{sT+4}, v{g+w}")
        for w in range(8): a(f"v_exp_f32 v{g+w}, v{g+w}")
        for w in range(8): a(f"v_cvt_pk_bf16_f32 v{g+w}, v{g+w}, 0")
        for w in range(8): a(f"v_lshlrev_b32 v{PH+w}, 16, v{g+w}")
        a(f"v_add_f32 v{s}, v{PH}, v{PH+1}")
        for w in range(2, 8): a(f"v_add_f32 v{s}, v{s}, v{PH+w}")
        a(f"v_mul_f32 v{s}, s{sT+5}, v{s}")
        a(f"v_rcp_f32 v{s}, v{s}")
        for w in range(8):
            if w % 2 == 0:
                a(f"s_waitcnt lgkmcnt({min(15, 24-3*(w+2))})")
                a.lines.append(".p2align 3")
            for d in range(9):
                c0 = "0" if w == 0 else f"v{O+2*d}"
                c1 = "0" if w == 0 else f"v{O+2*d+1}"
                a(f"v_dot2_f32_bf16 v{O+2*d}, v{KV+12*w+do+d}, v{LG+w}, {c0}")
                a(f"v_dot2_f32_bf16 v{O+2*d+1}, v{KV+12*w+do+d}, v{PH+w}, {c1}")
        for d in range(18): a(f"v_mul_f32 v{O+d}, v{s}, v{O+d}")
        for d in range(9): a(f"v_cvt_pk_bf16_f32 v{Q+do+d}, v{O+2*d}, v{O+2*d+1}")
        for j in range(3):
            lo, hi = max(do, 4*j), min(do + 9, 4*j + 4)
            while lo < hi:
                n = 1 if lo % 2 else hi - lo
                sfx = {1: "dword", 2: "dwordx2", 3: "dwordx3", 4: "dwordx4"}[n]
                a(f"buffer_store_{sfx} {vr(Q+lo,n)}, v{self.vQo}, s[{self.sUO}:{self.sUO+3}], s{sT} offen offset:{4*(lo-4*j)} sc1")
                lo += n
            if j < 2: a(f"s_add_u32 s{sT}, s{sT}, {OCT}")

UB = 73728
def c_tile(a, sRb, sCg, sT):
    a(f"""s_and_b32 s{sT}, s2, 7
    s_lshr_b32 s{sT+1}, s2, 3
    s_mul_i32 s{sT+2}, s{sT}, 29
    s_min_u32 s{sT}, s{sT}, 2
    s_add_u32 s{sT+2}, s{sT+2}, s{sT}
    s_add_u32 s{sT+2}, s{sT+2}, s{sT+1}
    s_mul_i32 s{sRb}, s{sT+2}, 7282
    s_lshr_b32 s{sRb}, s{sRb}, 16
    s_mul_i32 s{sT}, s{sRb}, 9
    s_sub_u32 s{sCg}, s{sT+2}, s{sT}""")
UFC, vUC = 88, 247
def o_prefetch(a, sWave, sUO, sTt, sT, bar_every=0, vUC=vUC, vt=248):
    c_tile(a, sT+3, sT+4, sT)
    a(f"""s_min_u32 s{sT+1}, s{sWave}, 4
    s_mul_i32 s{sTt}, s{sT+3}, 5
    s_add_u32 s{sTt}, s{sTt}, s{sT+1}
    s_cmp_ge_u32 s2, 234
    s_cselect_b32 s{sTt}, 128, s{sTt}
    s_min_u32 s{sT}, s{sTt}, 127
    s_lshl_b32 s{sT}, s{sT}, 8
    v_lshrrev_b32 v{vUC}, 4, v1
    v_lshlrev_b32 v{vUC}, 15, v{vUC}
    v_and_b32 v{vt}, 15, v1
    v_lshl_add_u32 v{vUC}, v{vt}, 4, v{vUC}
    v_add_u32 v{vUC}, s{sT}, v{vUC}
    s_mov_b32 s{sT}, {288*OCT}""")
    for k in range(18):
        a(f"buffer_load_dwordx4 {vr(UFC+4*k,4)}, v{vUC}, s[{sUO}:{sUO+3}], s{sT} offen")
        if k < 17: a(f"s_add_u32 s{sT}, s{sT}, {4*OCT}")
        if bar_every and k % bar_every == bar_every - 1: a("s_barrier")

def phase_B(a, N):
    pf = a.pf
    ZO = 16384
    def zb(j): return ZO + j*1024 + (j >> 1)*64 + (64 if j == 17 else 0)
    STG = zb(17) + 1024
    FREE = 2 * UB
    NE = 12
    BC = FREE + (18 - NE) * 2048
    sWP, sZQ, sUO, sCP, sBS, sFL = 12, 16, 20, 24, 28, 64
    sWave, sTb, sFb, sOdd, sT = 36, 37, 38, 39, 40
    sI, sSlot, sHi, sA, sZm, sZs, sZ1m, sZ1s = 56, 57, 58, 59, 60, 61, 62, 63
    sTt, sFu = 98, 99
    RBL = CFG.ka_rbl
    def common():
        a("s_load_dwordx4 s[4:7], s[0:1], 48")
        a("s_load_dwordx2 s[8:9], s[0:1], 16")
        a("s_load_dwordx2 s[10:11], s[0:1], 80")
        a(f"""s_and_b32 s{sT}, s2, 7
        s_lshr_b32 s{sT+1}, s2, 3
        s_and_b32 s{sFb}, s{sT}, {(16>>RBL)-1}
        s_lshl_b32 s{sFb}, s{sFb}, {RBL}
        s_and_b32 s{sT+2}, s{sT+1}, {(1<<RBL)-1}
        s_add_u32 s{sFb}, s{sFb}, s{sT+2}
        s_lshr_b32 s{sTb}, s{sT}, {4-RBL}
        s_lshl_b32 s{sTb}, s{sTb}, {5-RBL}
        s_lshr_b32 s{sT+2}, s{sT+1}, {RBL}
        s_add_u32 s{sTb}, s{sTb}, s{sT+2}
        s_and_b32 s{sOdd}, s{sFb}, 1
        s_mul_i32 s{sZm}, s{sFb}, 18
        s_lshl_b32 s{sT}, s{sOdd}, 1
        s_add_u32 s{sZs}, s{sZm}, 16
        s_lshl_b32 s{sT+1}, s{sOdd}, 4
        s_sub_u32 s{sZs}, s{sZs}, s{sT+1}
        s_add_u32 s{sZm}, s{sZm}, s{sT}
        s_lshl_b32 s{sZm}, s{sZm}, 15
        s_lshl_b32 s{sZs}, s{sZs}, 15
        s_sub_u32 s{sHi}, {UB}, s{sLo}""")
    ACC, FA, FB, Z1, T = 16, 88, 160, 176, 212
    vL, vZ0, vZ1, vZs, vB0, vB1, vE, vEs = 1, 2, 3, 4, 5, 6, 7, 8
    vBC, vCo, vBo, vC2 = 10, 12, 249, 9
    AD = {vB0: 240, vB1: 241, vZ0: 242, vZ1: 243, vZs: 244}
    a.label(f"{N}_At")
    common()
    a(f"""v_lshrrev_b32 v{T}, 4, v{vL}
    v_and_b32 v{T+1}, 15, v{vL}
    v_bfe_u32 v{T+2}, v{vL}, 2, 2
    v_and_b32 v{T+3}, 3, v{vL}
    v_lshl_add_u32 v{T+4}, v{T}, 3, v{T+2}
    v_lshlrev_b32 v{T+4}, 4, v{T+4}
    v_add_u32 v{T+4}, {ZO}, v{T+4}
    v_lshrrev_b32 v{T+5}, 1, v{T+3}
    v_and_b32 v{T+6}, 1, v{T+3}
    v_lshl_add_u32 v{vZ0}, v{T+3}, 10, v{T+4}
    v_lshl_add_u32 v{vZ0}, v{T+5}, 6, v{vZ0}
    v_lshl_add_u32 v{vZ0}, v{T+6}, 3, v{vZ0}
    v_xor_b32 v{vZ1}, 8, v{vZ0}
    v_mul_u32_u24 v{vZs}, 1088, v{T+5}
    v_add_u32 v{vZs}, v{vZs}, v{T+4}
    v_xor_b32 v{T+6}, v{T+6}, v{T+5}
    v_lshl_add_u32 v{vZs}, v{T+6}, 3, v{vZs}
    s_lshl_b32 s{sT}, s{sWave}, 5
    v_add_u32 v{T+7}, s{sT}, v{T+1}
    v_and_b32 v{T+8}, 7, v{vL}
    v_xor_b32 v{T+8}, v{T+8}, v{T}
    v_lshlrev_b32 v{T+8}, 4, v{T+8}
    v_lshl_add_u32 v{vB0}, v{T+7}, 7, v{T+8}
    v_xor_b32 v{vB1}, 64, v{vB0}""")
    for r, r2 in AD.items(): a(f"v_add_u32 v{r2}, s{sHi}, v{r}")
    for r in AD: a(f"v_add_u32 v{r}, s{sLo}, v{r}")
    a(f"""s_lshl_b32 s{sT+1}, s{sTb}, 7
    v_add_u32 v{T+9}, s{sT+1}, v{T+7}
    v_lshlrev_b32 v{vE}, 4, v{T+9}
    v_lshrrev_b32 v{T+8}, 1, v{T}
    v_lshl_add_u32 v{vEs}, v{T+8}, 15, v{vE}
    v_and_b32 v{T+10}, 1, v{T}
    v_lshl_add_u32 v{vEs}, v{T+10}, 3, v{vEs}
    v_lshl_add_u32 v{vE}, v{T}, 15, v{vE}
    v_lshlrev_b32 v{vCo}, 4, v{T+7}
    v_lshl_add_u32 v{vBo}, v{T+8}, 11, v{vCo}
    v_lshl_add_u32 v{vBo}, v{T+10}, 3, v{vBo}
    v_add_u32 v{vBo}, {FREE+(16-NE)*2048}, v{vBo}
    v_lshl_add_u32 v{vCo}, v{T}, 11, v{vCo}
    v_add_u32 v{vC2}, {FREE}, v{vCo}
    v_add_u32 v{vCo}, s{sLo}, v{vCo}
    v_lshlrev_b32 v{vBC}, 2, v{T+7}
    v_add_u32 v{vBC}, {BC}, v{vBC}
    s_lshl_b32 s{sFu}, s{sTb}, 8
    s_lshl_b32 s{sT}, s{sFb}, 4
    s_add_u32 s{sFu}, s{sFu}, s{sT}
    s_lshl_b32 s{sT}, s{sWave}, 2
    s_add_u32 s{sFu}, s{sFu}, s{sT}
    s_add_u32 s{sFu}, s{sFu}, {FL_U}""")
    for i in range(4, 72): a(f"v_mov_b32 v{ACC+i}, 0")
    at = Attn(a, sZQ, sUO, 70)
    at.setup(sWave, sHi)
    a(f"s_mov_b32 s{sI}, 8")
    a("s_waitcnt lgkmcnt(0)")
    a.srd_off(sUO, 10, 11, CFG.ws_base + UO_OFF, UO_SZ)
    a.srd_off(sFL, 10, 11, CFG.ws_base + FL_OFF, FL_SZ)
    pf.stamp()
    a(f"""v_mov_b32 v18, {TAG_LDS-8}
    v_readfirstlane_b32 s{sTag}, v14
    s_mov_b32 s{sA}, {CFG.bound*16}""")
    a.label(f"{N}_kvw")
    a(f"""ds_read_b64 v[184:185], v18
    s_waitcnt lgkmcnt(0)
    v_xor_b32 v184, s{sTag}, v184
    v_xor_b32 v185, s{sTag}, v185
    v_or_b32 v184, v184, v185
    s_sub_u32 s{sA}, s{sA}, 1
    v_readfirstlane_b32 s{sSlot}, v184
    s_cmp_eq_u32 s{sA}, 0
    s_cbranch_scc1 {N}_kvd
    s_cmp_lg_u32 s{sSlot}, 0
    s_cbranch_scc1 {N}_kvw""")
    a.label(f"{N}_kvd")
    pf.stamp()
    at.reads()
    for w in range(4):
        if w < 3:
            a(f"s_cmp_lg_u32 s{sWave}, {w}")
            a(f"s_cbranch_scc1 {N}_at{w+1}")
        at.compute(w)
        if w < 3:
            a(f"s_branch {N}_atd")
            a.label(f"{N}_at{w+1}")
    a.label(f"{N}_atd")
    for i in range(4): a(f"v_mov_b32 v{ACC+i}, 0")
    def reads(slot, h, st):
        R = (lambda r: AD[r]) if slot >= 2 else (lambda r: r)
        so = (slot & 1) * STG
        out = [f"ds_read_b128 {vr(FB+8*st+4*tt,4)}, v{R(vB1 if h else vB0)} offset:{so+2048*tt}" for tt in range(2)]
        for j in range(9):
            for rd in range(2):
                if j < 8:
                    out.append(f"ds_read_b64_tr_b16 {vr(FA+36*st+4*j+2*rd,2)}, v{R(vZ1 if j&1 else vZ0)} offset:{so+zb(4*(j>>1))-ZO+512*h+64*rd}")
                else:
                    out.append(f"ds_read_b64_tr_b16 {vr(FA+36*st+4*j+2*rd,2)}, v{R(vZs)} offset:{so+zb(16)-ZO+512*h+64*rd}")
        return out
    def phase(st, rds):
        out = []; k = 0
        for j in range(9):
            for tt in range(2):
                if tt == 0 and j % 3 == 0:
                    jj = min(j + 2, 8)
                    out.append(f"s_waitcnt lgkmcnt({min(15, 19-(3+2*jj)+k)})")
                out.append(f"v_mfma_f32_16x16x32_bf16 {vr(ACC+8*j+4*tt,4)}, {vr(FA+36*st+4*j,4)}, {vr(FB+8*st+4*tt,4)}, {vr(ACC+8*j+4*tt,4)}")
                for _ in range(2 if j == 1 else 1):
                    if k < len(rds): out.append(rds[k]); k += 1
        return out
    pf.stamp()
    a("s_barrier")
    pf.stamp()
    for l in reads(0, 0, 0): a(l)
    a.lines.append(".p2align 6")
    a.label(f"{N}_Bloop")
    for slot in range(4):
        for l in phase(0, reads(slot, 1, 1)): a(l)
        if slot == 3:
            a(f"s_sub_u32 s{sI}, s{sI}, 1")
            a("s_waitcnt vmcnt(0)")
        a("s_barrier")
        if CFG.prof > 1: pf.stamp()
        for l in phase(1, reads((slot + 1) % 4, 0, 0)): a(l)
    a(f"s_cmp_lg_u32 s{sI}, 0")
    a(f"s_cbranch_scc1 {N}_Bloop")
    a("s_waitcnt lgkmcnt(0)")
    o_prefetch(a, sWave, sUO, sTt, sT)
    order = [3, 4, 0, 1, 2]
    a("s_barrier")
    a(f"ds_read_b32 v{vBC+1}, v{vBC} offset:64")
    a(f"ds_read_b32 v{vBC}, v{vBC}")
    for i in order:
        for tt in range(2):
            if i < 4: a(f"ds_read_b128 {vr(Z1+8*i+4*tt,4)}, v{vCo if i < 3 else vC2} offset:{8192*(i%3)+256*tt}")
            else: a(f"ds_read_b64 {vr(Z1+32+2*tt,2)}, v{vBo} offset:{256*tt}")
    pf.stamp()
    for oi, i in enumerate(order):
        if i < 4: a(f"s_add_u32 s{sT}, s{sZm}, {4*OCT*i}")
        for tt in range(2):
            n = 4 if i < 4 else 2
            z = Z1 + 8*i + n*tt
            a(f"s_waitcnt lgkmcnt({9-2*oi-tt})")
            for r in range(n):
                j = 2*i + (r >> 1)
                ac = ACC + 8*j + 4*tt + 2*(r & 1)
                t = T + 4*(r % 2)
                a(f"v_add_f32 v{ac}, v{vBC+tt}, v{ac}")
                a(f"v_add_f32 v{ac+1}, v{vBC+tt}, v{ac+1}")
                a(f"v_lshlrev_b32 v{t}, 16, v{z+r}")
                a(f"v_and_b32 v{t+1}, 0xffff0000, v{z+r}")
                a(f"v_mul_f32 v{t}, v{t}, v{ac}")
                a(f"v_mul_f32 v{t+1}, v{t+1}, v{ac+1}")
                a(f"v_cvt_pk_bf16_f32 v{z+r}, v{t}, v{t+1}")
            if i < 4:
                a(f"buffer_store_dwordx4 {vr(z,4)}, v{vE}, s[{sUO}:{sUO+3}], s{sT} offen offset:{256*tt} sc1")
            else:
                a(f"buffer_store_dwordx2 {vr(z,2)}, v{vEs}, s[{sUO}:{sUO+3}], s{sZs} offen offset:{256*tt} sc1")
    a("s_waitcnt vmcnt(10)")
    a(f"s_branch {N}_Cc")
    a.label(f"{N}_Bh")
    common()
    vA, vZ = 2, 3
    a(f"""v_lshrrev_b32 v4, 3, v1
    v_and_b32 v5, 7, v1
    v_xor_b32 v5, v5, v4
    v_lshlrev_b32 v5, 4, v5
    v_lshl_add_u32 v{vA}, v4, 12, v5
    v_lshlrev_b32 v{vZ}, 4, v1
    s_lshl_b32 s{sA}, s{sTb}, 19
    s_lshl_b32 s{sT+1}, s{sTb}, 11
    s_add_u32 s{sZ1m}, s{sZm}, s{sT+1}
    s_add_u32 s{sZ1s}, s{sZs}, s{sT+1}
    s_add_u32 s{sZm}, s{sZm}, {288*OCT}
    s_add_u32 s{sZs}, s{sZs}, {288*OCT}
    s_mov_b32 s{sSlot}, s{sLo}
    s_waitcnt lgkmcnt(0)""")
    a.srd_off(sWP, 10, 11, CFG.ws_base + WP_OFF, WP_SZ)
    a.srd_off(sZQ, 10, 11, CFG.ws_base + ZQ_OFF, ZQ_SZ)
    a.srd_off(sUO, 10, 11, CFG.ws_base + UO_OFF, UO_SZ)
    a.srd_off(sCP, 10, 11, CFG.ws_base + CP_OFF, CP_SZ)
    a.srd(sBS, 4, 5, 4096)
    a(f"s_cmp_ge_u32 s{sWave}, 6")
    a(f"s_cbranch_scc1 {N}_xt")
    at = Attn(a, sZQ, sUO, 70)
    at.kv_prep(4, 8)
    at.base(sT+2, sT+3)
    a(f"""s_lshr_b32 s{sT+1}, s2, 4
    s_max_u32 s{sT+3}, s{sT+1}, 1
    s_sub_u32 s{sT+3}, s{sT+3}, 1
    s_lshl_b32 s{sT+1}, s{sT+1}, 8
    s_lshl_b32 s{sT+3}, s{sT+3}, 8
    s_add_u32 s{sT+1}, s{sT+1}, {FL_Q}
    s_add_u32 s{sT+3}, s{sT+3}, {FL_Q}
    v_lshlrev_b32 v8, 2, v1
    s_mov_b32 s{sI}, 0""")
    def dnbar():
        l = a.newlabel(N + "_dn")
        a(f"s_cmp_lg_u32 s{sI}, 0")
        a(f"s_cbranch_scc1 {l}")
        a("s_barrier")
        a(f"s_mov_b32 s{sI}, 1")
        a.label(l)
    poll_flags(a, f"{N}_pq", sFL, [(8, f"s{sT+1}", 1), (8, f"s{sT+3}", 1)], 12, sT, dnbar)
    pf.stamp()
    dnbar()
    a(f"s_cmp_eq_u32 s{sWave}, 5")
    a(f"s_cbranch_scc1 {N}_st1")
    at.stage((0, 1), 4, vZ, sT+2, sHi, sT)
    a(f"s_branch {N}_st2")
    a.label(f"{N}_st1")
    at.stage((2, 3), 4, vZ, sT+2, sHi, sT)
    a.label(f"{N}_st2")
    a(f"""s_lshl_b32 s{sT+2}, s{sTb}, 7
    v_and_b32 v10, 31, v1
    v_lshlrev_b32 v10, 2, v10
    s_lshl_b32 s{sT+3}, s{sWave}, 2
    s_add_u32 s{sT+3}, s{sT+3}, {TAG_LDS-8-16}
    v_mov_b32 v8, s{sT+3}
    v_mov_b32 v9, s{sTag}
    s_waitcnt vmcnt(0)
    ds_write_b32 v8, v9""")
    pf.stamp()
    for q in range(4): a(f"s_mov_b32 s{sT+4+q}, {FL_Q+1024*q}")
    poll_flags(a, f"{N}_pz", sFL, [(vZ, f"s{sT+4+q}", 4) for q in range(4)] + [(10, f"s{sT+2}", 1)], 16, sT)
    pf.stamp()
    items = [("A", i) for i in range(16)] + [("Z", j) for j in range(18)]
    sN4 = sT + 5
    a(f"s_mov_b32 s{sN4}, 0")
    def issue(p):
        out = []
        for kind, i in items[17*p:17*p+17]:
            if kind == "A":
                out.append(f"s_add_u32 m0, s{sSlot}, {i*1024}")
                out.append(f"s_add_u32 s{sT}, s{sA}, {i*8*4096}")
                out.append(f"buffer_load_dwordx4 v{vA}, s[{sWP}:{sWP+3}], s{sT} offen lds")
            else:
                out.append(f"s_add_u32 m0, s{sSlot}, {zb(i)}")
                out.append(f"s_add_u32 s{sT}, s{sZm if i < 16 else sZs}, {(i if i < 16 else i-16)*OCT}")
                out.append(f"buffer_load_dwordx4 v{vZ}, s[{sZQ}:{sZQ+3}], s{sT} offen lds")
        out += [f"s_add_u32 s{sA}, s{sA}, 128", f"s_add_u32 s{sZm}, s{sZm}, 1024", f"s_add_u32 s{sZs}, s{sZs}, 1024",
                f"s_add_u32 s{sN4}, s{sN4}, 1", f"s_bitcmp1_b32 s{sN4}, 1", f"s_cselect_b32 s{sSlot}, s{sHi}, s{sLo}",
                f"s_bitcmp1_b32 s{sN4}, 0", f"s_cselect_b32 s{sT}, {STG}, 0", f"s_add_u32 s{sSlot}, s{sSlot}, s{sT}"]
        return out
    for p in range(2):
        if p == 0:
            a(f"s_cmp_eq_u32 s{sWave}, 5")
            a(f"s_cbranch_scc1 {N}_prod1")
        else:
            a.label(f"{N}_prod1")
        for st in range(2):
            for l in issue(p): a(l)
        a("s_waitcnt vmcnt(17)")
        a("s_barrier")
        a(f"s_mov_b32 s{sI}, 30")
        a.label(f"{N}_Bploop{p}")
        for l in issue(p): a(l)
        a("s_waitcnt vmcnt(17)")
        a("s_barrier")
        a(f"s_sub_u32 s{sI}, s{sI}, 1")
        a(f"s_cmp_lg_u32 s{sI}, 0")
        a(f"s_cbranch_scc1 {N}_Bploop{p}")
        a(f"s_branch {N}_Bpend")
    a.label(f"{N}_Bpend")
    a("s_waitcnt vmcnt(0)")
    a("s_barrier")
    a(f"s_branch {N}_Cp")
    a.label(f"{N}_xt")
    a(f"s_cmp_eq_u32 s{sWave}, 7")
    a(f"s_cbranch_scc1 {N}_xtrb")
    nb = [0]
    a(f"""s_mul_i32 s{sT+1}, s2, {81*128}
    s_add_u32 s68, s6, s{sT+1}
    s_addc_u32 s69, s7, 0
    s_mul_i32 s{sT+1}, s2, {21*128}
    s_min_u32 s{sT+1}, s{sT+1}, {(5184-21)*128}
    s_add_u32 s70, s8, s{sT+1}
    s_addc_u32 s71, s9, 0""")
    spf = [f"s_load_dword s{74+i%6}, s[70:71], {64*i}" for i in range(42)] + [f"s_load_dword s{74+i%6}, s[68:69], {64*i}" for i in range(162)]
    def bar(n=1, pfn=CFG.kb_spf):
        for _ in range(n):
            a("s_barrier"); nb[0] += 1
            if nb[0] >= 3:
                for _ in range(pfn):
                    if spf: a(spf.pop(0))
    a(f"""s_lshl_b32 s{sT+2}, s2, 2
    s_add_u32 s{sT+2}, s{sT+2}, {FL_E}
    v_mov_b32 v4, 0
    v_mov_b32 v5, s{sTag}""")
    bar(2)
    a("s_waitcnt vmcnt(0)")
    bar(3)
    a(f"buffer_store_dword v5, v4, s[{sFL}:{sFL+3}], s{sT+2} offen sc1")
    X0 = CFG.kb_x0
    bar(X0 - 1 - nb[0])
    a(f"s_mov_b32 s{sT+1}, {FL_E}")
    poll_flags(a, f"{N}_pe", sFL, [(vZ, f"s{sT+1}", 4)], 8, sT)
    a(f"""s_lshl_b32 s{sT+2}, s{sTb}, 9
    s_lshr_b32 s{sT+1}, s{sT+2}, 1
    v_lshlrev_b32 v4, 3, v1
    v_lshlrev_b32 v5, 2, v1""")
    bar()
    a(f"buffer_load_dword v8, v5, s[{sBS}:{sBS+3}], s{sT+1} offen")
    for i in range(32):
        a(f"buffer_load_dwordx2 {vr(16+2*i,2)}, v4, s[{sCP}:{sCP+3}], s{sT+2} offen")
        a(f"s_add_u32 s{sT+2}, s{sT+2}, 8192")
        if i % 4 == 3: bar()
    for j in range(NE, 18):
        a(f"s_mov_b32 m0, {FREE+(j-NE)*2048}")
        a(f"s_add_u32 s{sT}, s{sZ1m if j < 16 else sZ1s}, {(j if j < 16 else j-16)*OCT}")
        for h in range(2):
            a(f"buffer_load_dwordx4 v{vZ}, s[{sZQ}:{sZQ+3}], s{sT} offen offset:{1024*h} lds")
        bar()
    a("s_waitcnt vmcnt(12)")
    for i in range(1, 32):
        a(f"v_add_f32 v16, v16, v{16+2*i}")
        a(f"v_add_f32 v17, v17, v{17+2*i}")
        if i % 10 == 0: bar()
    a(f"""s_mov_b32 s{sT}, {f32(1.0/KSC)}
    v_and_b32 v9, 0xffff0000, v8
    v_lshlrev_b32 v8, 16, v8
    v_fma_f32 v8, v8, s{sT}, -v16
    v_fma_f32 v9, v9, s{sT}, -v17
    v_add_u32 v4, {BC}, v4
    ds_write_b64 v4, v[8:9]
    s_waitcnt vmcnt(0) lgkmcnt(0)""")
    assert nb[0] <= 33 and not spf, (nb[0], len(spf))
    bar()
    pf.flush(sWave)
    a("s_endpgm")
    a.label(f"{N}_xtrb")
    def barloop(n, nm):
        a(f"s_mov_b32 s{sI}, {n}")
        a.label(nm)
        a("s_barrier")
        a(f"s_sub_u32 s{sI}, s{sI}, 1")
        a(f"s_cmp_lg_u32 s{sI}, 0")
        a(f"s_cbranch_scc1 {nm}")
    a("s_barrier")
    a("s_barrier")
    a("s_waitcnt vmcnt(0)")
    barloop(X0 - 2, f"{N}_xb_loop")
    a(f"v_add_u32 v4, s{sLo}, v{vZ}")
    for j in range(NE):
        a(f"s_add_u32 s{sT}, s{sZ1m}, {j*OCT}")
        for h in range(2):
            a(f"buffer_load_dwordx4 {vr(160+8*j+4*h,4)}, v{vZ}, s[{sZQ}:{sZQ+3}], s{sT} offen offset:{1024*h}")
        a("s_barrier")
    o_prefetch(a, sWave, sUO, sTt, sT, bar_every=3, vUC=12, vt=13)
    assert X0 + NE + 6 <= 31
    for _ in range(31 - X0 - NE - 6): a("s_barrier")
    a(f"s_mov_b32 s{sFu}, 0x7f000000")
    a("s_waitcnt vmcnt(0)")
    for j in range(NE):
        for h in range(2): a(f"ds_write_b128 v4, {vr(160+8*j+4*h,4)} offset:{2048*j+1024*h}")
        if j in (4, 9): a("s_barrier")
    a(f"v_mov_b32 v{vUC}, v12")
    a("s_waitcnt lgkmcnt(0)")
    a("s_barrier")
    a(f"s_branch {N}_Cc")

def phase_C(a, N):
    pf = a.pf
    NS = 9
    sUO, sWO, sWA, sX, sOUT, sDM, sFL = 20, 16, 12, 24, 28, 32, 64
    sWave, sRb, sCg, sT = 36, 37, 38, 40
    sI, sU, sW, sHi = 50, 51, 52, 53
    sTt, sFu = 98, 99
    def common():
        a("s_load_dwordx2 s[4:5], s[0:1], 0")
        a("s_load_dwordx2 s[6:7], s[0:1], 16")
        a("s_load_dwordx4 s[8:11], s[0:1], 56")
        c_tile(a, sRb, sCg, sT)
        a(f"s_sub_u32 s{sHi}, {UB}, s{sLo}")
    a.label(f"{N}_Cc")
    pf.stamp()
    a(f"""v_mov_b32 v13, 0
    s_cmp_lt_u32 s{sTt}, 128
    s_cbranch_scc1 {N}_Ctile
    s_waitcnt vmcnt(0)
    buffer_store_dword v14, v13, s[{sFL}:{sFL+3}], s{sFu} offen sc1""")
    pf.flush(sWave)
    a("s_endpgm")
    a.label(f"{N}_Ctile")
    common()
    ACC, SV, XR, T, UF, FA = 16, 32, 48, 56, UFC, 160
    FAS = [160, 192, 72 - 0]
    vL, vU, vA, vXo, vA8 = 1, vUC, 4, 3, 8
    FAB = [160, 192, 224]
    vU2 = 12
    a(f"""v_mov_b32 v{vU2}, v{vUC}
    v_lshrrev_b32 v{T}, 4, v{vL}
    v_and_b32 v{T+1}, 15, v{vL}
    s_lshl_b32 s{sT}, s{sTt}, 4
    v_add_u32 v{T+2}, s{sT}, v{T+1}
    s_mov_b32 s{sU}, 0
    v_mul_u32_u24 v{vXo}, 1152, v{T+2}
    v_and_b32 v{T+3}, 1, v{T}
    v_lshl_add_u32 v{vXo}, v{T+3}, 5, v{vXo}
    v_lshrrev_b32 v{T+3}, 1, v{T}
    v_lshl_add_u32 v{vXo}, v{T+3}, 4, v{vXo}
    s_lshl_b32 s{sT+1}, s{sCg}, 7
    v_bfe_u32 v{T+3}, v{vL}, 2, 2
    v_lshl_add_u32 v{T+4}, v{T}, 3, v{T+3}
    v_lshlrev_b32 v{T+4}, 7, v{T+4}
    v_and_b32 v{T+5}, 3, v{vL}
    v_lshl_add_u32 v{T+4}, v{T+5}, 3, v{T+4}
    v_lshrrev_b32 v{T+3}, 1, v{T+3}
    v_and_b32 v{T+5}, 1, v{T}
    v_lshl_add_u32 v{T+3}, v{T+5}, 1, v{T+3}
    v_lshl_add_u32 v{vA}, v{T+3}, 5, v{T+4}
    v_add_u32 v{vA}, s{sHi}, v{vA}
    v_xor_b32 v{vA+1}, 32, v{vA}
    v_xor_b32 v{vA+2}, 64, v{vA}
    v_xor_b32 v{vA+3}, 96, v{vA}""")
    for j in range(4): a(f"v_add_u32 v{vA8+j}, {8*8192}, v{vA+j}")
    for i in range(16): a(f"v_mov_b32 v{ACC+i}, 0")
    def uload(slot):
        return [f"buffer_load_dwordx4 {vr(UF+4*slot,4)}, v{vU2}, s[{sUO}:{sUO+3}], s{sU} offen",
                f"s_add_u32 s{sU}, s{sU}, {4*OCT}"]
    def reads(st):
        st %= 9
        return [f"ds_read_b64_tr_b16 {vr(FAB[st%3]+16*h+4*j+2*rd,2)}, v{(vA8 if st == 8 else vA)+j} offset:{(st%8)*8192+4096*h+512*rd}"
                for h in range(2) for j in range(4) for rd in range(2)]
    a(f"s_mov_b32 s{sI}, 4")
    pf.stamp()
    a("s_barrier")
    pf.stamp()
    for l in reads(0): a(l)
    a("s_waitcnt lgkmcnt(0)")
    a.srd(sX, 4, 5, 2048 * 1152)
    a.srd(sOUT, 10, 11, 2048 * 1152)
    def cpass(first):
        acc = SV if first else ACC
        for st in range(9):
            a("s_barrier")
            rd = reads(st + 1)
            k = 0
            for h in range(2):
                ks = 2*st + h
                if not first: a(f"s_waitcnt vmcnt({15})")
                for j in range(4):
                    c = "0" if (first and ks == 0) else vr(acc+4*j, 4)
                    a(f"v_mfma_f32_16x16x32_bf16 {vr(acc+4*j,4)}, {vr(FAB[st%3]+16*h+4*j,4)}, {vr(UF+4*ks,4)}, {c}")
                    for _ in range(3):
                        if k < 16: a(rd[k]); k += 1
                if not first:
                    for l in uload((ks + 16) % 18): a(l)
                elif st >= 7:
                    for q in range(4):
                        for l in uload(4*(ks - 14) + q): a(l)
            if first and st == CFG.kc_fu:
                a("s_waitcnt vmcnt(0)")
                a(f"buffer_store_dword v14, v13, s[{sFL}:{sFL+3}], s{sFu} offen sc1")
                for p in range(2):
                    a(f"buffer_load_dwordx4 {vr(XR+4*p,4)}, v{vXo}, s[{sX}:{sX+3}], s{sT+1} offen offset:{64*p}")
            a("s_waitcnt lgkmcnt(0)")
        pf.stamp()
    cpass(True)
    a.lines.append(".p2align 6")
    a.label(f"{N}_Cloop")
    cpass(False)
    a(f"s_sub_u32 s{sI}, s{sI}, 1")
    a(f"s_cmp_lg_u32 s{sI}, 0")
    a(f"s_cbranch_scc1 {N}_Cloop")
    a(f"s_mov_b32 s{sT}, {f32(-math.log2(math.e))}")
    a("s_nop 4")
    for i in range(16): a(f"v_mul_f32 v{T+i}, s{sT}, v{ACC+i}")
    for i in range(16): a(f"v_exp_f32 v{T+i}, v{T+i}")
    for i in range(16): a(f"v_mul_f32 v{SV+i}, v{SV+i}, v{ACC+i}")
    for i in range(16): a(f"v_add_f32 v{T+i}, 1.0, v{T+i}")
    for i in range(16): a(f"v_rcp_f32 v{T+i}, v{T+i}")
    for i in range(16): a(f"v_mul_f32 v{SV+i}, v{SV+i}, v{T+i}")
    for p in range(2):
        x = XR + 4*p
        a(f"v_permlane16_swap_b32 v{x}, v{x+2}")
        a(f"v_permlane16_swap_b32 v{x+1}, v{x+3}")
        for r in range(4):
            s = SV + 8*p + 2*r
            a(f"v_lshlrev_b32 v{T}, 16, v{x+r}")
            a(f"v_and_b32 v{T+1}, 0xffff0000, v{x+r}")
            a(f"v_add_f32 v{T}, v{T}, v{s}")
            a(f"v_add_f32 v{T+1}, v{T+1}, v{s+1}")
            a(f"v_cvt_pk_bf16_f32 v{x+r}, v{T}, v{T+1}")
        a(f"v_permlane16_swap_b32 v{x}, v{x+2}")
        a(f"v_permlane16_swap_b32 v{x+1}, v{x+3}")
        a(f"buffer_store_dwordx4 {vr(x,4)}, v{vXo}, s[{sOUT}:{sOUT+3}], s{sT+1} offen offset:{64*p}")
    if CFG.prof:
        pf.stamp(); a("s_waitcnt vmcnt(0)")
    pf.flush(sWave)
    a("s_endpgm")
    a.label(f"{N}_Cp")
    a(f"s_cmp_ge_u32 s2, 234")
    a(f"s_cbranch_scc1 {N}_end")
    common()
    vD = 2
    a(f"""v_lshrrev_b32 v8, 3, v1
    v_and_b32 v9, 7, v1
    v_lshrrev_b32 v10, 3, v1
    v_and_b32 v10, 2, v10
    v_xor_b32 v9, v9, v10
    v_lshlrev_b32 v9, 4, v9
    v_mul_u32_u24 v{vD}, 1152, v8
    v_add_u32 v{vD}, v{vD}, v9
    v_xor_b32 v{vD+1}, 64, v{vD}
    v_add_u32 v{vD+1}, {8*1152-1024}, v{vD+1}
    v_add_u32 v{vD+2}, {2*(8*1152-1024)}, v{vD}
    v_add_u32 v{vD+3}, {2*(8*1152-1024)}, v{vD+1}
    s_sub_u32 s{sT}, s{sWave}, 4
    s_mul_i32 s{sW}, s{sT}, {32*1152}
    s_lshl_b32 s{sT+1}, s{sCg}, 7
    s_add_u32 s{sW}, s{sW}, s{sT+1}
    s_mov_b32 s{sT+3}, s{sW}
    s_lshl_b32 s{sT+2}, s{sT}, 12
    s_add_u32 s{sT+2}, s{sT+2}, s{sHi}
    s_add_u32 s{sT+5}, s{sHi}, {NS*8192}
    s_mov_b32 s{sT+4}, s{sT+2}
    s_mul_i32 s{sT+6}, s{sRb}, 80
    s_add_u32 s{sT+7}, s{sT+6}, 79
    s_min_u32 s{sT+7}, s{sT+7}, 2047
    s_lshr_b32 s{sT+8}, s{sT+6}, 7
    s_lshl_b32 s{sT+8}, s{sT+8}, 8
    s_add_u32 s{sT+8}, s{sT+8}, {FL_U}
    s_lshr_b32 s{sT+9}, s{sT+7}, 7
    s_lshl_b32 s{sT+9}, s{sT+9}, 8
    s_add_u32 s{sT+9}, s{sT+9}, {FL_U}
    v_lshlrev_b32 v8, 2, v1
    s_waitcnt lgkmcnt(0)""")
    a.srd(sDM, 6, 7, 576 * 1152)
    def issue():
        out = [f"s_mov_b32 m0, s{sT+4}",
               f"s_add_u32 s{sT+4}, s{sT+4}, 8192"]
        out += [f"buffer_load_dwordx4 v{vD+j}, s[{sDM}:{sDM+3}], s{sW} offen offset:{1024*j} lds" for j in range(4)]
        out += [f"s_add_u32 s{sW}, s{sW}, {64*1152}",
                f"s_cmp_ge_u32 s{sT+4}, s{sT+5}",
                f"s_cselect_b32 s{sT+4}, s{sT+2}, s{sT+4}"]
        return out
    a("s_barrier")
    for st in range(9):
        if st == 4: a("s_barrier")
        for l in issue(): a(l)
    a.srd(sDM, 8, 9, 2304 * 1152)
    a(f"s_mov_b32 s{sW}, s{sT+3}")
    a("s_waitcnt vmcnt(32)")
    pf.stamp()
    a("s_barrier")
    def ploop(n, name):
        a(f"s_mov_b32 s{sI}, {n}")
        a.label(name)
        a("s_waitcnt vmcnt(28)")
        a("s_barrier")
        for l in issue(): a(l)
        a(f"s_sub_u32 s{sI}, s{sI}, 1")
        a(f"s_cmp_lg_u32 s{sI}, 0")
        a(f"s_cbranch_scc1 {name}")
    ploop(7, f"{N}_Cploop")
    poll_flags(a, f"{N}_pu", sFL, [(8, f"s{sT+8}", 1), (8, f"s{sT+9}", 1)], 16, sI)
    pf.stamp()
    ploop(29, f"{N}_Cploop2")
    for n in range(8):
        a(f"s_waitcnt vmcnt({28-4*n})")
        a("s_barrier")
    pf.flush(sWave)
    a.label(f"{N}_end")
    a("s_endpgm")

def gen_M():
    a = Asm(); N = NAME + "_kernel"
    phase_A(a, N); phase_B(a, N); phase_C(a, N)
    return a, kd(N, 256, 256, 102), (N, 256, 512, 163840)

HEADER = open("cdna_kernels/" + NAME + ".s.ref").read().split("; Override")[0]

def build(verbose=False):
    a, k, (n, grid, block, lds) = gen_M()
    txt = HEADER + f"; @launch grid=({grid},1,1) block=({block},1,1) lds={lds}\n"
    lines, ins = fix_hazards(a.lines, verbose, "M")
    print(f"{len(lines)} lines, {ins} hazard nops", file=sys.stderr)
    body = "\n".join(("    " + l if not (l.endswith(":") or l.startswith(".")) else l) for l in lines) + "\n"
    txt += '.amdgcn_target "amdgcn-amd-amdhsa--gfx950"\n.text\n.p2align 8\ncode_begin:\n' + body + "code_end:\n" + k
    return txt

if __name__ == "__main__":
    for arg in sys.argv[2:]:
        if "=" in arg:
            k_, v_ = arg.split("=", 1)
            setattr(CFG, k_, type(getattr(CFG, k_))(v_) if not isinstance(getattr(CFG, k_), bool) else int(v_))
    open(sys.argv[1], "w").write(build(verbose="-v" in sys.argv))
```

```python
import math, struct, sys
from asmlib import *

NAME = "recurrent_scan__sliding_local_dilated__mixer_gmlp__prompt"
def f32(x): return "0x%08x" % struct.unpack("<I", struct.pack("<f", x))[0]

C0 = -2.0 * math.sqrt(2.0 / math.pi) * math.log2(math.e)
C1 = C0 * 0.044715
KSC = -((-C1) ** (1.0 / 3.0))
DELTA = C0 / KSC
EPS = 1e-5
OCT = 32768

class Cfg:
    ws_base = 0
    st_aux_a = "sc1"
    st_aux_n = ""
    st_aux_b = "sc1"
    prof = False
    ka_xbar = -1
    ka_prio = 0
    ka_xpf = 0
    ka_head = 24
    ka_xfirst = 5
    ka_rot = 0
    align = 0
    hprof = 0
    bound = 20000
    ka_try = 2
    kb_xb = 28
    kc_fu = 2
    ka_pst = 13
    ka_spf = 0
    ka_d5 = 15
    ka_fwe = 1
    ka_pf0 = 2
    ka_early = 0
    kb_x0 = 12
    ka_st_aux = ""
    sleep = 8
    kc_test = 0
    ka_rbl = 2
    ka_nostore = 0
    ka_nodma = 0
    ka_wsp_slot = 0
    ka_x_aux = ""
    ka_pf_aux = ""
    ka_wsp_aux = "nt"
    ka_npre = 26
    codepf = 1
    ka_l2pf = 2
    attn_seg = 36
    ka_stpos = 5
    kb_nomfma = 0
    kb_pf = 1
    kb_eit = 8
    kb_wg = 3
    kb_spf = 10
    kb_abar = 0
    kb_nodma = 0
    kb_noattn = 0
CFG = Cfg()

ZQ_OFF, ZQ_SZ = 0, 792 * OCT
UO_OFF, UO_SZ = 26 << 20, 360 * OCT
WP_OFF, WP_SZ = 38 << 20, 2048 * 4096
ST_OFF, ST_SZ = 47 << 20, 16 * 16 * 2048
CP_OFF, CP_SZ = 48 << 20, 2048 * 128

def kd(name, vgpr, accum, sgpr=96):
    return f""".section .rodata,"a"
.p2align 6
.amdhsa_kernel {name}
  .amdhsa_next_free_vgpr {vgpr}
  .amdhsa_next_free_sgpr {sgpr}
  .amdhsa_accum_offset {accum}
  .amdhsa_group_segment_fixed_size 0
  .amdhsa_kernarg_size 88
  .amdhsa_user_sgpr_count 2
  .amdhsa_user_sgpr_kernarg_segment_ptr 1
  .amdhsa_system_sgpr_workgroup_id_x 1
.end_amdhsa_kernel
"""

PROF_OFF = 64 << 20
class Prof:
    def __init__(self, a, vreg, kidx):
        self.a, self.v, self.k = a, vreg, kidx
    def init(self):
        if not CFG.prof: return
        a = self.a
        a(f"v_mov_b32 v{self.v}, 0")
        a("s_mov_b64 s[84:85], 2")
        a("s_memrealtime s[82:83]")
        a("s_waitcnt lgkmcnt(0)")
        a(f"v_writelane_b32 v{self.v}, s82, 0")
        self.stamp()
    def stamp(self):
        if not CFG.prof: return
        a = self.a
        a("s_memtime s[80:81]")
        a("s_waitcnt lgkmcnt(0)")
        a("s_mov_b64 s[92:93], exec")
        a("s_mov_b64 exec, s[84:85]")
        a(f"v_mov_b32 v{self.v}, s80")
        a("s_mov_b64 exec, s[92:93]")
        a("s_lshl_b64 s[84:85], s[84:85], 1")
    def flush(self, sWave):
        if not CFG.prof: return
        a = self.a
        self.stamp()
        a("s_memrealtime s[82:83]")
        a("s_load_dwordx2 s[86:87], s[0:1], 80")
        a("s_waitcnt lgkmcnt(0)")
        a(f"v_writelane_b32 v{self.v}, s82, 63")
        a.srd_off(88, 86, 87, PROF_OFF + self.k * (1 << 20), 1 << 20)
        a("s_lshl_b32 s85, s2, 3")
        a(f"s_add_u32 s85, s85, s{sWave}")
        a("s_lshl_b32 s85, s85, 8")
        a("s_mov_b64 exec, -1")
        a("v_mbcnt_lo_u32_b32 v0, -1, 0")
        a("v_mbcnt_hi_u32_b32 v0, -1, v0")
        a("v_lshlrev_b32 v0, 2, v0")
        a(f"buffer_store_dword v{self.v}, v0, s[88:91], s85 offen")

def code_prefetch(a, sS, vT, vL, name):
    if not CFG.codepf: return
    h = a.newlabel(name + "_pc")
    a(f"s_getpc_b64 s[{sS}:{sS+1}]")
    a.label(h)
    a(f"s_sub_u32 s{sS}, s{sS}, {h}-code_begin")
    a(f"s_subb_u32 s{sS+1}, s{sS+1}, 0")
    a(f"s_mov_b32 s{sS+2}, code_end-code_begin")
    a(f"s_mov_b32 s{sS+3}, 0x00020000")
    a(f"s_lshr_b32 s{sS+4}, s2, 3")
    a(f"s_lshl_b32 s{sS+4}, s{sS+4}, 13")
    a(f"v_lshlrev_b32 v{vT}, 7, v{vL}")
    a(f"buffer_load_dword v{vT+1}, v{vT}, s[{sS}:{sS+3}], s{sS+4} offen")

def prologue(a, name, ngrid):
    a.lines.append(".text")
    a.lines.append(f".globl {name}")
    a.lines.append(".p2align 8")
    a.lines.append(f".type {name},@function")
    a.label(name)
    a(f"s_cmp_ge_u32 s2, {ngrid}")
    a(f"s_cbranch_scc1 {name}_end")
    if CFG.hprof:
        k = {"ka": 0, "kb": 1, "kc": 2}[name[:2]]
        a(f"""s_cmp_lg_u32 s2, 0
        s_cbranch_scc1 {name}_hp
        s_memrealtime s[82:83]
        s_load_dwordx2 s[86:87], s[0:1], 80
        s_waitcnt lgkmcnt(0)""")
        a.srd_off(88, 86, 87, PROF_OFF, 4096)
        a(f"""v_mov_b32 v1, s82
        v_mov_b32 v2, 0
        buffer_store_dword v1, v2, s[88:91], 0 offen offset:{4*k} sc1
        s_waitcnt vmcnt(0)""")
        a.label(f"{name}_hp")

def hprof_end(a, name):
    if not CFG.hprof: return
    a(f"""s_cmp_lg_u32 s2, 0
    s_cbranch_scc1 {name}_hpe
    s_waitcnt vmcnt(0)
    s_memrealtime s[82:83]
    s_load_dwordx4 s[84:87], s[0:1], 72
    s_waitcnt lgkmcnt(0)""")
    a.srd_off(88, 86, 87, PROF_OFF, 4096)
    a.srd(92, 84, 85, 256)
    a(f"""v_mov_b32 v2, 0
    buffer_load_dwordx3 v[4:6], v2, s[88:91], 0 offen sc1
    v_mov_b32 v7, s82
    s_waitcnt vmcnt(0)
    v_sub_u32 v7, v7, v6
    v_sub_u32 v6, v6, v5
    v_sub_u32 v5, v5, v4
    buffer_store_dwordx4 v[4:7], v2, s[92:95], 0 offen""")
    a.label(f"{name}_hpe")

def cost(l):
    c = 0
    for x in l.split("\n"):
        c += 8 if x.startswith(TRANS) else 4
    return c

def spread(slots, fillers, base=None):
    base = [sum(cost(x) + (4 if x.startswith("v_mfma") else 0) for x in sl) for sl in slots]
    tot = sum(base) + sum(cost(f) for f in fillers)
    out = []; k = 0; cum = 0
    for i, sl in enumerate(slots):
        out += sl; cum += base[i]
        tgt = tot * (i + 1) / len(slots)
        while k < len(fillers) and cum + cost(fillers[k]) / 2 <= tgt:
            out.append(fillers[k]); cum += cost(fillers[k]); k += 1
    return out + fillers[k:]


FL_OFF, FL_SZ = 49 << 20, 20480
FL_W, FL_E, FL_U, FL_Q, FL_TAG = 0, 4096, 8192, 12288, 16384
sTag, sLo = 100, 101
TAG_LDS = 163832
Z1B = 204

def poll_flags(a, name, sFL, items, vt, sT, on_fail=None):
    a(f"s_mov_b32 s{sT}, {CFG.bound}")
    a.label(name)
    regs = []
    r = vt
    for vo, so, w in items:
        sfx = {1: "dword", 4: "dwordx4"}[w]
        a(f"buffer_load_{sfx} {vr(r,w)}, v{vo}, s[{sFL}:{sFL+3}], {so} offen sc1")
        regs += list(range(r, r + w)); r += w
    a("s_waitcnt vmcnt(0)")
    for x in regs: a(f"v_xor_b32 v{x}, s{sTag}, v{x}")
    for x in regs[1:]: a(f"v_or_b32 v{regs[0]}, v{regs[0]}, v{x}")
    a(f"""v_cmp_ne_u32 vcc, 0, v{regs[0]}
    s_sub_u32 s{sT}, s{sT}, 1
    s_cmp_eq_u32 s{sT}, 0
    s_cbranch_scc1 {name}_ok
    s_cmp_eq_u64 vcc, 0
    s_cbranch_scc1 {name}_ok""")
    if on_fail: on_fail()
    a(f"""s_sleep {CFG.sleep}
    s_branch {name}""")
    a.label(f"{name}_ok")

def phase_A(a, N):
    X, FR, T = 112, 24, 16
    AC = [80, 48]
    W = AC[1]
    vL, vA0, vA1, vPn, vO8, vSt, vStO = 1, 2, 3, 4, 5, 6, 7
    vNm, vSc, vSum = 8, 9, 10
    S = W
    vX0, vX1, vX2, vX3, vSR, vSRs, vXw = W+8, W+9, W+10, W+11, W+12, W+16, W+20
    sX, sWI, sWQ, sZQ, sST, sDM = 12, 16, 20, 24, 28, 32
    sFQ, sFq = 28, 32
    sWave, sRb, sCg = 36, 37, 38
    sNz2, sNg, sN, sZ2s, sZ1m, sQm = 39, 40, 41, 42, 43, 44
    sU, sV, sUn, sMz2, sP8, sOb = 45, 46, 47, 48, 49, 50
    sMq = 52
    sDma, sDstep, sDvs = 54, 55, 56
    sDp, sDc, sDn = 57, 58, 59
    sBufN, sPw, sRot, sRw = 61, 62, 60, 51
    sHu, sHx = 3, 33
    sDl, sOlo, sOhi, sOnes = 63, 64, 65, 66
    sXr = 68
    sT0, sT1, sT2, sSt, sP8i, sP8q, sXb, sXs = 72, 73, 74, 76, 77, 78, 75, 79
    UB = 73728; STG = 2 * UB
    RBL = CFG.ka_rbl
    prologue(a, N, 256)
    pf = Prof(a, 15, 0); pf.init(); a.pf = pf
    a("s_load_dwordx4 s[4:7], s[0:1], 0")
    a("s_load_dwordx4 s[8:11], s[0:1], 32")
    a("s_load_dwordx4 s[96:99], s[0:1], 72")
    a(f"v_and_b32 v{vL}, 63, v0")
    a(f"v_lshrrev_b32 v{T}, 6, v0")
    a(f"v_readfirstlane_b32 s{sWave}, v{T}")
    a(f"""s_and_b32 s{sT0}, s2, 7
    s_lshr_b32 s{sT1}, s2, 3
    s_and_b32 s{sRb}, s{sT0}, {(16>>RBL)-1}
    s_lshl_b32 s{sRb}, s{sRb}, {RBL}
    s_and_b32 s{sT2}, s{sT1}, {(1<<RBL)-1}
    s_add_u32 s{sRb}, s{sRb}, s{sT2}
    s_lshr_b32 s{sCg}, s{sT0}, {4-RBL}
    s_lshl_b32 s{sCg}, s{sCg}, {5-RBL}
    s_lshr_b32 s{sT2}, s{sT1}, {RBL}
    s_add_u32 s{sCg}, s{sCg}, s{sT2}
    s_and_b32 s{sRot}, s{sT1}, {(1<<RBL)-1}
    s_lshl_b32 s{sRot}, s{sRot}, 1
    s_add_u32 s{sRot}, s{sRot}, s{sT2}
    s_mul_i32 s{sRot}, s{sRot}, {CFG.ka_rot}
    s_sub_u32 s{sT2}, s{sRot}, 9
    s_min_u32 s{sRot}, s{sRot}, s{sT2}
    s_sub_u32 s{sT2}, s{sRot}, 9
    s_min_u32 s{sRot}, s{sRot}, s{sT2}
    v_lshrrev_b32 v{T}, 3, v{vL}
    v_and_b32 v{T+1}, 7, v{vL}""")
    unit_lists = f"""s_min_u32 s{sT0}, s{sCg}, 4
    s_lshl_b32 s{sZ2s}, s{sCg}, 1
    s_add_u32 s{sZ2s}, s{sZ2s}, s{sT0}
    s_add_u32 s{sZ2s}, s{sZ2s}, 36
    s_lshl_b32 s{sT0}, s{sCg}, 1
    s_sub_u32 s{sT0}, s{sT0}, 6
    s_sub_u32 s{sQm}, s{sCg}, 3
    s_cmp_lt_u32 s{sCg}, 4
    s_cselect_b32 s{sNz2}, 3, 2
    s_cselect_b32 s{sQm}, s{sQm}, s{sT0}
    s_mul_i32 s{sHu}, s{sCg}, 288
    s_and_b32 s{sT0}, s{sCg}, 1
    s_lshl_b32 s{sT1}, s{sT0}, 5
    s_add_u32 s{sZ1m}, s{sHu}, s{sT1}
    s_sub_u32 s{sZ1m}, s{sZ1m}, 512
    s_xor_b32 s{sT0}, s{sT0}, 1
    s_lshl_b32 s{sT0}, s{sT0}, 8
    s_add_u32 s{sHu}, s{sHu}, s{sT0}
    s_mov_b32 s{sLo}, 73728"""
    a(f"s_cmp_ge_u32 s{sWave}, 4")
    a(f"s_cbranch_scc1 {N}_prod")
    a(f"""v_lshrrev_b32 v{T+2}, 4, v{vL}
    v_xor_b32 v{T+2}, v{T+2}, v{T+1}
    v_lshlrev_b32 v{T+2}, 4, v{T+2}
    v_mul_u32_u24 v{vX0}, 1152, v{T}
    v_add_u32 v{vX0}, v{vX0}, v{T+2}
    v_xor_b32 v{vX1}, 64, v{vX0}
    s_lshl_b32 s{sT0}, s{sRb}, 7
    s_lshl_b32 s{sT1}, s{sWave}, 5
    s_add_u32 s{sT0}, s{sT0}, s{sT1}
    s_mul_i32 s{sXr}, s{sT0}, 1152
    s_add_u32 s{sXr+1}, s{sXr}, 8192
    s_add_u32 s{sXr+2}, s{sXr}, 16384
    s_add_u32 s{sXr+3}, s{sXr}, 24576
    s_lshl_b32 s{sXb}, s{sWave}, 14
    s_add_u32 s{sXb}, s{sXb}, {UB}
    s_lshl_b32 s{sXs}, s{sWave}, 12
    s_add_u32 s{sXs}, s{sXs}, {STG}""")
    a("s_waitcnt lgkmcnt(0)")
    if CFG.prof > 2: pf.stamp()
    a.srd(sX, 4, 5, 2048 * 1152)
    a(f"s_lshl_b32 s{sRw}, s{sRot}, 7")
    def xload(j):
        a(f"v_add_u32 v{vX2}, s{sRw}, v{vX0}")
        a(f"v_add_u32 v{vX3}, s{sRw}, v{vX1}")
        if j < 4: a(f"s_add_u32 m0, s{sXb}, {j*4096}")
        elif j == 4: a(f"s_mov_b32 m0, s{sXs}")
        a(f"s_add_u32 s{sRw}, s{sRw}, 128")
        for rg in range(4):
            if j < 5:
                a(f"buffer_load_dwordx4 v{vX3 if rg&1 else vX2}, s[{sX}:{sX+3}], s{sXr+rg} offen offset:{rg*1024} {CFG.ka_x_aux} lds")
            else:
                a(f"buffer_load_dwordx4 {vr(X+16*j+4*rg,4)}, v{vX3 if rg&1 else vX2}, s[{sX}:{sX+3}], s{sXr+rg} offen offset:{rg*1024} {CFG.ka_x_aux}")
        a(f"s_cmp_eq_u32 s{sRw}, 1152")
        a(f"s_cselect_b32 s{sRw}, 0, s{sRw}")
    for j in range(CFG.ka_xfirst): xload(j)
    a.srd_off(sZQ, 98, 99, CFG.ws_base + ZQ_OFF, ZQ_SZ)
    a.srd_off(sFQ, 98, 99, CFG.ws_base + FL_OFF + FL_Q, 4096)
    a(f"""s_lshl_b32 s{sFq}, s{sRb}, 8
    s_lshl_b32 s{sT0}, s{sCg}, 4
    s_add_u32 s{sFq}, s{sFq}, s{sT0}
    s_lshl_b32 s{sT0}, s{sWave}, 2
    s_add_u32 s{sFq}, s{sFq}, s{sT0}
    v_mov_b32 v12, {TAG_LDS}
    v_mov_b32 v13, 0""")
    a(unit_lists)
    a(f"""s_mov_b32 s{sDl}, {f32(DELTA)}
    s_mov_b32 s{sOlo}, 0x00003f80
    s_mov_b32 s{sOhi}, 0x3f800000
    s_mov_b32 s{sOnes}, 0x3f803f80""")
    def cparams():
        return [
            f"s_add_u32 s{sT0}, s{sZ2s}, s{sV}",
            f"s_add_u32 s{sT2}, s{sQm}, s{sV}",
            f"s_min_u32 s{sT2}, s{sT2}, 26",
            f"s_add_u32 s{sT2}, s{sT2}, 72",
            f"s_cmp_lt_u32 s{sV}, s{sNz2}\n"
            f"s_cselect_b32 s{sUn}, s{sT0}, s{sT2}\n"
            f"s_cselect_b32 s{sMz2}, -1, 0",
            f"s_lshl_b32 s{sDn}, s{sUn}, 18",
        ]
    def traddr(buf):
        return [f"v_and_b32 v{T+7}, s{sMz2}, v{vO8}",
                f"v_xor_b32 v{vA0}, v{T+7}, v{vPn}"] + \
               ([f"v_add_u32 v{vA0}, {UB}, v{vA0}"] if buf else []) + [f"v_xor_b32 v{vA1}, 64, v{vA0}"]
    a(f"s_mov_b32 s{sV}, 0")
    for l in cparams(): a(l)
    a(f"""v_lshrrev_b32 v{T+2}, 5, v{vL}
    v_lshlrev_b32 v{T+2}, 3, v{T+2}
    v_bfe_u32 v{T+3}, v{vL}, 2, 2
    v_add_u32 v{T+2}, v{T+2}, v{T+3}
    v_lshlrev_b32 v{vPn}, 7, v{T+2}
    v_lshrrev_b32 v{T+3}, 1, v{T+3}
    v_lshl_add_u32 v{vPn}, v{T+3}, 6, v{vPn}
    v_bfe_u32 v{T+3}, v{vL}, 4, 1
    v_lshl_add_u32 v{vPn}, v{T+3}, 5, v{vPn}
    v_and_b32 v{T+3}, 1, v{vL}
    v_lshl_add_u32 v{vPn}, v{T+3}, 4, v{vPn}
    v_lshlrev_b32 v{vO8}, 3, v{T+3}
    v_bfe_u32 v{T+3}, v{vL}, 1, 1
    v_lshl_add_u32 v{vPn}, v{T+3}, 3, v{vPn}""")
    for l in traddr(0): a(l)
    a(f"""v_and_b32 v{T+2}, 31, v{vL}
    v_bfe_u32 v{T+3}, v{vL}, 1, 3
    v_lshrrev_b32 v{T+4}, 5, v{vL}
    v_xor_b32 v{T+3}, v{T+3}, v{T+4}
    v_lshlrev_b32 v{T+3}, 4, v{T+3}
    v_lshl_add_u32 v{T+3}, v{T+2}, 7, v{T+3}
    v_add_u32 v{vSR}, s{sXb}, v{T+3}
    v_xor_b32 v{vSR+1}, 32, v{vSR}
    v_xor_b32 v{vSR+2}, 64, v{vSR}
    v_xor_b32 v{vSR+3}, 96, v{vSR}
    v_add_u32 v{vSRs}, s{sXs}, v{T+3}
    v_xor_b32 v{vSRs+1}, 32, v{vSRs}
    v_xor_b32 v{vSRs+2}, 64, v{vSRs}
    v_xor_b32 v{vSRs+3}, 96, v{vSRs}
    v_lshlrev_b32 v{vStO}, 3, v{vL}
    v_add_u32 v{vStO}, s{sXs}, v{vStO}
    s_lshl_b32 s{sT0}, s{sRb}, 7
    s_lshl_b32 s{sT1}, s{sWave}, 5
    s_add_u32 s{sT0}, s{sT0}, s{sT1}
    v_add_u32 v{vSt}, s{sT0}, v{T+2}
    v_lshlrev_b32 v{vSt}, 4, v{vSt}
    v_lshl_add_u32 v{vSt}, v{T+4}, 15, v{vSt}
    v_mov_b32 v{vSum}, 0
    v_mov_b32 v{vSum+1}, 0""")
    pf.stamp()
    def xstats(j):
        for r in range(16):
            x = X + 16*j + r
            q = S + 2*(r % 2)
            first = (j == 0 and r < 2)
            a(f"v_dot2_f32_bf16 v{q}, v{x}, s{sOnes}, {'0' if first else 'v%d' % q}")
            a(f"v_dot2_f32_bf16 v{q+1}, v{x}, v{x}, {'0' if first else 'v%d' % (q+1)}")
    a(f"v_lshlrev_b32 v{vXw}, 4, v{vL}")
    a(f"v_add_u32 v{vXw}, s{sXb}, v{vXw}")
    issued = CFG.ka_xfirst
    for j in range(9):
        a(f"s_waitcnt vmcnt({4*(issued-1-j)})")
        if CFG.prof > 2: pf.stamp()
        if j >= 5:
            for rg in range(4):
                a(f"ds_write_b128 v{vXw}, {vr(X+16*j+4*rg,4)} offset:{(j%5)*4096+rg*1024}")
        for i in range(4):
            if j % 5 < 4: a(f"ds_read_b128 {vr(X+16*j+4*i,4)}, v{vSR+i} offset:{(j%5)*4096}")
            else: a(f"ds_read_b128 {vr(X+16*j+4*i,4)}, v{vSRs+i}")
        if issued < 9:
            xload(issued); issued += 1
        if j > 0:
            a(f"s_waitcnt lgkmcnt({8 if j >= 5 else 4})")
            a.lines.append(".p2align 3")
            xstats(j-1)
    a("s_waitcnt lgkmcnt(0)")
    a.lines.append(".p2align 3")
    xstats(8)
    pf.stamp()
    a(f"""v_add_f32 v{S}, v{S}, v{S+2}
    v_add_f32 v{S+1}, v{S+1}, v{S+3}
    s_mov_b32 s{sT0}, {f32(-1.0/576)}
    s_mov_b32 s{sT1}, {f32(1.0/576)}
    s_mov_b32 s{sT2}, {f32(KSC)}
    v_mov_b32 v{S+2}, v{S}
    v_mov_b32 v{S+3}, v{S+1}
    v_permlane32_swap_b32 v{S}, v{S+2}
    v_permlane32_swap_b32 v{S+1}, v{S+3}
    v_add_f32 v{S}, v{S}, v{S+2}
    v_add_f32 v{S+1}, v{S+1}, v{S+3}
    v_mul_f32 v{vNm}, s{sT0}, v{S}
    v_mul_f32 v{S+1}, s{sT1}, v{S+1}
    v_fma_f32 v{S+1}, -v{vNm}, v{vNm}, v{S+1}
    v_max_f32 v{S+1}, 0, v{S+1}
    v_add_f32 v{S+1}, {f32(EPS)}, v{S+1}
    v_rsq_f32 v{S+1}, v{S+1}
    s_mov_b32 s{sU}, 0
    s_mov_b32 s{sDc}, s{sDn}
    s_mov_b32 s{sDp}, s{sDn}
    v_mul_f32 v{vSc}, s{sT2}, v{S+1}""")
    CT = [W, W+2, W+4, W+6]
    def center(kk):
        o = []
        for r in range(4):
            x = X + 4*kk + r
            o.append(f"v_dot2_f32_bf16 v{CT[r]}, v{x}, s{sOlo}, v{vNm}")
            o.append(f"v_dot2_f32_bf16 v{CT[r]+1}, v{x}, s{sOhi}, v{vNm}")
        for r in range(4):
            o.append(f"v_cvt_pk_bf16_f32 v{X+4*kk+r}, v{CT[r]}, v{CT[r]+1}")
        return o
    def center_plain(kk):
        o = []
        for r in range(4):
            x = X + 4*kk + r
            o += [f"v_lshlrev_b32 v{CT[r]}, 16, v{x}", f"v_and_b32 v{CT[r]+1}, 0xffff0000, v{x}",
                  f"v_add_f32 v{CT[r]}, v{vNm}, v{CT[r]}", f"v_add_f32 v{CT[r]+1}, v{vNm}, v{CT[r]+1}",
                  f"v_cvt_pk_bf16_f32 v{x}, v{CT[r]}, v{CT[r]+1}"]
        return o
    NPRE = CFG.ka_npre
    a.lines.append(".p2align 3")
    for kk in range(NPRE):
        for l in center(kk): a(l)
    pf.stamp()
    a("s_barrier")
    pf.stamp()

    def reads(kk, t):
        st = kk % 3
        off = (kk % 18) * 2048
        return [f"ds_read_b64_tr_b16 {vr(FR+8*st+4*t+2*h,2)}, v{vA1 if t else vA0} offset:{off+512*h}" for h in range(2)]
    def reads_s(kk):
        return [f"ds_read_b64_tr_b16 {vr(FR+8*(kk%3)+2*h,2)}, v{vA0} offset:{kk*512+128*h}" for h in range(2)]
    def mfma(par, kk, t):
        st = kk % 3; acc = AC[par] + 16*t
        c = "0" if kk == 0 else vr(acc, 16)
        return f"v_mfma_f32_32x32x16_bf16 {vr(acc,16)}, {vr(FR+8*st+4*t,4)}, {vr(X+4*kk,4)}, {c}"
    def stores(E, m):
        if CFG.ka_nostore: return []
        return [f"s_add_u32 s{sSt}, s{sDp}, {2*m*OCT}",
                f"buffer_store_dwordx4 {vr(E+8*m,4)}, v{vSt}, s[{sZQ}:{sZQ+3}], s{sSt} offen {CFG.st_aux_a}"]
    def epi(kind, E, ne_=32, D=None):
        out = []
        order = list(range(ne_)) if D is None else list(range(16, 32)) + list(range(16))
        dst = (lambda p: E+(p//8)*8+(p%8)//2) if D is None else D
        if kind == "P":
            for e in range(32):
                out.append(f"v_mul_f32 v{E+e}, v{vSc}, v{E+e}")
                if e % 2 == 1 and e >= 3:
                    p = e - 3; out.append(f"v_cvt_pk_bf16_f32 v{E+(p//8)*8+(p%8)//2}, v{E+p}, v{E+p+1}")
            out.append(f"v_cvt_pk_bf16_f32 v{E+27}, v{E+30}, v{E+31}")
            return out
        def st(k, pos):
            w = E + order[pos]; t = T + pos % 6
            return [f"v_mul_f32 v{w}, v{vSc}, v{w}", f"v_fma_f32 v{t}, v{w}, v{w}, s{sDl}", f"v_mul_f32 v{t}, v{t}, v{w}",
                    f"v_exp_f32 v{t}, v{t}", f"v_add_f32 v{t}, 1.0, v{t}", f"v_rcp_f32 v{t}, v{t}", f"v_mul_f32 v{w}, v{t}, v{w}"][k]
        for i in range(ne_ + 7):
            for k in (6, 3, 0, 4, 1, 5, 2):
                e = i - k
                if 0 <= e < ne_: out.append(st(k, e))
            e = i - 7
            if 0 <= e < ne_ and e % 2 == 1:
                p = order[e - 1]; out.append(f"v_cvt_pk_bf16_f32 v{dst(p)}, v{E+p}, v{E+p+1}")
        return out
    def stats(E):
        out = []
        for m in range(4):
            for i in range(4):
                b = E + 8*m
                out.append(f"v_dot2_f32_bf16 v{vSum}, v{b+i}, s{sOnes}, v{vSum}")
                out.append(f"v_dot2_f32_bf16 v{vSum+1}, v{b+i}, v{b+i}, v{vSum+1}")
        return out
    DA = lambda p: AC[0] + 16 + ((p - 16) // 2 if p >= 16 else 8 + p // 2)
    def body(kind, par):
        E = AC[1 - par]
        if kind == "F":
            for l in reads(0, 0) + reads(0, 1) + reads(1, 0) + reads(1, 1): a(l)
        a.label(f"{N}_{kind}{par}")
        slots = []
        for kk in range(0, 36):
            lw = 4
            if kind == "S": lw = 2 if kk < 35 else 0
            if kind == "H" and kk == 35: lw = 2
            s0 = [f"s_waitcnt lgkmcnt({lw})", mfma(par, kk, 0)]
            s1 = [mfma(par, kk, 1)] if kind != "S" else []
            if kk == 0: s0 += [f"s_add_u32 s{sV}, s{sU}, 1"]
            if kk == 1 and kind != "F": s0 += ["s_barrier"]
            if kk == 33 and kind == "P" and par == 0:
                s0 += ["s_waitcnt vmcnt(0)", f"buffer_store_dword v14, v13, s[{sFQ}:{sFQ+3}], s{sFq} offen sc1"]
            if kk == 20 and kind == "P" and par == 0: s1 += ["ds_read_b32 v14, v12"]
            if kk == 34: s0 += ["s_barrier"]
            if kk + 2 == 18 and kind != "S":
                s0 += [f"v_add_u32 v{vA0}, {18*2048}, v{vA0}", f"v_add_u32 v{vA1}, {18*2048}, v{vA1}"]
            if kind == "S": s0 += reads_s(kk + 2) if kk < 34 else []
            elif kind == "H" and kk >= 34: s0 += reads_s(kk - 34)
            else: s0 += reads((kk+2) % 36, 0)
            if kind != "S" and (kind != "H" or kk < 34): s1 += reads((kk+2) % 36, 1)
            st0 = CFG.ka_pst if kind == "P" else 36 - CFG.ka_stpos
            if kind in "GP" and st0 <= kk < st0 + 4:
                s0 += stores(E, kk - st0)
            if kk == 33 and kind == "H":
                s1 += [f"v_lshrrev_b32 v{vA0}, 7, v{vPn}", f"v_and_b32 v{vA1}, 24, v{vPn}", f"v_lshl_add_u32 v{vA0}, v{vA0}, 5, v{vA1}"]
            elif kk == 33 and kind != "S": s1 += traddr(1 - par)
            slots += [s0, s1]
        if kind == "S":
            sl = [slots[2*i] + slots[2*i+1] for i in range(36)]
            out = sl[0] + spread(sl[1:], epi("H", E))
        elif kind == "F":
            ne = 2 * NPRE - 2
            out = spread(slots[:ne], sum([center_plain(kk) for kk in range(NPRE, 36)], []))
            out += interleave(slots[ne:-6], cparams()) + sum(slots[-6:], [])
        elif kind == "N":
            out = slots[0] + interleave(slots[1:20], cparams()) + sum(slots[20:], [])
        elif kind == "H":
            out = slots[0] + slots[1] + spread(slots[2:], epi(kind, E, D=DA))
        else:
            ep = epi(kind, E)
            ne = len(slots) - 2*CFG.ka_stpos + 4 if kind != "P" else 24
            out = slots[0] + spread(slots[1:ne], cparams() + ep) + sum(slots[ne:], [])
        for l in out: a(l)
        if kind == "G":
            a.lines.append(".p2align 3")
            for l in stats(E): a(l)
            a(f"ds_write_b64 v{vStO}, {vr(vSum,2)}")
        a(f"s_mov_b32 s{sDp}, s{sDc}")
        a(f"s_mov_b32 s{sDc}, s{sDn}")
        a(f"s_mov_b32 s{sU}, s{sV}")
        pf.stamp()
    body("F", 0); body("G", 1); body("G", 0)
    a(f"s_cmp_lt_u32 s{sNz2}, 3")
    a(f"s_cbranch_scc1 {N}_P1")
    E2 = AC[0]
    a("s_nop 7")
    for l in epi("G", E2):
        a(l)
        for m in range(4):
            if l.startswith(f"v_cvt_pk_bf16_f32 v{E2+8*m+3},"):
                for x in stores(E2, m): a(x)
    a.lines.append(".p2align 3")
    for l in stats(E2): a(l)
    a(f"ds_write_b64 v{vStO}, {vr(vSum,2)}")
    a("s_waitcnt lgkmcnt(0)")
    pf.stamp()
    body("N", 1)
    a(f"s_branch {N}_P0")
    body("P", 1); body("P", 0); body("H", 1); body("S", 0)
    src = {0: AC[0] + 24, 1: AC[0] + 28, 2: AC[0] + 16, 3: AC[0] + 20, 4: AC[1], 5: AC[1] + 8, 6: AC[1] + 16, 7: AC[1] + 24}
    for m in range(8):
        for r in range(4): a(f"v_mov_b32 v{Z1B+4*m+r}, v{src[m]+r}")
    tl = epi("H", AC[0], 8)
    sw = []
    for i in range(4):
        for r in range(4): sw.append(f"v_permlane32_swap_b32 v{Z1B+8*i+r}, v{Z1B+8*i+4+r}")
        for r in range(4): sw.append(f"v_permlane16_swap_b32 v{Z1B+8*i+r}, v{Z1B+8*i+4+r}")
    for l in interleave([[x] for x in tl], sw): a(l)
    for r in range(4): a(f"v_mov_b32 v{Z1B+32+r}, v{AC[0]+r}")
    for r in range(2): a(f"v_permlane16_swap_b32 v{Z1B+32+r}, v{Z1B+34+r}")
    pf.stamp()
    a(f"s_branch {N}_At")
    a.label(f"{N}_prod")
    vD, vDin, vDq, vPi, vPq, vWo, vT, vZero, vTg = 2, 6, 7, 8, 9, 10, 20, 11, 24
    sIsT, sSo2 = 63, 50
    a(f"v_mov_b32 v{vZero}, 0")
    WU, P, MH, ML, C, TT = 128, 32, 96, 100, 104, 112
    sWS, sWP, sCP, sDB, sFL = 12, 24, 4, 8, 64
    sPc = sXr + 2
    if CFG.ka_prio: a(f"s_setprio {CFG.ka_prio}")
    a(f"s_cmp_lg_u32 s{sWave}, 4")
    a(f"s_cbranch_scc1 {N}_nopf1")
    code_prefetch(a, 88, vT, vL, N)
    a.label(f"{N}_nopf1")
    if CFG.ka_xpf:
        a(f"""s_sub_u32 s{sT1}, s{sWave}, 4
        s_lshl_b32 s{sT1}, s{sT1}, 5
        s_lshl_b32 s{sT0}, s{sRb}, 7
        s_add_u32 s{sT0}, s{sT0}, s{sT1}
        s_mul_i32 s{sT0}, s{sT0}, 1152
        v_lshrrev_b32 v{vT}, 2, v{vL}
        v_mul_u32_u24 v{vT}, 1152, v{vT}
        v_and_b32 v{vT+1}, 3, v{vL}
        v_lshl_add_u32 v{vT}, v{vT+1}, 7, v{vT}
        s_add_u32 s{sT1}, s{sT0}, {16*1152}
        s_waitcnt lgkmcnt(0)""")
        a.srd(sX, 4, 5, 2048 * 1152)
        a(f"buffer_load_dword v{vT+1}, v{vT}, s[{sX}:{sX+3}], s{sT0} offen offset:640")
        a(f"buffer_load_dword v{vT+2}, v{vT}, s[{sX}:{sX+3}], s{sT1} offen offset:640")
    a(unit_lists)
    a(f"""s_sub_u32 s{sPw}, s{sWave}, 4
    s_and_b32 s{sPc}, s{sPw}, 1
    s_mov_b32 s{sP8i}, {8*9216}
    s_mov_b32 s{sP8q}, {8*3456}
    v_lshrrev_b32 v{T+2}, 2, v{vL}
    v_and_b32 v{T+2}, 4, v{T+2}
    v_xor_b32 v{T+2}, v{T+2}, v{T+1}
    v_lshlrev_b32 v{T+2}, 4, v{T+2}
    v_mul_u32_u24 v{vDin}, 9216, v{T}
    v_add_u32 v{vDin}, v{vDin}, v{T+2}
    v_mul_u32_u24 v{vDq}, 3456, v{T}
    v_add_u32 v{vDq}, v{vDq}, v{T+2}
    v_lshlrev_b32 v{vWo}, 12, v{T}
    v_lshl_add_u32 v{vWo}, v{T+1}, 4, v{vWo}
    s_and_b32 s{sT0}, s{sRb}, {(1<<RBL)-1}
    s_mul_i32 s{sT0}, s{sT0}, {576>>RBL}
    s_mul_i32 s{sT1}, s{sPw}, {144>>RBL}
    s_add_u32 s{sT0}, s{sT0}, s{sT1}
    v_min_u32 v{T+2}, {(144>>RBL)-1}, v{vL}
    v_add_u32 v{T+2}, s{sT0}, v{T+2}
    v_mul_u32_u24 v{vPi}, 9216, v{T+2}
    v_mul_u32_u24 v{vPq}, 3456, v{T+2}""")
    a("s_waitcnt lgkmcnt(0)")
    a.srd(sWI, 8, 9, 576 * 9216)
    a.srd(sWQ, 6, 7, 576 * 3456)
    a(f"s_mov_b32 s{sDM+3}, 0x00020000")
    a.srd(sWS, 10, 11, 2048 * 4096)
    a.srd_off(sWP, 98, 99, CFG.ws_base + WP_OFF, WP_SZ)
    a.srd_off(sST, 98, 99, CFG.ws_base + ST_OFF, ST_SZ)
    a.srd_off(sCP, 98, 99, CFG.ws_base + CP_OFF, CP_SZ)
    a.srd(sDB, 96, 97, 256)
    a.srd_off(sFL, 98, 99, CFG.ws_base + FL_OFF, FL_SZ)
    a(f"""s_lshl_b32 s{sIsT}, s2, 3
    s_or_b32 s{sIsT}, s{sIsT}, s{sPw}
    v_mov_b32 v{vTg}, {FL_TAG}
    s_cmp_lg_u32 s{sIsT}, 0
    s_cbranch_scc1 {N}_notag
    buffer_load_dword v{vTg+1}, v{vTg}, s[{sFL}:{sFL+3}], 0 offen sc1""")
    a.label(f"{N}_notag")
    def pparams():
        a(f"""s_add_u32 s{sT0}, s{sZ2s}, s{sV}
        s_lshl_b32 s{sT0}, s{sT0}, 7
        s_lshl_b32 s{sT1}, s{sV}, 7
        s_add_u32 s{sT1}, s{sT1}, s{sZ1m}
        s_add_u32 s{sT2}, s{sQm}, s{sV}
        s_min_u32 s{sT2}, s{sT2}, 26
        s_lshl_b32 s{sT2}, s{sT2}, 7
        s_cmp_lt_u32 s{sV}, s{sNz2}
        s_cselect_b32 s{sUn}, s{sT0}, s{sT1}
        s_cmp_eq_u32 s{sV}, 6
        s_cselect_b32 s{sUn}, s{sHu}, s{sUn}
        s_sub_u32 s{sT0}, s{sV}, s{sNz2}
        s_sub_u32 s{sT1}, 4, s{sNz2}
        s_cmp_ge_u32 s{sT0}, s{sT1}
        s_cselect_b32 s{sUn}, s{sUn}, s{sT2}
        s_cselect_b64 s[{sMq}:{sMq+1}], 0, -1
        s_cselect_b64 s[{sDM}:{sDM+1}], s[{sWI}:{sWI+1}], s[{sWQ}:{sWQ+1}]
        s_cselect_b32 s{sDM+2}, s{sWI+2}, s{sWQ+2}
        s_cselect_b32 s{sP8}, s{sP8i}, s{sP8q}
        s_cmp_lt_u32 s{sV}, 7
        s_cselect_b32 s{sUn}, s{sUn}, 0x7f000000""")
    def issue(nw=4):
        pparams()
        a(f"""v_cndmask_b32 v{vD}, v{vDin}, v{vDq}, s[{sMq}:{sMq+1}]
        s_sub_u32 s{sDvs}, s{sP8}, 1024
        s_lshl_b32 s{sDstep}, s{sP8}, 1
        s_mul_i32 s{sDma}, s{sDstep}, s{sPw}
        s_add_u32 s{sDma}, s{sDma}, s{sUn}
        s_mul_i32 s{sDstep}, s{sDstep}, {nw}
        v_add_u32 v{vD+1}, s{sDvs}, v{vD}
        s_lshl_b32 s{sT0}, s{sPw}, 11
        s_add_u32 m0, s{sBufN}, s{sT0}
        s_sub_u32 s{sBufN}, {UB}, s{sBufN}
        s_add_u32 s{sV}, s{sV}, 1""")
        for i in range(36 // nw):
            for j in range(2):
                a(f"buffer_load_dwordx4 v{vD+j}, s[{sDM}:{sDM+3}], s{sDma} offen offset:{1024*j} lds")
            if i < 36 // nw - 1:
                a(f"s_add_u32 m0, m0, {2048*nw}")
                a(f"s_add_u32 s{sDma}, s{sDma}, s{sDstep}")
    a(f"s_mov_b32 s{sV}, 0")
    a(f"s_mov_b32 s{sBufN}, 0")
    if CFG.ka_xbar >= 0: a("s_barrier")
    issue()
    def l2pf(d=CFG.ka_l2pf-1):
        if d: a(f"s_add_u32 s{sV}, s{sV}, {d}")
        pparams()
        if d: a(f"s_sub_u32 s{sV}, s{sV}, {d}")
        a(f"v_cndmask_b32 v{vT+3}, v{vPi}, v{vPq}, s[{sMq}:{sMq+1}]")
        a(f"buffer_load_dword v14, v{vT+3}, s[{sDM}:{sDM+3}], s{sUn} offen {CFG.ka_pf_aux}")
    npf = 1 if CFG.ka_l2pf else 0
    for d in range(CFG.ka_pf0): l2pf(d)
    if CFG.ka_spf:
        a(f"""s_mul_i32 s{sXr}, s{sRb}, 36
        s_mul_i32 s{sT0}, s{sPw}, 9
        s_add_u32 s{sXr}, s{sXr}, s{sT0}""")
        a.label(f"{N}_spf")
        pparams()
        a(f"""s_lshr_b32 s{sT0}, s{sP8}, 3
        s_mul_i32 s{sT1}, s{sT0}, s{sXr}
        s_add_u32 s{sT1}, s{sT1}, s{sUn}
        s_add_u32 s96, s{sDM}, s{sT1}
        s_addc_u32 s97, s{sDM+1}, 0
        s_mov_b32 s{sT1}, 0""")
        for r in range(9):
            a(f"s_load_dword s{[98,94][r%2]}, s[96:97], s{sT1}")
            a(f"s_load_dword s{[99,95][r%2]}, s[96:97], s{sT1} offset:64")
            if r < 8: a(f"s_add_u32 s{sT1}, s{sT1}, s{sT0}")
        a(f"""s_add_u32 s{sV}, s{sV}, 1
        s_cmp_lt_u32 s{sV}, s{sN}
        s_cbranch_scc1 {N}_spf
        s_mov_b32 s{sV}, 1""")
    a(f"""s_lshl_b32 s{sXr}, s{sCg}, 19
    s_lshl_b32 s{sT0}, s{sRb}, 8
    s_add_u32 s{sXr}, s{sXr}, s{sT0}
    s_lshl_b32 s{sT0}, s{sPc}, 7
    s_add_u32 s{sXr}, s{sXr}, s{sT0}
    s_mov_b32 s{sXr+1}, s{sXr}""")
    a(f"s_waitcnt vmcnt({CFG.ka_pf0})")
    for d in range(CFG.ka_pf0, CFG.ka_l2pf): l2pf(d)
    a(f"""s_cmp_lg_u32 s{sIsT}, 0
    s_cbranch_scc1 {N}_notag2
    v_add_u32 v{vTg+1}, 1, v{vTg+1}
    v_max_u32 v{vTg+1}, 1, v{vTg+1}
    buffer_store_dword v{vTg+1}, v{vTg}, s[{sFL}:{sFL+3}], 0 offen sc1""")
    a.label(f"{N}_notag2")
    pf.stamp()
    a("s_barrier")
    def special(v):
        l = a.newlabel(N + "_sp")
        a(f"s_cmp_lg_u32 s{sV}, {v}")
        a(f"s_cbranch_scc1 {l}")
        return l
    a.label(f"{N}_ploop")
    nopub = a.newlabel(N + "_nopub")
    a(f"s_cmp_lg_u32 s{sV}, 4")
    a(f"s_cbranch_scc1 {nopub}")
    a(f"s_cmp_lg_u32 s{sPw}, 0")
    a(f"s_cbranch_scc1 {nopub}")
    a(f"""v_lshrrev_b32 v{vT}, 5, v{vL}
    v_and_b32 v{vT+1}, 31, v{vL}
    v_lshlrev_b32 v{vT}, 12, v{vT}
    v_lshl_add_u32 v{vT}, v{vT+1}, 3, v{vT}
    v_add_u32 v{vT}, {STG}, v{vT}
    ds_read_b64 {vr(P,2)}, v{vT}
    ds_read_b64 {vr(P+8,2)}, v{vT} offset:256
    ds_read_b64 {vr(P+4,2)}, v{vT} offset:8192
    ds_read_b64 {vr(P+10,2)}, v{vT} offset:{8192+256}
    v_lshlrev_b32 v{vT+1}, 4, v{vL}
    s_lshl_b32 s{sT0}, s{sRb}, 4
    s_add_u32 s{sT0}, s{sT0}, s{sCg}
    s_lshl_b32 s{sT0}, s{sT0}, 11
    v_mov_b32 v{P+2}, s{sTag}
    v_mov_b32 v{P+3}, s{sTag}
    v_mov_b32 v{P+6}, s{sTag}
    v_mov_b32 v{P+7}, s{sTag}
    s_waitcnt lgkmcnt(0)
    v_add_f32 v{P}, v{P}, v{P+8}
    v_add_f32 v{P+1}, v{P+1}, v{P+9}
    v_add_f32 v{P+4}, v{P+4}, v{P+10}
    v_add_f32 v{P+5}, v{P+5}, v{P+11}
    buffer_store_dwordx4 {vr(P,4)}, v{vT+1}, s[{sST}:{sST+3}], s{sT0} offen sc1
    buffer_store_dwordx4 {vr(P+4,4)}, v{vT+1}, s[{sST}:{sST+3}], s{sT0} offen offset:1024 sc1""")
    a.label(nopub)
    issue()
    if npf: l2pf()
    l3 = a.newlabel(N + "_l"); l4 = a.newlabel(N + "_l")
    l = special(2)
    a(f"s_cmp_lt_u32 s{sPw}, 2")
    a(f"s_cbranch_scc1 {N}_s0b")
    for i in range(16):
        a(f"buffer_load_dwordx4 {vr(WU+8*i+4,4)}, v{vWo}, s[{sWS}:{sWS+3}], s{sXr+1} offen {CFG.ka_wsp_aux}")
        a(f"s_add_u32 s{sXr+1}, s{sXr+1}, 32768")
    a(f"s_waitcnt vmcnt({16+npf})")
    a(f"s_branch {l3}")
    a.label(f"{N}_s0b")
    a(f"""s_waitcnt vmcnt({npf})
    s_cmp_lg_u32 s{sIsT}, 0
    s_cbranch_scc1 {l3}
    buffer_store_dword v{vTg+1}, v{vZero}, s[{sDB}:{sDB+3}], 0 offen sc1""")
    a(f"s_branch {l3}")
    a.label(l)
    l = special(4)
    a(f"s_mov_b32 s{sT1}, {CFG.bound}")
    a.label(f"{N}_ptag")
    a(f"""buffer_load_dword v{vT+2}, v{vZero}, s[{sDB}:{sDB+3}], 0 offen sc1
    s_waitcnt vmcnt(0)
    v_readfirstlane_b32 s{sTag}, v{vT+2}
    v_mov_b32 v{vT+1}, {TAG_LDS}
    ds_write_b32 v{vT+1}, v{vT+2}
    s_waitcnt lgkmcnt(0)
    s_sub_u32 s{sT1}, s{sT1}, 1
    s_cmp_eq_u32 s{sT1}, 0
    s_cbranch_scc1 {l3}
    s_cmp_lg_u32 s{sTag}, 0
    s_cbranch_scc1 {l3}
    s_sleep 8
    s_branch {N}_ptag""")
    a.label(l)
    a(f"s_cmp_lt_u32 s{sPw}, 2")
    a(f"s_cbranch_scc1 {l4}")
    l = special(5)
    for i in range(16):
        for r in range(4):
            x = WU + 8*i + 4 + r
            a(f"v_lshlrev_b32 v{WU+8*i+2*r}, 16, v{x}")
            a(f"v_and_b32 v{WU+8*i+2*r+1}, 0xffff0000, v{x}")
    sTry = sXr + 3
    a(f"""v_lshlrev_b32 v{vT}, 4, v{vL}
    s_lshl_b32 s{sT0}, s{sRb}, 15
    s_lshl_b32 s{sT1}, s{sPc}, 10
    s_add_u32 s{sSo2}, s{sT0}, s{sT1}
    s_mov_b32 s{sTry}, {CFG.bound}
    s_waitcnt vmcnt({npf})""")
    def full(aux="sc1"):
        a(f"s_mov_b32 s{sT0}, s{sSo2}")
        for i in range(16):
            a(f"buffer_load_dwordx4 {vr(P+4*i,4)}, v{vT}, s[{sST}:{sST+3}], s{sT0} offen offset:{(i%2)*2048} {aux}")
            if i % 2 == 1: a(f"s_add_u32 s{sT0}, s{sT0}, 4096")
    a("s_barrier")
    full(CFG.ka_st_aux)
    a("s_barrier")
    a(f"s_branch {N}_job")
    a.label(l)
    a.label(l4)
    a(f"s_waitcnt vmcnt({npf})")
    a.label(l3)
    a("s_barrier")
    a("s_barrier")
    a(f"s_cmp_lt_u32 s{sV}, 5")
    a(f"s_cbranch_scc1 {N}_ploop")
    issue(2)
    a(f"""v_lshrrev_b32 v{vD}, 1, v{vL}
    v_mul_u32_u24 v{vD}, 9216, v{vD}
    v_and_b32 v{vD+1}, 1, v{vL}
    v_lshl_add_u32 v{vD}, v{vD+1}, 4, v{vD}
    s_mul_i32 s{sDma}, s{sPw}, {32*9216}
    s_add_u32 s{sDma}, s{sDma}, s{sHu}
    s_lshl_b32 s{sT0}, s{sPw}, 10
    s_mov_b32 m0, s{sT0}
    s_waitcnt vmcnt(0)
    s_barrier
    s_barrier""")
    for i in range(9):
        a(f"buffer_load_dwordx4 v{vD}, s[{sWI}:{sWI+3}], s{sDma} offen lds")
        if i < 8:
            a("s_add_u32 m0, m0, 2048")
            a(f"s_add_u32 s{sDma}, s{sDma}, {64*9216}")
    a(f"s_branch {N}_Bh")
    a.label(f"{N}_job")
    pf.stamp()
    sSt8 = sXr + 1
    def d5():
        l = a.newlabel(N + "_d5")
        a(f"""s_cmp_lg_u32 s{sSt8}, 0
        s_cbranch_scc1 {l}
        s_mov_b32 s{sSt8}, 1
        s_barrier
        s_barrier""")
        a.label(l)
    a(f"s_mov_b32 s{sSt8}, 0")
    a(f"s_branch {N}_pst_w")
    a.label(f"{N}_pst")
    d5()
    a("s_sleep 8")
    full()
    a.label(f"{N}_pst_w")
    a("s_waitcnt vmcnt(0)")
    for i in range(16): a(f"v_xor_b32 v{P+4*i+2}, s{sTag}, v{P+4*i+2}")
    for i in range(1, 16): a(f"v_or_b32 v{P+2}, v{P+2}, v{P+4*i+2}")
    a(f"""v_cmp_ne_u32 vcc, 0, v{P+2}
    s_sub_u32 s{sTry}, s{sTry}, 1
    s_cmp_eq_u32 s{sTry}, 0
    s_cbranch_scc1 {N}_pst_ok
    s_cmp_lg_u64 vcc, 0
    s_cbranch_scc1 {N}_pst""")
    a.label(f"{N}_pst_ok")
    pf.stamp()
    a(f"""v_lshlrev_b32 v{vT}, 3, v{vL}
    s_lshl_b32 s{sT1}, s{sPw}, 9
    s_add_u32 s{sT1}, s{sT1}, {STG+4096+2048}
    v_add_u32 v{vT}, s{sT1}, v{vT}
    v_lshlrev_b32 v{vT+1}, 6, v{T+1}
    v_add_u32 v{vT+1}, s{sT1}, v{vT+1}
    s_mov_b32 s{sT0}, {f32(1.0/2304)}
    s_mov_b32 s{sT2}, {f32(1.0/abs(KSC))}""")
    for i in range(1, 16):
        a(f"v_add_f32 v{P}, v{P}, v{P+4*i}")
        a(f"v_add_f32 v{P+1}, v{P+1}, v{P+4*i+1}")
    a(f"""v_mul_f32 v{P}, s{sT0}, v{P}
    v_mul_f32 v{P+1}, s{sT0}, v{P+1}
    v_fma_f32 v{P+1}, -v{P}, v{P}, v{P+1}
    v_max_f32 v{P+1}, 0, v{P+1}
    v_add_f32 v{P+1}, {f32(EPS*KSC*KSC)}, v{P+1}
    v_rsq_f32 v{P+1}, v{P+1}
    v_mul_f32 v{P+1}, s{sT2}, v{P+1}
    ds_write_b64 v{vT}, {vr(P,2)}""")
    for q in range(4):
        a(f"ds_read_b128 {vr(P+4*q,4)}, v{vT+1} offset:{16*q}")
    a("s_waitcnt lgkmcnt(0)")
    for i in range(16):
        for r in range(8): a(f"v_mul_f32 v{WU+8*i+r}, v{P+2*r+1}, v{WU+8*i+r}")
        for r in range(4): a(f"v_cvt_pk_bf16_f32 v{WU+8*i+r}, v{WU+8*i+2*r}, v{WU+8*i+2*r+1}")
        if i < CFG.ka_early:
            a(f"buffer_store_dwordx4 {vr(WU+8*i,4)}, v{vWo}, s[{sWP}:{sWP+3}], s{sXr} offen sc1")
            a(f"s_add_u32 s{sXr}, s{sXr}, 32768")
    d5()
    for i in range(CFG.ka_early, 16):
        a(f"buffer_store_dwordx4 {vr(WU+8*i,4)}, v{vWo}, s[{sWP}:{sWP+3}], s{sXr} offen sc1")
        a(f"s_add_u32 s{sXr}, s{sXr}, 32768")
    pf.stamp()
    a(f"""s_lshl_b32 s{sXr}, s{sCg}, 7
    s_lshl_b32 s{sT1}, s{sRb}, 3
    s_add_u32 s{sXr}, s{sXr}, s{sT1}
    s_lshl_b32 s{sT1}, s{sPc}, 2
    s_add_u32 s{sXr}, s{sXr}, s{sT1}
    v_mov_b32 v{vTg}, s{sTag}""")
    fw = f"""s_waitcnt vmcnt(0)
    buffer_store_dword v{vTg}, v{vZero}, s[{sFL}:{sFL+3}], s{sXr} offen offset:{FL_W} sc1"""
    if CFG.ka_fwe: a(fw)
    a("s_barrier")
    a("s_barrier")
    if not CFG.ka_fwe: a(fw)
    pf.stamp()
    a("s_barrier")
    C2 = 48
    for p in range(4): a(f"v_cvt_pk_bf16_f32 v{MH+p}, v{P+4*p}, v{P+4*p+2}")
    for p in range(4):
        a(f"v_lshlrev_b32 v{TT}, 16, v{MH+p}")
        a(f"v_and_b32 v{TT+1}, 0xffff0000, v{MH+p}")
        a(f"v_sub_f32 v{TT}, v{P+4*p}, v{TT}")
        a(f"v_sub_f32 v{TT+1}, v{P+4*p+2}, v{TT+1}")
        a(f"v_cvt_pk_bf16_f32 v{ML+p}, v{TT}, v{TT+1}")
    a.lines.append(".p2align 3")
    for i in range(0, 16, 2):
        for r in range(4):
            for q in range(2):
                a(f"v_dot2_f32_bf16 v{C2+i+q}, v{WU+8*(i+q)+r}, v{MH+r}, {'0' if r==0 else 'v%d'%(C2+i+q)}")
            for q in range(2):
                a(f"v_dot2_f32_bf16 v{C2+i+q}, v{WU+8*(i+q)+r}, v{ML+r}, v{C2+i+q}")
    for ctrl in ["quad_perm:[1,0,3,2]", "quad_perm:[2,3,0,1]", "row_half_mirror"]:
        for q in range(16):
            a(f"v_add_f32_dpp v{C2+q}, v{C2+q}, v{C2+q} {ctrl} row_mask:0xf bank_mask:0xf")
    for i in range(1, 8):
        a(f"v_cmp_eq_u32 vcc, {i}, v{T+1}")
        a(f"v_cndmask_b32 v{C2}, v{C2}, v{C2+i}, vcc")
        a(f"v_cndmask_b32 v{C2+8}, v{C2+8}, v{C2+8+i}, vcc")
    a(f"""v_lshlrev_b32 v{vT}, 2, v{T}
    v_lshl_add_u32 v{vT}, v{T+1}, 5, v{vT}
    s_lshl_b32 s{sT0}, s{sCg}, 9
    s_lshl_b32 s{sT1}, s{sRb}, 14
    s_add_u32 s{sT0}, s{sT0}, s{sT1}
    s_lshl_b32 s{sT1}, s{sPc}, 13
    s_add_u32 s{sT0}, s{sT0}, s{sT1}
    buffer_store_dword v{C2}, v{vT}, s[{sCP}:{sCP+3}], s{sT0} offen sc1
    buffer_store_dword v{C2+8}, v{vT}, s[{sCP}:{sCP+3}], s{sT0} offen offset:256 sc1
    s_branch {N}_Bh""")

class Attn:
    KV, Q, LG, PH, O = 88, 184, 196, 60, 68
    vQo, vRd = 245, 246
    def __init__(self, a, sZQ, sUO, sT):
        self.a, self.sZQ, self.sUO, self.sT = a, sZQ, sUO, sT
    def base(self, sD, sT):
        self.a(f"""s_and_b32 s{sD}, s2, 7
        s_mul_i32 s{sD}, s{sD}, {9*OCT}
        s_lshr_b32 s{sT}, s2, 3
        s_lshl_b32 s{sT}, s{sT}, 10
        s_add_u32 s{sD}, s{sD}, s{sT}""")
    def kv_prep(self, vDo, TM):
        a = self.a
        for n in range(4):
            a(f"v_add_u32 v{TM}, {64*n}, v1")
            a(f"v_mul_u32_u24 v{TM+1}, 3277, v{TM}")
            a(f"v_lshrrev_b32 v{TM+1}, 18, v{TM+1}")
            a(f"v_mul_u32_u24 v{TM+2}, 80, v{TM+1}")
            a(f"v_sub_u32 v{TM}, v{TM}, v{TM+2}")
            a(f"v_lshlrev_b32 v{TM}, 4, v{TM}")
            a(f"v_lshl_add_u32 v{vDo+n}, v{TM+1}, 15, v{TM}")
            if n: a(f"v_subrev_u32 v{vDo+n}, {1024*n}, v{vDo+n}")
    def stage(self, heads, vDo, vZ, sB, sL, sT):
        a, sZQ = self.a, self.sZQ
        for kv in (0, 2, 1):
            for w in heads:
                if kv < 2:
                    a(f"s_add_u32 m0, s{sL}, {12288*w+4096*kv}")
                    a(f"s_add_u32 s{sT}, s{sB}, {(576+72+72*kv+(9*w>>2))*OCT-256}")
                    for n in range(4):
                        a(f"buffer_load_dwordx4 v{vDo+n}, s[{sZQ}:{sZQ+3}], s{sT} offen offset:{1024*n} lds")
                else:
                    for j in range(3):
                        a(f"s_add_u32 m0, s{sL}, {12288*w+8192+1024*j}")
                        a(f"s_add_u32 s{sT}, s{sB}, {(576+(9*w>>2)+j)*OCT}")
                        a(f"buffer_load_dwordx4 v{vZ}, s[{sZQ}:{sZQ+3}], s{sT} offen lds")
    def setup(self, sWave, sL):
        a, sT = self.a, self.sT
        self.base(sT, sT+1)
        a(f"""s_mul_i32 s{sT+1}, s{sWave}, 9
        s_lshr_b32 s{sT+1}, s{sT+1}, 2
        s_add_u32 s{sT+1}, s{sT+1}, 288
        s_lshl_b32 s{sT+1}, s{sT+1}, 15
        s_add_u32 s{sT}, s{sT}, s{sT+1}
        v_lshlrev_b32 v{self.vQo}, 4, v1
        s_mul_i32 s{sT+5}, s{sWave}, 12288
        s_add_u32 s{sT+5}, s{sT+5}, s{sL}
        s_add_u32 s{sT+5}, s{sT+5}, 32
        v_add_u32 v{self.vRd}, s{sT+5}, v{self.vQo}
        s_lshr_b32 s{sT+4}, s2, 3
        s_lshl_b32 s{sT+4}, s{sT+4}, 6
        v_add_u32 v16, s{sT+4}, v1
        v_mov_b32 v17, 0xff800000""")
        for w in range(1, 8):
            a(f"v_cmp_le_u32 s[{40+2*w}:{41+2*w}], {2*w}, v16")
        sc = (18 ** -0.5) * math.log2(math.e) / (KSC * KSC)
        a(f"s_mov_b32 s{sT+4}, {f32(sc)}")
        a(f"s_mov_b32 s{sT+5}, {f32(KSC)}")
    def reads(self):
        a = self.a
        for j in range(3):
            a(f"ds_read_b128 {vr(self.Q+4*j,4)}, v{self.vRd} offset:{8192-32+1024*j}")
        self.rd(0)
    def rd(self, base):
        for w in range(8):
            for j in range(3):
                self.a(f"ds_read_b128 {vr(self.KV+12*w+4*j,4)}, v{self.vRd} offset:{base+j*1280+224-32*w}")
    def compute(self, do):
        a, sT, KV, Q, LG, PH, O = self.a, self.sT, self.KV, self.Q, self.LG, self.PH, self.O
        for w0 in range(0, 8, 2):
            a(f"s_waitcnt lgkmcnt({min(15, 24-3*(w0+2))})")
            a.lines.append(".p2align 3")
            for i in range(9):
                for w in (w0, w0+1):
                    c = "0" if i == 0 else f"v{LG+w}"
                    a(f"v_dot2_f32_bf16 v{LG+w}, v{Q+do+i}, v{KV+12*w+do+i}, {c}")
        self.rd(4096)
        for w in range(1, 8):
            a(f"v_cndmask_b32 v{LG+w}, v17, v{LG+w}, s[{40+2*w}:{41+2*w}]")
        g = LG; m = 18; s = 19
        a(f"v_max3_f32 v{m}, v{g}, v{g+1}, v{g+2}")
        a(f"v_max3_f32 v{m}, v{m}, v{g+3}, v{g+4}")
        a(f"v_max3_f32 v{m}, v{m}, v{g+5}, v{g+6}")
        a(f"v_max_f32 v{m}, v{m}, v{g+7}")
        for w in range(8): a(f"v_sub_f32 v{g+w}, v{g+w}, v{m}")
        for w in range(8): a(f"v_mul_f32 v{g+w}, s{sT+4}, v{g+w}")
        for w in range(8): a(f"v_exp_f32 v{g+w}, v{g+w}")
        for w in range(8): a(f"v_cvt_pk_bf16_f32 v{g+w}, v{g+w}, 0")
        for w in range(8): a(f"v_lshlrev_b32 v{PH+w}, 16, v{g+w}")
        a(f"v_add_f32 v{s}, v{PH}, v{PH+1}")
        for w in range(2, 8): a(f"v_add_f32 v{s}, v{s}, v{PH+w}")
        a(f"v_mul_f32 v{s}, s{sT+5}, v{s}")
        a(f"v_rcp_f32 v{s}, v{s}")
        for w in range(8):
            if w % 2 == 0:
                a(f"s_waitcnt lgkmcnt({min(15, 24-3*(w+2))})")
                a.lines.append(".p2align 3")
            for d in range(9):
                c0 = "0" if w == 0 else f"v{O+2*d}"
                c1 = "0" if w == 0 else f"v{O+2*d+1}"
                a(f"v_dot2_f32_bf16 v{O+2*d}, v{KV+12*w+do+d}, v{LG+w}, {c0}")
                a(f"v_dot2_f32_bf16 v{O+2*d+1}, v{KV+12*w+do+d}, v{PH+w}, {c1}")
        for d in range(18): a(f"v_mul_f32 v{O+d}, v{s}, v{O+d}")
        for d in range(9): a(f"v_cvt_pk_bf16_f32 v{Q+do+d}, v{O+2*d}, v{O+2*d+1}")
        for j in range(3):
            lo, hi = max(do, 4*j), min(do + 9, 4*j + 4)
            while lo < hi:
                n = 1 if lo % 2 else hi - lo
                sfx = {1: "dword", 2: "dwordx2", 3: "dwordx3", 4: "dwordx4"}[n]
                a(f"buffer_store_{sfx} {vr(Q+lo,n)}, v{self.vQo}, s[{self.sUO}:{self.sUO+3}], s{sT} offen offset:{4*(lo-4*j)} sc1")
                lo += n
            if j < 2: a(f"s_add_u32 s{sT}, s{sT}, {OCT}")

UB = 73728
def c_tile(a, sRb, sCg, sT):
    a(f"""s_and_b32 s{sT}, s2, 7
    s_lshr_b32 s{sT+1}, s2, 3
    s_mul_i32 s{sT+2}, s{sT}, 29
    s_min_u32 s{sT}, s{sT}, 2
    s_add_u32 s{sT+2}, s{sT+2}, s{sT}
    s_add_u32 s{sT+2}, s{sT+2}, s{sT+1}
    s_mul_i32 s{sRb}, s{sT+2}, 7282
    s_lshr_b32 s{sRb}, s{sRb}, 16
    s_mul_i32 s{sT}, s{sRb}, 9
    s_sub_u32 s{sCg}, s{sT+2}, s{sT}""")
UFC, vUC = 88, 247
def o_prefetch(a, sWave, sUO, sTt, sT, bar_every=0, vUC=vUC, vt=248):
    c_tile(a, sT+3, sT+4, sT)
    a(f"""s_min_u32 s{sT+1}, s{sWave}, 4
    s_mul_i32 s{sTt}, s{sT+3}, 5
    s_add_u32 s{sTt}, s{sTt}, s{sT+1}
    s_cmp_ge_u32 s2, 234
    s_cselect_b32 s{sTt}, 128, s{sTt}
    s_min_u32 s{sT}, s{sTt}, 127
    s_lshl_b32 s{sT}, s{sT}, 8
    v_lshrrev_b32 v{vUC}, 4, v1
    v_lshlrev_b32 v{vUC}, 15, v{vUC}
    v_and_b32 v{vt}, 15, v1
    v_lshl_add_u32 v{vUC}, v{vt}, 4, v{vUC}
    v_add_u32 v{vUC}, s{sT}, v{vUC}
    s_mov_b32 s{sT}, {288*OCT}""")
    for k in range(18):
        a(f"buffer_load_dwordx4 {vr(UFC+4*k,4)}, v{vUC}, s[{sUO}:{sUO+3}], s{sT} offen")
        if k < 17: a(f"s_add_u32 s{sT}, s{sT}, {4*OCT}")
        if bar_every and k % bar_every == bar_every - 1: a("s_barrier")

def phase_B(a, N):
    pf = a.pf
    ZO = 16384
    def zb(j): return ZO + j*1024 + (j >> 1)*64 + (64 if j == 17 else 0)
    STG = zb(17) + 1024
    FREE = 2 * UB
    NE = 12
    BC = FREE
    sWP, sZQ, sUO, sCP, sBS, sFL = 12, 16, 20, 24, 28, 64
    sWave, sTb, sFb, sOdd, sT = 36, 37, 38, 39, 40
    sI, sSlot, sHi, sA, sZm, sZs, sZ1m, sZ1s = 56, 57, 58, 59, 60, 61, 62, 63
    sTt, sFu = 98, 99
    RBL = CFG.ka_rbl
    def common():
        a("s_load_dwordx4 s[4:7], s[0:1], 48")
        a("s_load_dwordx2 s[8:9], s[0:1], 16")
        a("s_load_dwordx2 s[10:11], s[0:1], 80")
        a(f"""s_and_b32 s{sT}, s2, 7
        s_lshr_b32 s{sT+1}, s2, 3
        s_and_b32 s{sTb}, s{sT}, {(16>>RBL)-1}
        s_lshl_b32 s{sTb}, s{sTb}, {RBL}
        s_and_b32 s{sT+2}, s{sT+1}, {(1<<RBL)-1}
        s_add_u32 s{sTb}, s{sTb}, s{sT+2}
        s_lshr_b32 s{sFb}, s{sT}, {4-RBL}
        s_lshl_b32 s{sFb}, s{sFb}, {5-RBL}
        s_lshr_b32 s{sT+2}, s{sT+1}, {RBL}
        s_add_u32 s{sFb}, s{sFb}, s{sT+2}
        s_and_b32 s{sOdd}, s{sFb}, 1
        s_mul_i32 s{sZm}, s{sFb}, 18
        s_lshl_b32 s{sT}, s{sOdd}, 1
        s_add_u32 s{sZs}, s{sZm}, 16
        s_lshl_b32 s{sT+1}, s{sOdd}, 4
        s_sub_u32 s{sZs}, s{sZs}, s{sT+1}
        s_add_u32 s{sZm}, s{sZm}, s{sT}
        s_lshl_b32 s{sZm}, s{sZm}, 15
        s_lshl_b32 s{sZs}, s{sZs}, 15
        s_sub_u32 s{sHi}, {UB}, s{sLo}""")
    ACC, FA, FB, Z1, T = 16, 88, 160, Z1B, 176
    vL, vZ0, vZ1, vZs, vB0, vB1, vE, vEs = 1, 2, 3, 4, 5, 6, 7, 8
    vBC = 10
    AD = {vB0: 240, vB1: 241, vZ0: 242, vZ1: 243, vZs: 244}
    a.label(f"{N}_At")
    common()
    a(f"""v_lshrrev_b32 v{T}, 4, v{vL}
    v_and_b32 v{T+1}, 15, v{vL}
    v_bfe_u32 v{T+2}, v{vL}, 2, 2
    v_and_b32 v{T+3}, 3, v{vL}
    v_lshl_add_u32 v{T+4}, v{T}, 3, v{T+2}
    v_lshlrev_b32 v{T+4}, 4, v{T+4}
    v_add_u32 v{T+4}, {ZO}, v{T+4}
    v_lshrrev_b32 v{T+5}, 1, v{T+3}
    v_and_b32 v{T+6}, 1, v{T+3}
    v_lshl_add_u32 v{vZ0}, v{T+3}, 10, v{T+4}
    v_lshl_add_u32 v{vZ0}, v{T+5}, 6, v{vZ0}
    v_lshl_add_u32 v{vZ0}, v{T+6}, 3, v{vZ0}
    v_xor_b32 v{vZ1}, 8, v{vZ0}
    v_mul_u32_u24 v{vZs}, 1088, v{T+5}
    v_add_u32 v{vZs}, v{vZs}, v{T+4}
    v_xor_b32 v{T+6}, v{T+6}, v{T+5}
    v_lshl_add_u32 v{vZs}, v{T+6}, 3, v{vZs}
    s_lshl_b32 s{sT}, s{sWave}, 5
    v_add_u32 v{T+7}, s{sT}, v{T+1}
    v_and_b32 v{T+8}, 7, v{vL}
    v_xor_b32 v{T+8}, v{T+8}, v{T}
    v_lshlrev_b32 v{T+8}, 4, v{T+8}
    v_lshl_add_u32 v{vB0}, v{T+7}, 7, v{T+8}
    v_xor_b32 v{vB1}, 64, v{vB0}""")
    for r, r2 in AD.items(): a(f"v_add_u32 v{r2}, s{sHi}, v{r}")
    for r in AD: a(f"v_add_u32 v{r}, s{sLo}, v{r}")
    a(f"""s_lshl_b32 s{sT+1}, s{sTb}, 7
    v_add_u32 v{T+9}, s{sT+1}, v{T+7}
    v_lshlrev_b32 v{vE}, 4, v{T+9}
    v_lshrrev_b32 v{T+8}, 1, v{T}
    v_lshl_add_u32 v{vEs}, v{T+8}, 15, v{vE}
    v_and_b32 v{T+10}, 1, v{T}
    v_lshl_add_u32 v{vEs}, v{T+10}, 3, v{vEs}
    v_lshl_add_u32 v{vE}, v{T}, 15, v{vE}
    v_lshlrev_b32 v{vBC}, 2, v{T+7}
    v_add_u32 v{vBC}, {BC}, v{vBC}
    s_lshl_b32 s{sFu}, s{sTb}, 8
    s_lshl_b32 s{sT}, s{sFb}, 4
    s_add_u32 s{sFu}, s{sFu}, s{sT}
    s_lshl_b32 s{sT}, s{sWave}, 2
    s_add_u32 s{sFu}, s{sFu}, s{sT}
    s_add_u32 s{sFu}, s{sFu}, {FL_U}""")
    for i in range(4, 44): a(f"v_mov_b32 v{ACC+i}, 0")
    at = Attn(a, sZQ, sUO, 70)
    at.setup(sWave, sHi)
    a(f"s_mov_b32 s{sI}, 8")
    a("s_waitcnt lgkmcnt(0)")
    a.srd_off(sUO, 10, 11, CFG.ws_base + UO_OFF, UO_SZ)
    a.srd_off(sFL, 10, 11, CFG.ws_base + FL_OFF, FL_SZ)
    pf.stamp()
    a(f"""v_mov_b32 v18, {TAG_LDS-8}
    v_readfirstlane_b32 s{sTag}, v14
    s_mov_b32 s{sA}, {CFG.bound*16}""")
    a.label(f"{N}_kvw")
    a(f"""ds_read_b64 v[184:185], v18
    s_waitcnt lgkmcnt(0)
    v_xor_b32 v184, s{sTag}, v184
    v_xor_b32 v185, s{sTag}, v185
    v_or_b32 v184, v184, v185
    s_sub_u32 s{sA}, s{sA}, 1
    v_readfirstlane_b32 s{sSlot}, v184
    s_cmp_eq_u32 s{sA}, 0
    s_cbranch_scc1 {N}_kvd
    s_cmp_lg_u32 s{sSlot}, 0
    s_cbranch_scc1 {N}_kvw""")
    a.label(f"{N}_kvd")
    pf.stamp()
    at.reads()
    for w in range(4):
        if w < 3:
            a(f"s_cmp_lg_u32 s{sWave}, {w}")
            a(f"s_cbranch_scc1 {N}_at{w+1}")
        at.compute(w)
        if w < 3:
            a(f"s_branch {N}_atd")
            a.label(f"{N}_at{w+1}")
    a.label(f"{N}_atd")
    for i in list(range(4)) + list(range(44, 72)): a(f"v_mov_b32 v{ACC+i}, 0")
    def reads(slot, h, st):
        R = (lambda r: AD[r]) if slot >= 2 else (lambda r: r)
        so = (slot & 1) * STG
        out = [f"ds_read_b128 {vr(FB+8*st+4*tt,4)}, v{R(vB1 if h else vB0)} offset:{so+2048*tt}" for tt in range(2)]
        for j in range(9):
            for rd in range(2):
                if j < 8:
                    out.append(f"ds_read_b64_tr_b16 {vr(FA+36*st+4*j+2*rd,2)}, v{R(vZ1 if j&1 else vZ0)} offset:{so+zb(4*(j>>1))-ZO+512*h+64*rd}")
                else:
                    out.append(f"ds_read_b64_tr_b16 {vr(FA+36*st+4*j+2*rd,2)}, v{R(vZs)} offset:{so+zb(16)-ZO+512*h+64*rd}")
        return out
    def phase(st, rds):
        out = []; k = 0
        for j in range(9):
            for tt in range(2):
                if tt == 0 and j % 3 == 0:
                    jj = min(j + 2, 8)
                    out.append(f"s_waitcnt lgkmcnt({min(15, 19-(3+2*jj)+k)})")
                out.append(f"v_mfma_f32_16x16x32_bf16 {vr(ACC+8*j+4*tt,4)}, {vr(FA+36*st+4*j,4)}, {vr(FB+8*st+4*tt,4)}, {vr(ACC+8*j+4*tt,4)}")
                for _ in range(2 if j == 1 else 1):
                    if k < len(rds): out.append(rds[k]); k += 1
        return out
    pf.stamp()
    a("s_barrier")
    pf.stamp()
    for l in reads(0, 0, 0): a(l)
    a.lines.append(".p2align 6")
    a.label(f"{N}_Bloop")
    for slot in range(4):
        for l in phase(0, reads(slot, 1, 1)): a(l)
        if slot == 3:
            a(f"s_sub_u32 s{sI}, s{sI}, 1")
            a("s_waitcnt vmcnt(0)")
        a("s_barrier")
        if CFG.prof > 1: pf.stamp()
        for l in phase(1, reads((slot + 1) % 4, 0, 0)): a(l)
    a(f"s_cmp_lg_u32 s{sI}, 0")
    a(f"s_cbranch_scc1 {N}_Bloop")
    a(f"ds_read_b32 v{vBC+1}, v{vBC} offset:64")
    a(f"ds_read_b32 v{vBC}, v{vBC}")
    a("s_waitcnt lgkmcnt(0)")
    a("s_barrier")
    o_prefetch(a, sWave, sUO, sTt, sT)
    order = [0, 1, 2, 3, 4]
    pf.stamp()
    for oi, i in enumerate(order):
        if i < 4: a(f"s_add_u32 s{sT}, s{sZm}, {4*OCT*i}")
        for tt in range(2):
            n = 4 if i < 4 else 2
            z = Z1 + 8*i + n*tt
            for r in range(n):
                j = 2*i + (r >> 1)
                ac = ACC + 8*j + 4*tt + 2*(r & 1)
                t = T + 4*(r % 2)
                a(f"v_add_f32 v{ac}, v{vBC+tt}, v{ac}")
                a(f"v_add_f32 v{ac+1}, v{vBC+tt}, v{ac+1}")
                a(f"v_lshlrev_b32 v{t}, 16, v{z+r}")
                a(f"v_and_b32 v{t+1}, 0xffff0000, v{z+r}")
                a(f"v_mul_f32 v{t}, v{t}, v{ac}")
                a(f"v_mul_f32 v{t+1}, v{t+1}, v{ac+1}")
                a(f"v_cvt_pk_bf16_f32 v{z+r}, v{t}, v{t+1}")
            if i < 4:
                a(f"buffer_store_dwordx4 {vr(z,4)}, v{vE}, s[{sUO}:{sUO+3}], s{sT} offen offset:{256*tt} sc1")
            else:
                a(f"buffer_store_dwordx2 {vr(z,2)}, v{vEs}, s[{sUO}:{sUO+3}], s{sZs} offen offset:{256*tt} sc1")
    a("s_waitcnt vmcnt(10)")
    a(f"s_branch {N}_Cc")
    a.label(f"{N}_Bh")
    common()
    vA, vZ = 2, 3
    a(f"""v_lshrrev_b32 v4, 3, v1
    v_and_b32 v5, 7, v1
    v_xor_b32 v5, v5, v4
    v_lshlrev_b32 v5, 4, v5
    v_lshl_add_u32 v{vA}, v4, 12, v5
    v_lshlrev_b32 v{vZ}, 4, v1
    s_lshl_b32 s{sA}, s{sTb}, 19
    s_lshl_b32 s{sT+1}, s{sTb}, 11
    s_add_u32 s{sZ1m}, s{sZm}, s{sT+1}
    s_add_u32 s{sZ1s}, s{sZs}, s{sT+1}
    s_add_u32 s{sZm}, s{sZm}, {288*OCT}
    s_add_u32 s{sZs}, s{sZs}, {288*OCT}
    s_mov_b32 s{sSlot}, s{sLo}
    s_waitcnt lgkmcnt(0)""")
    a.srd_off(sWP, 10, 11, CFG.ws_base + WP_OFF, WP_SZ)
    a.srd_off(sZQ, 10, 11, CFG.ws_base + ZQ_OFF, ZQ_SZ)
    a.srd_off(sUO, 10, 11, CFG.ws_base + UO_OFF, UO_SZ)
    a.srd_off(sCP, 10, 11, CFG.ws_base + CP_OFF, CP_SZ)
    a.srd(sBS, 4, 5, 4096)
    a(f"s_cmp_ge_u32 s{sWave}, 6")
    a(f"s_cbranch_scc1 {N}_xt")
    at = Attn(a, sZQ, sUO, 70)
    at.kv_prep(4, 8)
    at.base(sT+2, sT+3)
    a(f"""s_lshr_b32 s{sT+1}, s2, 4
    s_max_u32 s{sT+3}, s{sT+1}, 1
    s_sub_u32 s{sT+3}, s{sT+3}, 1
    s_lshl_b32 s{sT+1}, s{sT+1}, 8
    s_lshl_b32 s{sT+3}, s{sT+3}, 8
    s_add_u32 s{sT+1}, s{sT+1}, {FL_Q}
    s_add_u32 s{sT+3}, s{sT+3}, {FL_Q}
    v_lshlrev_b32 v8, 2, v1
    s_mov_b32 s{sI}, 0""")
    def pend():
        l = a.newlabel(N + "_dn"); l2 = a.newlabel(N + "_dn")
        a(f"""s_cmp_ge_u32 s{sI}, 2
        s_cbranch_scc1 {l}
        s_waitcnt vmcnt(0)
        s_barrier
        s_cmp_eq_u32 s{sI}, 1
        s_cbranch_scc1 {l2}
        s_barrier""")
        a.label(l2)
        a(f"s_add_u32 s{sI}, s{sI}, 1")
        a.label(l)
    poll_flags(a, f"{N}_pq", sFL, [(8, f"s{sT+1}", 1), (8, f"s{sT+3}", 1)], 12, sT, pend)
    pf.stamp()
    pend(); pend()
    a(f"s_cmp_eq_u32 s{sWave}, 5")
    a(f"s_cbranch_scc1 {N}_st1")
    at.stage((0, 1), 4, vZ, sT+2, sHi, sT)
    a(f"s_branch {N}_st2")
    a.label(f"{N}_st1")
    at.stage((2, 3), 4, vZ, sT+2, sHi, sT)
    a.label(f"{N}_st2")
    a(f"""s_lshl_b32 s{sT+2}, s{sTb}, 7
    v_and_b32 v10, 31, v1
    v_lshlrev_b32 v10, 2, v10
    s_lshl_b32 s{sT+3}, s{sWave}, 2
    s_add_u32 s{sT+3}, s{sT+3}, {TAG_LDS-8-16}
    v_mov_b32 v8, s{sT+3}
    v_mov_b32 v9, s{sTag}
    s_waitcnt vmcnt(0)
    ds_write_b32 v8, v9""")
    pf.stamp()
    for q in range(4): a(f"s_mov_b32 s{sT+4+q}, {FL_Q+1024*q}")
    poll_flags(a, f"{N}_pz", sFL, [(vZ, f"s{sT+4+q}", 4) for q in range(4)] + [(10, f"s{sT+2}", 1)], 16, sT)
    pf.stamp()
    items = [("A", i) for i in range(16)] + [("Z", j) for j in range(18)]
    sN4 = sT + 5
    a(f"s_mov_b32 s{sN4}, 0")
    def issue(p):
        out = []
        for kind, i in items[17*p:17*p+17]:
            if kind == "A":
                out.append(f"s_add_u32 m0, s{sSlot}, {i*1024}")
                out.append(f"s_add_u32 s{sT}, s{sA}, {i*8*4096}")
                out.append(f"buffer_load_dwordx4 v{vA}, s[{sWP}:{sWP+3}], s{sT} offen lds")
            else:
                out.append(f"s_add_u32 m0, s{sSlot}, {zb(i)}")
                out.append(f"s_add_u32 s{sT}, s{sZm if i < 16 else sZs}, {(i if i < 16 else i-16)*OCT}")
                out.append(f"buffer_load_dwordx4 v{vZ}, s[{sZQ}:{sZQ+3}], s{sT} offen lds")
        out += [f"s_add_u32 s{sA}, s{sA}, 128", f"s_add_u32 s{sZm}, s{sZm}, 1024", f"s_add_u32 s{sZs}, s{sZs}, 1024",
                f"s_add_u32 s{sN4}, s{sN4}, 1", f"s_bitcmp1_b32 s{sN4}, 1", f"s_cselect_b32 s{sSlot}, s{sHi}, s{sLo}",
                f"s_bitcmp1_b32 s{sN4}, 0", f"s_cselect_b32 s{sT}, {STG}, 0", f"s_add_u32 s{sSlot}, s{sSlot}, s{sT}"]
        return out
    for p in range(2):
        if p == 0:
            a(f"s_cmp_eq_u32 s{sWave}, 5")
            a(f"s_cbranch_scc1 {N}_prod1")
        else:
            a.label(f"{N}_prod1")
        for st in range(2):
            for l in issue(p): a(l)
        a("s_waitcnt vmcnt(17)")
        a("s_barrier")
        a(f"s_mov_b32 s{sI}, 30")
        a.label(f"{N}_Bploop{p}")
        for l in issue(p): a(l)
        a("s_waitcnt vmcnt(17)")
        a("s_barrier")
        a(f"s_sub_u32 s{sI}, s{sI}, 1")
        a(f"s_cmp_lg_u32 s{sI}, 0")
        a(f"s_cbranch_scc1 {N}_Bploop{p}")
        a(f"s_branch {N}_Bpend")
    a.label(f"{N}_Bpend")
    a("s_waitcnt vmcnt(0)")
    a("s_barrier")
    a(f"s_branch {N}_Cp")
    a.label(f"{N}_xt")
    a(f"s_cmp_eq_u32 s{sWave}, 7")
    a(f"s_cbranch_scc1 {N}_xtrb")
    nb = [0]
    a(f"""s_mul_i32 s{sT+1}, s2, {81*128}
    s_add_u32 s68, s6, s{sT+1}
    s_addc_u32 s69, s7, 0
    s_mul_i32 s{sT+1}, s2, {21*128}
    s_min_u32 s{sT+1}, s{sT+1}, {(5184-21)*128}
    s_add_u32 s70, s8, s{sT+1}
    s_addc_u32 s71, s9, 0""")
    spf = [f"s_load_dword s{74+i%6}, s[70:71], {64*i}" for i in range(42)] + [f"s_load_dword s{74+i%6}, s[68:69], {64*i}" for i in range(162)]
    def bar(n=1, pfn=CFG.kb_spf):
        for _ in range(n):
            a("s_barrier"); nb[0] += 1
            if nb[0] >= 3:
                for _ in range(pfn):
                    if spf: a(spf.pop(0))
    a(f"""s_lshl_b32 s{sT+2}, s2, 2
    s_add_u32 s{sT+2}, s{sT+2}, {FL_E}
    v_mov_b32 v4, 0
    v_mov_b32 v5, s{sTag}""")
    bar(2)
    a("s_waitcnt vmcnt(0)")
    bar(3)
    a(f"buffer_store_dword v5, v4, s[{sFL}:{sFL+3}], s{sT+2} offen sc1")
    X0 = CFG.kb_x0
    bar(X0 - 1 - nb[0])
    a(f"s_mov_b32 s{sT+1}, {FL_E}")
    poll_flags(a, f"{N}_pe", sFL, [(vZ, f"s{sT+1}", 4)], 8, sT)
    a(f"""s_lshl_b32 s{sT+2}, s{sTb}, 9
    s_lshr_b32 s{sT+1}, s{sT+2}, 1
    v_lshlrev_b32 v4, 3, v1
    v_lshlrev_b32 v5, 2, v1""")
    bar()
    a(f"buffer_load_dword v8, v5, s[{sBS}:{sBS+3}], s{sT+1} offen")
    for i in range(32):
        a(f"buffer_load_dwordx2 {vr(16+2*i,2)}, v4, s[{sCP}:{sCP+3}], s{sT+2} offen")
        a(f"s_add_u32 s{sT+2}, s{sT+2}, 8192")
        if i % 4 == 3: bar()
    bar(3)
    a("s_waitcnt vmcnt(0)")
    for i in range(1, 32):
        a(f"v_add_f32 v16, v16, v{16+2*i}")
        a(f"v_add_f32 v17, v17, v{17+2*i}")
        if i % 10 == 0: bar()
    a(f"""s_mov_b32 s{sT}, {f32(1.0/KSC)}
    v_and_b32 v9, 0xffff0000, v8
    v_lshlrev_b32 v8, 16, v8
    v_fma_f32 v8, v8, s{sT}, -v16
    v_fma_f32 v9, v9, s{sT}, -v17
    v_add_u32 v4, {BC}, v4
    ds_write_b64 v4, v[8:9]
    s_waitcnt vmcnt(0) lgkmcnt(0)""")
    bar()
    assert nb[0] <= 32 and not spf, (nb[0], len(spf))
    a("s_waitcnt lgkmcnt(0)")
    pf.flush(sWave)
    a("s_endpgm")
    a.label(f"{N}_xtrb")
    def barloop(n, nm):
        a(f"s_mov_b32 s{sI}, {n}")
        a.label(nm)
        a("s_barrier")
        a(f"s_sub_u32 s{sI}, s{sI}, 1")
        a(f"s_cmp_lg_u32 s{sI}, 0")
        a(f"s_cbranch_scc1 {nm}")
    a("s_barrier")
    a("s_barrier")
    a("s_waitcnt vmcnt(0)")
    barloop(X0 - 2, f"{N}_xb_loop")
    barloop(8, f"{N}_xb_loop1")
    o_prefetch(a, sWave, sUO, sTt, sT, bar_every=2)
    barloop(34 - X0 - 8 - 9, f"{N}_xb_loop2")
    a(f"s_mov_b32 s{sFu}, 0x7f000000")
    a("s_waitcnt vmcnt(0)")
    a(f"s_branch {N}_Cc")

def phase_C(a, N):
    pf = a.pf
    NS = 9
    sUO, sWO, sWA, sX, sOUT, sDM, sFL = 20, 16, 12, 24, 28, 32, 64
    sWave, sRb, sCg, sT = 36, 37, 38, 40
    sI, sU, sW, sHi = 50, 51, 52, 53
    sTt, sFu = 98, 99
    def common():
        a("s_load_dwordx2 s[4:5], s[0:1], 0")
        a("s_load_dwordx2 s[6:7], s[0:1], 16")
        a("s_load_dwordx4 s[8:11], s[0:1], 56")
        c_tile(a, sRb, sCg, sT)
        a(f"s_sub_u32 s{sHi}, {UB}, s{sLo}")
    a.label(f"{N}_Cc")
    pf.stamp()
    a(f"""v_mov_b32 v13, 0
    s_cmp_lt_u32 s{sTt}, 128
    s_cbranch_scc1 {N}_Ctile
    s_waitcnt vmcnt(0)
    buffer_store_dword v14, v13, s[{sFL}:{sFL+3}], s{sFu} offen sc1""")
    pf.flush(sWave)
    a("s_endpgm")
    a.label(f"{N}_Ctile")
    common()
    ACC, SV, XR, T, UF, FA = 16, 32, 48, 56, UFC, 160
    FAS = [160, 192, 72 - 0]
    vL, vU, vA, vXo, vA8 = 1, vUC, 4, 3, 8
    FAB = [160, 192, 224]
    vU2 = 12
    a(f"""v_mov_b32 v{vU2}, v{vUC}
    v_lshrrev_b32 v{T}, 4, v{vL}
    v_and_b32 v{T+1}, 15, v{vL}
    s_lshl_b32 s{sT}, s{sTt}, 4
    v_add_u32 v{T+2}, s{sT}, v{T+1}
    s_mov_b32 s{sU}, 0
    v_mul_u32_u24 v{vXo}, 1152, v{T+2}
    v_and_b32 v{T+3}, 1, v{T}
    v_lshl_add_u32 v{vXo}, v{T+3}, 5, v{vXo}
    v_lshrrev_b32 v{T+3}, 1, v{T}
    v_lshl_add_u32 v{vXo}, v{T+3}, 4, v{vXo}
    s_lshl_b32 s{sT+1}, s{sCg}, 7
    v_bfe_u32 v{T+3}, v{vL}, 2, 2
    v_lshl_add_u32 v{T+4}, v{T}, 3, v{T+3}
    v_lshlrev_b32 v{T+4}, 7, v{T+4}
    v_and_b32 v{T+5}, 3, v{vL}
    v_lshl_add_u32 v{T+4}, v{T+5}, 3, v{T+4}
    v_lshrrev_b32 v{T+3}, 1, v{T+3}
    v_and_b32 v{T+5}, 1, v{T}
    v_lshl_add_u32 v{T+3}, v{T+5}, 1, v{T+3}
    v_lshl_add_u32 v{vA}, v{T+3}, 5, v{T+4}
    v_add_u32 v{vA}, s{sHi}, v{vA}
    v_xor_b32 v{vA+1}, 32, v{vA}
    v_xor_b32 v{vA+2}, 64, v{vA}
    v_xor_b32 v{vA+3}, 96, v{vA}""")
    for j in range(4): a(f"v_add_u32 v{vA8+j}, {8*8192}, v{vA+j}")
    for i in range(16): a(f"v_mov_b32 v{ACC+i}, 0")
    def uload(slot):
        return [f"buffer_load_dwordx4 {vr(UF+4*slot,4)}, v{vU2}, s[{sUO}:{sUO+3}], s{sU} offen",
                f"s_add_u32 s{sU}, s{sU}, {4*OCT}"]
    def reads(st):
        st %= 9
        return [f"ds_read_b64_tr_b16 {vr(FAB[st%3]+16*h+4*j+2*rd,2)}, v{(vA8 if st == 8 else vA)+j} offset:{(st%8)*8192+4096*h+512*rd}"
                for h in range(2) for j in range(4) for rd in range(2)]
    a(f"s_mov_b32 s{sI}, 4")
    pf.stamp()
    a("s_barrier")
    pf.stamp()
    for l in reads(0): a(l)
    a("s_waitcnt lgkmcnt(0)")
    a.srd(sX, 4, 5, 2048 * 1152)
    a.srd(sOUT, 10, 11, 2048 * 1152)
    def cpass(first):
        acc = SV if first else ACC
        for st in range(9):
            a("s_barrier")
            rd = reads(st + 1)
            k = 0
            for h in range(2):
                ks = 2*st + h
                if not first: a(f"s_waitcnt vmcnt({15})")
                for j in range(4):
                    c = "0" if (first and ks == 0) else vr(acc+4*j, 4)
                    a(f"v_mfma_f32_16x16x32_bf16 {vr(acc+4*j,4)}, {vr(FAB[st%3]+16*h+4*j,4)}, {vr(UF+4*ks,4)}, {c}")
                    for _ in range(3):
                        if k < 16: a(rd[k]); k += 1
                if not first:
                    for l in uload((ks + 16) % 18): a(l)
                elif st >= 7:
                    for q in range(4):
                        for l in uload(4*(ks - 14) + q): a(l)
            if first and st == CFG.kc_fu:
                a("s_waitcnt vmcnt(0)")
                a(f"buffer_store_dword v14, v13, s[{sFL}:{sFL+3}], s{sFu} offen sc1")
                for p in range(2):
                    a(f"buffer_load_dwordx4 {vr(XR+4*p,4)}, v{vXo}, s[{sX}:{sX+3}], s{sT+1} offen offset:{64*p}")
            a("s_waitcnt lgkmcnt(0)")
        pf.stamp()
    cpass(True)
    a.lines.append(".p2align 6")
    a.label(f"{N}_Cloop")
    cpass(False)
    a(f"s_sub_u32 s{sI}, s{sI}, 1")
    a(f"s_cmp_lg_u32 s{sI}, 0")
    a(f"s_cbranch_scc1 {N}_Cloop")
    a(f"s_mov_b32 s{sT}, {f32(-math.log2(math.e))}")
    a("s_nop 4")
    for i in range(16): a(f"v_mul_f32 v{T+i}, s{sT}, v{ACC+i}")
    for i in range(16): a(f"v_exp_f32 v{T+i}, v{T+i}")
    for i in range(16): a(f"v_mul_f32 v{SV+i}, v{SV+i}, v{ACC+i}")
    for i in range(16): a(f"v_add_f32 v{T+i}, 1.0, v{T+i}")
    for i in range(16): a(f"v_rcp_f32 v{T+i}, v{T+i}")
    for i in range(16): a(f"v_mul_f32 v{SV+i}, v{SV+i}, v{T+i}")
    for p in range(2):
        x = XR + 4*p
        a(f"v_permlane16_swap_b32 v{x}, v{x+2}")
        a(f"v_permlane16_swap_b32 v{x+1}, v{x+3}")
        for r in range(4):
            s = SV + 8*p + 2*r
            a(f"v_lshlrev_b32 v{T}, 16, v{x+r}")
            a(f"v_and_b32 v{T+1}, 0xffff0000, v{x+r}")
            a(f"v_add_f32 v{T}, v{T}, v{s}")
            a(f"v_add_f32 v{T+1}, v{T+1}, v{s+1}")
            a(f"v_cvt_pk_bf16_f32 v{x+r}, v{T}, v{T+1}")
        a(f"v_permlane16_swap_b32 v{x}, v{x+2}")
        a(f"v_permlane16_swap_b32 v{x+1}, v{x+3}")
        a(f"buffer_store_dwordx4 {vr(x,4)}, v{vXo}, s[{sOUT}:{sOUT+3}], s{sT+1} offen offset:{64*p}")
    if CFG.prof:
        pf.stamp(); a("s_waitcnt vmcnt(0)")
    pf.flush(sWave)
    a("s_endpgm")
    a.label(f"{N}_Cp")
    a(f"s_cmp_ge_u32 s2, 234")
    a(f"s_cbranch_scc1 {N}_end")
    common()
    vD = 2
    a(f"""v_lshrrev_b32 v8, 3, v1
    v_and_b32 v9, 7, v1
    v_lshrrev_b32 v10, 3, v1
    v_and_b32 v10, 2, v10
    v_xor_b32 v9, v9, v10
    v_lshlrev_b32 v9, 4, v9
    v_mul_u32_u24 v{vD}, 1152, v8
    v_add_u32 v{vD}, v{vD}, v9
    v_xor_b32 v{vD+1}, 64, v{vD}
    v_add_u32 v{vD+1}, {8*1152-1024}, v{vD+1}
    v_add_u32 v{vD+2}, {2*(8*1152-1024)}, v{vD}
    v_add_u32 v{vD+3}, {2*(8*1152-1024)}, v{vD+1}
    s_sub_u32 s{sT}, s{sWave}, 4
    s_mul_i32 s{sW}, s{sT}, {32*1152}
    s_lshl_b32 s{sT+1}, s{sCg}, 7
    s_add_u32 s{sW}, s{sW}, s{sT+1}
    s_mov_b32 s{sT+3}, s{sW}
    s_lshl_b32 s{sT+2}, s{sT}, 12
    s_add_u32 s{sT+2}, s{sT+2}, s{sHi}
    s_add_u32 s{sT+5}, s{sHi}, {NS*8192}
    s_mov_b32 s{sT+4}, s{sT+2}
    s_mul_i32 s{sT+6}, s{sRb}, 80
    s_add_u32 s{sT+7}, s{sT+6}, 79
    s_min_u32 s{sT+7}, s{sT+7}, 2047
    s_lshr_b32 s{sT+8}, s{sT+6}, 7
    s_lshl_b32 s{sT+8}, s{sT+8}, 8
    s_add_u32 s{sT+8}, s{sT+8}, {FL_U}
    s_lshr_b32 s{sT+9}, s{sT+7}, 7
    s_lshl_b32 s{sT+9}, s{sT+9}, 8
    s_add_u32 s{sT+9}, s{sT+9}, {FL_U}
    v_lshlrev_b32 v8, 2, v1
    s_waitcnt lgkmcnt(0)""")
    a.srd(sDM, 6, 7, 576 * 1152)
    def issue():
        out = [f"s_mov_b32 m0, s{sT+4}",
               f"s_add_u32 s{sT+4}, s{sT+4}, 8192"]
        out += [f"buffer_load_dwordx4 v{vD+j}, s[{sDM}:{sDM+3}], s{sW} offen offset:{1024*j} lds" for j in range(4)]
        out += [f"s_add_u32 s{sW}, s{sW}, {64*1152}",
                f"s_cmp_ge_u32 s{sT+4}, s{sT+5}",
                f"s_cselect_b32 s{sT+4}, s{sT+2}, s{sT+4}"]
        return out
    a("s_barrier")
    for st in range(9):
        if st == 4: a("s_barrier")
        for l in issue(): a(l)
    a.srd(sDM, 8, 9, 2304 * 1152)
    a(f"s_mov_b32 s{sW}, s{sT+3}")
    a("s_waitcnt vmcnt(32)")
    pf.stamp()
    a("s_barrier")
    def ploop(n, name):
        a(f"s_mov_b32 s{sI}, {n}")
        a.label(name)
        a("s_waitcnt vmcnt(28)")
        a("s_barrier")
        for l in issue(): a(l)
        a(f"s_sub_u32 s{sI}, s{sI}, 1")
        a(f"s_cmp_lg_u32 s{sI}, 0")
        a(f"s_cbranch_scc1 {name}")
    ploop(7, f"{N}_Cploop")
    poll_flags(a, f"{N}_pu", sFL, [(8, f"s{sT+8}", 1), (8, f"s{sT+9}", 1)], 16, sI)
    pf.stamp()
    ploop(29, f"{N}_Cploop2")
    for n in range(8):
        a(f"s_waitcnt vmcnt({28-4*n})")
        a("s_barrier")
    pf.flush(sWave)
    a.label(f"{N}_end")
    a("s_endpgm")

def gen_M():
    a = Asm(); N = NAME + "_kernel"
    phase_A(a, N); phase_B(a, N); phase_C(a, N)
    return a, kd(N, 256, 256, 102), (N, 256, 512, 163840)

HEADER = open("cdna_kernels/" + NAME + ".s.ref").read().split("; Override")[0]

def build(verbose=False):
    a, k, (n, grid, block, lds) = gen_M()
    txt = HEADER + f"; @launch grid=({grid},1,1) block=({block},1,1) lds={lds}\n"
    lines, ins = fix_hazards(a.lines, verbose, "M")
    print(f"{len(lines)} lines, {ins} hazard nops", file=sys.stderr)
    body = "\n".join(("    " + l if not (l.endswith(":") or l.startswith(".")) else l) for l in lines) + "\n"
    txt += '.amdgcn_target "amdgcn-amd-amdhsa--gfx950"\n.text\n.p2align 8\ncode_begin:\n' + body + "code_end:\n" + k
    return txt

if __name__ == "__main__":
    for arg in sys.argv[2:]:
        if "=" in arg:
            k_, v_ = arg.split("=", 1)
            setattr(CFG, k_, type(getattr(CFG, k_))(v_) if not isinstance(getattr(CFG, k_), bool) else int(v_))
    open(sys.argv[1], "w").write(build(verbose="-v" in sys.argv))
```

```python
import math, struct, sys
from asmlib import *

NAME = "recurrent_scan__sliding_local_dilated__mixer_gmlp__prompt"
def f32(x): return "0x%08x" % struct.unpack("<I", struct.pack("<f", x))[0]

C0 = -2.0 * math.sqrt(2.0 / math.pi) * math.log2(math.e)
C1 = C0 * 0.044715
KSC = -((-C1) ** (1.0 / 3.0))
DELTA = C0 / KSC
EPS = 1e-5
OCT = 32768

class Cfg:
    ws_base = 0
    st_aux_a = "sc1"
    st_aux_n = ""
    st_aux_b = "sc1"
    prof = False
    ka_xbar = -1
    ka_prio = 0
    ka_xpf = 0
    ka_head = 24
    ka_xfirst = 5
    ka_rot = 0
    align = 0
    hprof = 0
    bound = 20000
    ka_try = 2
    kb_xb = 28
    kc_fu = 2
    ka_pst = 13
    ka_spf = 0
    ka_d5 = 15
    ka_fwe = 1
    ka_pf0 = 2
    ka_early = 0
    codepf2 = 3
    kb_x0 = 12
    ka_st_aux = ""
    sleep = 8
    kc_test = 0
    ka_rbl = 3
    ka_nostore = 0
    ka_nodma = 0
    ka_wsp_slot = 0
    ka_x_aux = ""
    ka_pf_aux = ""
    ka_wsp_aux = "nt"
    ka_npre = 26
    codepf = 1
    ka_l2pf = 2
    attn_seg = 36
    ka_stpos = 5
    kb_nomfma = 0
    kb_pf = 1
    kb_eit = 8
    kb_wg = 3
    kb_spf = 10
    kb_abar = 0
    kb_nodma = 0
    kb_noattn = 0
CFG = Cfg()

ZQ_OFF, ZQ_SZ = 0, 792 * OCT
UO_OFF, UO_SZ = 26 << 20, 360 * OCT
WP_OFF, WP_SZ = 38 << 20, 2048 * 4096
ST_OFF, ST_SZ = 47 << 20, 16 * 16 * 2048
CP_OFF, CP_SZ = 48 << 20, 2048 * 128

def kd(name, vgpr, accum, sgpr=96):
    return f""".section .rodata,"a"
.p2align 6
.amdhsa_kernel {name}
  .amdhsa_next_free_vgpr {vgpr}
  .amdhsa_next_free_sgpr {sgpr}
  .amdhsa_accum_offset {accum}
  .amdhsa_group_segment_fixed_size 0
  .amdhsa_kernarg_size 88
  .amdhsa_user_sgpr_count 2
  .amdhsa_user_sgpr_kernarg_segment_ptr 1
  .amdhsa_system_sgpr_workgroup_id_x 1
.end_amdhsa_kernel
"""

PROF_OFF = 64 << 20
class Prof:
    def __init__(self, a, vreg, kidx):
        self.a, self.v, self.k = a, vreg, kidx
    def init(self):
        if not CFG.prof: return
        a = self.a
        a(f"v_mov_b32 v{self.v}, 0")
        a("s_mov_b64 s[84:85], 2")
        a("s_memrealtime s[82:83]")
        a("s_waitcnt lgkmcnt(0)")
        a(f"v_writelane_b32 v{self.v}, s82, 0")
        self.stamp()
    def stamp(self):
        if not CFG.prof: return
        a = self.a
        a("s_memtime s[80:81]")
        a("s_waitcnt lgkmcnt(0)")
        a("s_mov_b64 s[92:93], exec")
        a("s_mov_b64 exec, s[84:85]")
        a(f"v_mov_b32 v{self.v}, s80")
        a("s_mov_b64 exec, s[92:93]")
        a("s_lshl_b64 s[84:85], s[84:85], 1")
    def flush(self, sWave):
        if not CFG.prof: return
        a = self.a
        self.stamp()
        a("s_memrealtime s[82:83]")
        a("s_load_dwordx2 s[86:87], s[0:1], 80")
        a("s_waitcnt lgkmcnt(0)")
        a(f"v_writelane_b32 v{self.v}, s82, 63")
        a.srd_off(88, 86, 87, PROF_OFF + self.k * (1 << 20), 1 << 20)
        a("s_lshl_b32 s85, s2, 3")
        a(f"s_add_u32 s85, s85, s{sWave}")
        a("s_lshl_b32 s85, s85, 8")
        a("s_mov_b64 exec, -1")
        a("v_mbcnt_lo_u32_b32 v0, -1, 0")
        a("v_mbcnt_hi_u32_b32 v0, -1, v0")
        a("v_lshlrev_b32 v0, 2, v0")
        a(f"buffer_store_dword v{self.v}, v0, s[88:91], s85 offen")

def code_prefetch(a, sS, vT, vL, name):
    if not CFG.codepf: return
    h = a.newlabel(name + "_pc")
    a(f"s_getpc_b64 s[{sS}:{sS+1}]")
    a.label(h)
    a(f"s_sub_u32 s{sS}, s{sS}, {h}-code_begin")
    a(f"s_subb_u32 s{sS+1}, s{sS+1}, 0")
    a(f"s_mov_b32 s{sS+2}, code_end-code_begin")
    a(f"s_mov_b32 s{sS+3}, 0x00020000")
    a(f"s_lshr_b32 s{sS+4}, s2, 3")
    a(f"s_lshl_b32 s{sS+4}, s{sS+4}, 13")
    a(f"v_lshlrev_b32 v{vT}, 7, v{vL}")
    a(f"buffer_load_dword v{vT+1}, v{vT}, s[{sS}:{sS+3}], s{sS+4} offen")

def prologue(a, name, ngrid):
    a.lines.append(".text")
    a.lines.append(f".globl {name}")
    a.lines.append(".p2align 8")
    a.lines.append(f".type {name},@function")
    a.label(name)
    a(f"s_cmp_ge_u32 s2, {ngrid}")
    a(f"s_cbranch_scc1 {name}_end")
    if CFG.hprof:
        k = {"ka": 0, "kb": 1, "kc": 2}[name[:2]]
        a(f"""s_cmp_lg_u32 s2, 0
        s_cbranch_scc1 {name}_hp
        s_memrealtime s[82:83]
        s_load_dwordx2 s[86:87], s[0:1], 80
        s_waitcnt lgkmcnt(0)""")
        a.srd_off(88, 86, 87, PROF_OFF, 4096)
        a(f"""v_mov_b32 v1, s82
        v_mov_b32 v2, 0
        buffer_store_dword v1, v2, s[88:91], 0 offen offset:{4*k} sc1
        s_waitcnt vmcnt(0)""")
        a.label(f"{name}_hp")

def hprof_end(a, name):
    if not CFG.hprof: return
    a(f"""s_cmp_lg_u32 s2, 0
    s_cbranch_scc1 {name}_hpe
    s_waitcnt vmcnt(0)
    s_memrealtime s[82:83]
    s_load_dwordx4 s[84:87], s[0:1], 72
    s_waitcnt lgkmcnt(0)""")
    a.srd_off(88, 86, 87, PROF_OFF, 4096)
    a.srd(92, 84, 85, 256)
    a(f"""v_mov_b32 v2, 0
    buffer_load_dwordx3 v[4:6], v2, s[88:91], 0 offen sc1
    v_mov_b32 v7, s82
    s_waitcnt vmcnt(0)
    v_sub_u32 v7, v7, v6
    v_sub_u32 v6, v6, v5
    v_sub_u32 v5, v5, v4
    buffer_store_dwordx4 v[4:7], v2, s[92:95], 0 offen""")
    a.label(f"{name}_hpe")

def cost(l):
    c = 0
    for x in l.split("\n"):
        c += 8 if x.startswith(TRANS) else 4
    return c

def spread(slots, fillers, base=None):
    base = [sum(cost(x) + (4 if x.startswith("v_mfma") else 0) for x in sl) for sl in slots]
    tot = sum(base) + sum(cost(f) for f in fillers)
    out = []; k = 0; cum = 0
    for i, sl in enumerate(slots):
        out += sl; cum += base[i]
        tgt = tot * (i + 1) / len(slots)
        while k < len(fillers) and cum + cost(fillers[k]) / 2 <= tgt:
            out.append(fillers[k]); cum += cost(fillers[k]); k += 1
    return out + fillers[k:]


FL_OFF, FL_SZ = 49 << 20, 20480
FL_W, FL_E, FL_U, FL_Q, FL_TAG = 0, 4096, 8192, 12288, 16384
sTag, sLo = 100, 101
TAG_LDS = 163832
Z1B = 204

def poll_flags(a, name, sFL, items, vt, sT, on_fail=None):
    a(f"s_mov_b32 s{sT}, {CFG.bound}")
    a.label(name)
    regs = []
    r = vt
    for vo, so, w in items:
        sfx = {1: "dword", 4: "dwordx4"}[w]
        a(f"buffer_load_{sfx} {vr(r,w)}, v{vo}, s[{sFL}:{sFL+3}], {so} offen sc1")
        regs += list(range(r, r + w)); r += w
    a("s_waitcnt vmcnt(0)")
    for x in regs: a(f"v_xor_b32 v{x}, s{sTag}, v{x}")
    for x in regs[1:]: a(f"v_or_b32 v{regs[0]}, v{regs[0]}, v{x}")
    a(f"""v_cmp_ne_u32 vcc, 0, v{regs[0]}
    s_sub_u32 s{sT}, s{sT}, 1
    s_cmp_eq_u32 s{sT}, 0
    s_cbranch_scc1 {name}_ok
    s_cmp_eq_u64 vcc, 0
    s_cbranch_scc1 {name}_ok""")
    if on_fail: on_fail()
    a(f"""s_sleep {CFG.sleep}
    s_branch {name}""")
    a.label(f"{name}_ok")

def phase_A(a, N):
    X, FR, T = 112, 24, 16
    AC = [80, 48]
    W = AC[1]
    vL, vA0, vA1, vPn, vO8, vSt, vStO = 1, 2, 3, 4, 5, 6, 7
    vNm, vSc, vSum = 8, 9, 10
    S = W
    vX0, vX1, vX2, vX3, vSR, vSRs, vXw = W+8, W+9, W+10, W+11, W+12, W+16, W+20
    sX, sWI, sWQ, sZQ, sST, sDM = 12, 16, 20, 24, 28, 32
    sFQ, sFq = 28, 32
    sWave, sRb, sCg = 36, 37, 38
    sNz2, sNg, sN, sZ2s, sZ1m, sQm = 39, 40, 41, 42, 43, 44
    sU, sV, sUn, sMz2, sP8, sOb = 45, 46, 47, 48, 49, 50
    sMq = 52
    sDma, sDstep, sDvs = 54, 55, 56
    sDp, sDc, sDn = 57, 58, 59
    sBufN, sPw, sRot, sRw = 61, 62, 60, 51
    sHu, sHx = 3, 33
    sDl, sOlo, sOhi, sOnes = 63, 64, 65, 66
    sXr = 68
    sT0, sT1, sT2, sSt, sP8i, sP8q, sXb, sXs = 72, 73, 74, 76, 77, 78, 75, 79
    UB = 73728; STG = 2 * UB
    RBL = CFG.ka_rbl
    prologue(a, N, 256)
    pf = Prof(a, 15, 0); pf.init(); a.pf = pf
    a("s_load_dwordx4 s[4:7], s[0:1], 0")
    a("s_load_dwordx4 s[8:11], s[0:1], 32")
    a("s_load_dwordx4 s[96:99], s[0:1], 72")
    a(f"v_and_b32 v{vL}, 63, v0")
    a(f"v_lshrrev_b32 v{T}, 6, v0")
    a(f"v_readfirstlane_b32 s{sWave}, v{T}")
    a(f"""s_and_b32 s{sT0}, s2, 7
    s_lshr_b32 s{sT1}, s2, 3
    s_and_b32 s{sRb}, s{sT0}, {(16>>RBL)-1}
    s_lshl_b32 s{sRb}, s{sRb}, {RBL}
    s_and_b32 s{sT2}, s{sT1}, {(1<<RBL)-1}
    s_add_u32 s{sRb}, s{sRb}, s{sT2}
    s_lshr_b32 s{sCg}, s{sT0}, {4-RBL}
    s_lshl_b32 s{sCg}, s{sCg}, {5-RBL}
    s_lshr_b32 s{sT2}, s{sT1}, {RBL}
    s_add_u32 s{sCg}, s{sCg}, s{sT2}
    s_and_b32 s{sRot}, s{sT1}, {(1<<RBL)-1}
    s_lshl_b32 s{sRot}, s{sRot}, 1
    s_add_u32 s{sRot}, s{sRot}, s{sT2}
    s_mul_i32 s{sRot}, s{sRot}, {CFG.ka_rot}
    s_sub_u32 s{sT2}, s{sRot}, 9
    s_min_u32 s{sRot}, s{sRot}, s{sT2}
    s_sub_u32 s{sT2}, s{sRot}, 9
    s_min_u32 s{sRot}, s{sRot}, s{sT2}
    v_lshrrev_b32 v{T}, 3, v{vL}
    v_and_b32 v{T+1}, 7, v{vL}""")
    unit_lists = f"""s_min_u32 s{sT0}, s{sCg}, 4
    s_lshl_b32 s{sZ2s}, s{sCg}, 1
    s_add_u32 s{sZ2s}, s{sZ2s}, s{sT0}
    s_add_u32 s{sZ2s}, s{sZ2s}, 36
    s_lshl_b32 s{sT0}, s{sCg}, 1
    s_sub_u32 s{sT0}, s{sT0}, 6
    s_sub_u32 s{sQm}, s{sCg}, 3
    s_cmp_lt_u32 s{sCg}, 4
    s_cselect_b32 s{sNz2}, 3, 2
    s_cselect_b32 s{sQm}, s{sQm}, s{sT0}
    s_mul_i32 s{sHu}, s{sCg}, 288
    s_and_b32 s{sT0}, s{sCg}, 1
    s_lshl_b32 s{sT1}, s{sT0}, 5
    s_add_u32 s{sZ1m}, s{sHu}, s{sT1}
    s_sub_u32 s{sZ1m}, s{sZ1m}, 512
    s_xor_b32 s{sT0}, s{sT0}, 1
    s_lshl_b32 s{sT0}, s{sT0}, 8
    s_add_u32 s{sHu}, s{sHu}, s{sT0}
    s_mov_b32 s{sLo}, 73728"""
    a(f"s_cmp_ge_u32 s{sWave}, 4")
    a(f"s_cbranch_scc1 {N}_prod")
    a(f"""v_lshrrev_b32 v{T+2}, 4, v{vL}
    v_xor_b32 v{T+2}, v{T+2}, v{T+1}
    v_lshlrev_b32 v{T+2}, 4, v{T+2}
    v_mul_u32_u24 v{vX0}, 1152, v{T}
    v_add_u32 v{vX0}, v{vX0}, v{T+2}
    v_xor_b32 v{vX1}, 64, v{vX0}
    s_lshl_b32 s{sT0}, s{sRb}, 7
    s_lshl_b32 s{sT1}, s{sWave}, 5
    s_add_u32 s{sT0}, s{sT0}, s{sT1}
    s_mul_i32 s{sXr}, s{sT0}, 1152
    s_add_u32 s{sXr+1}, s{sXr}, 8192
    s_add_u32 s{sXr+2}, s{sXr}, 16384
    s_add_u32 s{sXr+3}, s{sXr}, 24576
    s_lshl_b32 s{sXb}, s{sWave}, 14
    s_add_u32 s{sXb}, s{sXb}, {UB}
    s_lshl_b32 s{sXs}, s{sWave}, 12
    s_add_u32 s{sXs}, s{sXs}, {STG}""")
    a("s_waitcnt lgkmcnt(0)")
    if CFG.prof > 2: pf.stamp()
    a.srd(sX, 4, 5, 2048 * 1152)
    a(f"s_lshl_b32 s{sRw}, s{sRot}, 7")
    def xload(j):
        a(f"v_add_u32 v{vX2}, s{sRw}, v{vX0}")
        a(f"v_add_u32 v{vX3}, s{sRw}, v{vX1}")
        if j < 4: a(f"s_add_u32 m0, s{sXb}, {j*4096}")
        elif j == 4: a(f"s_mov_b32 m0, s{sXs}")
        a(f"s_add_u32 s{sRw}, s{sRw}, 128")
        for rg in range(4):
            if j < 5:
                a(f"buffer_load_dwordx4 v{vX3 if rg&1 else vX2}, s[{sX}:{sX+3}], s{sXr+rg} offen offset:{rg*1024} {CFG.ka_x_aux} lds")
            else:
                a(f"buffer_load_dwordx4 {vr(X+16*j+4*rg,4)}, v{vX3 if rg&1 else vX2}, s[{sX}:{sX+3}], s{sXr+rg} offen offset:{rg*1024} {CFG.ka_x_aux}")
        a(f"s_cmp_eq_u32 s{sRw}, 1152")
        a(f"s_cselect_b32 s{sRw}, 0, s{sRw}")
    for j in range(CFG.ka_xfirst): xload(j)
    a.srd_off(sZQ, 98, 99, CFG.ws_base + ZQ_OFF, ZQ_SZ)
    a.srd_off(sFQ, 98, 99, CFG.ws_base + FL_OFF + FL_Q, 4096)
    a(f"""s_lshl_b32 s{sFq}, s{sRb}, 8
    s_lshl_b32 s{sT0}, s{sCg}, 4
    s_add_u32 s{sFq}, s{sFq}, s{sT0}
    s_lshl_b32 s{sT0}, s{sWave}, 2
    s_add_u32 s{sFq}, s{sFq}, s{sT0}
    v_mov_b32 v12, {TAG_LDS}
    v_mov_b32 v13, 0""")
    a(unit_lists)
    a(f"""s_mov_b32 s{sDl}, {f32(DELTA)}
    s_mov_b32 s{sOlo}, 0x00003f80
    s_mov_b32 s{sOhi}, 0x3f800000
    s_mov_b32 s{sOnes}, 0x3f803f80""")
    def cparams():
        return [
            f"s_add_u32 s{sT0}, s{sZ2s}, s{sV}",
            f"s_add_u32 s{sT2}, s{sQm}, s{sV}",
            f"s_min_u32 s{sT2}, s{sT2}, 26",
            f"s_add_u32 s{sT2}, s{sT2}, 72",
            f"s_cmp_lt_u32 s{sV}, s{sNz2}\n"
            f"s_cselect_b32 s{sUn}, s{sT0}, s{sT2}\n"
            f"s_cselect_b32 s{sMz2}, -1, 0",
            f"s_lshl_b32 s{sDn}, s{sUn}, 18",
        ]
    def traddr(buf):
        return [f"v_and_b32 v{T+7}, s{sMz2}, v{vO8}",
                f"v_xor_b32 v{vA0}, v{T+7}, v{vPn}"] + \
               ([f"v_add_u32 v{vA0}, {UB}, v{vA0}"] if buf else []) + [f"v_xor_b32 v{vA1}, 64, v{vA0}"]
    a(f"s_mov_b32 s{sV}, 0")
    for l in cparams(): a(l)
    a(f"""v_lshrrev_b32 v{T+2}, 5, v{vL}
    v_lshlrev_b32 v{T+2}, 3, v{T+2}
    v_bfe_u32 v{T+3}, v{vL}, 2, 2
    v_add_u32 v{T+2}, v{T+2}, v{T+3}
    v_lshlrev_b32 v{vPn}, 7, v{T+2}
    v_lshrrev_b32 v{T+3}, 1, v{T+3}
    v_lshl_add_u32 v{vPn}, v{T+3}, 6, v{vPn}
    v_bfe_u32 v{T+3}, v{vL}, 4, 1
    v_lshl_add_u32 v{vPn}, v{T+3}, 5, v{vPn}
    v_and_b32 v{T+3}, 1, v{vL}
    v_lshl_add_u32 v{vPn}, v{T+3}, 4, v{vPn}
    v_lshlrev_b32 v{vO8}, 3, v{T+3}
    v_bfe_u32 v{T+3}, v{vL}, 1, 1
    v_lshl_add_u32 v{vPn}, v{T+3}, 3, v{vPn}""")
    for l in traddr(0): a(l)
    a(f"""v_and_b32 v{T+2}, 31, v{vL}
    v_bfe_u32 v{T+3}, v{vL}, 1, 3
    v_lshrrev_b32 v{T+4}, 5, v{vL}
    v_xor_b32 v{T+3}, v{T+3}, v{T+4}
    v_lshlrev_b32 v{T+3}, 4, v{T+3}
    v_lshl_add_u32 v{T+3}, v{T+2}, 7, v{T+3}
    v_add_u32 v{vSR}, s{sXb}, v{T+3}
    v_xor_b32 v{vSR+1}, 32, v{vSR}
    v_xor_b32 v{vSR+2}, 64, v{vSR}
    v_xor_b32 v{vSR+3}, 96, v{vSR}
    v_add_u32 v{vSRs}, s{sXs}, v{T+3}
    v_xor_b32 v{vSRs+1}, 32, v{vSRs}
    v_xor_b32 v{vSRs+2}, 64, v{vSRs}
    v_xor_b32 v{vSRs+3}, 96, v{vSRs}
    v_lshlrev_b32 v{vStO}, 3, v{vL}
    v_add_u32 v{vStO}, s{sXs}, v{vStO}
    s_lshl_b32 s{sT0}, s{sRb}, 7
    s_lshl_b32 s{sT1}, s{sWave}, 5
    s_add_u32 s{sT0}, s{sT0}, s{sT1}
    v_add_u32 v{vSt}, s{sT0}, v{T+2}
    v_lshlrev_b32 v{vSt}, 4, v{vSt}
    v_lshl_add_u32 v{vSt}, v{T+4}, 15, v{vSt}
    v_mov_b32 v{vSum}, 0
    v_mov_b32 v{vSum+1}, 0""")
    pf.stamp()
    def xstats(j):
        for r in range(16):
            x = X + 16*j + r
            q = S + 2*(r % 2)
            first = (j == 0 and r < 2)
            a(f"v_dot2_f32_bf16 v{q}, v{x}, s{sOnes}, {'0' if first else 'v%d' % q}")
            a(f"v_dot2_f32_bf16 v{q+1}, v{x}, v{x}, {'0' if first else 'v%d' % (q+1)}")
    a(f"v_lshlrev_b32 v{vXw}, 4, v{vL}")
    a(f"v_add_u32 v{vXw}, s{sXb}, v{vXw}")
    issued = CFG.ka_xfirst
    for j in range(9):
        a(f"s_waitcnt vmcnt({4*(issued-1-j)})")
        if CFG.prof > 2: pf.stamp()
        if j >= 5:
            for rg in range(4):
                a(f"ds_write_b128 v{vXw}, {vr(X+16*j+4*rg,4)} offset:{(j%5)*4096+rg*1024}")
        for i in range(4):
            if j % 5 < 4: a(f"ds_read_b128 {vr(X+16*j+4*i,4)}, v{vSR+i} offset:{(j%5)*4096}")
            else: a(f"ds_read_b128 {vr(X+16*j+4*i,4)}, v{vSRs+i}")
        if issued < 9:
            xload(issued); issued += 1
        if j > 0:
            a(f"s_waitcnt lgkmcnt({8 if j >= 5 else 4})")
            a.lines.append(".p2align 3")
            xstats(j-1)
    a("s_waitcnt lgkmcnt(0)")
    a.lines.append(".p2align 3")
    xstats(8)
    pf.stamp()
    a(f"""v_add_f32 v{S}, v{S}, v{S+2}
    v_add_f32 v{S+1}, v{S+1}, v{S+3}
    s_mov_b32 s{sT0}, {f32(-1.0/576)}
    s_mov_b32 s{sT1}, {f32(1.0/576)}
    s_mov_b32 s{sT2}, {f32(KSC)}
    v_mov_b32 v{S+2}, v{S}
    v_mov_b32 v{S+3}, v{S+1}
    v_permlane32_swap_b32 v{S}, v{S+2}
    v_permlane32_swap_b32 v{S+1}, v{S+3}
    v_add_f32 v{S}, v{S}, v{S+2}
    v_add_f32 v{S+1}, v{S+1}, v{S+3}
    v_mul_f32 v{vNm}, s{sT0}, v{S}
    v_mul_f32 v{S+1}, s{sT1}, v{S+1}
    v_fma_f32 v{S+1}, -v{vNm}, v{vNm}, v{S+1}
    v_max_f32 v{S+1}, 0, v{S+1}
    v_add_f32 v{S+1}, {f32(EPS)}, v{S+1}
    v_rsq_f32 v{S+1}, v{S+1}
    s_mov_b32 s{sU}, 0
    s_mov_b32 s{sDc}, s{sDn}
    s_mov_b32 s{sDp}, s{sDn}
    v_mul_f32 v{vSc}, s{sT2}, v{S+1}""")
    CT = [W, W+2, W+4, W+6]
    def center(kk):
        o = []
        for r in range(4):
            x = X + 4*kk + r
            o.append(f"v_dot2_f32_bf16 v{CT[r]}, v{x}, s{sOlo}, v{vNm}")
            o.append(f"v_dot2_f32_bf16 v{CT[r]+1}, v{x}, s{sOhi}, v{vNm}")
        for r in range(4):
            o.append(f"v_cvt_pk_bf16_f32 v{X+4*kk+r}, v{CT[r]}, v{CT[r]+1}")
        return o
    def center_plain(kk):
        o = []
        for r in range(4):
            x = X + 4*kk + r
            o += [f"v_lshlrev_b32 v{CT[r]}, 16, v{x}", f"v_and_b32 v{CT[r]+1}, 0xffff0000, v{x}",
                  f"v_add_f32 v{CT[r]}, v{vNm}, v{CT[r]}", f"v_add_f32 v{CT[r]+1}, v{vNm}, v{CT[r]+1}",
                  f"v_cvt_pk_bf16_f32 v{x}, v{CT[r]}, v{CT[r]+1}"]
        return o
    NPRE = CFG.ka_npre
    a.lines.append(".p2align 3")
    for kk in range(NPRE):
        for l in center(kk): a(l)
    pf.stamp()
    a("s_barrier")
    pf.stamp()

    def reads(kk, t):
        st = kk % 3
        off = (kk % 18) * 2048
        return [f"ds_read_b64_tr_b16 {vr(FR+8*st+4*t+2*h,2)}, v{vA1 if t else vA0} offset:{off+512*h}" for h in range(2)]
    def reads_s(kk):
        return [f"ds_read_b64_tr_b16 {vr(FR+8*(kk%3)+2*h,2)}, v{vA0} offset:{kk*512+128*h}" for h in range(2)]
    def mfma(par, kk, t):
        st = kk % 3; acc = AC[par] + 16*t
        c = "0" if kk == 0 else vr(acc, 16)
        return f"v_mfma_f32_32x32x16_bf16 {vr(acc,16)}, {vr(FR+8*st+4*t,4)}, {vr(X+4*kk,4)}, {c}"
    def stores(E, m):
        if CFG.ka_nostore: return []
        return [f"s_add_u32 s{sSt}, s{sDp}, {2*m*OCT}",
                f"buffer_store_dwordx4 {vr(E+8*m,4)}, v{vSt}, s[{sZQ}:{sZQ+3}], s{sSt} offen {CFG.st_aux_a}"]
    def epi(kind, E, ne_=32, D=None):
        out = []
        order = list(range(ne_)) if D is None else list(range(16, 32)) + list(range(16))
        dst = (lambda p: E+(p//8)*8+(p%8)//2) if D is None else D
        if kind == "P":
            for e in range(32):
                out.append(f"v_mul_f32 v{E+e}, v{vSc}, v{E+e}")
                if e % 2 == 1 and e >= 3:
                    p = e - 3; out.append(f"v_cvt_pk_bf16_f32 v{E+(p//8)*8+(p%8)//2}, v{E+p}, v{E+p+1}")
            out.append(f"v_cvt_pk_bf16_f32 v{E+27}, v{E+30}, v{E+31}")
            return out
        def st(k, pos):
            w = E + order[pos]; t = T + pos % 6
            return [f"v_mul_f32 v{w}, v{vSc}, v{w}", f"v_fma_f32 v{t}, v{w}, v{w}, s{sDl}", f"v_mul_f32 v{t}, v{t}, v{w}",
                    f"v_exp_f32 v{t}, v{t}", f"v_add_f32 v{t}, 1.0, v{t}", f"v_rcp_f32 v{t}, v{t}", f"v_mul_f32 v{w}, v{t}, v{w}"][k]
        for i in range(ne_ + 7):
            for k in (6, 3, 0, 4, 1, 5, 2):
                e = i - k
                if 0 <= e < ne_: out.append(st(k, e))
            e = i - 7
            if 0 <= e < ne_ and e % 2 == 1:
                p = order[e - 1]; out.append(f"v_cvt_pk_bf16_f32 v{dst(p)}, v{E+p}, v{E+p+1}")
        return out
    def stats(E):
        out = []
        for m in range(4):
            for i in range(4):
                b = E + 8*m
                out.append(f"v_dot2_f32_bf16 v{vSum}, v{b+i}, s{sOnes}, v{vSum}")
                out.append(f"v_dot2_f32_bf16 v{vSum+1}, v{b+i}, v{b+i}, v{vSum+1}")
        return out
    DA = lambda p: AC[0] + 16 + ((p - 16) // 2 if p >= 16 else 8 + p // 2)
    def body(kind, par):
        E = AC[1 - par]
        if kind == "F":
            for l in reads(0, 0) + reads(0, 1) + reads(1, 0) + reads(1, 1): a(l)
        a.label(f"{N}_{kind}{par}")
        slots = []
        for kk in range(0, 36):
            lw = 4
            if kind == "S": lw = 2 if kk < 35 else 0
            if kind == "H" and kk == 35: lw = 2
            s0 = [f"s_waitcnt lgkmcnt({lw})", mfma(par, kk, 0)]
            s1 = [mfma(par, kk, 1)] if kind != "S" else []
            if kk == 0: s0 += [f"s_add_u32 s{sV}, s{sU}, 1"]
            if kk == 1 and kind != "F": s0 += ["s_barrier"]
            if kk == 33 and kind == "P" and par == 0:
                s0 += ["s_waitcnt vmcnt(0)", f"buffer_store_dword v14, v13, s[{sFQ}:{sFQ+3}], s{sFq} offen sc1"]
            if kk == 20 and kind == "P" and par == 0: s1 += ["ds_read_b32 v14, v12"]
            if kk == 34: s0 += ["s_barrier"]
            if kk + 2 == 18 and kind != "S":
                s0 += [f"v_add_u32 v{vA0}, {18*2048}, v{vA0}", f"v_add_u32 v{vA1}, {18*2048}, v{vA1}"]
            if kind == "S": s0 += reads_s(kk + 2) if kk < 34 else []
            elif kind == "H" and kk >= 34: s0 += reads_s(kk - 34)
            else: s0 += reads((kk+2) % 36, 0)
            if kind != "S" and (kind != "H" or kk < 34): s1 += reads((kk+2) % 36, 1)
            st0 = CFG.ka_pst if kind == "P" else 36 - CFG.ka_stpos
            if kind in "GP" and st0 <= kk < st0 + 4:
                s0 += stores(E, kk - st0)
            if kk == 33 and kind == "H":
                s1 += [f"v_lshrrev_b32 v{vA0}, 7, v{vPn}", f"v_and_b32 v{vA1}, 24, v{vPn}", f"v_lshl_add_u32 v{vA0}, v{vA0}, 5, v{vA1}"]
            elif kk == 33 and kind != "S": s1 += traddr(1 - par)
            slots += [s0, s1]
        if kind == "S":
            sl = [slots[2*i] + slots[2*i+1] for i in range(36)]
            out = sl[0] + spread(sl[1:], epi("H", E))
        elif kind == "F":
            ne = 2 * NPRE - 2
            out = spread(slots[:ne], sum([center_plain(kk) for kk in range(NPRE, 36)], []))
            out += interleave(slots[ne:-6], cparams()) + sum(slots[-6:], [])
        elif kind == "N":
            out = slots[0] + interleave(slots[1:20], cparams()) + sum(slots[20:], [])
        elif kind == "H":
            out = slots[0] + slots[1] + spread(slots[2:], epi(kind, E, D=DA))
        else:
            ep = epi(kind, E)
            ne = len(slots) - 2*CFG.ka_stpos + 4 if kind != "P" else 24
            out = slots[0] + spread(slots[1:ne], cparams() + ep) + sum(slots[ne:], [])
        for l in out: a(l)
        if kind == "G":
            a.lines.append(".p2align 3")
            for l in stats(E): a(l)
            a(f"ds_write_b64 v{vStO}, {vr(vSum,2)}")
        a(f"s_mov_b32 s{sDp}, s{sDc}")
        a(f"s_mov_b32 s{sDc}, s{sDn}")
        a(f"s_mov_b32 s{sU}, s{sV}")
        pf.stamp()
    body("F", 0); body("G", 1); body("G", 0)
    a(f"s_cmp_lt_u32 s{sNz2}, 3")
    a(f"s_cbranch_scc1 {N}_P1")
    E2 = AC[0]
    a("s_nop 7")
    for l in epi("G", E2):
        a(l)
        for m in range(4):
            if l.startswith(f"v_cvt_pk_bf16_f32 v{E2+8*m+3},"):
                for x in stores(E2, m): a(x)
    a.lines.append(".p2align 3")
    for l in stats(E2): a(l)
    a(f"ds_write_b64 v{vStO}, {vr(vSum,2)}")
    a("s_waitcnt lgkmcnt(0)")
    pf.stamp()
    body("N", 1)
    a(f"s_branch {N}_P0")
    body("P", 1); body("P", 0); body("H", 1); body("S", 0)
    src = {0: AC[0] + 24, 1: AC[0] + 28, 2: AC[0] + 16, 3: AC[0] + 20, 4: AC[1], 5: AC[1] + 8, 6: AC[1] + 16, 7: AC[1] + 24}
    for m in range(8):
        for r in range(4): a(f"v_mov_b32 v{Z1B+4*m+r}, v{src[m]+r}")
    tl = epi("H", AC[0], 8)
    sw = []
    for i in range(4):
        for r in range(4): sw.append(f"v_permlane32_swap_b32 v{Z1B+8*i+r}, v{Z1B+8*i+4+r}")
        for r in range(4): sw.append(f"v_permlane16_swap_b32 v{Z1B+8*i+r}, v{Z1B+8*i+4+r}")
    for l in interleave([[x] for x in tl], sw): a(l)
    for r in range(4): a(f"v_mov_b32 v{Z1B+32+r}, v{AC[0]+r}")
    for r in range(2): a(f"v_permlane16_swap_b32 v{Z1B+32+r}, v{Z1B+34+r}")
    pf.stamp()
    a(f"s_branch {N}_At")
    a.label(f"{N}_prod")
    vD, vDin, vDq, vPi, vPq, vWo, vT, vZero, vTg = 2, 6, 7, 8, 9, 10, 20, 11, 24
    sIsT, sSo2 = 63, 50
    a(f"v_mov_b32 v{vZero}, 0")
    WU, P, MH, ML, C, TT = 128, 32, 96, 100, 104, 112
    sWS, sWP, sCP, sDB, sFL = 12, 24, 4, 8, 64
    sPc = sXr + 2
    if CFG.ka_prio: a(f"s_setprio {CFG.ka_prio}")
    a(f"s_cmp_lg_u32 s{sWave}, 4")
    a(f"s_cbranch_scc1 {N}_nopf1")
    code_prefetch(a, 88, vT, vL, N)
    a.label(f"{N}_nopf1")
    if CFG.ka_xpf:
        a(f"""s_sub_u32 s{sT1}, s{sWave}, 4
        s_lshl_b32 s{sT1}, s{sT1}, 5
        s_lshl_b32 s{sT0}, s{sRb}, 7
        s_add_u32 s{sT0}, s{sT0}, s{sT1}
        s_mul_i32 s{sT0}, s{sT0}, 1152
        v_lshrrev_b32 v{vT}, 2, v{vL}
        v_mul_u32_u24 v{vT}, 1152, v{vT}
        v_and_b32 v{vT+1}, 3, v{vL}
        v_lshl_add_u32 v{vT}, v{vT+1}, 7, v{vT}
        s_add_u32 s{sT1}, s{sT0}, {16*1152}
        s_waitcnt lgkmcnt(0)""")
        a.srd(sX, 4, 5, 2048 * 1152)
        a(f"buffer_load_dword v{vT+1}, v{vT}, s[{sX}:{sX+3}], s{sT0} offen offset:640")
        a(f"buffer_load_dword v{vT+2}, v{vT}, s[{sX}:{sX+3}], s{sT1} offen offset:640")
    a(unit_lists)
    a(f"""s_sub_u32 s{sPw}, s{sWave}, 4
    s_and_b32 s{sPc}, s{sPw}, 1
    s_mov_b32 s{sP8i}, {8*9216}
    s_mov_b32 s{sP8q}, {8*3456}
    v_lshrrev_b32 v{T+2}, 2, v{vL}
    v_and_b32 v{T+2}, 4, v{T+2}
    v_xor_b32 v{T+2}, v{T+2}, v{T+1}
    v_lshlrev_b32 v{T+2}, 4, v{T+2}
    v_mul_u32_u24 v{vDin}, 9216, v{T}
    v_add_u32 v{vDin}, v{vDin}, v{T+2}
    v_mul_u32_u24 v{vDq}, 3456, v{T}
    v_add_u32 v{vDq}, v{vDq}, v{T+2}
    v_lshlrev_b32 v{vWo}, 12, v{T}
    v_lshl_add_u32 v{vWo}, v{T+1}, 4, v{vWo}
    s_and_b32 s{sT0}, s{sRb}, {(1<<RBL)-1}
    s_mul_i32 s{sT0}, s{sT0}, {576>>RBL}
    s_mul_i32 s{sT1}, s{sPw}, {144>>RBL}
    s_add_u32 s{sT0}, s{sT0}, s{sT1}
    v_min_u32 v{T+2}, {(144>>RBL)-1}, v{vL}
    v_add_u32 v{T+2}, s{sT0}, v{T+2}
    v_mul_u32_u24 v{vPi}, 9216, v{T+2}
    v_mul_u32_u24 v{vPq}, 3456, v{T+2}""")
    a("s_waitcnt lgkmcnt(0)")
    a.srd(sWI, 8, 9, 576 * 9216)
    a.srd(sWQ, 6, 7, 576 * 3456)
    a(f"s_mov_b32 s{sDM+3}, 0x00020000")
    a.srd(sWS, 10, 11, 2048 * 4096)
    a.srd_off(sWP, 98, 99, CFG.ws_base + WP_OFF, WP_SZ)
    a.srd_off(sST, 98, 99, CFG.ws_base + ST_OFF, ST_SZ)
    a.srd_off(sCP, 98, 99, CFG.ws_base + CP_OFF, CP_SZ)
    a.srd(sDB, 96, 97, 256)
    a.srd_off(sFL, 98, 99, CFG.ws_base + FL_OFF, FL_SZ)
    a(f"""s_lshl_b32 s{sIsT}, s2, 3
    s_or_b32 s{sIsT}, s{sIsT}, s{sPw}
    v_mov_b32 v{vTg}, {FL_TAG}
    s_cmp_lg_u32 s{sIsT}, 0
    s_cbranch_scc1 {N}_notag
    buffer_load_dword v{vTg+1}, v{vTg}, s[{sFL}:{sFL+3}], 0 offen sc1""")
    a.label(f"{N}_notag")
    def pparams():
        a(f"""s_add_u32 s{sT0}, s{sZ2s}, s{sV}
        s_lshl_b32 s{sT0}, s{sT0}, 7
        s_lshl_b32 s{sT1}, s{sV}, 7
        s_add_u32 s{sT1}, s{sT1}, s{sZ1m}
        s_add_u32 s{sT2}, s{sQm}, s{sV}
        s_min_u32 s{sT2}, s{sT2}, 26
        s_lshl_b32 s{sT2}, s{sT2}, 7
        s_cmp_lt_u32 s{sV}, s{sNz2}
        s_cselect_b32 s{sUn}, s{sT0}, s{sT1}
        s_cmp_eq_u32 s{sV}, 6
        s_cselect_b32 s{sUn}, s{sHu}, s{sUn}
        s_sub_u32 s{sT0}, s{sV}, s{sNz2}
        s_sub_u32 s{sT1}, 4, s{sNz2}
        s_cmp_ge_u32 s{sT0}, s{sT1}
        s_cselect_b32 s{sUn}, s{sUn}, s{sT2}
        s_cselect_b64 s[{sMq}:{sMq+1}], 0, -1
        s_cselect_b64 s[{sDM}:{sDM+1}], s[{sWI}:{sWI+1}], s[{sWQ}:{sWQ+1}]
        s_cselect_b32 s{sDM+2}, s{sWI+2}, s{sWQ+2}
        s_cselect_b32 s{sP8}, s{sP8i}, s{sP8q}
        s_cmp_lt_u32 s{sV}, 7
        s_cselect_b32 s{sUn}, s{sUn}, 0x7f000000""")
    def issue(nw=4):
        pparams()
        a(f"""v_cndmask_b32 v{vD}, v{vDin}, v{vDq}, s[{sMq}:{sMq+1}]
        s_sub_u32 s{sDvs}, s{sP8}, 1024
        s_lshl_b32 s{sDstep}, s{sP8}, 1
        s_mul_i32 s{sDma}, s{sDstep}, s{sPw}
        s_add_u32 s{sDma}, s{sDma}, s{sUn}
        s_mul_i32 s{sDstep}, s{sDstep}, {nw}
        v_add_u32 v{vD+1}, s{sDvs}, v{vD}
        s_lshl_b32 s{sT0}, s{sPw}, 11
        s_add_u32 m0, s{sBufN}, s{sT0}
        s_sub_u32 s{sBufN}, {UB}, s{sBufN}
        s_add_u32 s{sV}, s{sV}, 1""")
        for i in range(36 // nw):
            for j in range(2):
                a(f"buffer_load_dwordx4 v{vD+j}, s[{sDM}:{sDM+3}], s{sDma} offen offset:{1024*j} lds")
            if i < 36 // nw - 1:
                a(f"s_add_u32 m0, m0, {2048*nw}")
                a(f"s_add_u32 s{sDma}, s{sDma}, s{sDstep}")
    a(f"s_mov_b32 s{sV}, 0")
    a(f"s_mov_b32 s{sBufN}, 0")
    if CFG.ka_xbar >= 0: a("s_barrier")
    issue()
    def l2pf(d=CFG.ka_l2pf-1):
        if d: a(f"s_add_u32 s{sV}, s{sV}, {d}")
        pparams()
        if d: a(f"s_sub_u32 s{sV}, s{sV}, {d}")
        a(f"v_cndmask_b32 v{vT+3}, v{vPi}, v{vPq}, s[{sMq}:{sMq+1}]")
        a(f"buffer_load_dword v14, v{vT+3}, s[{sDM}:{sDM+3}], s{sUn} offen {CFG.ka_pf_aux}")
    npf = 1 if CFG.ka_l2pf else 0
    for d in range(CFG.ka_pf0): l2pf(d)
    if CFG.ka_spf:
        a(f"""s_mul_i32 s{sXr}, s{sRb}, 36
        s_mul_i32 s{sT0}, s{sPw}, 9
        s_add_u32 s{sXr}, s{sXr}, s{sT0}""")
        a.label(f"{N}_spf")
        pparams()
        a(f"""s_lshr_b32 s{sT0}, s{sP8}, 3
        s_mul_i32 s{sT1}, s{sT0}, s{sXr}
        s_add_u32 s{sT1}, s{sT1}, s{sUn}
        s_add_u32 s96, s{sDM}, s{sT1}
        s_addc_u32 s97, s{sDM+1}, 0
        s_mov_b32 s{sT1}, 0""")
        for r in range(9):
            a(f"s_load_dword s{[98,94][r%2]}, s[96:97], s{sT1}")
            a(f"s_load_dword s{[99,95][r%2]}, s[96:97], s{sT1} offset:64")
            if r < 8: a(f"s_add_u32 s{sT1}, s{sT1}, s{sT0}")
        a(f"""s_add_u32 s{sV}, s{sV}, 1
        s_cmp_lt_u32 s{sV}, s{sN}
        s_cbranch_scc1 {N}_spf
        s_mov_b32 s{sV}, 1""")
    a(f"""s_lshl_b32 s{sXr}, s{sCg}, 19
    s_lshl_b32 s{sT0}, s{sRb}, 8
    s_add_u32 s{sXr}, s{sXr}, s{sT0}
    s_lshl_b32 s{sT0}, s{sPc}, 7
    s_add_u32 s{sXr}, s{sXr}, s{sT0}
    s_mov_b32 s{sXr+1}, s{sXr}""")
    a(f"s_waitcnt vmcnt({CFG.ka_pf0})")
    for d in range(CFG.ka_pf0, CFG.ka_l2pf): l2pf(d)
    a(f"""s_cmp_lg_u32 s{sIsT}, 0
    s_cbranch_scc1 {N}_notag2
    v_add_u32 v{vTg+1}, 1, v{vTg+1}
    v_max_u32 v{vTg+1}, 1, v{vTg+1}
    buffer_store_dword v{vTg+1}, v{vTg}, s[{sFL}:{sFL+3}], 0 offen sc1""")
    a.label(f"{N}_notag2")
    pf.stamp()
    a("s_barrier")
    def special(v):
        l = a.newlabel(N + "_sp")
        a(f"s_cmp_lg_u32 s{sV}, {v}")
        a(f"s_cbranch_scc1 {l}")
        return l
    a.label(f"{N}_ploop")
    nopub = a.newlabel(N + "_nopub")
    a(f"s_cmp_lg_u32 s{sV}, 4")
    a(f"s_cbranch_scc1 {nopub}")
    a(f"s_cmp_lg_u32 s{sPw}, 0")
    a(f"s_cbranch_scc1 {nopub}")
    a(f"""v_lshrrev_b32 v{vT}, 5, v{vL}
    v_and_b32 v{vT+1}, 31, v{vL}
    v_lshlrev_b32 v{vT}, 12, v{vT}
    v_lshl_add_u32 v{vT}, v{vT+1}, 3, v{vT}
    v_add_u32 v{vT}, {STG}, v{vT}
    ds_read_b64 {vr(P,2)}, v{vT}
    ds_read_b64 {vr(P+8,2)}, v{vT} offset:256
    ds_read_b64 {vr(P+4,2)}, v{vT} offset:8192
    ds_read_b64 {vr(P+10,2)}, v{vT} offset:{8192+256}
    v_lshlrev_b32 v{vT+1}, 4, v{vL}
    s_lshl_b32 s{sT0}, s{sRb}, 4
    s_add_u32 s{sT0}, s{sT0}, s{sCg}
    s_lshl_b32 s{sT0}, s{sT0}, 11
    v_mov_b32 v{P+2}, s{sTag}
    v_mov_b32 v{P+3}, s{sTag}
    v_mov_b32 v{P+6}, s{sTag}
    v_mov_b32 v{P+7}, s{sTag}
    s_waitcnt lgkmcnt(0)
    v_add_f32 v{P}, v{P}, v{P+8}
    v_add_f32 v{P+1}, v{P+1}, v{P+9}
    v_add_f32 v{P+4}, v{P+4}, v{P+10}
    v_add_f32 v{P+5}, v{P+5}, v{P+11}
    buffer_store_dwordx4 {vr(P,4)}, v{vT+1}, s[{sST}:{sST+3}], s{sT0} offen sc1
    buffer_store_dwordx4 {vr(P+4,4)}, v{vT+1}, s[{sST}:{sST+3}], s{sT0} offen offset:1024 sc1""")
    a.label(nopub)
    issue()
    if npf: l2pf()
    l3 = a.newlabel(N + "_l"); l4 = a.newlabel(N + "_l")
    l = special(2)
    a(f"s_cmp_lt_u32 s{sPw}, 2")
    a(f"s_cbranch_scc1 {N}_s0b")
    for i in range(16):
        a(f"buffer_load_dwordx4 {vr(WU+8*i+4,4)}, v{vWo}, s[{sWS}:{sWS+3}], s{sXr+1} offen {CFG.ka_wsp_aux}")
        a(f"s_add_u32 s{sXr+1}, s{sXr+1}, 32768")
    a(f"s_waitcnt vmcnt({16+npf})")
    a(f"s_branch {l3}")
    a.label(f"{N}_s0b")
    a(f"""v_mov_b32 v{vT+1}, {TAG_LDS-8}
    ds_write_b32 v{vT+1}, v{vZero}
    ds_write_b32 v{vT+1}, v{vZero} offset:4
    s_waitcnt vmcnt({npf}) lgkmcnt(0)
    s_cmp_lg_u32 s{sIsT}, 0
    s_cbranch_scc1 {l3}
    buffer_store_dword v{vTg+1}, v{vZero}, s[{sDB}:{sDB+3}], 0 offen sc1""")
    a(f"s_branch {l3}")
    a.label(l)
    l = special(4)
    a(f"s_mov_b32 s{sT1}, {CFG.bound}")
    a.label(f"{N}_ptag")
    a(f"""buffer_load_dword v{vT+2}, v{vZero}, s[{sDB}:{sDB+3}], 0 offen sc1
    s_waitcnt vmcnt(0)
    v_readfirstlane_b32 s{sTag}, v{vT+2}
    v_mov_b32 v{vT+1}, {TAG_LDS}
    ds_write_b32 v{vT+1}, v{vT+2}
    s_waitcnt lgkmcnt(0)
    s_sub_u32 s{sT1}, s{sT1}, 1
    s_cmp_eq_u32 s{sT1}, 0
    s_cbranch_scc1 {l3}
    s_cmp_lg_u32 s{sTag}, 0
    s_cbranch_scc1 {l3}
    s_sleep 8
    s_branch {N}_ptag""")
    a.label(l)
    a(f"s_cmp_lt_u32 s{sPw}, 2")
    a(f"s_cbranch_scc1 {l4}")
    l = special(5)
    for i in range(16):
        for r in range(4):
            x = WU + 8*i + 4 + r
            a(f"v_lshlrev_b32 v{WU+8*i+2*r}, 16, v{x}")
            a(f"v_and_b32 v{WU+8*i+2*r+1}, 0xffff0000, v{x}")
    sTry = sXr + 3
    a(f"""v_lshlrev_b32 v{vT}, 4, v{vL}
    s_lshl_b32 s{sT0}, s{sRb}, 15
    s_lshl_b32 s{sT1}, s{sPc}, 10
    s_add_u32 s{sSo2}, s{sT0}, s{sT1}
    s_mov_b32 s{sTry}, {CFG.bound}
    s_waitcnt vmcnt({npf})""")
    def full(aux="sc1"):
        a(f"s_mov_b32 s{sT0}, s{sSo2}")
        for i in range(16):
            a(f"buffer_load_dwordx4 {vr(P+4*i,4)}, v{vT}, s[{sST}:{sST+3}], s{sT0} offen offset:{(i%2)*2048} {aux}")
            if i % 2 == 1: a(f"s_add_u32 s{sT0}, s{sT0}, 4096")
    a("s_barrier")
    full(CFG.ka_st_aux)
    a("s_barrier")
    a(f"s_branch {N}_job")
    a.label(l)
    a.label(l4)
    a(f"s_waitcnt vmcnt({npf})")
    a.label(l3)
    a("s_barrier")
    a("s_barrier")
    a(f"s_cmp_lt_u32 s{sV}, 5")
    a(f"s_cbranch_scc1 {N}_ploop")
    issue(2)
    if CFG.codepf2 & 1:
        a(f"s_cmp_lg_u32 s{sPw}, 0")
        a(f"s_cbranch_scc1 {N}_nopf3")
        code_prefetch(a, 88, 26, vL, N)
        a.label(f"{N}_nopf3")
    a(f"""v_lshrrev_b32 v{vD}, 1, v{vL}
    v_mul_u32_u24 v{vD}, 9216, v{vD}
    v_and_b32 v{vD+1}, 1, v{vL}
    v_lshl_add_u32 v{vD}, v{vD+1}, 4, v{vD}
    s_mul_i32 s{sDma}, s{sPw}, {32*9216}
    s_add_u32 s{sDma}, s{sDma}, s{sHu}
    s_lshl_b32 s{sT0}, s{sPw}, 10
    s_mov_b32 m0, s{sT0}
    s_waitcnt vmcnt(0)
    s_barrier
    s_barrier""")
    for i in range(9):
        a(f"buffer_load_dwordx4 v{vD}, s[{sWI}:{sWI+3}], s{sDma} offen lds")
        if i < 8:
            a("s_add_u32 m0, m0, 2048")
            a(f"s_add_u32 s{sDma}, s{sDma}, {64*9216}")
    a(f"s_branch {N}_Bh")
    a.label(f"{N}_job")
    pf.stamp()
    sSt8 = sXr + 1
    def d5():
        l = a.newlabel(N + "_d5")
        a(f"""s_cmp_lg_u32 s{sSt8}, 0
        s_cbranch_scc1 {l}
        s_mov_b32 s{sSt8}, 1
        s_barrier
        s_barrier""")
        a.label(l)
    a(f"s_mov_b32 s{sSt8}, 0")
    a(f"s_branch {N}_pst_w")
    a.label(f"{N}_pst")
    d5()
    a("s_sleep 8")
    full()
    a.label(f"{N}_pst_w")
    a("s_waitcnt vmcnt(0)")
    for i in range(16): a(f"v_xor_b32 v{P+4*i+2}, s{sTag}, v{P+4*i+2}")
    for i in range(1, 16): a(f"v_or_b32 v{P+2}, v{P+2}, v{P+4*i+2}")
    a(f"""v_cmp_ne_u32 vcc, 0, v{P+2}
    s_sub_u32 s{sTry}, s{sTry}, 1
    s_cmp_eq_u32 s{sTry}, 0
    s_cbranch_scc1 {N}_pst_ok
    s_cmp_lg_u64 vcc, 0
    s_cbranch_scc1 {N}_pst""")
    a.label(f"{N}_pst_ok")
    pf.stamp()
    a(f"""v_lshlrev_b32 v{vT}, 3, v{vL}
    s_lshl_b32 s{sT1}, s{sPw}, 9
    s_add_u32 s{sT1}, s{sT1}, {STG+4096+2048}
    v_add_u32 v{vT}, s{sT1}, v{vT}
    v_lshlrev_b32 v{vT+1}, 6, v{T+1}
    v_add_u32 v{vT+1}, s{sT1}, v{vT+1}
    s_mov_b32 s{sT0}, {f32(1.0/2304)}
    s_mov_b32 s{sT2}, {f32(1.0/abs(KSC))}""")
    for i in range(1, 16):
        a(f"v_add_f32 v{P}, v{P}, v{P+4*i}")
        a(f"v_add_f32 v{P+1}, v{P+1}, v{P+4*i+1}")
    a(f"""v_mul_f32 v{P}, s{sT0}, v{P}
    v_mul_f32 v{P+1}, s{sT0}, v{P+1}
    v_fma_f32 v{P+1}, -v{P}, v{P}, v{P+1}
    v_max_f32 v{P+1}, 0, v{P+1}
    v_add_f32 v{P+1}, {f32(EPS*KSC*KSC)}, v{P+1}
    v_rsq_f32 v{P+1}, v{P+1}
    v_mul_f32 v{P+1}, s{sT2}, v{P+1}
    ds_write_b64 v{vT}, {vr(P,2)}""")
    for q in range(4):
        a(f"ds_read_b128 {vr(P+4*q,4)}, v{vT+1} offset:{16*q}")
    a("s_waitcnt lgkmcnt(0)")
    for i in range(16):
        for r in range(8): a(f"v_mul_f32 v{WU+8*i+r}, v{P+2*r+1}, v{WU+8*i+r}")
        for r in range(4): a(f"v_cvt_pk_bf16_f32 v{WU+8*i+r}, v{WU+8*i+2*r}, v{WU+8*i+2*r+1}")
        if i < CFG.ka_early:
            a(f"buffer_store_dwordx4 {vr(WU+8*i,4)}, v{vWo}, s[{sWP}:{sWP+3}], s{sXr} offen sc1")
            a(f"s_add_u32 s{sXr}, s{sXr}, 32768")
    d5()
    for i in range(CFG.ka_early, 16):
        a(f"buffer_store_dwordx4 {vr(WU+8*i,4)}, v{vWo}, s[{sWP}:{sWP+3}], s{sXr} offen sc1")
        a(f"s_add_u32 s{sXr}, s{sXr}, 32768")
    pf.stamp()
    a(f"""s_lshl_b32 s{sXr}, s{sCg}, 7
    s_lshl_b32 s{sT1}, s{sRb}, 3
    s_add_u32 s{sXr}, s{sXr}, s{sT1}
    s_lshl_b32 s{sT1}, s{sPc}, 2
    s_add_u32 s{sXr}, s{sXr}, s{sT1}
    v_mov_b32 v{vTg}, s{sTag}""")
    fw = f"""s_waitcnt vmcnt(0)
    buffer_store_dword v{vTg}, v{vZero}, s[{sFL}:{sFL+3}], s{sXr} offen offset:{FL_W} sc1"""
    if CFG.ka_fwe: a(fw)
    a("s_barrier")
    a("s_barrier")
    if not CFG.ka_fwe: a(fw)
    pf.stamp()
    a("s_barrier")
    C2 = 48
    for p in range(4): a(f"v_cvt_pk_bf16_f32 v{MH+p}, v{P+4*p}, v{P+4*p+2}")
    for p in range(4):
        a(f"v_lshlrev_b32 v{TT}, 16, v{MH+p}")
        a(f"v_and_b32 v{TT+1}, 0xffff0000, v{MH+p}")
        a(f"v_sub_f32 v{TT}, v{P+4*p}, v{TT}")
        a(f"v_sub_f32 v{TT+1}, v{P+4*p+2}, v{TT+1}")
        a(f"v_cvt_pk_bf16_f32 v{ML+p}, v{TT}, v{TT+1}")
    a.lines.append(".p2align 3")
    for i in range(0, 16, 2):
        for r in range(4):
            for q in range(2):
                a(f"v_dot2_f32_bf16 v{C2+i+q}, v{WU+8*(i+q)+r}, v{MH+r}, {'0' if r==0 else 'v%d'%(C2+i+q)}")
            for q in range(2):
                a(f"v_dot2_f32_bf16 v{C2+i+q}, v{WU+8*(i+q)+r}, v{ML+r}, v{C2+i+q}")
    for ctrl in ["quad_perm:[1,0,3,2]", "quad_perm:[2,3,0,1]", "row_half_mirror"]:
        for q in range(16):
            a(f"v_add_f32_dpp v{C2+q}, v{C2+q}, v{C2+q} {ctrl} row_mask:0xf bank_mask:0xf")
    for i in range(1, 8):
        a(f"v_cmp_eq_u32 vcc, {i}, v{T+1}")
        a(f"v_cndmask_b32 v{C2}, v{C2}, v{C2+i}, vcc")
        a(f"v_cndmask_b32 v{C2+8}, v{C2+8}, v{C2+8+i}, vcc")
    a(f"""v_lshlrev_b32 v{vT}, 2, v{T}
    v_lshl_add_u32 v{vT}, v{T+1}, 5, v{vT}
    s_lshl_b32 s{sT0}, s{sCg}, 9
    s_lshl_b32 s{sT1}, s{sRb}, 14
    s_add_u32 s{sT0}, s{sT0}, s{sT1}
    s_lshl_b32 s{sT1}, s{sPc}, 13
    s_add_u32 s{sT0}, s{sT0}, s{sT1}
    buffer_store_dword v{C2}, v{vT}, s[{sCP}:{sCP+3}], s{sT0} offen sc1
    buffer_store_dword v{C2+8}, v{vT}, s[{sCP}:{sCP+3}], s{sT0} offen offset:256 sc1
    s_branch {N}_Bh""")

class Attn:
    KV, Q, LG, PH, O = 88, 184, 196, 60, 68
    vQo, vRd = 245, 246
    def __init__(self, a, sZQ, sUO, sT):
        self.a, self.sZQ, self.sUO, self.sT = a, sZQ, sUO, sT
    def base(self, sD, sT):
        self.a(f"""s_and_b32 s{sD}, s2, 7
        s_mul_i32 s{sD}, s{sD}, {9*OCT}
        s_lshr_b32 s{sT}, s2, 3
        s_lshl_b32 s{sT}, s{sT}, 10
        s_add_u32 s{sD}, s{sD}, s{sT}""")
    def kv_prep(self, vDo, TM):
        a = self.a
        for n in range(4):
            a(f"v_add_u32 v{TM}, {64*n}, v1")
            a(f"v_mul_u32_u24 v{TM+1}, 3277, v{TM}")
            a(f"v_lshrrev_b32 v{TM+1}, 18, v{TM+1}")
            a(f"v_mul_u32_u24 v{TM+2}, 80, v{TM+1}")
            a(f"v_sub_u32 v{TM}, v{TM}, v{TM+2}")
            a(f"v_lshlrev_b32 v{TM}, 4, v{TM}")
            a(f"v_lshl_add_u32 v{vDo+n}, v{TM+1}, 15, v{TM}")
            if n: a(f"v_subrev_u32 v{vDo+n}, {1024*n}, v{vDo+n}")
    def stage(self, heads, vDo, vZ, sB, sL, sT):
        a, sZQ = self.a, self.sZQ
        for kv in (0, 2, 1):
            for w in heads:
                if kv < 2:
                    a(f"s_add_u32 m0, s{sL}, {12288*w+4096*kv}")
                    a(f"s_add_u32 s{sT}, s{sB}, {(576+72+72*kv+(9*w>>2))*OCT-256}")
                    for n in range(4):
                        a(f"buffer_load_dwordx4 v{vDo+n}, s[{sZQ}:{sZQ+3}], s{sT} offen offset:{1024*n} lds")
                else:
                    for j in range(3):
                        a(f"s_add_u32 m0, s{sL}, {12288*w+8192+1024*j}")
                        a(f"s_add_u32 s{sT}, s{sB}, {(576+(9*w>>2)+j)*OCT}")
                        a(f"buffer_load_dwordx4 v{vZ}, s[{sZQ}:{sZQ+3}], s{sT} offen lds")
    def setup(self, sWave, sL):
        a, sT = self.a, self.sT
        self.base(sT, sT+1)
        a(f"""s_mul_i32 s{sT+1}, s{sWave}, 9
        s_lshr_b32 s{sT+1}, s{sT+1}, 2
        s_add_u32 s{sT+1}, s{sT+1}, 288
        s_lshl_b32 s{sT+1}, s{sT+1}, 15
        s_add_u32 s{sT}, s{sT}, s{sT+1}
        v_lshlrev_b32 v{self.vQo}, 4, v1
        s_mul_i32 s{sT+5}, s{sWave}, 12288
        s_add_u32 s{sT+5}, s{sT+5}, s{sL}
        s_add_u32 s{sT+5}, s{sT+5}, 32
        v_add_u32 v{self.vRd}, s{sT+5}, v{self.vQo}
        s_lshr_b32 s{sT+4}, s2, 3
        s_lshl_b32 s{sT+4}, s{sT+4}, 6
        v_add_u32 v16, s{sT+4}, v1
        v_mov_b32 v17, 0xff800000""")
        for w in range(1, 8):
            a(f"v_cmp_le_u32 s[{40+2*w}:{41+2*w}], {2*w}, v16")
        sc = (18 ** -0.5) * math.log2(math.e) / (KSC * KSC)
        a(f"s_mov_b32 s{sT+4}, {f32(sc)}")
        a(f"s_mov_b32 s{sT+5}, {f32(KSC)}")
    def reads(self):
        a = self.a
        for j in range(3):
            a(f"ds_read_b128 {vr(self.Q+4*j,4)}, v{self.vRd} offset:{8192-32+1024*j}")
        self.rd(0)
    def rd(self, base):
        for w in range(8):
            for j in range(3):
                self.a(f"ds_read_b128 {vr(self.KV+12*w+4*j,4)}, v{self.vRd} offset:{base+j*1280+224-32*w}")
    def compute(self, do):
        a, sT, KV, Q, LG, PH, O = self.a, self.sT, self.KV, self.Q, self.LG, self.PH, self.O
        for w0 in range(0, 8, 2):
            a(f"s_waitcnt lgkmcnt({min(15, 24-3*(w0+2))})")
            a.lines.append(".p2align 3")
            for i in range(9):
                for w in (w0, w0+1):
                    c = "0" if i == 0 else f"v{LG+w}"
                    a(f"v_dot2_f32_bf16 v{LG+w}, v{Q+do+i}, v{KV+12*w+do+i}, {c}")
        self.rd(4096)
        for w in range(1, 8):
            a(f"v_cndmask_b32 v{LG+w}, v17, v{LG+w}, s[{40+2*w}:{41+2*w}]")
        g = LG; m = 18; s = 19
        a(f"v_max3_f32 v{m}, v{g}, v{g+1}, v{g+2}")
        a(f"v_max3_f32 v{m}, v{m}, v{g+3}, v{g+4}")
        a(f"v_max3_f32 v{m}, v{m}, v{g+5}, v{g+6}")
        a(f"v_max_f32 v{m}, v{m}, v{g+7}")
        for w in range(8): a(f"v_sub_f32 v{g+w}, v{g+w}, v{m}")
        for w in range(8): a(f"v_mul_f32 v{g+w}, s{sT+4}, v{g+w}")
        for w in range(8): a(f"v_exp_f32 v{g+w}, v{g+w}")
        for w in range(8): a(f"v_cvt_pk_bf16_f32 v{g+w}, v{g+w}, 0")
        for w in range(8): a(f"v_lshlrev_b32 v{PH+w}, 16, v{g+w}")
        a(f"v_add_f32 v{s}, v{PH}, v{PH+1}")
        for w in range(2, 8): a(f"v_add_f32 v{s}, v{s}, v{PH+w}")
        a(f"v_mul_f32 v{s}, s{sT+5}, v{s}")
        a(f"v_rcp_f32 v{s}, v{s}")
        for w in range(8):
            if w % 2 == 0:
                a(f"s_waitcnt lgkmcnt({min(15, 24-3*(w+2))})")
                a.lines.append(".p2align 3")
            for d in range(9):
                c0 = "0" if w == 0 else f"v{O+2*d}"
                c1 = "0" if w == 0 else f"v{O+2*d+1}"
                a(f"v_dot2_f32_bf16 v{O+2*d}, v{KV+12*w+do+d}, v{LG+w}, {c0}")
                a(f"v_dot2_f32_bf16 v{O+2*d+1}, v{KV+12*w+do+d}, v{PH+w}, {c1}")
        for d in range(18): a(f"v_mul_f32 v{O+d}, v{s}, v{O+d}")
        for d in range(9): a(f"v_cvt_pk_bf16_f32 v{Q+do+d}, v{O+2*d}, v{O+2*d+1}")
        for j in range(3):
            lo, hi = max(do, 4*j), min(do + 9, 4*j + 4)
            while lo < hi:
                n = 1 if lo % 2 else hi - lo
                sfx = {1: "dword", 2: "dwordx2", 3: "dwordx3", 4: "dwordx4"}[n]
                a(f"buffer_store_{sfx} {vr(Q+lo,n)}, v{self.vQo}, s[{self.sUO}:{self.sUO+3}], s{sT} offen offset:{4*(lo-4*j)} sc1")
                lo += n
            if j < 2: a(f"s_add_u32 s{sT}, s{sT}, {OCT}")

UB = 73728
def c_tile(a, sRb, sCg, sT):
    a(f"""s_and_b32 s{sT}, s2, 7
    s_lshr_b32 s{sT+1}, s2, 3
    s_mul_i32 s{sT+2}, s{sT}, 29
    s_min_u32 s{sT}, s{sT}, 2
    s_add_u32 s{sT+2}, s{sT+2}, s{sT}
    s_add_u32 s{sT+2}, s{sT+2}, s{sT+1}
    s_mul_i32 s{sRb}, s{sT+2}, 7282
    s_lshr_b32 s{sRb}, s{sRb}, 16
    s_mul_i32 s{sT}, s{sRb}, 9
    s_sub_u32 s{sCg}, s{sT+2}, s{sT}""")
UFC, vUC = 88, 247
def o_prefetch(a, sWave, sUO, sTt, sT, bar_every=0, vUC=vUC, vt=248):
    c_tile(a, sT+3, sT+4, sT)
    a(f"""s_min_u32 s{sT+1}, s{sWave}, 4
    s_mul_i32 s{sTt}, s{sT+3}, 5
    s_add_u32 s{sTt}, s{sTt}, s{sT+1}
    s_cmp_ge_u32 s2, 234
    s_cselect_b32 s{sTt}, 128, s{sTt}
    s_min_u32 s{sT}, s{sTt}, 127
    s_lshl_b32 s{sT}, s{sT}, 8
    v_lshrrev_b32 v{vUC}, 4, v1
    v_lshlrev_b32 v{vUC}, 15, v{vUC}
    v_and_b32 v{vt}, 15, v1
    v_lshl_add_u32 v{vUC}, v{vt}, 4, v{vUC}
    v_add_u32 v{vUC}, s{sT}, v{vUC}
    s_mov_b32 s{sT}, {288*OCT}""")
    for k in range(18):
        a(f"buffer_load_dwordx4 {vr(UFC+4*k,4)}, v{vUC}, s[{sUO}:{sUO+3}], s{sT} offen")
        if k < 17: a(f"s_add_u32 s{sT}, s{sT}, {4*OCT}")
        if bar_every and k % bar_every == bar_every - 1: a("s_barrier")

def phase_B(a, N):
    pf = a.pf
    ZO = 16384
    def zb(j): return ZO + j*1024 + (j >> 1)*64 + (64 if j == 17 else 0)
    STG = zb(17) + 1024
    FREE = 2 * UB
    NE = 12
    BC = FREE
    sWP, sZQ, sUO, sCP, sBS, sFL = 12, 16, 20, 24, 28, 64
    sWave, sTb, sFb, sOdd, sT = 36, 37, 38, 39, 40
    sI, sSlot, sHi, sA, sZm, sZs, sZ1m, sZ1s = 56, 57, 58, 59, 60, 61, 62, 63
    sTt, sFu = 98, 99
    RBL = CFG.ka_rbl
    def common():
        a("s_load_dwordx4 s[4:7], s[0:1], 48")
        a("s_load_dwordx2 s[8:9], s[0:1], 16")
        a("s_load_dwordx2 s[10:11], s[0:1], 80")
        a(f"""s_and_b32 s{sT}, s2, 7
        s_lshr_b32 s{sT+1}, s2, 3
        s_and_b32 s{sTb}, s{sT}, {(16>>RBL)-1}
        s_lshl_b32 s{sTb}, s{sTb}, {RBL}
        s_and_b32 s{sT+2}, s{sT+1}, {(1<<RBL)-1}
        s_add_u32 s{sTb}, s{sTb}, s{sT+2}
        s_lshr_b32 s{sFb}, s{sT}, {4-RBL}
        s_lshl_b32 s{sFb}, s{sFb}, {5-RBL}
        s_lshr_b32 s{sT+2}, s{sT+1}, {RBL}
        s_add_u32 s{sFb}, s{sFb}, s{sT+2}
        s_and_b32 s{sOdd}, s{sFb}, 1
        s_mul_i32 s{sZm}, s{sFb}, 18
        s_lshl_b32 s{sT}, s{sOdd}, 1
        s_add_u32 s{sZs}, s{sZm}, 16
        s_lshl_b32 s{sT+1}, s{sOdd}, 4
        s_sub_u32 s{sZs}, s{sZs}, s{sT+1}
        s_add_u32 s{sZm}, s{sZm}, s{sT}
        s_lshl_b32 s{sZm}, s{sZm}, 15
        s_lshl_b32 s{sZs}, s{sZs}, 15
        s_sub_u32 s{sHi}, {UB}, s{sLo}""")
    ACC, FA, FB, Z1, T = 16, 88, 160, Z1B, 176
    vL, vZ0, vZ1, vZs, vB0, vB1, vE, vEs = 1, 2, 3, 4, 5, 6, 7, 8
    vBC = 10
    AD = {vB0: 240, vB1: 241, vZ0: 242, vZ1: 243, vZs: 244}
    a.label(f"{N}_At")
    common()
    a(f"""v_lshrrev_b32 v{T}, 4, v{vL}
    v_and_b32 v{T+1}, 15, v{vL}
    v_bfe_u32 v{T+2}, v{vL}, 2, 2
    v_and_b32 v{T+3}, 3, v{vL}
    v_lshl_add_u32 v{T+4}, v{T}, 3, v{T+2}
    v_lshlrev_b32 v{T+4}, 4, v{T+4}
    v_add_u32 v{T+4}, {ZO}, v{T+4}
    v_lshrrev_b32 v{T+5}, 1, v{T+3}
    v_and_b32 v{T+6}, 1, v{T+3}
    v_lshl_add_u32 v{vZ0}, v{T+3}, 10, v{T+4}
    v_lshl_add_u32 v{vZ0}, v{T+5}, 6, v{vZ0}
    v_lshl_add_u32 v{vZ0}, v{T+6}, 3, v{vZ0}
    v_xor_b32 v{vZ1}, 8, v{vZ0}
    v_mul_u32_u24 v{vZs}, 1088, v{T+5}
    v_add_u32 v{vZs}, v{vZs}, v{T+4}
    v_xor_b32 v{T+6}, v{T+6}, v{T+5}
    v_lshl_add_u32 v{vZs}, v{T+6}, 3, v{vZs}
    s_lshl_b32 s{sT}, s{sWave}, 5
    v_add_u32 v{T+7}, s{sT}, v{T+1}
    v_and_b32 v{T+8}, 7, v{vL}
    v_xor_b32 v{T+8}, v{T+8}, v{T}
    v_lshlrev_b32 v{T+8}, 4, v{T+8}
    v_lshl_add_u32 v{vB0}, v{T+7}, 7, v{T+8}
    v_xor_b32 v{vB1}, 64, v{vB0}""")
    for r, r2 in AD.items(): a(f"v_add_u32 v{r2}, s{sHi}, v{r}")
    for r in AD: a(f"v_add_u32 v{r}, s{sLo}, v{r}")
    a(f"""s_lshl_b32 s{sT+1}, s{sTb}, 7
    v_add_u32 v{T+9}, s{sT+1}, v{T+7}
    v_lshlrev_b32 v{vE}, 4, v{T+9}
    v_lshrrev_b32 v{T+8}, 1, v{T}
    v_lshl_add_u32 v{vEs}, v{T+8}, 15, v{vE}
    v_and_b32 v{T+10}, 1, v{T}
    v_lshl_add_u32 v{vEs}, v{T+10}, 3, v{vEs}
    v_lshl_add_u32 v{vE}, v{T}, 15, v{vE}
    v_lshlrev_b32 v{vBC}, 2, v{T+7}
    v_add_u32 v{vBC}, {BC}, v{vBC}
    s_lshl_b32 s{sFu}, s{sTb}, 8
    s_lshl_b32 s{sT}, s{sFb}, 4
    s_add_u32 s{sFu}, s{sFu}, s{sT}
    s_lshl_b32 s{sT}, s{sWave}, 2
    s_add_u32 s{sFu}, s{sFu}, s{sT}
    s_add_u32 s{sFu}, s{sFu}, {FL_U}""")
    for i in range(4, 44): a(f"v_mov_b32 v{ACC+i}, 0")
    at = Attn(a, sZQ, sUO, 70)
    at.setup(sWave, sHi)
    a(f"s_mov_b32 s{sI}, 8")
    a("s_waitcnt lgkmcnt(0)")
    a.srd_off(sUO, 10, 11, CFG.ws_base + UO_OFF, UO_SZ)
    a.srd_off(sFL, 10, 11, CFG.ws_base + FL_OFF, FL_SZ)
    pf.stamp()
    a(f"""v_mov_b32 v18, {TAG_LDS-8}
    v_readfirstlane_b32 s{sTag}, v14
    s_mov_b32 s{sA}, {CFG.bound*16}""")
    a.label(f"{N}_kvw")
    a(f"""ds_read_b64 v[184:185], v18
    s_waitcnt lgkmcnt(0)
    v_xor_b32 v184, s{sTag}, v184
    v_xor_b32 v185, s{sTag}, v185
    v_or_b32 v184, v184, v185
    s_sub_u32 s{sA}, s{sA}, 1
    v_readfirstlane_b32 s{sSlot}, v184
    s_cmp_eq_u32 s{sA}, 0
    s_cbranch_scc1 {N}_kvd
    s_cmp_lg_u32 s{sSlot}, 0
    s_cbranch_scc1 {N}_kvw""")
    a.label(f"{N}_kvd")
    pf.stamp()
    at.reads()
    for w in range(4):
        if w < 3:
            a(f"s_cmp_lg_u32 s{sWave}, {w}")
            a(f"s_cbranch_scc1 {N}_at{w+1}")
        at.compute(w)
        if w < 3:
            a(f"s_branch {N}_atd")
            a.label(f"{N}_at{w+1}")
    a.label(f"{N}_atd")
    for i in list(range(4)) + list(range(44, 72)): a(f"v_mov_b32 v{ACC+i}, 0")
    def reads(slot, h, st):
        R = (lambda r: AD[r]) if slot >= 2 else (lambda r: r)
        so = (slot & 1) * STG
        out = [f"ds_read_b128 {vr(FB+8*st+4*tt,4)}, v{R(vB1 if h else vB0)} offset:{so+2048*tt}" for tt in range(2)]
        for j in range(9):
            for rd in range(2):
                if j < 8:
                    out.append(f"ds_read_b64_tr_b16 {vr(FA+36*st+4*j+2*rd,2)}, v{R(vZ1 if j&1 else vZ0)} offset:{so+zb(4*(j>>1))-ZO+512*h+64*rd}")
                else:
                    out.append(f"ds_read_b64_tr_b16 {vr(FA+36*st+4*j+2*rd,2)}, v{R(vZs)} offset:{so+zb(16)-ZO+512*h+64*rd}")
        return out
    def phase(st, rds):
        out = []; k = 0
        for j in range(9):
            for tt in range(2):
                if tt == 0 and j % 3 == 0:
                    jj = min(j + 2, 8)
                    out.append(f"s_waitcnt lgkmcnt({min(15, 19-(3+2*jj)+k)})")
                out.append(f"v_mfma_f32_16x16x32_bf16 {vr(ACC+8*j+4*tt,4)}, {vr(FA+36*st+4*j,4)}, {vr(FB+8*st+4*tt,4)}, {vr(ACC+8*j+4*tt,4)}")
                for _ in range(2 if j == 1 else 1):
                    if k < len(rds): out.append(rds[k]); k += 1
        return out
    pf.stamp()
    a("s_barrier")
    pf.stamp()
    for l in reads(0, 0, 0): a(l)
    a.lines.append(".p2align 6")
    a.label(f"{N}_Bloop")
    for slot in range(4):
        for l in phase(0, reads(slot, 1, 1)): a(l)
        if slot == 3:
            a(f"s_sub_u32 s{sI}, s{sI}, 1")
            a("s_waitcnt vmcnt(0)")
        a("s_barrier")
        if CFG.prof > 1: pf.stamp()
        for l in phase(1, reads((slot + 1) % 4, 0, 0)): a(l)
    a(f"s_cmp_lg_u32 s{sI}, 0")
    a(f"s_cbranch_scc1 {N}_Bloop")
    a(f"ds_read_b32 v{vBC+1}, v{vBC} offset:64")
    a(f"ds_read_b32 v{vBC}, v{vBC}")
    a("s_waitcnt lgkmcnt(0)")
    a("s_barrier")
    o_prefetch(a, sWave, sUO, sTt, sT)
    order = [0, 1, 2, 3, 4]
    pf.stamp()
    for oi, i in enumerate(order):
        if i < 4: a(f"s_add_u32 s{sT}, s{sZm}, {4*OCT*i}")
        for tt in range(2):
            n = 4 if i < 4 else 2
            z = Z1 + 8*i + n*tt
            for r in range(n):
                j = 2*i + (r >> 1)
                ac = ACC + 8*j + 4*tt + 2*(r & 1)
                t = T + 4*(r % 2)
                a(f"v_add_f32 v{ac}, v{vBC+tt}, v{ac}")
                a(f"v_add_f32 v{ac+1}, v{vBC+tt}, v{ac+1}")
                a(f"v_lshlrev_b32 v{t}, 16, v{z+r}")
                a(f"v_and_b32 v{t+1}, 0xffff0000, v{z+r}")
                a(f"v_mul_f32 v{t}, v{t}, v{ac}")
                a(f"v_mul_f32 v{t+1}, v{t+1}, v{ac+1}")
                a(f"v_cvt_pk_bf16_f32 v{z+r}, v{t}, v{t+1}")
            if i < 4:
                a(f"buffer_store_dwordx4 {vr(z,4)}, v{vE}, s[{sUO}:{sUO+3}], s{sT} offen offset:{256*tt} sc1")
            else:
                a(f"buffer_store_dwordx2 {vr(z,2)}, v{vEs}, s[{sUO}:{sUO+3}], s{sZs} offen offset:{256*tt} sc1")
    a("s_waitcnt vmcnt(10)")
    a(f"s_branch {N}_Cc")
    a.label(f"{N}_Bh")
    common()
    vA, vZ = 2, 3
    a(f"""v_lshrrev_b32 v4, 3, v1
    v_and_b32 v5, 7, v1
    v_xor_b32 v5, v5, v4
    v_lshlrev_b32 v5, 4, v5
    v_lshl_add_u32 v{vA}, v4, 12, v5
    v_lshlrev_b32 v{vZ}, 4, v1
    s_lshl_b32 s{sA}, s{sTb}, 19
    s_lshl_b32 s{sT+1}, s{sTb}, 11
    s_add_u32 s{sZ1m}, s{sZm}, s{sT+1}
    s_add_u32 s{sZ1s}, s{sZs}, s{sT+1}
    s_add_u32 s{sZm}, s{sZm}, {288*OCT}
    s_add_u32 s{sZs}, s{sZs}, {288*OCT}
    s_mov_b32 s{sSlot}, s{sLo}
    s_waitcnt lgkmcnt(0)""")
    a.srd_off(sWP, 10, 11, CFG.ws_base + WP_OFF, WP_SZ)
    a.srd_off(sZQ, 10, 11, CFG.ws_base + ZQ_OFF, ZQ_SZ)
    a.srd_off(sUO, 10, 11, CFG.ws_base + UO_OFF, UO_SZ)
    a.srd_off(sCP, 10, 11, CFG.ws_base + CP_OFF, CP_SZ)
    a.srd(sBS, 4, 5, 4096)
    a(f"s_cmp_ge_u32 s{sWave}, 6")
    a(f"s_cbranch_scc1 {N}_xt")
    at = Attn(a, sZQ, sUO, 70)
    at.kv_prep(4, 8)
    at.base(sT+2, sT+3)
    a(f"""s_lshr_b32 s{sT+1}, s2, 4
    s_max_u32 s{sT+3}, s{sT+1}, 1
    s_sub_u32 s{sT+3}, s{sT+3}, 1
    s_lshl_b32 s{sT+1}, s{sT+1}, 8
    s_lshl_b32 s{sT+3}, s{sT+3}, 8
    s_add_u32 s{sT+1}, s{sT+1}, {FL_Q}
    s_add_u32 s{sT+3}, s{sT+3}, {FL_Q}
    v_lshlrev_b32 v8, 2, v1
    s_mov_b32 s{sI}, 0""")
    def pend():
        l = a.newlabel(N + "_dn"); l2 = a.newlabel(N + "_dn")
        a(f"""s_cmp_ge_u32 s{sI}, 2
        s_cbranch_scc1 {l}
        s_waitcnt vmcnt(0)
        s_barrier
        s_cmp_eq_u32 s{sI}, 1
        s_cbranch_scc1 {l2}
        s_barrier""")
        a.label(l2)
        a(f"s_add_u32 s{sI}, s{sI}, 1")
        a.label(l)
    poll_flags(a, f"{N}_pq", sFL, [(8, f"s{sT+1}", 1), (8, f"s{sT+3}", 1)], 12, sT, pend)
    pf.stamp()
    pend(); pend()
    a(f"s_cmp_eq_u32 s{sWave}, 5")
    a(f"s_cbranch_scc1 {N}_st1")
    at.stage((0, 1), 4, vZ, sT+2, sHi, sT)
    a(f"s_branch {N}_st2")
    a.label(f"{N}_st1")
    at.stage((2, 3), 4, vZ, sT+2, sHi, sT)
    a.label(f"{N}_st2")
    a(f"""s_lshl_b32 s{sT+2}, s{sTb}, 7
    v_and_b32 v10, 31, v1
    v_lshlrev_b32 v10, 2, v10
    s_lshl_b32 s{sT+3}, s{sWave}, 2
    s_add_u32 s{sT+3}, s{sT+3}, {TAG_LDS-8-16}
    v_mov_b32 v8, s{sT+3}
    v_mov_b32 v9, s{sTag}
    s_waitcnt vmcnt(0)
    ds_write_b32 v8, v9""")
    pf.stamp()
    for q in range(4): a(f"s_mov_b32 s{sT+4+q}, {FL_Q+1024*q}")
    poll_flags(a, f"{N}_pz", sFL, [(vZ, f"s{sT+4+q}", 4) for q in range(4)] + [(10, f"s{sT+2}", 1)], 16, sT)
    pf.stamp()
    items = [("A", i) for i in range(16)] + [("Z", j) for j in range(18)]
    sN4 = sT + 5
    a(f"s_mov_b32 s{sN4}, 0")
    def issue(p):
        out = []
        for kind, i in items[17*p:17*p+17]:
            if kind == "A":
                out.append(f"s_add_u32 m0, s{sSlot}, {i*1024}")
                out.append(f"s_add_u32 s{sT}, s{sA}, {i*8*4096}")
                out.append(f"buffer_load_dwordx4 v{vA}, s[{sWP}:{sWP+3}], s{sT} offen lds")
            else:
                out.append(f"s_add_u32 m0, s{sSlot}, {zb(i)}")
                out.append(f"s_add_u32 s{sT}, s{sZm if i < 16 else sZs}, {(i if i < 16 else i-16)*OCT}")
                out.append(f"buffer_load_dwordx4 v{vZ}, s[{sZQ}:{sZQ+3}], s{sT} offen lds")
        out += [f"s_add_u32 s{sA}, s{sA}, 128", f"s_add_u32 s{sZm}, s{sZm}, 1024", f"s_add_u32 s{sZs}, s{sZs}, 1024",
                f"s_add_u32 s{sN4}, s{sN4}, 1", f"s_bitcmp1_b32 s{sN4}, 1", f"s_cselect_b32 s{sSlot}, s{sHi}, s{sLo}",
                f"s_bitcmp1_b32 s{sN4}, 0", f"s_cselect_b32 s{sT}, {STG}, 0", f"s_add_u32 s{sSlot}, s{sSlot}, s{sT}"]
        return out
    for p in range(2):
        if p == 0:
            a(f"s_cmp_eq_u32 s{sWave}, 5")
            a(f"s_cbranch_scc1 {N}_prod1")
        else:
            a.label(f"{N}_prod1")
        for st in range(2):
            for l in issue(p): a(l)
        a("s_waitcnt vmcnt(17)")
        a("s_barrier")
        a(f"s_mov_b32 s{sI}, 30")
        a.label(f"{N}_Bploop{p}")
        for l in issue(p): a(l)
        a("s_waitcnt vmcnt(17)")
        a("s_barrier")
        a(f"s_sub_u32 s{sI}, s{sI}, 1")
        a(f"s_cmp_lg_u32 s{sI}, 0")
        a(f"s_cbranch_scc1 {N}_Bploop{p}")
        a(f"s_branch {N}_Bpend")
    a.label(f"{N}_Bpend")
    a("s_waitcnt vmcnt(0)")
    a("s_barrier")
    a(f"s_branch {N}_Cp")
    a.label(f"{N}_xt")
    a(f"s_cmp_eq_u32 s{sWave}, 7")
    a(f"s_cbranch_scc1 {N}_xtrb")
    nb = [0]
    a(f"""s_mul_i32 s{sT+1}, s2, {81*128}
    s_add_u32 s68, s6, s{sT+1}
    s_addc_u32 s69, s7, 0
    s_mul_i32 s{sT+1}, s2, {21*128}
    s_min_u32 s{sT+1}, s{sT+1}, {(5184-21)*128}
    s_add_u32 s70, s8, s{sT+1}
    s_addc_u32 s71, s9, 0""")
    spf = [f"s_load_dword s{74+i%6}, s[70:71], {64*i}" for i in range(42)] + [f"s_load_dword s{74+i%6}, s[68:69], {64*i}" for i in range(162)]
    def bar(n=1, pfn=CFG.kb_spf):
        for _ in range(n):
            a("s_barrier"); nb[0] += 1
            if nb[0] >= 3:
                for _ in range(pfn):
                    if spf: a(spf.pop(0))
    a(f"""s_lshl_b32 s{sT+2}, s2, 2
    s_add_u32 s{sT+2}, s{sT+2}, {FL_E}
    v_mov_b32 v4, 0
    v_mov_b32 v5, s{sTag}""")
    bar(2)
    a("s_waitcnt vmcnt(0)")
    bar(3)
    a(f"buffer_store_dword v5, v4, s[{sFL}:{sFL+3}], s{sT+2} offen sc1")
    X0 = CFG.kb_x0
    bar(X0 - 1 - nb[0])
    a(f"s_mov_b32 s{sT+1}, {FL_E}")
    poll_flags(a, f"{N}_pe", sFL, [(vZ, f"s{sT+1}", 4)], 8, sT)
    a(f"""s_lshl_b32 s{sT+2}, s{sTb}, 9
    s_lshr_b32 s{sT+1}, s{sT+2}, 1
    v_lshlrev_b32 v4, 3, v1
    v_lshlrev_b32 v5, 2, v1""")
    bar()
    a(f"buffer_load_dword v8, v5, s[{sBS}:{sBS+3}], s{sT+1} offen")
    for i in range(32):
        a(f"buffer_load_dwordx2 {vr(16+2*i,2)}, v4, s[{sCP}:{sCP+3}], s{sT+2} offen")
        a(f"s_add_u32 s{sT+2}, s{sT+2}, 8192")
        if i % 4 == 3: bar()
    bar(3)
    a("s_waitcnt vmcnt(0)")
    for i in range(1, 32):
        a(f"v_add_f32 v16, v16, v{16+2*i}")
        a(f"v_add_f32 v17, v17, v{17+2*i}")
        if i % 10 == 0: bar()
    a(f"""s_mov_b32 s{sT}, {f32(1.0/KSC)}
    v_and_b32 v9, 0xffff0000, v8
    v_lshlrev_b32 v8, 16, v8
    v_fma_f32 v8, v8, s{sT}, -v16
    v_fma_f32 v9, v9, s{sT}, -v17
    v_add_u32 v4, {BC}, v4
    ds_write_b64 v4, v[8:9]
    s_waitcnt vmcnt(0) lgkmcnt(0)""")
    bar()
    assert nb[0] <= 32 and not spf, (nb[0], len(spf))
    a("s_waitcnt lgkmcnt(0)")
    pf.flush(sWave)
    a("s_endpgm")
    a.label(f"{N}_xtrb")
    def barloop(n, nm):
        a(f"s_mov_b32 s{sI}, {n}")
        a.label(nm)
        a("s_barrier")
        a(f"s_sub_u32 s{sI}, s{sI}, 1")
        a(f"s_cmp_lg_u32 s{sI}, 0")
        a(f"s_cbranch_scc1 {nm}")
    a("s_barrier")
    a("s_barrier")
    a("s_waitcnt vmcnt(0)")
    barloop(X0 - 2, f"{N}_xb_loop")
    if CFG.codepf2 & 2: code_prefetch(a, 88, 26, 1, N)
    barloop(8, f"{N}_xb_loop1")
    o_prefetch(a, sWave, sUO, sTt, sT, bar_every=2)
    barloop(34 - X0 - 8 - 9, f"{N}_xb_loop2")
    a(f"s_mov_b32 s{sFu}, 0x7f000000")
    a("s_waitcnt vmcnt(0)")
    a(f"s_branch {N}_Cc")

def phase_C(a, N):
    pf = a.pf
    NS = 9
    sUO, sWO, sWA, sX, sOUT, sDM, sFL = 20, 16, 12, 24, 28, 32, 64
    sWave, sRb, sCg, sT = 36, 37, 38, 40
    sI, sU, sW, sHi = 50, 51, 52, 53
    sTt, sFu = 98, 99
    def common():
        a("s_load_dwordx2 s[4:5], s[0:1], 0")
        a("s_load_dwordx2 s[6:7], s[0:1], 16")
        a("s_load_dwordx4 s[8:11], s[0:1], 56")
        c_tile(a, sRb, sCg, sT)
        a(f"s_sub_u32 s{sHi}, {UB}, s{sLo}")
    a.label(f"{N}_Cc")
    pf.stamp()
    a(f"""v_mov_b32 v13, 0
    s_cmp_lt_u32 s{sTt}, 128
    s_cbranch_scc1 {N}_Ctile
    s_waitcnt vmcnt(0)
    buffer_store_dword v14, v13, s[{sFL}:{sFL+3}], s{sFu} offen sc1""")
    pf.flush(sWave)
    a("s_endpgm")
    a.label(f"{N}_Ctile")
    common()
    ACC, SV, XR, T, UF, FA = 16, 32, 48, 56, UFC, 160
    FAS = [160, 192, 72 - 0]
    vL, vU, vA, vXo, vA8 = 1, vUC, 4, 3, 8
    FAB = [160, 192, 224]
    vU2 = 12
    a(f"""v_mov_b32 v{vU2}, v{vUC}
    v_lshrrev_b32 v{T}, 4, v{vL}
    v_and_b32 v{T+1}, 15, v{vL}
    s_lshl_b32 s{sT}, s{sTt}, 4
    v_add_u32 v{T+2}, s{sT}, v{T+1}
    s_mov_b32 s{sU}, 0
    v_mul_u32_u24 v{vXo}, 1152, v{T+2}
    v_and_b32 v{T+3}, 1, v{T}
    v_lshl_add_u32 v{vXo}, v{T+3}, 5, v{vXo}
    v_lshrrev_b32 v{T+3}, 1, v{T}
    v_lshl_add_u32 v{vXo}, v{T+3}, 4, v{vXo}
    s_lshl_b32 s{sT+1}, s{sCg}, 7
    v_bfe_u32 v{T+3}, v{vL}, 2, 2
    v_lshl_add_u32 v{T+4}, v{T}, 3, v{T+3}
    v_lshlrev_b32 v{T+4}, 7, v{T+4}
    v_and_b32 v{T+5}, 3, v{vL}
    v_lshl_add_u32 v{T+4}, v{T+5}, 3, v{T+4}
    v_lshrrev_b32 v{T+3}, 1, v{T+3}
    v_and_b32 v{T+5}, 1, v{T}
    v_lshl_add_u32 v{T+3}, v{T+5}, 1, v{T+3}
    v_lshl_add_u32 v{vA}, v{T+3}, 5, v{T+4}
    v_add_u32 v{vA}, s{sHi}, v{vA}
    v_xor_b32 v{vA+1}, 32, v{vA}
    v_xor_b32 v{vA+2}, 64, v{vA}
    v_xor_b32 v{vA+3}, 96, v{vA}""")
    for j in range(4): a(f"v_add_u32 v{vA8+j}, {8*8192}, v{vA+j}")
    for i in range(16): a(f"v_mov_b32 v{ACC+i}, 0")
    def uload(slot):
        return [f"buffer_load_dwordx4 {vr(UF+4*slot,4)}, v{vU2}, s[{sUO}:{sUO+3}], s{sU} offen",
                f"s_add_u32 s{sU}, s{sU}, {4*OCT}"]
    def reads(st):
        st %= 9
        return [f"ds_read_b64_tr_b16 {vr(FAB[st%3]+16*h+4*j+2*rd,2)}, v{(vA8 if st == 8 else vA)+j} offset:{(st%8)*8192+4096*h+512*rd}"
                for h in range(2) for j in range(4) for rd in range(2)]
    a(f"s_mov_b32 s{sI}, 4")
    pf.stamp()
    a("s_barrier")
    pf.stamp()
    for l in reads(0): a(l)
    a("s_waitcnt lgkmcnt(0)")
    a.srd(sX, 4, 5, 2048 * 1152)
    a.srd(sOUT, 10, 11, 2048 * 1152)
    def cpass(first):
        acc = SV if first else ACC
        for st in range(9):
            a("s_barrier")
            rd = reads(st + 1)
            k = 0
            for h in range(2):
                ks = 2*st + h
                if not first: a(f"s_waitcnt vmcnt({15})")
                for j in range(4):
                    c = "0" if (first and ks == 0) else vr(acc+4*j, 4)
                    a(f"v_mfma_f32_16x16x32_bf16 {vr(acc+4*j,4)}, {vr(FAB[st%3]+16*h+4*j,4)}, {vr(UF+4*ks,4)}, {c}")
                    for _ in range(3):
                        if k < 16: a(rd[k]); k += 1
                if not first:
                    for l in uload((ks + 16) % 18): a(l)
                elif st >= 7:
                    for q in range(4):
                        for l in uload(4*(ks - 14) + q): a(l)
            if first and st == CFG.kc_fu:
                a("s_waitcnt vmcnt(0)")
                a(f"buffer_store_dword v14, v13, s[{sFL}:{sFL+3}], s{sFu} offen sc1")
                for p in range(2):
                    a(f"buffer_load_dwordx4 {vr(XR+4*p,4)}, v{vXo}, s[{sX}:{sX+3}], s{sT+1} offen offset:{64*p}")
            a("s_waitcnt lgkmcnt(0)")
        pf.stamp()
    cpass(True)
    a.lines.append(".p2align 6")
    a.label(f"{N}_Cloop")
    cpass(False)
    a(f"s_sub_u32 s{sI}, s{sI}, 1")
    a(f"s_cmp_lg_u32 s{sI}, 0")
    a(f"s_cbranch_scc1 {N}_Cloop")
    a(f"s_mov_b32 s{sT}, {f32(-math.log2(math.e))}")
    a("s_nop 4")
    for i in range(16): a(f"v_mul_f32 v{T+i}, s{sT}, v{ACC+i}")
    for i in range(16): a(f"v_exp_f32 v{T+i}, v{T+i}")
    for i in range(16): a(f"v_mul_f32 v{SV+i}, v{SV+i}, v{ACC+i}")
    for i in range(16): a(f"v_add_f32 v{T+i}, 1.0, v{T+i}")
    for i in range(16): a(f"v_rcp_f32 v{T+i}, v{T+i}")
    for i in range(16): a(f"v_mul_f32 v{SV+i}, v{SV+i}, v{T+i}")
    for p in range(2):
        x = XR + 4*p
        a(f"v_permlane16_swap_b32 v{x}, v{x+2}")
        a(f"v_permlane16_swap_b32 v{x+1}, v{x+3}")
        for r in range(4):
            s = SV + 8*p + 2*r
            a(f"v_lshlrev_b32 v{T}, 16, v{x+r}")
            a(f"v_and_b32 v{T+1}, 0xffff0000, v{x+r}")
            a(f"v_add_f32 v{T}, v{T}, v{s}")
            a(f"v_add_f32 v{T+1}, v{T+1}, v{s+1}")
            a(f"v_cvt_pk_bf16_f32 v{x+r}, v{T}, v{T+1}")
        a(f"v_permlane16_swap_b32 v{x}, v{x+2}")
        a(f"v_permlane16_swap_b32 v{x+1}, v{x+3}")
        a(f"buffer_store_dwordx4 {vr(x,4)}, v{vXo}, s[{sOUT}:{sOUT+3}], s{sT+1} offen offset:{64*p}")
    if CFG.prof:
        pf.stamp(); a("s_waitcnt vmcnt(0)")
    pf.flush(sWave)
    a("s_endpgm")
    a.label(f"{N}_Cp")
    a(f"s_cmp_ge_u32 s2, 234")
    a(f"s_cbranch_scc1 {N}_end")
    common()
    vD = 2
    a(f"""v_lshrrev_b32 v8, 3, v1
    v_and_b32 v9, 7, v1
    v_lshrrev_b32 v10, 3, v1
    v_and_b32 v10, 2, v10
    v_xor_b32 v9, v9, v10
    v_lshlrev_b32 v9, 4, v9
    v_mul_u32_u24 v{vD}, 1152, v8
    v_add_u32 v{vD}, v{vD}, v9
    v_xor_b32 v{vD+1}, 64, v{vD}
    v_add_u32 v{vD+1}, {8*1152-1024}, v{vD+1}
    v_add_u32 v{vD+2}, {2*(8*1152-1024)}, v{vD}
    v_add_u32 v{vD+3}, {2*(8*1152-1024)}, v{vD+1}
    s_sub_u32 s{sT}, s{sWave}, 4
    s_mul_i32 s{sW}, s{sT}, {32*1152}
    s_lshl_b32 s{sT+1}, s{sCg}, 7
    s_add_u32 s{sW}, s{sW}, s{sT+1}
    s_mov_b32 s{sT+3}, s{sW}
    s_lshl_b32 s{sT+2}, s{sT}, 12
    s_add_u32 s{sT+2}, s{sT+2}, s{sHi}
    s_add_u32 s{sT+5}, s{sHi}, {NS*8192}
    s_mov_b32 s{sT+4}, s{sT+2}
    s_mul_i32 s{sT+6}, s{sRb}, 80
    s_add_u32 s{sT+7}, s{sT+6}, 79
    s_min_u32 s{sT+7}, s{sT+7}, 2047
    s_lshr_b32 s{sT+8}, s{sT+6}, 7
    s_lshl_b32 s{sT+8}, s{sT+8}, 8
    s_add_u32 s{sT+8}, s{sT+8}, {FL_U}
    s_lshr_b32 s{sT+9}, s{sT+7}, 7
    s_lshl_b32 s{sT+9}, s{sT+9}, 8
    s_add_u32 s{sT+9}, s{sT+9}, {FL_U}
    v_lshlrev_b32 v8, 2, v1
    s_waitcnt lgkmcnt(0)""")
    a.srd(sDM, 6, 7, 576 * 1152)
    def issue():
        out = [f"s_mov_b32 m0, s{sT+4}",
               f"s_add_u32 s{sT+4}, s{sT+4}, 8192"]
        out += [f"buffer_load_dwordx4 v{vD+j}, s[{sDM}:{sDM+3}], s{sW} offen offset:{1024*j} lds" for j in range(4)]
        out += [f"s_add_u32 s{sW}, s{sW}, {64*1152}",
                f"s_cmp_ge_u32 s{sT+4}, s{sT+5}",
                f"s_cselect_b32 s{sT+4}, s{sT+2}, s{sT+4}"]
        return out
    a("s_barrier")
    for st in range(9):
        if st == 4: a("s_barrier")
        for l in issue(): a(l)
    a.srd(sDM, 8, 9, 2304 * 1152)
    a(f"s_mov_b32 s{sW}, s{sT+3}")
    a("s_waitcnt vmcnt(32)")
    pf.stamp()
    a("s_barrier")
    def ploop(n, name):
        a(f"s_mov_b32 s{sI}, {n}")
        a.label(name)
        a("s_waitcnt vmcnt(28)")
        a("s_barrier")
        for l in issue(): a(l)
        a(f"s_sub_u32 s{sI}, s{sI}, 1")
        a(f"s_cmp_lg_u32 s{sI}, 0")
        a(f"s_cbranch_scc1 {name}")
    ploop(7, f"{N}_Cploop")
    poll_flags(a, f"{N}_pu", sFL, [(8, f"s{sT+8}", 1), (8, f"s{sT+9}", 1)], 16, sI)
    pf.stamp()
    ploop(29, f"{N}_Cploop2")
    for n in range(8):
        a(f"s_waitcnt vmcnt({28-4*n})")
        a("s_barrier")
    pf.flush(sWave)
    a.label(f"{N}_end")
    a("s_endpgm")

def gen_M():
    a = Asm(); N = NAME + "_kernel"
    phase_A(a, N); phase_B(a, N); phase_C(a, N)
    return a, kd(N, 256, 256, 102), (N, 256, 512, 163840)

HEADER = open("cdna_kernels/" + NAME + ".s.ref").read().split("; Override")[0]

def build(verbose=False):
    a, k, (n, grid, block, lds) = gen_M()
    txt = HEADER + f"; @launch grid=({grid},1,1) block=({block},1,1) lds={lds}\n"
    lines, ins = fix_hazards(a.lines, verbose, "M")
    print(f"{len(lines)} lines, {ins} hazard nops", file=sys.stderr)
    body = "\n".join(("    " + l if not (l.endswith(":") or l.startswith(".")) else l) for l in lines) + "\n"
    txt += '.amdgcn_target "amdgcn-amd-amdhsa--gfx950"\n.text\n.p2align 8\ncode_begin:\n' + body + "code_end:\n" + k
    return txt

if __name__ == "__main__":
    for arg in sys.argv[2:]:
        if "=" in arg:
            k_, v_ = arg.split("=", 1)
            setattr(CFG, k_, type(getattr(CFG, k_))(v_) if not isinstance(getattr(CFG, k_), bool) else int(v_))
    open(sys.argv[1], "w").write(build(verbose="-v" in sys.argv))
```

```python
import math, struct, sys
from asmlib import *

NAME = "recurrent_scan__sliding_local_dilated__mixer_gmlp__prompt"
def f32(x): return "0x%08x" % struct.unpack("<I", struct.pack("<f", x))[0]

C0 = -2.0 * math.sqrt(2.0 / math.pi) * math.log2(math.e)
C1 = C0 * 0.044715
KSC = -((-C1) ** (1.0 / 3.0))
DELTA = C0 / KSC
EPS = 1e-5
OCT = 32768

class Cfg:
    ws_base = 0
    st_aux_a = "sc1"
    st_aux_n = ""
    st_aux_b = "sc1"
    prof = False
    ka_xbar = -1
    ka_prio = 0
    ka_xpf = 0
    ka_head = 24
    ka_xfirst = 5
    ka_rot = 0
    align = 0
    hprof = 0
    bound = 20000
    ka_try = 2
    kb_xb = 28
    kc_fu = 2
    ka_pst = 13
    ka_spf = 0
    ka_d5 = 15
    ka_fwe = 1
    ka_pf0 = 2
    ka_early = 0
    out_aux = ""
    ka_d6 = 16
    ka_d7 = 0
    ka_fq = -1
    ka_prio2 = 0
    ka_prioj = 0
    codepf2 = 3
    kb_x0 = 23
    kb_cpg = 8
    ka_st_aux = ""
    sleep = 8
    kc_test = 0
    ka_rbl = 3
    ka_nostore = 0
    ka_nodma = 0
    ka_wsp_slot = 0
    ka_x_aux = ""
    ka_pf_aux = ""
    ka_wsp_aux = "nt"
    ka_npre = 26
    codepf = 1
    ka_l2pf = 2
    attn_seg = 36
    ka_stpos = 5
    kb_nomfma = 0
    kb_pf = 1
    kb_eit = 8
    kb_wg = 3
    kb_spf = 10
    kb_abar = 0
    kb_nodma = 0
    kb_noattn = 0
CFG = Cfg()

ZQ_OFF, ZQ_SZ = 0, 792 * OCT
UO_OFF, UO_SZ = 26 << 20, 360 * OCT
WP_OFF, WP_SZ = 38 << 20, 2048 * 4096
ST_OFF, ST_SZ = 47 << 20, 16 * 16 * 2048
CP_OFF, CP_SZ = 48 << 20, 2048 * 128

def kd(name, vgpr, accum, sgpr=96):
    return f""".section .rodata,"a"
.p2align 6
.amdhsa_kernel {name}
  .amdhsa_next_free_vgpr {vgpr}
  .amdhsa_next_free_sgpr {sgpr}
  .amdhsa_accum_offset {accum}
  .amdhsa_group_segment_fixed_size 0
  .amdhsa_kernarg_size 88
  .amdhsa_user_sgpr_count 2
  .amdhsa_user_sgpr_kernarg_segment_ptr 1
  .amdhsa_system_sgpr_workgroup_id_x 1
.end_amdhsa_kernel
"""

PROF_OFF = 64 << 20
class Prof:
    def __init__(self, a, vreg, kidx):
        self.a, self.v, self.k = a, vreg, kidx
    def init(self):
        if not CFG.prof: return
        a = self.a
        a(f"v_mov_b32 v{self.v}, 0")
        a("s_mov_b64 s[84:85], 2")
        a("s_memrealtime s[82:83]")
        a("s_waitcnt lgkmcnt(0)")
        a(f"v_writelane_b32 v{self.v}, s82, 0")
        self.stamp()
    def stamp(self):
        if not CFG.prof: return
        a = self.a
        a("s_memtime s[80:81]")
        a("s_waitcnt lgkmcnt(0)")
        a("s_mov_b64 s[92:93], exec")
        a("s_mov_b64 exec, s[84:85]")
        a(f"v_mov_b32 v{self.v}, s80")
        a("s_mov_b64 exec, s[92:93]")
        a("s_lshl_b64 s[84:85], s[84:85], 1")
    def flush(self, sWave):
        if not CFG.prof: return
        a = self.a
        self.stamp()
        a("s_memrealtime s[82:83]")
        a("s_load_dwordx2 s[86:87], s[0:1], 80")
        a("s_waitcnt lgkmcnt(0)")
        a(f"v_writelane_b32 v{self.v}, s82, 63")
        a.srd_off(88, 86, 87, PROF_OFF + self.k * (1 << 20), 1 << 20)
        a("s_lshl_b32 s85, s2, 3")
        a(f"s_add_u32 s85, s85, s{sWave}")
        a("s_lshl_b32 s85, s85, 8")
        a("s_mov_b64 exec, -1")
        a("v_mbcnt_lo_u32_b32 v0, -1, 0")
        a("v_mbcnt_hi_u32_b32 v0, -1, v0")
        a("v_lshlrev_b32 v0, 2, v0")
        a(f"buffer_store_dword v{self.v}, v0, s[88:91], s85 offen")

def code_prefetch(a, sS, vT, vL, name):
    if not CFG.codepf: return
    h = a.newlabel(name + "_pc")
    a(f"s_getpc_b64 s[{sS}:{sS+1}]")
    a.label(h)
    a(f"s_sub_u32 s{sS}, s{sS}, {h}-code_begin")
    a(f"s_subb_u32 s{sS+1}, s{sS+1}, 0")
    a(f"s_mov_b32 s{sS+2}, code_end-code_begin")
    a(f"s_mov_b32 s{sS+3}, 0x00020000")
    a(f"s_lshr_b32 s{sS+4}, s2, 3")
    a(f"s_lshl_b32 s{sS+4}, s{sS+4}, 13")
    a(f"v_lshlrev_b32 v{vT}, 7, v{vL}")
    a(f"buffer_load_dword v{vT+1}, v{vT}, s[{sS}:{sS+3}], s{sS+4} offen")

def prologue(a, name, ngrid):
    a.lines.append(".text")
    a.lines.append(f".globl {name}")
    a.lines.append(".p2align 8")
    a.lines.append(f".type {name},@function")
    a.label(name)
    a(f"s_cmp_ge_u32 s2, {ngrid}")
    a(f"s_cbranch_scc1 {name}_end")
    if CFG.hprof:
        k = {"ka": 0, "kb": 1, "kc": 2}[name[:2]]
        a(f"""s_cmp_lg_u32 s2, 0
        s_cbranch_scc1 {name}_hp
        s_memrealtime s[82:83]
        s_load_dwordx2 s[86:87], s[0:1], 80
        s_waitcnt lgkmcnt(0)""")
        a.srd_off(88, 86, 87, PROF_OFF, 4096)
        a(f"""v_mov_b32 v1, s82
        v_mov_b32 v2, 0
        buffer_store_dword v1, v2, s[88:91], 0 offen offset:{4*k} sc1
        s_waitcnt vmcnt(0)""")
        a.label(f"{name}_hp")

def hprof_end(a, name):
    if not CFG.hprof: return
    a(f"""s_cmp_lg_u32 s2, 0
    s_cbranch_scc1 {name}_hpe
    s_waitcnt vmcnt(0)
    s_memrealtime s[82:83]
    s_load_dwordx4 s[84:87], s[0:1], 72
    s_waitcnt lgkmcnt(0)""")
    a.srd_off(88, 86, 87, PROF_OFF, 4096)
    a.srd(92, 84, 85, 256)
    a(f"""v_mov_b32 v2, 0
    buffer_load_dwordx3 v[4:6], v2, s[88:91], 0 offen sc1
    v_mov_b32 v7, s82
    s_waitcnt vmcnt(0)
    v_sub_u32 v7, v7, v6
    v_sub_u32 v6, v6, v5
    v_sub_u32 v5, v5, v4
    buffer_store_dwordx4 v[4:7], v2, s[92:95], 0 offen""")
    a.label(f"{name}_hpe")

def cost(l):
    c = 0
    for x in l.split("\n"):
        c += 8 if x.startswith(TRANS) else 4
    return c

def spread(slots, fillers, base=None):
    base = [sum(cost(x) + (4 if x.startswith("v_mfma") else 0) for x in sl) for sl in slots]
    tot = sum(base) + sum(cost(f) for f in fillers)
    out = []; k = 0; cum = 0
    for i, sl in enumerate(slots):
        out += sl; cum += base[i]
        tgt = tot * (i + 1) / len(slots)
        while k < len(fillers) and cum + cost(fillers[k]) / 2 <= tgt:
            out.append(fillers[k]); cum += cost(fillers[k]); k += 1
    return out + fillers[k:]


FL_OFF, FL_SZ = 49 << 20, 20480
FL_W, FL_E, FL_U, FL_Q, FL_TAG = 0, 4096, 8192, 12288, 16384
sTag, sLo = 100, 101
TAG_LDS = 163832
Z1B = 204

def poll_flags(a, name, sFL, items, vt, sT, on_fail=None):
    a(f"s_mov_b32 s{sT}, {CFG.bound}")
    a.label(name)
    regs = []
    r = vt
    for vo, so, w in items:
        sfx = {1: "dword", 4: "dwordx4"}[w]
        a(f"buffer_load_{sfx} {vr(r,w)}, v{vo}, s[{sFL}:{sFL+3}], {so} offen sc1")
        regs += list(range(r, r + w)); r += w
    a("s_waitcnt vmcnt(0)")
    for x in regs: a(f"v_xor_b32 v{x}, s{sTag}, v{x}")
    for x in regs[1:]: a(f"v_or_b32 v{regs[0]}, v{regs[0]}, v{x}")
    a(f"""v_cmp_ne_u32 vcc, 0, v{regs[0]}
    s_sub_u32 s{sT}, s{sT}, 1
    s_cmp_eq_u32 s{sT}, 0
    s_cbranch_scc1 {name}_ok
    s_cmp_eq_u64 vcc, 0
    s_cbranch_scc1 {name}_ok""")
    if on_fail: on_fail()
    a(f"""s_sleep {CFG.sleep}
    s_branch {name}""")
    a.label(f"{name}_ok")

def phase_A(a, N):
    X, FR, T = 112, 24, 16
    AC = [80, 48]
    W = AC[1]
    vL, vA0, vA1, vPn, vO8, vSt, vStO = 1, 2, 3, 4, 5, 6, 7
    vNm, vSc, vSum = 8, 9, 10
    S = W
    vX0, vX1, vX2, vX3, vSR, vSRs, vXw = W+8, W+9, W+10, W+11, W+12, W+16, W+20
    sX, sWI, sWQ, sZQ, sST, sDM = 12, 16, 20, 24, 28, 32
    sFQ, sFq = 28, 32
    sWave, sRb, sCg = 36, 37, 38
    sNz2, sNg, sN, sZ2s, sZ1m, sQm = 39, 40, 41, 42, 43, 44
    sU, sV, sUn, sMz2, sP8, sOb = 45, 46, 47, 48, 49, 50
    sMq = 52
    sDma, sDstep, sDvs = 54, 55, 56
    sDp, sDc, sDn = 57, 58, 59
    sBufN, sPw, sRot, sRw = 61, 62, 60, 51
    sHu, sHx = 3, 33
    sDl, sOlo, sOhi, sOnes = 63, 64, 65, 66
    sXr = 68
    sT0, sT1, sT2, sSt, sP8i, sP8q, sXb, sXs = 72, 73, 74, 76, 77, 78, 75, 79
    UB = 73728; STG = 2 * UB
    RBL = CFG.ka_rbl
    prologue(a, N, 256)
    pf = Prof(a, 15, 0); pf.init(); a.pf = pf
    a("s_load_dwordx4 s[4:7], s[0:1], 0")
    a("s_load_dwordx4 s[8:11], s[0:1], 32")
    a("s_load_dwordx4 s[96:99], s[0:1], 72")
    a(f"v_and_b32 v{vL}, 63, v0")
    a(f"v_lshrrev_b32 v{T}, 6, v0")
    a(f"v_readfirstlane_b32 s{sWave}, v{T}")
    a(f"""s_and_b32 s{sT0}, s2, 7
    s_lshr_b32 s{sT1}, s2, 3
    s_and_b32 s{sRb}, s{sT0}, {(16>>RBL)-1}
    s_lshl_b32 s{sRb}, s{sRb}, {RBL}
    s_and_b32 s{sT2}, s{sT1}, {(1<<RBL)-1}
    s_add_u32 s{sRb}, s{sRb}, s{sT2}
    s_lshr_b32 s{sCg}, s{sT0}, {4-RBL}
    s_lshl_b32 s{sCg}, s{sCg}, {5-RBL}
    s_lshr_b32 s{sT2}, s{sT1}, {RBL}
    s_add_u32 s{sCg}, s{sCg}, s{sT2}
    s_and_b32 s{sRot}, s{sT1}, {(1<<RBL)-1}
    s_lshl_b32 s{sRot}, s{sRot}, 1
    s_add_u32 s{sRot}, s{sRot}, s{sT2}
    s_mul_i32 s{sRot}, s{sRot}, {CFG.ka_rot}
    s_sub_u32 s{sT2}, s{sRot}, 9
    s_min_u32 s{sRot}, s{sRot}, s{sT2}
    s_sub_u32 s{sT2}, s{sRot}, 9
    s_min_u32 s{sRot}, s{sRot}, s{sT2}
    v_lshrrev_b32 v{T}, 3, v{vL}
    v_and_b32 v{T+1}, 7, v{vL}""")
    unit_lists = f"""s_min_u32 s{sT0}, s{sCg}, 4
    s_lshl_b32 s{sZ2s}, s{sCg}, 1
    s_add_u32 s{sZ2s}, s{sZ2s}, s{sT0}
    s_add_u32 s{sZ2s}, s{sZ2s}, 36
    s_lshl_b32 s{sT0}, s{sCg}, 1
    s_sub_u32 s{sT0}, s{sT0}, 6
    s_sub_u32 s{sQm}, s{sCg}, 3
    s_cmp_lt_u32 s{sCg}, 4
    s_cselect_b32 s{sNz2}, 3, 2
    s_cselect_b32 s{sQm}, s{sQm}, s{sT0}
    s_mul_i32 s{sHu}, s{sCg}, 288
    s_and_b32 s{sT0}, s{sCg}, 1
    s_lshl_b32 s{sT1}, s{sT0}, 5
    s_add_u32 s{sZ1m}, s{sHu}, s{sT1}
    s_sub_u32 s{sZ1m}, s{sZ1m}, 512
    s_xor_b32 s{sT0}, s{sT0}, 1
    s_lshl_b32 s{sT0}, s{sT0}, 8
    s_add_u32 s{sHu}, s{sHu}, s{sT0}
    s_mov_b32 s{sLo}, 73728"""
    a(f"s_cmp_ge_u32 s{sWave}, 4")
    a(f"s_cbranch_scc1 {N}_prod")
    a(f"""v_lshrrev_b32 v{T+2}, 4, v{vL}
    v_xor_b32 v{T+2}, v{T+2}, v{T+1}
    v_lshlrev_b32 v{T+2}, 4, v{T+2}
    v_mul_u32_u24 v{vX0}, 1152, v{T}
    v_add_u32 v{vX0}, v{vX0}, v{T+2}
    v_xor_b32 v{vX1}, 64, v{vX0}
    s_lshl_b32 s{sT0}, s{sRb}, 7
    s_lshl_b32 s{sT1}, s{sWave}, 5
    s_add_u32 s{sT0}, s{sT0}, s{sT1}
    s_mul_i32 s{sXr}, s{sT0}, 1152
    s_add_u32 s{sXr+1}, s{sXr}, 8192
    s_add_u32 s{sXr+2}, s{sXr}, 16384
    s_add_u32 s{sXr+3}, s{sXr}, 24576
    s_lshl_b32 s{sXb}, s{sWave}, 14
    s_add_u32 s{sXb}, s{sXb}, {UB}
    s_lshl_b32 s{sXs}, s{sWave}, 12
    s_add_u32 s{sXs}, s{sXs}, {STG}""")
    a("s_waitcnt lgkmcnt(0)")
    if CFG.prof == 3: pf.stamp()
    a.srd(sX, 4, 5, 2048 * 1152)
    a(f"s_lshl_b32 s{sRw}, s{sRot}, 7")
    def xload(j):
        a(f"v_add_u32 v{vX2}, s{sRw}, v{vX0}")
        a(f"v_add_u32 v{vX3}, s{sRw}, v{vX1}")
        if j < 4: a(f"s_add_u32 m0, s{sXb}, {j*4096}")
        elif j == 4: a(f"s_mov_b32 m0, s{sXs}")
        a(f"s_add_u32 s{sRw}, s{sRw}, 128")
        for rg in range(4):
            if j < 5:
                a(f"buffer_load_dwordx4 v{vX3 if rg&1 else vX2}, s[{sX}:{sX+3}], s{sXr+rg} offen offset:{rg*1024} {CFG.ka_x_aux} lds")
            else:
                a(f"buffer_load_dwordx4 {vr(X+16*j+4*rg,4)}, v{vX3 if rg&1 else vX2}, s[{sX}:{sX+3}], s{sXr+rg} offen offset:{rg*1024} {CFG.ka_x_aux}")
        a(f"s_cmp_eq_u32 s{sRw}, 1152")
        a(f"s_cselect_b32 s{sRw}, 0, s{sRw}")
    for j in range(CFG.ka_xfirst): xload(j)
    a.srd_off(sZQ, 98, 99, CFG.ws_base + ZQ_OFF, ZQ_SZ)
    a.srd_off(sFQ, 98, 99, CFG.ws_base + FL_OFF + FL_Q, 4096)
    a(f"""s_lshl_b32 s{sFq}, s{sRb}, 8
    s_lshl_b32 s{sT0}, s{sCg}, 4
    s_add_u32 s{sFq}, s{sFq}, s{sT0}
    s_lshl_b32 s{sT0}, s{sWave}, 2
    s_add_u32 s{sFq}, s{sFq}, s{sT0}
    v_mov_b32 v12, {TAG_LDS}
    v_mov_b32 v13, 0""")
    a(unit_lists)
    a(f"""s_mov_b32 s{sDl}, {f32(DELTA)}
    s_mov_b32 s{sOlo}, 0x00003f80
    s_mov_b32 s{sOhi}, 0x3f800000
    s_mov_b32 s{sOnes}, 0x3f803f80""")
    def cparams():
        return [
            f"s_add_u32 s{sT0}, s{sZ2s}, s{sV}",
            f"s_add_u32 s{sT2}, s{sQm}, s{sV}",
            f"s_min_u32 s{sT2}, s{sT2}, 26",
            f"s_add_u32 s{sT2}, s{sT2}, 72",
            f"s_cmp_lt_u32 s{sV}, s{sNz2}\n"
            f"s_cselect_b32 s{sUn}, s{sT0}, s{sT2}\n"
            f"s_cselect_b32 s{sMz2}, -1, 0",
            f"s_lshl_b32 s{sDn}, s{sUn}, 18",
        ]
    def traddr(buf):
        return [f"v_and_b32 v{T+7}, s{sMz2}, v{vO8}",
                f"v_xor_b32 v{vA0}, v{T+7}, v{vPn}"] + \
               ([f"v_add_u32 v{vA0}, {UB}, v{vA0}"] if buf else []) + [f"v_xor_b32 v{vA1}, 64, v{vA0}"]
    a(f"s_mov_b32 s{sV}, 0")
    for l in cparams(): a(l)
    a(f"""v_lshrrev_b32 v{T+2}, 5, v{vL}
    v_lshlrev_b32 v{T+2}, 3, v{T+2}
    v_bfe_u32 v{T+3}, v{vL}, 2, 2
    v_add_u32 v{T+2}, v{T+2}, v{T+3}
    v_lshlrev_b32 v{vPn}, 7, v{T+2}
    v_lshrrev_b32 v{T+3}, 1, v{T+3}
    v_lshl_add_u32 v{vPn}, v{T+3}, 6, v{vPn}
    v_bfe_u32 v{T+3}, v{vL}, 4, 1
    v_lshl_add_u32 v{vPn}, v{T+3}, 5, v{vPn}
    v_and_b32 v{T+3}, 1, v{vL}
    v_lshl_add_u32 v{vPn}, v{T+3}, 4, v{vPn}
    v_lshlrev_b32 v{vO8}, 3, v{T+3}
    v_bfe_u32 v{T+3}, v{vL}, 1, 1
    v_lshl_add_u32 v{vPn}, v{T+3}, 3, v{vPn}""")
    for l in traddr(0): a(l)
    a(f"""v_and_b32 v{T+2}, 31, v{vL}
    v_bfe_u32 v{T+3}, v{vL}, 1, 3
    v_lshrrev_b32 v{T+4}, 5, v{vL}
    v_xor_b32 v{T+3}, v{T+3}, v{T+4}
    v_lshlrev_b32 v{T+3}, 4, v{T+3}
    v_lshl_add_u32 v{T+3}, v{T+2}, 7, v{T+3}
    v_add_u32 v{vSR}, s{sXb}, v{T+3}
    v_xor_b32 v{vSR+1}, 32, v{vSR}
    v_xor_b32 v{vSR+2}, 64, v{vSR}
    v_xor_b32 v{vSR+3}, 96, v{vSR}
    v_add_u32 v{vSRs}, s{sXs}, v{T+3}
    v_xor_b32 v{vSRs+1}, 32, v{vSRs}
    v_xor_b32 v{vSRs+2}, 64, v{vSRs}
    v_xor_b32 v{vSRs+3}, 96, v{vSRs}
    v_lshlrev_b32 v{vStO}, 3, v{vL}
    v_add_u32 v{vStO}, s{sXs}, v{vStO}
    s_lshl_b32 s{sT0}, s{sRb}, 7
    s_lshl_b32 s{sT1}, s{sWave}, 5
    s_add_u32 s{sT0}, s{sT0}, s{sT1}
    v_add_u32 v{vSt}, s{sT0}, v{T+2}
    v_lshlrev_b32 v{vSt}, 4, v{vSt}
    v_lshl_add_u32 v{vSt}, v{T+4}, 15, v{vSt}
    v_mov_b32 v{vSum}, 0
    v_mov_b32 v{vSum+1}, 0""")
    pf.stamp()
    def xstats(j):
        for r in range(16):
            x = X + 16*j + r
            q = S + 2*(r % 2)
            first = (j == 0 and r < 2)
            a(f"v_dot2_f32_bf16 v{q}, v{x}, s{sOnes}, {'0' if first else 'v%d' % q}")
            a(f"v_dot2_f32_bf16 v{q+1}, v{x}, v{x}, {'0' if first else 'v%d' % (q+1)}")
    a(f"v_lshlrev_b32 v{vXw}, 4, v{vL}")
    a(f"v_add_u32 v{vXw}, s{sXb}, v{vXw}")
    issued = CFG.ka_xfirst
    for j in range(9):
        a(f"s_waitcnt vmcnt({4*(issued-1-j)})")
        if CFG.prof == 3: pf.stamp()
        if j >= 5:
            for rg in range(4):
                a(f"ds_write_b128 v{vXw}, {vr(X+16*j+4*rg,4)} offset:{(j%5)*4096+rg*1024}")
        for i in range(4):
            if j % 5 < 4: a(f"ds_read_b128 {vr(X+16*j+4*i,4)}, v{vSR+i} offset:{(j%5)*4096}")
            else: a(f"ds_read_b128 {vr(X+16*j+4*i,4)}, v{vSRs+i}")
        if issued < 9:
            xload(issued); issued += 1
        if j > 0:
            a(f"s_waitcnt lgkmcnt({8 if j >= 5 else 4})")
            a.lines.append(".p2align 3")
            xstats(j-1)
    a("s_waitcnt lgkmcnt(0)")
    a.lines.append(".p2align 3")
    xstats(8)
    pf.stamp()
    a(f"""v_add_f32 v{S}, v{S}, v{S+2}
    v_add_f32 v{S+1}, v{S+1}, v{S+3}
    s_mov_b32 s{sT0}, {f32(-1.0/576)}
    s_mov_b32 s{sT1}, {f32(1.0/576)}
    s_mov_b32 s{sT2}, {f32(KSC)}
    v_mov_b32 v{S+2}, v{S}
    v_mov_b32 v{S+3}, v{S+1}
    v_permlane32_swap_b32 v{S}, v{S+2}
    v_permlane32_swap_b32 v{S+1}, v{S+3}
    v_add_f32 v{S}, v{S}, v{S+2}
    v_add_f32 v{S+1}, v{S+1}, v{S+3}
    v_mul_f32 v{vNm}, s{sT0}, v{S}
    v_mul_f32 v{S+1}, s{sT1}, v{S+1}
    v_fma_f32 v{S+1}, -v{vNm}, v{vNm}, v{S+1}
    v_max_f32 v{S+1}, 0, v{S+1}
    v_add_f32 v{S+1}, {f32(EPS)}, v{S+1}
    v_rsq_f32 v{S+1}, v{S+1}
    s_mov_b32 s{sU}, 0
    s_mov_b32 s{sDc}, s{sDn}
    s_mov_b32 s{sDp}, s{sDn}
    v_mul_f32 v{vSc}, s{sT2}, v{S+1}""")
    CT = [W, W+2, W+4, W+6]
    def center(kk):
        o = []
        for r in range(4):
            x = X + 4*kk + r
            o.append(f"v_dot2_f32_bf16 v{CT[r]}, v{x}, s{sOlo}, v{vNm}")
            o.append(f"v_dot2_f32_bf16 v{CT[r]+1}, v{x}, s{sOhi}, v{vNm}")
        for r in range(4):
            o.append(f"v_cvt_pk_bf16_f32 v{X+4*kk+r}, v{CT[r]}, v{CT[r]+1}")
        return o
    def center_plain(kk):
        o = []
        for r in range(4):
            x = X + 4*kk + r
            o += [f"v_lshlrev_b32 v{CT[r]}, 16, v{x}", f"v_and_b32 v{CT[r]+1}, 0xffff0000, v{x}",
                  f"v_add_f32 v{CT[r]}, v{vNm}, v{CT[r]}", f"v_add_f32 v{CT[r]+1}, v{vNm}, v{CT[r]+1}",
                  f"v_cvt_pk_bf16_f32 v{x}, v{CT[r]}, v{CT[r]+1}"]
        return o
    NPRE = CFG.ka_npre
    a.lines.append(".p2align 3")
    for kk in range(NPRE):
        for l in center(kk): a(l)
    pf.stamp()
    a("s_barrier")
    pf.stamp()

    def reads(kk, t):
        st = kk % 3
        off = (kk % 18) * 2048
        return [f"ds_read_b64_tr_b16 {vr(FR+8*st+4*t+2*h,2)}, v{vA1 if t else vA0} offset:{off+512*h}" for h in range(2)]
    def reads_s(kk):
        return [f"ds_read_b64_tr_b16 {vr(FR+8*(kk%3)+2*h,2)}, v{vA0} offset:{kk*512+128*h}" for h in range(2)]
    def mfma(par, kk, t):
        st = kk % 3; acc = AC[par] + 16*t
        c = "0" if kk == 0 else vr(acc, 16)
        return f"v_mfma_f32_32x32x16_bf16 {vr(acc,16)}, {vr(FR+8*st+4*t,4)}, {vr(X+4*kk,4)}, {c}"
    def stores(E, m):
        if CFG.ka_nostore: return []
        return [f"s_add_u32 s{sSt}, s{sDp}, {2*m*OCT}",
                f"buffer_store_dwordx4 {vr(E+8*m,4)}, v{vSt}, s[{sZQ}:{sZQ+3}], s{sSt} offen {CFG.st_aux_a}"]
    def epi(kind, E, ne_=32, D=None):
        out = []
        order = list(range(ne_)) if D is None else list(range(16, 32)) + list(range(16))
        dst = (lambda p: E+(p//8)*8+(p%8)//2) if D is None else D
        if kind == "P":
            for e in range(32):
                out.append(f"v_mul_f32 v{E+e}, v{vSc}, v{E+e}")
                if e % 2 == 1 and e >= 3:
                    p = e - 3; out.append(f"v_cvt_pk_bf16_f32 v{E+(p//8)*8+(p%8)//2}, v{E+p}, v{E+p+1}")
            out.append(f"v_cvt_pk_bf16_f32 v{E+27}, v{E+30}, v{E+31}")
            return out
        def st(k, pos):
            w = E + order[pos]; t = T + pos % 6
            return [f"v_mul_f32 v{w}, v{vSc}, v{w}", f"v_fma_f32 v{t}, v{w}, v{w}, s{sDl}", f"v_mul_f32 v{t}, v{t}, v{w}",
                    f"v_exp_f32 v{t}, v{t}", f"v_add_f32 v{t}, 1.0, v{t}", f"v_rcp_f32 v{t}, v{t}", f"v_mul_f32 v{w}, v{t}, v{w}"][k]
        for i in range(ne_ + 7):
            for k in (6, 3, 0, 4, 1, 5, 2):
                e = i - k
                if 0 <= e < ne_: out.append(st(k, e))
            e = i - 7
            if 0 <= e < ne_ and e % 2 == 1:
                p = order[e - 1]; out.append(f"v_cvt_pk_bf16_f32 v{dst(p)}, v{E+p}, v{E+p+1}")
        return out
    def stats(E):
        out = []
        for m in range(4):
            for i in range(4):
                b = E + 8*m
                out.append(f"v_dot2_f32_bf16 v{vSum}, v{b+i}, s{sOnes}, v{vSum}")
                out.append(f"v_dot2_f32_bf16 v{vSum+1}, v{b+i}, v{b+i}, v{vSum+1}")
        return out
    DA = lambda p: AC[0] + 16 + ((p - 16) // 2 if p >= 16 else 8 + p // 2)
    def body(kind, par):
        E = AC[1 - par]
        if kind == "F":
            for l in reads(0, 0) + reads(0, 1) + reads(1, 0) + reads(1, 1): a(l)
        a.label(f"{N}_{kind}{par}")
        slots = []
        for kk in range(0, 36):
            lw = 4
            if kind == "S": lw = 2 if kk < 35 else 0
            if kind == "H" and kk == 35: lw = 2
            s0 = [f"s_waitcnt lgkmcnt({lw})", mfma(par, kk, 0)]
            s1 = [mfma(par, kk, 1)] if kind != "S" else []
            if kk == 0: s0 += [f"s_add_u32 s{sV}, s{sU}, 1"]
            if kk == 1 and kind != "F": s0 += ["s_barrier"]
            if (kind, par, kk) == (("P", 0, 33) if CFG.ka_fq < 0 else ("H", 1, CFG.ka_fq)):
                s0 += ["s_waitcnt vmcnt(0)", f"buffer_store_dword v14, v13, s[{sFQ}:{sFQ+3}], s{sFq} offen sc1"]
            if kk == 20 and kind == "P" and par == 0: s1 += ["ds_read_b32 v14, v12"]
            if kk == 34: s0 += ["s_barrier"]
            if kk + 2 == 18 and kind != "S":
                s0 += [f"v_add_u32 v{vA0}, {18*2048}, v{vA0}", f"v_add_u32 v{vA1}, {18*2048}, v{vA1}"]
            if kind == "S": s0 += reads_s(kk + 2) if kk < 34 else []
            elif kind == "H" and kk >= 34: s0 += reads_s(kk - 34)
            else: s0 += reads((kk+2) % 36, 0)
            if kind != "S" and (kind != "H" or kk < 34): s1 += reads((kk+2) % 36, 1)
            st0 = CFG.ka_pst if kind == "P" else 36 - CFG.ka_stpos
            if kind in "GP" and st0 <= kk < st0 + 4:
                s0 += stores(E, kk - st0)
            if kk == 33 and kind == "H":
                s1 += [f"v_lshrrev_b32 v{vA0}, 7, v{vPn}", f"v_and_b32 v{vA1}, 24, v{vPn}", f"v_lshl_add_u32 v{vA0}, v{vA0}, 5, v{vA1}"]
            elif kk == 33 and kind != "S": s1 += traddr(1 - par)
            slots += [s0, s1]
        if kind == "S":
            sl = [slots[2*i] + slots[2*i+1] for i in range(36)]
            out = sl[0] + spread(sl[1:], epi("H", E))
        elif kind == "F":
            ne = 2 * NPRE - 2
            out = spread(slots[:ne], sum([center_plain(kk) for kk in range(NPRE, 36)], []))
            out += interleave(slots[ne:-6], cparams()) + sum(slots[-6:], [])
        elif kind == "N":
            out = slots[0] + interleave(slots[1:20], cparams()) + sum(slots[20:], [])
        elif kind == "H":
            out = slots[0] + slots[1] + spread(slots[2:], epi(kind, E, D=DA))
        else:
            ep = epi(kind, E)
            ne = len(slots) - 2*CFG.ka_stpos + 4 if kind != "P" else 24
            out = slots[0] + spread(slots[1:ne], cparams() + ep) + sum(slots[ne:], [])
        for l in out:
            if CFG.prof == 4 and kind in "PH" and l in (mfma(par, 12, 0), mfma(par, 18, 0), mfma(par, 33, 0), mfma(par, 34, 0), mfma(par, 34, 1)): pf.stamp()
            a(l)
        if kind == "G":
            a.lines.append(".p2align 3")
            for l in stats(E): a(l)
            a(f"ds_write_b64 v{vStO}, {vr(vSum,2)}")
        a(f"s_mov_b32 s{sDp}, s{sDc}")
        a(f"s_mov_b32 s{sDc}, s{sDn}")
        a(f"s_mov_b32 s{sU}, s{sV}")
        pf.stamp()
    body("F", 0); body("G", 1); body("G", 0)
    a(f"s_cmp_lt_u32 s{sNz2}, 3")
    a(f"s_cbranch_scc1 {N}_P1")
    E2 = AC[0]
    a("s_nop 7")
    for l in epi("G", E2):
        a(l)
        for m in range(4):
            if l.startswith(f"v_cvt_pk_bf16_f32 v{E2+8*m+3},"):
                for x in stores(E2, m): a(x)
    a.lines.append(".p2align 3")
    for l in stats(E2): a(l)
    a(f"ds_write_b64 v{vStO}, {vr(vSum,2)}")
    a("s_waitcnt lgkmcnt(0)")
    pf.stamp()
    body("N", 1)
    a(f"s_branch {N}_P0")
    body("P", 1); body("P", 0); body("H", 1); body("S", 0)
    src = {0: AC[0] + 24, 1: AC[0] + 28, 2: AC[0] + 16, 3: AC[0] + 20, 4: AC[1], 5: AC[1] + 8, 6: AC[1] + 16, 7: AC[1] + 24}
    for m in range(8):
        for r in range(4): a(f"v_mov_b32 v{Z1B+4*m+r}, v{src[m]+r}")
    tl = epi("H", AC[0], 8)
    sw = []
    for i in range(4):
        for r in range(4): sw.append(f"v_permlane32_swap_b32 v{Z1B+8*i+r}, v{Z1B+8*i+4+r}")
        for r in range(4): sw.append(f"v_permlane16_swap_b32 v{Z1B+8*i+r}, v{Z1B+8*i+4+r}")
    for l in interleave([[x] for x in tl], sw): a(l)
    for r in range(4): a(f"v_mov_b32 v{Z1B+32+r}, v{AC[0]+r}")
    for r in range(2): a(f"v_permlane16_swap_b32 v{Z1B+32+r}, v{Z1B+34+r}")
    pf.stamp()
    a(f"s_branch {N}_At")
    a.label(f"{N}_prod")
    vD, vDin, vDq, vPi, vPq, vWo, vT, vZero, vTg = 2, 6, 7, 8, 9, 10, 20, 11, 24
    sIsT, sSo2 = 63, 50
    a(f"v_mov_b32 v{vZero}, 0")
    WU, P, MH, ML, C, TT = 128, 32, 96, 100, 104, 112
    sWS, sWP, sCP, sDB, sFL = 12, 24, 4, 8, 64
    sPc = sXr + 2
    if CFG.ka_prio: a(f"s_setprio {CFG.ka_prio}")
    a(f"s_cmp_lg_u32 s{sWave}, 4")
    a(f"s_cbranch_scc1 {N}_nopf1")
    code_prefetch(a, 88, vT, vL, N)
    a.label(f"{N}_nopf1")
    if CFG.ka_xpf:
        a(f"""s_sub_u32 s{sT1}, s{sWave}, 4
        s_lshl_b32 s{sT1}, s{sT1}, 5
        s_lshl_b32 s{sT0}, s{sRb}, 7
        s_add_u32 s{sT0}, s{sT0}, s{sT1}
        s_mul_i32 s{sT0}, s{sT0}, 1152
        v_lshrrev_b32 v{vT}, 2, v{vL}
        v_mul_u32_u24 v{vT}, 1152, v{vT}
        v_and_b32 v{vT+1}, 3, v{vL}
        v_lshl_add_u32 v{vT}, v{vT+1}, 7, v{vT}
        s_add_u32 s{sT1}, s{sT0}, {16*1152}
        s_waitcnt lgkmcnt(0)""")
        a.srd(sX, 4, 5, 2048 * 1152)
        a(f"buffer_load_dword v{vT+1}, v{vT}, s[{sX}:{sX+3}], s{sT0} offen offset:640")
        a(f"buffer_load_dword v{vT+2}, v{vT}, s[{sX}:{sX+3}], s{sT1} offen offset:640")
    a(unit_lists)
    a(f"""s_sub_u32 s{sPw}, s{sWave}, 4
    s_and_b32 s{sPc}, s{sPw}, 1
    s_mov_b32 s{sP8i}, {8*9216}
    s_mov_b32 s{sP8q}, {8*3456}
    v_lshrrev_b32 v{T+2}, 2, v{vL}
    v_and_b32 v{T+2}, 4, v{T+2}
    v_xor_b32 v{T+2}, v{T+2}, v{T+1}
    v_lshlrev_b32 v{T+2}, 4, v{T+2}
    v_mul_u32_u24 v{vDin}, 9216, v{T}
    v_add_u32 v{vDin}, v{vDin}, v{T+2}
    v_mul_u32_u24 v{vDq}, 3456, v{T}
    v_add_u32 v{vDq}, v{vDq}, v{T+2}
    v_lshlrev_b32 v{vWo}, 12, v{T}
    v_lshl_add_u32 v{vWo}, v{T+1}, 4, v{vWo}
    s_and_b32 s{sT0}, s{sRb}, {(1<<RBL)-1}
    s_mul_i32 s{sT0}, s{sT0}, {576>>RBL}
    s_mul_i32 s{sT1}, s{sPw}, {144>>RBL}
    s_add_u32 s{sT0}, s{sT0}, s{sT1}
    v_min_u32 v{T+2}, {(144>>RBL)-1}, v{vL}
    v_add_u32 v{T+2}, s{sT0}, v{T+2}
    v_mul_u32_u24 v{vPi}, 9216, v{T+2}
    v_mul_u32_u24 v{vPq}, 3456, v{T+2}""")
    a("s_waitcnt lgkmcnt(0)")
    a.srd(sWI, 8, 9, 576 * 9216)
    a.srd(sWQ, 6, 7, 576 * 3456)
    a(f"s_mov_b32 s{sDM+3}, 0x00020000")
    a.srd(sWS, 10, 11, 2048 * 4096)
    a.srd_off(sWP, 98, 99, CFG.ws_base + WP_OFF, WP_SZ)
    a.srd_off(sST, 98, 99, CFG.ws_base + ST_OFF, ST_SZ)
    a.srd_off(sCP, 98, 99, CFG.ws_base + CP_OFF, CP_SZ)
    a.srd(sDB, 96, 97, 256)
    a.srd_off(sFL, 98, 99, CFG.ws_base + FL_OFF, FL_SZ)
    a(f"""s_lshl_b32 s{sIsT}, s2, 3
    s_or_b32 s{sIsT}, s{sIsT}, s{sPw}
    v_mov_b32 v{vTg}, {FL_TAG}
    s_cmp_lg_u32 s{sIsT}, 0
    s_cbranch_scc1 {N}_notag
    buffer_load_dword v{vTg+1}, v{vTg}, s[{sFL}:{sFL+3}], 0 offen sc1""")
    a.label(f"{N}_notag")
    def pparams():
        a(f"""s_add_u32 s{sT0}, s{sZ2s}, s{sV}
        s_lshl_b32 s{sT0}, s{sT0}, 7
        s_lshl_b32 s{sT1}, s{sV}, 7
        s_add_u32 s{sT1}, s{sT1}, s{sZ1m}
        s_add_u32 s{sT2}, s{sQm}, s{sV}
        s_min_u32 s{sT2}, s{sT2}, 26
        s_lshl_b32 s{sT2}, s{sT2}, 7
        s_cmp_lt_u32 s{sV}, s{sNz2}
        s_cselect_b32 s{sUn}, s{sT0}, s{sT1}
        s_cmp_eq_u32 s{sV}, 6
        s_cselect_b32 s{sUn}, s{sHu}, s{sUn}
        s_sub_u32 s{sT0}, s{sV}, s{sNz2}
        s_sub_u32 s{sT1}, 4, s{sNz2}
        s_cmp_ge_u32 s{sT0}, s{sT1}
        s_cselect_b32 s{sUn}, s{sUn}, s{sT2}
        s_cselect_b64 s[{sMq}:{sMq+1}], 0, -1
        s_cselect_b64 s[{sDM}:{sDM+1}], s[{sWI}:{sWI+1}], s[{sWQ}:{sWQ+1}]
        s_cselect_b32 s{sDM+2}, s{sWI+2}, s{sWQ+2}
        s_cselect_b32 s{sP8}, s{sP8i}, s{sP8q}
        s_cmp_lt_u32 s{sV}, 7
        s_cselect_b32 s{sUn}, s{sUn}, 0x7f000000""")
    def issue(nw=4):
        pparams()
        a(f"""v_cndmask_b32 v{vD}, v{vDin}, v{vDq}, s[{sMq}:{sMq+1}]
        s_sub_u32 s{sDvs}, s{sP8}, 1024
        s_lshl_b32 s{sDstep}, s{sP8}, 1
        s_mul_i32 s{sDma}, s{sDstep}, s{sPw}
        s_add_u32 s{sDma}, s{sDma}, s{sUn}
        s_mul_i32 s{sDstep}, s{sDstep}, {nw}
        v_add_u32 v{vD+1}, s{sDvs}, v{vD}
        s_lshl_b32 s{sT0}, s{sPw}, 11
        s_add_u32 m0, s{sBufN}, s{sT0}
        s_sub_u32 s{sBufN}, {UB}, s{sBufN}
        s_add_u32 s{sV}, s{sV}, 1""")
        for i in range(36 // nw):
            for j in range(2):
                a(f"buffer_load_dwordx4 v{vD+j}, s[{sDM}:{sDM+3}], s{sDma} offen offset:{1024*j} lds")
            if i < 36 // nw - 1:
                a(f"s_add_u32 m0, m0, {2048*nw}")
                a(f"s_add_u32 s{sDma}, s{sDma}, s{sDstep}")
    a(f"s_mov_b32 s{sV}, 0")
    a(f"s_mov_b32 s{sBufN}, 0")
    if CFG.ka_xbar >= 0: a("s_barrier")
    issue()
    def l2pf(d=CFG.ka_l2pf-1):
        if d: a(f"s_add_u32 s{sV}, s{sV}, {d}")
        pparams()
        if d: a(f"s_sub_u32 s{sV}, s{sV}, {d}")
        a(f"v_cndmask_b32 v{vT+3}, v{vPi}, v{vPq}, s[{sMq}:{sMq+1}]")
        a(f"buffer_load_dword v14, v{vT+3}, s[{sDM}:{sDM+3}], s{sUn} offen {CFG.ka_pf_aux}")
    npf = 1 if CFG.ka_l2pf else 0
    for d in range(CFG.ka_pf0): l2pf(d)
    if CFG.ka_spf:
        a(f"""s_mul_i32 s{sXr}, s{sRb}, 36
        s_mul_i32 s{sT0}, s{sPw}, 9
        s_add_u32 s{sXr}, s{sXr}, s{sT0}""")
        a.label(f"{N}_spf")
        pparams()
        a(f"""s_lshr_b32 s{sT0}, s{sP8}, 3
        s_mul_i32 s{sT1}, s{sT0}, s{sXr}
        s_add_u32 s{sT1}, s{sT1}, s{sUn}
        s_add_u32 s96, s{sDM}, s{sT1}
        s_addc_u32 s97, s{sDM+1}, 0
        s_mov_b32 s{sT1}, 0""")
        for r in range(9):
            a(f"s_load_dword s{[98,94][r%2]}, s[96:97], s{sT1}")
            a(f"s_load_dword s{[99,95][r%2]}, s[96:97], s{sT1} offset:64")
            if r < 8: a(f"s_add_u32 s{sT1}, s{sT1}, s{sT0}")
        a(f"""s_add_u32 s{sV}, s{sV}, 1
        s_cmp_lt_u32 s{sV}, s{sN}
        s_cbranch_scc1 {N}_spf
        s_mov_b32 s{sV}, 1""")
    a(f"""s_lshl_b32 s{sXr}, s{sCg}, 19
    s_lshl_b32 s{sT0}, s{sRb}, 8
    s_add_u32 s{sXr}, s{sXr}, s{sT0}
    s_lshl_b32 s{sT0}, s{sPc}, 7
    s_add_u32 s{sXr}, s{sXr}, s{sT0}
    s_mov_b32 s{sXr+1}, s{sXr}""")
    a(f"s_waitcnt vmcnt({CFG.ka_pf0})")
    for d in range(CFG.ka_pf0, CFG.ka_l2pf): l2pf(d)
    a(f"""s_cmp_lg_u32 s{sIsT}, 0
    s_cbranch_scc1 {N}_notag2
    v_add_u32 v{vTg+1}, 1, v{vTg+1}
    v_max_u32 v{vTg+1}, 1, v{vTg+1}
    buffer_store_dword v{vTg+1}, v{vTg}, s[{sFL}:{sFL+3}], 0 offen sc1""")
    a.label(f"{N}_notag2")
    pf.stamp()
    a("s_barrier")
    if CFG.ka_prio2: a(f"s_setprio {CFG.ka_prio2}")
    def special(v):
        l = a.newlabel(N + "_sp")
        a(f"s_cmp_lg_u32 s{sV}, {v}")
        a(f"s_cbranch_scc1 {l}")
        return l
    a.label(f"{N}_ploop")
    nopub = a.newlabel(N + "_nopub")
    a(f"s_cmp_lg_u32 s{sV}, 4")
    a(f"s_cbranch_scc1 {nopub}")
    a(f"s_cmp_lg_u32 s{sPw}, 0")
    a(f"s_cbranch_scc1 {nopub}")
    a(f"""v_lshrrev_b32 v{vT}, 5, v{vL}
    v_and_b32 v{vT+1}, 31, v{vL}
    v_lshlrev_b32 v{vT}, 12, v{vT}
    v_lshl_add_u32 v{vT}, v{vT+1}, 3, v{vT}
    v_add_u32 v{vT}, {STG}, v{vT}
    ds_read_b64 {vr(P,2)}, v{vT}
    ds_read_b64 {vr(P+8,2)}, v{vT} offset:256
    ds_read_b64 {vr(P+4,2)}, v{vT} offset:8192
    ds_read_b64 {vr(P+10,2)}, v{vT} offset:{8192+256}
    v_lshlrev_b32 v{vT+1}, 4, v{vL}
    s_lshl_b32 s{sT0}, s{sRb}, 4
    s_add_u32 s{sT0}, s{sT0}, s{sCg}
    s_lshl_b32 s{sT0}, s{sT0}, 11
    v_mov_b32 v{P+2}, s{sTag}
    v_mov_b32 v{P+3}, s{sTag}
    v_mov_b32 v{P+6}, s{sTag}
    v_mov_b32 v{P+7}, s{sTag}
    s_waitcnt lgkmcnt(0)
    v_add_f32 v{P}, v{P}, v{P+8}
    v_add_f32 v{P+1}, v{P+1}, v{P+9}
    v_add_f32 v{P+4}, v{P+4}, v{P+10}
    v_add_f32 v{P+5}, v{P+5}, v{P+11}
    buffer_store_dwordx4 {vr(P,4)}, v{vT+1}, s[{sST}:{sST+3}], s{sT0} offen sc1
    buffer_store_dwordx4 {vr(P+4,4)}, v{vT+1}, s[{sST}:{sST+3}], s{sT0} offen offset:1024 sc1""")
    a.label(nopub)
    issue()
    if npf: l2pf()
    l3 = a.newlabel(N + "_l"); l4 = a.newlabel(N + "_l")
    l = special(2)
    a(f"s_cmp_lt_u32 s{sPw}, 2")
    a(f"s_cbranch_scc1 {N}_s0b")
    for i in range(16):
        a(f"buffer_load_dwordx4 {vr(WU+8*i+4,4)}, v{vWo}, s[{sWS}:{sWS+3}], s{sXr+1} offen {CFG.ka_wsp_aux}")
        a(f"s_add_u32 s{sXr+1}, s{sXr+1}, 32768")
    a(f"s_waitcnt vmcnt({16+npf})")
    a(f"s_branch {l3}")
    a.label(f"{N}_s0b")
    a(f"""v_mov_b32 v{vT+1}, {TAG_LDS-8}
    ds_write_b32 v{vT+1}, v{vZero}
    ds_write_b32 v{vT+1}, v{vZero} offset:4
    s_waitcnt vmcnt({npf}) lgkmcnt(0)
    s_cmp_lg_u32 s{sIsT}, 0
    s_cbranch_scc1 {l3}
    buffer_store_dword v{vTg+1}, v{vZero}, s[{sDB}:{sDB+3}], 0 offen sc1""")
    a(f"s_branch {l3}")
    a.label(l)
    l = special(4)
    a(f"s_mov_b32 s{sT1}, {CFG.bound}")
    a.label(f"{N}_ptag")
    a(f"""buffer_load_dword v{vT+2}, v{vZero}, s[{sDB}:{sDB+3}], 0 offen sc1
    s_waitcnt vmcnt(0)
    v_readfirstlane_b32 s{sTag}, v{vT+2}
    v_mov_b32 v{vT+1}, {TAG_LDS}
    ds_write_b32 v{vT+1}, v{vT+2}
    s_waitcnt lgkmcnt(0)
    s_sub_u32 s{sT1}, s{sT1}, 1
    s_cmp_eq_u32 s{sT1}, 0
    s_cbranch_scc1 {l3}
    s_cmp_lg_u32 s{sTag}, 0
    s_cbranch_scc1 {l3}
    s_sleep 8
    s_branch {N}_ptag""")
    a.label(l)
    a(f"s_cmp_lt_u32 s{sPw}, 2")
    a(f"s_cbranch_scc1 {l4}")
    l = special(5)
    for i in range(16):
        for r in range(4):
            x = WU + 8*i + 4 + r
            a(f"v_lshlrev_b32 v{WU+8*i+2*r}, 16, v{x}")
            a(f"v_and_b32 v{WU+8*i+2*r+1}, 0xffff0000, v{x}")
    sTry = sXr + 3
    a(f"""v_lshlrev_b32 v{vT}, 4, v{vL}
    s_lshl_b32 s{sT0}, s{sRb}, 15
    s_lshl_b32 s{sT1}, s{sPc}, 10
    s_add_u32 s{sSo2}, s{sT0}, s{sT1}
    s_mov_b32 s{sTry}, {CFG.bound}
    s_waitcnt vmcnt({npf})""")
    def full(aux="sc1"):
        a(f"s_mov_b32 s{sT0}, s{sSo2}")
        for i in range(16):
            a(f"buffer_load_dwordx4 {vr(P+4*i,4)}, v{vT}, s[{sST}:{sST+3}], s{sT0} offen offset:{(i%2)*2048} {aux}")
            if i % 2 == 1: a(f"s_add_u32 s{sT0}, s{sT0}, 4096")
    a("s_barrier")
    full(CFG.ka_st_aux)
    a("s_barrier")
    a(f"s_branch {N}_job")
    a.label(l)
    a.label(l4)
    a(f"s_waitcnt vmcnt({npf})")
    a.label(l3)
    if CFG.prof == 4: pf.stamp()
    a("s_barrier")
    if CFG.prof == 4: pf.stamp()
    a("s_barrier")
    a(f"s_cmp_lt_u32 s{sV}, 5")
    a(f"s_cbranch_scc1 {N}_ploop")
    issue(2)
    if CFG.codepf2 & 1:
        a(f"s_cmp_lg_u32 s{sPw}, 0")
        a(f"s_cbranch_scc1 {N}_nopf3")
        code_prefetch(a, 88, 26, vL, N)
        a.label(f"{N}_nopf3")
    a(f"""v_lshrrev_b32 v{vD}, 1, v{vL}
    v_mul_u32_u24 v{vD}, 9216, v{vD}
    v_and_b32 v{vD+1}, 1, v{vL}
    v_lshl_add_u32 v{vD}, v{vD+1}, 4, v{vD}
    s_mul_i32 s{sDma}, s{sPw}, {32*9216}
    s_add_u32 s{sDma}, s{sDma}, s{sHu}
    s_lshl_b32 s{sT0}, s{sPw}, 10
    s_mov_b32 m0, s{sT0}
    s_waitcnt vmcnt(0)""")
    if CFG.prof == 4: pf.stamp()
    a("""s_barrier
    s_barrier""")
    if CFG.prof == 4: pf.stamp()
    for i in range(9):
        a(f"buffer_load_dwordx4 v{vD}, s[{sWI}:{sWI+3}], s{sDma} offen lds")
        if i < 8:
            a("s_add_u32 m0, m0, 2048")
            a(f"s_add_u32 s{sDma}, s{sDma}, {64*9216}")
    a(f"s_branch {N}_Bh")
    a.label(f"{N}_job")
    if CFG.ka_prio2: a(f"s_setprio {CFG.ka_prioj}")
    pf.stamp()
    sSt8 = sXr + 1
    def d5():
        l = a.newlabel(N + "_d5")
        a(f"""s_cmp_lg_u32 s{sSt8}, 0
        s_cbranch_scc1 {l}
        s_mov_b32 s{sSt8}, 1
        s_barrier
        s_barrier""")
        a.label(l)
    a(f"s_mov_b32 s{sSt8}, 0")
    a(f"s_branch {N}_pst_w")
    a.label(f"{N}_pst")
    d5()
    a("s_sleep 8")
    full()
    a.label(f"{N}_pst_w")
    a("s_waitcnt vmcnt(0)")
    for i in range(16): a(f"v_xor_b32 v{P+4*i+2}, s{sTag}, v{P+4*i+2}")
    for i in range(1, 16): a(f"v_or_b32 v{P+2}, v{P+2}, v{P+4*i+2}")
    a(f"""v_cmp_ne_u32 vcc, 0, v{P+2}
    s_sub_u32 s{sTry}, s{sTry}, 1
    s_cmp_eq_u32 s{sTry}, 0
    s_cbranch_scc1 {N}_pst_ok
    s_cmp_lg_u64 vcc, 0
    s_cbranch_scc1 {N}_pst""")
    a.label(f"{N}_pst_ok")
    pf.stamp()
    a(f"""v_lshlrev_b32 v{vT}, 3, v{vL}
    s_lshl_b32 s{sT1}, s{sPw}, 9
    s_add_u32 s{sT1}, s{sT1}, {STG+4096+2048}
    v_add_u32 v{vT}, s{sT1}, v{vT}
    v_lshlrev_b32 v{vT+1}, 6, v{T+1}
    v_add_u32 v{vT+1}, s{sT1}, v{vT+1}
    s_mov_b32 s{sT0}, {f32(1.0/2304)}
    s_mov_b32 s{sT2}, {f32(1.0/abs(KSC))}""")
    for i in range(1, 16):
        a(f"v_add_f32 v{P}, v{P}, v{P+4*i}")
        a(f"v_add_f32 v{P+1}, v{P+1}, v{P+4*i+1}")
    a(f"""v_mul_f32 v{P}, s{sT0}, v{P}
    v_mul_f32 v{P+1}, s{sT0}, v{P+1}
    v_fma_f32 v{P+1}, -v{P}, v{P}, v{P+1}
    v_max_f32 v{P+1}, 0, v{P+1}
    v_add_f32 v{P+1}, {f32(EPS*KSC*KSC)}, v{P+1}
    v_rsq_f32 v{P+1}, v{P+1}
    v_mul_f32 v{P+1}, s{sT2}, v{P+1}
    ds_write_b64 v{vT}, {vr(P,2)}""")
    for q in range(4):
        a(f"ds_read_b128 {vr(P+4*q,4)}, v{vT+1} offset:{16*q}")
    a("s_waitcnt lgkmcnt(0)")
    for i in range(16):
        for r in range(8): a(f"v_mul_f32 v{WU+8*i+r}, v{P+2*r+1}, v{WU+8*i+r}")
        for r in range(4): a(f"v_cvt_pk_bf16_f32 v{WU+8*i+r}, v{WU+8*i+2*r}, v{WU+8*i+2*r+1}")
        if i < CFG.ka_early:
            a(f"buffer_store_dwordx4 {vr(WU+8*i,4)}, v{vWo}, s[{sWP}:{sWP+3}], s{sXr} offen sc1")
            a(f"s_add_u32 s{sXr}, s{sXr}, 32768")
    d5()
    for i in range(CFG.ka_early, 16):
        if i == CFG.ka_d6:
            a("s_barrier"); a("s_barrier")
        a(f"buffer_store_dwordx4 {vr(WU+8*i,4)}, v{vWo}, s[{sWP}:{sWP+3}], s{sXr} offen sc1")
        a(f"s_add_u32 s{sXr}, s{sXr}, 32768")
    pf.stamp()
    a(f"""s_lshl_b32 s{sXr}, s{sCg}, 7
    s_lshl_b32 s{sT1}, s{sRb}, 3
    s_add_u32 s{sXr}, s{sXr}, s{sT1}
    s_lshl_b32 s{sT1}, s{sPc}, 2
    s_add_u32 s{sXr}, s{sXr}, s{sT1}
    v_mov_b32 v{vTg}, s{sTag}""")
    fw = f"""s_waitcnt vmcnt(0)
    buffer_store_dword v{vTg}, v{vZero}, s[{sFL}:{sFL+3}], s{sXr} offen offset:{FL_W} sc1"""
    if CFG.ka_fwe: a(fw)
    if CFG.ka_d6 > 15:
        a("s_barrier")
        a("s_barrier")
    if CFG.ka_d7: a("s_barrier")
    if not CFG.ka_fwe: a(fw)
    pf.stamp()
    if not CFG.ka_d7: a("s_barrier")
    C2 = 48
    for p in range(4): a(f"v_cvt_pk_bf16_f32 v{MH+p}, v{P+4*p}, v{P+4*p+2}")
    for p in range(4):
        a(f"v_lshlrev_b32 v{TT}, 16, v{MH+p}")
        a(f"v_and_b32 v{TT+1}, 0xffff0000, v{MH+p}")
        a(f"v_sub_f32 v{TT}, v{P+4*p}, v{TT}")
        a(f"v_sub_f32 v{TT+1}, v{P+4*p+2}, v{TT+1}")
        a(f"v_cvt_pk_bf16_f32 v{ML+p}, v{TT}, v{TT+1}")
    a.lines.append(".p2align 3")
    for i in range(0, 16, 2):
        for r in range(4):
            for q in range(2):
                a(f"v_dot2_f32_bf16 v{C2+i+q}, v{WU+8*(i+q)+r}, v{MH+r}, {'0' if r==0 else 'v%d'%(C2+i+q)}")
            for q in range(2):
                a(f"v_dot2_f32_bf16 v{C2+i+q}, v{WU+8*(i+q)+r}, v{ML+r}, v{C2+i+q}")
    for ctrl in ["quad_perm:[1,0,3,2]", "quad_perm:[2,3,0,1]", "row_half_mirror"]:
        for q in range(16):
            a(f"v_add_f32_dpp v{C2+q}, v{C2+q}, v{C2+q} {ctrl} row_mask:0xf bank_mask:0xf")
    for i in range(1, 8):
        a(f"v_cmp_eq_u32 vcc, {i}, v{T+1}")
        a(f"v_cndmask_b32 v{C2}, v{C2}, v{C2+i}, vcc")
        a(f"v_cndmask_b32 v{C2+8}, v{C2+8}, v{C2+8+i}, vcc")
    a(f"""v_lshlrev_b32 v{vT}, 2, v{T}
    v_lshl_add_u32 v{vT}, v{T+1}, 5, v{vT}
    s_lshl_b32 s{sT0}, s{sCg}, 9
    s_lshl_b32 s{sT1}, s{sRb}, 14
    s_add_u32 s{sT0}, s{sT0}, s{sT1}
    s_lshl_b32 s{sT1}, s{sPc}, 13
    s_add_u32 s{sT0}, s{sT0}, s{sT1}
    buffer_store_dword v{C2}, v{vT}, s[{sCP}:{sCP+3}], s{sT0} offen sc1
    buffer_store_dword v{C2+8}, v{vT}, s[{sCP}:{sCP+3}], s{sT0} offen offset:256 sc1
    s_branch {N}_Bh""")

class Attn:
    KV, Q, LG, PH, O = 88, 184, 196, 60, 68
    vQo, vRd = 245, 246
    def __init__(self, a, sZQ, sUO, sT):
        self.a, self.sZQ, self.sUO, self.sT = a, sZQ, sUO, sT
    def base(self, sD, sT):
        self.a(f"""s_and_b32 s{sD}, s2, 7
        s_mul_i32 s{sD}, s{sD}, {9*OCT}
        s_lshr_b32 s{sT}, s2, 3
        s_lshl_b32 s{sT}, s{sT}, 10
        s_add_u32 s{sD}, s{sD}, s{sT}""")
    def kv_prep(self, vDo, TM):
        a = self.a
        for n in range(4):
            a(f"v_add_u32 v{TM}, {64*n}, v1")
            a(f"v_mul_u32_u24 v{TM+1}, 3277, v{TM}")
            a(f"v_lshrrev_b32 v{TM+1}, 18, v{TM+1}")
            a(f"v_mul_u32_u24 v{TM+2}, 80, v{TM+1}")
            a(f"v_sub_u32 v{TM}, v{TM}, v{TM+2}")
            a(f"v_lshlrev_b32 v{TM}, 4, v{TM}")
            a(f"v_lshl_add_u32 v{vDo+n}, v{TM+1}, 15, v{TM}")
            if n: a(f"v_subrev_u32 v{vDo+n}, {1024*n}, v{vDo+n}")
    def stage(self, heads, vDo, vZ, sB, sL, sT):
        a, sZQ = self.a, self.sZQ
        for kv in (0, 2, 1):
            for w in heads:
                if kv < 2:
                    a(f"s_add_u32 m0, s{sL}, {12288*w+4096*kv}")
                    a(f"s_add_u32 s{sT}, s{sB}, {(576+72+72*kv+(9*w>>2))*OCT-256}")
                    for n in range(4):
                        a(f"buffer_load_dwordx4 v{vDo+n}, s[{sZQ}:{sZQ+3}], s{sT} offen offset:{1024*n} lds")
                else:
                    for j in range(3):
                        a(f"s_add_u32 m0, s{sL}, {12288*w+8192+1024*j}")
                        a(f"s_add_u32 s{sT}, s{sB}, {(576+(9*w>>2)+j)*OCT}")
                        a(f"buffer_load_dwordx4 v{vZ}, s[{sZQ}:{sZQ+3}], s{sT} offen lds")
    def setup(self, sWave, sL):
        a, sT = self.a, self.sT
        self.base(sT, sT+1)
        a(f"""s_mul_i32 s{sT+1}, s{sWave}, 9
        s_lshr_b32 s{sT+1}, s{sT+1}, 2
        s_add_u32 s{sT+1}, s{sT+1}, 288
        s_lshl_b32 s{sT+1}, s{sT+1}, 15
        s_add_u32 s{sT}, s{sT}, s{sT+1}
        v_lshlrev_b32 v{self.vQo}, 4, v1
        s_mul_i32 s{sT+5}, s{sWave}, 12288
        s_add_u32 s{sT+5}, s{sT+5}, s{sL}
        s_add_u32 s{sT+5}, s{sT+5}, 32
        v_add_u32 v{self.vRd}, s{sT+5}, v{self.vQo}
        s_lshr_b32 s{sT+4}, s2, 3
        s_lshl_b32 s{sT+4}, s{sT+4}, 6
        v_add_u32 v16, s{sT+4}, v1
        v_mov_b32 v17, 0xff800000""")
        for w in range(1, 8):
            a(f"v_cmp_le_u32 s[{40+2*w}:{41+2*w}], {2*w}, v16")
        sc = (18 ** -0.5) * math.log2(math.e) / (KSC * KSC)
        a(f"s_mov_b32 s{sT+4}, {f32(sc)}")
        a(f"s_mov_b32 s{sT+5}, {f32(KSC)}")
    def reads(self):
        a = self.a
        for j in range(3):
            a(f"ds_read_b128 {vr(self.Q+4*j,4)}, v{self.vRd} offset:{8192-32+1024*j}")
        self.rd(0)
    def rd(self, base):
        for w in range(8):
            for j in range(3):
                self.a(f"ds_read_b128 {vr(self.KV+12*w+4*j,4)}, v{self.vRd} offset:{base+j*1280+224-32*w}")
    def compute(self, do):
        a, sT, KV, Q, LG, PH, O = self.a, self.sT, self.KV, self.Q, self.LG, self.PH, self.O
        for w0 in range(0, 8, 2):
            a(f"s_waitcnt lgkmcnt({min(15, 24-3*(w0+2))})")
            a.lines.append(".p2align 3")
            for i in range(9):
                for w in (w0, w0+1):
                    c = "0" if i == 0 else f"v{LG+w}"
                    a(f"v_dot2_f32_bf16 v{LG+w}, v{Q+do+i}, v{KV+12*w+do+i}, {c}")
        self.rd(4096)
        for w in range(1, 8):
            a(f"v_cndmask_b32 v{LG+w}, v17, v{LG+w}, s[{40+2*w}:{41+2*w}]")
        g = LG; m = 18; s = 19
        a(f"v_max3_f32 v{m}, v{g}, v{g+1}, v{g+2}")
        a(f"v_max3_f32 v{m}, v{m}, v{g+3}, v{g+4}")
        a(f"v_max3_f32 v{m}, v{m}, v{g+5}, v{g+6}")
        a(f"v_max_f32 v{m}, v{m}, v{g+7}")
        for w in range(8): a(f"v_sub_f32 v{g+w}, v{g+w}, v{m}")
        for w in range(8): a(f"v_mul_f32 v{g+w}, s{sT+4}, v{g+w}")
        for w in range(8): a(f"v_exp_f32 v{g+w}, v{g+w}")
        for w in range(8): a(f"v_cvt_pk_bf16_f32 v{g+w}, v{g+w}, 0")
        for w in range(8): a(f"v_lshlrev_b32 v{PH+w}, 16, v{g+w}")
        a(f"v_add_f32 v{s}, v{PH}, v{PH+1}")
        for w in range(2, 8): a(f"v_add_f32 v{s}, v{s}, v{PH+w}")
        a(f"v_mul_f32 v{s}, s{sT+5}, v{s}")
        a(f"v_rcp_f32 v{s}, v{s}")
        for w in range(8):
            if w % 2 == 0:
                a(f"s_waitcnt lgkmcnt({min(15, 24-3*(w+2))})")
                a.lines.append(".p2align 3")
            for d in range(9):
                c0 = "0" if w == 0 else f"v{O+2*d}"
                c1 = "0" if w == 0 else f"v{O+2*d+1}"
                a(f"v_dot2_f32_bf16 v{O+2*d}, v{KV+12*w+do+d}, v{LG+w}, {c0}")
                a(f"v_dot2_f32_bf16 v{O+2*d+1}, v{KV+12*w+do+d}, v{PH+w}, {c1}")
        for d in range(18): a(f"v_mul_f32 v{O+d}, v{s}, v{O+d}")
        for d in range(9): a(f"v_cvt_pk_bf16_f32 v{Q+do+d}, v{O+2*d}, v{O+2*d+1}")
        for j in range(3):
            lo, hi = max(do, 4*j), min(do + 9, 4*j + 4)
            while lo < hi:
                n = 1 if lo % 2 else hi - lo
                sfx = {1: "dword", 2: "dwordx2", 3: "dwordx3", 4: "dwordx4"}[n]
                a(f"buffer_store_{sfx} {vr(Q+lo,n)}, v{self.vQo}, s[{self.sUO}:{self.sUO+3}], s{sT} offen offset:{4*(lo-4*j)} sc1")
                lo += n
            if j < 2: a(f"s_add_u32 s{sT}, s{sT}, {OCT}")

UB = 73728
def c_tile(a, sRb, sCg, sT):
    a(f"""s_and_b32 s{sT}, s2, 7
    s_lshr_b32 s{sT+1}, s2, 3
    s_mul_i32 s{sT+2}, s{sT}, 29
    s_min_u32 s{sT}, s{sT}, 2
    s_add_u32 s{sT+2}, s{sT+2}, s{sT}
    s_add_u32 s{sT+2}, s{sT+2}, s{sT+1}
    s_mul_i32 s{sRb}, s{sT+2}, 7282
    s_lshr_b32 s{sRb}, s{sRb}, 16
    s_mul_i32 s{sT}, s{sRb}, 9
    s_sub_u32 s{sCg}, s{sT+2}, s{sT}""")
UFC, vUC = 88, 247
def o_prefetch(a, sWave, sUO, sTt, sT, bar_every=0, vUC=vUC, vt=248):
    c_tile(a, sT+3, sT+4, sT)
    a(f"""s_min_u32 s{sT+1}, s{sWave}, 4
    s_mul_i32 s{sTt}, s{sT+3}, 5
    s_add_u32 s{sTt}, s{sTt}, s{sT+1}
    s_cmp_ge_u32 s2, 234
    s_cselect_b32 s{sTt}, 128, s{sTt}
    s_min_u32 s{sT}, s{sTt}, 127
    s_lshl_b32 s{sT}, s{sT}, 8
    v_lshrrev_b32 v{vUC}, 4, v1
    v_lshlrev_b32 v{vUC}, 15, v{vUC}
    v_and_b32 v{vt}, 15, v1
    v_lshl_add_u32 v{vUC}, v{vt}, 4, v{vUC}
    v_add_u32 v{vUC}, s{sT}, v{vUC}
    s_mov_b32 s{sT}, {288*OCT}""")
    for k in range(18):
        a(f"buffer_load_dwordx4 {vr(UFC+4*k,4)}, v{vUC}, s[{sUO}:{sUO+3}], s{sT} offen")
        if k < 17: a(f"s_add_u32 s{sT}, s{sT}, {4*OCT}")
        if bar_every and k % bar_every == bar_every - 1: a("s_barrier")

def phase_B(a, N):
    pf = a.pf
    ZO = 16384
    def zb(j): return ZO + j*1024 + (j >> 1)*64 + (64 if j == 17 else 0)
    STG = zb(17) + 1024
    FREE = 2 * UB
    NE = 12
    BC = FREE
    sWP, sZQ, sUO, sCP, sBS, sFL = 12, 16, 20, 24, 28, 64
    sWave, sTb, sFb, sOdd, sT = 36, 37, 38, 39, 40
    sI, sSlot, sHi, sA, sZm, sZs, sZ1m, sZ1s = 56, 57, 58, 59, 60, 61, 62, 63
    sTt, sFu = 98, 99
    RBL = CFG.ka_rbl
    def common():
        a("s_load_dwordx4 s[4:7], s[0:1], 48")
        a("s_load_dwordx2 s[8:9], s[0:1], 16")
        a("s_load_dwordx2 s[10:11], s[0:1], 80")
        a(f"""s_and_b32 s{sT}, s2, 7
        s_lshr_b32 s{sT+1}, s2, 3
        s_and_b32 s{sTb}, s{sT}, {(16>>RBL)-1}
        s_lshl_b32 s{sTb}, s{sTb}, {RBL}
        s_and_b32 s{sT+2}, s{sT+1}, {(1<<RBL)-1}
        s_add_u32 s{sTb}, s{sTb}, s{sT+2}
        s_lshr_b32 s{sFb}, s{sT}, {4-RBL}
        s_lshl_b32 s{sFb}, s{sFb}, {5-RBL}
        s_lshr_b32 s{sT+2}, s{sT+1}, {RBL}
        s_add_u32 s{sFb}, s{sFb}, s{sT+2}
        s_and_b32 s{sOdd}, s{sFb}, 1
        s_mul_i32 s{sZm}, s{sFb}, 18
        s_lshl_b32 s{sT}, s{sOdd}, 1
        s_add_u32 s{sZs}, s{sZm}, 16
        s_lshl_b32 s{sT+1}, s{sOdd}, 4
        s_sub_u32 s{sZs}, s{sZs}, s{sT+1}
        s_add_u32 s{sZm}, s{sZm}, s{sT}
        s_lshl_b32 s{sZm}, s{sZm}, 15
        s_lshl_b32 s{sZs}, s{sZs}, 15
        s_sub_u32 s{sHi}, {UB}, s{sLo}""")
    ACC, FA, FB, Z1, T = 16, 88, 160, Z1B, 176
    vL, vZ0, vZ1, vZs, vB0, vB1, vE, vEs = 1, 2, 3, 4, 5, 6, 7, 8
    vBC = 10
    AD = {vB0: 240, vB1: 241, vZ0: 242, vZ1: 243, vZs: 244}
    a.label(f"{N}_At")
    common()
    a(f"""v_lshrrev_b32 v{T}, 4, v{vL}
    v_and_b32 v{T+1}, 15, v{vL}
    v_bfe_u32 v{T+2}, v{vL}, 2, 2
    v_and_b32 v{T+3}, 3, v{vL}
    v_lshl_add_u32 v{T+4}, v{T}, 3, v{T+2}
    v_lshlrev_b32 v{T+4}, 4, v{T+4}
    v_add_u32 v{T+4}, {ZO}, v{T+4}
    v_lshrrev_b32 v{T+5}, 1, v{T+3}
    v_and_b32 v{T+6}, 1, v{T+3}
    v_lshl_add_u32 v{vZ0}, v{T+3}, 10, v{T+4}
    v_lshl_add_u32 v{vZ0}, v{T+5}, 6, v{vZ0}
    v_lshl_add_u32 v{vZ0}, v{T+6}, 3, v{vZ0}
    v_xor_b32 v{vZ1}, 8, v{vZ0}
    v_mul_u32_u24 v{vZs}, 1088, v{T+5}
    v_add_u32 v{vZs}, v{vZs}, v{T+4}
    v_xor_b32 v{T+6}, v{T+6}, v{T+5}
    v_lshl_add_u32 v{vZs}, v{T+6}, 3, v{vZs}
    s_lshl_b32 s{sT}, s{sWave}, 5
    v_add_u32 v{T+7}, s{sT}, v{T+1}
    v_and_b32 v{T+8}, 7, v{vL}
    v_xor_b32 v{T+8}, v{T+8}, v{T}
    v_lshlrev_b32 v{T+8}, 4, v{T+8}
    v_lshl_add_u32 v{vB0}, v{T+7}, 7, v{T+8}
    v_xor_b32 v{vB1}, 64, v{vB0}""")
    for r, r2 in AD.items(): a(f"v_add_u32 v{r2}, s{sHi}, v{r}")
    for r in AD: a(f"v_add_u32 v{r}, s{sLo}, v{r}")
    a(f"""s_lshl_b32 s{sT+1}, s{sTb}, 7
    v_add_u32 v{T+9}, s{sT+1}, v{T+7}
    v_lshlrev_b32 v{vE}, 4, v{T+9}
    v_lshrrev_b32 v{T+8}, 1, v{T}
    v_lshl_add_u32 v{vEs}, v{T+8}, 15, v{vE}
    v_and_b32 v{T+10}, 1, v{T}
    v_lshl_add_u32 v{vEs}, v{T+10}, 3, v{vEs}
    v_lshl_add_u32 v{vE}, v{T}, 15, v{vE}
    v_lshlrev_b32 v{vBC}, 2, v{T+7}
    v_add_u32 v{vBC}, {BC}, v{vBC}
    s_lshl_b32 s{sFu}, s{sTb}, 8
    s_lshl_b32 s{sT}, s{sFb}, 4
    s_add_u32 s{sFu}, s{sFu}, s{sT}
    s_lshl_b32 s{sT}, s{sWave}, 2
    s_add_u32 s{sFu}, s{sFu}, s{sT}
    s_add_u32 s{sFu}, s{sFu}, {FL_U}""")
    for i in range(4, 44): a(f"v_mov_b32 v{ACC+i}, 0")
    at = Attn(a, sZQ, sUO, 70)
    at.setup(sWave, sHi)
    a(f"s_mov_b32 s{sI}, 8")
    a("s_waitcnt lgkmcnt(0)")
    a.srd_off(sUO, 10, 11, CFG.ws_base + UO_OFF, UO_SZ)
    a.srd_off(sFL, 10, 11, CFG.ws_base + FL_OFF, FL_SZ)
    pf.stamp()
    a(f"""v_mov_b32 v18, {TAG_LDS-8}
    v_readfirstlane_b32 s{sTag}, v14
    s_mov_b32 s{sA}, {CFG.bound*16}""")
    a.label(f"{N}_kvw")
    a(f"""ds_read_b64 v[184:185], v18
    s_waitcnt lgkmcnt(0)
    v_xor_b32 v184, s{sTag}, v184
    v_xor_b32 v185, s{sTag}, v185
    v_or_b32 v184, v184, v185
    s_sub_u32 s{sA}, s{sA}, 1
    v_readfirstlane_b32 s{sSlot}, v184
    s_cmp_eq_u32 s{sA}, 0
    s_cbranch_scc1 {N}_kvd
    s_cmp_lg_u32 s{sSlot}, 0
    s_cbranch_scc1 {N}_kvw""")
    a.label(f"{N}_kvd")
    pf.stamp()
    at.reads()
    for w in range(4):
        if w < 3:
            a(f"s_cmp_lg_u32 s{sWave}, {w}")
            a(f"s_cbranch_scc1 {N}_at{w+1}")
        at.compute(w)
        if w < 3:
            a(f"s_branch {N}_atd")
            a.label(f"{N}_at{w+1}")
    a.label(f"{N}_atd")
    for i in list(range(4)) + list(range(44, 72)): a(f"v_mov_b32 v{ACC+i}, 0")
    def reads(slot, h, st):
        R = (lambda r: AD[r]) if slot >= 2 else (lambda r: r)
        so = (slot & 1) * STG
        out = [f"ds_read_b128 {vr(FB+8*st+4*tt,4)}, v{R(vB1 if h else vB0)} offset:{so+2048*tt}" for tt in range(2)]
        for j in range(9):
            for rd in range(2):
                if j < 8:
                    out.append(f"ds_read_b64_tr_b16 {vr(FA+36*st+4*j+2*rd,2)}, v{R(vZ1 if j&1 else vZ0)} offset:{so+zb(4*(j>>1))-ZO+512*h+64*rd}")
                else:
                    out.append(f"ds_read_b64_tr_b16 {vr(FA+36*st+4*j+2*rd,2)}, v{R(vZs)} offset:{so+zb(16)-ZO+512*h+64*rd}")
        return out
    def phase(st, rds):
        out = []; k = 0
        for j in range(9):
            for tt in range(2):
                if tt == 0 and j % 3 == 0:
                    jj = min(j + 2, 8)
                    out.append(f"s_waitcnt lgkmcnt({min(15, 19-(3+2*jj)+k)})")
                out.append(f"v_mfma_f32_16x16x32_bf16 {vr(ACC+8*j+4*tt,4)}, {vr(FA+36*st+4*j,4)}, {vr(FB+8*st+4*tt,4)}, {vr(ACC+8*j+4*tt,4)}")
                for _ in range(2 if j == 1 else 1):
                    if k < len(rds): out.append(rds[k]); k += 1
        return out
    pf.stamp()
    a("s_barrier")
    pf.stamp()
    for l in reads(0, 0, 0): a(l)
    a.lines.append(".p2align 6")
    a.label(f"{N}_Bloop")
    for slot in range(4):
        for l in phase(0, reads(slot, 1, 1)): a(l)
        if slot == 3:
            a(f"s_sub_u32 s{sI}, s{sI}, 1")
            a("s_waitcnt vmcnt(0)")
        a("s_barrier")
        if CFG.prof == 2: pf.stamp()
        for l in phase(1, reads((slot + 1) % 4, 0, 0)): a(l)
    a(f"s_cmp_lg_u32 s{sI}, 0")
    a(f"s_cbranch_scc1 {N}_Bloop")
    a(f"ds_read_b32 v{vBC+1}, v{vBC} offset:64")
    a(f"ds_read_b32 v{vBC}, v{vBC}")
    a("s_waitcnt lgkmcnt(0)")
    a("s_barrier")
    o_prefetch(a, sWave, sUO, sTt, sT)
    order = [0, 1, 2, 3, 4]
    pf.stamp()
    for oi, i in enumerate(order):
        if i < 4: a(f"s_add_u32 s{sT}, s{sZm}, {4*OCT*i}")
        for tt in range(2):
            n = 4 if i < 4 else 2
            z = Z1 + 8*i + n*tt
            for r in range(n):
                j = 2*i + (r >> 1)
                ac = ACC + 8*j + 4*tt + 2*(r & 1)
                t = T + 4*(r % 2)
                a(f"v_add_f32 v{ac}, v{vBC+tt}, v{ac}")
                a(f"v_add_f32 v{ac+1}, v{vBC+tt}, v{ac+1}")
                a(f"v_lshlrev_b32 v{t}, 16, v{z+r}")
                a(f"v_and_b32 v{t+1}, 0xffff0000, v{z+r}")
                a(f"v_mul_f32 v{t}, v{t}, v{ac}")
                a(f"v_mul_f32 v{t+1}, v{t+1}, v{ac+1}")
                a(f"v_cvt_pk_bf16_f32 v{z+r}, v{t}, v{t+1}")
            if i < 4:
                a(f"buffer_store_dwordx4 {vr(z,4)}, v{vE}, s[{sUO}:{sUO+3}], s{sT} offen offset:{256*tt} sc1")
            else:
                a(f"buffer_store_dwordx2 {vr(z,2)}, v{vEs}, s[{sUO}:{sUO+3}], s{sZs} offen offset:{256*tt} sc1")
    a("s_waitcnt vmcnt(10)")
    a(f"s_branch {N}_Cc")
    a.label(f"{N}_Bh")
    common()
    vA, vZ = 2, 3
    a(f"""v_lshrrev_b32 v4, 3, v1
    v_and_b32 v5, 7, v1
    v_xor_b32 v5, v5, v4
    v_lshlrev_b32 v5, 4, v5
    v_lshl_add_u32 v{vA}, v4, 12, v5
    v_lshlrev_b32 v{vZ}, 4, v1
    s_lshl_b32 s{sA}, s{sTb}, 19
    s_lshl_b32 s{sT+1}, s{sTb}, 11
    s_add_u32 s{sZ1m}, s{sZm}, s{sT+1}
    s_add_u32 s{sZ1s}, s{sZs}, s{sT+1}
    s_add_u32 s{sZm}, s{sZm}, {288*OCT}
    s_add_u32 s{sZs}, s{sZs}, {288*OCT}
    s_mov_b32 s{sSlot}, s{sLo}
    s_waitcnt lgkmcnt(0)""")
    a.srd_off(sWP, 10, 11, CFG.ws_base + WP_OFF, WP_SZ)
    a.srd_off(sZQ, 10, 11, CFG.ws_base + ZQ_OFF, ZQ_SZ)
    a.srd_off(sUO, 10, 11, CFG.ws_base + UO_OFF, UO_SZ)
    a.srd_off(sCP, 10, 11, CFG.ws_base + CP_OFF, CP_SZ)
    a.srd(sBS, 4, 5, 4096)
    a(f"s_cmp_ge_u32 s{sWave}, 6")
    a(f"s_cbranch_scc1 {N}_xt")
    at = Attn(a, sZQ, sUO, 70)
    at.kv_prep(4, 8)
    at.base(sT+2, sT+3)
    a(f"""s_lshr_b32 s{sT+1}, s2, 4
    s_max_u32 s{sT+3}, s{sT+1}, 1
    s_sub_u32 s{sT+3}, s{sT+3}, 1
    s_lshl_b32 s{sT+1}, s{sT+1}, 8
    s_lshl_b32 s{sT+3}, s{sT+3}, 8
    s_add_u32 s{sT+1}, s{sT+1}, {FL_Q}
    s_add_u32 s{sT+3}, s{sT+3}, {FL_Q}
    v_lshlrev_b32 v8, 2, v1
    s_mov_b32 s{sI}, 0""")
    def pend():
        l = a.newlabel(N + "_dn"); l2 = a.newlabel(N + "_dn")
        a(f"""s_cmp_ge_u32 s{sI}, 2
        s_cbranch_scc1 {l}
        s_waitcnt vmcnt(0)
        s_barrier
        s_cmp_eq_u32 s{sI}, 1
        s_cbranch_scc1 {l2}
        s_barrier""")
        a.label(l2)
        a(f"s_add_u32 s{sI}, s{sI}, 1")
        a.label(l)
    poll_flags(a, f"{N}_pq", sFL, [(8, f"s{sT+1}", 1), (8, f"s{sT+3}", 1)], 12, sT, pend)
    pf.stamp()
    pend(); pend()
    a(f"s_cmp_eq_u32 s{sWave}, 5")
    a(f"s_cbranch_scc1 {N}_st1")
    at.stage((0, 1), 4, vZ, sT+2, sHi, sT)
    a(f"s_branch {N}_st2")
    a.label(f"{N}_st1")
    at.stage((2, 3), 4, vZ, sT+2, sHi, sT)
    a.label(f"{N}_st2")
    a(f"""s_lshl_b32 s{sT+2}, s{sTb}, 7
    v_and_b32 v10, 31, v1
    v_lshlrev_b32 v10, 2, v10
    s_lshl_b32 s{sT+3}, s{sWave}, 2
    s_add_u32 s{sT+3}, s{sT+3}, {TAG_LDS-8-16}
    v_mov_b32 v8, s{sT+3}
    v_mov_b32 v9, s{sTag}
    s_waitcnt vmcnt(0)
    ds_write_b32 v8, v9""")
    pf.stamp()
    for q in range(4): a(f"s_mov_b32 s{sT+4+q}, {FL_Q+1024*q}")
    poll_flags(a, f"{N}_pz", sFL, [(vZ, f"s{sT+4+q}", 4) for q in range(4)] + [(10, f"s{sT+2}", 1)], 16, sT)
    pf.stamp()
    items = [("A", i) for i in range(16)] + [("Z", j) for j in range(18)]
    sN4 = sT + 5
    a(f"s_mov_b32 s{sN4}, 0")
    def issue(p):
        out = []
        for kind, i in items[17*p:17*p+17]:
            if kind == "A":
                out.append(f"s_add_u32 m0, s{sSlot}, {i*1024}")
                out.append(f"s_add_u32 s{sT}, s{sA}, {i*8*4096}")
                out.append(f"buffer_load_dwordx4 v{vA}, s[{sWP}:{sWP+3}], s{sT} offen lds")
            else:
                out.append(f"s_add_u32 m0, s{sSlot}, {zb(i)}")
                out.append(f"s_add_u32 s{sT}, s{sZm if i < 16 else sZs}, {(i if i < 16 else i-16)*OCT}")
                out.append(f"buffer_load_dwordx4 v{vZ}, s[{sZQ}:{sZQ+3}], s{sT} offen lds")
        out += [f"s_add_u32 s{sA}, s{sA}, 128", f"s_add_u32 s{sZm}, s{sZm}, 1024", f"s_add_u32 s{sZs}, s{sZs}, 1024",
                f"s_add_u32 s{sN4}, s{sN4}, 1", f"s_bitcmp1_b32 s{sN4}, 1", f"s_cselect_b32 s{sSlot}, s{sHi}, s{sLo}",
                f"s_bitcmp1_b32 s{sN4}, 0", f"s_cselect_b32 s{sT}, {STG}, 0", f"s_add_u32 s{sSlot}, s{sSlot}, s{sT}"]
        return out
    for p in range(2):
        if p == 0:
            a(f"s_cmp_eq_u32 s{sWave}, 5")
            a(f"s_cbranch_scc1 {N}_prod1")
        else:
            a.label(f"{N}_prod1")
        for st in range(2):
            for l in issue(p): a(l)
        a("s_waitcnt vmcnt(17)")
        a("s_barrier")
        a(f"s_mov_b32 s{sI}, 30")
        a.label(f"{N}_Bploop{p}")
        for l in issue(p): a(l)
        a("s_waitcnt vmcnt(17)")
        a("s_barrier")
        a(f"s_sub_u32 s{sI}, s{sI}, 1")
        a(f"s_cmp_lg_u32 s{sI}, 0")
        a(f"s_cbranch_scc1 {N}_Bploop{p}")
        a(f"s_branch {N}_Bpend")
    a.label(f"{N}_Bpend")
    a("s_waitcnt vmcnt(0)")
    a("s_barrier")
    a(f"s_branch {N}_Cp")
    a.label(f"{N}_xt")
    a(f"s_cmp_eq_u32 s{sWave}, 7")
    a(f"s_cbranch_scc1 {N}_xtrb")
    nb = [0]
    a(f"""s_mul_i32 s{sT+1}, s2, {81*128}
    s_add_u32 s68, s6, s{sT+1}
    s_addc_u32 s69, s7, 0
    s_mul_i32 s{sT+1}, s2, {21*128}
    s_min_u32 s{sT+1}, s{sT+1}, {(5184-21)*128}
    s_add_u32 s70, s8, s{sT+1}
    s_addc_u32 s71, s9, 0""")
    spf = [f"s_load_dword s{74+i%6}, s[70:71], {64*i}" for i in range(42)] + [f"s_load_dword s{74+i%6}, s[68:69], {64*i}" for i in range(162)]
    def bar(n=1, pfn=CFG.kb_spf):
        for _ in range(n):
            a("s_barrier"); nb[0] += 1
            if nb[0] >= 3:
                for _ in range(pfn):
                    if spf: a(spf.pop(0))
    a(f"""s_lshl_b32 s{sT+2}, s2, 2
    s_add_u32 s{sT+2}, s{sT+2}, {FL_E}
    v_mov_b32 v4, 0
    v_mov_b32 v5, s{sTag}""")
    bar(2)
    a("s_waitcnt vmcnt(0)")
    bar(3)
    a(f"buffer_store_dword v5, v4, s[{sFL}:{sFL+3}], s{sT+2} offen sc1")
    X0 = CFG.kb_x0
    bar(X0 - 1 - nb[0])
    a(f"s_mov_b32 s{sT+1}, {FL_E}")
    poll_flags(a, f"{N}_pe", sFL, [(vZ, f"s{sT+1}", 4)], 8, sT)
    a(f"""s_lshl_b32 s{sT+2}, s{sTb}, 9
    s_lshr_b32 s{sT+1}, s{sT+2}, 1
    v_lshlrev_b32 v4, 3, v1
    v_lshlrev_b32 v5, 2, v1""")
    bar()
    a(f"buffer_load_dword v8, v5, s[{sBS}:{sBS+3}], s{sT+1} offen")
    for i in range(32):
        a(f"buffer_load_dwordx2 {vr(16+2*i,2)}, v4, s[{sCP}:{sCP+3}], s{sT+2} offen")
        a(f"s_add_u32 s{sT+2}, s{sT+2}, 8192")
        if i % CFG.kb_cpg == CFG.kb_cpg - 1: bar()
    bar(2)
    a("s_waitcnt vmcnt(0)")
    for i in range(1, 32):
        a(f"v_add_f32 v16, v16, v{16+2*i}")
        a(f"v_add_f32 v17, v17, v{17+2*i}")
        if i % 16 == 0: bar()
    a(f"""s_mov_b32 s{sT}, {f32(1.0/KSC)}
    v_and_b32 v9, 0xffff0000, v8
    v_lshlrev_b32 v8, 16, v8
    v_fma_f32 v8, v8, s{sT}, -v16
    v_fma_f32 v9, v9, s{sT}, -v17
    v_add_u32 v4, {BC}, v4
    ds_write_b64 v4, v[8:9]
    s_waitcnt vmcnt(0) lgkmcnt(0)""")
    bar()
    assert nb[0] <= 32 and not spf, (nb[0], len(spf))
    a("s_waitcnt lgkmcnt(0)")
    pf.flush(sWave)
    a("s_endpgm")
    a.label(f"{N}_xtrb")
    def barloop(n, nm):
        a(f"s_mov_b32 s{sI}, {n}")
        a.label(nm)
        a("s_barrier")
        a(f"s_sub_u32 s{sI}, s{sI}, 1")
        a(f"s_cmp_lg_u32 s{sI}, 0")
        a(f"s_cbranch_scc1 {nm}")
    a("s_barrier")
    a("s_barrier")
    a("s_waitcnt vmcnt(0)")
    barloop(X0 - 2, f"{N}_xb_loop")
    if CFG.codepf2 & 2: code_prefetch(a, 88, 26, 1, N)
    o_prefetch(a, sWave, sUO, sTt, sT, bar_every=3)
    barloop(34 - X0 - 6, f"{N}_xb_loop2")
    a(f"s_mov_b32 s{sFu}, 0x7f000000")
    a("s_waitcnt vmcnt(0)")
    a(f"s_branch {N}_Cc")

def phase_C(a, N):
    pf = a.pf
    NS = 9
    sUO, sWO, sWA, sX, sOUT, sDM, sFL = 20, 16, 12, 24, 28, 32, 64
    sWave, sRb, sCg, sT = 36, 37, 38, 40
    sI, sU, sW, sHi = 50, 51, 52, 53
    sTt, sFu = 98, 99
    def common():
        a("s_load_dwordx2 s[4:5], s[0:1], 0")
        a("s_load_dwordx2 s[6:7], s[0:1], 16")
        a("s_load_dwordx4 s[8:11], s[0:1], 56")
        c_tile(a, sRb, sCg, sT)
        a(f"s_sub_u32 s{sHi}, {UB}, s{sLo}")
    a.label(f"{N}_Cc")
    pf.stamp()
    a(f"""v_mov_b32 v13, 0
    s_cmp_lt_u32 s{sTt}, 128
    s_cbranch_scc1 {N}_Ctile
    s_waitcnt vmcnt(0)
    buffer_store_dword v14, v13, s[{sFL}:{sFL+3}], s{sFu} offen sc1""")
    pf.flush(sWave)
    a("s_endpgm")
    a.label(f"{N}_Ctile")
    common()
    ACC, SV, XR, T, UF, FA = 16, 32, 48, 56, UFC, 160
    FAS = [160, 192, 72 - 0]
    vL, vU, vA, vXo, vA8 = 1, vUC, 4, 3, 8
    FAB = [160, 192, 224]
    vU2 = 12
    a(f"""v_mov_b32 v{vU2}, v{vUC}
    v_lshrrev_b32 v{T}, 4, v{vL}
    v_and_b32 v{T+1}, 15, v{vL}
    s_lshl_b32 s{sT}, s{sTt}, 4
    v_add_u32 v{T+2}, s{sT}, v{T+1}
    s_mov_b32 s{sU}, 0
    v_mul_u32_u24 v{vXo}, 1152, v{T+2}
    v_and_b32 v{T+3}, 1, v{T}
    v_lshl_add_u32 v{vXo}, v{T+3}, 5, v{vXo}
    v_lshrrev_b32 v{T+3}, 1, v{T}
    v_lshl_add_u32 v{vXo}, v{T+3}, 4, v{vXo}
    s_lshl_b32 s{sT+1}, s{sCg}, 7
    v_bfe_u32 v{T+3}, v{vL}, 2, 2
    v_lshl_add_u32 v{T+4}, v{T}, 3, v{T+3}
    v_lshlrev_b32 v{T+4}, 7, v{T+4}
    v_and_b32 v{T+5}, 3, v{vL}
    v_lshl_add_u32 v{T+4}, v{T+5}, 3, v{T+4}
    v_lshrrev_b32 v{T+3}, 1, v{T+3}
    v_and_b32 v{T+5}, 1, v{T}
    v_lshl_add_u32 v{T+3}, v{T+5}, 1, v{T+3}
    v_lshl_add_u32 v{vA}, v{T+3}, 5, v{T+4}
    v_add_u32 v{vA}, s{sHi}, v{vA}
    v_xor_b32 v{vA+1}, 32, v{vA}
    v_xor_b32 v{vA+2}, 64, v{vA}
    v_xor_b32 v{vA+3}, 96, v{vA}""")
    for j in range(4): a(f"v_add_u32 v{vA8+j}, {8*8192}, v{vA+j}")
    for i in range(16): a(f"v_mov_b32 v{ACC+i}, 0")
    def uload(slot):
        return [f"buffer_load_dwordx4 {vr(UF+4*slot,4)}, v{vU2}, s[{sUO}:{sUO+3}], s{sU} offen",
                f"s_add_u32 s{sU}, s{sU}, {4*OCT}"]
    def reads(st):
        st %= 9
        return [f"ds_read_b64_tr_b16 {vr(FAB[st%3]+16*h+4*j+2*rd,2)}, v{(vA8 if st == 8 else vA)+j} offset:{(st%8)*8192+4096*h+512*rd}"
                for h in range(2) for j in range(4) for rd in range(2)]
    a(f"s_mov_b32 s{sI}, 4")
    pf.stamp()
    a("s_barrier")
    pf.stamp()
    for l in reads(0): a(l)
    a("s_waitcnt lgkmcnt(0)")
    a.srd(sX, 4, 5, 2048 * 1152)
    a.srd(sOUT, 10, 11, 2048 * 1152)
    def cpass(first):
        acc = SV if first else ACC
        for st in range(9):
            a("s_barrier")
            rd = reads(st + 1)
            k = 0
            for h in range(2):
                ks = 2*st + h
                if not first: a(f"s_waitcnt vmcnt({15})")
                for j in range(4):
                    c = "0" if (first and ks == 0) else vr(acc+4*j, 4)
                    a(f"v_mfma_f32_16x16x32_bf16 {vr(acc+4*j,4)}, {vr(FAB[st%3]+16*h+4*j,4)}, {vr(UF+4*ks,4)}, {c}")
                    for _ in range(3):
                        if k < 16: a(rd[k]); k += 1
                if not first:
                    for l in uload((ks + 16) % 18): a(l)
                elif st >= 7:
                    for q in range(4):
                        for l in uload(4*(ks - 14) + q): a(l)
            if first and st == CFG.kc_fu:
                a("s_waitcnt vmcnt(0)")
                a(f"buffer_store_dword v14, v13, s[{sFL}:{sFL+3}], s{sFu} offen sc1")
                for p in range(2):
                    a(f"buffer_load_dwordx4 {vr(XR+4*p,4)}, v{vXo}, s[{sX}:{sX+3}], s{sT+1} offen offset:{64*p}")
            a("s_waitcnt lgkmcnt(0)")
        pf.stamp()
    cpass(True)
    a.lines.append(".p2align 6")
    a.label(f"{N}_Cloop")
    cpass(False)
    a(f"s_sub_u32 s{sI}, s{sI}, 1")
    a(f"s_cmp_lg_u32 s{sI}, 0")
    a(f"s_cbranch_scc1 {N}_Cloop")
    a(f"s_mov_b32 s{sT}, {f32(-math.log2(math.e))}")
    a("s_nop 4")
    for i in range(16): a(f"v_mul_f32 v{T+i}, s{sT}, v{ACC+i}")
    for i in range(16): a(f"v_exp_f32 v{T+i}, v{T+i}")
    for i in range(16): a(f"v_mul_f32 v{SV+i}, v{SV+i}, v{ACC+i}")
    for i in range(16): a(f"v_add_f32 v{T+i}, 1.0, v{T+i}")
    for i in range(16): a(f"v_rcp_f32 v{T+i}, v{T+i}")
    for i in range(16): a(f"v_mul_f32 v{SV+i}, v{SV+i}, v{T+i}")
    for p in range(2):
        x = XR + 4*p
        a(f"v_permlane16_swap_b32 v{x}, v{x+2}")
        a(f"v_permlane16_swap_b32 v{x+1}, v{x+3}")
        for r in range(4):
            s = SV + 8*p + 2*r
            a(f"v_lshlrev_b32 v{T}, 16, v{x+r}")
            a(f"v_and_b32 v{T+1}, 0xffff0000, v{x+r}")
            a(f"v_add_f32 v{T}, v{T}, v{s}")
            a(f"v_add_f32 v{T+1}, v{T+1}, v{s+1}")
            a(f"v_cvt_pk_bf16_f32 v{x+r}, v{T}, v{T+1}")
        a(f"v_permlane16_swap_b32 v{x}, v{x+2}")
        a(f"v_permlane16_swap_b32 v{x+1}, v{x+3}")
        a(f"buffer_store_dwordx4 {vr(x,4)}, v{vXo}, s[{sOUT}:{sOUT+3}], s{sT+1} offen offset:{64*p} {CFG.out_aux}")
    if CFG.prof:
        pf.stamp(); a("s_waitcnt vmcnt(0)")
    pf.flush(sWave)
    a("s_endpgm")
    a.label(f"{N}_Cp")
    a(f"s_cmp_ge_u32 s2, 234")
    a(f"s_cbranch_scc1 {N}_end")
    common()
    vD = 2
    a(f"""v_lshrrev_b32 v8, 3, v1
    v_and_b32 v9, 7, v1
    v_lshrrev_b32 v10, 3, v1
    v_and_b32 v10, 2, v10
    v_xor_b32 v9, v9, v10
    v_lshlrev_b32 v9, 4, v9
    v_mul_u32_u24 v{vD}, 1152, v8
    v_add_u32 v{vD}, v{vD}, v9
    v_xor_b32 v{vD+1}, 64, v{vD}
    v_add_u32 v{vD+1}, {8*1152-1024}, v{vD+1}
    v_add_u32 v{vD+2}, {2*(8*1152-1024)}, v{vD}
    v_add_u32 v{vD+3}, {2*(8*1152-1024)}, v{vD+1}
    s_sub_u32 s{sT}, s{sWave}, 4
    s_mul_i32 s{sW}, s{sT}, {32*1152}
    s_lshl_b32 s{sT+1}, s{sCg}, 7
    s_add_u32 s{sW}, s{sW}, s{sT+1}
    s_mov_b32 s{sT+3}, s{sW}
    s_lshl_b32 s{sT+2}, s{sT}, 12
    s_add_u32 s{sT+2}, s{sT+2}, s{sHi}
    s_add_u32 s{sT+5}, s{sHi}, {NS*8192}
    s_mov_b32 s{sT+4}, s{sT+2}
    s_mul_i32 s{sT+6}, s{sRb}, 80
    s_add_u32 s{sT+7}, s{sT+6}, 79
    s_min_u32 s{sT+7}, s{sT+7}, 2047
    s_lshr_b32 s{sT+8}, s{sT+6}, 7
    s_lshl_b32 s{sT+8}, s{sT+8}, 8
    s_add_u32 s{sT+8}, s{sT+8}, {FL_U}
    s_lshr_b32 s{sT+9}, s{sT+7}, 7
    s_lshl_b32 s{sT+9}, s{sT+9}, 8
    s_add_u32 s{sT+9}, s{sT+9}, {FL_U}
    v_lshlrev_b32 v8, 2, v1
    s_waitcnt lgkmcnt(0)""")
    a.srd(sDM, 6, 7, 576 * 1152)
    def issue():
        out = [f"s_mov_b32 m0, s{sT+4}",
               f"s_add_u32 s{sT+4}, s{sT+4}, 8192"]
        out += [f"buffer_load_dwordx4 v{vD+j}, s[{sDM}:{sDM+3}], s{sW} offen offset:{1024*j} lds" for j in range(4)]
        out += [f"s_add_u32 s{sW}, s{sW}, {64*1152}",
                f"s_cmp_ge_u32 s{sT+4}, s{sT+5}",
                f"s_cselect_b32 s{sT+4}, s{sT+2}, s{sT+4}"]
        return out
    a("s_barrier")
    for st in range(9):
        if st == 4: a("s_barrier")
        for l in issue(): a(l)
    a.srd(sDM, 8, 9, 2304 * 1152)
    a(f"s_mov_b32 s{sW}, s{sT+3}")
    a("s_waitcnt vmcnt(32)")
    pf.stamp()
    a("s_barrier")
    def ploop(n, name):
        a(f"s_mov_b32 s{sI}, {n}")
        a.label(name)
        a("s_waitcnt vmcnt(28)")
        a("s_barrier")
        for l in issue(): a(l)
        a(f"s_sub_u32 s{sI}, s{sI}, 1")
        a(f"s_cmp_lg_u32 s{sI}, 0")
        a(f"s_cbranch_scc1 {name}")
    ploop(7, f"{N}_Cploop")
    poll_flags(a, f"{N}_pu", sFL, [(8, f"s{sT+8}", 1), (8, f"s{sT+9}", 1)], 16, sI)
    pf.stamp()
    ploop(29, f"{N}_Cploop2")
    for n in range(8):
        a(f"s_waitcnt vmcnt({28-4*n})")
        a("s_barrier")
    pf.flush(sWave)
    a.label(f"{N}_end")
    a("s_endpgm")

def gen_M():
    a = Asm(); N = NAME + "_kernel"
    phase_A(a, N); phase_B(a, N); phase_C(a, N)
    return a, kd(N, 256, 256, 102), (N, 256, 512, 163840)

HEADER = open("cdna_kernels/" + NAME + ".s.ref").read().split("; Override")[0]

def build(verbose=False):
    a, k, (n, grid, block, lds) = gen_M()
    txt = HEADER + f"; @launch grid=({grid},1,1) block=({block},1,1) lds={lds}\n"
    lines, ins = fix_hazards(a.lines, verbose, "M")
    print(f"{len(lines)} lines, {ins} hazard nops", file=sys.stderr)
    body = "\n".join(("    " + l if not (l.endswith(":") or l.startswith(".")) else l) for l in lines) + "\n"
    txt += '.amdgcn_target "amdgcn-amd-amdhsa--gfx950"\n.text\n.p2align 8\ncode_begin:\n' + body + "code_end:\n" + k
    return txt

if __name__ == "__main__":
    for arg in sys.argv[2:]:
        if "=" in arg:
            k_, v_ = arg.split("=", 1)
            setattr(CFG, k_, type(getattr(CFG, k_))(v_) if not isinstance(getattr(CFG, k_), bool) else int(v_))
    open(sys.argv[1], "w").write(build(verbose="-v" in sys.argv))
```

```python
import math, struct, sys
from asmlib import *

NAME = "recurrent_scan__sliding_local_dilated__mixer_gmlp__prompt"
def f32(x): return "0x%08x" % struct.unpack("<I", struct.pack("<f", x))[0]

C0 = -2.0 * math.sqrt(2.0 / math.pi) * math.log2(math.e)
C1 = C0 * 0.044715
KSC = -((-C1) ** (1.0 / 3.0))
DELTA = C0 / KSC
EPS = 1e-5
OCT = 32768

class Cfg:
    ws_base = 0
    st_aux_a = "sc1"
    st_aux_n = ""
    st_aux_b = "sc1"
    prof = False
    ka_xbar = -1
    ka_prio = 0
    ka_xpf = 0
    ka_head = 24
    ka_xfirst = 5
    ka_rot = 0
    align = 0
    hprof = 0
    bound = 20000
    ka_try = 2
    kb_xb = 28
    kc_fu = 2
    ka_pst = 13
    ka_spf = 0
    ka_d5 = 15
    ka_fwe = 1
    ka_pf0 = 2
    ka_early = 0
    ka_pst1 = 28
    out_aux = ""
    ka_d6 = 16
    ka_d7 = 0
    ka_fq = -1
    ka_prio2 = 0
    ka_prioj = 0
    codepf2 = 3
    kb_x0 = 22
    kb_cpg = 8
    ka_st_aux = ""
    sleep = 8
    kc_test = 0
    ka_rbl = 3
    ka_nostore = 0
    ka_nodma = 0
    ka_wsp_slot = 0
    ka_x_aux = ""
    ka_pf_aux = ""
    ka_wsp_aux = "nt"
    ka_npre = 26
    codepf = 1
    ka_l2pf = 2
    attn_seg = 36
    ka_stpos = 5
    kb_nomfma = 0
    kb_pf = 1
    kb_eit = 8
    kb_wg = 3
    kb_spf = 10
    kb_abar = 0
    kb_nodma = 0
    kb_noattn = 0
CFG = Cfg()

ZQ_OFF, ZQ_SZ = 0, 792 * OCT
UO_OFF, UO_SZ = 26 << 20, 360 * OCT
WP_OFF, WP_SZ = 38 << 20, 2048 * 4096
ST_OFF, ST_SZ = 47 << 20, 16 * 16 * 2048
CP_OFF, CP_SZ = 48 << 20, 2048 * 128

def kd(name, vgpr, accum, sgpr=96):
    return f""".section .rodata,"a"
.p2align 6
.amdhsa_kernel {name}
  .amdhsa_next_free_vgpr {vgpr}
  .amdhsa_next_free_sgpr {sgpr}
  .amdhsa_accum_offset {accum}
  .amdhsa_group_segment_fixed_size 0
  .amdhsa_kernarg_size 88
  .amdhsa_user_sgpr_count 2
  .amdhsa_user_sgpr_kernarg_segment_ptr 1
  .amdhsa_system_sgpr_workgroup_id_x 1
.end_amdhsa_kernel
"""

PROF_OFF = 64 << 20
class Prof:
    def __init__(self, a, vreg, kidx):
        self.a, self.v, self.k = a, vreg, kidx
    def init(self):
        if not CFG.prof: return
        a = self.a
        a(f"v_mov_b32 v{self.v}, 0")
        a("s_mov_b64 s[84:85], 2")
        a("s_memrealtime s[82:83]")
        a("s_waitcnt lgkmcnt(0)")
        a(f"v_writelane_b32 v{self.v}, s82, 0")
        self.stamp()
    def stamp(self):
        if not CFG.prof: return
        a = self.a
        a("s_memrealtime s[80:81]" if CFG.prof == 5 else "s_memtime s[80:81]")
        a("s_waitcnt lgkmcnt(0)")
        a("s_mov_b64 s[92:93], exec")
        a("s_mov_b64 exec, s[84:85]")
        a(f"v_mov_b32 v{self.v}, s80")
        a("s_mov_b64 exec, s[92:93]")
        a("s_lshl_b64 s[84:85], s[84:85], 1")
    def flush(self, sWave):
        if not CFG.prof: return
        a = self.a
        self.stamp()
        a("s_memrealtime s[82:83]")
        a("s_load_dwordx2 s[86:87], s[0:1], 80")
        a("s_waitcnt lgkmcnt(0)")
        a(f"v_writelane_b32 v{self.v}, s82, 63")
        a.srd_off(88, 86, 87, PROF_OFF + self.k * (1 << 20), 1 << 20)
        a("s_lshl_b32 s85, s2, 3")
        a(f"s_add_u32 s85, s85, s{sWave}")
        a("s_lshl_b32 s85, s85, 8")
        a("s_mov_b64 exec, -1")
        a("v_mbcnt_lo_u32_b32 v0, -1, 0")
        a("v_mbcnt_hi_u32_b32 v0, -1, v0")
        a("v_lshlrev_b32 v0, 2, v0")
        a(f"buffer_store_dword v{self.v}, v0, s[88:91], s85 offen")

def code_prefetch(a, sS, vT, vL, name):
    if not CFG.codepf: return
    h = a.newlabel(name + "_pc")
    a(f"s_getpc_b64 s[{sS}:{sS+1}]")
    a.label(h)
    a(f"s_sub_u32 s{sS}, s{sS}, {h}-code_begin")
    a(f"s_subb_u32 s{sS+1}, s{sS+1}, 0")
    a(f"s_mov_b32 s{sS+2}, code_end-code_begin")
    a(f"s_mov_b32 s{sS+3}, 0x00020000")
    a(f"s_lshr_b32 s{sS+4}, s2, 3")
    a(f"s_lshl_b32 s{sS+4}, s{sS+4}, 13")
    a(f"v_lshlrev_b32 v{vT}, 7, v{vL}")
    a(f"buffer_load_dword v{vT+1}, v{vT}, s[{sS}:{sS+3}], s{sS+4} offen")

def prologue(a, name, ngrid):
    a.lines.append(".text")
    a.lines.append(f".globl {name}")
    a.lines.append(".p2align 8")
    a.lines.append(f".type {name},@function")
    a.label(name)
    a(f"s_cmp_ge_u32 s2, {ngrid}")
    a(f"s_cbranch_scc1 {name}_end")
    if CFG.hprof:
        k = {"ka": 0, "kb": 1, "kc": 2}[name[:2]]
        a(f"""s_cmp_lg_u32 s2, 0
        s_cbranch_scc1 {name}_hp
        s_memrealtime s[82:83]
        s_load_dwordx2 s[86:87], s[0:1], 80
        s_waitcnt lgkmcnt(0)""")
        a.srd_off(88, 86, 87, PROF_OFF, 4096)
        a(f"""v_mov_b32 v1, s82
        v_mov_b32 v2, 0
        buffer_store_dword v1, v2, s[88:91], 0 offen offset:{4*k} sc1
        s_waitcnt vmcnt(0)""")
        a.label(f"{name}_hp")

def hprof_end(a, name):
    if not CFG.hprof: return
    a(f"""s_cmp_lg_u32 s2, 0
    s_cbranch_scc1 {name}_hpe
    s_waitcnt vmcnt(0)
    s_memrealtime s[82:83]
    s_load_dwordx4 s[84:87], s[0:1], 72
    s_waitcnt lgkmcnt(0)""")
    a.srd_off(88, 86, 87, PROF_OFF, 4096)
    a.srd(92, 84, 85, 256)
    a(f"""v_mov_b32 v2, 0
    buffer_load_dwordx3 v[4:6], v2, s[88:91], 0 offen sc1
    v_mov_b32 v7, s82
    s_waitcnt vmcnt(0)
    v_sub_u32 v7, v7, v6
    v_sub_u32 v6, v6, v5
    v_sub_u32 v5, v5, v4
    buffer_store_dwordx4 v[4:7], v2, s[92:95], 0 offen""")
    a.label(f"{name}_hpe")

def cost(l):
    c = 0
    for x in l.split("\n"):
        c += 8 if x.startswith(TRANS) else 4
    return c

def spread(slots, fillers, base=None):
    base = [sum(cost(x) + (4 if x.startswith("v_mfma") else 0) for x in sl) for sl in slots]
    tot = sum(base) + sum(cost(f) for f in fillers)
    out = []; k = 0; cum = 0
    for i, sl in enumerate(slots):
        out += sl; cum += base[i]
        tgt = tot * (i + 1) / len(slots)
        while k < len(fillers) and cum + cost(fillers[k]) / 2 <= tgt:
            out.append(fillers[k]); cum += cost(fillers[k]); k += 1
    return out + fillers[k:]


FL_OFF, FL_SZ = 49 << 20, 20480
FL_W, FL_E, FL_U, FL_Q, FL_TAG = 0, 4096, 8192, 12288, 16384
sTag, sLo = 100, 101
TAG_LDS = 163832
Z1B = 204

def poll_flags(a, name, sFL, items, vt, sT, on_fail=None):
    a(f"s_mov_b32 s{sT}, {CFG.bound}")
    a.label(name)
    regs = []
    r = vt
    for vo, so, w in items:
        sfx = {1: "dword", 4: "dwordx4"}[w]
        a(f"buffer_load_{sfx} {vr(r,w)}, v{vo}, s[{sFL}:{sFL+3}], {so} offen sc1")
        regs += list(range(r, r + w)); r += w
    a("s_waitcnt vmcnt(0)")
    for x in regs: a(f"v_xor_b32 v{x}, s{sTag}, v{x}")
    for x in regs[1:]: a(f"v_or_b32 v{regs[0]}, v{regs[0]}, v{x}")
    a(f"""v_cmp_ne_u32 vcc, 0, v{regs[0]}
    s_sub_u32 s{sT}, s{sT}, 1
    s_cmp_eq_u32 s{sT}, 0
    s_cbranch_scc1 {name}_ok
    s_cmp_eq_u64 vcc, 0
    s_cbranch_scc1 {name}_ok""")
    if on_fail: on_fail()
    a(f"""s_sleep {CFG.sleep}
    s_branch {name}""")
    a.label(f"{name}_ok")

def phase_A(a, N):
    X, FR, T = 112, 24, 16
    AC = [80, 48]
    W = AC[1]
    vL, vA0, vA1, vPn, vO8, vSt, vStO = 1, 2, 3, 4, 5, 6, 7
    vNm, vSc, vSum = 8, 9, 10
    S = W
    vX0, vX1, vX2, vX3, vSR, vSRs, vXw = W+8, W+9, W+10, W+11, W+12, W+16, W+20
    sX, sWI, sWQ, sZQ, sST, sDM = 12, 16, 20, 24, 28, 32
    sFQ, sFq = 28, 32
    sWave, sRb, sCg = 36, 37, 38
    sNz2, sNg, sN, sZ2s, sZ1m, sQm = 39, 40, 41, 42, 43, 44
    sU, sV, sUn, sMz2, sP8, sOb = 45, 46, 47, 48, 49, 50
    sMq = 52
    sDma, sDstep, sDvs = 54, 55, 56
    sDp, sDc, sDn = 57, 58, 59
    sBufN, sPw, sRot, sRw = 61, 62, 60, 51
    sMis = 41
    sHu, sHx = 3, 33
    sDl, sOlo, sOhi, sOnes = 63, 64, 65, 66
    sXr = 68
    sT0, sT1, sT2, sSt, sP8i, sP8q, sXb, sXs = 72, 73, 74, 76, 77, 78, 75, 79
    UB = 73728; STG = 2 * UB
    RBL = CFG.ka_rbl
    prologue(a, N, 256)
    pf = Prof(a, 15, 0); pf.init(); a.pf = pf
    a("s_load_dwordx4 s[4:7], s[0:1], 0")
    a("s_load_dwordx4 s[8:11], s[0:1], 32")
    a("s_load_dwordx4 s[96:99], s[0:1], 72")
    a(f"v_and_b32 v{vL}, 63, v0")
    a(f"v_lshrrev_b32 v{T}, 6, v0")
    a(f"v_readfirstlane_b32 s{sWave}, v{T}")
    a(f"""s_and_b32 s{sT0}, s2, 7
    s_lshr_b32 s{sT1}, s2, 3
    s_and_b32 s{sRb}, s{sT0}, {(16>>RBL)-1}
    s_lshl_b32 s{sRb}, s{sRb}, {RBL}
    s_and_b32 s{sT2}, s{sT1}, {(1<<RBL)-1}
    s_add_u32 s{sRb}, s{sRb}, s{sT2}
    s_lshr_b32 s{sCg}, s{sT0}, {4-RBL}
    s_lshl_b32 s{sCg}, s{sCg}, {5-RBL}
    s_lshr_b32 s{sT2}, s{sT1}, {RBL}
    s_add_u32 s{sCg}, s{sCg}, s{sT2}
    s_and_b32 s{sRot}, s{sT1}, {(1<<RBL)-1}
    s_lshl_b32 s{sRot}, s{sRot}, 1
    s_add_u32 s{sRot}, s{sRot}, s{sT2}
    s_mul_i32 s{sRot}, s{sRot}, {CFG.ka_rot}
    s_sub_u32 s{sT2}, s{sRot}, 9
    s_min_u32 s{sRot}, s{sRot}, s{sT2}
    s_sub_u32 s{sT2}, s{sRot}, 9
    s_min_u32 s{sRot}, s{sRot}, s{sT2}
    v_lshrrev_b32 v{T}, 3, v{vL}
    v_and_b32 v{T+1}, 7, v{vL}""")
    unit_lists = f"""s_min_u32 s{sT0}, s{sCg}, 4
    s_lshl_b32 s{sZ2s}, s{sCg}, 1
    s_add_u32 s{sZ2s}, s{sZ2s}, s{sT0}
    s_add_u32 s{sZ2s}, s{sZ2s}, 36
    s_lshl_b32 s{sT0}, s{sCg}, 1
    s_sub_u32 s{sT0}, s{sT0}, 6
    s_sub_u32 s{sQm}, s{sCg}, 3
    s_cmp_lt_u32 s{sCg}, 4
    s_cselect_b32 s{sNz2}, 3, 2
    s_cselect_b32 s{sQm}, s{sQm}, s{sT0}
    s_mul_i32 s{sHu}, s{sCg}, 288
    s_and_b32 s{sT0}, s{sCg}, 1
    s_lshl_b32 s{sT1}, s{sT0}, 5
    s_add_u32 s{sZ1m}, s{sHu}, s{sT1}
    s_sub_u32 s{sZ1m}, s{sZ1m}, 512
    s_xor_b32 s{sT0}, s{sT0}, 1
    s_lshl_b32 s{sT0}, s{sT0}, 8
    s_add_u32 s{sHu}, s{sHu}, s{sT0}
    s_add_u32 s{sT0}, s{sCg}, 1
    s_bfe_u32 s{sMis}, s{sT0}, 0x10001
    s_mov_b32 s{sLo}, 73728"""
    a(f"s_cmp_ge_u32 s{sWave}, 4")
    a(f"s_cbranch_scc1 {N}_prod")
    a(f"""v_lshrrev_b32 v{T+2}, 4, v{vL}
    v_xor_b32 v{T+2}, v{T+2}, v{T+1}
    v_lshlrev_b32 v{T+2}, 4, v{T+2}
    v_mul_u32_u24 v{vX0}, 1152, v{T}
    v_add_u32 v{vX0}, v{vX0}, v{T+2}
    v_xor_b32 v{vX1}, 64, v{vX0}
    s_lshl_b32 s{sT0}, s{sRb}, 7
    s_lshl_b32 s{sT1}, s{sWave}, 5
    s_add_u32 s{sT0}, s{sT0}, s{sT1}
    s_mul_i32 s{sXr}, s{sT0}, 1152
    s_add_u32 s{sXr+1}, s{sXr}, 8192
    s_add_u32 s{sXr+2}, s{sXr}, 16384
    s_add_u32 s{sXr+3}, s{sXr}, 24576
    s_lshl_b32 s{sXb}, s{sWave}, 14
    s_add_u32 s{sXb}, s{sXb}, {UB}
    s_lshl_b32 s{sXs}, s{sWave}, 12
    s_add_u32 s{sXs}, s{sXs}, {STG}""")
    a("s_waitcnt lgkmcnt(0)")
    if CFG.prof == 3: pf.stamp()
    a.srd(sX, 4, 5, 2048 * 1152)
    a(f"s_lshl_b32 s{sRw}, s{sRot}, 7")
    def xload(j):
        a(f"v_add_u32 v{vX2}, s{sRw}, v{vX0}")
        a(f"v_add_u32 v{vX3}, s{sRw}, v{vX1}")
        if j < 4: a(f"s_add_u32 m0, s{sXb}, {j*4096}")
        elif j == 4: a(f"s_mov_b32 m0, s{sXs}")
        a(f"s_add_u32 s{sRw}, s{sRw}, 128")
        for rg in range(4):
            if j < 5:
                a(f"buffer_load_dwordx4 v{vX3 if rg&1 else vX2}, s[{sX}:{sX+3}], s{sXr+rg} offen offset:{rg*1024} {CFG.ka_x_aux} lds")
            else:
                a(f"buffer_load_dwordx4 {vr(X+16*j+4*rg,4)}, v{vX3 if rg&1 else vX2}, s[{sX}:{sX+3}], s{sXr+rg} offen offset:{rg*1024} {CFG.ka_x_aux}")
        a(f"s_cmp_eq_u32 s{sRw}, 1152")
        a(f"s_cselect_b32 s{sRw}, 0, s{sRw}")
    for j in range(CFG.ka_xfirst): xload(j)
    a.srd_off(sZQ, 98, 99, CFG.ws_base + ZQ_OFF, ZQ_SZ)
    a.srd_off(sFQ, 98, 99, CFG.ws_base + FL_OFF + FL_Q, 4096)
    a(f"""s_lshl_b32 s{sFq}, s{sRb}, 8
    s_lshl_b32 s{sT0}, s{sCg}, 4
    s_add_u32 s{sFq}, s{sFq}, s{sT0}
    s_lshl_b32 s{sT0}, s{sWave}, 2
    s_add_u32 s{sFq}, s{sFq}, s{sT0}
    v_mov_b32 v12, {TAG_LDS}
    v_mov_b32 v13, 0""")
    a(unit_lists)
    a(f"""s_mov_b32 s{sDl}, {f32(DELTA)}
    s_mov_b32 s{sOlo}, 0x00003f80
    s_mov_b32 s{sOhi}, 0x3f800000
    s_mov_b32 s{sOnes}, 0x3f803f80""")
    def cparams():
        return [
            f"s_add_u32 s{sT0}, s{sZ2s}, s{sV}",
            f"s_add_u32 s{sT2}, s{sQm}, s{sV}",
            f"s_min_u32 s{sT2}, s{sT2}, 26",
            f"s_add_u32 s{sT2}, s{sT2}, 72",
            f"s_cmp_lt_u32 s{sV}, s{sNz2}\n"
            f"s_cselect_b32 s{sUn}, s{sT0}, s{sT2}\n"
            f"s_cselect_b32 s{sMz2}, -1, 0",
            f"s_lshl_b32 s{sDn}, s{sUn}, 18",
        ]
    def traddr(buf):
        return [f"v_and_b32 v{T+7}, s{sMz2}, v{vO8}",
                f"v_xor_b32 v{vA0}, v{T+7}, v{vPn}"] + \
               ([f"v_add_u32 v{vA0}, {UB}, v{vA0}"] if buf else []) + [f"v_xor_b32 v{vA1}, 64, v{vA0}"]
    a(f"s_mov_b32 s{sV}, 0")
    for l in cparams(): a(l)
    a(f"""v_lshrrev_b32 v{T+2}, 5, v{vL}
    v_lshlrev_b32 v{T+2}, 3, v{T+2}
    v_bfe_u32 v{T+3}, v{vL}, 2, 2
    v_add_u32 v{T+2}, v{T+2}, v{T+3}
    v_lshlrev_b32 v{vPn}, 7, v{T+2}
    v_lshrrev_b32 v{T+3}, 1, v{T+3}
    v_lshl_add_u32 v{vPn}, v{T+3}, 6, v{vPn}
    v_bfe_u32 v{T+3}, v{vL}, 4, 1
    v_lshl_add_u32 v{vPn}, v{T+3}, 5, v{vPn}
    v_and_b32 v{T+3}, 1, v{vL}
    v_lshl_add_u32 v{vPn}, v{T+3}, 4, v{vPn}
    v_lshlrev_b32 v{vO8}, 3, v{T+3}
    v_bfe_u32 v{T+3}, v{vL}, 1, 1
    v_lshl_add_u32 v{vPn}, v{T+3}, 3, v{vPn}""")
    for l in traddr(0): a(l)
    a(f"""v_and_b32 v{T+2}, 31, v{vL}
    v_bfe_u32 v{T+3}, v{vL}, 1, 3
    v_lshrrev_b32 v{T+4}, 5, v{vL}
    v_xor_b32 v{T+3}, v{T+3}, v{T+4}
    v_lshlrev_b32 v{T+3}, 4, v{T+3}
    v_lshl_add_u32 v{T+3}, v{T+2}, 7, v{T+3}
    v_add_u32 v{vSR}, s{sXb}, v{T+3}
    v_xor_b32 v{vSR+1}, 32, v{vSR}
    v_xor_b32 v{vSR+2}, 64, v{vSR}
    v_xor_b32 v{vSR+3}, 96, v{vSR}
    v_add_u32 v{vSRs}, s{sXs}, v{T+3}
    v_xor_b32 v{vSRs+1}, 32, v{vSRs}
    v_xor_b32 v{vSRs+2}, 64, v{vSRs}
    v_xor_b32 v{vSRs+3}, 96, v{vSRs}
    v_lshlrev_b32 v{vStO}, 3, v{vL}
    v_add_u32 v{vStO}, s{sXs}, v{vStO}
    s_lshl_b32 s{sT0}, s{sRb}, 7
    s_lshl_b32 s{sT1}, s{sWave}, 5
    s_add_u32 s{sT0}, s{sT0}, s{sT1}
    v_add_u32 v{vSt}, s{sT0}, v{T+2}
    v_lshlrev_b32 v{vSt}, 4, v{vSt}
    v_lshl_add_u32 v{vSt}, v{T+4}, 15, v{vSt}
    v_mov_b32 v{vSum}, 0
    v_mov_b32 v{vSum+1}, 0""")
    pf.stamp()
    def xstats(j):
        for r in range(16):
            x = X + 16*j + r
            q = S + 2*(r % 2)
            first = (j == 0 and r < 2)
            a(f"v_dot2_f32_bf16 v{q}, v{x}, s{sOnes}, {'0' if first else 'v%d' % q}")
            a(f"v_dot2_f32_bf16 v{q+1}, v{x}, v{x}, {'0' if first else 'v%d' % (q+1)}")
    a(f"v_lshlrev_b32 v{vXw}, 4, v{vL}")
    a(f"v_add_u32 v{vXw}, s{sXb}, v{vXw}")
    issued = CFG.ka_xfirst
    for j in range(9):
        a(f"s_waitcnt vmcnt({4*(issued-1-j)})")
        if CFG.prof == 3: pf.stamp()
        if j >= 5:
            for rg in range(4):
                a(f"ds_write_b128 v{vXw}, {vr(X+16*j+4*rg,4)} offset:{(j%5)*4096+rg*1024}")
        for i in range(4):
            if j % 5 < 4: a(f"ds_read_b128 {vr(X+16*j+4*i,4)}, v{vSR+i} offset:{(j%5)*4096}")
            else: a(f"ds_read_b128 {vr(X+16*j+4*i,4)}, v{vSRs+i}")
        if issued < 9:
            xload(issued); issued += 1
        if j > 0:
            a(f"s_waitcnt lgkmcnt({8 if j >= 5 else 4})")
            a.lines.append(".p2align 3")
            xstats(j-1)
    a("s_waitcnt lgkmcnt(0)")
    a.lines.append(".p2align 3")
    xstats(8)
    pf.stamp()
    a(f"""v_add_f32 v{S}, v{S}, v{S+2}
    v_add_f32 v{S+1}, v{S+1}, v{S+3}
    s_mov_b32 s{sT0}, {f32(-1.0/576)}
    s_mov_b32 s{sT1}, {f32(1.0/576)}
    s_mov_b32 s{sT2}, {f32(KSC)}
    v_mov_b32 v{S+2}, v{S}
    v_mov_b32 v{S+3}, v{S+1}
    v_permlane32_swap_b32 v{S}, v{S+2}
    v_permlane32_swap_b32 v{S+1}, v{S+3}
    v_add_f32 v{S}, v{S}, v{S+2}
    v_add_f32 v{S+1}, v{S+1}, v{S+3}
    v_mul_f32 v{vNm}, s{sT0}, v{S}
    v_mul_f32 v{S+1}, s{sT1}, v{S+1}
    v_fma_f32 v{S+1}, -v{vNm}, v{vNm}, v{S+1}
    v_max_f32 v{S+1}, 0, v{S+1}
    v_add_f32 v{S+1}, {f32(EPS)}, v{S+1}
    v_rsq_f32 v{S+1}, v{S+1}
    s_mov_b32 s{sU}, 0
    s_mov_b32 s{sDc}, s{sDn}
    s_mov_b32 s{sDp}, s{sDn}
    v_mul_f32 v{vSc}, s{sT2}, v{S+1}""")
    CT = [W, W+2, W+4, W+6]
    def center(kk):
        o = []
        for r in range(4):
            x = X + 4*kk + r
            o.append(f"v_dot2_f32_bf16 v{CT[r]}, v{x}, s{sOlo}, v{vNm}")
            o.append(f"v_dot2_f32_bf16 v{CT[r]+1}, v{x}, s{sOhi}, v{vNm}")
        for r in range(4):
            o.append(f"v_cvt_pk_bf16_f32 v{X+4*kk+r}, v{CT[r]}, v{CT[r]+1}")
        return o
    def center_plain(kk):
        o = []
        for r in range(4):
            x = X + 4*kk + r
            o += [f"v_lshlrev_b32 v{CT[r]}, 16, v{x}", f"v_and_b32 v{CT[r]+1}, 0xffff0000, v{x}",
                  f"v_add_f32 v{CT[r]}, v{vNm}, v{CT[r]}", f"v_add_f32 v{CT[r]+1}, v{vNm}, v{CT[r]+1}",
                  f"v_cvt_pk_bf16_f32 v{x}, v{CT[r]}, v{CT[r]+1}"]
        return o
    NPRE = CFG.ka_npre
    a.lines.append(".p2align 3")
    for kk in range(NPRE):
        for l in center(kk): a(l)
    pf.stamp()
    a("s_barrier")
    pf.stamp()

    def reads(kk, t):
        st = kk % 3
        off = (kk % 18) * 2048
        return [f"ds_read_b64_tr_b16 {vr(FR+8*st+4*t+2*h,2)}, v{vA1 if t else vA0} offset:{off+512*h}" for h in range(2)]
    def reads_s(kk):
        return [f"ds_read_b64_tr_b16 {vr(FR+8*(kk%3)+2*h,2)}, v{vA0} offset:{kk*512+128*h}" for h in range(2)]
    def mfma(par, kk, t):
        st = kk % 3; acc = AC[par] + 16*t
        c = "0" if kk == 0 else vr(acc, 16)
        return f"v_mfma_f32_32x32x16_bf16 {vr(acc,16)}, {vr(FR+8*st+4*t,4)}, {vr(X+4*kk,4)}, {c}"
    def stores(E, m):
        if CFG.ka_nostore: return []
        return [f"s_add_u32 s{sSt}, s{sDp}, {2*m*OCT}",
                f"buffer_store_dwordx4 {vr(E+8*m,4)}, v{vSt}, s[{sZQ}:{sZQ+3}], s{sSt} offen {CFG.st_aux_a}"]
    def epi(kind, E, ne_=32, D=None):
        out = []
        order = list(range(ne_)) if D is None else list(range(16, 32)) + list(range(16))
        dst = (lambda p: E+(p//8)*8+(p%8)//2) if D is None else D
        if kind == "P":
            for e in range(32):
                out.append(f"v_mul_f32 v{E+e}, v{vSc}, v{E+e}")
                if e % 2 == 1 and e >= 3:
                    p = e - 3; out.append(f"v_cvt_pk_bf16_f32 v{E+(p//8)*8+(p%8)//2}, v{E+p}, v{E+p+1}")
            out.append(f"v_cvt_pk_bf16_f32 v{E+27}, v{E+30}, v{E+31}")
            return out
        def st(k, pos):
            w = E + order[pos]; t = T + pos % 6
            return [f"v_mul_f32 v{w}, v{vSc}, v{w}", f"v_fma_f32 v{t}, v{w}, v{w}, s{sDl}", f"v_mul_f32 v{t}, v{t}, v{w}",
                    f"v_exp_f32 v{t}, v{t}", f"v_add_f32 v{t}, 1.0, v{t}", f"v_rcp_f32 v{t}, v{t}", f"v_mul_f32 v{w}, v{t}, v{w}"][k]
        for i in range(ne_ + 7):
            for k in (6, 3, 0, 4, 1, 5, 2):
                e = i - k
                if 0 <= e < ne_: out.append(st(k, e))
            e = i - 7
            if 0 <= e < ne_ and e % 2 == 1:
                p = order[e - 1]; out.append(f"v_cvt_pk_bf16_f32 v{dst(p)}, v{E+p}, v{E+p+1}")
        return out
    def stats(E):
        out = []
        for m in range(4):
            for i in range(4):
                b = E + 8*m
                out.append(f"v_dot2_f32_bf16 v{vSum}, v{b+i}, s{sOnes}, v{vSum}")
                out.append(f"v_dot2_f32_bf16 v{vSum+1}, v{b+i}, v{b+i}, v{vSum+1}")
        return out
    DA = lambda p: AC[0] + 16 + ((p - 16) // 2 if p >= 16 else 8 + p // 2)
    def body(kind, par):
        E = AC[1 - par]
        if kind == "F":
            for l in reads(0, 0) + reads(0, 1) + reads(1, 0) + reads(1, 1): a(l)
        a.label(f"{N}_{kind}{par}")
        slots = []
        for kk in range(0, 36):
            lw = 4
            if kind == "S": lw = 2 if kk < 35 else 0
            if kind == "H" and kk == 35: lw = 2
            s0 = [f"s_waitcnt lgkmcnt({lw})", mfma(par, kk, 0)]
            s1 = [mfma(par, kk, 1)] if kind != "S" else []
            if kk == 0: s0 += [f"s_add_u32 s{sV}, s{sU}, 1"]
            if kk == 1 and kind != "F": s0 += ["s_barrier"]
            if (kind, par, kk) == (("P", 0, 33) if CFG.ka_fq < 0 else ("H", 1, CFG.ka_fq)):
                s0 += ["s_waitcnt vmcnt(0)", f"buffer_store_dword v14, v13, s[{sFQ}:{sFQ+3}], s{sFq} offen sc1"]
            if kk == 20 and kind == "P" and par == 0: s1 += ["ds_read_b32 v14, v12"]
            if kk == 34: s0 += ["s_barrier"]
            if kk + 2 == 18 and kind != "S":
                s0 += [f"v_add_u32 v{vA0}, {18*2048}, v{vA0}", f"v_add_u32 v{vA1}, {18*2048}, v{vA1}"]
            if kind == "S": s0 += reads_s(kk + 2) if kk < 34 else []
            elif kind == "H" and kk >= 34: s0 += reads_s(kk - 34)
            else: s0 += reads((kk+2) % 36, 0)
            if kind != "S" and (kind != "H" or kk < 34): s1 += reads((kk+2) % 36, 1)
            st0 = (CFG.ka_pst1 if par else CFG.ka_pst) if kind == "P" else 36 - CFG.ka_stpos
            if kind in "GP" and st0 <= kk < st0 + 4:
                s0 += stores(E, kk - st0)
            if kk == 33 and kind == "H":
                s1 += [f"v_lshrrev_b32 v{vA0}, 7, v{vPn}", f"v_and_b32 v{vA1}, 24, v{vPn}", f"v_lshl_add_u32 v{vA0}, v{vA0}, 5, v{vA1}"]
            elif kk == 33 and kind != "S": s1 += traddr(1 - par)
            slots += [s0, s1]
        if kind == "S":
            sl = [slots[2*i] + slots[2*i+1] for i in range(36)]
            out = sl[0] + spread(sl[1:], epi("H", E))
        elif kind == "F":
            ne = 2 * NPRE - 2
            out = spread(slots[:ne], sum([center_plain(kk) for kk in range(NPRE, 36)], []))
            out += interleave(slots[ne:-6], cparams()) + sum(slots[-6:], [])
        elif kind == "N":
            out = slots[0] + interleave(slots[1:20], cparams()) + sum(slots[20:], [])
        elif kind == "H":
            out = slots[0] + slots[1] + spread(slots[2:], epi(kind, E, D=DA))
        else:
            ep = epi(kind, E)
            ne = len(slots) - 2*CFG.ka_stpos + 4 if kind != "P" else 24
            out = slots[0] + spread(slots[1:ne], cparams() + ep) + sum(slots[ne:], [])
        for l in out:
            if CFG.prof == 4 and kind in "PH" and l in (mfma(par, 12, 0), mfma(par, 18, 0), mfma(par, 33, 0), mfma(par, 34, 0), mfma(par, 34, 1)): pf.stamp()
            a(l)
        if kind == "G":
            a.lines.append(".p2align 3")
            for l in stats(E): a(l)
            a(f"ds_write_b64 v{vStO}, {vr(vSum,2)}")
        a(f"s_mov_b32 s{sDp}, s{sDc}")
        a(f"s_mov_b32 s{sDc}, s{sDn}")
        a(f"s_mov_b32 s{sU}, s{sV}")
        pf.stamp()
    body("F", 0); body("G", 1); body("G", 0)
    a(f"s_cmp_lt_u32 s{sNz2}, 3")
    a(f"s_cbranch_scc1 {N}_P1")
    E2 = AC[0]
    a("s_nop 7")
    for l in epi("G", E2):
        a(l)
        for m in range(4):
            if l.startswith(f"v_cvt_pk_bf16_f32 v{E2+8*m+3},"):
                for x in stores(E2, m): a(x)
    a.lines.append(".p2align 3")
    for l in stats(E2): a(l)
    a(f"ds_write_b64 v{vStO}, {vr(vSum,2)}")
    a("s_waitcnt lgkmcnt(0)")
    pf.stamp()
    body("N", 1)
    a(f"s_branch {N}_P0")
    body("P", 1); body("P", 0); body("H", 1); body("S", 0)
    src = [AC[0] + 24, AC[0] + 28, AC[0] + 16, AC[0] + 20, AC[1], AC[1] + 8, AC[1] + 16, AC[1] + 24]
    a(f"s_cmp_lg_u32 s{sMis}, 0")
    a(f"s_cbranch_scc1 {N}_zmis")
    for m in range(8):
        for r in range(4): a(f"v_mov_b32 v{Z1B+4*m+r}, v{src[m]+r}")
    a(f"s_branch {N}_zdone")
    a.label(f"{N}_zmis")
    for m, q in enumerate([4, 5, 0, 1, 2, 3, 6, 7]):
        for r in range(4): a(f"v_mov_b32 v{Z1B+4*m+r}, v{src[q]+r}")
    a.label(f"{N}_zdone")
    tl = epi("H", AC[0], 8)
    sw = []
    for i in range(4):
        for r in range(4): sw.append(f"v_permlane32_swap_b32 v{Z1B+8*i+r}, v{Z1B+8*i+4+r}")
        for r in range(4): sw.append(f"v_permlane16_swap_b32 v{Z1B+8*i+r}, v{Z1B+8*i+4+r}")
    for l in interleave([[x] for x in tl], sw): a(l)
    for r in range(4): a(f"v_mov_b32 v{Z1B+32+r}, v{AC[0]+r}")
    for r in range(2): a(f"v_permlane16_swap_b32 v{Z1B+32+r}, v{Z1B+34+r}")
    pf.stamp()
    a(f"s_branch {N}_At")
    a.label(f"{N}_prod")
    vD, vDin, vDq, vPi, vPq, vWo, vT, vZero, vTg = 2, 6, 7, 8, 9, 10, 20, 11, 24
    sIsT, sSo2 = 63, 50
    a(f"v_mov_b32 v{vZero}, 0")
    WU, P, MH, ML, C, TT = 128, 32, 96, 100, 104, 112
    sWS, sWP, sCP, sDB, sFL = 12, 24, 4, 8, 64
    sPc = sXr + 2
    if CFG.ka_prio: a(f"s_setprio {CFG.ka_prio}")
    a(f"s_cmp_lg_u32 s{sWave}, 4")
    a(f"s_cbranch_scc1 {N}_nopf1")
    code_prefetch(a, 88, vT, vL, N)
    a.label(f"{N}_nopf1")
    if CFG.ka_xpf:
        a(f"""s_sub_u32 s{sT1}, s{sWave}, 4
        s_lshl_b32 s{sT1}, s{sT1}, 5
        s_lshl_b32 s{sT0}, s{sRb}, 7
        s_add_u32 s{sT0}, s{sT0}, s{sT1}
        s_mul_i32 s{sT0}, s{sT0}, 1152
        v_lshrrev_b32 v{vT}, 2, v{vL}
        v_mul_u32_u24 v{vT}, 1152, v{vT}
        v_and_b32 v{vT+1}, 3, v{vL}
        v_lshl_add_u32 v{vT}, v{vT+1}, 7, v{vT}
        s_add_u32 s{sT1}, s{sT0}, {16*1152}
        s_waitcnt lgkmcnt(0)""")
        a.srd(sX, 4, 5, 2048 * 1152)
        a(f"buffer_load_dword v{vT+1}, v{vT}, s[{sX}:{sX+3}], s{sT0} offen offset:640")
        a(f"buffer_load_dword v{vT+2}, v{vT}, s[{sX}:{sX+3}], s{sT1} offen offset:640")
    a(unit_lists)
    a(f"""s_sub_u32 s{sPw}, s{sWave}, 4
    s_and_b32 s{sPc}, s{sPw}, 1
    s_mov_b32 s{sP8i}, {8*9216}
    s_mov_b32 s{sP8q}, {8*3456}
    v_lshrrev_b32 v{T+2}, 2, v{vL}
    v_and_b32 v{T+2}, 4, v{T+2}
    v_xor_b32 v{T+2}, v{T+2}, v{T+1}
    v_lshlrev_b32 v{T+2}, 4, v{T+2}
    v_mul_u32_u24 v{vDin}, 9216, v{T}
    v_add_u32 v{vDin}, v{vDin}, v{T+2}
    v_mul_u32_u24 v{vDq}, 3456, v{T}
    v_add_u32 v{vDq}, v{vDq}, v{T+2}
    v_lshlrev_b32 v{vWo}, 12, v{T}
    v_lshl_add_u32 v{vWo}, v{T+1}, 4, v{vWo}
    s_and_b32 s{sT0}, s{sRb}, {(1<<RBL)-1}
    s_mul_i32 s{sT0}, s{sT0}, {576>>RBL}
    s_mul_i32 s{sT1}, s{sPw}, {144>>RBL}
    s_add_u32 s{sT0}, s{sT0}, s{sT1}
    v_min_u32 v{T+2}, {(144>>RBL)-1}, v{vL}
    v_add_u32 v{T+2}, s{sT0}, v{T+2}
    v_mul_u32_u24 v{vPi}, 9216, v{T+2}
    v_mul_u32_u24 v{vPq}, 3456, v{T+2}""")
    a("s_waitcnt lgkmcnt(0)")
    a.srd(sWI, 8, 9, 576 * 9216)
    a.srd(sWQ, 6, 7, 576 * 3456)
    a(f"s_mov_b32 s{sDM+3}, 0x00020000")
    a.srd(sWS, 10, 11, 2048 * 4096)
    a.srd_off(sWP, 98, 99, CFG.ws_base + WP_OFF, WP_SZ)
    a.srd_off(sST, 98, 99, CFG.ws_base + ST_OFF, ST_SZ)
    a.srd_off(sCP, 98, 99, CFG.ws_base + CP_OFF, CP_SZ)
    a.srd(sDB, 96, 97, 256)
    a.srd_off(sFL, 98, 99, CFG.ws_base + FL_OFF, FL_SZ)
    a(f"""s_lshl_b32 s{sIsT}, s2, 3
    s_or_b32 s{sIsT}, s{sIsT}, s{sPw}
    v_mov_b32 v{vTg}, {FL_TAG}
    s_cmp_lg_u32 s{sIsT}, 0
    s_cbranch_scc1 {N}_notag
    buffer_load_dword v{vTg+1}, v{vTg}, s[{sFL}:{sFL+3}], 0 offen sc1""")
    a.label(f"{N}_notag")
    def pparams():
        a(f"""s_add_u32 s{sT0}, s{sZ2s}, s{sV}
        s_lshl_b32 s{sT0}, s{sT0}, 7
        s_lshl_b32 s{sT1}, s{sV}, 7
        s_add_u32 s{sT1}, s{sT1}, s{sZ1m}
        s_cmp_eq_u32 s{sV}, 4
        s_cselect_b32 s{sT2}, 64, -128
        s_mul_i32 s{sT2}, s{sT2}, s{sMis}
        s_add_u32 s{sT1}, s{sT1}, s{sT2}
        s_add_u32 s{sT2}, s{sQm}, s{sV}
        s_min_u32 s{sT2}, s{sT2}, 26
        s_lshl_b32 s{sT2}, s{sT2}, 7
        s_cmp_lt_u32 s{sV}, s{sNz2}
        s_cselect_b32 s{sUn}, s{sT0}, s{sT1}
        s_cmp_eq_u32 s{sV}, 6
        s_cselect_b32 s{sUn}, s{sHu}, s{sUn}
        s_sub_u32 s{sT0}, s{sV}, s{sNz2}
        s_sub_u32 s{sT1}, 4, s{sNz2}
        s_cmp_ge_u32 s{sT0}, s{sT1}
        s_cselect_b32 s{sUn}, s{sUn}, s{sT2}
        s_cselect_b64 s[{sMq}:{sMq+1}], 0, -1
        s_cselect_b64 s[{sDM}:{sDM+1}], s[{sWI}:{sWI+1}], s[{sWQ}:{sWQ+1}]
        s_cselect_b32 s{sDM+2}, s{sWI+2}, s{sWQ+2}
        s_cselect_b32 s{sP8}, s{sP8i}, s{sP8q}
        s_cmp_lt_u32 s{sV}, 7
        s_cselect_b32 s{sUn}, s{sUn}, 0x7f000000""")
    def issue(nw=4):
        pparams()
        a(f"""v_cndmask_b32 v{vD}, v{vDin}, v{vDq}, s[{sMq}:{sMq+1}]
        s_sub_u32 s{sDvs}, s{sP8}, 1024
        s_lshl_b32 s{sDstep}, s{sP8}, 1
        s_mul_i32 s{sDma}, s{sDstep}, s{sPw}
        s_add_u32 s{sDma}, s{sDma}, s{sUn}
        s_mul_i32 s{sDstep}, s{sDstep}, {nw}""")
        if nw == 2:
            a(f"""v_and_b32 v{vD+1}, 64, v{vD}
            v_mul_u32_u24 v{vD+1}, s{sMis}, v{vD+1}
            v_lshl_add_u32 v{vD}, v{vD+1}, 1, v{vD}""")
        a(f"""v_add_u32 v{vD+1}, s{sDvs}, v{vD}
        s_lshl_b32 s{sT0}, s{sPw}, 11
        s_add_u32 m0, s{sBufN}, s{sT0}
        s_sub_u32 s{sBufN}, {UB}, s{sBufN}
        s_add_u32 s{sV}, s{sV}, 1""")
        for i in range(36 // nw):
            for j in range(2):
                a(f"buffer_load_dwordx4 v{vD+j}, s[{sDM}:{sDM+3}], s{sDma} offen offset:{1024*j} lds")
            if i < 36 // nw - 1:
                a(f"s_add_u32 m0, m0, {2048*nw}")
                a(f"s_add_u32 s{sDma}, s{sDma}, s{sDstep}")
    a(f"s_mov_b32 s{sV}, 0")
    a(f"s_mov_b32 s{sBufN}, 0")
    if CFG.ka_xbar >= 0: a("s_barrier")
    issue()
    def l2pf(d=CFG.ka_l2pf-1):
        if d: a(f"s_add_u32 s{sV}, s{sV}, {d}")
        pparams()
        if d: a(f"s_sub_u32 s{sV}, s{sV}, {d}")
        a(f"v_cndmask_b32 v{vT+3}, v{vPi}, v{vPq}, s[{sMq}:{sMq+1}]")
        a(f"buffer_load_dword v14, v{vT+3}, s[{sDM}:{sDM+3}], s{sUn} offen {CFG.ka_pf_aux}")
    npf = 1 if CFG.ka_l2pf else 0
    for d in range(CFG.ka_pf0): l2pf(d)
    if CFG.ka_spf:
        a(f"""s_mul_i32 s{sXr}, s{sRb}, 36
        s_mul_i32 s{sT0}, s{sPw}, 9
        s_add_u32 s{sXr}, s{sXr}, s{sT0}""")
        a.label(f"{N}_spf")
        pparams()
        a(f"""s_lshr_b32 s{sT0}, s{sP8}, 3
        s_mul_i32 s{sT1}, s{sT0}, s{sXr}
        s_add_u32 s{sT1}, s{sT1}, s{sUn}
        s_add_u32 s96, s{sDM}, s{sT1}
        s_addc_u32 s97, s{sDM+1}, 0
        s_mov_b32 s{sT1}, 0""")
        for r in range(9):
            a(f"s_load_dword s{[98,94][r%2]}, s[96:97], s{sT1}")
            a(f"s_load_dword s{[99,95][r%2]}, s[96:97], s{sT1} offset:64")
            if r < 8: a(f"s_add_u32 s{sT1}, s{sT1}, s{sT0}")
        a(f"""s_add_u32 s{sV}, s{sV}, 1
        s_cmp_lt_u32 s{sV}, s{sN}
        s_cbranch_scc1 {N}_spf
        s_mov_b32 s{sV}, 1""")
    a(f"""s_lshl_b32 s{sXr}, s{sCg}, 19
    s_lshl_b32 s{sT0}, s{sRb}, 8
    s_add_u32 s{sXr}, s{sXr}, s{sT0}
    s_lshl_b32 s{sT0}, s{sPc}, 7
    s_add_u32 s{sXr}, s{sXr}, s{sT0}
    s_mov_b32 s{sXr+1}, s{sXr}""")
    a(f"s_waitcnt vmcnt({CFG.ka_pf0})")
    for d in range(CFG.ka_pf0, CFG.ka_l2pf): l2pf(d)
    a(f"""s_cmp_lg_u32 s{sIsT}, 0
    s_cbranch_scc1 {N}_notag2
    v_add_u32 v{vTg+1}, 1, v{vTg+1}
    v_max_u32 v{vTg+1}, 1, v{vTg+1}
    buffer_store_dword v{vTg+1}, v{vTg}, s[{sFL}:{sFL+3}], 0 offen sc1""")
    a.label(f"{N}_notag2")
    pf.stamp()
    a("s_barrier")
    if CFG.ka_prio2: a(f"s_setprio {CFG.ka_prio2}")
    def special(v):
        l = a.newlabel(N + "_sp")
        a(f"s_cmp_lg_u32 s{sV}, {v}")
        a(f"s_cbranch_scc1 {l}")
        return l
    a.label(f"{N}_ploop")
    nopub = a.newlabel(N + "_nopub")
    a(f"s_cmp_lg_u32 s{sV}, 4")
    a(f"s_cbranch_scc1 {nopub}")
    a(f"s_cmp_lg_u32 s{sPw}, 0")
    a(f"s_cbranch_scc1 {nopub}")
    a(f"""v_lshrrev_b32 v{vT}, 5, v{vL}
    v_and_b32 v{vT+1}, 31, v{vL}
    v_lshlrev_b32 v{vT}, 12, v{vT}
    v_lshl_add_u32 v{vT}, v{vT+1}, 3, v{vT}
    v_add_u32 v{vT}, {STG}, v{vT}
    ds_read_b64 {vr(P,2)}, v{vT}
    ds_read_b64 {vr(P+8,2)}, v{vT} offset:256
    ds_read_b64 {vr(P+4,2)}, v{vT} offset:8192
    ds_read_b64 {vr(P+10,2)}, v{vT} offset:{8192+256}
    v_lshlrev_b32 v{vT+1}, 4, v{vL}
    s_lshl_b32 s{sT0}, s{sRb}, 4
    s_add_u32 s{sT0}, s{sT0}, s{sCg}
    s_lshl_b32 s{sT0}, s{sT0}, 11
    v_mov_b32 v{P+2}, s{sTag}
    v_mov_b32 v{P+3}, s{sTag}
    v_mov_b32 v{P+6}, s{sTag}
    v_mov_b32 v{P+7}, s{sTag}
    s_waitcnt lgkmcnt(0)
    v_add_f32 v{P}, v{P}, v{P+8}
    v_add_f32 v{P+1}, v{P+1}, v{P+9}
    v_add_f32 v{P+4}, v{P+4}, v{P+10}
    v_add_f32 v{P+5}, v{P+5}, v{P+11}
    buffer_store_dwordx4 {vr(P,4)}, v{vT+1}, s[{sST}:{sST+3}], s{sT0} offen sc1
    buffer_store_dwordx4 {vr(P+4,4)}, v{vT+1}, s[{sST}:{sST+3}], s{sT0} offen offset:1024 sc1""")
    a.label(nopub)
    issue()
    if npf: l2pf()
    l3 = a.newlabel(N + "_l"); l4 = a.newlabel(N + "_l")
    l = special(2)
    a(f"s_cmp_lt_u32 s{sPw}, 2")
    a(f"s_cbranch_scc1 {N}_s0b")
    for i in range(16):
        a(f"buffer_load_dwordx4 {vr(WU+8*i+4,4)}, v{vWo}, s[{sWS}:{sWS+3}], s{sXr+1} offen {CFG.ka_wsp_aux}")
        a(f"s_add_u32 s{sXr+1}, s{sXr+1}, 32768")
    a(f"s_waitcnt vmcnt({16+npf})")
    a(f"s_branch {l3}")
    a.label(f"{N}_s0b")
    a(f"""v_mov_b32 v{vT+1}, {TAG_LDS-8}
    ds_write_b32 v{vT+1}, v{vZero}
    ds_write_b32 v{vT+1}, v{vZero} offset:4
    s_waitcnt vmcnt({npf}) lgkmcnt(0)
    s_cmp_lg_u32 s{sIsT}, 0
    s_cbranch_scc1 {l3}
    buffer_store_dword v{vTg+1}, v{vZero}, s[{sDB}:{sDB+3}], 0 offen sc1""")
    a(f"s_branch {l3}")
    a.label(l)
    l = special(4)
    a(f"s_mov_b32 s{sT1}, {CFG.bound}")
    a.label(f"{N}_ptag")
    a(f"""buffer_load_dword v{vT+2}, v{vZero}, s[{sDB}:{sDB+3}], 0 offen sc1
    s_waitcnt vmcnt(0)
    v_readfirstlane_b32 s{sTag}, v{vT+2}
    v_mov_b32 v{vT+1}, {TAG_LDS}
    ds_write_b32 v{vT+1}, v{vT+2}
    s_waitcnt lgkmcnt(0)
    s_sub_u32 s{sT1}, s{sT1}, 1
    s_cmp_eq_u32 s{sT1}, 0
    s_cbranch_scc1 {l3}
    s_cmp_lg_u32 s{sTag}, 0
    s_cbranch_scc1 {l3}
    s_sleep 8
    s_branch {N}_ptag""")
    a.label(l)
    a(f"s_cmp_lt_u32 s{sPw}, 2")
    a(f"s_cbranch_scc1 {l4}")
    l = special(5)
    for i in range(16):
        for r in range(4):
            x = WU + 8*i + 4 + r
            a(f"v_lshlrev_b32 v{WU+8*i+2*r}, 16, v{x}")
            a(f"v_and_b32 v{WU+8*i+2*r+1}, 0xffff0000, v{x}")
    sTry = sXr + 3
    a(f"""v_lshlrev_b32 v{vT}, 4, v{vL}
    s_lshl_b32 s{sT0}, s{sRb}, 15
    s_lshl_b32 s{sT1}, s{sPc}, 10
    s_add_u32 s{sSo2}, s{sT0}, s{sT1}
    s_mov_b32 s{sTry}, {CFG.bound}
    s_waitcnt vmcnt({npf})""")
    def full(aux="sc1"):
        a(f"s_mov_b32 s{sT0}, s{sSo2}")
        for i in range(16):
            a(f"buffer_load_dwordx4 {vr(P+4*i,4)}, v{vT}, s[{sST}:{sST+3}], s{sT0} offen offset:{(i%2)*2048} {aux}")
            if i % 2 == 1: a(f"s_add_u32 s{sT0}, s{sT0}, 4096")
    a("s_barrier")
    full(CFG.ka_st_aux)
    a("s_barrier")
    a(f"s_branch {N}_job")
    a.label(l)
    a.label(l4)
    a(f"s_waitcnt vmcnt({npf})")
    a.label(l3)
    if CFG.prof == 4: pf.stamp()
    a("s_barrier")
    if CFG.prof == 4: pf.stamp()
    a("s_barrier")
    a(f"s_cmp_lt_u32 s{sV}, 5")
    a(f"s_cbranch_scc1 {N}_ploop")
    issue(2)
    if CFG.codepf2 & 1:
        a(f"s_cmp_lg_u32 s{sPw}, 0")
        a(f"s_cbranch_scc1 {N}_nopf3")
        code_prefetch(a, 88, 26, vL, N)
        a.label(f"{N}_nopf3")
    a(f"""v_lshrrev_b32 v{vD}, 1, v{vL}
    v_mul_u32_u24 v{vD}, 9216, v{vD}
    v_and_b32 v{vD+1}, 1, v{vL}
    v_lshl_add_u32 v{vD}, v{vD+1}, 4, v{vD}
    s_mul_i32 s{sDma}, s{sPw}, {32*9216}
    s_add_u32 s{sDma}, s{sDma}, s{sHu}
    s_lshl_b32 s{sT0}, s{sPw}, 10
    s_mov_b32 m0, s{sT0}
    s_waitcnt vmcnt(0)""")
    if CFG.prof == 4: pf.stamp()
    a("""s_barrier
    s_barrier""")
    if CFG.prof == 4: pf.stamp()
    for i in range(9):
        a(f"buffer_load_dwordx4 v{vD}, s[{sWI}:{sWI+3}], s{sDma} offen lds")
        if i < 8:
            a("s_add_u32 m0, m0, 2048")
            a(f"s_add_u32 s{sDma}, s{sDma}, {64*9216}")
    a(f"s_branch {N}_Bh")
    a.label(f"{N}_job")
    if CFG.ka_prio2: a(f"s_setprio {CFG.ka_prioj}")
    pf.stamp()
    sSt8 = sXr + 1
    def d5():
        l = a.newlabel(N + "_d5")
        a(f"""s_cmp_lg_u32 s{sSt8}, 0
        s_cbranch_scc1 {l}
        s_mov_b32 s{sSt8}, 1
        s_barrier
        s_barrier""")
        a.label(l)
    a(f"s_mov_b32 s{sSt8}, 0")
    a(f"s_branch {N}_pst_w")
    a.label(f"{N}_pst")
    d5()
    a("s_sleep 8")
    full()
    a.label(f"{N}_pst_w")
    a("s_waitcnt vmcnt(0)")
    for i in range(16): a(f"v_xor_b32 v{P+4*i+2}, s{sTag}, v{P+4*i+2}")
    for i in range(1, 16): a(f"v_or_b32 v{P+2}, v{P+2}, v{P+4*i+2}")
    a(f"""v_cmp_ne_u32 vcc, 0, v{P+2}
    s_sub_u32 s{sTry}, s{sTry}, 1
    s_cmp_eq_u32 s{sTry}, 0
    s_cbranch_scc1 {N}_pst_ok
    s_cmp_lg_u64 vcc, 0
    s_cbranch_scc1 {N}_pst""")
    a.label(f"{N}_pst_ok")
    pf.stamp()
    a(f"""v_lshlrev_b32 v{vT}, 3, v{vL}
    s_lshl_b32 s{sT1}, s{sPw}, 9
    s_add_u32 s{sT1}, s{sT1}, {STG+4096+2048}
    v_add_u32 v{vT}, s{sT1}, v{vT}
    v_lshlrev_b32 v{vT+1}, 6, v{T+1}
    v_add_u32 v{vT+1}, s{sT1}, v{vT+1}
    s_mov_b32 s{sT0}, {f32(1.0/2304)}
    s_mov_b32 s{sT2}, {f32(1.0/abs(KSC))}""")
    for i in range(1, 16):
        a(f"v_add_f32 v{P}, v{P}, v{P+4*i}")
        a(f"v_add_f32 v{P+1}, v{P+1}, v{P+4*i+1}")
    a(f"""v_mul_f32 v{P}, s{sT0}, v{P}
    v_mul_f32 v{P+1}, s{sT0}, v{P+1}
    v_fma_f32 v{P+1}, -v{P}, v{P}, v{P+1}
    v_max_f32 v{P+1}, 0, v{P+1}
    v_add_f32 v{P+1}, {f32(EPS*KSC*KSC)}, v{P+1}
    v_rsq_f32 v{P+1}, v{P+1}
    v_mul_f32 v{P+1}, s{sT2}, v{P+1}
    ds_write_b64 v{vT}, {vr(P,2)}""")
    for q in range(4):
        a(f"ds_read_b128 {vr(P+4*q,4)}, v{vT+1} offset:{16*q}")
    a("s_waitcnt lgkmcnt(0)")
    for i in range(16):
        for r in range(8): a(f"v_mul_f32 v{WU+8*i+r}, v{P+2*r+1}, v{WU+8*i+r}")
        for r in range(4): a(f"v_cvt_pk_bf16_f32 v{WU+8*i+r}, v{WU+8*i+2*r}, v{WU+8*i+2*r+1}")
        if i < CFG.ka_early:
            a(f"buffer_store_dwordx4 {vr(WU+8*i,4)}, v{vWo}, s[{sWP}:{sWP+3}], s{sXr} offen sc1")
            a(f"s_add_u32 s{sXr}, s{sXr}, 32768")
    d5()
    for i in range(CFG.ka_early, 16):
        if i == CFG.ka_d6:
            a("s_barrier"); a("s_barrier")
        a(f"buffer_store_dwordx4 {vr(WU+8*i,4)}, v{vWo}, s[{sWP}:{sWP+3}], s{sXr} offen sc1")
        a(f"s_add_u32 s{sXr}, s{sXr}, 32768")
    pf.stamp()
    a(f"""s_lshl_b32 s{sXr}, s{sCg}, 7
    s_lshl_b32 s{sT1}, s{sRb}, 3
    s_add_u32 s{sXr}, s{sXr}, s{sT1}
    s_lshl_b32 s{sT1}, s{sPc}, 2
    s_add_u32 s{sXr}, s{sXr}, s{sT1}
    v_mov_b32 v{vTg}, s{sTag}""")
    fw = f"""s_waitcnt vmcnt(0)
    buffer_store_dword v{vTg}, v{vZero}, s[{sFL}:{sFL+3}], s{sXr} offen offset:{FL_W} sc1"""
    if CFG.ka_fwe: a(fw)
    if CFG.ka_d6 > 15:
        a("s_barrier")
        a("s_barrier")
    if CFG.ka_d7: a("s_barrier")
    if not CFG.ka_fwe: a(fw)
    pf.stamp()
    if not CFG.ka_d7: a("s_barrier")
    C2 = 48
    for p in range(4): a(f"v_cvt_pk_bf16_f32 v{MH+p}, v{P+4*p}, v{P+4*p+2}")
    for p in range(4):
        a(f"v_lshlrev_b32 v{TT}, 16, v{MH+p}")
        a(f"v_and_b32 v{TT+1}, 0xffff0000, v{MH+p}")
        a(f"v_sub_f32 v{TT}, v{P+4*p}, v{TT}")
        a(f"v_sub_f32 v{TT+1}, v{P+4*p+2}, v{TT+1}")
        a(f"v_cvt_pk_bf16_f32 v{ML+p}, v{TT}, v{TT+1}")
    a.lines.append(".p2align 3")
    for i in range(0, 16, 2):
        for r in range(4):
            for q in range(2):
                a(f"v_dot2_f32_bf16 v{C2+i+q}, v{WU+8*(i+q)+r}, v{MH+r}, {'0' if r==0 else 'v%d'%(C2+i+q)}")
            for q in range(2):
                a(f"v_dot2_f32_bf16 v{C2+i+q}, v{WU+8*(i+q)+r}, v{ML+r}, v{C2+i+q}")
    for ctrl in ["quad_perm:[1,0,3,2]", "quad_perm:[2,3,0,1]", "row_half_mirror"]:
        for q in range(16):
            a(f"v_add_f32_dpp v{C2+q}, v{C2+q}, v{C2+q} {ctrl} row_mask:0xf bank_mask:0xf")
    for i in range(1, 8):
        a(f"v_cmp_eq_u32 vcc, {i}, v{T+1}")
        a(f"v_cndmask_b32 v{C2}, v{C2}, v{C2+i}, vcc")
        a(f"v_cndmask_b32 v{C2+8}, v{C2+8}, v{C2+8+i}, vcc")
    a(f"""v_lshlrev_b32 v{vT}, 2, v{T}
    v_lshl_add_u32 v{vT}, v{T+1}, 5, v{vT}
    s_lshl_b32 s{sT0}, s{sCg}, 9
    s_lshl_b32 s{sT1}, s{sRb}, 14
    s_add_u32 s{sT0}, s{sT0}, s{sT1}
    s_lshl_b32 s{sT1}, s{sPc}, 13
    s_add_u32 s{sT0}, s{sT0}, s{sT1}
    buffer_store_dword v{C2}, v{vT}, s[{sCP}:{sCP+3}], s{sT0} offen sc1
    buffer_store_dword v{C2+8}, v{vT}, s[{sCP}:{sCP+3}], s{sT0} offen offset:256 sc1
    s_branch {N}_Bh""")

class Attn:
    KV, Q, LG, PH, O = 88, 184, 196, 60, 68
    vQo, vRd = 245, 246
    def __init__(self, a, sZQ, sUO, sT):
        self.a, self.sZQ, self.sUO, self.sT = a, sZQ, sUO, sT
    def base(self, sD, sT):
        self.a(f"""s_and_b32 s{sD}, s2, 7
        s_mul_i32 s{sD}, s{sD}, {9*OCT}
        s_lshr_b32 s{sT}, s2, 3
        s_lshl_b32 s{sT}, s{sT}, 10
        s_add_u32 s{sD}, s{sD}, s{sT}""")
    def kv_prep(self, vDo, TM):
        a = self.a
        for n in range(4):
            a(f"v_add_u32 v{TM}, {64*n}, v1")
            a(f"v_mul_u32_u24 v{TM+1}, 3277, v{TM}")
            a(f"v_lshrrev_b32 v{TM+1}, 18, v{TM+1}")
            a(f"v_mul_u32_u24 v{TM+2}, 80, v{TM+1}")
            a(f"v_sub_u32 v{TM}, v{TM}, v{TM+2}")
            a(f"v_lshlrev_b32 v{TM}, 4, v{TM}")
            a(f"v_lshl_add_u32 v{vDo+n}, v{TM+1}, 15, v{TM}")
            if n: a(f"v_subrev_u32 v{vDo+n}, {1024*n}, v{vDo+n}")
    def stage(self, heads, vDo, vZ, sB, sL, sT):
        a, sZQ = self.a, self.sZQ
        for kv in (0, 2, 1):
            for w in heads:
                if kv < 2:
                    a(f"s_add_u32 m0, s{sL}, {12288*w+4096*kv}")
                    a(f"s_add_u32 s{sT}, s{sB}, {(576+72+72*kv+(9*w>>2))*OCT-256}")
                    for n in range(4):
                        a(f"buffer_load_dwordx4 v{vDo+n}, s[{sZQ}:{sZQ+3}], s{sT} offen offset:{1024*n} lds")
                else:
                    for j in range(3):
                        a(f"s_add_u32 m0, s{sL}, {12288*w+8192+1024*j}")
                        a(f"s_add_u32 s{sT}, s{sB}, {(576+(9*w>>2)+j)*OCT}")
                        a(f"buffer_load_dwordx4 v{vZ}, s[{sZQ}:{sZQ+3}], s{sT} offen lds")
    def setup(self, sWave, sL):
        a, sT = self.a, self.sT
        self.base(sT, sT+1)
        a(f"""s_mul_i32 s{sT+1}, s{sWave}, 9
        s_lshr_b32 s{sT+1}, s{sT+1}, 2
        s_add_u32 s{sT+1}, s{sT+1}, 288
        s_lshl_b32 s{sT+1}, s{sT+1}, 15
        s_add_u32 s{sT}, s{sT}, s{sT+1}
        v_lshlrev_b32 v{self.vQo}, 4, v1
        s_mul_i32 s{sT+5}, s{sWave}, 12288
        s_add_u32 s{sT+5}, s{sT+5}, s{sL}
        s_add_u32 s{sT+5}, s{sT+5}, 32
        v_add_u32 v{self.vRd}, s{sT+5}, v{self.vQo}
        s_lshr_b32 s{sT+4}, s2, 3
        s_lshl_b32 s{sT+4}, s{sT+4}, 6
        v_add_u32 v16, s{sT+4}, v1
        v_mov_b32 v17, 0xff800000""")
        for w in range(1, 8):
            a(f"v_cmp_le_u32 s[{40+2*w}:{41+2*w}], {2*w}, v16")
        sc = (18 ** -0.5) * math.log2(math.e) / (KSC * KSC)
        a(f"s_mov_b32 s{sT+4}, {f32(sc)}")
        a(f"s_mov_b32 s{sT+5}, {f32(KSC)}")
    def reads(self):
        a = self.a
        for j in range(3):
            a(f"ds_read_b128 {vr(self.Q+4*j,4)}, v{self.vRd} offset:{8192-32+1024*j}")
        self.rd(0)
    def rd(self, base):
        for w in range(8):
            for j in range(3):
                self.a(f"ds_read_b128 {vr(self.KV+12*w+4*j,4)}, v{self.vRd} offset:{base+j*1280+224-32*w}")
    def compute(self, do):
        a, sT, KV, Q, LG, PH, O = self.a, self.sT, self.KV, self.Q, self.LG, self.PH, self.O
        for w0 in range(0, 8, 2):
            a(f"s_waitcnt lgkmcnt({min(15, 24-3*(w0+2))})")
            a.lines.append(".p2align 3")
            for i in range(9):
                for w in (w0, w0+1):
                    c = "0" if i == 0 else f"v{LG+w}"
                    a(f"v_dot2_f32_bf16 v{LG+w}, v{Q+do+i}, v{KV+12*w+do+i}, {c}")
        self.rd(4096)
        for w in range(1, 8):
            a(f"v_cndmask_b32 v{LG+w}, v17, v{LG+w}, s[{40+2*w}:{41+2*w}]")
        g = LG; m = 18; s = 19
        a(f"v_max3_f32 v{m}, v{g}, v{g+1}, v{g+2}")
        a(f"v_max3_f32 v{m}, v{m}, v{g+3}, v{g+4}")
        a(f"v_max3_f32 v{m}, v{m}, v{g+5}, v{g+6}")
        a(f"v_max_f32 v{m}, v{m}, v{g+7}")
        for w in range(8): a(f"v_sub_f32 v{g+w}, v{g+w}, v{m}")
        for w in range(8): a(f"v_mul_f32 v{g+w}, s{sT+4}, v{g+w}")
        for w in range(8): a(f"v_exp_f32 v{g+w}, v{g+w}")
        for w in range(8): a(f"v_cvt_pk_bf16_f32 v{g+w}, v{g+w}, 0")
        for w in range(8): a(f"v_lshlrev_b32 v{PH+w}, 16, v{g+w}")
        a(f"v_add_f32 v{s}, v{PH}, v{PH+1}")
        for w in range(2, 8): a(f"v_add_f32 v{s}, v{s}, v{PH+w}")
        a(f"v_mul_f32 v{s}, s{sT+5}, v{s}")
        a(f"v_rcp_f32 v{s}, v{s}")
        for w in range(8):
            if w % 2 == 0:
                a(f"s_waitcnt lgkmcnt({min(15, 24-3*(w+2))})")
                a.lines.append(".p2align 3")
            for d in range(9):
                c0 = "0" if w == 0 else f"v{O+2*d}"
                c1 = "0" if w == 0 else f"v{O+2*d+1}"
                a(f"v_dot2_f32_bf16 v{O+2*d}, v{KV+12*w+do+d}, v{LG+w}, {c0}")
                a(f"v_dot2_f32_bf16 v{O+2*d+1}, v{KV+12*w+do+d}, v{PH+w}, {c1}")
        for d in range(18): a(f"v_mul_f32 v{O+d}, v{s}, v{O+d}")
        for d in range(9): a(f"v_cvt_pk_bf16_f32 v{Q+do+d}, v{O+2*d}, v{O+2*d+1}")
        for j in range(3):
            lo, hi = max(do, 4*j), min(do + 9, 4*j + 4)
            while lo < hi:
                n = 1 if lo % 2 else hi - lo
                sfx = {1: "dword", 2: "dwordx2", 3: "dwordx3", 4: "dwordx4"}[n]
                a(f"buffer_store_{sfx} {vr(Q+lo,n)}, v{self.vQo}, s[{self.sUO}:{self.sUO+3}], s{sT} offen offset:{4*(lo-4*j)} sc1")
                lo += n
            if j < 2: a(f"s_add_u32 s{sT}, s{sT}, {OCT}")

UB = 73728
def c_tile(a, sRb, sCg, sT):
    a(f"""s_and_b32 s{sT}, s2, 7
    s_lshr_b32 s{sT+1}, s2, 3
    s_mul_i32 s{sT+2}, s{sT}, 29
    s_min_u32 s{sT}, s{sT}, 2
    s_add_u32 s{sT+2}, s{sT+2}, s{sT}
    s_add_u32 s{sT+2}, s{sT+2}, s{sT+1}
    s_mul_i32 s{sRb}, s{sT+2}, 7282
    s_lshr_b32 s{sRb}, s{sRb}, 16
    s_mul_i32 s{sT}, s{sRb}, 9
    s_sub_u32 s{sCg}, s{sT+2}, s{sT}""")
UFC, vUC = 88, 247
def o_prefetch(a, sWave, sUO, sTt, sT, bar_every=0, loads=True):
    c_tile(a, sT+3, sT+4, sT)
    a(f"""s_min_u32 s{sT+1}, s{sWave}, 4
    s_mul_i32 s{sTt}, s{sT+3}, 5
    s_add_u32 s{sTt}, s{sTt}, s{sT+1}
    s_cmp_ge_u32 s2, 234
    s_cselect_b32 s{sTt}, 128, s{sTt}
    s_min_u32 s{sT}, s{sTt}, 127
    s_lshl_b32 s{sT}, s{sT}, 8
    v_lshrrev_b32 v{vUC}, 4, v1
    v_lshlrev_b32 v{vUC}, 15, v{vUC}
    v_and_b32 v248, 15, v1
    v_lshl_add_u32 v249, v248, 4, v{vUC}
    v_add_u32 v{vUC}, s{sT}, v249
    s_mov_b32 s{sT}, {288*OCT}""")
    for k in range(18 if loads else 0):
        a(f"buffer_load_dwordx4 {vr(UFC+4*k,4)}, v{vUC}, s[{sUO}:{sUO+3}], s{sT} offen")
        if k < 17: a(f"s_add_u32 s{sT}, s{sT}, {4*OCT}")
        if bar_every and k % bar_every == bar_every - 1: a("s_barrier")
def o_stage(a, w, ks, sUO, sT):
    a(f"""s_mul_i32 s{sT}, s{sT+3}, 5
    s_add_u32 s{sT}, s{sT}, {w}
    s_min_u32 s{sT}, s{sT}, 127
    s_lshl_b32 s{sT}, s{sT}, 8""")
    for k in ks:
        a(f"s_add_u32 m0, s{sLo}, {18432*w+1024*k}")
        a(f"s_add_u32 s{sT+1}, s{sT}, {(288+4*k)*OCT}")
        a(f"buffer_load_dwordx4 v249, s[{sUO}:{sUO+3}], s{sT+1} offen lds")

def phase_B(a, N):
    pf = a.pf
    ZO = 16384
    def zb(j): return ZO + j*1024 + (j >> 1)*64 + (64 if j == 17 else 0)
    STG = zb(17) + 1024
    FREE = 2 * UB
    NE = 12
    BC = FREE
    sWP, sZQ, sUO, sCP, sBS, sFL = 12, 16, 20, 24, 28, 64
    sWave, sTb, sFb, sOdd, sT = 36, 37, 38, 39, 40
    sI, sSlot, sHi, sA, sZm, sZs, sZ1m, sZ1s = 56, 57, 58, 59, 60, 61, 62, 63
    sTt, sFu = 98, 99
    RBL = CFG.ka_rbl
    def common():
        a("s_load_dwordx4 s[4:7], s[0:1], 48")
        a("s_load_dwordx2 s[8:9], s[0:1], 16")
        a("s_load_dwordx2 s[10:11], s[0:1], 80")
        a(f"""s_and_b32 s{sT}, s2, 7
        s_lshr_b32 s{sT+1}, s2, 3
        s_and_b32 s{sTb}, s{sT}, {(16>>RBL)-1}
        s_lshl_b32 s{sTb}, s{sTb}, {RBL}
        s_and_b32 s{sT+2}, s{sT+1}, {(1<<RBL)-1}
        s_add_u32 s{sTb}, s{sTb}, s{sT+2}
        s_lshr_b32 s{sFb}, s{sT}, {4-RBL}
        s_lshl_b32 s{sFb}, s{sFb}, {5-RBL}
        s_lshr_b32 s{sT+2}, s{sT+1}, {RBL}
        s_add_u32 s{sFb}, s{sFb}, s{sT+2}
        s_and_b32 s{sOdd}, s{sFb}, 1
        s_mul_i32 s{sZm}, s{sFb}, 18
        s_lshl_b32 s{sT}, s{sOdd}, 1
        s_add_u32 s{sZs}, s{sZm}, 16
        s_lshl_b32 s{sT+1}, s{sOdd}, 4
        s_sub_u32 s{sZs}, s{sZs}, s{sT+1}
        s_add_u32 s{sZm}, s{sZm}, s{sT}
        s_lshl_b32 s{sZm}, s{sZm}, 15
        s_lshl_b32 s{sZs}, s{sZs}, 15
        s_sub_u32 s{sHi}, {UB}, s{sLo}""")
    ACC, FA, FB, Z1, T = 16, 88, 160, Z1B, 176
    vL, vZ0, vZ1, vZs, vB0, vB1, vE, vEs = 1, 2, 3, 4, 5, 6, 7, 8
    vBC = 10
    AD = {vB0: 240, vB1: 241, vZ0: 242, vZ1: 243, vZs: 244}
    a.label(f"{N}_At")
    common()
    a(f"""v_lshrrev_b32 v{T}, 4, v{vL}
    v_and_b32 v{T+1}, 15, v{vL}
    v_bfe_u32 v{T+2}, v{vL}, 2, 2
    v_and_b32 v{T+3}, 3, v{vL}
    v_lshl_add_u32 v{T+4}, v{T}, 3, v{T+2}
    v_lshlrev_b32 v{T+4}, 4, v{T+4}
    v_add_u32 v{T+4}, {ZO}, v{T+4}
    v_lshrrev_b32 v{T+5}, 1, v{T+3}
    v_and_b32 v{T+6}, 1, v{T+3}
    v_lshl_add_u32 v{vZ0}, v{T+3}, 10, v{T+4}
    v_lshl_add_u32 v{vZ0}, v{T+5}, 6, v{vZ0}
    v_lshl_add_u32 v{vZ0}, v{T+6}, 3, v{vZ0}
    v_xor_b32 v{vZ1}, 8, v{vZ0}
    v_mul_u32_u24 v{vZs}, 1088, v{T+5}
    v_add_u32 v{vZs}, v{vZs}, v{T+4}
    v_xor_b32 v{T+6}, v{T+6}, v{T+5}
    v_lshl_add_u32 v{vZs}, v{T+6}, 3, v{vZs}
    s_lshl_b32 s{sT}, s{sWave}, 5
    v_add_u32 v{T+7}, s{sT}, v{T+1}
    v_and_b32 v{T+8}, 7, v{vL}
    v_xor_b32 v{T+8}, v{T+8}, v{T}
    v_lshlrev_b32 v{T+8}, 4, v{T+8}
    v_lshl_add_u32 v{vB0}, v{T+7}, 7, v{T+8}
    v_xor_b32 v{vB1}, 64, v{vB0}""")
    for r, r2 in AD.items(): a(f"v_add_u32 v{r2}, s{sHi}, v{r}")
    for r in AD: a(f"v_add_u32 v{r}, s{sLo}, v{r}")
    a(f"""s_lshl_b32 s{sT+1}, s{sTb}, 7
    v_add_u32 v{T+9}, s{sT+1}, v{T+7}
    v_lshlrev_b32 v{vE}, 4, v{T+9}
    v_lshrrev_b32 v{T+8}, 1, v{T}
    v_lshl_add_u32 v{vEs}, v{T+8}, 15, v{vE}
    v_and_b32 v{T+10}, 1, v{T}
    v_lshl_add_u32 v{vEs}, v{T+10}, 3, v{vEs}
    v_lshl_add_u32 v{vE}, v{T}, 15, v{vE}
    v_lshlrev_b32 v{vBC}, 2, v{T+7}
    v_add_u32 v{vBC}, {BC}, v{vBC}
    s_lshl_b32 s{sFu}, s{sTb}, 8
    s_lshl_b32 s{sT}, s{sFb}, 4
    s_add_u32 s{sFu}, s{sFu}, s{sT}
    s_lshl_b32 s{sT}, s{sWave}, 2
    s_add_u32 s{sFu}, s{sFu}, s{sT}
    s_add_u32 s{sFu}, s{sFu}, {FL_U}""")
    for i in range(4, 44): a(f"v_mov_b32 v{ACC+i}, 0")
    at = Attn(a, sZQ, sUO, 70)
    at.setup(sWave, sHi)
    a(f"s_mov_b32 s{sI}, 8")
    a("s_waitcnt lgkmcnt(0)")
    a.srd_off(sUO, 10, 11, CFG.ws_base + UO_OFF, UO_SZ)
    a.srd_off(sFL, 10, 11, CFG.ws_base + FL_OFF, FL_SZ)
    pf.stamp()
    a(f"""v_mov_b32 v18, {TAG_LDS-8}
    v_readfirstlane_b32 s{sTag}, v14
    s_mov_b32 s{sA}, {CFG.bound*16}""")
    a.label(f"{N}_kvw")
    a(f"""ds_read_b64 v[184:185], v18
    s_waitcnt lgkmcnt(0)
    v_xor_b32 v184, s{sTag}, v184
    v_xor_b32 v185, s{sTag}, v185
    v_or_b32 v184, v184, v185
    s_sub_u32 s{sA}, s{sA}, 1
    v_readfirstlane_b32 s{sSlot}, v184
    s_cmp_eq_u32 s{sA}, 0
    s_cbranch_scc1 {N}_kvd
    s_cmp_lg_u32 s{sSlot}, 0
    s_cbranch_scc1 {N}_kvw""")
    a.label(f"{N}_kvd")
    pf.stamp()
    at.reads()
    for w in range(4):
        if w < 3:
            a(f"s_cmp_lg_u32 s{sWave}, {w}")
            a(f"s_cbranch_scc1 {N}_at{w+1}")
        at.compute(w)
        if w < 3:
            a(f"s_branch {N}_atd")
            a.label(f"{N}_at{w+1}")
    a.label(f"{N}_atd")
    for i in list(range(4)) + list(range(44, 72)): a(f"v_mov_b32 v{ACC+i}, 0")
    def reads(slot, h, st):
        R = (lambda r: AD[r]) if slot >= 2 else (lambda r: r)
        so = (slot & 1) * STG
        out = [f"ds_read_b128 {vr(FB+8*st+4*tt,4)}, v{R(vB1 if h else vB0)} offset:{so+2048*tt}" for tt in range(2)]
        for j in range(9):
            for rd in range(2):
                if j < 8:
                    out.append(f"ds_read_b64_tr_b16 {vr(FA+36*st+4*j+2*rd,2)}, v{R(vZ1 if j&1 else vZ0)} offset:{so+zb(4*(j>>1))-ZO+512*h+64*rd}")
                else:
                    out.append(f"ds_read_b64_tr_b16 {vr(FA+36*st+4*j+2*rd,2)}, v{R(vZs)} offset:{so+zb(16)-ZO+512*h+64*rd}")
        return out
    def phase(st, rds):
        out = []; k = 0
        for j in range(9):
            for tt in range(2):
                if tt == 0 and j % 3 == 0:
                    jj = min(j + 2, 8)
                    out.append(f"s_waitcnt lgkmcnt({min(15, 19-(3+2*jj)+k)})")
                out.append(f"v_mfma_f32_16x16x32_bf16 {vr(ACC+8*j+4*tt,4)}, {vr(FA+36*st+4*j,4)}, {vr(FB+8*st+4*tt,4)}, {vr(ACC+8*j+4*tt,4)}")
                for _ in range(2 if j == 1 else 1):
                    if k < len(rds): out.append(rds[k]); k += 1
        return out
    pf.stamp()
    a("s_barrier")
    pf.stamp()
    for l in reads(0, 0, 0): a(l)
    a.lines.append(".p2align 6")
    a.label(f"{N}_Bloop")
    for slot in range(4):
        for l in phase(0, reads(slot, 1, 1)): a(l)
        if slot == 3:
            a(f"s_sub_u32 s{sI}, s{sI}, 1")
            a("s_waitcnt vmcnt(0)")
        a("s_barrier")
        if CFG.prof == 2: pf.stamp()
        for l in phase(1, reads((slot + 1) % 4, 0, 0)): a(l)
    a(f"s_cmp_lg_u32 s{sI}, 0")
    a(f"s_cbranch_scc1 {N}_Bloop")
    a(f"ds_read_b32 v{vBC+1}, v{vBC} offset:64")
    a(f"ds_read_b32 v{vBC}, v{vBC}")
    a("s_waitcnt lgkmcnt(0)")
    a("s_barrier")
    order = [0, 1, 2, 3, 4]
    pf.stamp()
    for oi, i in enumerate(order):
        if i < 4: a(f"s_add_u32 s{sT}, s{sZm}, {4*OCT*i}")
        for tt in range(2):
            n = 4 if i < 4 else 2
            z = Z1 + 8*i + n*tt
            for r in range(n):
                j = 2*i + (r >> 1)
                ac = ACC + 8*j + 4*tt + 2*(r & 1)
                t = T + 4*(r % 2)
                a(f"v_add_f32 v{ac}, v{vBC+tt}, v{ac}")
                a(f"v_add_f32 v{ac+1}, v{vBC+tt}, v{ac+1}")
                a(f"v_lshlrev_b32 v{t}, 16, v{z+r}")
                a(f"v_and_b32 v{t+1}, 0xffff0000, v{z+r}")
                a(f"v_mul_f32 v{t}, v{t}, v{ac}")
                a(f"v_mul_f32 v{t+1}, v{t+1}, v{ac+1}")
                a(f"v_cvt_pk_bf16_f32 v{z+r}, v{t}, v{t+1}")
            if i < 4:
                a(f"buffer_store_dwordx4 {vr(z,4)}, v{vE}, s[{sUO}:{sUO+3}], s{sT} offen offset:{256*tt} sc1")
            else:
                a(f"buffer_store_dwordx2 {vr(z,2)}, v{vEs}, s[{sUO}:{sUO+3}], s{sZs} offen offset:{256*tt} sc1")
    o_prefetch(a, sWave, sUO, sTt, sT, loads=False)
    a(f"s_branch {N}_Cc")
    a.label(f"{N}_Bh")
    common()
    vA, vZ = 2, 3
    a(f"""v_lshrrev_b32 v4, 3, v1
    v_and_b32 v5, 7, v1
    v_xor_b32 v5, v5, v4
    v_lshlrev_b32 v5, 4, v5
    v_lshl_add_u32 v{vA}, v4, 12, v5
    v_lshlrev_b32 v{vZ}, 4, v1
    s_lshl_b32 s{sA}, s{sTb}, 19
    s_lshl_b32 s{sT+1}, s{sTb}, 11
    s_add_u32 s{sZ1m}, s{sZm}, s{sT+1}
    s_add_u32 s{sZ1s}, s{sZs}, s{sT+1}
    s_add_u32 s{sZm}, s{sZm}, {288*OCT}
    s_add_u32 s{sZs}, s{sZs}, {288*OCT}
    s_mov_b32 s{sSlot}, s{sLo}
    s_waitcnt lgkmcnt(0)""")
    a.srd_off(sWP, 10, 11, CFG.ws_base + WP_OFF, WP_SZ)
    a.srd_off(sZQ, 10, 11, CFG.ws_base + ZQ_OFF, ZQ_SZ)
    a.srd_off(sUO, 10, 11, CFG.ws_base + UO_OFF, UO_SZ)
    a.srd_off(sCP, 10, 11, CFG.ws_base + CP_OFF, CP_SZ)
    a.srd(sBS, 4, 5, 4096)
    a(f"s_cmp_ge_u32 s{sWave}, 6")
    a(f"s_cbranch_scc1 {N}_xt")
    at = Attn(a, sZQ, sUO, 70)
    at.kv_prep(4, 8)
    at.base(sT+2, sT+3)
    a(f"""s_lshr_b32 s{sT+1}, s2, 4
    s_max_u32 s{sT+3}, s{sT+1}, 1
    s_sub_u32 s{sT+3}, s{sT+3}, 1
    s_lshl_b32 s{sT+1}, s{sT+1}, 8
    s_lshl_b32 s{sT+3}, s{sT+3}, 8
    s_add_u32 s{sT+1}, s{sT+1}, {FL_Q}
    s_add_u32 s{sT+3}, s{sT+3}, {FL_Q}
    v_lshlrev_b32 v8, 2, v1
    s_mov_b32 s{sI}, 0""")
    def pend():
        l = a.newlabel(N + "_dn"); l2 = a.newlabel(N + "_dn")
        a(f"""s_cmp_ge_u32 s{sI}, 2
        s_cbranch_scc1 {l}
        s_waitcnt vmcnt(0)
        s_barrier
        s_cmp_eq_u32 s{sI}, 1
        s_cbranch_scc1 {l2}
        s_barrier""")
        a.label(l2)
        a(f"s_add_u32 s{sI}, s{sI}, 1")
        a.label(l)
    poll_flags(a, f"{N}_pq", sFL, [(8, f"s{sT+1}", 1), (8, f"s{sT+3}", 1)], 12, sT, pend)
    pf.stamp()
    pend(); pend()
    a(f"s_cmp_eq_u32 s{sWave}, 5")
    a(f"s_cbranch_scc1 {N}_st1")
    at.stage((0, 1), 4, vZ, sT+2, sHi, sT)
    a(f"s_branch {N}_st2")
    a.label(f"{N}_st1")
    at.stage((2, 3), 4, vZ, sT+2, sHi, sT)
    a.label(f"{N}_st2")
    a(f"""s_lshl_b32 s{sT+2}, s{sTb}, 7
    v_and_b32 v10, 31, v1
    v_lshlrev_b32 v10, 2, v10
    s_lshl_b32 s{sT+3}, s{sWave}, 2
    s_add_u32 s{sT+3}, s{sT+3}, {TAG_LDS-8-16}
    v_mov_b32 v8, s{sT+3}
    v_mov_b32 v9, s{sTag}
    s_waitcnt vmcnt(0)
    ds_write_b32 v8, v9""")
    pf.stamp()
    for q in range(4): a(f"s_mov_b32 s{sT+4+q}, {FL_Q+1024*q}")
    poll_flags(a, f"{N}_pz", sFL, [(vZ, f"s{sT+4+q}", 4) for q in range(4)] + [(10, f"s{sT+2}", 1)], 16, sT)
    pf.stamp()
    items = [("A", i) for i in range(16)] + [("Z", j) for j in range(18)]
    sN4 = sT + 5
    a(f"s_mov_b32 s{sN4}, 0")
    def issue(p):
        out = []
        for kind, i in items[17*p:17*p+17]:
            if kind == "A":
                out.append(f"s_add_u32 m0, s{sSlot}, {i*1024}")
                out.append(f"s_add_u32 s{sT}, s{sA}, {i*8*4096}")
                out.append(f"buffer_load_dwordx4 v{vA}, s[{sWP}:{sWP+3}], s{sT} offen lds")
            else:
                out.append(f"s_add_u32 m0, s{sSlot}, {zb(i)}")
                out.append(f"s_add_u32 s{sT}, s{sZm if i < 16 else sZs}, {(i if i < 16 else i-16)*OCT}")
                out.append(f"buffer_load_dwordx4 v{vZ}, s[{sZQ}:{sZQ+3}], s{sT} offen lds")
        out += [f"s_add_u32 s{sA}, s{sA}, 128", f"s_add_u32 s{sZm}, s{sZm}, 1024", f"s_add_u32 s{sZs}, s{sZs}, 1024",
                f"s_add_u32 s{sN4}, s{sN4}, 1", f"s_bitcmp1_b32 s{sN4}, 1", f"s_cselect_b32 s{sSlot}, s{sHi}, s{sLo}",
                f"s_bitcmp1_b32 s{sN4}, 0", f"s_cselect_b32 s{sT}, {STG}, 0", f"s_add_u32 s{sSlot}, s{sSlot}, s{sT}"]
        return out
    for p in range(2):
        if p == 0:
            a(f"s_cmp_eq_u32 s{sWave}, 5")
            a(f"s_cbranch_scc1 {N}_prod1")
        else:
            a.label(f"{N}_prod1")
        for st in range(2):
            for l in issue(p): a(l)
        a("s_waitcnt vmcnt(17)")
        a("s_barrier")
        a(f"s_mov_b32 s{sI}, 30")
        a.label(f"{N}_Bploop{p}")
        for l in issue(p): a(l)
        a("s_waitcnt vmcnt(17)")
        a("s_barrier")
        a(f"s_sub_u32 s{sI}, s{sI}, 1")
        a(f"s_cmp_lg_u32 s{sI}, 0")
        a(f"s_cbranch_scc1 {N}_Bploop{p}")
        a(f"s_branch {N}_Bpend")
    a.label(f"{N}_Bpend")
    a("s_waitcnt vmcnt(0)")
    a("s_barrier")
    a(f"s_branch {N}_Cp")
    a.label(f"{N}_xt")
    a(f"s_cmp_eq_u32 s{sWave}, 7")
    a(f"s_cbranch_scc1 {N}_xtrb")
    nb = [0]
    a(f"""s_mul_i32 s{sT+1}, s2, {81*128}
    s_add_u32 s68, s6, s{sT+1}
    s_addc_u32 s69, s7, 0
    s_mul_i32 s{sT+1}, s2, {21*128}
    s_min_u32 s{sT+1}, s{sT+1}, {(5184-21)*128}
    s_add_u32 s70, s8, s{sT+1}
    s_addc_u32 s71, s9, 0""")
    spf = [f"s_load_dword s{74+i%6}, s[70:71], {64*i}" for i in range(42)] + [f"s_load_dword s{74+i%6}, s[68:69], {64*i}" for i in range(162)]
    def bar(n=1, pfn=CFG.kb_spf):
        for _ in range(n):
            a("s_barrier"); nb[0] += 1
            if nb[0] >= 3:
                for _ in range(pfn):
                    if spf: a(spf.pop(0))
    a(f"""s_lshl_b32 s{sT+2}, s2, 2
    s_add_u32 s{sT+2}, s{sT+2}, {FL_E}
    v_mov_b32 v4, 0
    v_mov_b32 v5, s{sTag}""")
    bar(2)
    a("s_waitcnt vmcnt(0)")
    bar(3)
    a(f"buffer_store_dword v5, v4, s[{sFL}:{sFL+3}], s{sT+2} offen sc1")
    X0 = CFG.kb_x0
    bar(X0 - 1 - nb[0])
    a(f"s_mov_b32 s{sT+1}, {FL_E}")
    poll_flags(a, f"{N}_pe", sFL, [(vZ, f"s{sT+1}", 4)], 8, sT)
    a(f"""s_lshl_b32 s{sT+2}, s{sTb}, 9
    s_lshr_b32 s{sT+1}, s{sT+2}, 1
    v_lshlrev_b32 v4, 3, v1
    v_lshlrev_b32 v5, 2, v1""")
    bar()
    a(f"buffer_load_dword v8, v5, s[{sBS}:{sBS+3}], s{sT+1} offen")
    for i in range(32):
        a(f"buffer_load_dwordx2 {vr(16+2*i,2)}, v4, s[{sCP}:{sCP+3}], s{sT+2} offen")
        a(f"s_add_u32 s{sT+2}, s{sT+2}, 8192")
        if i % CFG.kb_cpg == CFG.kb_cpg - 1: bar()
    bar(2)
    a("s_waitcnt vmcnt(0)")
    for i in range(1, 32):
        a(f"v_add_f32 v16, v16, v{16+2*i}")
        a(f"v_add_f32 v17, v17, v{17+2*i}")
        if i % 16 == 0: bar()
    a(f"""s_mov_b32 s{sT}, {f32(1.0/KSC)}
    v_and_b32 v9, 0xffff0000, v8
    v_lshlrev_b32 v8, 16, v8
    v_fma_f32 v8, v8, s{sT}, -v16
    v_fma_f32 v9, v9, s{sT}, -v17
    v_add_u32 v4, {BC}, v4
    ds_write_b64 v4, v[8:9]
    s_waitcnt vmcnt(0) lgkmcnt(0)""")
    o_prefetch(a, sWave, sUO, sTt, sT, loads=False)
    assert nb[0] <= 31 and not spf, (nb[0], len(spf))
    bar(31 - nb[0])
    o_stage(a, 0, range(18), sUO, sT)
    bar()
    o_stage(a, 3, range(18), sUO, sT)
    bar(2)
    a("s_waitcnt vmcnt(0) lgkmcnt(0)")
    bar()
    pf.flush(sWave)
    a("s_endpgm")
    a.label(f"{N}_xtrb")
    def barloop(n, nm):
        a(f"s_mov_b32 s{sI}, {n}")
        a.label(nm)
        a("s_barrier")
        a(f"s_sub_u32 s{sI}, s{sI}, 1")
        a(f"s_cmp_lg_u32 s{sI}, 0")
        a(f"s_cbranch_scc1 {nm}")
    a("s_barrier")
    a("s_barrier")
    a("s_waitcnt vmcnt(0)")
    barloop(X0 - 2, f"{N}_xb_loop")
    if CFG.codepf2 & 2: code_prefetch(a, 88, 26, 1, N)
    o_prefetch(a, sWave, sUO, sTt, sT, bar_every=3)
    barloop(31 - X0 - 6, f"{N}_xb_loop2")
    o_stage(a, 1, range(16), sUO, sT)
    a("s_barrier")
    o_stage(a, 1, range(16, 18), sUO, sT)
    o_stage(a, 2, range(18), sUO, sT)
    a("s_barrier")
    a("s_barrier")
    a(f"s_mov_b32 s{sFu}, 0x7f000000")
    a("s_waitcnt vmcnt(0)")
    a(f"s_branch {N}_Cc")

def phase_C(a, N):
    pf = a.pf
    NS = 9
    sUO, sWO, sWA, sX, sOUT, sDM, sFL = 20, 16, 12, 24, 28, 32, 64
    sWave, sRb, sCg, sT = 36, 37, 38, 40
    sI, sU, sW, sHi = 50, 51, 52, 53
    sTt, sFu = 98, 99
    def common():
        a("s_load_dwordx2 s[4:5], s[0:1], 0")
        a("s_load_dwordx2 s[6:7], s[0:1], 16")
        a("s_load_dwordx4 s[8:11], s[0:1], 56")
        c_tile(a, sRb, sCg, sT)
        a(f"s_sub_u32 s{sHi}, {UB}, s{sLo}")
    a.label(f"{N}_Cc")
    pf.stamp()
    a(f"""v_mov_b32 v13, 0
    s_cmp_lt_u32 s{sTt}, 128
    s_cbranch_scc1 {N}_Ctile
    s_waitcnt vmcnt(0)
    buffer_store_dword v14, v13, s[{sFL}:{sFL+3}], s{sFu} offen sc1""")
    pf.flush(sWave)
    a("s_endpgm")
    a.label(f"{N}_Ctile")
    common()
    ACC, SV, XR, T, UF, FA = 16, 32, 48, 56, UFC, 160
    FAS = [160, 192, 72 - 0]
    vL, vU, vA, vXo, vA8 = 1, vUC, 4, 3, 8
    FAB = [160, 192, 224]
    vU2 = 12
    a(f"""v_mov_b32 v{vU2}, v{vUC}
    v_lshrrev_b32 v{T}, 4, v{vL}
    v_and_b32 v{T+1}, 15, v{vL}
    s_lshl_b32 s{sT}, s{sTt}, 4
    v_add_u32 v{T+2}, s{sT}, v{T+1}
    s_mov_b32 s{sU}, 0
    v_mul_u32_u24 v{vXo}, 1152, v{T+2}
    v_and_b32 v{T+3}, 1, v{T}
    v_lshl_add_u32 v{vXo}, v{T+3}, 5, v{vXo}
    v_lshrrev_b32 v{T+3}, 1, v{T}
    v_lshl_add_u32 v{vXo}, v{T+3}, 4, v{vXo}
    s_lshl_b32 s{sT+1}, s{sCg}, 7
    v_bfe_u32 v{T+3}, v{vL}, 2, 2
    v_lshl_add_u32 v{T+4}, v{T}, 3, v{T+3}
    v_lshlrev_b32 v{T+4}, 7, v{T+4}
    v_and_b32 v{T+5}, 3, v{vL}
    v_lshl_add_u32 v{T+4}, v{T+5}, 3, v{T+4}
    v_lshrrev_b32 v{T+3}, 1, v{T+3}
    v_and_b32 v{T+5}, 1, v{T}
    v_lshl_add_u32 v{T+3}, v{T+5}, 1, v{T+3}
    v_lshl_add_u32 v{vA}, v{T+3}, 5, v{T+4}
    v_add_u32 v{vA}, s{sHi}, v{vA}
    v_xor_b32 v{vA+1}, 32, v{vA}
    v_xor_b32 v{vA+2}, 64, v{vA}
    v_xor_b32 v{vA+3}, 96, v{vA}""")
    for j in range(4): a(f"v_add_u32 v{vA8+j}, {8*8192}, v{vA+j}")
    for i in range(16): a(f"v_mov_b32 v{ACC+i}, 0")
    def uload(slot):
        return [f"buffer_load_dwordx4 {vr(UF+4*slot,4)}, v{vU2}, s[{sUO}:{sUO+3}], s{sU} offen",
                f"s_add_u32 s{sU}, s{sU}, {4*OCT}"]
    def reads(st):
        st %= 9
        return [f"ds_read_b64_tr_b16 {vr(FAB[st%3]+16*h+4*j+2*rd,2)}, v{(vA8 if st == 8 else vA)+j} offset:{(st%8)*8192+4096*h+512*rd}"
                for h in range(2) for j in range(4) for rd in range(2)]
    a(f"s_mov_b32 s{sI}, 4")
    pf.stamp()
    a("s_barrier")
    pf.stamp()
    for l in reads(0): a(l)
    a(f"""s_cmp_ge_u32 s{sWave}, 4
    s_cbranch_scc1 {N}_Cno
    s_mul_i32 s{sT}, s{sWave}, 18432
    s_add_u32 s{sT}, s{sT}, s{sLo}
    v_lshlrev_b32 v{T}, 4, v{vL}
    v_add_u32 v{T}, s{sT}, v{T}""")
    for k in range(18): a(f"ds_read_b128 {vr(UF+4*k,4)}, v{T} offset:{1024*k}")
    a.label(f"{N}_Cno")
    a("s_waitcnt lgkmcnt(0)")
    a.srd(sX, 4, 5, 2048 * 1152)
    a.srd(sOUT, 10, 11, 2048 * 1152)
    def cpass(first):
        acc = SV if first else ACC
        for st in range(9):
            a("s_barrier")
            rd = reads(st + 1)
            k = 0
            for h in range(2):
                ks = 2*st + h
                if not first: a(f"s_waitcnt vmcnt({15})")
                for j in range(4):
                    c = "0" if (first and ks == 0) else vr(acc+4*j, 4)
                    a(f"v_mfma_f32_16x16x32_bf16 {vr(acc+4*j,4)}, {vr(FAB[st%3]+16*h+4*j,4)}, {vr(UF+4*ks,4)}, {c}")
                    for _ in range(3):
                        if k < 16: a(rd[k]); k += 1
                if not first:
                    for l in uload((ks + 16) % 18): a(l)
                elif st >= 7:
                    for q in range(4):
                        for l in uload(4*(ks - 14) + q): a(l)
            if first and st == CFG.kc_fu:
                a("s_waitcnt vmcnt(0)")
                a(f"buffer_store_dword v14, v13, s[{sFL}:{sFL+3}], s{sFu} offen sc1")
                if CFG.prof == 5: pf.stamp()
                for p in range(2):
                    a(f"buffer_load_dwordx4 {vr(XR+4*p,4)}, v{vXo}, s[{sX}:{sX+3}], s{sT+1} offen offset:{64*p}")
            a("s_waitcnt lgkmcnt(0)")
        pf.stamp()
    cpass(True)
    a.lines.append(".p2align 6")
    a.label(f"{N}_Cloop")
    cpass(False)
    a(f"s_sub_u32 s{sI}, s{sI}, 1")
    a(f"s_cmp_lg_u32 s{sI}, 0")
    a(f"s_cbranch_scc1 {N}_Cloop")
    a(f"s_mov_b32 s{sT}, {f32(-math.log2(math.e))}")
    a("s_nop 4")
    for i in range(16): a(f"v_mul_f32 v{T+i}, s{sT}, v{ACC+i}")
    for i in range(16): a(f"v_exp_f32 v{T+i}, v{T+i}")
    for i in range(16): a(f"v_mul_f32 v{SV+i}, v{SV+i}, v{ACC+i}")
    for i in range(16): a(f"v_add_f32 v{T+i}, 1.0, v{T+i}")
    for i in range(16): a(f"v_rcp_f32 v{T+i}, v{T+i}")
    for i in range(16): a(f"v_mul_f32 v{SV+i}, v{SV+i}, v{T+i}")
    for p in range(2):
        x = XR + 4*p
        a(f"v_permlane16_swap_b32 v{x}, v{x+2}")
        a(f"v_permlane16_swap_b32 v{x+1}, v{x+3}")
        for r in range(4):
            s = SV + 8*p + 2*r
            a(f"v_lshlrev_b32 v{T}, 16, v{x+r}")
            a(f"v_and_b32 v{T+1}, 0xffff0000, v{x+r}")
            a(f"v_add_f32 v{T}, v{T}, v{s}")
            a(f"v_add_f32 v{T+1}, v{T+1}, v{s+1}")
            a(f"v_cvt_pk_bf16_f32 v{x+r}, v{T}, v{T+1}")
        a(f"v_permlane16_swap_b32 v{x}, v{x+2}")
        a(f"v_permlane16_swap_b32 v{x+1}, v{x+3}")
        a(f"buffer_store_dwordx4 {vr(x,4)}, v{vXo}, s[{sOUT}:{sOUT+3}], s{sT+1} offen offset:{64*p} {CFG.out_aux}")
    if CFG.prof:
        pf.stamp(); a("s_waitcnt vmcnt(0)")
    pf.flush(sWave)
    a("s_endpgm")
    a.label(f"{N}_Cp")
    a(f"s_cmp_ge_u32 s2, 234")
    a(f"s_cbranch_scc1 {N}_end")
    common()
    vD = 2
    a(f"""v_lshrrev_b32 v8, 3, v1
    v_and_b32 v9, 7, v1
    v_lshrrev_b32 v10, 3, v1
    v_and_b32 v10, 2, v10
    v_xor_b32 v9, v9, v10
    v_lshlrev_b32 v9, 4, v9
    v_mul_u32_u24 v{vD}, 1152, v8
    v_add_u32 v{vD}, v{vD}, v9
    v_xor_b32 v{vD+1}, 64, v{vD}
    v_add_u32 v{vD+1}, {8*1152-1024}, v{vD+1}
    v_add_u32 v{vD+2}, {2*(8*1152-1024)}, v{vD}
    v_add_u32 v{vD+3}, {2*(8*1152-1024)}, v{vD+1}
    s_sub_u32 s{sT}, s{sWave}, 4
    s_mul_i32 s{sW}, s{sT}, {32*1152}
    s_lshl_b32 s{sT+1}, s{sCg}, 7
    s_add_u32 s{sW}, s{sW}, s{sT+1}
    s_mov_b32 s{sT+3}, s{sW}
    s_lshl_b32 s{sT+2}, s{sT}, 12
    s_add_u32 s{sT+2}, s{sT+2}, s{sHi}
    s_add_u32 s{sT+5}, s{sHi}, {NS*8192}
    s_mov_b32 s{sT+4}, s{sT+2}
    s_mul_i32 s{sT+6}, s{sRb}, 80
    s_add_u32 s{sT+7}, s{sT+6}, 79
    s_min_u32 s{sT+7}, s{sT+7}, 2047
    s_lshr_b32 s{sT+8}, s{sT+6}, 7
    s_lshl_b32 s{sT+8}, s{sT+8}, 8
    s_add_u32 s{sT+8}, s{sT+8}, {FL_U}
    s_lshr_b32 s{sT+9}, s{sT+7}, 7
    s_lshl_b32 s{sT+9}, s{sT+9}, 8
    s_add_u32 s{sT+9}, s{sT+9}, {FL_U}
    v_lshlrev_b32 v8, 2, v1
    s_waitcnt lgkmcnt(0)""")
    a.srd(sDM, 6, 7, 576 * 1152)
    def issue():
        out = [f"s_mov_b32 m0, s{sT+4}",
               f"s_add_u32 s{sT+4}, s{sT+4}, 8192"]
        out += [f"buffer_load_dwordx4 v{vD+j}, s[{sDM}:{sDM+3}], s{sW} offen offset:{1024*j} lds" for j in range(4)]
        out += [f"s_add_u32 s{sW}, s{sW}, {64*1152}",
                f"s_cmp_ge_u32 s{sT+4}, s{sT+5}",
                f"s_cselect_b32 s{sT+4}, s{sT+2}, s{sT+4}"]
        return out
    a("s_barrier")
    for st in range(9):
        if st == 4: a("s_barrier")
        for l in issue(): a(l)
    a.srd(sDM, 8, 9, 2304 * 1152)
    a(f"s_mov_b32 s{sW}, s{sT+3}")
    a("s_waitcnt vmcnt(32)")
    pf.stamp()
    a("s_barrier")
    def ploop(n, name):
        a(f"s_mov_b32 s{sI}, {n}")
        a.label(name)
        a("s_waitcnt vmcnt(28)")
        a("s_barrier")
        for l in issue(): a(l)
        a(f"s_sub_u32 s{sI}, s{sI}, 1")
        a(f"s_cmp_lg_u32 s{sI}, 0")
        a(f"s_cbranch_scc1 {name}")
    ploop(7, f"{N}_Cploop")
    poll_flags(a, f"{N}_pu", sFL, [(8, f"s{sT+8}", 1), (8, f"s{sT+9}", 1)], 16, sI)
    pf.stamp()
    ploop(29, f"{N}_Cploop2")
    for n in range(8):
        a(f"s_waitcnt vmcnt({28-4*n})")
        a("s_barrier")
    pf.flush(sWave)
    a.label(f"{N}_end")
    a("s_endpgm")

def gen_M():
    a = Asm(); N = NAME + "_kernel"
    phase_A(a, N); phase_B(a, N); phase_C(a, N)
    return a, kd(N, 256, 256, 102), (N, 256, 512, 163840)

HEADER = open("cdna_kernels/" + NAME + ".s.ref").read().split("; Override")[0]

def build(verbose=False):
    a, k, (n, grid, block, lds) = gen_M()
    txt = HEADER + f"; @launch grid=({grid},1,1) block=({block},1,1) lds={lds}\n"
    lines, ins = fix_hazards(a.lines, verbose, "M")
    print(f"{len(lines)} lines, {ins} hazard nops", file=sys.stderr)
    body = "\n".join(("    " + l if not (l.endswith(":") or l.startswith(".")) else l) for l in lines) + "\n"
    txt += '.amdgcn_target "amdgcn-amd-amdhsa--gfx950"\n.text\n.p2align 8\ncode_begin:\n' + body + "code_end:\n" + k
    return txt

if __name__ == "__main__":
    for arg in sys.argv[2:]:
        if "=" in arg:
            k_, v_ = arg.split("=", 1)
            setattr(CFG, k_, type(getattr(CFG, k_))(v_) if not isinstance(getattr(CFG, k_), bool) else int(v_))
    open(sys.argv[1], "w").write(build(verbose="-v" in sys.argv))
```

```python
import math, struct, sys
from asmlib import *

NAME = "recurrent_scan__sliding_local_dilated__mixer_gmlp__prompt"
def f32(x): return "0x%08x" % struct.unpack("<I", struct.pack("<f", x))[0]

C0 = -2.0 * math.sqrt(2.0 / math.pi) * math.log2(math.e)
C1 = C0 * 0.044715
KSC = -((-C1) ** (1.0 / 3.0))
DELTA = C0 / KSC
EPS = 1e-5
OCT = 32768

class Cfg:
    ws_base = 0
    st_aux_a = "sc1"
    st_aux_n = ""
    st_aux_b = "sc1"
    prof = False
    ka_xbar = -1
    ka_prio = 0
    ka_xpf = 0
    ka_head = 24
    ka_xfirst = 5
    ka_rot = 0
    align = 0
    hprof = 0
    bound = 20000
    ka_try = 2
    kb_xb = 28
    kc_fu = 0
    ka_pst = 13
    ka_spf = 0
    ka_d5 = 15
    ka_fwe = 1
    ka_pf0 = 2
    ka_early = 0
    dbg_stale = 0
    ld_a = ""
    ld_b = ""
    ld_c = ""
    ka_pst1 = 28
    out_aux = ""
    ka_d6 = 16
    ka_d7 = 0
    ka_fq = -1
    ka_prio2 = 0
    ka_prioj = 0
    codepf2 = 3
    kb_x0 = 22
    kb_cpg = 8
    ka_st_aux = ""
    sleep = 8
    kc_test = 0
    ka_rbl = 3
    ka_nostore = 0
    ka_nodma = 0
    ka_wsp_slot = 0
    ka_x_aux = ""
    ka_pf_aux = ""
    ka_wsp_aux = "nt"
    ka_npre = 26
    codepf = 1
    ka_l2pf = 2
    attn_seg = 36
    ka_stpos = 5
    kb_nomfma = 0
    kb_pf = 1
    kb_eit = 8
    kb_wg = 3
    kb_spf = 10
    kb_abar = 0
    kb_nodma = 0
    kb_noattn = 0
CFG = Cfg()

ZQ_OFF, ZQ_SZ = 0, 792 * OCT
UO_OFF, UO_SZ = 26 << 20, 360 * OCT
WP_OFF, WP_SZ = 38 << 20, 2048 * 4096
ST_OFF, ST_SZ = 47 << 20, 16 * 16 * 2048
CP_OFF, CP_SZ = 48 << 20, 2048 * 128

def kd(name, vgpr, accum, sgpr=96):
    return f""".section .rodata,"a"
.p2align 6
.amdhsa_kernel {name}
  .amdhsa_next_free_vgpr {vgpr}
  .amdhsa_next_free_sgpr {sgpr}
  .amdhsa_accum_offset {accum}
  .amdhsa_group_segment_fixed_size 0
  .amdhsa_kernarg_size 88
  .amdhsa_user_sgpr_count 2
  .amdhsa_user_sgpr_kernarg_segment_ptr 1
  .amdhsa_system_sgpr_workgroup_id_x 1
.end_amdhsa_kernel
"""

PROF_OFF = 64 << 20
class Prof:
    def __init__(self, a, vreg, kidx):
        self.a, self.v, self.k = a, vreg, kidx
    def init(self):
        if not CFG.prof: return
        a = self.a
        a(f"v_mov_b32 v{self.v}, 0")
        a("s_mov_b64 s[84:85], 2")
        a("s_memrealtime s[82:83]")
        a("s_waitcnt lgkmcnt(0)")
        a(f"v_writelane_b32 v{self.v}, s82, 0")
        self.stamp()
    def stamp(self):
        if not CFG.prof: return
        a = self.a
        a("s_memrealtime s[80:81]" if CFG.prof == 5 else "s_memtime s[80:81]")
        a("s_waitcnt lgkmcnt(0)")
        a("s_mov_b64 s[92:93], exec")
        a("s_mov_b64 exec, s[84:85]")
        a(f"v_mov_b32 v{self.v}, s80")
        a("s_mov_b64 exec, s[92:93]")
        a("s_lshl_b64 s[84:85], s[84:85], 1")
    def flush(self, sWave):
        if not CFG.prof: return
        a = self.a
        self.stamp()
        a("s_memrealtime s[82:83]")
        a("s_load_dwordx2 s[86:87], s[0:1], 80")
        a("s_waitcnt lgkmcnt(0)")
        a(f"v_writelane_b32 v{self.v}, s82, 63")
        a.srd_off(88, 86, 87, PROF_OFF + self.k * (1 << 20), 1 << 20)
        a("s_lshl_b32 s85, s2, 3")
        a(f"s_add_u32 s85, s85, s{sWave}")
        a("s_lshl_b32 s85, s85, 8")
        a("s_mov_b64 exec, -1")
        a("v_mbcnt_lo_u32_b32 v0, -1, 0")
        a("v_mbcnt_hi_u32_b32 v0, -1, v0")
        a("v_lshlrev_b32 v0, 2, v0")
        a(f"buffer_store_dword v{self.v}, v0, s[88:91], s85 offen")

def code_prefetch(a, sS, vT, vL, name):
    if not CFG.codepf: return
    h = a.newlabel(name + "_pc")
    a(f"s_getpc_b64 s[{sS}:{sS+1}]")
    a.label(h)
    a(f"s_sub_u32 s{sS}, s{sS}, {h}-code_begin")
    a(f"s_subb_u32 s{sS+1}, s{sS+1}, 0")
    a(f"s_mov_b32 s{sS+2}, code_end-code_begin")
    a(f"s_mov_b32 s{sS+3}, 0x00020000")
    a(f"s_lshr_b32 s{sS+4}, s2, 3")
    a(f"s_lshl_b32 s{sS+4}, s{sS+4}, 13")
    a(f"v_lshlrev_b32 v{vT}, 7, v{vL}")
    a(f"buffer_load_dword v{vT+1}, v{vT}, s[{sS}:{sS+3}], s{sS+4} offen")

def prologue(a, name, ngrid):
    a.lines.append(".text")
    a.lines.append(f".globl {name}")
    a.lines.append(".p2align 8")
    a.lines.append(f".type {name},@function")
    a.label(name)
    a(f"s_cmp_ge_u32 s2, {ngrid}")
    a(f"s_cbranch_scc1 {name}_end")
    if CFG.hprof:
        k = {"ka": 0, "kb": 1, "kc": 2}[name[:2]]
        a(f"""s_cmp_lg_u32 s2, 0
        s_cbranch_scc1 {name}_hp
        s_memrealtime s[82:83]
        s_load_dwordx2 s[86:87], s[0:1], 80
        s_waitcnt lgkmcnt(0)""")
        a.srd_off(88, 86, 87, PROF_OFF, 4096)
        a(f"""v_mov_b32 v1, s82
        v_mov_b32 v2, 0
        buffer_store_dword v1, v2, s[88:91], 0 offen offset:{4*k} sc1
        s_waitcnt vmcnt(0)""")
        a.label(f"{name}_hp")

def hprof_end(a, name):
    if not CFG.hprof: return
    a(f"""s_cmp_lg_u32 s2, 0
    s_cbranch_scc1 {name}_hpe
    s_waitcnt vmcnt(0)
    s_memrealtime s[82:83]
    s_load_dwordx4 s[84:87], s[0:1], 72
    s_waitcnt lgkmcnt(0)""")
    a.srd_off(88, 86, 87, PROF_OFF, 4096)
    a.srd(92, 84, 85, 256)
    a(f"""v_mov_b32 v2, 0
    buffer_load_dwordx3 v[4:6], v2, s[88:91], 0 offen sc1
    v_mov_b32 v7, s82
    s_waitcnt vmcnt(0)
    v_sub_u32 v7, v7, v6
    v_sub_u32 v6, v6, v5
    v_sub_u32 v5, v5, v4
    buffer_store_dwordx4 v[4:7], v2, s[92:95], 0 offen""")
    a.label(f"{name}_hpe")

def cost(l):
    c = 0
    for x in l.split("\n"):
        c += 8 if x.startswith(TRANS) else 4
    return c

def spread(slots, fillers, base=None):
    base = [sum(cost(x) + (4 if x.startswith("v_mfma") else 0) for x in sl) for sl in slots]
    tot = sum(base) + sum(cost(f) for f in fillers)
    out = []; k = 0; cum = 0
    for i, sl in enumerate(slots):
        out += sl; cum += base[i]
        tgt = tot * (i + 1) / len(slots)
        while k < len(fillers) and cum + cost(fillers[k]) / 2 <= tgt:
            out.append(fillers[k]); cum += cost(fillers[k]); k += 1
    return out + fillers[k:]


FL_OFF, FL_SZ = 49 << 20, 20480
FL_W, FL_E, FL_U, FL_Q, FL_TAG = 0, 4096, 8192, 12288, 16384
sTag, sLo = 100, 101
TAG_LDS = 163832
Z1B = 204

def poll_flags(a, name, sFL, items, vt, sT, on_fail=None):
    a(f"s_mov_b32 s{sT}, {CFG.bound}")
    a.label(name)
    regs = []
    r = vt
    for vo, so, w in items:
        sfx = {1: "dword", 4: "dwordx4"}[w]
        a(f"buffer_load_{sfx} {vr(r,w)}, v{vo}, s[{sFL}:{sFL+3}], {so} offen sc1")
        regs += list(range(r, r + w)); r += w
    a("s_waitcnt vmcnt(0)")
    for x in regs: a(f"v_xor_b32 v{x}, s{sTag}, v{x}")
    for x in regs[1:]: a(f"v_or_b32 v{regs[0]}, v{regs[0]}, v{x}")
    a(f"""v_cmp_ne_u32 vcc, 0, v{regs[0]}
    s_sub_u32 s{sT}, s{sT}, 1
    s_cmp_eq_u32 s{sT}, 0
    s_cbranch_scc1 {name}_ok
    s_cmp_eq_u64 vcc, 0
    s_cbranch_scc1 {name}_ok""")
    if on_fail: on_fail()
    a(f"""s_sleep {CFG.sleep}
    s_branch {name}""")
    a.label(f"{name}_ok")

def phase_A(a, N):
    X, FR, T = 112, 24, 16
    AC = [80, 48]
    W = AC[1]
    vL, vA0, vA1, vPn, vO8, vSt, vStO = 1, 2, 3, 4, 5, 6, 7
    vNm, vSc, vSum = 8, 9, 10
    S = W
    vX0, vX1, vX2, vX3, vSR, vSRs, vXw = W+8, W+9, W+10, W+11, W+12, W+16, W+20
    sX, sWI, sWQ, sZQ, sST, sDM = 12, 16, 20, 24, 28, 32
    sFQ, sFq = 28, 32
    sWave, sRb, sCg = 36, 37, 38
    sNz2, sNg, sN, sZ2s, sZ1m, sQm = 39, 40, 41, 42, 43, 44
    sU, sV, sUn, sMz2, sP8, sOb = 45, 46, 47, 48, 49, 50
    sMq = 52
    sDma, sDstep, sDvs = 54, 55, 56
    sDp, sDc, sDn = 57, 58, 59
    sBufN, sPw, sRot, sRw = 61, 62, 60, 51
    sMis = 41
    sHu, sHx = 3, 33
    sDl, sOlo, sOhi, sOnes = 63, 64, 65, 66
    sXr = 68
    sT0, sT1, sT2, sSt, sP8i, sP8q, sXb, sXs = 72, 73, 74, 76, 77, 78, 75, 79
    UB = 73728; STG = 2 * UB
    RBL = CFG.ka_rbl
    prologue(a, N, 256)
    pf = Prof(a, 15, 0); pf.init(); a.pf = pf
    a("s_load_dwordx4 s[4:7], s[0:1], 0")
    a("s_load_dwordx4 s[8:11], s[0:1], 32")
    a("s_load_dwordx4 s[96:99], s[0:1], 72")
    a(f"v_and_b32 v{vL}, 63, v0")
    a(f"v_lshrrev_b32 v{T}, 6, v0")
    a(f"v_readfirstlane_b32 s{sWave}, v{T}")
    a(f"""s_and_b32 s{sT0}, s2, 7
    s_lshr_b32 s{sT1}, s2, 3
    s_and_b32 s{sRb}, s{sT0}, {(16>>RBL)-1}
    s_lshl_b32 s{sRb}, s{sRb}, {RBL}
    s_and_b32 s{sT2}, s{sT1}, {(1<<RBL)-1}
    s_add_u32 s{sRb}, s{sRb}, s{sT2}
    s_lshr_b32 s{sCg}, s{sT0}, {4-RBL}
    s_lshl_b32 s{sCg}, s{sCg}, {5-RBL}
    s_lshr_b32 s{sT2}, s{sT1}, {RBL}
    s_add_u32 s{sCg}, s{sCg}, s{sT2}
    s_and_b32 s{sRot}, s{sT1}, {(1<<RBL)-1}
    s_lshl_b32 s{sRot}, s{sRot}, 1
    s_add_u32 s{sRot}, s{sRot}, s{sT2}
    s_mul_i32 s{sRot}, s{sRot}, {CFG.ka_rot}
    s_sub_u32 s{sT2}, s{sRot}, 9
    s_min_u32 s{sRot}, s{sRot}, s{sT2}
    s_sub_u32 s{sT2}, s{sRot}, 9
    s_min_u32 s{sRot}, s{sRot}, s{sT2}
    v_lshrrev_b32 v{T}, 3, v{vL}
    v_and_b32 v{T+1}, 7, v{vL}""")
    unit_lists = f"""s_min_u32 s{sT0}, s{sCg}, 4
    s_lshl_b32 s{sZ2s}, s{sCg}, 1
    s_add_u32 s{sZ2s}, s{sZ2s}, s{sT0}
    s_add_u32 s{sZ2s}, s{sZ2s}, 36
    s_lshl_b32 s{sT0}, s{sCg}, 1
    s_sub_u32 s{sT0}, s{sT0}, 6
    s_sub_u32 s{sQm}, s{sCg}, 3
    s_cmp_lt_u32 s{sCg}, 4
    s_cselect_b32 s{sNz2}, 3, 2
    s_cselect_b32 s{sQm}, s{sQm}, s{sT0}
    s_mul_i32 s{sHu}, s{sCg}, 288
    s_and_b32 s{sT0}, s{sCg}, 1
    s_lshl_b32 s{sT1}, s{sT0}, 5
    s_add_u32 s{sZ1m}, s{sHu}, s{sT1}
    s_sub_u32 s{sZ1m}, s{sZ1m}, 512
    s_xor_b32 s{sT0}, s{sT0}, 1
    s_lshl_b32 s{sT0}, s{sT0}, 8
    s_add_u32 s{sHu}, s{sHu}, s{sT0}
    s_add_u32 s{sT0}, s{sCg}, 1
    s_bfe_u32 s{sMis}, s{sT0}, 0x10001
    s_mov_b32 s{sLo}, 73728"""
    a(f"s_cmp_ge_u32 s{sWave}, 4")
    a(f"s_cbranch_scc1 {N}_prod")
    a(f"""v_lshrrev_b32 v{T+2}, 4, v{vL}
    v_xor_b32 v{T+2}, v{T+2}, v{T+1}
    v_lshlrev_b32 v{T+2}, 4, v{T+2}
    v_mul_u32_u24 v{vX0}, 1152, v{T}
    v_add_u32 v{vX0}, v{vX0}, v{T+2}
    v_xor_b32 v{vX1}, 64, v{vX0}
    s_lshl_b32 s{sT0}, s{sRb}, 7
    s_lshl_b32 s{sT1}, s{sWave}, 5
    s_add_u32 s{sT0}, s{sT0}, s{sT1}
    s_mul_i32 s{sXr}, s{sT0}, 1152
    s_add_u32 s{sXr+1}, s{sXr}, 8192
    s_add_u32 s{sXr+2}, s{sXr}, 16384
    s_add_u32 s{sXr+3}, s{sXr}, 24576
    s_lshl_b32 s{sXb}, s{sWave}, 14
    s_add_u32 s{sXb}, s{sXb}, {UB}
    s_lshl_b32 s{sXs}, s{sWave}, 12
    s_add_u32 s{sXs}, s{sXs}, {STG}""")
    a("s_waitcnt lgkmcnt(0)")
    if CFG.prof == 3: pf.stamp()
    a.srd(sX, 4, 5, 2048 * 1152)
    a(f"s_lshl_b32 s{sRw}, s{sRot}, 7")
    def xload(j):
        a(f"v_add_u32 v{vX2}, s{sRw}, v{vX0}")
        a(f"v_add_u32 v{vX3}, s{sRw}, v{vX1}")
        if j < 4: a(f"s_add_u32 m0, s{sXb}, {j*4096}")
        elif j == 4: a(f"s_mov_b32 m0, s{sXs}")
        a(f"s_add_u32 s{sRw}, s{sRw}, 128")
        for rg in range(4):
            if j < 5:
                a(f"buffer_load_dwordx4 v{vX3 if rg&1 else vX2}, s[{sX}:{sX+3}], s{sXr+rg} offen offset:{rg*1024} {CFG.ka_x_aux} lds")
            else:
                a(f"buffer_load_dwordx4 {vr(X+16*j+4*rg,4)}, v{vX3 if rg&1 else vX2}, s[{sX}:{sX+3}], s{sXr+rg} offen offset:{rg*1024} {CFG.ka_x_aux}")
        a(f"s_cmp_eq_u32 s{sRw}, 1152")
        a(f"s_cselect_b32 s{sRw}, 0, s{sRw}")
    for j in range(CFG.ka_xfirst): xload(j)
    a.srd_off(sZQ, 98, 99, CFG.ws_base + ZQ_OFF, ZQ_SZ)
    a.srd_off(sFQ, 98, 99, CFG.ws_base + FL_OFF + FL_Q, 4096)
    a(f"""s_lshl_b32 s{sFq}, s{sRb}, 8
    s_lshl_b32 s{sT0}, s{sCg}, 4
    s_add_u32 s{sFq}, s{sFq}, s{sT0}
    s_lshl_b32 s{sT0}, s{sWave}, 2
    s_add_u32 s{sFq}, s{sFq}, s{sT0}
    v_mov_b32 v12, {TAG_LDS}
    v_mov_b32 v13, 0""")
    a(unit_lists)
    a(f"""s_mov_b32 s{sDl}, {f32(DELTA)}
    s_mov_b32 s{sOlo}, 0x00003f80
    s_mov_b32 s{sOhi}, 0x3f800000
    s_mov_b32 s{sOnes}, 0x3f803f80""")
    def cparams():
        return [
            f"s_add_u32 s{sT0}, s{sZ2s}, s{sV}",
            f"s_add_u32 s{sT2}, s{sQm}, s{sV}",
            f"s_min_u32 s{sT2}, s{sT2}, 26",
            f"s_add_u32 s{sT2}, s{sT2}, 72",
            f"s_cmp_lt_u32 s{sV}, s{sNz2}\n"
            f"s_cselect_b32 s{sUn}, s{sT0}, s{sT2}\n"
            f"s_cselect_b32 s{sMz2}, -1, 0",
            f"s_lshl_b32 s{sDn}, s{sUn}, 18",
        ]
    def traddr(buf):
        return [f"v_and_b32 v{T+7}, s{sMz2}, v{vO8}",
                f"v_xor_b32 v{vA0}, v{T+7}, v{vPn}"] + \
               ([f"v_add_u32 v{vA0}, {UB}, v{vA0}"] if buf else []) + [f"v_xor_b32 v{vA1}, 64, v{vA0}"]
    a(f"s_mov_b32 s{sV}, 0")
    for l in cparams(): a(l)
    a(f"""v_lshrrev_b32 v{T+2}, 5, v{vL}
    v_lshlrev_b32 v{T+2}, 3, v{T+2}
    v_bfe_u32 v{T+3}, v{vL}, 2, 2
    v_add_u32 v{T+2}, v{T+2}, v{T+3}
    v_lshlrev_b32 v{vPn}, 7, v{T+2}
    v_lshrrev_b32 v{T+3}, 1, v{T+3}
    v_lshl_add_u32 v{vPn}, v{T+3}, 6, v{vPn}
    v_bfe_u32 v{T+3}, v{vL}, 4, 1
    v_lshl_add_u32 v{vPn}, v{T+3}, 5, v{vPn}
    v_and_b32 v{T+3}, 1, v{vL}
    v_lshl_add_u32 v{vPn}, v{T+3}, 4, v{vPn}
    v_lshlrev_b32 v{vO8}, 3, v{T+3}
    v_bfe_u32 v{T+3}, v{vL}, 1, 1
    v_lshl_add_u32 v{vPn}, v{T+3}, 3, v{vPn}""")
    for l in traddr(0): a(l)
    a(f"""v_and_b32 v{T+2}, 31, v{vL}
    v_bfe_u32 v{T+3}, v{vL}, 1, 3
    v_lshrrev_b32 v{T+4}, 5, v{vL}
    v_xor_b32 v{T+3}, v{T+3}, v{T+4}
    v_lshlrev_b32 v{T+3}, 4, v{T+3}
    v_lshl_add_u32 v{T+3}, v{T+2}, 7, v{T+3}
    v_add_u32 v{vSR}, s{sXb}, v{T+3}
    v_xor_b32 v{vSR+1}, 32, v{vSR}
    v_xor_b32 v{vSR+2}, 64, v{vSR}
    v_xor_b32 v{vSR+3}, 96, v{vSR}
    v_add_u32 v{vSRs}, s{sXs}, v{T+3}
    v_xor_b32 v{vSRs+1}, 32, v{vSRs}
    v_xor_b32 v{vSRs+2}, 64, v{vSRs}
    v_xor_b32 v{vSRs+3}, 96, v{vSRs}
    v_lshlrev_b32 v{vStO}, 3, v{vL}
    v_add_u32 v{vStO}, s{sXs}, v{vStO}
    s_lshl_b32 s{sT0}, s{sRb}, 7
    s_lshl_b32 s{sT1}, s{sWave}, 5
    s_add_u32 s{sT0}, s{sT0}, s{sT1}
    v_add_u32 v{vSt}, s{sT0}, v{T+2}
    v_lshlrev_b32 v{vSt}, 4, v{vSt}
    v_lshl_add_u32 v{vSt}, v{T+4}, 15, v{vSt}
    v_mov_b32 v{vSum}, 0
    v_mov_b32 v{vSum+1}, 0""")
    pf.stamp()
    def xstats(j):
        for r in range(16):
            x = X + 16*j + r
            q = S + 2*(r % 2)
            first = (j == 0 and r < 2)
            a(f"v_dot2_f32_bf16 v{q}, v{x}, s{sOnes}, {'0' if first else 'v%d' % q}")
            a(f"v_dot2_f32_bf16 v{q+1}, v{x}, v{x}, {'0' if first else 'v%d' % (q+1)}")
    a(f"v_lshlrev_b32 v{vXw}, 4, v{vL}")
    a(f"v_add_u32 v{vXw}, s{sXb}, v{vXw}")
    issued = CFG.ka_xfirst
    for j in range(9):
        a(f"s_waitcnt vmcnt({4*(issued-1-j)})")
        if CFG.prof == 3: pf.stamp()
        if j >= 5:
            for rg in range(4):
                a(f"ds_write_b128 v{vXw}, {vr(X+16*j+4*rg,4)} offset:{(j%5)*4096+rg*1024}")
        for i in range(4):
            if j % 5 < 4: a(f"ds_read_b128 {vr(X+16*j+4*i,4)}, v{vSR+i} offset:{(j%5)*4096}")
            else: a(f"ds_read_b128 {vr(X+16*j+4*i,4)}, v{vSRs+i}")
        if issued < 9:
            xload(issued); issued += 1
        if j > 0:
            a(f"s_waitcnt lgkmcnt({8 if j >= 5 else 4})")
            a.lines.append(".p2align 3")
            xstats(j-1)
    a("s_waitcnt lgkmcnt(0)")
    a.lines.append(".p2align 3")
    xstats(8)
    pf.stamp()
    a(f"""v_add_f32 v{S}, v{S}, v{S+2}
    v_add_f32 v{S+1}, v{S+1}, v{S+3}
    s_mov_b32 s{sT0}, {f32(-1.0/576)}
    s_mov_b32 s{sT1}, {f32(1.0/576)}
    s_mov_b32 s{sT2}, {f32(KSC)}
    v_mov_b32 v{S+2}, v{S}
    v_mov_b32 v{S+3}, v{S+1}
    v_permlane32_swap_b32 v{S}, v{S+2}
    v_permlane32_swap_b32 v{S+1}, v{S+3}
    v_add_f32 v{S}, v{S}, v{S+2}
    v_add_f32 v{S+1}, v{S+1}, v{S+3}
    v_mul_f32 v{vNm}, s{sT0}, v{S}
    v_mul_f32 v{S+1}, s{sT1}, v{S+1}
    v_fma_f32 v{S+1}, -v{vNm}, v{vNm}, v{S+1}
    v_max_f32 v{S+1}, 0, v{S+1}
    v_add_f32 v{S+1}, {f32(EPS)}, v{S+1}
    v_rsq_f32 v{S+1}, v{S+1}
    s_mov_b32 s{sU}, 0
    s_mov_b32 s{sDc}, s{sDn}
    s_mov_b32 s{sDp}, s{sDn}
    v_mul_f32 v{vSc}, s{sT2}, v{S+1}""")
    CT = [W, W+2, W+4, W+6]
    def center(kk):
        o = []
        for r in range(4):
            x = X + 4*kk + r
            o.append(f"v_dot2_f32_bf16 v{CT[r]}, v{x}, s{sOlo}, v{vNm}")
            o.append(f"v_dot2_f32_bf16 v{CT[r]+1}, v{x}, s{sOhi}, v{vNm}")
        for r in range(4):
            o.append(f"v_cvt_pk_bf16_f32 v{X+4*kk+r}, v{CT[r]}, v{CT[r]+1}")
        return o
    def center_plain(kk):
        o = []
        for r in range(4):
            x = X + 4*kk + r
            o += [f"v_lshlrev_b32 v{CT[r]}, 16, v{x}", f"v_and_b32 v{CT[r]+1}, 0xffff0000, v{x}",
                  f"v_add_f32 v{CT[r]}, v{vNm}, v{CT[r]}", f"v_add_f32 v{CT[r]+1}, v{vNm}, v{CT[r]+1}",
                  f"v_cvt_pk_bf16_f32 v{x}, v{CT[r]}, v{CT[r]+1}"]
        return o
    NPRE = CFG.ka_npre
    a.lines.append(".p2align 3")
    for kk in range(NPRE):
        for l in center(kk): a(l)
    pf.stamp()
    a("s_barrier")
    pf.stamp()

    def reads(kk, t):
        st = kk % 3
        off = (kk % 18) * 2048
        return [f"ds_read_b64_tr_b16 {vr(FR+8*st+4*t+2*h,2)}, v{vA1 if t else vA0} offset:{off+512*h}" for h in range(2)]
    def reads_s(kk):
        return [f"ds_read_b64_tr_b16 {vr(FR+8*(kk%3)+2*h,2)}, v{vA0} offset:{kk*512+128*h}" for h in range(2)]
    def mfma(par, kk, t):
        st = kk % 3; acc = AC[par] + 16*t
        c = "0" if kk == 0 else vr(acc, 16)
        return f"v_mfma_f32_32x32x16_bf16 {vr(acc,16)}, {vr(FR+8*st+4*t,4)}, {vr(X+4*kk,4)}, {c}"
    def stores(E, m):
        if CFG.ka_nostore: return []
        return [f"s_add_u32 s{sSt}, s{sDp}, {2*m*OCT}",
                f"buffer_store_dwordx4 {vr(E+8*m,4)}, v{vSt}, s[{sZQ}:{sZQ+3}], s{sSt} offen {CFG.st_aux_a}"]
    def epi(kind, E, ne_=32, D=None):
        out = []
        order = list(range(ne_)) if D is None else list(range(16, 32)) + list(range(16))
        dst = (lambda p: E+(p//8)*8+(p%8)//2) if D is None else D
        if kind == "P":
            for e in range(32):
                out.append(f"v_mul_f32 v{E+e}, v{vSc}, v{E+e}")
                if e % 2 == 1 and e >= 3:
                    p = e - 3; out.append(f"v_cvt_pk_bf16_f32 v{E+(p//8)*8+(p%8)//2}, v{E+p}, v{E+p+1}")
            out.append(f"v_cvt_pk_bf16_f32 v{E+27}, v{E+30}, v{E+31}")
            return out
        def st(k, pos):
            w = E + order[pos]; t = T + pos % 6
            return [f"v_mul_f32 v{w}, v{vSc}, v{w}", f"v_fma_f32 v{t}, v{w}, v{w}, s{sDl}", f"v_mul_f32 v{t}, v{t}, v{w}",
                    f"v_exp_f32 v{t}, v{t}", f"v_add_f32 v{t}, 1.0, v{t}", f"v_rcp_f32 v{t}, v{t}", f"v_mul_f32 v{w}, v{t}, v{w}"][k]
        for i in range(ne_ + 7):
            for k in (6, 3, 0, 4, 1, 5, 2):
                e = i - k
                if 0 <= e < ne_: out.append(st(k, e))
            e = i - 7
            if 0 <= e < ne_ and e % 2 == 1:
                p = order[e - 1]; out.append(f"v_cvt_pk_bf16_f32 v{dst(p)}, v{E+p}, v{E+p+1}")
        return out
    def stats(E):
        out = []
        for m in range(4):
            for i in range(4):
                b = E + 8*m
                out.append(f"v_dot2_f32_bf16 v{vSum}, v{b+i}, s{sOnes}, v{vSum}")
                out.append(f"v_dot2_f32_bf16 v{vSum+1}, v{b+i}, v{b+i}, v{vSum+1}")
        return out
    DA = lambda p: AC[0] + 16 + ((p - 16) // 2 if p >= 16 else 8 + p // 2)
    def body(kind, par):
        E = AC[1 - par]
        if kind == "F":
            for l in reads(0, 0) + reads(0, 1) + reads(1, 0) + reads(1, 1): a(l)
        a.label(f"{N}_{kind}{par}")
        slots = []
        for kk in range(0, 36):
            lw = 4
            if kind == "S": lw = 2 if kk < 35 else 0
            if kind == "H" and kk == 35: lw = 2
            s0 = [f"s_waitcnt lgkmcnt({lw})", mfma(par, kk, 0)]
            s1 = [mfma(par, kk, 1)] if kind != "S" else []
            if kk == 0: s0 += [f"s_add_u32 s{sV}, s{sU}, 1"]
            if kk == 1 and kind != "F": s0 += ["s_barrier"]
            if (kind, par, kk) == (("P", 0, 33) if CFG.ka_fq < 0 else ("H", 1, CFG.ka_fq)):
                s0 += ["s_waitcnt vmcnt(0)", f"buffer_store_dword v14, v13, s[{sFQ}:{sFQ+3}], s{sFq} offen sc1"]
            if kk == 20 and kind == "P" and par == 0: s1 += ["ds_read_b32 v14, v12"]
            if kk == 34: s0 += ["s_barrier"]
            if kk + 2 == 18 and kind != "S":
                s0 += [f"v_add_u32 v{vA0}, {18*2048}, v{vA0}", f"v_add_u32 v{vA1}, {18*2048}, v{vA1}"]
            if kind == "S": s0 += reads_s(kk + 2) if kk < 34 else []
            elif kind == "H" and kk >= 34: s0 += reads_s(kk - 34)
            else: s0 += reads((kk+2) % 36, 0)
            if kind != "S" and (kind != "H" or kk < 34): s1 += reads((kk+2) % 36, 1)
            st0 = (CFG.ka_pst1 if par else CFG.ka_pst) if kind == "P" else 36 - CFG.ka_stpos
            if kind in "GP" and st0 <= kk < st0 + 4:
                s0 += stores(E, kk - st0)
            if kk == 33 and kind == "H":
                s1 += [f"v_lshrrev_b32 v{vA0}, 7, v{vPn}", f"v_and_b32 v{vA1}, 24, v{vPn}", f"v_lshl_add_u32 v{vA0}, v{vA0}, 5, v{vA1}"]
            elif kk == 33 and kind != "S": s1 += traddr(1 - par)
            slots += [s0, s1]
        if kind == "S":
            sl = [slots[2*i] + slots[2*i+1] for i in range(36)]
            out = sl[0] + spread(sl[1:], epi("H", E))
        elif kind == "F":
            ne = 2 * NPRE - 2
            out = spread(slots[:ne], sum([center_plain(kk) for kk in range(NPRE, 36)], []))
            out += interleave(slots[ne:-6], cparams()) + sum(slots[-6:], [])
        elif kind == "N":
            out = slots[0] + interleave(slots[1:20], cparams()) + sum(slots[20:], [])
        elif kind == "H":
            out = slots[0] + slots[1] + spread(slots[2:], epi(kind, E, D=DA))
        else:
            ep = epi(kind, E)
            ne = len(slots) - 2*CFG.ka_stpos + 4 if kind != "P" else 24
            out = slots[0] + spread(slots[1:ne], cparams() + ep) + sum(slots[ne:], [])
        for l in out:
            if CFG.prof == 4 and kind in "PH" and l in (mfma(par, 12, 0), mfma(par, 18, 0), mfma(par, 33, 0), mfma(par, 34, 0), mfma(par, 34, 1)): pf.stamp()
            a(l)
        if kind == "G":
            a.lines.append(".p2align 3")
            for l in stats(E): a(l)
            a(f"ds_write_b64 v{vStO}, {vr(vSum,2)}")
        a(f"s_mov_b32 s{sDp}, s{sDc}")
        a(f"s_mov_b32 s{sDc}, s{sDn}")
        a(f"s_mov_b32 s{sU}, s{sV}")
        pf.stamp()
    body("F", 0); body("G", 1); body("G", 0)
    a(f"s_cmp_lt_u32 s{sNz2}, 3")
    a(f"s_cbranch_scc1 {N}_P1")
    E2 = AC[0]
    a("s_nop 7")
    for l in epi("G", E2):
        a(l)
        for m in range(4):
            if l.startswith(f"v_cvt_pk_bf16_f32 v{E2+8*m+3},"):
                for x in stores(E2, m): a(x)
    a.lines.append(".p2align 3")
    for l in stats(E2): a(l)
    a(f"ds_write_b64 v{vStO}, {vr(vSum,2)}")
    a("s_waitcnt lgkmcnt(0)")
    pf.stamp()
    body("N", 1)
    a(f"s_branch {N}_P0")
    body("P", 1); body("P", 0); body("H", 1); body("S", 0)
    src = [AC[0] + 24, AC[0] + 28, AC[0] + 16, AC[0] + 20, AC[1], AC[1] + 8, AC[1] + 16, AC[1] + 24]
    a(f"s_cmp_lg_u32 s{sMis}, 0")
    a(f"s_cbranch_scc1 {N}_zmis")
    for m in range(8):
        for r in range(4): a(f"v_mov_b32 v{Z1B+4*m+r}, v{src[m]+r}")
    a(f"s_branch {N}_zdone")
    a.label(f"{N}_zmis")
    for m, q in enumerate([4, 5, 0, 1, 2, 3, 6, 7]):
        for r in range(4): a(f"v_mov_b32 v{Z1B+4*m+r}, v{src[q]+r}")
    a.label(f"{N}_zdone")
    tl = epi("H", AC[0], 8)
    sw = []
    for i in range(4):
        for r in range(4): sw.append(f"v_permlane32_swap_b32 v{Z1B+8*i+r}, v{Z1B+8*i+4+r}")
        for r in range(4): sw.append(f"v_permlane16_swap_b32 v{Z1B+8*i+r}, v{Z1B+8*i+4+r}")
    for l in interleave([[x] for x in tl], sw): a(l)
    for r in range(4): a(f"v_mov_b32 v{Z1B+32+r}, v{AC[0]+r}")
    for r in range(2): a(f"v_permlane16_swap_b32 v{Z1B+32+r}, v{Z1B+34+r}")
    pf.stamp()
    a(f"s_branch {N}_At")
    a.label(f"{N}_prod")
    vD, vDin, vDq, vPi, vPq, vWo, vT, vZero, vTg = 2, 6, 7, 8, 9, 10, 20, 11, 24
    sIsT, sSo2 = 63, 50
    a(f"v_mov_b32 v{vZero}, 0")
    WU, P, MH, ML, C, TT = 128, 32, 96, 100, 104, 112
    sWS, sWP, sCP, sDB, sFL = 12, 24, 4, 8, 64
    sPc = sXr + 2
    if CFG.ka_prio: a(f"s_setprio {CFG.ka_prio}")
    a(f"s_cmp_lg_u32 s{sWave}, 4")
    a(f"s_cbranch_scc1 {N}_nopf1")
    code_prefetch(a, 88, vT, vL, N)
    a.label(f"{N}_nopf1")
    if CFG.ka_xpf:
        a(f"""s_sub_u32 s{sT1}, s{sWave}, 4
        s_lshl_b32 s{sT1}, s{sT1}, 5
        s_lshl_b32 s{sT0}, s{sRb}, 7
        s_add_u32 s{sT0}, s{sT0}, s{sT1}
        s_mul_i32 s{sT0}, s{sT0}, 1152
        v_lshrrev_b32 v{vT}, 2, v{vL}
        v_mul_u32_u24 v{vT}, 1152, v{vT}
        v_and_b32 v{vT+1}, 3, v{vL}
        v_lshl_add_u32 v{vT}, v{vT+1}, 7, v{vT}
        s_add_u32 s{sT1}, s{sT0}, {16*1152}
        s_waitcnt lgkmcnt(0)""")
        a.srd(sX, 4, 5, 2048 * 1152)
        a(f"buffer_load_dword v{vT+1}, v{vT}, s[{sX}:{sX+3}], s{sT0} offen offset:640")
        a(f"buffer_load_dword v{vT+2}, v{vT}, s[{sX}:{sX+3}], s{sT1} offen offset:640")
    a(unit_lists)
    a(f"""s_sub_u32 s{sPw}, s{sWave}, 4
    s_and_b32 s{sPc}, s{sPw}, 1
    s_mov_b32 s{sP8i}, {8*9216}
    s_mov_b32 s{sP8q}, {8*3456}
    v_lshrrev_b32 v{T+2}, 2, v{vL}
    v_and_b32 v{T+2}, 4, v{T+2}
    v_xor_b32 v{T+2}, v{T+2}, v{T+1}
    v_lshlrev_b32 v{T+2}, 4, v{T+2}
    v_mul_u32_u24 v{vDin}, 9216, v{T}
    v_add_u32 v{vDin}, v{vDin}, v{T+2}
    v_mul_u32_u24 v{vDq}, 3456, v{T}
    v_add_u32 v{vDq}, v{vDq}, v{T+2}
    v_lshlrev_b32 v{vWo}, 12, v{T}
    v_lshl_add_u32 v{vWo}, v{T+1}, 4, v{vWo}
    s_and_b32 s{sT0}, s{sRb}, {(1<<RBL)-1}
    s_mul_i32 s{sT0}, s{sT0}, {576>>RBL}
    s_mul_i32 s{sT1}, s{sPw}, {144>>RBL}
    s_add_u32 s{sT0}, s{sT0}, s{sT1}
    v_min_u32 v{T+2}, {(144>>RBL)-1}, v{vL}
    v_add_u32 v{T+2}, s{sT0}, v{T+2}
    v_mul_u32_u24 v{vPi}, 9216, v{T+2}
    v_mul_u32_u24 v{vPq}, 3456, v{T+2}""")
    a("s_waitcnt lgkmcnt(0)")
    a.srd(sWI, 8, 9, 576 * 9216)
    a.srd(sWQ, 6, 7, 576 * 3456)
    a(f"s_mov_b32 s{sDM+3}, 0x00020000")
    a.srd(sWS, 10, 11, 2048 * 4096)
    a.srd_off(sWP, 98, 99, CFG.ws_base + WP_OFF, WP_SZ)
    a.srd_off(sST, 98, 99, CFG.ws_base + ST_OFF, ST_SZ)
    a.srd_off(sCP, 98, 99, CFG.ws_base + CP_OFF, CP_SZ)
    a.srd(sDB, 96, 97, 256)
    a.srd_off(sFL, 98, 99, CFG.ws_base + FL_OFF, FL_SZ)
    a(f"""s_lshl_b32 s{sIsT}, s2, 3
    s_or_b32 s{sIsT}, s{sIsT}, s{sPw}
    v_mov_b32 v{vTg}, {FL_TAG}
    s_cmp_lg_u32 s{sIsT}, 0
    s_cbranch_scc1 {N}_notag
    buffer_load_dword v{vTg+1}, v{vTg}, s[{sFL}:{sFL+3}], 0 offen sc1""")
    a.label(f"{N}_notag")
    def pparams():
        a(f"""s_add_u32 s{sT0}, s{sZ2s}, s{sV}
        s_lshl_b32 s{sT0}, s{sT0}, 7
        s_lshl_b32 s{sT1}, s{sV}, 7
        s_add_u32 s{sT1}, s{sT1}, s{sZ1m}
        s_cmp_eq_u32 s{sV}, 4
        s_cselect_b32 s{sT2}, 64, -128
        s_mul_i32 s{sT2}, s{sT2}, s{sMis}
        s_add_u32 s{sT1}, s{sT1}, s{sT2}
        s_add_u32 s{sT2}, s{sQm}, s{sV}
        s_min_u32 s{sT2}, s{sT2}, 26
        s_lshl_b32 s{sT2}, s{sT2}, 7
        s_cmp_lt_u32 s{sV}, s{sNz2}
        s_cselect_b32 s{sUn}, s{sT0}, s{sT1}
        s_cmp_eq_u32 s{sV}, 6
        s_cselect_b32 s{sUn}, s{sHu}, s{sUn}
        s_sub_u32 s{sT0}, s{sV}, s{sNz2}
        s_sub_u32 s{sT1}, 4, s{sNz2}
        s_cmp_ge_u32 s{sT0}, s{sT1}
        s_cselect_b32 s{sUn}, s{sUn}, s{sT2}
        s_cselect_b64 s[{sMq}:{sMq+1}], 0, -1
        s_cselect_b64 s[{sDM}:{sDM+1}], s[{sWI}:{sWI+1}], s[{sWQ}:{sWQ+1}]
        s_cselect_b32 s{sDM+2}, s{sWI+2}, s{sWQ+2}
        s_cselect_b32 s{sP8}, s{sP8i}, s{sP8q}
        s_cmp_lt_u32 s{sV}, 7
        s_cselect_b32 s{sUn}, s{sUn}, 0x7f000000""")
    def issue(nw=4):
        pparams()
        a(f"""v_cndmask_b32 v{vD}, v{vDin}, v{vDq}, s[{sMq}:{sMq+1}]
        s_sub_u32 s{sDvs}, s{sP8}, 1024
        s_lshl_b32 s{sDstep}, s{sP8}, 1
        s_mul_i32 s{sDma}, s{sDstep}, s{sPw}
        s_add_u32 s{sDma}, s{sDma}, s{sUn}
        s_mul_i32 s{sDstep}, s{sDstep}, {nw}""")
        if nw == 2:
            a(f"""v_and_b32 v{vD+1}, 64, v{vD}
            v_mul_u32_u24 v{vD+1}, s{sMis}, v{vD+1}
            v_lshl_add_u32 v{vD}, v{vD+1}, 1, v{vD}""")
        a(f"""v_add_u32 v{vD+1}, s{sDvs}, v{vD}
        s_lshl_b32 s{sT0}, s{sPw}, 11
        s_add_u32 m0, s{sBufN}, s{sT0}
        s_sub_u32 s{sBufN}, {UB}, s{sBufN}
        s_add_u32 s{sV}, s{sV}, 1""")
        for i in range(36 // nw):
            for j in range(2):
                a(f"buffer_load_dwordx4 v{vD+j}, s[{sDM}:{sDM+3}], s{sDma} offen offset:{1024*j} {CFG.ld_a} lds")
            if i < 36 // nw - 1:
                a(f"s_add_u32 m0, m0, {2048*nw}")
                a(f"s_add_u32 s{sDma}, s{sDma}, s{sDstep}")
    a(f"s_mov_b32 s{sV}, 0")
    a(f"s_mov_b32 s{sBufN}, 0")
    if CFG.ka_xbar >= 0: a("s_barrier")
    issue()
    def l2pf(d=CFG.ka_l2pf-1):
        if d: a(f"s_add_u32 s{sV}, s{sV}, {d}")
        pparams()
        if d: a(f"s_sub_u32 s{sV}, s{sV}, {d}")
        a(f"v_cndmask_b32 v{vT+3}, v{vPi}, v{vPq}, s[{sMq}:{sMq+1}]")
        a(f"buffer_load_dword v14, v{vT+3}, s[{sDM}:{sDM+3}], s{sUn} offen {CFG.ka_pf_aux}")
    npf = 1 if CFG.ka_l2pf else 0
    for d in range(CFG.ka_pf0): l2pf(d)
    if CFG.ka_spf:
        a(f"""s_mul_i32 s{sXr}, s{sRb}, 36
        s_mul_i32 s{sT0}, s{sPw}, 9
        s_add_u32 s{sXr}, s{sXr}, s{sT0}""")
        a.label(f"{N}_spf")
        pparams()
        a(f"""s_lshr_b32 s{sT0}, s{sP8}, 3
        s_mul_i32 s{sT1}, s{sT0}, s{sXr}
        s_add_u32 s{sT1}, s{sT1}, s{sUn}
        s_add_u32 s96, s{sDM}, s{sT1}
        s_addc_u32 s97, s{sDM+1}, 0
        s_mov_b32 s{sT1}, 0""")
        for r in range(9):
            a(f"s_load_dword s{[98,94][r%2]}, s[96:97], s{sT1}")
            a(f"s_load_dword s{[99,95][r%2]}, s[96:97], s{sT1} offset:64")
            if r < 8: a(f"s_add_u32 s{sT1}, s{sT1}, s{sT0}")
        a(f"""s_add_u32 s{sV}, s{sV}, 1
        s_cmp_lt_u32 s{sV}, s{sN}
        s_cbranch_scc1 {N}_spf
        s_mov_b32 s{sV}, 1""")
    a(f"""s_lshl_b32 s{sXr}, s{sCg}, 19
    s_lshl_b32 s{sT0}, s{sRb}, 8
    s_add_u32 s{sXr}, s{sXr}, s{sT0}
    s_lshl_b32 s{sT0}, s{sPc}, 7
    s_add_u32 s{sXr}, s{sXr}, s{sT0}
    s_mov_b32 s{sXr+1}, s{sXr}""")
    a(f"s_waitcnt vmcnt({CFG.ka_pf0})")
    for d in range(CFG.ka_pf0, CFG.ka_l2pf): l2pf(d)
    a(f"""s_cmp_lg_u32 s{sIsT}, 0
    s_cbranch_scc1 {N}_notag2
    v_add_u32 v{vTg+1}, 1, v{vTg+1}
    v_max_u32 v{vTg+1}, 1, v{vTg+1}
    buffer_store_dword v{vTg+1}, v{vTg}, s[{sFL}:{sFL+3}], 0 offen sc1""")
    a.label(f"{N}_notag2")
    pf.stamp()
    a("s_barrier")
    if CFG.ka_prio2: a(f"s_setprio {CFG.ka_prio2}")
    def special(v):
        l = a.newlabel(N + "_sp")
        a(f"s_cmp_lg_u32 s{sV}, {v}")
        a(f"s_cbranch_scc1 {l}")
        return l
    a.label(f"{N}_ploop")
    nopub = a.newlabel(N + "_nopub")
    a(f"s_cmp_lg_u32 s{sV}, 4")
    a(f"s_cbranch_scc1 {nopub}")
    a(f"s_cmp_lg_u32 s{sPw}, 0")
    a(f"s_cbranch_scc1 {nopub}")
    a(f"""v_lshrrev_b32 v{vT}, 5, v{vL}
    v_and_b32 v{vT+1}, 31, v{vL}
    v_lshlrev_b32 v{vT}, 12, v{vT}
    v_lshl_add_u32 v{vT}, v{vT+1}, 3, v{vT}
    v_add_u32 v{vT}, {STG}, v{vT}
    ds_read_b64 {vr(P,2)}, v{vT}
    ds_read_b64 {vr(P+8,2)}, v{vT} offset:256
    ds_read_b64 {vr(P+4,2)}, v{vT} offset:8192
    ds_read_b64 {vr(P+10,2)}, v{vT} offset:{8192+256}
    v_lshlrev_b32 v{vT+1}, 4, v{vL}
    s_lshl_b32 s{sT0}, s{sRb}, 4
    s_add_u32 s{sT0}, s{sT0}, s{sCg}
    s_lshl_b32 s{sT0}, s{sT0}, 11
    v_mov_b32 v{P+2}, s{sTag}
    v_mov_b32 v{P+3}, s{sTag}
    v_mov_b32 v{P+6}, s{sTag}
    v_mov_b32 v{P+7}, s{sTag}
    s_waitcnt lgkmcnt(0)
    v_add_f32 v{P}, v{P}, v{P+8}
    v_add_f32 v{P+1}, v{P+1}, v{P+9}
    v_add_f32 v{P+4}, v{P+4}, v{P+10}
    v_add_f32 v{P+5}, v{P+5}, v{P+11}
    buffer_store_dwordx4 {vr(P,4)}, v{vT+1}, s[{sST}:{sST+3}], s{sT0} offen sc1
    buffer_store_dwordx4 {vr(P+4,4)}, v{vT+1}, s[{sST}:{sST+3}], s{sT0} offen offset:1024 sc1""")
    a.label(nopub)
    issue()
    if npf: l2pf()
    l3 = a.newlabel(N + "_l"); l4 = a.newlabel(N + "_l")
    l = special(2)
    a(f"s_cmp_lt_u32 s{sPw}, 2")
    a(f"s_cbranch_scc1 {N}_s0b")
    for i in range(16):
        a(f"buffer_load_dwordx4 {vr(WU+8*i+4,4)}, v{vWo}, s[{sWS}:{sWS+3}], s{sXr+1} offen {CFG.ka_wsp_aux}")
        a(f"s_add_u32 s{sXr+1}, s{sXr+1}, 32768")
    a(f"s_waitcnt vmcnt({16+npf})")
    a(f"s_branch {l3}")
    a.label(f"{N}_s0b")
    a(f"""v_mov_b32 v{vT+1}, {TAG_LDS-8}
    ds_write_b32 v{vT+1}, v{vZero}
    ds_write_b32 v{vT+1}, v{vZero} offset:4
    s_waitcnt vmcnt({npf}) lgkmcnt(0)
    s_cmp_lg_u32 s{sIsT}, 0
    s_cbranch_scc1 {l3}
    buffer_store_dword v{vTg+1}, v{vZero}, s[{sDB}:{sDB+3}], 0 offen sc1""")
    a(f"s_branch {l3}")
    a.label(l)
    if CFG.dbg_stale:
        l_ = special(3)
        a(f"""v_lshlrev_b32 v{vT}, 4, v{vL}
        s_lshl_b32 s{sT0}, s{sRb}, 15
        s_lshl_b32 s{sT1}, s{sPc}, 10
        s_add_u32 s{sT0}, s{sT0}, s{sT1}""")
        for i in range(16):
            a(f"buffer_load_dwordx4 {vr(P+4*i,4)}, v{vT}, s[{sST}:{sST+3}], s{sT0} offen offset:{(i%2)*2048}")
            if i % 2 == 1: a(f"s_add_u32 s{sT0}, s{sT0}, 4096")
        a("s_waitcnt vmcnt(0)")
        a.label(l_)
    l = special(4)
    a(f"s_mov_b32 s{sT1}, {CFG.bound}")
    a.label(f"{N}_ptag")
    a(f"""buffer_load_dword v{vT+2}, v{vZero}, s[{sDB}:{sDB+3}], 0 offen sc1
    s_waitcnt vmcnt(0)
    v_readfirstlane_b32 s{sTag}, v{vT+2}
    v_mov_b32 v{vT+1}, {TAG_LDS}
    ds_write_b32 v{vT+1}, v{vT+2}
    s_waitcnt lgkmcnt(0)
    s_sub_u32 s{sT1}, s{sT1}, 1
    s_cmp_eq_u32 s{sT1}, 0
    s_cbranch_scc1 {l3}
    s_cmp_lg_u32 s{sTag}, 0
    s_cbranch_scc1 {l3}
    s_sleep 8
    s_branch {N}_ptag""")
    a.label(l)
    a(f"s_cmp_lt_u32 s{sPw}, 2")
    a(f"s_cbranch_scc1 {l4}")
    l = special(5)
    for i in range(16):
        for r in range(4):
            x = WU + 8*i + 4 + r
            a(f"v_lshlrev_b32 v{WU+8*i+2*r}, 16, v{x}")
            a(f"v_and_b32 v{WU+8*i+2*r+1}, 0xffff0000, v{x}")
    sTry = sXr + 3
    a(f"""v_lshlrev_b32 v{vT}, 4, v{vL}
    s_lshl_b32 s{sT0}, s{sRb}, 15
    s_lshl_b32 s{sT1}, s{sPc}, 10
    s_add_u32 s{sSo2}, s{sT0}, s{sT1}
    s_mov_b32 s{sTry}, {CFG.bound}
    s_waitcnt vmcnt({npf})""")
    def full(aux="sc1"):
        a(f"s_mov_b32 s{sT0}, s{sSo2}")
        for i in range(16):
            a(f"buffer_load_dwordx4 {vr(P+4*i,4)}, v{vT}, s[{sST}:{sST+3}], s{sT0} offen offset:{(i%2)*2048} {aux}")
            if i % 2 == 1: a(f"s_add_u32 s{sT0}, s{sT0}, 4096")
    a("s_barrier")
    full(CFG.ka_st_aux)
    a("s_barrier")
    a(f"s_branch {N}_job")
    a.label(l)
    a.label(l4)
    a(f"s_waitcnt vmcnt({npf})")
    a.label(l3)
    if CFG.prof == 4: pf.stamp()
    a("s_barrier")
    if CFG.prof == 4: pf.stamp()
    a("s_barrier")
    a(f"s_cmp_lt_u32 s{sV}, 5")
    a(f"s_cbranch_scc1 {N}_ploop")
    issue(2)
    if CFG.codepf2 & 1:
        a(f"s_cmp_lg_u32 s{sPw}, 0")
        a(f"s_cbranch_scc1 {N}_nopf3")
        code_prefetch(a, 88, 26, vL, N)
        a.label(f"{N}_nopf3")
    a(f"""v_lshrrev_b32 v{vD}, 1, v{vL}
    v_mul_u32_u24 v{vD}, 9216, v{vD}
    v_and_b32 v{vD+1}, 1, v{vL}
    v_lshl_add_u32 v{vD}, v{vD+1}, 4, v{vD}
    s_mul_i32 s{sDma}, s{sPw}, {32*9216}
    s_add_u32 s{sDma}, s{sDma}, s{sHu}
    s_lshl_b32 s{sT0}, s{sPw}, 10
    s_mov_b32 m0, s{sT0}
    s_waitcnt vmcnt(0)""")
    if CFG.prof == 4: pf.stamp()
    a("""s_barrier
    s_barrier""")
    if CFG.prof == 4: pf.stamp()
    for i in range(9):
        a(f"buffer_load_dwordx4 v{vD}, s[{sWI}:{sWI+3}], s{sDma} offen lds")
        if i < 8:
            a("s_add_u32 m0, m0, 2048")
            a(f"s_add_u32 s{sDma}, s{sDma}, {64*9216}")
    a(f"s_branch {N}_Bh")
    a.label(f"{N}_job")
    if CFG.ka_prio2: a(f"s_setprio {CFG.ka_prioj}")
    pf.stamp()
    sSt8 = sXr + 1
    def d5():
        l = a.newlabel(N + "_d5")
        a(f"""s_cmp_lg_u32 s{sSt8}, 0
        s_cbranch_scc1 {l}
        s_mov_b32 s{sSt8}, 1
        s_barrier
        s_barrier""")
        a.label(l)
    a(f"s_mov_b32 s{sSt8}, 0")
    a(f"s_branch {N}_pst_w")
    a.label(f"{N}_pst")
    d5()
    a("s_sleep 8")
    full()
    a.label(f"{N}_pst_w")
    a("s_waitcnt vmcnt(0)")
    for i in range(16): a(f"v_xor_b32 v{P+4*i+2}, s{sTag}, v{P+4*i+2}")
    for i in range(1, 16): a(f"v_or_b32 v{P+2}, v{P+2}, v{P+4*i+2}")
    a(f"""v_cmp_ne_u32 vcc, 0, v{P+2}
    s_sub_u32 s{sTry}, s{sTry}, 1
    s_cmp_eq_u32 s{sTry}, 0
    s_cbranch_scc1 {N}_pst_ok
    s_cmp_lg_u64 vcc, 0
    s_cbranch_scc1 {N}_pst""")
    a.label(f"{N}_pst_ok")
    pf.stamp()
    a(f"""v_lshlrev_b32 v{vT}, 3, v{vL}
    s_lshl_b32 s{sT1}, s{sPw}, 9
    s_add_u32 s{sT1}, s{sT1}, {STG+4096+2048}
    v_add_u32 v{vT}, s{sT1}, v{vT}
    v_lshlrev_b32 v{vT+1}, 6, v{T+1}
    v_add_u32 v{vT+1}, s{sT1}, v{vT+1}
    s_mov_b32 s{sT0}, {f32(1.0/2304)}
    s_mov_b32 s{sT2}, {f32(1.0/abs(KSC))}""")
    for i in range(1, 16):
        a(f"v_add_f32 v{P}, v{P}, v{P+4*i}")
        a(f"v_add_f32 v{P+1}, v{P+1}, v{P+4*i+1}")
    a(f"""v_mul_f32 v{P}, s{sT0}, v{P}
    v_mul_f32 v{P+1}, s{sT0}, v{P+1}
    v_fma_f32 v{P+1}, -v{P}, v{P}, v{P+1}
    v_max_f32 v{P+1}, 0, v{P+1}
    v_add_f32 v{P+1}, {f32(EPS*KSC*KSC)}, v{P+1}
    v_rsq_f32 v{P+1}, v{P+1}
    v_mul_f32 v{P+1}, s{sT2}, v{P+1}
    ds_write_b64 v{vT}, {vr(P,2)}""")
    for q in range(4):
        a(f"ds_read_b128 {vr(P+4*q,4)}, v{vT+1} offset:{16*q}")
    a("s_waitcnt lgkmcnt(0)")
    for i in range(16):
        for r in range(8): a(f"v_mul_f32 v{WU+8*i+r}, v{P+2*r+1}, v{WU+8*i+r}")
        for r in range(4): a(f"v_cvt_pk_bf16_f32 v{WU+8*i+r}, v{WU+8*i+2*r}, v{WU+8*i+2*r+1}")
        if i < CFG.ka_early:
            a(f"buffer_store_dwordx4 {vr(WU+8*i,4)}, v{vWo}, s[{sWP}:{sWP+3}], s{sXr} offen sc1")
            a(f"s_add_u32 s{sXr}, s{sXr}, 32768")
    d5()
    for i in range(CFG.ka_early, 16):
        if i == CFG.ka_d6:
            a("s_barrier"); a("s_barrier")
        a(f"buffer_store_dwordx4 {vr(WU+8*i,4)}, v{vWo}, s[{sWP}:{sWP+3}], s{sXr} offen sc1")
        a(f"s_add_u32 s{sXr}, s{sXr}, 32768")
    pf.stamp()
    a(f"""s_lshl_b32 s{sXr}, s{sCg}, 7
    s_lshl_b32 s{sT1}, s{sRb}, 3
    s_add_u32 s{sXr}, s{sXr}, s{sT1}
    s_lshl_b32 s{sT1}, s{sPc}, 2
    s_add_u32 s{sXr}, s{sXr}, s{sT1}
    v_mov_b32 v{vTg}, s{sTag}""")
    fw = f"""s_waitcnt vmcnt(0)
    buffer_store_dword v{vTg}, v{vZero}, s[{sFL}:{sFL+3}], s{sXr} offen offset:{FL_W} sc1"""
    if CFG.ka_fwe: a(fw)
    if CFG.ka_d6 > 15:
        a("s_barrier")
        a("s_barrier")
    if CFG.ka_d7: a("s_barrier")
    if not CFG.ka_fwe: a(fw)
    pf.stamp()
    if not CFG.ka_d7: a("s_barrier")
    C2 = 48
    for p in range(4): a(f"v_cvt_pk_bf16_f32 v{MH+p}, v{P+4*p}, v{P+4*p+2}")
    for p in range(4):
        a(f"v_lshlrev_b32 v{TT}, 16, v{MH+p}")
        a(f"v_and_b32 v{TT+1}, 0xffff0000, v{MH+p}")
        a(f"v_sub_f32 v{TT}, v{P+4*p}, v{TT}")
        a(f"v_sub_f32 v{TT+1}, v{P+4*p+2}, v{TT+1}")
        a(f"v_cvt_pk_bf16_f32 v{ML+p}, v{TT}, v{TT+1}")
    a.lines.append(".p2align 3")
    for i in range(0, 16, 2):
        for r in range(4):
            for q in range(2):
                a(f"v_dot2_f32_bf16 v{C2+i+q}, v{WU+8*(i+q)+r}, v{MH+r}, {'0' if r==0 else 'v%d'%(C2+i+q)}")
            for q in range(2):
                a(f"v_dot2_f32_bf16 v{C2+i+q}, v{WU+8*(i+q)+r}, v{ML+r}, v{C2+i+q}")
    for ctrl in ["quad_perm:[1,0,3,2]", "quad_perm:[2,3,0,1]", "row_half_mirror"]:
        for q in range(16):
            a(f"v_add_f32_dpp v{C2+q}, v{C2+q}, v{C2+q} {ctrl} row_mask:0xf bank_mask:0xf")
    for i in range(1, 8):
        a(f"v_cmp_eq_u32 vcc, {i}, v{T+1}")
        a(f"v_cndmask_b32 v{C2}, v{C2}, v{C2+i}, vcc")
        a(f"v_cndmask_b32 v{C2+8}, v{C2+8}, v{C2+8+i}, vcc")
    a(f"""v_lshlrev_b32 v{vT}, 2, v{T}
    v_lshl_add_u32 v{vT}, v{T+1}, 5, v{vT}
    s_lshl_b32 s{sT0}, s{sCg}, 9
    s_lshl_b32 s{sT1}, s{sRb}, 14
    s_add_u32 s{sT0}, s{sT0}, s{sT1}
    s_lshl_b32 s{sT1}, s{sPc}, 13
    s_add_u32 s{sT0}, s{sT0}, s{sT1}
    buffer_store_dword v{C2}, v{vT}, s[{sCP}:{sCP+3}], s{sT0} offen sc1
    buffer_store_dword v{C2+8}, v{vT}, s[{sCP}:{sCP+3}], s{sT0} offen offset:256 sc1
    s_branch {N}_Bh""")

class Attn:
    KV, Q, LG, PH, O = 88, 184, 196, 60, 68
    vQo, vRd = 245, 246
    def __init__(self, a, sZQ, sUO, sT):
        self.a, self.sZQ, self.sUO, self.sT = a, sZQ, sUO, sT
    def base(self, sD, sT):
        self.a(f"""s_and_b32 s{sD}, s2, 7
        s_mul_i32 s{sD}, s{sD}, {9*OCT}
        s_lshr_b32 s{sT}, s2, 3
        s_lshl_b32 s{sT}, s{sT}, 10
        s_add_u32 s{sD}, s{sD}, s{sT}""")
    def kv_prep(self, vDo, TM):
        a = self.a
        for n in range(4):
            a(f"v_add_u32 v{TM}, {64*n}, v1")
            a(f"v_mul_u32_u24 v{TM+1}, 3277, v{TM}")
            a(f"v_lshrrev_b32 v{TM+1}, 18, v{TM+1}")
            a(f"v_mul_u32_u24 v{TM+2}, 80, v{TM+1}")
            a(f"v_sub_u32 v{TM}, v{TM}, v{TM+2}")
            a(f"v_lshlrev_b32 v{TM}, 4, v{TM}")
            a(f"v_lshl_add_u32 v{vDo+n}, v{TM+1}, 15, v{TM}")
            if n: a(f"v_subrev_u32 v{vDo+n}, {1024*n}, v{vDo+n}")
    def stage(self, heads, vDo, vZ, sB, sL, sT):
        a, sZQ = self.a, self.sZQ
        for kv in (0, 2, 1):
            for w in heads:
                if kv < 2:
                    a(f"s_add_u32 m0, s{sL}, {12288*w+4096*kv}")
                    a(f"s_add_u32 s{sT}, s{sB}, {(576+72+72*kv+(9*w>>2))*OCT-256}")
                    for n in range(4):
                        a(f"buffer_load_dwordx4 v{vDo+n}, s[{sZQ}:{sZQ+3}], s{sT} offen offset:{1024*n} lds")
                else:
                    for j in range(3):
                        a(f"s_add_u32 m0, s{sL}, {12288*w+8192+1024*j}")
                        a(f"s_add_u32 s{sT}, s{sB}, {(576+(9*w>>2)+j)*OCT}")
                        a(f"buffer_load_dwordx4 v{vZ}, s[{sZQ}:{sZQ+3}], s{sT} offen lds")
    def setup(self, sWave, sL):
        a, sT = self.a, self.sT
        self.base(sT, sT+1)
        a(f"""s_mul_i32 s{sT+1}, s{sWave}, 9
        s_lshr_b32 s{sT+1}, s{sT+1}, 2
        s_add_u32 s{sT+1}, s{sT+1}, 288
        s_lshl_b32 s{sT+1}, s{sT+1}, 15
        s_add_u32 s{sT}, s{sT}, s{sT+1}
        v_lshlrev_b32 v{self.vQo}, 4, v1
        s_mul_i32 s{sT+5}, s{sWave}, 12288
        s_add_u32 s{sT+5}, s{sT+5}, s{sL}
        s_add_u32 s{sT+5}, s{sT+5}, 32
        v_add_u32 v{self.vRd}, s{sT+5}, v{self.vQo}
        s_lshr_b32 s{sT+4}, s2, 3
        s_lshl_b32 s{sT+4}, s{sT+4}, 6
        v_add_u32 v16, s{sT+4}, v1
        v_mov_b32 v17, 0xff800000""")
        for w in range(1, 8):
            a(f"v_cmp_le_u32 s[{40+2*w}:{41+2*w}], {2*w}, v16")
        sc = (18 ** -0.5) * math.log2(math.e) / (KSC * KSC)
        a(f"s_mov_b32 s{sT+4}, {f32(sc)}")
        a(f"s_mov_b32 s{sT+5}, {f32(KSC)}")
    def reads(self):
        a = self.a
        for j in range(3):
            a(f"ds_read_b128 {vr(self.Q+4*j,4)}, v{self.vRd} offset:{8192-32+1024*j}")
        self.rd(0)
    def rd(self, base):
        for w in range(8):
            for j in range(3):
                self.a(f"ds_read_b128 {vr(self.KV+12*w+4*j,4)}, v{self.vRd} offset:{base+j*1280+224-32*w}")
    def compute(self, do):
        a, sT, KV, Q, LG, PH, O = self.a, self.sT, self.KV, self.Q, self.LG, self.PH, self.O
        for w0 in range(0, 8, 2):
            a(f"s_waitcnt lgkmcnt({min(15, 24-3*(w0+2))})")
            a.lines.append(".p2align 3")
            for i in range(9):
                for w in (w0, w0+1):
                    c = "0" if i == 0 else f"v{LG+w}"
                    a(f"v_dot2_f32_bf16 v{LG+w}, v{Q+do+i}, v{KV+12*w+do+i}, {c}")
        self.rd(4096)
        for w in range(1, 8):
            a(f"v_cndmask_b32 v{LG+w}, v17, v{LG+w}, s[{40+2*w}:{41+2*w}]")
        g = LG; m = 18; s = 19
        a(f"v_max3_f32 v{m}, v{g}, v{g+1}, v{g+2}")
        a(f"v_max3_f32 v{m}, v{m}, v{g+3}, v{g+4}")
        a(f"v_max3_f32 v{m}, v{m}, v{g+5}, v{g+6}")
        a(f"v_max_f32 v{m}, v{m}, v{g+7}")
        for w in range(8): a(f"v_sub_f32 v{g+w}, v{g+w}, v{m}")
        for w in range(8): a(f"v_mul_f32 v{g+w}, s{sT+4}, v{g+w}")
        for w in range(8): a(f"v_exp_f32 v{g+w}, v{g+w}")
        for w in range(8): a(f"v_cvt_pk_bf16_f32 v{g+w}, v{g+w}, 0")
        for w in range(8): a(f"v_lshlrev_b32 v{PH+w}, 16, v{g+w}")
        a(f"v_add_f32 v{s}, v{PH}, v{PH+1}")
        for w in range(2, 8): a(f"v_add_f32 v{s}, v{s}, v{PH+w}")
        a(f"v_mul_f32 v{s}, s{sT+5}, v{s}")
        a(f"v_rcp_f32 v{s}, v{s}")
        for w in range(8):
            if w % 2 == 0:
                a(f"s_waitcnt lgkmcnt({min(15, 24-3*(w+2))})")
                a.lines.append(".p2align 3")
            for d in range(9):
                c0 = "0" if w == 0 else f"v{O+2*d}"
                c1 = "0" if w == 0 else f"v{O+2*d+1}"
                a(f"v_dot2_f32_bf16 v{O+2*d}, v{KV+12*w+do+d}, v{LG+w}, {c0}")
                a(f"v_dot2_f32_bf16 v{O+2*d+1}, v{KV+12*w+do+d}, v{PH+w}, {c1}")
        for d in range(18): a(f"v_mul_f32 v{O+d}, v{s}, v{O+d}")
        for d in range(9): a(f"v_cvt_pk_bf16_f32 v{Q+do+d}, v{O+2*d}, v{O+2*d+1}")
        for j in range(3):
            lo, hi = max(do, 4*j), min(do + 9, 4*j + 4)
            while lo < hi:
                n = 1 if lo % 2 else hi - lo
                sfx = {1: "dword", 2: "dwordx2", 3: "dwordx3", 4: "dwordx4"}[n]
                a(f"buffer_store_{sfx} {vr(Q+lo,n)}, v{self.vQo}, s[{self.sUO}:{self.sUO+3}], s{sT} offen offset:{4*(lo-4*j)} sc1")
                lo += n
            if j < 2: a(f"s_add_u32 s{sT}, s{sT}, {OCT}")

UB = 73728
def c_tile(a, sRb, sCg, sT):
    a(f"""s_and_b32 s{sT}, s2, 7
    s_lshr_b32 s{sT+1}, s2, 3
    s_mul_i32 s{sT+2}, s{sT}, 29
    s_min_u32 s{sT}, s{sT}, 2
    s_add_u32 s{sT+2}, s{sT+2}, s{sT}
    s_add_u32 s{sT+2}, s{sT+2}, s{sT+1}
    s_mul_i32 s{sRb}, s{sT+2}, 7282
    s_lshr_b32 s{sRb}, s{sRb}, 16
    s_mul_i32 s{sT}, s{sRb}, 9
    s_sub_u32 s{sCg}, s{sT+2}, s{sT}""")
UFC, vUC = 88, 247
def o_prefetch(a, sWave, sUO, sTt, sT, bar_every=0, loads=True):
    c_tile(a, sT+3, sT+4, sT)
    a(f"""s_min_u32 s{sT+1}, s{sWave}, 4
    s_mul_i32 s{sTt}, s{sT+3}, 5
    s_add_u32 s{sTt}, s{sTt}, s{sT+1}
    s_cmp_ge_u32 s2, 234
    s_cselect_b32 s{sTt}, 128, s{sTt}
    s_min_u32 s{sT}, s{sTt}, 127
    s_lshl_b32 s{sT}, s{sT}, 8
    v_lshrrev_b32 v{vUC}, 4, v1
    v_lshlrev_b32 v{vUC}, 15, v{vUC}
    v_and_b32 v248, 15, v1
    v_lshl_add_u32 v249, v248, 4, v{vUC}
    v_add_u32 v{vUC}, s{sT}, v249
    s_mov_b32 s{sT}, {288*OCT}""")
    for k in range(18 if loads else 0):
        a(f"buffer_load_dwordx4 {vr(UFC+4*k,4)}, v{vUC}, s[{sUO}:{sUO+3}], s{sT} offen")
        if k < 17: a(f"s_add_u32 s{sT}, s{sT}, {4*OCT}")
        if bar_every and k % bar_every == bar_every - 1: a("s_barrier")
def o_stage(a, w, ks, sUO, sT):
    a(f"""s_mul_i32 s{sT}, s{sT+3}, 5
    s_add_u32 s{sT}, s{sT}, {w}
    s_min_u32 s{sT}, s{sT}, 127
    s_lshl_b32 s{sT}, s{sT}, 8""")
    for k in ks:
        a(f"s_add_u32 m0, s{sLo}, {18432*w+1024*k}")
        a(f"s_add_u32 s{sT+1}, s{sT}, {(288+4*k)*OCT}")
        a(f"buffer_load_dwordx4 v249, s[{sUO}:{sUO+3}], s{sT+1} offen lds")

def phase_B(a, N):
    pf = a.pf
    ZO = 16384
    def zb(j): return ZO + j*1024 + (j >> 1)*64 + (64 if j == 17 else 0)
    STG = zb(17) + 1024
    FREE = 2 * UB
    NE = 12
    BC = FREE
    sWP, sZQ, sUO, sCP, sBS, sFL = 12, 16, 20, 24, 28, 64
    sWave, sTb, sFb, sOdd, sT = 36, 37, 38, 39, 40
    sI, sSlot, sHi, sA, sZm, sZs, sZ1m, sZ1s = 56, 57, 58, 59, 60, 61, 62, 63
    sTt, sFu = 98, 99
    RBL = CFG.ka_rbl
    def common():
        a("s_load_dwordx4 s[4:7], s[0:1], 48")
        a("s_load_dwordx2 s[8:9], s[0:1], 16")
        a("s_load_dwordx2 s[10:11], s[0:1], 80")
        a(f"""s_and_b32 s{sT}, s2, 7
        s_lshr_b32 s{sT+1}, s2, 3
        s_and_b32 s{sTb}, s{sT}, {(16>>RBL)-1}
        s_lshl_b32 s{sTb}, s{sTb}, {RBL}
        s_and_b32 s{sT+2}, s{sT+1}, {(1<<RBL)-1}
        s_add_u32 s{sTb}, s{sTb}, s{sT+2}
        s_lshr_b32 s{sFb}, s{sT}, {4-RBL}
        s_lshl_b32 s{sFb}, s{sFb}, {5-RBL}
        s_lshr_b32 s{sT+2}, s{sT+1}, {RBL}
        s_add_u32 s{sFb}, s{sFb}, s{sT+2}
        s_and_b32 s{sOdd}, s{sFb}, 1
        s_mul_i32 s{sZm}, s{sFb}, 18
        s_lshl_b32 s{sT}, s{sOdd}, 1
        s_add_u32 s{sZs}, s{sZm}, 16
        s_lshl_b32 s{sT+1}, s{sOdd}, 4
        s_sub_u32 s{sZs}, s{sZs}, s{sT+1}
        s_add_u32 s{sZm}, s{sZm}, s{sT}
        s_lshl_b32 s{sZm}, s{sZm}, 15
        s_lshl_b32 s{sZs}, s{sZs}, 15
        s_sub_u32 s{sHi}, {UB}, s{sLo}""")
    ACC, FA, FB, Z1, T = 16, 88, 160, Z1B, 176
    vL, vZ0, vZ1, vZs, vB0, vB1, vE, vEs = 1, 2, 3, 4, 5, 6, 7, 8
    vBC = 10
    AD = {vB0: 240, vB1: 241, vZ0: 242, vZ1: 243, vZs: 244}
    a.label(f"{N}_At")
    common()
    a(f"""v_lshrrev_b32 v{T}, 4, v{vL}
    v_and_b32 v{T+1}, 15, v{vL}
    v_bfe_u32 v{T+2}, v{vL}, 2, 2
    v_and_b32 v{T+3}, 3, v{vL}
    v_lshl_add_u32 v{T+4}, v{T}, 3, v{T+2}
    v_lshlrev_b32 v{T+4}, 4, v{T+4}
    v_add_u32 v{T+4}, {ZO}, v{T+4}
    v_lshrrev_b32 v{T+5}, 1, v{T+3}
    v_and_b32 v{T+6}, 1, v{T+3}
    v_lshl_add_u32 v{vZ0}, v{T+3}, 10, v{T+4}
    v_lshl_add_u32 v{vZ0}, v{T+5}, 6, v{vZ0}
    v_lshl_add_u32 v{vZ0}, v{T+6}, 3, v{vZ0}
    v_xor_b32 v{vZ1}, 8, v{vZ0}
    v_mul_u32_u24 v{vZs}, 1088, v{T+5}
    v_add_u32 v{vZs}, v{vZs}, v{T+4}
    v_xor_b32 v{T+6}, v{T+6}, v{T+5}
    v_lshl_add_u32 v{vZs}, v{T+6}, 3, v{vZs}
    s_lshl_b32 s{sT}, s{sWave}, 5
    v_add_u32 v{T+7}, s{sT}, v{T+1}
    v_and_b32 v{T+8}, 7, v{vL}
    v_xor_b32 v{T+8}, v{T+8}, v{T}
    v_lshlrev_b32 v{T+8}, 4, v{T+8}
    v_lshl_add_u32 v{vB0}, v{T+7}, 7, v{T+8}
    v_xor_b32 v{vB1}, 64, v{vB0}""")
    for r, r2 in AD.items(): a(f"v_add_u32 v{r2}, s{sHi}, v{r}")
    for r in AD: a(f"v_add_u32 v{r}, s{sLo}, v{r}")
    a(f"""s_lshl_b32 s{sT+1}, s{sTb}, 7
    v_add_u32 v{T+9}, s{sT+1}, v{T+7}
    v_lshlrev_b32 v{vE}, 4, v{T+9}
    v_lshrrev_b32 v{T+8}, 1, v{T}
    v_lshl_add_u32 v{vEs}, v{T+8}, 15, v{vE}
    v_and_b32 v{T+10}, 1, v{T}
    v_lshl_add_u32 v{vEs}, v{T+10}, 3, v{vEs}
    v_lshl_add_u32 v{vE}, v{T}, 15, v{vE}
    v_lshlrev_b32 v{vBC}, 2, v{T+7}
    v_add_u32 v{vBC}, {BC}, v{vBC}
    s_lshl_b32 s{sFu}, s{sTb}, 8
    s_lshl_b32 s{sT}, s{sFb}, 4
    s_add_u32 s{sFu}, s{sFu}, s{sT}
    s_lshl_b32 s{sT}, s{sWave}, 2
    s_add_u32 s{sFu}, s{sFu}, s{sT}
    s_add_u32 s{sFu}, s{sFu}, {FL_U}""")
    for i in range(4, 44): a(f"v_mov_b32 v{ACC+i}, 0")
    at = Attn(a, sZQ, sUO, 70)
    at.setup(sWave, sHi)
    a(f"s_mov_b32 s{sI}, 8")
    a("s_waitcnt lgkmcnt(0)")
    a.srd_off(sUO, 10, 11, CFG.ws_base + UO_OFF, UO_SZ)
    a.srd_off(sFL, 10, 11, CFG.ws_base + FL_OFF, FL_SZ)
    pf.stamp()
    a(f"""v_mov_b32 v18, {TAG_LDS-8}
    v_readfirstlane_b32 s{sTag}, v14
    s_mov_b32 s{sA}, {CFG.bound*16}""")
    a.label(f"{N}_kvw")
    a(f"""ds_read_b64 v[184:185], v18
    s_waitcnt lgkmcnt(0)
    v_xor_b32 v184, s{sTag}, v184
    v_xor_b32 v185, s{sTag}, v185
    v_or_b32 v184, v184, v185
    s_sub_u32 s{sA}, s{sA}, 1
    v_readfirstlane_b32 s{sSlot}, v184
    s_cmp_eq_u32 s{sA}, 0
    s_cbranch_scc1 {N}_kvd
    s_cmp_lg_u32 s{sSlot}, 0
    s_cbranch_scc1 {N}_kvw""")
    a.label(f"{N}_kvd")
    pf.stamp()
    at.reads()
    for w in range(4):
        if w < 3:
            a(f"s_cmp_lg_u32 s{sWave}, {w}")
            a(f"s_cbranch_scc1 {N}_at{w+1}")
        at.compute(w)
        if w < 3:
            a(f"s_branch {N}_atd")
            a.label(f"{N}_at{w+1}")
    a.label(f"{N}_atd")
    for i in list(range(4)) + list(range(44, 72)): a(f"v_mov_b32 v{ACC+i}, 0")
    def reads(slot, h, st):
        R = (lambda r: AD[r]) if slot >= 2 else (lambda r: r)
        so = (slot & 1) * STG
        out = [f"ds_read_b128 {vr(FB+8*st+4*tt,4)}, v{R(vB1 if h else vB0)} offset:{so+2048*tt}" for tt in range(2)]
        for j in range(9):
            for rd in range(2):
                if j < 8:
                    out.append(f"ds_read_b64_tr_b16 {vr(FA+36*st+4*j+2*rd,2)}, v{R(vZ1 if j&1 else vZ0)} offset:{so+zb(4*(j>>1))-ZO+512*h+64*rd}")
                else:
                    out.append(f"ds_read_b64_tr_b16 {vr(FA+36*st+4*j+2*rd,2)}, v{R(vZs)} offset:{so+zb(16)-ZO+512*h+64*rd}")
        return out
    def phase(st, rds):
        out = []; k = 0
        for j in range(9):
            for tt in range(2):
                if tt == 0 and j % 3 == 0:
                    jj = min(j + 2, 8)
                    out.append(f"s_waitcnt lgkmcnt({min(15, 19-(3+2*jj)+k)})")
                out.append(f"v_mfma_f32_16x16x32_bf16 {vr(ACC+8*j+4*tt,4)}, {vr(FA+36*st+4*j,4)}, {vr(FB+8*st+4*tt,4)}, {vr(ACC+8*j+4*tt,4)}")
                for _ in range(2 if j == 1 else 1):
                    if k < len(rds): out.append(rds[k]); k += 1
        return out
    pf.stamp()
    a("s_barrier")
    pf.stamp()
    for l in reads(0, 0, 0): a(l)
    a.lines.append(".p2align 6")
    a.label(f"{N}_Bloop")
    for slot in range(4):
        for l in phase(0, reads(slot, 1, 1)): a(l)
        if slot == 3:
            a(f"s_sub_u32 s{sI}, s{sI}, 1")
            a("s_waitcnt vmcnt(0)")
        a("s_barrier")
        if CFG.prof == 2: pf.stamp()
        for l in phase(1, reads((slot + 1) % 4, 0, 0)): a(l)
    a(f"s_cmp_lg_u32 s{sI}, 0")
    a(f"s_cbranch_scc1 {N}_Bloop")
    a(f"ds_read_b32 v{vBC+1}, v{vBC} offset:64")
    a(f"ds_read_b32 v{vBC}, v{vBC}")
    a("s_waitcnt lgkmcnt(0)")
    a("s_barrier")
    order = [0, 1, 2, 3, 4]
    pf.stamp()
    for oi, i in enumerate(order):
        if i < 4: a(f"s_add_u32 s{sT}, s{sZm}, {4*OCT*i}")
        for tt in range(2):
            n = 4 if i < 4 else 2
            z = Z1 + 8*i + n*tt
            for r in range(n):
                j = 2*i + (r >> 1)
                ac = ACC + 8*j + 4*tt + 2*(r & 1)
                t = T + 4*(r % 2)
                a(f"v_add_f32 v{ac}, v{vBC+tt}, v{ac}")
                a(f"v_add_f32 v{ac+1}, v{vBC+tt}, v{ac+1}")
                a(f"v_lshlrev_b32 v{t}, 16, v{z+r}")
                a(f"v_and_b32 v{t+1}, 0xffff0000, v{z+r}")
                a(f"v_mul_f32 v{t}, v{t}, v{ac}")
                a(f"v_mul_f32 v{t+1}, v{t+1}, v{ac+1}")
                a(f"v_cvt_pk_bf16_f32 v{z+r}, v{t}, v{t+1}")
            if i < 4:
                a(f"buffer_store_dwordx4 {vr(z,4)}, v{vE}, s[{sUO}:{sUO+3}], s{sT} offen offset:{256*tt} sc1")
            else:
                a(f"buffer_store_dwordx2 {vr(z,2)}, v{vEs}, s[{sUO}:{sUO+3}], s{sZs} offen offset:{256*tt} sc1")
    o_prefetch(a, sWave, sUO, sTt, sT, loads=False)
    a(f"s_branch {N}_Cc")
    a.label(f"{N}_Bh")
    common()
    vA, vZ = 2, 3
    a(f"""v_lshrrev_b32 v4, 3, v1
    v_and_b32 v5, 7, v1
    v_xor_b32 v5, v5, v4
    v_lshlrev_b32 v5, 4, v5
    v_lshl_add_u32 v{vA}, v4, 12, v5
    v_lshlrev_b32 v{vZ}, 4, v1
    s_lshl_b32 s{sA}, s{sTb}, 19
    s_lshl_b32 s{sT+1}, s{sTb}, 11
    s_add_u32 s{sZ1m}, s{sZm}, s{sT+1}
    s_add_u32 s{sZ1s}, s{sZs}, s{sT+1}
    s_add_u32 s{sZm}, s{sZm}, {288*OCT}
    s_add_u32 s{sZs}, s{sZs}, {288*OCT}
    s_mov_b32 s{sSlot}, s{sLo}
    s_waitcnt lgkmcnt(0)""")
    a.srd_off(sWP, 10, 11, CFG.ws_base + WP_OFF, WP_SZ)
    a.srd_off(sZQ, 10, 11, CFG.ws_base + ZQ_OFF, ZQ_SZ)
    a.srd_off(sUO, 10, 11, CFG.ws_base + UO_OFF, UO_SZ)
    a.srd_off(sCP, 10, 11, CFG.ws_base + CP_OFF, CP_SZ)
    a.srd(sBS, 4, 5, 4096)
    a(f"s_cmp_ge_u32 s{sWave}, 6")
    a(f"s_cbranch_scc1 {N}_xt")
    at = Attn(a, sZQ, sUO, 70)
    at.kv_prep(4, 8)
    at.base(sT+2, sT+3)
    a(f"""s_lshr_b32 s{sT+1}, s2, 4
    s_max_u32 s{sT+3}, s{sT+1}, 1
    s_sub_u32 s{sT+3}, s{sT+3}, 1
    s_lshl_b32 s{sT+1}, s{sT+1}, 8
    s_lshl_b32 s{sT+3}, s{sT+3}, 8
    s_add_u32 s{sT+1}, s{sT+1}, {FL_Q}
    s_add_u32 s{sT+3}, s{sT+3}, {FL_Q}
    v_lshlrev_b32 v8, 2, v1
    s_mov_b32 s{sI}, 0""")
    def pend():
        l = a.newlabel(N + "_dn"); l2 = a.newlabel(N + "_dn")
        a(f"""s_cmp_ge_u32 s{sI}, 2
        s_cbranch_scc1 {l}
        s_waitcnt vmcnt(0)
        s_barrier
        s_cmp_eq_u32 s{sI}, 1
        s_cbranch_scc1 {l2}
        s_barrier""")
        a.label(l2)
        a(f"s_add_u32 s{sI}, s{sI}, 1")
        a.label(l)
    poll_flags(a, f"{N}_pq", sFL, [(8, f"s{sT+1}", 1), (8, f"s{sT+3}", 1)], 12, sT, pend)
    pf.stamp()
    pend(); pend()
    a(f"s_cmp_eq_u32 s{sWave}, 5")
    a(f"s_cbranch_scc1 {N}_st1")
    at.stage((0, 1), 4, vZ, sT+2, sHi, sT)
    a(f"s_branch {N}_st2")
    a.label(f"{N}_st1")
    at.stage((2, 3), 4, vZ, sT+2, sHi, sT)
    a.label(f"{N}_st2")
    a(f"""s_lshl_b32 s{sT+2}, s{sTb}, 7
    v_and_b32 v10, 31, v1
    v_lshlrev_b32 v10, 2, v10
    s_lshl_b32 s{sT+3}, s{sWave}, 2
    s_add_u32 s{sT+3}, s{sT+3}, {TAG_LDS-8-16}
    v_mov_b32 v8, s{sT+3}
    v_mov_b32 v9, s{sTag}
    s_waitcnt vmcnt(0)
    ds_write_b32 v8, v9""")
    pf.stamp()
    for q in range(4): a(f"s_mov_b32 s{sT+4+q}, {FL_Q+1024*q}")
    poll_flags(a, f"{N}_pz", sFL, [(vZ, f"s{sT+4+q}", 4) for q in range(4)] + [(10, f"s{sT+2}", 1)], 16, sT)
    pf.stamp()
    items = [("A", i) for i in range(16)] + [("Z", j) for j in range(18)]
    sN4 = sT + 5
    a(f"s_mov_b32 s{sN4}, 0")
    def issue(p):
        out = []
        for kind, i in items[17*p:17*p+17]:
            if kind == "A":
                out.append(f"s_add_u32 m0, s{sSlot}, {i*1024}")
                out.append(f"s_add_u32 s{sT}, s{sA}, {i*8*4096}")
                out.append(f"buffer_load_dwordx4 v{vA}, s[{sWP}:{sWP+3}], s{sT} offen {CFG.ld_b} lds")
            else:
                out.append(f"s_add_u32 m0, s{sSlot}, {zb(i)}")
                out.append(f"s_add_u32 s{sT}, s{sZm if i < 16 else sZs}, {(i if i < 16 else i-16)*OCT}")
                out.append(f"buffer_load_dwordx4 v{vZ}, s[{sZQ}:{sZQ+3}], s{sT} offen {CFG.ld_b} lds")
        out += [f"s_add_u32 s{sA}, s{sA}, 128", f"s_add_u32 s{sZm}, s{sZm}, 1024", f"s_add_u32 s{sZs}, s{sZs}, 1024",
                f"s_add_u32 s{sN4}, s{sN4}, 1", f"s_bitcmp1_b32 s{sN4}, 1", f"s_cselect_b32 s{sSlot}, s{sHi}, s{sLo}",
                f"s_bitcmp1_b32 s{sN4}, 0", f"s_cselect_b32 s{sT}, {STG}, 0", f"s_add_u32 s{sSlot}, s{sSlot}, s{sT}"]
        return out
    for p in range(2):
        if p == 0:
            a(f"s_cmp_eq_u32 s{sWave}, 5")
            a(f"s_cbranch_scc1 {N}_prod1")
        else:
            a.label(f"{N}_prod1")
        for st in range(2):
            for l in issue(p): a(l)
        a("s_waitcnt vmcnt(17)")
        a("s_barrier")
        a(f"s_mov_b32 s{sI}, 30")
        a.label(f"{N}_Bploop{p}")
        for l in issue(p): a(l)
        a("s_waitcnt vmcnt(17)")
        a("s_barrier")
        a(f"s_sub_u32 s{sI}, s{sI}, 1")
        a(f"s_cmp_lg_u32 s{sI}, 0")
        a(f"s_cbranch_scc1 {N}_Bploop{p}")
        a(f"s_branch {N}_Bpend")
    a.label(f"{N}_Bpend")
    a("s_waitcnt vmcnt(0)")
    a("s_barrier")
    a(f"s_branch {N}_Cp")
    a.label(f"{N}_xt")
    a(f"s_cmp_eq_u32 s{sWave}, 7")
    a(f"s_cbranch_scc1 {N}_xtrb")
    nb = [0]
    a(f"""s_mul_i32 s{sT+1}, s2, {81*128}
    s_add_u32 s68, s6, s{sT+1}
    s_addc_u32 s69, s7, 0
    s_mul_i32 s{sT+1}, s2, {21*128}
    s_min_u32 s{sT+1}, s{sT+1}, {(5184-21)*128}
    s_add_u32 s70, s8, s{sT+1}
    s_addc_u32 s71, s9, 0""")
    spf = [f"s_load_dword s{74+i%6}, s[70:71], {64*i}" for i in range(42)] + [f"s_load_dword s{74+i%6}, s[68:69], {64*i}" for i in range(162)]
    def bar(n=1, pfn=CFG.kb_spf):
        for _ in range(n):
            a("s_barrier"); nb[0] += 1
            if nb[0] >= 3:
                for _ in range(pfn):
                    if spf: a(spf.pop(0))
    a(f"""s_lshl_b32 s{sT+2}, s2, 2
    s_add_u32 s{sT+2}, s{sT+2}, {FL_E}
    v_mov_b32 v4, 0
    v_mov_b32 v5, s{sTag}""")
    bar(2)
    a("s_waitcnt vmcnt(0)")
    bar(3)
    a(f"buffer_store_dword v5, v4, s[{sFL}:{sFL+3}], s{sT+2} offen sc1")
    X0 = CFG.kb_x0
    bar(X0 - 1 - nb[0])
    a(f"s_mov_b32 s{sT+1}, {FL_E}")
    poll_flags(a, f"{N}_pe", sFL, [(vZ, f"s{sT+1}", 4)], 8, sT)
    a(f"""s_lshl_b32 s{sT+2}, s{sTb}, 9
    s_lshr_b32 s{sT+1}, s{sT+2}, 1
    v_lshlrev_b32 v4, 3, v1
    v_lshlrev_b32 v5, 2, v1""")
    bar()
    a(f"buffer_load_dword v8, v5, s[{sBS}:{sBS+3}], s{sT+1} offen")
    for i in range(32):
        a(f"buffer_load_dwordx2 {vr(16+2*i,2)}, v4, s[{sCP}:{sCP+3}], s{sT+2} offen")
        a(f"s_add_u32 s{sT+2}, s{sT+2}, 8192")
        if i % CFG.kb_cpg == CFG.kb_cpg - 1: bar()
    bar(2)
    a("s_waitcnt vmcnt(0)")
    for i in range(1, 32):
        a(f"v_add_f32 v16, v16, v{16+2*i}")
        a(f"v_add_f32 v17, v17, v{17+2*i}")
        if i % 16 == 0: bar()
    a(f"""s_mov_b32 s{sT}, {f32(1.0/KSC)}
    v_and_b32 v9, 0xffff0000, v8
    v_lshlrev_b32 v8, 16, v8
    v_fma_f32 v8, v8, s{sT}, -v16
    v_fma_f32 v9, v9, s{sT}, -v17
    v_add_u32 v4, {BC}, v4
    ds_write_b64 v4, v[8:9]
    s_waitcnt vmcnt(0) lgkmcnt(0)""")
    o_prefetch(a, sWave, sUO, sTt, sT, loads=False)
    assert nb[0] <= 31 and not spf, (nb[0], len(spf))
    bar(31 - nb[0])
    o_stage(a, 0, range(18), sUO, sT)
    bar()
    o_stage(a, 3, range(18), sUO, sT)
    bar(2)
    a("s_waitcnt vmcnt(0) lgkmcnt(0)")
    bar()
    pf.flush(sWave)
    a("s_endpgm")
    a.label(f"{N}_xtrb")
    def barloop(n, nm):
        a(f"s_mov_b32 s{sI}, {n}")
        a.label(nm)
        a("s_barrier")
        a(f"s_sub_u32 s{sI}, s{sI}, 1")
        a(f"s_cmp_lg_u32 s{sI}, 0")
        a(f"s_cbranch_scc1 {nm}")
    a("s_barrier")
    a("s_barrier")
    a("s_waitcnt vmcnt(0)")
    barloop(X0 - 2, f"{N}_xb_loop")
    if CFG.codepf2 & 2: code_prefetch(a, 88, 26, 1, N)
    o_prefetch(a, sWave, sUO, sTt, sT, bar_every=3)
    barloop(31 - X0 - 6, f"{N}_xb_loop2")
    o_stage(a, 1, range(16), sUO, sT)
    a("s_barrier")
    o_stage(a, 1, range(16, 18), sUO, sT)
    o_stage(a, 2, range(18), sUO, sT)
    a("s_barrier")
    a("s_barrier")
    a(f"s_mov_b32 s{sFu}, 0x7f000000")
    a("s_waitcnt vmcnt(0)")
    a(f"s_branch {N}_Cc")

def phase_C(a, N):
    pf = a.pf
    NS = 9
    sUO, sWO, sWA, sX, sOUT, sDM, sFL = 20, 16, 12, 24, 28, 32, 64
    sWave, sRb, sCg, sT = 36, 37, 38, 40
    sI, sU, sW, sHi = 50, 51, 52, 53
    sTt, sFu = 98, 99
    def common():
        a("s_load_dwordx2 s[4:5], s[0:1], 0")
        a("s_load_dwordx2 s[6:7], s[0:1], 16")
        a("s_load_dwordx4 s[8:11], s[0:1], 56")
        c_tile(a, sRb, sCg, sT)
        a(f"s_sub_u32 s{sHi}, {UB}, s{sLo}")
    a.label(f"{N}_Cc")
    pf.stamp()
    a(f"""v_mov_b32 v13, 0
    s_cmp_lt_u32 s{sTt}, 128
    s_cbranch_scc1 {N}_Ctile
    s_waitcnt vmcnt(0)
    buffer_store_dword v14, v13, s[{sFL}:{sFL+3}], s{sFu} offen sc1""")
    pf.flush(sWave)
    a("s_endpgm")
    a.label(f"{N}_Ctile")
    common()
    ACC, SV, XR, T, UF, FA = 16, 32, 48, 56, UFC, 160
    FAS = [160, 192, 72 - 0]
    vL, vU, vA, vXo, vA8 = 1, vUC, 4, 3, 8
    FAB = [160, 192, 224]
    vU2 = 12
    a(f"""v_mov_b32 v{vU2}, v{vUC}
    v_lshrrev_b32 v{T}, 4, v{vL}
    v_and_b32 v{T+1}, 15, v{vL}
    s_lshl_b32 s{sT}, s{sTt}, 4
    v_add_u32 v{T+2}, s{sT}, v{T+1}
    s_mov_b32 s{sU}, 0
    v_mul_u32_u24 v{vXo}, 1152, v{T+2}
    v_and_b32 v{T+3}, 1, v{T}
    v_lshl_add_u32 v{vXo}, v{T+3}, 5, v{vXo}
    v_lshrrev_b32 v{T+3}, 1, v{T}
    v_lshl_add_u32 v{vXo}, v{T+3}, 4, v{vXo}
    s_lshl_b32 s{sT+1}, s{sCg}, 7
    v_bfe_u32 v{T+3}, v{vL}, 2, 2
    v_lshl_add_u32 v{T+4}, v{T}, 3, v{T+3}
    v_lshlrev_b32 v{T+4}, 7, v{T+4}
    v_and_b32 v{T+5}, 3, v{vL}
    v_lshl_add_u32 v{T+4}, v{T+5}, 3, v{T+4}
    v_lshrrev_b32 v{T+3}, 1, v{T+3}
    v_and_b32 v{T+5}, 1, v{T}
    v_lshl_add_u32 v{T+3}, v{T+5}, 1, v{T+3}
    v_lshl_add_u32 v{vA}, v{T+3}, 5, v{T+4}
    v_add_u32 v{vA}, s{sHi}, v{vA}
    v_xor_b32 v{vA+1}, 32, v{vA}
    v_xor_b32 v{vA+2}, 64, v{vA}
    v_xor_b32 v{vA+3}, 96, v{vA}""")
    for j in range(4): a(f"v_add_u32 v{vA8+j}, {8*8192}, v{vA+j}")
    for i in range(16): a(f"v_mov_b32 v{ACC+i}, 0")
    def uload(slot):
        return [f"buffer_load_dwordx4 {vr(UF+4*slot,4)}, v{vU2}, s[{sUO}:{sUO+3}], s{sU} offen {CFG.ld_c}",
                f"s_add_u32 s{sU}, s{sU}, {4*OCT}"]
    def reads(st):
        st %= 9
        return [f"ds_read_b64_tr_b16 {vr(FAB[st%3]+16*h+4*j+2*rd,2)}, v{(vA8 if st == 8 else vA)+j} offset:{(st%8)*8192+4096*h+512*rd}"
                for h in range(2) for j in range(4) for rd in range(2)]
    a(f"s_mov_b32 s{sI}, 4")
    pf.stamp()
    a("s_barrier")
    pf.stamp()
    for l in reads(0): a(l)
    a(f"""s_cmp_ge_u32 s{sWave}, 4
    s_cbranch_scc1 {N}_Cno
    s_mul_i32 s{sT}, s{sWave}, 18432
    s_add_u32 s{sT}, s{sT}, s{sLo}
    v_lshlrev_b32 v{T}, 4, v{vL}
    v_add_u32 v{T}, s{sT}, v{T}""")
    for k in range(18): a(f"ds_read_b128 {vr(UF+4*k,4)}, v{T} offset:{1024*k}")
    a.label(f"{N}_Cno")
    a("s_waitcnt lgkmcnt(0)")
    a.srd(sX, 4, 5, 2048 * 1152)
    a.srd(sOUT, 10, 11, 2048 * 1152)
    def cpass(first):
        acc = SV if first else ACC
        for st in range(9):
            a("s_barrier")
            rd = reads(st + 1)
            k = 0
            for h in range(2):
                ks = 2*st + h
                if not first: a(f"s_waitcnt vmcnt({15})")
                for j in range(4):
                    c = "0" if (first and ks == 0) else vr(acc+4*j, 4)
                    a(f"v_mfma_f32_16x16x32_bf16 {vr(acc+4*j,4)}, {vr(FAB[st%3]+16*h+4*j,4)}, {vr(UF+4*ks,4)}, {c}")
                    for _ in range(3):
                        if k < 16: a(rd[k]); k += 1
                if not first:
                    for l in uload((ks + 16) % 18): a(l)
                elif st >= 7:
                    for q in range(4):
                        for l in uload(4*(ks - 14) + q): a(l)
            if first and st == CFG.kc_fu:
                a("s_waitcnt vmcnt(0)")
                a(f"buffer_store_dword v14, v13, s[{sFL}:{sFL+3}], s{sFu} offen sc1")
                if CFG.prof == 5: pf.stamp()
                for p in range(2):
                    a(f"buffer_load_dwordx4 {vr(XR+4*p,4)}, v{vXo}, s[{sX}:{sX+3}], s{sT+1} offen offset:{64*p}")
            a("s_waitcnt lgkmcnt(0)")
        pf.stamp()
    cpass(True)
    a.lines.append(".p2align 6")
    a.label(f"{N}_Cloop")
    cpass(False)
    a(f"s_sub_u32 s{sI}, s{sI}, 1")
    a(f"s_cmp_lg_u32 s{sI}, 0")
    a(f"s_cbranch_scc1 {N}_Cloop")
    a(f"s_mov_b32 s{sT}, {f32(-math.log2(math.e))}")
    a("s_nop 4")
    for i in range(16): a(f"v_mul_f32 v{T+i}, s{sT}, v{ACC+i}")
    for i in range(16): a(f"v_exp_f32 v{T+i}, v{T+i}")
    for i in range(16): a(f"v_mul_f32 v{SV+i}, v{SV+i}, v{ACC+i}")
    for i in range(16): a(f"v_add_f32 v{T+i}, 1.0, v{T+i}")
    for i in range(16): a(f"v_rcp_f32 v{T+i}, v{T+i}")
    for i in range(16): a(f"v_mul_f32 v{SV+i}, v{SV+i}, v{T+i}")
    for p in range(2):
        x = XR + 4*p
        a(f"v_permlane16_swap_b32 v{x}, v{x+2}")
        a(f"v_permlane16_swap_b32 v{x+1}, v{x+3}")
        for r in range(4):
            s = SV + 8*p + 2*r
            a(f"v_lshlrev_b32 v{T}, 16, v{x+r}")
            a(f"v_and_b32 v{T+1}, 0xffff0000, v{x+r}")
            a(f"v_add_f32 v{T}, v{T}, v{s}")
            a(f"v_add_f32 v{T+1}, v{T+1}, v{s+1}")
            a(f"v_cvt_pk_bf16_f32 v{x+r}, v{T}, v{T+1}")
        a(f"v_permlane16_swap_b32 v{x}, v{x+2}")
        a(f"v_permlane16_swap_b32 v{x+1}, v{x+3}")
        a(f"buffer_store_dwordx4 {vr(x,4)}, v{vXo}, s[{sOUT}:{sOUT+3}], s{sT+1} offen offset:{64*p} {CFG.out_aux}")
    if CFG.prof:
        pf.stamp(); a("s_waitcnt vmcnt(0)")
    pf.flush(sWave)
    a("s_endpgm")
    a.label(f"{N}_Cp")
    a(f"s_cmp_ge_u32 s2, 234")
    a(f"s_cbranch_scc1 {N}_end")
    common()
    vD = 2
    a(f"""v_lshrrev_b32 v8, 3, v1
    v_and_b32 v9, 7, v1
    v_lshrrev_b32 v10, 3, v1
    v_and_b32 v10, 2, v10
    v_xor_b32 v9, v9, v10
    v_lshlrev_b32 v9, 4, v9
    v_mul_u32_u24 v{vD}, 1152, v8
    v_add_u32 v{vD}, v{vD}, v9
    v_xor_b32 v{vD+1}, 64, v{vD}
    v_add_u32 v{vD+1}, {8*1152-1024}, v{vD+1}
    v_add_u32 v{vD+2}, {2*(8*1152-1024)}, v{vD}
    v_add_u32 v{vD+3}, {2*(8*1152-1024)}, v{vD+1}
    s_sub_u32 s{sT}, s{sWave}, 4
    s_mul_i32 s{sW}, s{sT}, {32*1152}
    s_lshl_b32 s{sT+1}, s{sCg}, 7
    s_add_u32 s{sW}, s{sW}, s{sT+1}
    s_mov_b32 s{sT+3}, s{sW}
    s_lshl_b32 s{sT+2}, s{sT}, 12
    s_add_u32 s{sT+2}, s{sT+2}, s{sHi}
    s_add_u32 s{sT+5}, s{sHi}, {NS*8192}
    s_mov_b32 s{sT+4}, s{sT+2}
    s_mul_i32 s{sT+6}, s{sRb}, 80
    s_add_u32 s{sT+7}, s{sT+6}, 79
    s_min_u32 s{sT+7}, s{sT+7}, 2047
    s_lshr_b32 s{sT+8}, s{sT+6}, 7
    s_lshl_b32 s{sT+8}, s{sT+8}, 8
    s_add_u32 s{sT+8}, s{sT+8}, {FL_U}
    s_lshr_b32 s{sT+9}, s{sT+7}, 7
    s_lshl_b32 s{sT+9}, s{sT+9}, 8
    s_add_u32 s{sT+9}, s{sT+9}, {FL_U}
    v_lshlrev_b32 v8, 2, v1
    s_waitcnt lgkmcnt(0)""")
    a.srd(sDM, 6, 7, 576 * 1152)
    def issue():
        out = [f"s_mov_b32 m0, s{sT+4}",
               f"s_add_u32 s{sT+4}, s{sT+4}, 8192"]
        out += [f"buffer_load_dwordx4 v{vD+j}, s[{sDM}:{sDM+3}], s{sW} offen offset:{1024*j} {CFG.ld_c} lds" for j in range(4)]
        out += [f"s_add_u32 s{sW}, s{sW}, {64*1152}",
                f"s_cmp_ge_u32 s{sT+4}, s{sT+5}",
                f"s_cselect_b32 s{sT+4}, s{sT+2}, s{sT+4}"]
        return out
    a("s_barrier")
    for st in range(9):
        if st == 4: a("s_barrier")
        for l in issue(): a(l)
    a.srd(sDM, 8, 9, 2304 * 1152)
    a(f"s_mov_b32 s{sW}, s{sT+3}")
    a("s_waitcnt vmcnt(32)")
    pf.stamp()
    a("s_barrier")
    def ploop(n, name):
        a(f"s_mov_b32 s{sI}, {n}")
        a.label(name)
        a("s_waitcnt vmcnt(28)")
        a("s_barrier")
        for l in issue(): a(l)
        a(f"s_sub_u32 s{sI}, s{sI}, 1")
        a(f"s_cmp_lg_u32 s{sI}, 0")
        a(f"s_cbranch_scc1 {name}")
    ploop(7, f"{N}_Cploop")
    poll_flags(a, f"{N}_pu", sFL, [(8, f"s{sT+8}", 1), (8, f"s{sT+9}", 1)], 16, sI)
    pf.stamp()
    ploop(29, f"{N}_Cploop2")
    for n in range(8):
        a(f"s_waitcnt vmcnt({28-4*n})")
        a("s_barrier")
    pf.flush(sWave)
    a.label(f"{N}_end")
    a("s_endpgm")

def gen_M():
    a = Asm(); N = NAME + "_kernel"
    phase_A(a, N); phase_B(a, N); phase_C(a, N)
    return a, kd(N, 256, 256, 102), (N, 256, 512, 163840)

HEADER = open("cdna_kernels/" + NAME + ".s.ref").read().split("; Override")[0]

def build(verbose=False):
    a, k, (n, grid, block, lds) = gen_M()
    txt = HEADER + f"; @launch grid=({grid},1,1) block=({block},1,1) lds={lds}\n"
    lines, ins = fix_hazards(a.lines, verbose, "M")
    print(f"{len(lines)} lines, {ins} hazard nops", file=sys.stderr)
    body = "\n".join(("    " + l if not (l.endswith(":") or l.startswith(".")) else l) for l in lines) + "\n"
    txt += '.amdgcn_target "amdgcn-amd-amdhsa--gfx950"\n.text\n.p2align 8\ncode_begin:\n' + body + "code_end:\n" + k
    return txt

if __name__ == "__main__":
    for arg in sys.argv[2:]:
        if "=" in arg:
            k_, v_ = arg.split("=", 1)
            setattr(CFG, k_, type(getattr(CFG, k_))(v_) if not isinstance(getattr(CFG, k_), bool) else int(v_))
    open(sys.argv[1], "w").write(build(verbose="-v" in sys.argv))
```

```python
import math, struct, sys
from asmlib import *

NAME = "recurrent_scan__sliding_local_dilated__mixer_gmlp__prompt"
def f32(x): return "0x%08x" % struct.unpack("<I", struct.pack("<f", x))[0]

C0 = -2.0 * math.sqrt(2.0 / math.pi) * math.log2(math.e)
C1 = C0 * 0.044715
KSC = -((-C1) ** (1.0 / 3.0))
DELTA = C0 / KSC
EPS = 1e-5
OCT = 32768

class Cfg:
    ws_base = 0
    st_aux_a = "sc1"
    st_aux_n = ""
    st_aux_b = "sc1"
    prof = False
    ka_xbar = -1
    ka_prio = 0
    ka_xpf = 0
    ka_head = 24
    ka_xfirst = 5
    ka_rot = 0
    align = 0
    hprof = 0
    bound = 20000
    ka_try = 2
    kb_xb = 28
    kc_fu = 0
    ka_pst = 13
    ka_spf = 0
    ka_d5 = 15
    ka_fwe = 1
    ka_pf0 = 2
    ka_early = 0
    kc_rot = 1
    kc_la = 10
    dbg_stale = 0
    ld_a = ""
    ld_b = ""
    ld_c = ""
    ka_pst1 = 28
    out_aux = ""
    ka_d6 = 16
    ka_d7 = 0
    ka_fq = -1
    ka_prio2 = 0
    ka_prioj = 0
    codepf2 = 3
    kb_x0 = 22
    kb_cpg = 8
    ka_st_aux = ""
    sleep = 8
    kc_test = 0
    ka_rbl = 3
    ka_nostore = 0
    ka_nodma = 0
    ka_wsp_slot = 0
    ka_x_aux = ""
    ka_pf_aux = ""
    ka_wsp_aux = "nt"
    ka_npre = 26
    codepf = 1
    ka_l2pf = 2
    attn_seg = 36
    ka_stpos = 5
    kb_nomfma = 0
    kb_pf = 1
    kb_eit = 8
    kb_wg = 3
    kb_spf = 10
    kb_abar = 0
    kb_nodma = 0
    kb_noattn = 0
CFG = Cfg()

ZQ_OFF, ZQ_SZ = 0, 792 * OCT
UO_OFF, UO_SZ = 26 << 20, 360 * OCT
WP_OFF, WP_SZ = 38 << 20, 2048 * 4096
ST_OFF, ST_SZ = 47 << 20, 16 * 16 * 2048
CP_OFF, CP_SZ = 48 << 20, 2048 * 128

def kd(name, vgpr, accum, sgpr=96):
    return f""".section .rodata,"a"
.p2align 6
.amdhsa_kernel {name}
  .amdhsa_next_free_vgpr {vgpr}
  .amdhsa_next_free_sgpr {sgpr}
  .amdhsa_accum_offset {accum}
  .amdhsa_group_segment_fixed_size 0
  .amdhsa_kernarg_size 88
  .amdhsa_user_sgpr_count 2
  .amdhsa_user_sgpr_kernarg_segment_ptr 1
  .amdhsa_system_sgpr_workgroup_id_x 1
.end_amdhsa_kernel
"""

PROF_OFF = 64 << 20
class Prof:
    def __init__(self, a, vreg, kidx):
        self.a, self.v, self.k = a, vreg, kidx
    def init(self):
        if not CFG.prof: return
        a = self.a
        a(f"v_mov_b32 v{self.v}, 0")
        a("s_mov_b64 s[84:85], 2")
        a("s_memrealtime s[82:83]")
        a("s_waitcnt lgkmcnt(0)")
        a(f"v_writelane_b32 v{self.v}, s82, 0")
        self.stamp()
    def stamp(self):
        if not CFG.prof: return
        a = self.a
        a("s_memrealtime s[80:81]" if CFG.prof == 5 else "s_memtime s[80:81]")
        a("s_waitcnt lgkmcnt(0)")
        a("s_mov_b64 s[92:93], exec")
        a("s_mov_b64 exec, s[84:85]")
        a(f"v_mov_b32 v{self.v}, s80")
        a("s_mov_b64 exec, s[92:93]")
        a("s_lshl_b64 s[84:85], s[84:85], 1")
    def flush(self, sWave):
        if not CFG.prof: return
        a = self.a
        self.stamp()
        a("s_memrealtime s[82:83]")
        a("s_load_dwordx2 s[86:87], s[0:1], 80")
        a("s_waitcnt lgkmcnt(0)")
        a(f"v_writelane_b32 v{self.v}, s82, 63")
        a.srd_off(88, 86, 87, PROF_OFF + self.k * (1 << 20), 1 << 20)
        a("s_lshl_b32 s85, s2, 3")
        a(f"s_add_u32 s85, s85, s{sWave}")
        a("s_lshl_b32 s85, s85, 8")
        a("s_mov_b64 exec, -1")
        a("v_mbcnt_lo_u32_b32 v0, -1, 0")
        a("v_mbcnt_hi_u32_b32 v0, -1, v0")
        a("v_lshlrev_b32 v0, 2, v0")
        a(f"buffer_store_dword v{self.v}, v0, s[88:91], s85 offen")

def code_prefetch(a, sS, vT, vL, name):
    if not CFG.codepf: return
    h = a.newlabel(name + "_pc")
    a(f"s_getpc_b64 s[{sS}:{sS+1}]")
    a.label(h)
    a(f"s_sub_u32 s{sS}, s{sS}, {h}-code_begin")
    a(f"s_subb_u32 s{sS+1}, s{sS+1}, 0")
    a(f"s_mov_b32 s{sS+2}, code_end-code_begin")
    a(f"s_mov_b32 s{sS+3}, 0x00020000")
    a(f"s_lshr_b32 s{sS+4}, s2, 3")
    a(f"s_lshl_b32 s{sS+4}, s{sS+4}, 13")
    a(f"v_lshlrev_b32 v{vT}, 7, v{vL}")
    a(f"buffer_load_dword v{vT+1}, v{vT}, s[{sS}:{sS+3}], s{sS+4} offen")

def prologue(a, name, ngrid):
    a.lines.append(".text")
    a.lines.append(f".globl {name}")
    a.lines.append(".p2align 8")
    a.lines.append(f".type {name},@function")
    a.label(name)
    a(f"s_cmp_ge_u32 s2, {ngrid}")
    a(f"s_cbranch_scc1 {name}_end")
    if CFG.hprof:
        k = {"ka": 0, "kb": 1, "kc": 2}[name[:2]]
        a(f"""s_cmp_lg_u32 s2, 0
        s_cbranch_scc1 {name}_hp
        s_memrealtime s[82:83]
        s_load_dwordx2 s[86:87], s[0:1], 80
        s_waitcnt lgkmcnt(0)""")
        a.srd_off(88, 86, 87, PROF_OFF, 4096)
        a(f"""v_mov_b32 v1, s82
        v_mov_b32 v2, 0
        buffer_store_dword v1, v2, s[88:91], 0 offen offset:{4*k} sc1
        s_waitcnt vmcnt(0)""")
        a.label(f"{name}_hp")

def hprof_end(a, name):
    if not CFG.hprof: return
    a(f"""s_cmp_lg_u32 s2, 0
    s_cbranch_scc1 {name}_hpe
    s_waitcnt vmcnt(0)
    s_memrealtime s[82:83]
    s_load_dwordx4 s[84:87], s[0:1], 72
    s_waitcnt lgkmcnt(0)""")
    a.srd_off(88, 86, 87, PROF_OFF, 4096)
    a.srd(92, 84, 85, 256)
    a(f"""v_mov_b32 v2, 0
    buffer_load_dwordx3 v[4:6], v2, s[88:91], 0 offen sc1
    v_mov_b32 v7, s82
    s_waitcnt vmcnt(0)
    v_sub_u32 v7, v7, v6
    v_sub_u32 v6, v6, v5
    v_sub_u32 v5, v5, v4
    buffer_store_dwordx4 v[4:7], v2, s[92:95], 0 offen""")
    a.label(f"{name}_hpe")

def cost(l):
    c = 0
    for x in l.split("\n"):
        c += 8 if x.startswith(TRANS) else 4
    return c

def spread(slots, fillers, base=None):
    base = [sum(cost(x) + (4 if x.startswith("v_mfma") else 0) for x in sl) for sl in slots]
    tot = sum(base) + sum(cost(f) for f in fillers)
    out = []; k = 0; cum = 0
    for i, sl in enumerate(slots):
        out += sl; cum += base[i]
        tgt = tot * (i + 1) / len(slots)
        while k < len(fillers) and cum + cost(fillers[k]) / 2 <= tgt:
            out.append(fillers[k]); cum += cost(fillers[k]); k += 1
    return out + fillers[k:]


FL_OFF, FL_SZ = 49 << 20, 20480
FL_W, FL_E, FL_U, FL_Q, FL_TAG = 0, 4096, 8192, 12288, 16384
sTag, sLo = 100, 101
TAG_LDS = 163832
Z1B = 204

def poll_flags(a, name, sFL, items, vt, sT, on_fail=None):
    a(f"s_mov_b32 s{sT}, {CFG.bound}")
    a.label(name)
    regs = []
    r = vt
    for vo, so, w in items:
        sfx = {1: "dword", 4: "dwordx4"}[w]
        a(f"buffer_load_{sfx} {vr(r,w)}, v{vo}, s[{sFL}:{sFL+3}], {so} offen sc1")
        regs += list(range(r, r + w)); r += w
    a("s_waitcnt vmcnt(0)")
    for x in regs: a(f"v_xor_b32 v{x}, s{sTag}, v{x}")
    for x in regs[1:]: a(f"v_or_b32 v{regs[0]}, v{regs[0]}, v{x}")
    a(f"""v_cmp_ne_u32 vcc, 0, v{regs[0]}
    s_sub_u32 s{sT}, s{sT}, 1
    s_cmp_eq_u32 s{sT}, 0
    s_cbranch_scc1 {name}_ok
    s_cmp_eq_u64 vcc, 0
    s_cbranch_scc1 {name}_ok""")
    if on_fail: on_fail()
    a(f"""s_sleep {CFG.sleep}
    s_branch {name}""")
    a.label(f"{name}_ok")

def phase_A(a, N):
    X, FR, T = 112, 24, 16
    AC = [80, 48]
    W = AC[1]
    vL, vA0, vA1, vPn, vO8, vSt, vStO = 1, 2, 3, 4, 5, 6, 7
    vNm, vSc, vSum = 8, 9, 10
    S = W
    vX0, vX1, vX2, vX3, vSR, vSRs, vXw = W+8, W+9, W+10, W+11, W+12, W+16, W+20
    sX, sWI, sWQ, sZQ, sST, sDM = 12, 16, 20, 24, 28, 32
    sFQ, sFq = 28, 32
    sWave, sRb, sCg = 36, 37, 38
    sNz2, sNg, sN, sZ2s, sZ1m, sQm = 39, 40, 41, 42, 43, 44
    sU, sV, sUn, sMz2, sP8, sOb = 45, 46, 47, 48, 49, 50
    sMq = 52
    sDma, sDstep, sDvs = 54, 55, 56
    sDp, sDc, sDn = 57, 58, 59
    sBufN, sPw, sRot, sRw = 61, 62, 60, 51
    sMis = 41
    sHu, sHx = 3, 33
    sDl, sOlo, sOhi, sOnes = 63, 64, 65, 66
    sXr = 68
    sT0, sT1, sT2, sSt, sP8i, sP8q, sXb, sXs = 72, 73, 74, 76, 77, 78, 75, 79
    UB = 73728; STG = 2 * UB
    RBL = CFG.ka_rbl
    prologue(a, N, 256)
    pf = Prof(a, 15, 0); pf.init(); a.pf = pf
    a("s_load_dwordx4 s[4:7], s[0:1], 0")
    a("s_load_dwordx4 s[8:11], s[0:1], 32")
    a("s_load_dwordx4 s[96:99], s[0:1], 72")
    a(f"v_and_b32 v{vL}, 63, v0")
    a(f"v_lshrrev_b32 v{T}, 6, v0")
    a(f"v_readfirstlane_b32 s{sWave}, v{T}")
    a(f"""s_and_b32 s{sT0}, s2, 7
    s_lshr_b32 s{sT1}, s2, 3
    s_and_b32 s{sRb}, s{sT0}, {(16>>RBL)-1}
    s_lshl_b32 s{sRb}, s{sRb}, {RBL}
    s_and_b32 s{sT2}, s{sT1}, {(1<<RBL)-1}
    s_add_u32 s{sRb}, s{sRb}, s{sT2}
    s_lshr_b32 s{sCg}, s{sT0}, {4-RBL}
    s_lshl_b32 s{sCg}, s{sCg}, {5-RBL}
    s_lshr_b32 s{sT2}, s{sT1}, {RBL}
    s_add_u32 s{sCg}, s{sCg}, s{sT2}
    s_and_b32 s{sRot}, s{sT1}, {(1<<RBL)-1}
    s_lshl_b32 s{sRot}, s{sRot}, 1
    s_add_u32 s{sRot}, s{sRot}, s{sT2}
    s_mul_i32 s{sRot}, s{sRot}, {CFG.ka_rot}
    s_sub_u32 s{sT2}, s{sRot}, 9
    s_min_u32 s{sRot}, s{sRot}, s{sT2}
    s_sub_u32 s{sT2}, s{sRot}, 9
    s_min_u32 s{sRot}, s{sRot}, s{sT2}
    v_lshrrev_b32 v{T}, 3, v{vL}
    v_and_b32 v{T+1}, 7, v{vL}""")
    unit_lists = f"""s_min_u32 s{sT0}, s{sCg}, 4
    s_lshl_b32 s{sZ2s}, s{sCg}, 1
    s_add_u32 s{sZ2s}, s{sZ2s}, s{sT0}
    s_add_u32 s{sZ2s}, s{sZ2s}, 36
    s_lshl_b32 s{sT0}, s{sCg}, 1
    s_sub_u32 s{sT0}, s{sT0}, 6
    s_sub_u32 s{sQm}, s{sCg}, 3
    s_cmp_lt_u32 s{sCg}, 4
    s_cselect_b32 s{sNz2}, 3, 2
    s_cselect_b32 s{sQm}, s{sQm}, s{sT0}
    s_mul_i32 s{sHu}, s{sCg}, 288
    s_and_b32 s{sT0}, s{sCg}, 1
    s_lshl_b32 s{sT1}, s{sT0}, 5
    s_add_u32 s{sZ1m}, s{sHu}, s{sT1}
    s_sub_u32 s{sZ1m}, s{sZ1m}, 512
    s_xor_b32 s{sT0}, s{sT0}, 1
    s_lshl_b32 s{sT0}, s{sT0}, 8
    s_add_u32 s{sHu}, s{sHu}, s{sT0}
    s_add_u32 s{sT0}, s{sCg}, 1
    s_bfe_u32 s{sMis}, s{sT0}, 0x10001
    s_mov_b32 s{sLo}, 73728"""
    a(f"s_cmp_ge_u32 s{sWave}, 4")
    a(f"s_cbranch_scc1 {N}_prod")
    a(f"""v_lshrrev_b32 v{T+2}, 4, v{vL}
    v_xor_b32 v{T+2}, v{T+2}, v{T+1}
    v_lshlrev_b32 v{T+2}, 4, v{T+2}
    v_mul_u32_u24 v{vX0}, 1152, v{T}
    v_add_u32 v{vX0}, v{vX0}, v{T+2}
    v_xor_b32 v{vX1}, 64, v{vX0}
    s_lshl_b32 s{sT0}, s{sRb}, 7
    s_lshl_b32 s{sT1}, s{sWave}, 5
    s_add_u32 s{sT0}, s{sT0}, s{sT1}
    s_mul_i32 s{sXr}, s{sT0}, 1152
    s_add_u32 s{sXr+1}, s{sXr}, 8192
    s_add_u32 s{sXr+2}, s{sXr}, 16384
    s_add_u32 s{sXr+3}, s{sXr}, 24576
    s_lshl_b32 s{sXb}, s{sWave}, 14
    s_add_u32 s{sXb}, s{sXb}, {UB}
    s_lshl_b32 s{sXs}, s{sWave}, 12
    s_add_u32 s{sXs}, s{sXs}, {STG}""")
    a("s_waitcnt lgkmcnt(0)")
    if CFG.prof == 3: pf.stamp()
    a.srd(sX, 4, 5, 2048 * 1152)
    a(f"s_lshl_b32 s{sRw}, s{sRot}, 7")
    def xload(j):
        a(f"v_add_u32 v{vX2}, s{sRw}, v{vX0}")
        a(f"v_add_u32 v{vX3}, s{sRw}, v{vX1}")
        if j < 4: a(f"s_add_u32 m0, s{sXb}, {j*4096}")
        elif j == 4: a(f"s_mov_b32 m0, s{sXs}")
        a(f"s_add_u32 s{sRw}, s{sRw}, 128")
        for rg in range(4):
            if j < 5:
                a(f"buffer_load_dwordx4 v{vX3 if rg&1 else vX2}, s[{sX}:{sX+3}], s{sXr+rg} offen offset:{rg*1024} {CFG.ka_x_aux} lds")
            else:
                a(f"buffer_load_dwordx4 {vr(X+16*j+4*rg,4)}, v{vX3 if rg&1 else vX2}, s[{sX}:{sX+3}], s{sXr+rg} offen offset:{rg*1024} {CFG.ka_x_aux}")
        a(f"s_cmp_eq_u32 s{sRw}, 1152")
        a(f"s_cselect_b32 s{sRw}, 0, s{sRw}")
    for j in range(CFG.ka_xfirst): xload(j)
    a.srd_off(sZQ, 98, 99, CFG.ws_base + ZQ_OFF, ZQ_SZ)
    a.srd_off(sFQ, 98, 99, CFG.ws_base + FL_OFF + FL_Q, 4096)
    a(f"""s_lshl_b32 s{sFq}, s{sRb}, 8
    s_lshl_b32 s{sT0}, s{sCg}, 4
    s_add_u32 s{sFq}, s{sFq}, s{sT0}
    s_lshl_b32 s{sT0}, s{sWave}, 2
    s_add_u32 s{sFq}, s{sFq}, s{sT0}
    v_mov_b32 v12, {TAG_LDS}
    v_mov_b32 v13, 0""")
    a(unit_lists)
    a(f"""s_mov_b32 s{sDl}, {f32(DELTA)}
    s_mov_b32 s{sOlo}, 0x00003f80
    s_mov_b32 s{sOhi}, 0x3f800000
    s_mov_b32 s{sOnes}, 0x3f803f80""")
    def cparams():
        return [
            f"s_add_u32 s{sT0}, s{sZ2s}, s{sV}",
            f"s_add_u32 s{sT2}, s{sQm}, s{sV}",
            f"s_min_u32 s{sT2}, s{sT2}, 26",
            f"s_add_u32 s{sT2}, s{sT2}, 72",
            f"s_cmp_lt_u32 s{sV}, s{sNz2}\n"
            f"s_cselect_b32 s{sUn}, s{sT0}, s{sT2}\n"
            f"s_cselect_b32 s{sMz2}, -1, 0",
            f"s_lshl_b32 s{sDn}, s{sUn}, 18",
        ]
    def traddr(buf):
        return [f"v_and_b32 v{T+7}, s{sMz2}, v{vO8}",
                f"v_xor_b32 v{vA0}, v{T+7}, v{vPn}"] + \
               ([f"v_add_u32 v{vA0}, {UB}, v{vA0}"] if buf else []) + [f"v_xor_b32 v{vA1}, 64, v{vA0}"]
    a(f"s_mov_b32 s{sV}, 0")
    for l in cparams(): a(l)
    a(f"""v_lshrrev_b32 v{T+2}, 5, v{vL}
    v_lshlrev_b32 v{T+2}, 3, v{T+2}
    v_bfe_u32 v{T+3}, v{vL}, 2, 2
    v_add_u32 v{T+2}, v{T+2}, v{T+3}
    v_lshlrev_b32 v{vPn}, 7, v{T+2}
    v_lshrrev_b32 v{T+3}, 1, v{T+3}
    v_lshl_add_u32 v{vPn}, v{T+3}, 6, v{vPn}
    v_bfe_u32 v{T+3}, v{vL}, 4, 1
    v_lshl_add_u32 v{vPn}, v{T+3}, 5, v{vPn}
    v_and_b32 v{T+3}, 1, v{vL}
    v_lshl_add_u32 v{vPn}, v{T+3}, 4, v{vPn}
    v_lshlrev_b32 v{vO8}, 3, v{T+3}
    v_bfe_u32 v{T+3}, v{vL}, 1, 1
    v_lshl_add_u32 v{vPn}, v{T+3}, 3, v{vPn}""")
    for l in traddr(0): a(l)
    a(f"""v_and_b32 v{T+2}, 31, v{vL}
    v_bfe_u32 v{T+3}, v{vL}, 1, 3
    v_lshrrev_b32 v{T+4}, 5, v{vL}
    v_xor_b32 v{T+3}, v{T+3}, v{T+4}
    v_lshlrev_b32 v{T+3}, 4, v{T+3}
    v_lshl_add_u32 v{T+3}, v{T+2}, 7, v{T+3}
    v_add_u32 v{vSR}, s{sXb}, v{T+3}
    v_xor_b32 v{vSR+1}, 32, v{vSR}
    v_xor_b32 v{vSR+2}, 64, v{vSR}
    v_xor_b32 v{vSR+3}, 96, v{vSR}
    v_add_u32 v{vSRs}, s{sXs}, v{T+3}
    v_xor_b32 v{vSRs+1}, 32, v{vSRs}
    v_xor_b32 v{vSRs+2}, 64, v{vSRs}
    v_xor_b32 v{vSRs+3}, 96, v{vSRs}
    v_lshlrev_b32 v{vStO}, 3, v{vL}
    v_add_u32 v{vStO}, s{sXs}, v{vStO}
    s_lshl_b32 s{sT0}, s{sRb}, 7
    s_lshl_b32 s{sT1}, s{sWave}, 5
    s_add_u32 s{sT0}, s{sT0}, s{sT1}
    v_add_u32 v{vSt}, s{sT0}, v{T+2}
    v_lshlrev_b32 v{vSt}, 4, v{vSt}
    v_lshl_add_u32 v{vSt}, v{T+4}, 15, v{vSt}
    v_mov_b32 v{vSum}, 0
    v_mov_b32 v{vSum+1}, 0""")
    pf.stamp()
    def xstats(j):
        for r in range(16):
            x = X + 16*j + r
            q = S + 2*(r % 2)
            first = (j == 0 and r < 2)
            a(f"v_dot2_f32_bf16 v{q}, v{x}, s{sOnes}, {'0' if first else 'v%d' % q}")
            a(f"v_dot2_f32_bf16 v{q+1}, v{x}, v{x}, {'0' if first else 'v%d' % (q+1)}")
    a(f"v_lshlrev_b32 v{vXw}, 4, v{vL}")
    a(f"v_add_u32 v{vXw}, s{sXb}, v{vXw}")
    issued = CFG.ka_xfirst
    for j in range(9):
        a(f"s_waitcnt vmcnt({4*(issued-1-j)})")
        if CFG.prof == 3: pf.stamp()
        if j >= 5:
            for rg in range(4):
                a(f"ds_write_b128 v{vXw}, {vr(X+16*j+4*rg,4)} offset:{(j%5)*4096+rg*1024}")
        for i in range(4):
            if j % 5 < 4: a(f"ds_read_b128 {vr(X+16*j+4*i,4)}, v{vSR+i} offset:{(j%5)*4096}")
            else: a(f"ds_read_b128 {vr(X+16*j+4*i,4)}, v{vSRs+i}")
        if issued < 9:
            xload(issued); issued += 1
        if j > 0:
            a(f"s_waitcnt lgkmcnt({8 if j >= 5 else 4})")
            a.lines.append(".p2align 3")
            xstats(j-1)
    a("s_waitcnt lgkmcnt(0)")
    a.lines.append(".p2align 3")
    xstats(8)
    pf.stamp()
    a(f"""v_add_f32 v{S}, v{S}, v{S+2}
    v_add_f32 v{S+1}, v{S+1}, v{S+3}
    s_mov_b32 s{sT0}, {f32(-1.0/576)}
    s_mov_b32 s{sT1}, {f32(1.0/576)}
    s_mov_b32 s{sT2}, {f32(KSC)}
    v_mov_b32 v{S+2}, v{S}
    v_mov_b32 v{S+3}, v{S+1}
    v_permlane32_swap_b32 v{S}, v{S+2}
    v_permlane32_swap_b32 v{S+1}, v{S+3}
    v_add_f32 v{S}, v{S}, v{S+2}
    v_add_f32 v{S+1}, v{S+1}, v{S+3}
    v_mul_f32 v{vNm}, s{sT0}, v{S}
    v_mul_f32 v{S+1}, s{sT1}, v{S+1}
    v_fma_f32 v{S+1}, -v{vNm}, v{vNm}, v{S+1}
    v_max_f32 v{S+1}, 0, v{S+1}
    v_add_f32 v{S+1}, {f32(EPS)}, v{S+1}
    v_rsq_f32 v{S+1}, v{S+1}
    s_mov_b32 s{sU}, 0
    s_mov_b32 s{sDc}, s{sDn}
    s_mov_b32 s{sDp}, s{sDn}
    v_mul_f32 v{vSc}, s{sT2}, v{S+1}""")
    CT = [W, W+2, W+4, W+6]
    def center(kk):
        o = []
        for r in range(4):
            x = X + 4*kk + r
            o.append(f"v_dot2_f32_bf16 v{CT[r]}, v{x}, s{sOlo}, v{vNm}")
            o.append(f"v_dot2_f32_bf16 v{CT[r]+1}, v{x}, s{sOhi}, v{vNm}")
        for r in range(4):
            o.append(f"v_cvt_pk_bf16_f32 v{X+4*kk+r}, v{CT[r]}, v{CT[r]+1}")
        return o
    def center_plain(kk):
        o = []
        for r in range(4):
            x = X + 4*kk + r
            o += [f"v_lshlrev_b32 v{CT[r]}, 16, v{x}", f"v_and_b32 v{CT[r]+1}, 0xffff0000, v{x}",
                  f"v_add_f32 v{CT[r]}, v{vNm}, v{CT[r]}", f"v_add_f32 v{CT[r]+1}, v{vNm}, v{CT[r]+1}",
                  f"v_cvt_pk_bf16_f32 v{x}, v{CT[r]}, v{CT[r]+1}"]
        return o
    NPRE = CFG.ka_npre
    a.lines.append(".p2align 3")
    for kk in range(NPRE):
        for l in center(kk): a(l)
    pf.stamp()
    a("s_barrier")
    pf.stamp()

    def reads(kk, t):
        st = kk % 3
        off = (kk % 18) * 2048
        return [f"ds_read_b64_tr_b16 {vr(FR+8*st+4*t+2*h,2)}, v{vA1 if t else vA0} offset:{off+512*h}" for h in range(2)]
    def reads_s(kk):
        return [f"ds_read_b64_tr_b16 {vr(FR+8*(kk%3)+2*h,2)}, v{vA0} offset:{kk*512+128*h}" for h in range(2)]
    def mfma(par, kk, t):
        st = kk % 3; acc = AC[par] + 16*t
        c = "0" if kk == 0 else vr(acc, 16)
        return f"v_mfma_f32_32x32x16_bf16 {vr(acc,16)}, {vr(FR+8*st+4*t,4)}, {vr(X+4*kk,4)}, {c}"
    def stores(E, m):
        if CFG.ka_nostore: return []
        return [f"s_add_u32 s{sSt}, s{sDp}, {2*m*OCT}",
                f"buffer_store_dwordx4 {vr(E+8*m,4)}, v{vSt}, s[{sZQ}:{sZQ+3}], s{sSt} offen {CFG.st_aux_a}"]
    def epi(kind, E, ne_=32, D=None):
        out = []
        order = list(range(ne_)) if D is None else list(range(16, 32)) + list(range(16))
        dst = (lambda p: E+(p//8)*8+(p%8)//2) if D is None else D
        if kind == "P":
            for e in range(32):
                out.append(f"v_mul_f32 v{E+e}, v{vSc}, v{E+e}")
                if e % 2 == 1 and e >= 3:
                    p = e - 3; out.append(f"v_cvt_pk_bf16_f32 v{E+(p//8)*8+(p%8)//2}, v{E+p}, v{E+p+1}")
            out.append(f"v_cvt_pk_bf16_f32 v{E+27}, v{E+30}, v{E+31}")
            return out
        def st(k, pos):
            w = E + order[pos]; t = T + pos % 6
            return [f"v_mul_f32 v{w}, v{vSc}, v{w}", f"v_fma_f32 v{t}, v{w}, v{w}, s{sDl}", f"v_mul_f32 v{t}, v{t}, v{w}",
                    f"v_exp_f32 v{t}, v{t}", f"v_add_f32 v{t}, 1.0, v{t}", f"v_rcp_f32 v{t}, v{t}", f"v_mul_f32 v{w}, v{t}, v{w}"][k]
        for i in range(ne_ + 7):
            for k in (6, 3, 0, 4, 1, 5, 2):
                e = i - k
                if 0 <= e < ne_: out.append(st(k, e))
            e = i - 7
            if 0 <= e < ne_ and e % 2 == 1:
                p = order[e - 1]; out.append(f"v_cvt_pk_bf16_f32 v{dst(p)}, v{E+p}, v{E+p+1}")
        return out
    def stats(E):
        out = []
        for m in range(4):
            for i in range(4):
                b = E + 8*m
                out.append(f"v_dot2_f32_bf16 v{vSum}, v{b+i}, s{sOnes}, v{vSum}")
                out.append(f"v_dot2_f32_bf16 v{vSum+1}, v{b+i}, v{b+i}, v{vSum+1}")
        return out
    DA = lambda p: AC[0] + 16 + ((p - 16) // 2 if p >= 16 else 8 + p // 2)
    def body(kind, par):
        E = AC[1 - par]
        if kind == "F":
            for l in reads(0, 0) + reads(0, 1) + reads(1, 0) + reads(1, 1): a(l)
        a.label(f"{N}_{kind}{par}")
        slots = []
        for kk in range(0, 36):
            lw = 4
            if kind == "S": lw = 2 if kk < 35 else 0
            if kind == "H" and kk == 35: lw = 2
            s0 = [f"s_waitcnt lgkmcnt({lw})", mfma(par, kk, 0)]
            s1 = [mfma(par, kk, 1)] if kind != "S" else []
            if kk == 0: s0 += [f"s_add_u32 s{sV}, s{sU}, 1"]
            if kk == 1 and kind != "F": s0 += ["s_barrier"]
            if (kind, par, kk) == (("P", 0, 33) if CFG.ka_fq < 0 else ("H", 1, CFG.ka_fq)):
                s0 += ["s_waitcnt vmcnt(0)", f"buffer_store_dword v14, v13, s[{sFQ}:{sFQ+3}], s{sFq} offen sc1"]
            if kk == 20 and kind == "P" and par == 0: s1 += ["ds_read_b32 v14, v12"]
            if kk == 34: s0 += ["s_barrier"]
            if kk + 2 == 18 and kind != "S":
                s0 += [f"v_add_u32 v{vA0}, {18*2048}, v{vA0}", f"v_add_u32 v{vA1}, {18*2048}, v{vA1}"]
            if kind == "S": s0 += reads_s(kk + 2) if kk < 34 else []
            elif kind == "H" and kk >= 34: s0 += reads_s(kk - 34)
            else: s0 += reads((kk+2) % 36, 0)
            if kind != "S" and (kind != "H" or kk < 34): s1 += reads((kk+2) % 36, 1)
            st0 = (CFG.ka_pst1 if par else CFG.ka_pst) if kind == "P" else 36 - CFG.ka_stpos
            if kind in "GP" and st0 <= kk < st0 + 4:
                s0 += stores(E, kk - st0)
            if kk == 33 and kind == "H":
                s1 += [f"v_lshrrev_b32 v{vA0}, 7, v{vPn}", f"v_and_b32 v{vA1}, 24, v{vPn}", f"v_lshl_add_u32 v{vA0}, v{vA0}, 5, v{vA1}"]
            elif kk == 33 and kind != "S": s1 += traddr(1 - par)
            slots += [s0, s1]
        if kind == "S":
            sl = [slots[2*i] + slots[2*i+1] for i in range(36)]
            out = sl[0] + spread(sl[1:], epi("H", E))
        elif kind == "F":
            ne = 2 * NPRE - 2
            out = spread(slots[:ne], sum([center_plain(kk) for kk in range(NPRE, 36)], []))
            out += interleave(slots[ne:-6], cparams()) + sum(slots[-6:], [])
        elif kind == "N":
            out = slots[0] + interleave(slots[1:20], cparams()) + sum(slots[20:], [])
        elif kind == "H":
            out = slots[0] + slots[1] + spread(slots[2:], epi(kind, E, D=DA))
        else:
            ep = epi(kind, E)
            ne = len(slots) - 2*CFG.ka_stpos + 4 if kind != "P" else 24
            out = slots[0] + spread(slots[1:ne], cparams() + ep) + sum(slots[ne:], [])
        for l in out:
            if CFG.prof == 4 and kind in "PH" and l in (mfma(par, 12, 0), mfma(par, 18, 0), mfma(par, 33, 0), mfma(par, 34, 0), mfma(par, 34, 1)): pf.stamp()
            a(l)
        if kind == "G":
            a.lines.append(".p2align 3")
            for l in stats(E): a(l)
            a(f"ds_write_b64 v{vStO}, {vr(vSum,2)}")
        a(f"s_mov_b32 s{sDp}, s{sDc}")
        a(f"s_mov_b32 s{sDc}, s{sDn}")
        a(f"s_mov_b32 s{sU}, s{sV}")
        pf.stamp()
    body("F", 0); body("G", 1); body("G", 0)
    a(f"s_cmp_lt_u32 s{sNz2}, 3")
    a(f"s_cbranch_scc1 {N}_P1")
    E2 = AC[0]
    a("s_nop 7")
    for l in epi("G", E2):
        a(l)
        for m in range(4):
            if l.startswith(f"v_cvt_pk_bf16_f32 v{E2+8*m+3},"):
                for x in stores(E2, m): a(x)
    a.lines.append(".p2align 3")
    for l in stats(E2): a(l)
    a(f"ds_write_b64 v{vStO}, {vr(vSum,2)}")
    a("s_waitcnt lgkmcnt(0)")
    pf.stamp()
    body("N", 1)
    a(f"s_branch {N}_P0")
    body("P", 1); body("P", 0); body("H", 1); body("S", 0)
    src = [AC[0] + 24, AC[0] + 28, AC[0] + 16, AC[0] + 20, AC[1], AC[1] + 8, AC[1] + 16, AC[1] + 24]
    a(f"s_cmp_lg_u32 s{sMis}, 0")
    a(f"s_cbranch_scc1 {N}_zmis")
    for m in range(8):
        for r in range(4): a(f"v_mov_b32 v{Z1B+4*m+r}, v{src[m]+r}")
    a(f"s_branch {N}_zdone")
    a.label(f"{N}_zmis")
    for m, q in enumerate([4, 5, 0, 1, 2, 3, 6, 7]):
        for r in range(4): a(f"v_mov_b32 v{Z1B+4*m+r}, v{src[q]+r}")
    a.label(f"{N}_zdone")
    tl = epi("H", AC[0], 8)
    sw = []
    for i in range(4):
        for r in range(4): sw.append(f"v_permlane32_swap_b32 v{Z1B+8*i+r}, v{Z1B+8*i+4+r}")
        for r in range(4): sw.append(f"v_permlane16_swap_b32 v{Z1B+8*i+r}, v{Z1B+8*i+4+r}")
    for l in interleave([[x] for x in tl], sw): a(l)
    for r in range(4): a(f"v_mov_b32 v{Z1B+32+r}, v{AC[0]+r}")
    for r in range(2): a(f"v_permlane16_swap_b32 v{Z1B+32+r}, v{Z1B+34+r}")
    pf.stamp()
    a(f"s_branch {N}_At")
    a.label(f"{N}_prod")
    vD, vDin, vDq, vPi, vPq, vWo, vT, vZero, vTg = 2, 6, 7, 8, 9, 10, 20, 11, 24
    sIsT, sSo2 = 63, 50
    a(f"v_mov_b32 v{vZero}, 0")
    WU, P, MH, ML, C, TT = 128, 32, 96, 100, 104, 112
    sWS, sWP, sCP, sDB, sFL = 12, 24, 4, 8, 64
    sPc = sXr + 2
    if CFG.ka_prio: a(f"s_setprio {CFG.ka_prio}")
    a(f"s_cmp_lg_u32 s{sWave}, 4")
    a(f"s_cbranch_scc1 {N}_nopf1")
    code_prefetch(a, 88, vT, vL, N)
    a.label(f"{N}_nopf1")
    if CFG.ka_xpf:
        a(f"""s_sub_u32 s{sT1}, s{sWave}, 4
        s_lshl_b32 s{sT1}, s{sT1}, 5
        s_lshl_b32 s{sT0}, s{sRb}, 7
        s_add_u32 s{sT0}, s{sT0}, s{sT1}
        s_mul_i32 s{sT0}, s{sT0}, 1152
        v_lshrrev_b32 v{vT}, 2, v{vL}
        v_mul_u32_u24 v{vT}, 1152, v{vT}
        v_and_b32 v{vT+1}, 3, v{vL}
        v_lshl_add_u32 v{vT}, v{vT+1}, 7, v{vT}
        s_add_u32 s{sT1}, s{sT0}, {16*1152}
        s_waitcnt lgkmcnt(0)""")
        a.srd(sX, 4, 5, 2048 * 1152)
        a(f"buffer_load_dword v{vT+1}, v{vT}, s[{sX}:{sX+3}], s{sT0} offen offset:640")
        a(f"buffer_load_dword v{vT+2}, v{vT}, s[{sX}:{sX+3}], s{sT1} offen offset:640")
    a(unit_lists)
    a(f"""s_sub_u32 s{sPw}, s{sWave}, 4
    s_and_b32 s{sPc}, s{sPw}, 1
    s_mov_b32 s{sP8i}, {8*9216}
    s_mov_b32 s{sP8q}, {8*3456}
    v_lshrrev_b32 v{T+2}, 2, v{vL}
    v_and_b32 v{T+2}, 4, v{T+2}
    v_xor_b32 v{T+2}, v{T+2}, v{T+1}
    v_lshlrev_b32 v{T+2}, 4, v{T+2}
    v_mul_u32_u24 v{vDin}, 9216, v{T}
    v_add_u32 v{vDin}, v{vDin}, v{T+2}
    v_mul_u32_u24 v{vDq}, 3456, v{T}
    v_add_u32 v{vDq}, v{vDq}, v{T+2}
    v_lshlrev_b32 v{vWo}, 12, v{T}
    v_lshl_add_u32 v{vWo}, v{T+1}, 4, v{vWo}
    s_and_b32 s{sT0}, s{sRb}, {(1<<RBL)-1}
    s_mul_i32 s{sT0}, s{sT0}, {576>>RBL}
    s_mul_i32 s{sT1}, s{sPw}, {144>>RBL}
    s_add_u32 s{sT0}, s{sT0}, s{sT1}
    v_min_u32 v{T+2}, {(144>>RBL)-1}, v{vL}
    v_add_u32 v{T+2}, s{sT0}, v{T+2}
    v_mul_u32_u24 v{vPi}, 9216, v{T+2}
    v_mul_u32_u24 v{vPq}, 3456, v{T+2}""")
    a("s_waitcnt lgkmcnt(0)")
    a.srd(sWI, 8, 9, 576 * 9216)
    a.srd(sWQ, 6, 7, 576 * 3456)
    a(f"s_mov_b32 s{sDM+3}, 0x00020000")
    a.srd(sWS, 10, 11, 2048 * 4096)
    a.srd_off(sWP, 98, 99, CFG.ws_base + WP_OFF, WP_SZ)
    a.srd_off(sST, 98, 99, CFG.ws_base + ST_OFF, ST_SZ)
    a.srd_off(sCP, 98, 99, CFG.ws_base + CP_OFF, CP_SZ)
    a.srd(sDB, 96, 97, 256)
    a.srd_off(sFL, 98, 99, CFG.ws_base + FL_OFF, FL_SZ)
    a(f"""s_lshl_b32 s{sIsT}, s2, 3
    s_or_b32 s{sIsT}, s{sIsT}, s{sPw}
    v_mov_b32 v{vTg}, {FL_TAG}
    s_cmp_lg_u32 s{sIsT}, 0
    s_cbranch_scc1 {N}_notag
    buffer_load_dword v{vTg+1}, v{vTg}, s[{sFL}:{sFL+3}], 0 offen sc1""")
    a.label(f"{N}_notag")
    def pparams():
        a(f"""s_add_u32 s{sT0}, s{sZ2s}, s{sV}
        s_lshl_b32 s{sT0}, s{sT0}, 7
        s_lshl_b32 s{sT1}, s{sV}, 7
        s_add_u32 s{sT1}, s{sT1}, s{sZ1m}
        s_cmp_eq_u32 s{sV}, 4
        s_cselect_b32 s{sT2}, 64, -128
        s_mul_i32 s{sT2}, s{sT2}, s{sMis}
        s_add_u32 s{sT1}, s{sT1}, s{sT2}
        s_add_u32 s{sT2}, s{sQm}, s{sV}
        s_min_u32 s{sT2}, s{sT2}, 26
        s_lshl_b32 s{sT2}, s{sT2}, 7
        s_cmp_lt_u32 s{sV}, s{sNz2}
        s_cselect_b32 s{sUn}, s{sT0}, s{sT1}
        s_cmp_eq_u32 s{sV}, 6
        s_cselect_b32 s{sUn}, s{sHu}, s{sUn}
        s_sub_u32 s{sT0}, s{sV}, s{sNz2}
        s_sub_u32 s{sT1}, 4, s{sNz2}
        s_cmp_ge_u32 s{sT0}, s{sT1}
        s_cselect_b32 s{sUn}, s{sUn}, s{sT2}
        s_cselect_b64 s[{sMq}:{sMq+1}], 0, -1
        s_cselect_b64 s[{sDM}:{sDM+1}], s[{sWI}:{sWI+1}], s[{sWQ}:{sWQ+1}]
        s_cselect_b32 s{sDM+2}, s{sWI+2}, s{sWQ+2}
        s_cselect_b32 s{sP8}, s{sP8i}, s{sP8q}
        s_cmp_lt_u32 s{sV}, 7
        s_cselect_b32 s{sUn}, s{sUn}, 0x7f000000""")
    def issue(nw=4):
        pparams()
        a(f"""v_cndmask_b32 v{vD}, v{vDin}, v{vDq}, s[{sMq}:{sMq+1}]
        s_sub_u32 s{sDvs}, s{sP8}, 1024
        s_lshl_b32 s{sDstep}, s{sP8}, 1
        s_mul_i32 s{sDma}, s{sDstep}, s{sPw}
        s_add_u32 s{sDma}, s{sDma}, s{sUn}
        s_mul_i32 s{sDstep}, s{sDstep}, {nw}""")
        if nw == 2:
            a(f"""v_and_b32 v{vD+1}, 64, v{vD}
            v_mul_u32_u24 v{vD+1}, s{sMis}, v{vD+1}
            v_lshl_add_u32 v{vD}, v{vD+1}, 1, v{vD}""")
        a(f"""v_add_u32 v{vD+1}, s{sDvs}, v{vD}
        s_lshl_b32 s{sT0}, s{sPw}, 11
        s_add_u32 m0, s{sBufN}, s{sT0}
        s_sub_u32 s{sBufN}, {UB}, s{sBufN}
        s_add_u32 s{sV}, s{sV}, 1""")
        for i in range(36 // nw):
            for j in range(2):
                a(f"buffer_load_dwordx4 v{vD+j}, s[{sDM}:{sDM+3}], s{sDma} offen offset:{1024*j} {CFG.ld_a} lds")
            if i < 36 // nw - 1:
                a(f"s_add_u32 m0, m0, {2048*nw}")
                a(f"s_add_u32 s{sDma}, s{sDma}, s{sDstep}")
    a(f"s_mov_b32 s{sV}, 0")
    a(f"s_mov_b32 s{sBufN}, 0")
    if CFG.ka_xbar >= 0: a("s_barrier")
    issue()
    def l2pf(d=CFG.ka_l2pf-1):
        if d: a(f"s_add_u32 s{sV}, s{sV}, {d}")
        pparams()
        if d: a(f"s_sub_u32 s{sV}, s{sV}, {d}")
        a(f"v_cndmask_b32 v{vT+3}, v{vPi}, v{vPq}, s[{sMq}:{sMq+1}]")
        a(f"buffer_load_dword v14, v{vT+3}, s[{sDM}:{sDM+3}], s{sUn} offen {CFG.ka_pf_aux}")
    npf = 1 if CFG.ka_l2pf else 0
    for d in range(CFG.ka_pf0): l2pf(d)
    if CFG.ka_spf:
        a(f"""s_mul_i32 s{sXr}, s{sRb}, 36
        s_mul_i32 s{sT0}, s{sPw}, 9
        s_add_u32 s{sXr}, s{sXr}, s{sT0}""")
        a.label(f"{N}_spf")
        pparams()
        a(f"""s_lshr_b32 s{sT0}, s{sP8}, 3
        s_mul_i32 s{sT1}, s{sT0}, s{sXr}
        s_add_u32 s{sT1}, s{sT1}, s{sUn}
        s_add_u32 s96, s{sDM}, s{sT1}
        s_addc_u32 s97, s{sDM+1}, 0
        s_mov_b32 s{sT1}, 0""")
        for r in range(9):
            a(f"s_load_dword s{[98,94][r%2]}, s[96:97], s{sT1}")
            a(f"s_load_dword s{[99,95][r%2]}, s[96:97], s{sT1} offset:64")
            if r < 8: a(f"s_add_u32 s{sT1}, s{sT1}, s{sT0}")
        a(f"""s_add_u32 s{sV}, s{sV}, 1
        s_cmp_lt_u32 s{sV}, s{sN}
        s_cbranch_scc1 {N}_spf
        s_mov_b32 s{sV}, 1""")
    a(f"""s_lshl_b32 s{sXr}, s{sCg}, 19
    s_lshl_b32 s{sT0}, s{sRb}, 8
    s_add_u32 s{sXr}, s{sXr}, s{sT0}
    s_lshl_b32 s{sT0}, s{sPc}, 7
    s_add_u32 s{sXr}, s{sXr}, s{sT0}
    s_mov_b32 s{sXr+1}, s{sXr}""")
    a(f"s_waitcnt vmcnt({CFG.ka_pf0})")
    for d in range(CFG.ka_pf0, CFG.ka_l2pf): l2pf(d)
    a(f"""s_cmp_lg_u32 s{sIsT}, 0
    s_cbranch_scc1 {N}_notag2
    v_add_u32 v{vTg+1}, 1, v{vTg+1}
    v_max_u32 v{vTg+1}, 1, v{vTg+1}
    buffer_store_dword v{vTg+1}, v{vTg}, s[{sFL}:{sFL+3}], 0 offen sc1""")
    a.label(f"{N}_notag2")
    pf.stamp()
    a("s_barrier")
    if CFG.ka_prio2: a(f"s_setprio {CFG.ka_prio2}")
    def special(v):
        l = a.newlabel(N + "_sp")
        a(f"s_cmp_lg_u32 s{sV}, {v}")
        a(f"s_cbranch_scc1 {l}")
        return l
    a.label(f"{N}_ploop")
    nopub = a.newlabel(N + "_nopub")
    a(f"s_cmp_lg_u32 s{sV}, 4")
    a(f"s_cbranch_scc1 {nopub}")
    a(f"s_cmp_lg_u32 s{sPw}, 0")
    a(f"s_cbranch_scc1 {nopub}")
    a(f"""v_lshrrev_b32 v{vT}, 5, v{vL}
    v_and_b32 v{vT+1}, 31, v{vL}
    v_lshlrev_b32 v{vT}, 12, v{vT}
    v_lshl_add_u32 v{vT}, v{vT+1}, 3, v{vT}
    v_add_u32 v{vT}, {STG}, v{vT}
    ds_read_b64 {vr(P,2)}, v{vT}
    ds_read_b64 {vr(P+8,2)}, v{vT} offset:256
    ds_read_b64 {vr(P+4,2)}, v{vT} offset:8192
    ds_read_b64 {vr(P+10,2)}, v{vT} offset:{8192+256}
    v_lshlrev_b32 v{vT+1}, 4, v{vL}
    s_lshl_b32 s{sT0}, s{sRb}, 4
    s_add_u32 s{sT0}, s{sT0}, s{sCg}
    s_lshl_b32 s{sT0}, s{sT0}, 11
    v_mov_b32 v{P+2}, s{sTag}
    v_mov_b32 v{P+3}, s{sTag}
    v_mov_b32 v{P+6}, s{sTag}
    v_mov_b32 v{P+7}, s{sTag}
    s_waitcnt lgkmcnt(0)
    v_add_f32 v{P}, v{P}, v{P+8}
    v_add_f32 v{P+1}, v{P+1}, v{P+9}
    v_add_f32 v{P+4}, v{P+4}, v{P+10}
    v_add_f32 v{P+5}, v{P+5}, v{P+11}
    buffer_store_dwordx4 {vr(P,4)}, v{vT+1}, s[{sST}:{sST+3}], s{sT0} offen sc1
    buffer_store_dwordx4 {vr(P+4,4)}, v{vT+1}, s[{sST}:{sST+3}], s{sT0} offen offset:1024 sc1""")
    a.label(nopub)
    issue()
    if npf: l2pf()
    l3 = a.newlabel(N + "_l"); l4 = a.newlabel(N + "_l")
    l = special(2)
    a(f"s_cmp_lt_u32 s{sPw}, 2")
    a(f"s_cbranch_scc1 {N}_s0b")
    for i in range(16):
        a(f"buffer_load_dwordx4 {vr(WU+8*i+4,4)}, v{vWo}, s[{sWS}:{sWS+3}], s{sXr+1} offen {CFG.ka_wsp_aux}")
        a(f"s_add_u32 s{sXr+1}, s{sXr+1}, 32768")
    a(f"s_waitcnt vmcnt({16+npf})")
    a(f"s_branch {l3}")
    a.label(f"{N}_s0b")
    a(f"""v_mov_b32 v{vT+1}, {TAG_LDS-8}
    ds_write_b32 v{vT+1}, v{vZero}
    ds_write_b32 v{vT+1}, v{vZero} offset:4
    s_waitcnt vmcnt({npf}) lgkmcnt(0)
    s_cmp_lg_u32 s{sIsT}, 0
    s_cbranch_scc1 {l3}
    buffer_store_dword v{vTg+1}, v{vZero}, s[{sDB}:{sDB+3}], 0 offen sc1""")
    a(f"s_branch {l3}")
    a.label(l)
    if CFG.dbg_stale:
        l_ = special(3)
        a(f"""v_lshlrev_b32 v{vT}, 4, v{vL}
        s_lshl_b32 s{sT0}, s{sRb}, 15
        s_lshl_b32 s{sT1}, s{sPc}, 10
        s_add_u32 s{sT0}, s{sT0}, s{sT1}""")
        for i in range(16):
            a(f"buffer_load_dwordx4 {vr(P+4*i,4)}, v{vT}, s[{sST}:{sST+3}], s{sT0} offen offset:{(i%2)*2048}")
            if i % 2 == 1: a(f"s_add_u32 s{sT0}, s{sT0}, 4096")
        a("s_waitcnt vmcnt(0)")
        a.label(l_)
    l = special(4)
    a(f"s_mov_b32 s{sT1}, {CFG.bound}")
    a.label(f"{N}_ptag")
    a(f"""buffer_load_dword v{vT+2}, v{vZero}, s[{sDB}:{sDB+3}], 0 offen sc1
    s_waitcnt vmcnt(0)
    v_readfirstlane_b32 s{sTag}, v{vT+2}
    v_mov_b32 v{vT+1}, {TAG_LDS}
    ds_write_b32 v{vT+1}, v{vT+2}
    s_waitcnt lgkmcnt(0)
    s_sub_u32 s{sT1}, s{sT1}, 1
    s_cmp_eq_u32 s{sT1}, 0
    s_cbranch_scc1 {l3}
    s_cmp_lg_u32 s{sTag}, 0
    s_cbranch_scc1 {l3}
    s_sleep 8
    s_branch {N}_ptag""")
    a.label(l)
    a(f"s_cmp_lt_u32 s{sPw}, 2")
    a(f"s_cbranch_scc1 {l4}")
    l = special(5)
    for i in range(16):
        for r in range(4):
            x = WU + 8*i + 4 + r
            a(f"v_lshlrev_b32 v{WU+8*i+2*r}, 16, v{x}")
            a(f"v_and_b32 v{WU+8*i+2*r+1}, 0xffff0000, v{x}")
    sTry = sXr + 3
    a(f"""v_lshlrev_b32 v{vT}, 4, v{vL}
    s_lshl_b32 s{sT0}, s{sRb}, 15
    s_lshl_b32 s{sT1}, s{sPc}, 10
    s_add_u32 s{sSo2}, s{sT0}, s{sT1}
    s_mov_b32 s{sTry}, {CFG.bound}
    s_waitcnt vmcnt({npf})""")
    def full(aux="sc1"):
        a(f"s_mov_b32 s{sT0}, s{sSo2}")
        for i in range(16):
            a(f"buffer_load_dwordx4 {vr(P+4*i,4)}, v{vT}, s[{sST}:{sST+3}], s{sT0} offen offset:{(i%2)*2048} {aux}")
            if i % 2 == 1: a(f"s_add_u32 s{sT0}, s{sT0}, 4096")
    a("s_barrier")
    full(CFG.ka_st_aux)
    a("s_barrier")
    a(f"s_branch {N}_job")
    a.label(l)
    a.label(l4)
    a(f"s_waitcnt vmcnt({npf})")
    a.label(l3)
    if CFG.prof == 4: pf.stamp()
    a("s_barrier")
    if CFG.prof == 4: pf.stamp()
    a("s_barrier")
    a(f"s_cmp_lt_u32 s{sV}, 5")
    a(f"s_cbranch_scc1 {N}_ploop")
    issue(2)
    if CFG.codepf2 & 1:
        a(f"s_cmp_lg_u32 s{sPw}, 0")
        a(f"s_cbranch_scc1 {N}_nopf3")
        code_prefetch(a, 88, 26, vL, N)
        a.label(f"{N}_nopf3")
    a(f"""v_lshrrev_b32 v{vD}, 1, v{vL}
    v_mul_u32_u24 v{vD}, 9216, v{vD}
    v_and_b32 v{vD+1}, 1, v{vL}
    v_lshl_add_u32 v{vD}, v{vD+1}, 4, v{vD}
    s_mul_i32 s{sDma}, s{sPw}, {32*9216}
    s_add_u32 s{sDma}, s{sDma}, s{sHu}
    s_lshl_b32 s{sT0}, s{sPw}, 10
    s_mov_b32 m0, s{sT0}
    s_waitcnt vmcnt(0)""")
    if CFG.prof == 4: pf.stamp()
    a("""s_barrier
    s_barrier""")
    if CFG.prof == 4: pf.stamp()
    for i in range(9):
        a(f"buffer_load_dwordx4 v{vD}, s[{sWI}:{sWI+3}], s{sDma} offen lds")
        if i < 8:
            a("s_add_u32 m0, m0, 2048")
            a(f"s_add_u32 s{sDma}, s{sDma}, {64*9216}")
    a(f"s_branch {N}_Bh")
    a.label(f"{N}_job")
    if CFG.ka_prio2: a(f"s_setprio {CFG.ka_prioj}")
    pf.stamp()
    sSt8 = sXr + 1
    def d5():
        l = a.newlabel(N + "_d5")
        a(f"""s_cmp_lg_u32 s{sSt8}, 0
        s_cbranch_scc1 {l}
        s_mov_b32 s{sSt8}, 1
        s_barrier
        s_barrier""")
        a.label(l)
    a(f"s_mov_b32 s{sSt8}, 0")
    a(f"s_branch {N}_pst_w")
    a.label(f"{N}_pst")
    d5()
    a("s_sleep 8")
    full()
    a.label(f"{N}_pst_w")
    a("s_waitcnt vmcnt(0)")
    for i in range(16): a(f"v_xor_b32 v{P+4*i+2}, s{sTag}, v{P+4*i+2}")
    for i in range(1, 16): a(f"v_or_b32 v{P+2}, v{P+2}, v{P+4*i+2}")
    a(f"""v_cmp_ne_u32 vcc, 0, v{P+2}
    s_sub_u32 s{sTry}, s{sTry}, 1
    s_cmp_eq_u32 s{sTry}, 0
    s_cbranch_scc1 {N}_pst_ok
    s_cmp_lg_u64 vcc, 0
    s_cbranch_scc1 {N}_pst""")
    a.label(f"{N}_pst_ok")
    pf.stamp()
    a(f"""v_lshlrev_b32 v{vT}, 3, v{vL}
    s_lshl_b32 s{sT1}, s{sPw}, 9
    s_add_u32 s{sT1}, s{sT1}, {STG+4096+2048}
    v_add_u32 v{vT}, s{sT1}, v{vT}
    v_lshlrev_b32 v{vT+1}, 6, v{T+1}
    v_add_u32 v{vT+1}, s{sT1}, v{vT+1}
    s_mov_b32 s{sT0}, {f32(1.0/2304)}
    s_mov_b32 s{sT2}, {f32(1.0/abs(KSC))}""")
    for i in range(1, 16):
        a(f"v_add_f32 v{P}, v{P}, v{P+4*i}")
        a(f"v_add_f32 v{P+1}, v{P+1}, v{P+4*i+1}")
    a(f"""v_mul_f32 v{P}, s{sT0}, v{P}
    v_mul_f32 v{P+1}, s{sT0}, v{P+1}
    v_fma_f32 v{P+1}, -v{P}, v{P}, v{P+1}
    v_max_f32 v{P+1}, 0, v{P+1}
    v_add_f32 v{P+1}, {f32(EPS*KSC*KSC)}, v{P+1}
    v_rsq_f32 v{P+1}, v{P+1}
    v_mul_f32 v{P+1}, s{sT2}, v{P+1}
    ds_write_b64 v{vT}, {vr(P,2)}""")
    for q in range(4):
        a(f"ds_read_b128 {vr(P+4*q,4)}, v{vT+1} offset:{16*q}")
    a("s_waitcnt lgkmcnt(0)")
    for i in range(16):
        for r in range(8): a(f"v_mul_f32 v{WU+8*i+r}, v{P+2*r+1}, v{WU+8*i+r}")
        for r in range(4): a(f"v_cvt_pk_bf16_f32 v{WU+8*i+r}, v{WU+8*i+2*r}, v{WU+8*i+2*r+1}")
        if i < CFG.ka_early:
            a(f"buffer_store_dwordx4 {vr(WU+8*i,4)}, v{vWo}, s[{sWP}:{sWP+3}], s{sXr} offen sc1")
            a(f"s_add_u32 s{sXr}, s{sXr}, 32768")
    d5()
    for i in range(CFG.ka_early, 16):
        if i == CFG.ka_d6:
            a("s_barrier"); a("s_barrier")
        a(f"buffer_store_dwordx4 {vr(WU+8*i,4)}, v{vWo}, s[{sWP}:{sWP+3}], s{sXr} offen sc1")
        a(f"s_add_u32 s{sXr}, s{sXr}, 32768")
    pf.stamp()
    a(f"""s_lshl_b32 s{sXr}, s{sCg}, 7
    s_lshl_b32 s{sT1}, s{sRb}, 3
    s_add_u32 s{sXr}, s{sXr}, s{sT1}
    s_lshl_b32 s{sT1}, s{sPc}, 2
    s_add_u32 s{sXr}, s{sXr}, s{sT1}
    v_mov_b32 v{vTg}, s{sTag}""")
    fw = f"""s_waitcnt vmcnt(0)
    buffer_store_dword v{vTg}, v{vZero}, s[{sFL}:{sFL+3}], s{sXr} offen offset:{FL_W} sc1"""
    if CFG.ka_fwe: a(fw)
    if CFG.ka_d6 > 15:
        a("s_barrier")
        a("s_barrier")
    if CFG.ka_d7: a("s_barrier")
    if not CFG.ka_fwe: a(fw)
    pf.stamp()
    if not CFG.ka_d7: a("s_barrier")
    C2 = 48
    for p in range(4): a(f"v_cvt_pk_bf16_f32 v{MH+p}, v{P+4*p}, v{P+4*p+2}")
    for p in range(4):
        a(f"v_lshlrev_b32 v{TT}, 16, v{MH+p}")
        a(f"v_and_b32 v{TT+1}, 0xffff0000, v{MH+p}")
        a(f"v_sub_f32 v{TT}, v{P+4*p}, v{TT}")
        a(f"v_sub_f32 v{TT+1}, v{P+4*p+2}, v{TT+1}")
        a(f"v_cvt_pk_bf16_f32 v{ML+p}, v{TT}, v{TT+1}")
    a.lines.append(".p2align 3")
    for i in range(0, 16, 2):
        for r in range(4):
            for q in range(2):
                a(f"v_dot2_f32_bf16 v{C2+i+q}, v{WU+8*(i+q)+r}, v{MH+r}, {'0' if r==0 else 'v%d'%(C2+i+q)}")
            for q in range(2):
                a(f"v_dot2_f32_bf16 v{C2+i+q}, v{WU+8*(i+q)+r}, v{ML+r}, v{C2+i+q}")
    for ctrl in ["quad_perm:[1,0,3,2]", "quad_perm:[2,3,0,1]", "row_half_mirror"]:
        for q in range(16):
            a(f"v_add_f32_dpp v{C2+q}, v{C2+q}, v{C2+q} {ctrl} row_mask:0xf bank_mask:0xf")
    for i in range(1, 8):
        a(f"v_cmp_eq_u32 vcc, {i}, v{T+1}")
        a(f"v_cndmask_b32 v{C2}, v{C2}, v{C2+i}, vcc")
        a(f"v_cndmask_b32 v{C2+8}, v{C2+8}, v{C2+8+i}, vcc")
    a(f"""v_lshlrev_b32 v{vT}, 2, v{T}
    v_lshl_add_u32 v{vT}, v{T+1}, 5, v{vT}
    s_lshl_b32 s{sT0}, s{sCg}, 9
    s_lshl_b32 s{sT1}, s{sRb}, 14
    s_add_u32 s{sT0}, s{sT0}, s{sT1}
    s_lshl_b32 s{sT1}, s{sPc}, 13
    s_add_u32 s{sT0}, s{sT0}, s{sT1}
    buffer_store_dword v{C2}, v{vT}, s[{sCP}:{sCP+3}], s{sT0} offen sc1
    buffer_store_dword v{C2+8}, v{vT}, s[{sCP}:{sCP+3}], s{sT0} offen offset:256 sc1
    s_branch {N}_Bh""")

class Attn:
    KV, Q, LG, PH, O = 88, 184, 196, 60, 68
    vQo, vRd = 245, 246
    def __init__(self, a, sZQ, sUO, sT):
        self.a, self.sZQ, self.sUO, self.sT = a, sZQ, sUO, sT
    def base(self, sD, sT):
        self.a(f"""s_and_b32 s{sD}, s2, 7
        s_mul_i32 s{sD}, s{sD}, {9*OCT}
        s_lshr_b32 s{sT}, s2, 3
        s_lshl_b32 s{sT}, s{sT}, 10
        s_add_u32 s{sD}, s{sD}, s{sT}""")
    def kv_prep(self, vDo, TM):
        a = self.a
        for n in range(4):
            a(f"v_add_u32 v{TM}, {64*n}, v1")
            a(f"v_mul_u32_u24 v{TM+1}, 3277, v{TM}")
            a(f"v_lshrrev_b32 v{TM+1}, 18, v{TM+1}")
            a(f"v_mul_u32_u24 v{TM+2}, 80, v{TM+1}")
            a(f"v_sub_u32 v{TM}, v{TM}, v{TM+2}")
            a(f"v_lshlrev_b32 v{TM}, 4, v{TM}")
            a(f"v_lshl_add_u32 v{vDo+n}, v{TM+1}, 15, v{TM}")
            if n: a(f"v_subrev_u32 v{vDo+n}, {1024*n}, v{vDo+n}")
    def stage(self, heads, vDo, vZ, sB, sL, sT):
        a, sZQ = self.a, self.sZQ
        for kv in (0, 2, 1):
            for w in heads:
                if kv < 2:
                    a(f"s_add_u32 m0, s{sL}, {12288*w+4096*kv}")
                    a(f"s_add_u32 s{sT}, s{sB}, {(576+72+72*kv+(9*w>>2))*OCT-256}")
                    for n in range(4):
                        a(f"buffer_load_dwordx4 v{vDo+n}, s[{sZQ}:{sZQ+3}], s{sT} offen offset:{1024*n} lds")
                else:
                    for j in range(3):
                        a(f"s_add_u32 m0, s{sL}, {12288*w+8192+1024*j}")
                        a(f"s_add_u32 s{sT}, s{sB}, {(576+(9*w>>2)+j)*OCT}")
                        a(f"buffer_load_dwordx4 v{vZ}, s[{sZQ}:{sZQ+3}], s{sT} offen lds")
    def setup(self, sWave, sL):
        a, sT = self.a, self.sT
        self.base(sT, sT+1)
        a(f"""s_mul_i32 s{sT+1}, s{sWave}, 9
        s_lshr_b32 s{sT+1}, s{sT+1}, 2
        s_add_u32 s{sT+1}, s{sT+1}, 288
        s_lshl_b32 s{sT+1}, s{sT+1}, 15
        s_add_u32 s{sT}, s{sT}, s{sT+1}
        v_lshlrev_b32 v{self.vQo}, 4, v1
        s_mul_i32 s{sT+5}, s{sWave}, 12288
        s_add_u32 s{sT+5}, s{sT+5}, s{sL}
        s_add_u32 s{sT+5}, s{sT+5}, 32
        v_add_u32 v{self.vRd}, s{sT+5}, v{self.vQo}
        s_lshr_b32 s{sT+4}, s2, 3
        s_lshl_b32 s{sT+4}, s{sT+4}, 6
        v_add_u32 v16, s{sT+4}, v1
        v_mov_b32 v17, 0xff800000""")
        for w in range(1, 8):
            a(f"v_cmp_le_u32 s[{40+2*w}:{41+2*w}], {2*w}, v16")
        sc = (18 ** -0.5) * math.log2(math.e) / (KSC * KSC)
        a(f"s_mov_b32 s{sT+4}, {f32(sc)}")
        a(f"s_mov_b32 s{sT+5}, {f32(KSC)}")
    def reads(self):
        a = self.a
        for j in range(3):
            a(f"ds_read_b128 {vr(self.Q+4*j,4)}, v{self.vRd} offset:{8192-32+1024*j}")
        self.rd(0)
    def rd(self, base):
        for w in range(8):
            for j in range(3):
                self.a(f"ds_read_b128 {vr(self.KV+12*w+4*j,4)}, v{self.vRd} offset:{base+j*1280+224-32*w}")
    def compute(self, do):
        a, sT, KV, Q, LG, PH, O = self.a, self.sT, self.KV, self.Q, self.LG, self.PH, self.O
        for w0 in range(0, 8, 2):
            a(f"s_waitcnt lgkmcnt({min(15, 24-3*(w0+2))})")
            a.lines.append(".p2align 3")
            for i in range(9):
                for w in (w0, w0+1):
                    c = "0" if i == 0 else f"v{LG+w}"
                    a(f"v_dot2_f32_bf16 v{LG+w}, v{Q+do+i}, v{KV+12*w+do+i}, {c}")
        self.rd(4096)
        for w in range(1, 8):
            a(f"v_cndmask_b32 v{LG+w}, v17, v{LG+w}, s[{40+2*w}:{41+2*w}]")
        g = LG; m = 18; s = 19
        a(f"v_max3_f32 v{m}, v{g}, v{g+1}, v{g+2}")
        a(f"v_max3_f32 v{m}, v{m}, v{g+3}, v{g+4}")
        a(f"v_max3_f32 v{m}, v{m}, v{g+5}, v{g+6}")
        a(f"v_max_f32 v{m}, v{m}, v{g+7}")
        for w in range(8): a(f"v_sub_f32 v{g+w}, v{g+w}, v{m}")
        for w in range(8): a(f"v_mul_f32 v{g+w}, s{sT+4}, v{g+w}")
        for w in range(8): a(f"v_exp_f32 v{g+w}, v{g+w}")
        for w in range(8): a(f"v_cvt_pk_bf16_f32 v{g+w}, v{g+w}, 0")
        for w in range(8): a(f"v_lshlrev_b32 v{PH+w}, 16, v{g+w}")
        a(f"v_add_f32 v{s}, v{PH}, v{PH+1}")
        for w in range(2, 8): a(f"v_add_f32 v{s}, v{s}, v{PH+w}")
        a(f"v_mul_f32 v{s}, s{sT+5}, v{s}")
        a(f"v_rcp_f32 v{s}, v{s}")
        for w in range(8):
            if w % 2 == 0:
                a(f"s_waitcnt lgkmcnt({min(15, 24-3*(w+2))})")
                a.lines.append(".p2align 3")
            for d in range(9):
                c0 = "0" if w == 0 else f"v{O+2*d}"
                c1 = "0" if w == 0 else f"v{O+2*d+1}"
                a(f"v_dot2_f32_bf16 v{O+2*d}, v{KV+12*w+do+d}, v{LG+w}, {c0}")
                a(f"v_dot2_f32_bf16 v{O+2*d+1}, v{KV+12*w+do+d}, v{PH+w}, {c1}")
        for d in range(18): a(f"v_mul_f32 v{O+d}, v{s}, v{O+d}")
        for d in range(9): a(f"v_cvt_pk_bf16_f32 v{Q+do+d}, v{O+2*d}, v{O+2*d+1}")
        for j in range(3):
            lo, hi = max(do, 4*j), min(do + 9, 4*j + 4)
            while lo < hi:
                n = 1 if lo % 2 else hi - lo
                sfx = {1: "dword", 2: "dwordx2", 3: "dwordx3", 4: "dwordx4"}[n]
                a(f"buffer_store_{sfx} {vr(Q+lo,n)}, v{self.vQo}, s[{self.sUO}:{self.sUO+3}], s{sT} offen offset:{4*(lo-4*j)} sc1")
                lo += n
            if j < 2: a(f"s_add_u32 s{sT}, s{sT}, {OCT}")

UB = 73728
def c_tile(a, sRb, sCg, sT):
    a(f"""s_and_b32 s{sT}, s2, 7
    s_lshr_b32 s{sT+1}, s2, 3
    s_mul_i32 s{sT+2}, s{sT}, 29
    s_min_u32 s{sT}, s{sT}, 2
    s_add_u32 s{sT+2}, s{sT+2}, s{sT}
    s_add_u32 s{sT+2}, s{sT+2}, s{sT+1}
    s_mul_i32 s{sRb}, s{sT+2}, 7282
    s_lshr_b32 s{sRb}, s{sRb}, 16
    s_mul_i32 s{sT}, s{sRb}, 9
    s_sub_u32 s{sCg}, s{sT+2}, s{sT}""")
UFC, vUC = 88, 247
def o_prefetch(a, sWave, sUO, sTt, sT, bar_every=0, loads=True):
    c_tile(a, sT+3, sT+4, sT)
    a(f"""s_min_u32 s{sT+1}, s{sWave}, 4
    s_mul_i32 s{sTt}, s{sT+3}, 5
    s_add_u32 s{sTt}, s{sTt}, s{sT+1}
    s_cmp_ge_u32 s2, 234
    s_cselect_b32 s{sTt}, 128, s{sTt}
    s_min_u32 s{sT}, s{sTt}, 127
    s_lshl_b32 s{sT}, s{sT}, 8
    v_lshrrev_b32 v{vUC}, 4, v1
    v_lshlrev_b32 v{vUC}, 15, v{vUC}
    v_and_b32 v248, 15, v1
    v_lshl_add_u32 v249, v248, 4, v{vUC}
    v_add_u32 v{vUC}, s{sT}, v249
    s_mov_b32 s{sT}, {288*OCT}""")
    for k in range(18 if loads else 0):
        a(f"buffer_load_dwordx4 {vr(UFC+4*k,4)}, v{vUC}, s[{sUO}:{sUO+3}], s{sT} offen")
        if k < 17: a(f"s_add_u32 s{sT}, s{sT}, {4*OCT}")
        if bar_every and k % bar_every == bar_every - 1: a("s_barrier")
def o_stage(a, w, ks, sUO, sT):
    a(f"""s_mul_i32 s{sT}, s{sT+3}, 5
    s_add_u32 s{sT}, s{sT}, {w}
    s_min_u32 s{sT}, s{sT}, 127
    s_lshl_b32 s{sT}, s{sT}, 8""")
    for k in ks:
        a(f"s_add_u32 m0, s{sLo}, {18432*w+1024*k}")
        a(f"s_add_u32 s{sT+1}, s{sT}, {(288+4*k)*OCT}")
        a(f"buffer_load_dwordx4 v249, s[{sUO}:{sUO+3}], s{sT+1} offen lds")

def phase_B(a, N):
    pf = a.pf
    ZO = 16384
    def zb(j): return ZO + j*1024 + (j >> 1)*64 + (64 if j == 17 else 0)
    STG = zb(17) + 1024
    FREE = 2 * UB
    NE = 12
    BC = FREE
    sWP, sZQ, sUO, sCP, sBS, sFL = 12, 16, 20, 24, 28, 64
    sWave, sTb, sFb, sOdd, sT = 36, 37, 38, 39, 40
    sI, sSlot, sHi, sA, sZm, sZs, sZ1m, sZ1s = 56, 57, 58, 59, 60, 61, 62, 63
    sTt, sFu = 98, 99
    RBL = CFG.ka_rbl
    def common():
        a("s_load_dwordx4 s[4:7], s[0:1], 48")
        a("s_load_dwordx2 s[8:9], s[0:1], 16")
        a("s_load_dwordx2 s[10:11], s[0:1], 80")
        a(f"""s_and_b32 s{sT}, s2, 7
        s_lshr_b32 s{sT+1}, s2, 3
        s_and_b32 s{sTb}, s{sT}, {(16>>RBL)-1}
        s_lshl_b32 s{sTb}, s{sTb}, {RBL}
        s_and_b32 s{sT+2}, s{sT+1}, {(1<<RBL)-1}
        s_add_u32 s{sTb}, s{sTb}, s{sT+2}
        s_lshr_b32 s{sFb}, s{sT}, {4-RBL}
        s_lshl_b32 s{sFb}, s{sFb}, {5-RBL}
        s_lshr_b32 s{sT+2}, s{sT+1}, {RBL}
        s_add_u32 s{sFb}, s{sFb}, s{sT+2}
        s_and_b32 s{sOdd}, s{sFb}, 1
        s_mul_i32 s{sZm}, s{sFb}, 18
        s_lshl_b32 s{sT}, s{sOdd}, 1
        s_add_u32 s{sZs}, s{sZm}, 16
        s_lshl_b32 s{sT+1}, s{sOdd}, 4
        s_sub_u32 s{sZs}, s{sZs}, s{sT+1}
        s_add_u32 s{sZm}, s{sZm}, s{sT}
        s_lshl_b32 s{sZm}, s{sZm}, 15
        s_lshl_b32 s{sZs}, s{sZs}, 15
        s_sub_u32 s{sHi}, {UB}, s{sLo}""")
    ACC, FA, FB, Z1, T = 16, 88, 160, Z1B, 176
    vL, vZ0, vZ1, vZs, vB0, vB1, vE, vEs = 1, 2, 3, 4, 5, 6, 7, 8
    vBC = 10
    AD = {vB0: 240, vB1: 241, vZ0: 242, vZ1: 243, vZs: 244}
    a.label(f"{N}_At")
    common()
    a(f"""v_lshrrev_b32 v{T}, 4, v{vL}
    v_and_b32 v{T+1}, 15, v{vL}
    v_bfe_u32 v{T+2}, v{vL}, 2, 2
    v_and_b32 v{T+3}, 3, v{vL}
    v_lshl_add_u32 v{T+4}, v{T}, 3, v{T+2}
    v_lshlrev_b32 v{T+4}, 4, v{T+4}
    v_add_u32 v{T+4}, {ZO}, v{T+4}
    v_lshrrev_b32 v{T+5}, 1, v{T+3}
    v_and_b32 v{T+6}, 1, v{T+3}
    v_lshl_add_u32 v{vZ0}, v{T+3}, 10, v{T+4}
    v_lshl_add_u32 v{vZ0}, v{T+5}, 6, v{vZ0}
    v_lshl_add_u32 v{vZ0}, v{T+6}, 3, v{vZ0}
    v_xor_b32 v{vZ1}, 8, v{vZ0}
    v_mul_u32_u24 v{vZs}, 1088, v{T+5}
    v_add_u32 v{vZs}, v{vZs}, v{T+4}
    v_xor_b32 v{T+6}, v{T+6}, v{T+5}
    v_lshl_add_u32 v{vZs}, v{T+6}, 3, v{vZs}
    s_lshl_b32 s{sT}, s{sWave}, 5
    v_add_u32 v{T+7}, s{sT}, v{T+1}
    v_and_b32 v{T+8}, 7, v{vL}
    v_xor_b32 v{T+8}, v{T+8}, v{T}
    v_lshlrev_b32 v{T+8}, 4, v{T+8}
    v_lshl_add_u32 v{vB0}, v{T+7}, 7, v{T+8}
    v_xor_b32 v{vB1}, 64, v{vB0}""")
    for r, r2 in AD.items(): a(f"v_add_u32 v{r2}, s{sHi}, v{r}")
    for r in AD: a(f"v_add_u32 v{r}, s{sLo}, v{r}")
    a(f"""s_lshl_b32 s{sT+1}, s{sTb}, 7
    v_add_u32 v{T+9}, s{sT+1}, v{T+7}
    v_lshlrev_b32 v{vE}, 4, v{T+9}
    v_lshrrev_b32 v{T+8}, 1, v{T}
    v_lshl_add_u32 v{vEs}, v{T+8}, 15, v{vE}
    v_and_b32 v{T+10}, 1, v{T}
    v_lshl_add_u32 v{vEs}, v{T+10}, 3, v{vEs}
    v_lshl_add_u32 v{vE}, v{T}, 15, v{vE}
    v_lshlrev_b32 v{vBC}, 2, v{T+7}
    v_add_u32 v{vBC}, {BC}, v{vBC}
    s_lshl_b32 s{sFu}, s{sTb}, 8
    s_lshl_b32 s{sT}, s{sFb}, 4
    s_add_u32 s{sFu}, s{sFu}, s{sT}
    s_lshl_b32 s{sT}, s{sWave}, 2
    s_add_u32 s{sFu}, s{sFu}, s{sT}
    s_add_u32 s{sFu}, s{sFu}, {FL_U}""")
    for i in range(4, 44): a(f"v_mov_b32 v{ACC+i}, 0")
    at = Attn(a, sZQ, sUO, 70)
    at.setup(sWave, sHi)
    a(f"s_mov_b32 s{sI}, 8")
    a("s_waitcnt lgkmcnt(0)")
    a.srd_off(sUO, 10, 11, CFG.ws_base + UO_OFF, UO_SZ)
    a.srd_off(sFL, 10, 11, CFG.ws_base + FL_OFF, FL_SZ)
    pf.stamp()
    a(f"""v_mov_b32 v18, {TAG_LDS-8}
    v_readfirstlane_b32 s{sTag}, v14
    s_mov_b32 s{sA}, {CFG.bound*16}""")
    a.label(f"{N}_kvw")
    a(f"""ds_read_b64 v[184:185], v18
    s_waitcnt lgkmcnt(0)
    v_xor_b32 v184, s{sTag}, v184
    v_xor_b32 v185, s{sTag}, v185
    v_or_b32 v184, v184, v185
    s_sub_u32 s{sA}, s{sA}, 1
    v_readfirstlane_b32 s{sSlot}, v184
    s_cmp_eq_u32 s{sA}, 0
    s_cbranch_scc1 {N}_kvd
    s_cmp_lg_u32 s{sSlot}, 0
    s_cbranch_scc1 {N}_kvw""")
    a.label(f"{N}_kvd")
    pf.stamp()
    at.reads()
    for w in range(4):
        if w < 3:
            a(f"s_cmp_lg_u32 s{sWave}, {w}")
            a(f"s_cbranch_scc1 {N}_at{w+1}")
        at.compute(w)
        if w < 3:
            a(f"s_branch {N}_atd")
            a.label(f"{N}_at{w+1}")
    a.label(f"{N}_atd")
    for i in list(range(4)) + list(range(44, 72)): a(f"v_mov_b32 v{ACC+i}, 0")
    def reads(slot, h, st):
        R = (lambda r: AD[r]) if slot >= 2 else (lambda r: r)
        so = (slot & 1) * STG
        out = [f"ds_read_b128 {vr(FB+8*st+4*tt,4)}, v{R(vB1 if h else vB0)} offset:{so+2048*tt}" for tt in range(2)]
        for j in range(9):
            for rd in range(2):
                if j < 8:
                    out.append(f"ds_read_b64_tr_b16 {vr(FA+36*st+4*j+2*rd,2)}, v{R(vZ1 if j&1 else vZ0)} offset:{so+zb(4*(j>>1))-ZO+512*h+64*rd}")
                else:
                    out.append(f"ds_read_b64_tr_b16 {vr(FA+36*st+4*j+2*rd,2)}, v{R(vZs)} offset:{so+zb(16)-ZO+512*h+64*rd}")
        return out
    def phase(st, rds):
        out = []; k = 0
        for j in range(9):
            for tt in range(2):
                if tt == 0 and j % 3 == 0:
                    jj = min(j + 2, 8)
                    out.append(f"s_waitcnt lgkmcnt({min(15, 19-(3+2*jj)+k)})")
                out.append(f"v_mfma_f32_16x16x32_bf16 {vr(ACC+8*j+4*tt,4)}, {vr(FA+36*st+4*j,4)}, {vr(FB+8*st+4*tt,4)}, {vr(ACC+8*j+4*tt,4)}")
                for _ in range(2 if j == 1 else 1):
                    if k < len(rds): out.append(rds[k]); k += 1
        return out
    pf.stamp()
    a("s_barrier")
    pf.stamp()
    for l in reads(0, 0, 0): a(l)
    a.lines.append(".p2align 6")
    a.label(f"{N}_Bloop")
    for slot in range(4):
        for l in phase(0, reads(slot, 1, 1)): a(l)
        if slot == 3:
            a(f"s_sub_u32 s{sI}, s{sI}, 1")
            a("s_waitcnt vmcnt(0)")
        a("s_barrier")
        if CFG.prof == 2: pf.stamp()
        for l in phase(1, reads((slot + 1) % 4, 0, 0)): a(l)
    a(f"s_cmp_lg_u32 s{sI}, 0")
    a(f"s_cbranch_scc1 {N}_Bloop")
    a(f"ds_read_b32 v{vBC+1}, v{vBC} offset:64")
    a(f"ds_read_b32 v{vBC}, v{vBC}")
    a("s_waitcnt lgkmcnt(0)")
    a("s_barrier")
    order = [0, 1, 2, 3, 4]
    pf.stamp()
    for oi, i in enumerate(order):
        if i < 4: a(f"s_add_u32 s{sT}, s{sZm}, {4*OCT*i}")
        for tt in range(2):
            n = 4 if i < 4 else 2
            z = Z1 + 8*i + n*tt
            for r in range(n):
                j = 2*i + (r >> 1)
                ac = ACC + 8*j + 4*tt + 2*(r & 1)
                t = T + 4*(r % 2)
                a(f"v_add_f32 v{ac}, v{vBC+tt}, v{ac}")
                a(f"v_add_f32 v{ac+1}, v{vBC+tt}, v{ac+1}")
                a(f"v_lshlrev_b32 v{t}, 16, v{z+r}")
                a(f"v_and_b32 v{t+1}, 0xffff0000, v{z+r}")
                a(f"v_mul_f32 v{t}, v{t}, v{ac}")
                a(f"v_mul_f32 v{t+1}, v{t+1}, v{ac+1}")
                a(f"v_cvt_pk_bf16_f32 v{z+r}, v{t}, v{t+1}")
            if i < 4:
                a(f"buffer_store_dwordx4 {vr(z,4)}, v{vE}, s[{sUO}:{sUO+3}], s{sT} offen offset:{256*tt} sc1")
            else:
                a(f"buffer_store_dwordx2 {vr(z,2)}, v{vEs}, s[{sUO}:{sUO+3}], s{sZs} offen offset:{256*tt} sc1")
    o_prefetch(a, sWave, sUO, sTt, sT, loads=False)
    a(f"s_branch {N}_Cc")
    a.label(f"{N}_Bh")
    common()
    vA, vZ = 2, 3
    a(f"""v_lshrrev_b32 v4, 3, v1
    v_and_b32 v5, 7, v1
    v_xor_b32 v5, v5, v4
    v_lshlrev_b32 v5, 4, v5
    v_lshl_add_u32 v{vA}, v4, 12, v5
    v_lshlrev_b32 v{vZ}, 4, v1
    s_lshl_b32 s{sA}, s{sTb}, 19
    s_lshl_b32 s{sT+1}, s{sTb}, 11
    s_add_u32 s{sZ1m}, s{sZm}, s{sT+1}
    s_add_u32 s{sZ1s}, s{sZs}, s{sT+1}
    s_add_u32 s{sZm}, s{sZm}, {288*OCT}
    s_add_u32 s{sZs}, s{sZs}, {288*OCT}
    s_mov_b32 s{sSlot}, s{sLo}
    s_waitcnt lgkmcnt(0)""")
    a.srd_off(sWP, 10, 11, CFG.ws_base + WP_OFF, WP_SZ)
    a.srd_off(sZQ, 10, 11, CFG.ws_base + ZQ_OFF, ZQ_SZ)
    a.srd_off(sUO, 10, 11, CFG.ws_base + UO_OFF, UO_SZ)
    a.srd_off(sCP, 10, 11, CFG.ws_base + CP_OFF, CP_SZ)
    a.srd(sBS, 4, 5, 4096)
    a(f"s_cmp_ge_u32 s{sWave}, 6")
    a(f"s_cbranch_scc1 {N}_xt")
    at = Attn(a, sZQ, sUO, 70)
    at.kv_prep(4, 8)
    at.base(sT+2, sT+3)
    a(f"""s_lshr_b32 s{sT+1}, s2, 4
    s_max_u32 s{sT+3}, s{sT+1}, 1
    s_sub_u32 s{sT+3}, s{sT+3}, 1
    s_lshl_b32 s{sT+1}, s{sT+1}, 8
    s_lshl_b32 s{sT+3}, s{sT+3}, 8
    s_add_u32 s{sT+1}, s{sT+1}, {FL_Q}
    s_add_u32 s{sT+3}, s{sT+3}, {FL_Q}
    v_lshlrev_b32 v8, 2, v1
    s_mov_b32 s{sI}, 0""")
    def pend():
        l = a.newlabel(N + "_dn"); l2 = a.newlabel(N + "_dn")
        a(f"""s_cmp_ge_u32 s{sI}, 2
        s_cbranch_scc1 {l}
        s_waitcnt vmcnt(0)
        s_barrier
        s_cmp_eq_u32 s{sI}, 1
        s_cbranch_scc1 {l2}
        s_barrier""")
        a.label(l2)
        a(f"s_add_u32 s{sI}, s{sI}, 1")
        a.label(l)
    poll_flags(a, f"{N}_pq", sFL, [(8, f"s{sT+1}", 1), (8, f"s{sT+3}", 1)], 12, sT, pend)
    pf.stamp()
    pend(); pend()
    a(f"s_cmp_eq_u32 s{sWave}, 5")
    a(f"s_cbranch_scc1 {N}_st1")
    at.stage((0, 1), 4, vZ, sT+2, sHi, sT)
    a(f"s_branch {N}_st2")
    a.label(f"{N}_st1")
    at.stage((2, 3), 4, vZ, sT+2, sHi, sT)
    a.label(f"{N}_st2")
    a(f"""s_lshl_b32 s{sT+2}, s{sTb}, 7
    v_and_b32 v10, 31, v1
    v_lshlrev_b32 v10, 2, v10
    s_lshl_b32 s{sT+3}, s{sWave}, 2
    s_add_u32 s{sT+3}, s{sT+3}, {TAG_LDS-8-16}
    v_mov_b32 v8, s{sT+3}
    v_mov_b32 v9, s{sTag}
    s_waitcnt vmcnt(0)
    ds_write_b32 v8, v9""")
    pf.stamp()
    for q in range(4): a(f"s_mov_b32 s{sT+4+q}, {FL_Q+1024*q}")
    poll_flags(a, f"{N}_pz", sFL, [(vZ, f"s{sT+4+q}", 4) for q in range(4)] + [(10, f"s{sT+2}", 1)], 16, sT)
    pf.stamp()
    items = [("A", i) for i in range(16)] + [("Z", j) for j in range(18)]
    sN4 = sT + 5
    a(f"s_mov_b32 s{sN4}, 0")
    def issue(p):
        out = []
        for kind, i in items[17*p:17*p+17]:
            if kind == "A":
                out.append(f"s_add_u32 m0, s{sSlot}, {i*1024}")
                out.append(f"s_add_u32 s{sT}, s{sA}, {i*8*4096}")
                out.append(f"buffer_load_dwordx4 v{vA}, s[{sWP}:{sWP+3}], s{sT} offen {CFG.ld_b} lds")
            else:
                out.append(f"s_add_u32 m0, s{sSlot}, {zb(i)}")
                out.append(f"s_add_u32 s{sT}, s{sZm if i < 16 else sZs}, {(i if i < 16 else i-16)*OCT}")
                out.append(f"buffer_load_dwordx4 v{vZ}, s[{sZQ}:{sZQ+3}], s{sT} offen {CFG.ld_b} lds")
        out += [f"s_add_u32 s{sA}, s{sA}, 128", f"s_add_u32 s{sZm}, s{sZm}, 1024", f"s_add_u32 s{sZs}, s{sZs}, 1024",
                f"s_add_u32 s{sN4}, s{sN4}, 1", f"s_bitcmp1_b32 s{sN4}, 1", f"s_cselect_b32 s{sSlot}, s{sHi}, s{sLo}",
                f"s_bitcmp1_b32 s{sN4}, 0", f"s_cselect_b32 s{sT}, {STG}, 0", f"s_add_u32 s{sSlot}, s{sSlot}, s{sT}"]
        return out
    for p in range(2):
        if p == 0:
            a(f"s_cmp_eq_u32 s{sWave}, 5")
            a(f"s_cbranch_scc1 {N}_prod1")
        else:
            a.label(f"{N}_prod1")
        for st in range(2):
            for l in issue(p): a(l)
        a("s_waitcnt vmcnt(17)")
        a("s_barrier")
        a(f"s_mov_b32 s{sI}, 30")
        a.label(f"{N}_Bploop{p}")
        for l in issue(p): a(l)
        a("s_waitcnt vmcnt(17)")
        a("s_barrier")
        a(f"s_sub_u32 s{sI}, s{sI}, 1")
        a(f"s_cmp_lg_u32 s{sI}, 0")
        a(f"s_cbranch_scc1 {N}_Bploop{p}")
        a(f"s_branch {N}_Bpend")
    a.label(f"{N}_Bpend")
    a("s_waitcnt vmcnt(0)")
    a("s_barrier")
    a(f"s_branch {N}_Cp")
    a.label(f"{N}_xt")
    a(f"s_cmp_eq_u32 s{sWave}, 7")
    a(f"s_cbranch_scc1 {N}_xtrb")
    nb = [0]
    a(f"""s_mul_i32 s{sT+1}, s2, {81*128}
    s_add_u32 s68, s6, s{sT+1}
    s_addc_u32 s69, s7, 0
    s_mul_i32 s{sT+1}, s2, {21*128}
    s_min_u32 s{sT+1}, s{sT+1}, {(5184-21)*128}
    s_add_u32 s70, s8, s{sT+1}
    s_addc_u32 s71, s9, 0""")
    spf = [f"s_load_dword s{74+i%6}, s[70:71], {64*i}" for i in range(42)] + [f"s_load_dword s{74+i%6}, s[68:69], {64*i}" for i in range(162)]
    def bar(n=1, pfn=CFG.kb_spf):
        for _ in range(n):
            a("s_barrier"); nb[0] += 1
            if nb[0] >= 3:
                for _ in range(pfn):
                    if spf: a(spf.pop(0))
    a(f"""s_lshl_b32 s{sT+2}, s2, 2
    s_add_u32 s{sT+2}, s{sT+2}, {FL_E}
    v_mov_b32 v4, 0
    v_mov_b32 v5, s{sTag}""")
    bar(2)
    a("s_waitcnt vmcnt(0)")
    bar(3)
    a(f"buffer_store_dword v5, v4, s[{sFL}:{sFL+3}], s{sT+2} offen sc1")
    X0 = CFG.kb_x0
    bar(X0 - 1 - nb[0])
    a(f"s_mov_b32 s{sT+1}, {FL_E}")
    poll_flags(a, f"{N}_pe", sFL, [(vZ, f"s{sT+1}", 4)], 8, sT)
    a(f"""s_lshl_b32 s{sT+2}, s{sTb}, 9
    s_lshr_b32 s{sT+1}, s{sT+2}, 1
    v_lshlrev_b32 v4, 3, v1
    v_lshlrev_b32 v5, 2, v1""")
    bar()
    a(f"buffer_load_dword v8, v5, s[{sBS}:{sBS+3}], s{sT+1} offen")
    for i in range(32):
        a(f"buffer_load_dwordx2 {vr(16+2*i,2)}, v4, s[{sCP}:{sCP+3}], s{sT+2} offen")
        a(f"s_add_u32 s{sT+2}, s{sT+2}, 8192")
        if i % CFG.kb_cpg == CFG.kb_cpg - 1: bar()
    bar(2)
    a("s_waitcnt vmcnt(0)")
    for i in range(1, 32):
        a(f"v_add_f32 v16, v16, v{16+2*i}")
        a(f"v_add_f32 v17, v17, v{17+2*i}")
        if i % 16 == 0: bar()
    a(f"""s_mov_b32 s{sT}, {f32(1.0/KSC)}
    v_and_b32 v9, 0xffff0000, v8
    v_lshlrev_b32 v8, 16, v8
    v_fma_f32 v8, v8, s{sT}, -v16
    v_fma_f32 v9, v9, s{sT}, -v17
    v_add_u32 v4, {BC}, v4
    ds_write_b64 v4, v[8:9]
    s_waitcnt vmcnt(0) lgkmcnt(0)""")
    o_prefetch(a, sWave, sUO, sTt, sT, loads=False)
    assert nb[0] <= 31 and not spf, (nb[0], len(spf))
    bar(31 - nb[0])
    o_stage(a, 0, range(18), sUO, sT)
    bar()
    o_stage(a, 3, range(18), sUO, sT)
    bar(2)
    a("s_waitcnt vmcnt(0) lgkmcnt(0)")
    a(f"s_branch {N}_Cx")
    a.label(f"{N}_xtrb")
    def barloop(n, nm):
        a(f"s_mov_b32 s{sI}, {n}")
        a.label(nm)
        a("s_barrier")
        a(f"s_sub_u32 s{sI}, s{sI}, 1")
        a(f"s_cmp_lg_u32 s{sI}, 0")
        a(f"s_cbranch_scc1 {nm}")
    a("s_barrier")
    a("s_barrier")
    a("s_waitcnt vmcnt(0)")
    barloop(X0 - 2, f"{N}_xb_loop")
    if CFG.codepf2 & 2: code_prefetch(a, 88, 26, 1, N)
    o_prefetch(a, sWave, sUO, sTt, sT, bar_every=3)
    barloop(31 - X0 - 6, f"{N}_xb_loop2")
    o_stage(a, 1, range(16), sUO, sT)
    a("s_barrier")
    o_stage(a, 1, range(16, 18), sUO, sT)
    o_stage(a, 2, range(18), sUO, sT)
    a("s_barrier")
    a("s_barrier")
    a(f"s_mov_b32 s{sFu}, 0x7f000000")
    a("s_waitcnt vmcnt(0)")
    a(f"s_branch {N}_Cc")

def phase_C(a, N):
    pf = a.pf
    NS = 9
    sUO, sWO, sWA, sX, sOUT, sDM, sFL = 20, 16, 12, 24, 28, 32, 64
    sWave, sRb, sCg, sT = 36, 37, 38, 40
    sI, sU, sW, sHi = 50, 51, 52, 53
    sTt, sFu = 98, 99
    def common():
        a("s_load_dwordx2 s[4:5], s[0:1], 0")
        a("s_load_dwordx2 s[6:7], s[0:1], 16")
        a("s_load_dwordx4 s[8:11], s[0:1], 56")
        c_tile(a, sRb, sCg, sT)
        a(f"s_sub_u32 s{sHi}, {UB}, s{sLo}")
    a.label(f"{N}_Cc")
    pf.stamp()
    a(f"""v_mov_b32 v13, 0
    s_cmp_lt_u32 s{sTt}, 128
    s_cbranch_scc1 {N}_Ctile
    s_waitcnt vmcnt(0)
    buffer_store_dword v14, v13, s[{sFL}:{sFL+3}], s{sFu} offen sc1""")
    pf.flush(sWave)
    a("s_endpgm")
    a.label(f"{N}_Ctile")
    common()
    ACC, SV, XR, T, UF, FA = 16, 32, 48, 56, UFC, 160
    FAS = [160, 192, 72 - 0]
    vL, vU, vA, vXo, vA8 = 1, vUC, 4, 3, 8
    FAB = [160, 192, 224]
    vU2 = 12
    a(f"""v_mov_b32 v{vU2}, v{vUC}
    v_lshrrev_b32 v{T}, 4, v{vL}
    v_and_b32 v{T+1}, 15, v{vL}
    s_lshl_b32 s{sT}, s{sTt}, 4
    v_add_u32 v{T+2}, s{sT}, v{T+1}
    s_bfe_u32 s{sU}, s2, 0x20001
    s_mul_i32 s{sU}, s{sU}, {72*OCT*CFG.kc_rot}
    v_mul_u32_u24 v{vXo}, 1152, v{T+2}
    v_and_b32 v{T+3}, 1, v{T}
    v_lshl_add_u32 v{vXo}, v{T+3}, 5, v{vXo}
    v_lshrrev_b32 v{T+3}, 1, v{T}
    v_lshl_add_u32 v{vXo}, v{T+3}, 4, v{vXo}
    s_lshl_b32 s{sT+1}, s{sCg}, 7
    v_bfe_u32 v{T+3}, v{vL}, 2, 2
    v_lshl_add_u32 v{T+4}, v{T}, 3, v{T+3}
    v_lshlrev_b32 v{T+4}, 7, v{T+4}
    v_and_b32 v{T+5}, 3, v{vL}
    v_lshl_add_u32 v{T+4}, v{T+5}, 3, v{T+4}
    v_lshrrev_b32 v{T+3}, 1, v{T+3}
    v_and_b32 v{T+5}, 1, v{T}
    v_lshl_add_u32 v{T+3}, v{T+5}, 1, v{T+3}
    v_lshl_add_u32 v{vA}, v{T+3}, 5, v{T+4}
    v_add_u32 v{vA}, s{sHi}, v{vA}
    v_xor_b32 v{vA+1}, 32, v{vA}
    v_xor_b32 v{vA+2}, 64, v{vA}
    v_xor_b32 v{vA+3}, 96, v{vA}""")
    for j in range(4): a(f"v_add_u32 v{vA8+j}, {8*8192}, v{vA+j}")
    for i in range(16): a(f"v_mov_b32 v{ACC+i}, 0")
    def uload(slot):
        return [f"buffer_load_dwordx4 {vr(UF+4*slot,4)}, v{vU2}, s[{sUO}:{sUO+3}], s{sU} offen {CFG.ld_c}",
                f"s_add_u32 s{sU}, s{sU}, {4*OCT}", f"s_cmp_eq_u32 s{sU}, {288*OCT}", f"s_cselect_b32 s{sU}, 0, s{sU}"]
    def reads(st):
        st %= 9
        return [f"ds_read_b64_tr_b16 {vr(FAB[st%3]+16*h+4*j+2*rd,2)}, v{(vA8 if st == 8 else vA)+j} offset:{(st%8)*8192+4096*h+512*rd}"
                for h in range(2) for j in range(4) for rd in range(2)]
    a(f"s_mov_b32 s{sI}, 4")
    pf.stamp()
    a("s_barrier")
    pf.stamp()
    for l in reads(0): a(l)
    a(f"""s_cmp_ge_u32 s{sWave}, 4
    s_cbranch_scc1 {N}_Cno
    s_mul_i32 s{sT}, s{sWave}, 18432
    s_add_u32 s{sT}, s{sT}, s{sLo}
    v_lshlrev_b32 v{T}, 4, v{vL}
    v_add_u32 v{T}, s{sT}, v{T}""")
    for k in range(18): a(f"ds_read_b128 {vr(UF+4*k,4)}, v{T} offset:{1024*k}")
    a.label(f"{N}_Cno")
    a("s_waitcnt lgkmcnt(0)")
    a.srd(sX, 4, 5, 2048 * 1152)
    a.srd(sOUT, 10, 11, 2048 * 1152)
    LA = CFG.kc_la
    def cpass(first):
        acc = SV if first else ACC
        for st in range(9):
            a("s_barrier")
            rd = reads(st + 1)
            k = 0
            for h in range(2):
                ks = 2*st + h
                if not first: a(f"s_waitcnt vmcnt({LA-1})")
                for j in range(4):
                    c = "0" if (first and ks == 0) else vr(acc+4*j, 4)
                    a(f"v_mfma_f32_16x16x32_bf16 {vr(acc+4*j,4)}, {vr(FAB[st%3]+16*h+4*j,4)}, {vr(UF+4*ks,4)}, {c}")
                    for _ in range(3):
                        if k < 16: a(rd[k]); k += 1
                if not first:
                    for l in uload((ks + LA) % 18): a(l)
                elif st >= 7:
                    for q in range(LA * (ks - 14) // 4, LA * (ks - 13) // 4):
                        for l in uload(q): a(l)
            if first and st == CFG.kc_fu:
                a("s_waitcnt vmcnt(0)")
                a(f"buffer_store_dword v14, v13, s[{sFL}:{sFL+3}], s{sFu} offen sc1")
                if CFG.prof == 5: pf.stamp()
                for p in range(2):
                    a(f"buffer_load_dwordx4 {vr(XR+4*p,4)}, v{vXo}, s[{sX}:{sX+3}], s{sT+1} offen offset:{64*p}")
            a("s_waitcnt lgkmcnt(0)")
        pf.stamp()
    cpass(True)
    a.lines.append(".p2align 6")
    a.label(f"{N}_Cloop")
    cpass(False)
    a(f"s_sub_u32 s{sI}, s{sI}, 1")
    a(f"s_cmp_lg_u32 s{sI}, 0")
    a(f"s_cbranch_scc1 {N}_Cloop")
    a(f"s_mov_b32 s{sT}, {f32(-math.log2(math.e))}")
    a("s_nop 4")
    for i in range(16): a(f"v_mul_f32 v{T+i}, s{sT}, v{ACC+i}")
    for i in range(16): a(f"v_exp_f32 v{T+i}, v{T+i}")
    for i in range(16): a(f"v_mul_f32 v{SV+i}, v{SV+i}, v{ACC+i}")
    for i in range(16): a(f"v_add_f32 v{T+i}, 1.0, v{T+i}")
    for i in range(16): a(f"v_rcp_f32 v{T+i}, v{T+i}")
    for i in range(16): a(f"v_mul_f32 v{SV+i}, v{SV+i}, v{T+i}")
    for p in range(2):
        x = XR + 4*p
        a(f"v_permlane16_swap_b32 v{x}, v{x+2}")
        a(f"v_permlane16_swap_b32 v{x+1}, v{x+3}")
        for r in range(4):
            s = SV + 8*p + 2*r
            a(f"v_lshlrev_b32 v{T}, 16, v{x+r}")
            a(f"v_and_b32 v{T+1}, 0xffff0000, v{x+r}")
            a(f"v_add_f32 v{T}, v{T}, v{s}")
            a(f"v_add_f32 v{T+1}, v{T+1}, v{s+1}")
            a(f"v_cvt_pk_bf16_f32 v{x+r}, v{T}, v{T+1}")
        a(f"v_permlane16_swap_b32 v{x}, v{x+2}")
        a(f"v_permlane16_swap_b32 v{x+1}, v{x+3}")
        a(f"buffer_store_dwordx4 {vr(x,4)}, v{vXo}, s[{sOUT}:{sOUT+3}], s{sT+1} offen offset:{64*p} {CFG.out_aux}")
    if CFG.prof:
        pf.stamp(); a("s_waitcnt vmcnt(0)")
    pf.flush(sWave)
    a("s_endpgm")
    a.label(f"{N}_Cp")
    a(f"s_cmp_ge_u32 s2, 234")
    a(f"s_cbranch_scc1 {N}_end")
    common()
    vD = 2
    a(f"""v_lshrrev_b32 v8, 3, v1
    v_and_b32 v9, 7, v1
    v_lshrrev_b32 v10, 3, v1
    v_and_b32 v10, 2, v10
    v_xor_b32 v9, v9, v10
    v_lshlrev_b32 v9, 4, v9
    v_mul_u32_u24 v{vD}, 1152, v8
    v_add_u32 v{vD}, v{vD}, v9
    v_xor_b32 v{vD+1}, 64, v{vD}
    v_add_u32 v{vD+1}, {8*1152-1024}, v{vD+1}
    v_add_u32 v{vD+2}, {2*(8*1152-1024)}, v{vD}
    v_add_u32 v{vD+3}, {2*(8*1152-1024)}, v{vD+1}
    s_sub_u32 s{sT}, s{sWave}, 4
    s_mul_i32 s{sW}, s{sT}, {32*1152}
    s_lshl_b32 s{sT+1}, s{sCg}, 7
    s_add_u32 s{sW}, s{sW}, s{sT+1}
    s_mov_b32 s{sT+3}, s{sW}
    s_lshl_b32 s{sT+2}, s{sT}, 12
    s_add_u32 s{sT+2}, s{sT+2}, s{sHi}
    s_add_u32 s{sT+5}, s{sHi}, {NS*8192}
    s_mov_b32 s{sT+4}, s{sT+2}
    s_mul_i32 s{sT+6}, s{sRb}, 80
    s_add_u32 s{sT+7}, s{sT+6}, 79
    s_min_u32 s{sT+7}, s{sT+7}, 2047
    s_lshr_b32 s{sT+8}, s{sT+6}, 7
    s_lshl_b32 s{sT+8}, s{sT+8}, 8
    s_add_u32 s{sT+8}, s{sT+8}, {FL_U}
    s_lshr_b32 s{sT+9}, s{sT+7}, 7
    s_lshl_b32 s{sT+9}, s{sT+9}, 8
    s_add_u32 s{sT+9}, s{sT+9}, {FL_U}
    v_and_b32 v8, 15, v1
    v_lshlrev_b32 v8, 2, v8
    s_bfe_u32 s{sU}, s2, 0x20001
    s_mul_i32 s{sU}, s{sU}, {CFG.kc_rot}
    s_add_u32 s{sT+6}, s{sW}, {2304*1152}
    s_waitcnt lgkmcnt(0)""")
    a.srd(sDM, 6, 7, 576 * 1152)
    def issue():
        out = [f"s_mov_b32 m0, s{sT+4}",
               f"s_add_u32 s{sT+4}, s{sT+4}, 8192"]
        out += [f"buffer_load_dwordx4 v{vD+j}, s[{sDM}:{sDM+3}], s{sW} offen offset:{1024*j} {CFG.ld_c} lds" for j in range(4)]
        out += [f"s_add_u32 s{sW}, s{sW}, {64*1152}",
                f"s_cmp_ge_u32 s{sT+4}, s{sT+5}",
                f"s_cselect_b32 s{sT+4}, s{sT+2}, s{sT+4}",
                f"s_cmp_eq_u32 s{sW}, s{sT+6}",
                f"s_cselect_b32 s{sW}, s{sT+3}, s{sW}"]
        return out
    a("s_barrier")
    for st in range(9):
        if st == 4: a("s_barrier")
        for l in issue(): a(l)
    a.srd(sDM, 8, 9, 2304 * 1152)
    a(f"s_mul_i32 s{sW}, s{sU}, {576*1152}")
    a(f"s_add_u32 s{sW}, s{sW}, s{sT+3}")
    a("s_waitcnt vmcnt(32)")
    pf.stamp()
    a("s_barrier")
    def ploop(n, name):
        a(f"s_mov_b32 s{sI}, {n}")
        a.label(name)
        a("s_waitcnt vmcnt(28)")
        a("s_barrier")
        for l in issue(): a(l)
        a(f"s_sub_u32 s{sI}, s{sI}, 1")
        a(f"s_cmp_lg_u32 s{sI}, 0")
        a(f"s_cbranch_scc1 {name}")
    ploop(7, f"{N}_Cploop0")
    a(f"""s_lshl_b32 s{sT+7}, s{sU}, 6
    v_add_u32 v9, s{sT+7}, v8""")
    poll_flags(a, f"{N}_pu0", sFL, [(9, f"s{sT+8}", 1), (9, f"s{sT+9}", 1)], 16, sI)
    pf.stamp()
    ploop(29, f"{N}_Cploop4")
    for n in range(8):
        a(f"s_waitcnt vmcnt({28-4*n})")
        a("s_barrier")
    pf.flush(sWave)
    a("s_endpgm")
    a.label(f"{N}_Cx")
    a(f"s_cmp_ge_u32 s2, 234")
    a(f"s_cbranch_scc1 {N}_end")
    c_tile(a, sRb, sCg, sT)
    a(f"""s_mul_i32 s{sT+6}, s{sRb}, 80
    s_add_u32 s{sT+7}, s{sT+6}, 79
    s_min_u32 s{sT+7}, s{sT+7}, 2047
    s_lshr_b32 s{sT+8}, s{sT+6}, 7
    s_lshl_b32 s{sT+8}, s{sT+8}, 8
    s_add_u32 s{sT+8}, s{sT+8}, {FL_U}
    s_lshr_b32 s{sT+9}, s{sT+7}, 7
    s_lshl_b32 s{sT+9}, s{sT+9}, 8
    s_add_u32 s{sT+9}, s{sT+9}, {FL_U}
    v_and_b32 v8, 15, v1
    v_lshlrev_b32 v8, 2, v8
    s_bfe_u32 s{sU}, s2, 0x20001
    s_mul_i32 s{sU}, s{sU}, {CFG.kc_rot}
    s_barrier""")
    done = 0
    for j in range(1, 4):
        upto = 9 + (18 * j - CFG.kc_la) // 2
        for _ in range(upto - 3 - done): a("s_barrier")
        a(f"""s_add_u32 s{sT+7}, s{sU}, {j}
        s_and_b32 s{sT+7}, s{sT+7}, 3
        s_lshl_b32 s{sT+7}, s{sT+7}, 6
        v_add_u32 v9, s{sT+7}, v8
        buffer_load_dword v16, v9, s[{sFL}:{sFL+3}], s{sT+8} offen sc1
        buffer_load_dword v17, v9, s[{sFL}:{sFL+3}], s{sT+9} offen sc1
        s_barrier
        s_barrier
        s_barrier
        s_waitcnt vmcnt(0)
        v_xor_b32 v16, s{sTag}, v16
        v_xor_b32 v17, s{sTag}, v17
        v_or_b32 v16, v16, v17
        v_cmp_ne_u32 vcc, 0, v16
        s_nop 1
        s_cmp_eq_u64 vcc, 0
        s_cbranch_scc1 {N}_pu{j}_ok""")
        poll_flags(a, f"{N}_pu{j}", sFL, [(9, f"s{sT+8}", 1), (9, f"s{sT+9}", 1)], 16, sI)
        done = upto
    pf.flush(sWave)
    a.label(f"{N}_end")
    a("s_endpgm")

def gen_M():
    a = Asm(); N = NAME + "_kernel"
    phase_A(a, N); phase_B(a, N); phase_C(a, N)
    return a, kd(N, 256, 256, 102), (N, 256, 512, 163840)

HEADER = open("cdna_kernels/" + NAME + ".s.ref").read().split("; Override")[0]

def build(verbose=False):
    a, k, (n, grid, block, lds) = gen_M()
    txt = HEADER + f"; @launch grid=({grid},1,1) block=({block},1,1) lds={lds}\n"
    lines, ins = fix_hazards(a.lines, verbose, "M")
    print(f"{len(lines)} lines, {ins} hazard nops", file=sys.stderr)
    body = "\n".join(("    " + l if not (l.endswith(":") or l.startswith(".")) else l) for l in lines) + "\n"
    txt += '.amdgcn_target "amdgcn-amd-amdhsa--gfx950"\n.text\n.p2align 8\ncode_begin:\n' + body + "code_end:\n" + k
    return txt

if __name__ == "__main__":
    for arg in sys.argv[2:]:
        if "=" in arg:
            k_, v_ = arg.split("=", 1)
            setattr(CFG, k_, type(getattr(CFG, k_))(v_) if not isinstance(getattr(CFG, k_), bool) else int(v_))
    open(sys.argv[1], "w").write(build(verbose="-v" in sys.argv))
```
